```python
import torch

def _softmax(x, axis=-1):
    return torch.softmax(x, dim=axis)
def _gelu(x):
    return torch.nn.functional.gelu(x, approximate="tanh")
def _silu(x):
    return torch.nn.functional.silu(x)
def _sigmoid(x):
    return torch.sigmoid(x)
def _layernorm(x, axis=-1, eps=1e-5):
    m = x.mean(dim=axis, keepdim=True)
    v = x.var(dim=axis, keepdim=True, unbiased=False)
    return (x - m) / torch.sqrt(v + eps)
def _scatter_add(tgt, idx, src, axis=0):
    return tgt.clone().index_add_(axis, idx, src)
def _segment_sum(src, seg, n):
    out = torch.zeros((n,) + src.shape[1:], dtype=src.dtype)
    return out.index_add_(0, seg, src)
def _pad(x, pw):
    flat = tuple(v for pair in reversed(pw) for v in pair)
    return torch.nn.functional.pad(x, flat)

kernel_name = 'parallel_sum__ssm_conv_s4__dense_activation_gelu__prompt'

def setup_inputs():

    _w = (lambda a: (lambda t: t.to(torch.bfloat16) if t.is_floating_point() else t)(torch.as_tensor(a)))
    def _A_setup():
        B, L, D, N = 1, 2048, 640, 128
        A_re = -(lambda _x: torch.exp(torch.as_tensor(_x)))((lambda *s: torch.randn(*s, dtype=torch.bfloat16) * 6.4)(D, N))
        A_im = torch.pi * (lambda *s: torch.randn(*s, dtype=torch.bfloat16) * 0.05)(D, N)
        B_re = (lambda *s: torch.randn(*s, dtype=torch.bfloat16) * 0.1)(D, N)
        B_im = (lambda *s: torch.randn(*s, dtype=torch.bfloat16) * 0.1)(D, N)
        C_re = (lambda *s: torch.randn(*s, dtype=torch.bfloat16) * 0.1)(D, N)
        C_im = (lambda *s: torch.randn(*s, dtype=torch.bfloat16) * 0.1)(D, N)
        log_dt = (lambda *s: torch.randn(*s, dtype=torch.bfloat16) * 0.05)(D) * 0.5 - 4.0
        Dskip = (lambda *s: torch.randn(*s, dtype=torch.bfloat16) * 0.05)(D)
        return {
            "u": _w((lambda *s: torch.randn(*s, dtype=torch.bfloat16) * 0.05)(B, L, D)),
            "A_re": _w(A_re),
            "A_im": _w(A_im),
            "B_re": _w(B_re),
            "B_im": _w(B_im),
            "C_re": _w(C_re),
            "C_im": _w(C_im),
            "log_dt": _w(log_dt),
            "Dskip": _w(Dskip),
        }
    _A_in = _A_setup()

    def _B_setup():
        B, S, D, F = 1, 2048, 640, 1728
        return {
            "x": _w((lambda *s: torch.randn(*s, dtype=torch.bfloat16) * 0.05)(B, S, D)),
            "w1": _w((lambda *s: torch.randn(*s, dtype=torch.bfloat16) * 0.8)(D, F) * (D ** -0.5)),
            "b1": _w((lambda *s: torch.randn(*s, dtype=torch.bfloat16) * 0.2)(F) * 0.01),
            "w2": _w((lambda *s: torch.randn(*s, dtype=torch.bfloat16) * 0.2)(F, D) * (F ** -0.5)),
            "b2": _w((lambda *s: torch.randn(*s, dtype=torch.bfloat16) * 0.2)(D) * 0.01),
        }
    _B_in = _B_setup()

    return {
        "A_u": _A_in["u"],
        "A_A_re": _A_in["A_re"],
        "A_A_im": _A_in["A_im"],
        "A_B_re": _A_in["B_re"],
        "A_B_im": _A_in["B_im"],
        "A_C_re": _A_in["C_re"],
        "A_C_im": _A_in["C_im"],
        "A_log_dt": _A_in["log_dt"],
        "A_Dskip": _A_in["Dskip"],
        "B_x": _B_in["x"],
        "B_w1": _B_in["w1"],
        "B_b1": _B_in["b1"],
        "B_w2": _B_in["w2"],
        "B_b2": _B_in["b2"],
    }

def reference(A_u, A_A_re, A_A_im, A_B_re, A_B_im, A_C_re, A_C_im, A_log_dt, A_Dskip, B_x, B_w1, B_b1, B_w2, B_b2):
    def _A_ref(u, A_re, A_im, B_re, B_im, C_re, C_im, log_dt, Dskip):
        Bsz, L, D = u.shape
        dt = torch.exp(log_dt)[:, None]
        A = A_re + 1j * A_im
        Bc = B_re + 1j * B_im
        Cc = C_re + 1j * C_im
        logdA = dt * A
        dB = dt * Bc
        l = (lambda x, dt: x.to(dt))(torch.arange(L), A_re.dtype)
        P = torch.exp(logdA[:, :, None] * l[None, None, :])
        K = torch.einsum("dn,dnl,dn->dl", Cc, P, dB).real
        L2 = 2 * L
        Kp = _pad(K, ((0, 0), (0, L)))
        up = (lambda x, *d: x.permute(*d))(u, 0, 2, 1)
        up = _pad(up, ((0, 0), (0, 0), (0, L)))
        Kf = (lambda x, axes=(-2,-1): torch.fft.rfft2(x.float(), dim=axes))(Kp[:, None, :], axes=(-2, -1))
        Uf = (lambda x, axes=(-2,-1): torch.fft.rfft2(x.float(), dim=axes))(up[:, :, None, :], axes=(-2, -1))
        Yf = Uf * Kf[None, :, :, :]
        y = (lambda x, s, axes=(-2,-1): torch.fft.irfft2(x, s=s, dim=axes).to(torch.bfloat16))(Yf, (1, L2), axes=(-2, -1))[:, :, 0, :L]
        y = (lambda x, *d: x.permute(*d))(y, 0, 2, 1) + u * Dskip[None, None, :]
        return y

    def _B_ref(x, w1, b1, w2, b2):
        h = torch.einsum("bsd,df->bsf", x, w1) + b1
        h = _gelu(h)
        return torch.einsum("bsf,fd->bsd", h, w2) + b2

    x = A_u
    xn = _layernorm(x, axis=-1)
    return x + _A_ref(xn, A_A_re, A_A_im, A_B_re, A_B_im, A_C_re, A_C_im, A_log_dt, A_Dskip) + _B_ref(xn, B_w1, B_b1, B_w2, B_b2)
```

```python
import re

REG_RE = re.compile(r'\b([vsa])(\d+)\b|\b([vsa])\[(\d+):(\d+)\]|\b(vcc|exec|m0|scc)(?:_lo|_hi)?\b')
TRANS = ("v_exp_f32", "v_log_f32", "v_rcp_f32", "v_rsq_f32", "v_sqrt_f32", "v_sin_f32", "v_cos_f32", "v_rcp_iflag_f32")

def regs_of(op):
    out = []
    for m in REG_RE.finditer(op):
        if m.group(1):
            out.append((m.group(1), int(m.group(2))))
        elif m.group(3):
            out += [(m.group(3), i) for i in range(int(m.group(4)), int(m.group(5)) + 1)]
        else:
            out.append((m.group(6), 0))
    return out

def split_ops(rest):
    ops, depth, cur = [], 0, ""
    for ch in rest:
        if ch == '[': depth += 1
        if ch == ']': depth -= 1
        if ch == ',' and depth == 0:
            ops.append(cur.strip()); cur = ""
        else:
            cur += ch
    if cur.strip(): ops.append(cur.strip())
    return ops

class Ins:
    def __init__(self, text):
        self.text = text
        t = text.split(';')[0].strip()
        self.is_label = t.endswith(':')
        self.is_dir = t.startswith('.') or t == ""
        self.mn = ""
        self.w, self.r = set(), set()
        self.kind = "other"
        self.states = 1
        if self.is_label or self.is_dir:
            self.states = 0
            return
        parts = t.split(None, 1)
        mn = self.mn = parts[0]
        rest = parts[1] if len(parts) > 1 else ""
        rest_nomod = re.sub(r'\b(op_sel|op_sel_hi|neg_lo|neg_hi|quad_perm|row_\w+|bank_mask|row_mask|offset\d?|bound_ctrl|cbsz|abid|blgp|wave_\w+)\s*:\s*(\[[^\]]*\]|\S+)', '', rest)
        ops = split_ops(rest_nomod)
        self.ops = ops
        R = [regs_of(o) for o in ops]
        self.dpp = ("dpp" in mn) or bool(re.search(r'quad_perm|row_(shl|shr|ror|mirror|half_mirror|bcast|newbcast|share|xmask)|wave_', rest))
        if mn == "s_nop":
            self.states = int(ops[0], 0) + 1
            self.kind = "nop"
        elif mn.startswith("v_mfma"):
            self.kind = "mfma"
            self.w = set(R[0]); self.srcab = set(R[1]) | set(R[2]); self.srcc = set(R[3]) if len(R) > 3 else set()
            self.r = self.srcab | self.srcc
            self.passes = 8 if "32x32" in mn else 4
        elif mn.startswith("v_"):
            self.kind = "valu"
            if mn.startswith("v_cmpx"):
                self.w = set(R[0]) | {("exec", 0)}; self.r = set(sum(R[1:], []))
            elif mn.startswith("v_permlane") and "swap" in mn:
                self.w = set(R[0]) | set(R[1]); self.r = set(self.w)
            elif mn.startswith(("v_add_co", "v_sub_co", "v_addc_co", "v_subb_co", "v_subrev_co", "v_mad_u64", "v_div_scale")):
                self.w = set(R[0]) | set(R[1]); self.r = set(sum(R[2:], []))
            else:
                self.w = set(R[0]); self.r = set(sum(R[1:], []))
                if mn.startswith(("v_fmac", "v_dot2c", "v_pk_fmac", "v_writelane")) or self.dpp:
                    self.r |= set(R[0])
            self.trans = mn.replace("_e32", "").replace("_e64", "") in TRANS
            self.dot = mn.startswith("v_dot")
        elif mn.startswith(("buffer_", "global_", "flat_")):
            self.kind = "vmem"
            allr = set(sum(R, []))
            if "load" in mn and "lds" not in rest.split() and "_lds_" not in mn:
                self.w = set(R[0]); self.r = set(sum(R[1:], []))
            elif "atomic" in mn and "sc0" in rest.split():
                self.w = set(R[0]); self.r = allr
            else:
                self.r = allr
            self.lds_dma = ("lds" in rest.split()) or ("_lds_" in mn)
            self.wide_store = ("store" in mn) and ("x3" in mn or "x4" in mn)
            if self.wide_store:
                self.sdata = set(R[0]) if mn.startswith("buffer_") else set(R[1])
        elif mn.startswith("ds_"):
            self.kind = "ds"
            if mn.startswith(("ds_read", "ds_bpermute", "ds_permute", "ds_swizzle")) or "rtn" in mn:
                self.w = set(R[0]); self.r = set(sum(R[1:], []))
            else:
                self.r = set(sum(R, []))
        elif mn.startswith("s_"):
            self.kind = "salu"
            if mn.startswith(("s_cmp", "s_cbranch", "s_branch", "s_waitcnt", "s_barrier", "s_endpgm", "s_setprio", "s_sleep", "s_bitcmp")):
                self.r = set(sum(R, []))
            elif R:
                self.w = set(R[0]); self.r = set(sum(R[1:], []))
                if "saveexec" in mn: self.w |= {("exec", 0)}

def required(p, c):
    need = 0
    pv = {x for x in p.w if x[0] in "va"}
    ps = {x for x in p.w if x[0] == "s" or x[0] == "vcc"}
    if p.kind == "valu":
        if c.kind == "mfma" and pv & c.r: need = max(need, 2)
        if c.kind == "valu":
            if c.dpp and pv & c.r: need = max(need, 2)
            if c.mn.startswith("v_permlane") and pv & c.r: need = max(need, 2)
            if c.mn.startswith(("v_readlane", "v_readfirstlane")) and pv & c.r: need = max(need, 1)
            if p.trans and not c.trans and pv & c.r: need = max(need, 1)
            if ps & c.r:
                need = max(need, 4 if c.mn.startswith(("v_readlane", "v_writelane")) else 2)
            if p.dot and pv & (c.r | c.w):
                if not (c.mn == p.mn and not (pv & set(sum([regs_of(o) for o in c.ops[1:3]], [])))):
                    need = max(need, 3)
            if ("exec", 0) in p.w:
                if c.dpp: need = max(need, 5)
                if c.mn.startswith(("v_readlane", "v_readfirstlane", "v_writelane", "v_permlane")): need = max(need, 4)
        if p.dot and c.kind in ("vmem", "ds", "mfma") and pv & c.r: need = max(need, 3)
        if p.trans and c.kind in ("vmem", "ds", "mfma") and pv & c.r: need = max(need, 1)
        if c.kind == "vmem" and ps & c.r: need = max(need, 5)
        if c.kind == "mfma" and ("exec", 0) in p.w: need = max(need, 4)
        if c.kind == "salu" and ps & c.r: need = max(need, 1)
    if p.kind == "mfma":
        big = {4: 8, 8: 12}[p.passes]
        if c.kind == "mfma":
            if p.w & c.srcab: need = max(need, big)
            if p.w & c.srcc:
                if not (p.w == c.srcc and p.passes == c.passes): need = max(need, {4: 6, 8: 10}[p.passes])
            if (p.w & c.w) and not (p.w == c.srcc): need = max(need, big)
        elif c.kind in ("valu", "vmem", "ds"):
            if p.w & (c.r | c.w): need = max(need, big)
            if c.kind == "valu" and p.srcc & c.w: need = max(need, {4: 3, 8: 7}[p.passes])
    if p.kind == "vmem" and getattr(p, "wide_store", False):
        if c.kind == "valu" and p.sdata & c.w: need = max(need, 2)
        elif p.sdata & c.w: need = max(need, 1)
    if p.kind == "salu" and ("m0", 0) in p.w:
        if c.kind == "vmem" and c.lds_dma: need = max(need, 1)
    return need

class Asm:
    def __init__(self):
        self.L = []
        self.nlab = 0
    def __call__(self, s):
        for line in s.split("\n"):
            line = line.strip()
            if line: self.emit(line)
    def emit(self, line):
        c = Ins(line)
        if not (c.is_label or c.is_dir) and c.kind != "nop":
            dist = 0; need = 0
            for p in reversed(self.L):
                if dist >= 20: break
                if p.mn in ("s_endpgm", "s_branch"):
                    break
                if p.states:
                    n = required(p, c) - dist
                    if n > need: need = n
                dist += p.states
            while need > 0:
                k = min(need, 16)
                self.L.append(Ins("s_nop %d" % (k - 1)))
                need -= k
        self.L.append(c)
    def raw(self, line):
        i = Ins(""); i.text = line; self.L.append(i)
    def label(self, base="L"):
        self.nlab += 1
        return "%s_%d" % (base, self.nlab)
    def text(self):
        out = []
        for i in self.L:
            if i.is_label or i.is_dir: out.append(i.text)
            else: out.append("    " + i.text)
        return "\n".join(out) + "\n"

def vr(b, n=1):
    return "v%d" % b if n == 1 else "v[%d:%d]" % (b, b + n - 1)
def sr(b, n=1):
    return "s%d" % b if n == 1 else "s[%d:%d]" % (b, b + n - 1)
```

```python
import sys, struct, math
sys.path.insert(0, "dev")
from asmlib import Asm, vr, sr

NAME = "parallel_sum__ssm_conv_s4__dense_activation_gelu__prompt"
KN = NAME + "_kernel"
PROF = "--prof" in sys.argv
def opt(name, default):
    for x in sys.argv:
        if x.startswith("--%s=" % name): return int(x.split("=")[1])
    return default
def f32(x): return "0x%08x" % struct.unpack("<I", struct.pack("<f", x))[0]

XNT, KD, YA, W2F = 0x000000, 0x280000, 0x500000, 0x780000
CLR = 0x9A0000
STATS, CSUM, MBOX, LNC, W2C, YAC = CLR, CLR+0x2000, CLR+0x10000, CLR+0x18000, CLR+0x19000, CLR+0x1A000
CSP = 14080
PROFB, HF = 0x9C0000, 0xA00000
WS_SIZE = 0x1100000
OOB = "0x7f000000"
P = dict(u=16, are=18, aim=20, bre=22, bim=24, cre=26, cim=28, ldt=30, dsk=32, bx=34, w1=36, b1=38, w2=40, b2=42, out=44, dbg=46, ws=48)
S_WS, S_A, S_B, S_DBG = 52, 56, 60, 64
S_WAVE, S_XR, S_XC, S_J, S_SPIN, S_CH = 4, 5, 6, 7, 50, 51
S_MB = 34
WV = f"s{S_WAVE}"
WS = f"s[{S_WS}:{S_WS+3}]"; SA = f"s[{S_A}:{S_A+3}]"; SB = f"s[{S_B}:{S_B+3}]"; DBG = f"s[{S_DBG}:{S_DBG+3}]"
STG = 36864
AREG, BREG0, BREG = 17408, 69632, 23552
B7 = BREG0 + 3*BREG
CNT = B7 + 23424
XT, YAT = B7, B7 + 10240
UB = 19200
NT = " nt" if opt("nt", 1) else ""

a = Asm()
def srd(d, ptr, size):
    a(f"s_mov_b32 s{d}, s{ptr}\ns_mov_b32 s{d+1}, s{ptr+1}\ns_mov_b32 s{d+2}, {hex(size)}\ns_mov_b32 s{d+3}, 0x20000")
def stamp(idx):
    if PROF: a(f"s_memtime s[92:93]\ns_waitcnt lgkmcnt(0)\ns_sub_u32 s{72+idx}, s92, s90")
def endp(): a("s_branch L_end")
def cmul(d, x, y, t):
    a(f"v_pk_mul_f32 {vr(t,2)}, {vr(x,2)}, {vr(y,2)} op_sel:[0,0] op_sel_hi:[0,1]")
    a(f"v_pk_fma_f32 {vr(d,2)}, {vr(x,2)}, {vr(y,2)}, {vr(t,2)} op_sel:[1,1,0] op_sel_hi:[1,0,1] neg_lo:[0,1,0]")
def poll(issue, test, sleep=4, issued=True):
    L = a.label("L_poll"); D = a.label("L_pdone")
    if not issued: a(issue)
    a(f"{L}:")
    a("s_waitcnt vmcnt(0)")
    a(test)
    a(f"s_cbranch_scc1 {D}")
    a(f"s_add_u32 s{S_SPIN}, s{S_SPIN}, 1\ns_cmp_gt_u32 s{S_SPIN}, 100000\ns_cbranch_scc1 L_exit")
    a(f"s_sleep {sleep}")
    a(issue)
    a(f"s_branch {L}")
    a(f"{D}:")
def arrive_issue(sreg, va, vb):
    a(f"v_mov_b32 v{va}, 0\nv_mov_b32 v{vb}, 1\ns_mov_b64 exec, 1\nbuffer_atomic_add v{vb}, v{va}, {WS}, s{sreg} offen sc0 sc1\ns_mov_b64 exec, -1")
def arrive_check(st, vb, n, then):
    L = a.label("L_arr")
    a(f"s_waitcnt vmcnt(0)\nv_readfirstlane_b32 s{st}, v{vb}\ns_cmp_lg_u32 s{st}, {n-1}\ns_cbranch_scc1 {L}")
    a(then)
    a(f"{L}:")
def push_all(bitreg, off, va, vb, st):
    t = f"v_lshlrev_b32 v{va}, 7, v0\nv_mov_b32 v{vb}, s{bitreg}\ns_mov_b32 s{st}, {MBOX+off}\n"
    for i in range(4): t += f"buffer_atomic_or v{vb}, v{va}, {WS}, s{st} offen sc1\ns_add_u32 s{st}, s{st}, 8192\n"
    return t
def clr_issue(v, vo): return f"buffer_load_dword v{v}, v{vo}, {DBG}, 0 offen sc1"
def nz_test(v): return f"v_cmp_ne_u32 vcc, 0, v{v}\ns_cmp_eq_u64 vcc, -1"
def zero(b, n):
    for i in range(0, n, 2): a(f"v_pk_mov_b32 {vr(b+i,2)}, 0, 0")

a.raw(f".globl {KN}\n.p2align 8\n.type {KN},@function")
a(f"{KN}:")
a("s_cmp_ge_u32 s2, 256\ns_cbranch_scc1 L_exit")
a("s_load_dwordx16 s[16:31], s[0:1], 0\ns_load_dwordx16 s[32:47], s[0:1], 64\ns_load_dwordx2 s[48:49], s[0:1], 128")
if PROF:
    a("s_memtime s[90:91]\ns_memrealtime s[94:95]")
    for i in range(16): a(f"s_mov_b32 s{72+i}, 0")
a("v_lshrrev_b32 v1, 6, v0\nv_and_b32 v0, 63, v0")
a(f"v_readfirstlane_b32 {WV}, v1")
a(f"s_bfe_u32 s{S_XR}, s2, 0x20001\ns_and_b32 s{S_XC}, s2, 1\ns_lshr_b32 s{S_J}, s2, 3\ns_mov_b32 s{S_SPIN}, 0")
a(f"s_lshl_b32 s8, s{S_XC}, 2\ns_sub_u32 s8, 24, s8")
a(f"s_cmp_eq_u32 s{S_XC}, 0\ns_cselect_b32 s9, 43, 52\ns_mul_i32 s9, s9, s{S_J}\ns_lshr_b32 s9, s9, 8")
a(f"s_sub_u32 s11, 6, s{S_XC}\ns_mul_i32 s11, s11, s9\ns_sub_u32 s10, s{S_J}, s11\ns_mul_i32 s11, s{S_XC}, 6\ns_add_u32 s10, s10, s11")
a(f"s_lshl_b32 s11, s{S_XR}, 2\ns_add_u32 s9, s9, s11")
a("v_lshrrev_b32 v4, 3, v0\nv_mul_u32_u24 v4, 1280, v4")
a("v_and_b32 v5, 7, v0\nv_lshl_add_u32 v13, v5, 4, v4\nv_lshrrev_b32 v6, 4, v0\nv_xor_b32 v5, v5, v6\nv_lshl_add_u32 v2, v5, 4, v4")
a("v_xor_b32 v5, 4, v5\nv_lshl_add_u32 v3, v5, 4, v4\nv_add_u32 v3, 10240, v3\nv_add_u32 v4, 20480, v2\nv_add_u32 v5, 20480, v3")
for i in range(5):
    a(f"v_add_u32 v6, {64*i}, v0\nv_mul_u32_u24 v7, 3277, v6\nv_lshrrev_b32 v7, 16, v7\nv_mul_u32_u24 v7, 3136, v7\nv_lshl_add_u32 v{8+i}, v6, 4, v7")
a("s_waitcnt lgkmcnt(0)")
srd(S_WS, P['ws'], WS_SIZE)
srd(S_A, P['u'], 2621440)
srd(S_B, P['w1'], 2211840)
srd(S_DBG, P['dbg'], 256)
a(f"s_lshl_b32 s{S_MB}, s2, 7\ns_add_u32 s{S_MB}, s{S_MB}, {MBOX}")
if PROF:
    a("s_mov_b32 s86, s94"); stamp(13)
a(f"s_cmp_ge_u32 s{S_J}, s8\ns_cbranch_scc1 L_aux")
a(f"s_mul_i32 s35, s{S_XR}, 44\ns_mul_i32 s12, s{S_XC}, 24\ns_add_u32 s35, s35, s12\ns_add_u32 s35, s35, s{S_J}")
a(f"s_cmp_lt_u32 {WV}, 4\ns_cbranch_scc1 L_comp")

a(f"s_sub_u32 s8, {WV}, 4")
a("s_lshl_b32 s11, s9, 7\ns_lshl_b32 s12, s8, 5\ns_add_u32 s11, s11, s12\ns_mul_i32 s11, s11, 1280")
a("s_mul_i32 s12, s8, 55296\ns_mul_i32 s13, s10, 320\ns_add_u32 s12, s12, s13")
a("s_lshl_b32 s13, s8, 12\ns_mul_i32 s14, s8, 5120\ns_add_u32 s14, s14, 16384\ns_mov_b32 s3, 0")
a(f"s_and_b32 s15, s9, 3\ns_mul_i32 s15, s15, 5\ns_add_u32 s15, s15, 1\ns_lshr_b32 s15, s15, 1\ns_lshl_b32 s68, s10, 1\ns_add_u32 s15, s15, s68\ns_add_u32 s15, s15, s{S_XR}")
a("s_mul_i32 s68, s15, 26\ns_lshr_b32 s68, s68, 8\ns_mul_i32 s68, s68, 10\ns_sub_u32 s15, s15, s68")
a("s_lshl_b32 s68, s15, 7\ns_add_u32 s11, s11, s68\ns_mul_i32 s68, s15, 221184\ns_add_u32 s12, s12, s68\ns_mov_b32 s69, 0")
stamp(1)
DEEP = opt("deep", 0)
a("L_ld_loop:")
if DEEP:
    a("s_cmp_lt_u32 s3, 2\ns_cbranch_scc1 L_ld_nowait\ns_cmp_eq_u32 s3, 3\ns_cbranch_scc1 L_ld_nowait\ns_cmp_gt_u32 s3, 2\ns_cbranch_scc1 L_ld_w18\ns_waitcnt vmcnt(9)")
    a("L_ld_w18:")
    a("s_waitcnt vmcnt(18)\ns_barrier")
else:
    a("s_cmp_lt_u32 s3, 2\ns_cbranch_scc1 L_ld_nowait\ns_waitcnt vmcnt(9)\ns_barrier")
a("L_ld_nowait:")
a("s_add_u32 s70, s69, s13\ns_add_u32 s71, s69, s14")
for q in range(4): a(f"s_add_u32 m0, s70, {1024*q}\nbuffer_load_dwordx4 v{2+q}, {SA}, s11 offen{NT} lds")
for i in range(5): a(f"s_add_u32 m0, s71, {1024*i}\nbuffer_load_dwordx4 v{8+i}, {SB}, s12 offen{NT} lds")
a("s_add_u32 s11, s11, 128\ns_add_u32 s12, s12, 221184\ns_add_u32 s15, s15, 1\ns_cmp_lt_u32 s15, 10\ns_cbranch_scc1 L_ld_nowrap")
a("s_sub_u32 s11, s11, 1280\ns_sub_u32 s12, s12, 2211840\ns_mov_b32 s15, 0")
a("L_ld_nowrap:")
a(f"s_add_u32 s69, s69, {STG}\ns_cmp_eq_u32 s69, {4*STG}\ns_cselect_b32 s69, 0, s69")
a("s_add_u32 s3, s3, 1\ns_cmp_lt_u32 s3, 10\ns_cbranch_scc1 L_ld_loop")
for i in range(2 if DEEP else 1, -1, -1): a(f"s_waitcnt vmcnt({9*i})\ns_barrier")
a("s_barrier")
stamp(2)
a(f"s_cmp_eq_u32 {WV}, 7\ns_cbranch_scc1 L_fetch")
a(f"s_cmp_eq_u32 {WV}, 6\ns_cbranch_scc1 L_end")
a("s_cmp_ge_u32 s35, 160\ns_cbranch_scc1 L_end")
a(f"s_lshl_b32 s11, s35, 1\ns_add_u32 s11, s11, s8\ns_lshr_b32 s12, s11, 2\ns_lshl_b32 s12, s12, 3\ns_and_b32 s11, s11, 3\ns_add_u32 s{S_CH}, s11, s12")
a("s_lshl_b32 s71, 0x1000000, s8\ns_branch L_conv")

a("L_comp:")
ACC = 64; BUF = [16, 40]; SF = 144
srd(S_B, P['w2'], 2211840)
a(f"s_lshl_b32 s8, s35, 2\ns_add_u32 s8, s8, {WV}\ns_min_u32 s11, s8, 539\ns_mul_i32 s12, s11, 6554\ns_lshr_b32 s12, s12, 16\ns_mul_i32 s13, s12, 10\ns_sub_u32 s70, s11, s13")
a(f"s_mul_i32 s14, s12, 40960\ns_lshl_b32 s15, s70, 7\ns_add_u32 s14, s14, s15\ns_lshl_b32 s69, {WV}, 12\ns_add_u32 s69, s69, {4*STG}")
a(f"s_cmp_lt_u32 s8, 540\ns_cselect_b32 s14, s14, {OOB}")
for q in range(4):
    a(f"s_add_u32 m0, s69, {1024*q}\nbuffer_load_dwordx4 v13, {SB}, s14 offen{NT} lds\ns_add_u32 s14, s14, 10240")
a(f"s_mul_i32 s15, s70, 216\ns_add_u32 s15, s15, s12\ns_lshl_b32 s15, s15, 10\ns_add_u32 s71, s15, {W2F}\ns_lshl_b32 s68, s70, 7\ns_add_u32 s68, s68, {W2C}")
a(f"s_cmp_lt_u32 s8, 540\ns_cselect_b32 s71, s71, {OOB}\ns_cselect_b32 s68, s68, {OOB}\ns_lshl_b32 s70, 1, s70")
a("v_lshrrev_b32 v180, 5, v0\nv_bfe_u32 v1, v0, 4, 1\nv_lshlrev_b32 v180, 4, v180\nv_lshl_add_u32 v180, v1, 2, v180\nv_bfe_u32 v1, v0, 2, 2\nv_add_u32 v180, v180, v1")
a("v_lshlrev_b32 v180, 7, v180\nv_and_b32 v1, 3, v0\nv_lshl_add_u32 v180, v1, 3, v180\nv_add_u32 v180, s69, v180\nv_lshlrev_b32 v181, 4, v0")
a("v_and_b32 v13, 31, v0\nv_lshrrev_b32 v14, 5, v0")
a(f"s_lshl_b32 s8, {WV}, 12\nv_lshlrev_b32 v15, 7, v13\nv_add_u32 v15, s8, v15")
a("v_bfe_u32 v7, v0, 1, 3\nv_xor_b32 v7, v7, v14")
for ks in range(4): a(f"v_xor_b32 v1, {2*ks}, v7\nv_lshl_add_u32 v{2+ks}, v1, 4, v15")
a("v_bfe_u32 v1, v0, 2, 2\nv_lshl_add_u32 v1, v14, 3, v1\nv_mul_u32_u24 v1, 320, v1")
a("v_bfe_u32 v7, v0, 4, 1\nv_lshl_add_u32 v1, v7, 5, v1\nv_and_b32 v7, 3, v0\nv_lshl_add_u32 v1, v7, 3, v1\nv_add_u32 v6, 16384, v1")
for i in range(5): a(f"v_mov_b32 v{8+i}, v{2+i}")
zero(ACC, 80)
a(f"v_and_b32 v170, 3, v0\nv_lshlrev_b32 v170, 6, v170\nv_lshlrev_b32 v171, 2, v13\nv_mul_u32_u24 v172, {2*CSP}, v14\nv_lshl_add_u32 v172, v13, 3, v172\nv_add_u32 v175, {CSP}, v172")
a(f"s_lshl_b32 s11, s9, 9\ns_lshl_b32 s12, {WV}, 7\ns_add_u32 s11, s11, s12\ns_add_u32 s11, s11, {STATS}")
a(f"s_mul_i32 s12, s10, 1280\ns_add_u32 s12, s12, {CSUM}\ns_cmp_eq_u32 s10, 10\ns_cselect_b32 s13, 3, 4\ns_lshl_b32 s13, s13, 8\ns_add_u32 s13, s13, s12")
H1, H2 = opt("h1", 3), opt("h2", 6)
a(f"s_mov_b32 s15, 0\ns_mov_b32 s3, 0\ns_mov_b32 s14, {H1}")
a("s_waitcnt vmcnt(0)")
for dt in range(4):
    for s in range(2): a(f"ds_read_b64_tr_b16 {vr(184+4*dt+2*s,2)}, v180 offset:{1024*s + 32*dt}")
for dt in range(4):
    a(f"s_waitcnt lgkmcnt({6-2*dt})\nbuffer_store_dwordx4 {vr(184+4*dt,4)}, v181, {WS}, s71 offen sc1\ns_add_u32 s71, s71, 55296")
stamp(11)
s_issue = f"buffer_load_dword v{SF}, v171, {WS}, s11 offen sc1\n" + "\n".join(
    [f"buffer_load_dwordx2 {vr(SF+4+4*ft+2*p,2)}, v{(172,175)[p]}, {WS}, s12 offen offset:{256*ft} sc1" for ft in range(4) for p in range(2)] +
    [f"buffer_load_dwordx2 {vr(SF+20+2*p,2)}, v{(172,175)[p]}, {WS}, s13 offen sc1" for p in range(2)])
def reads(ks, b):
    r = [f"ds_read_b128 {vr(b,4)}, v{8+ks}"]
    for ft in range(5):
        for s in range(2):
            r.append(f"ds_read_b64_tr_b16 {vr(b+4+4*ft+2*s,2)}, v12 offset:{ks*5120 + s*1280 + ft*64}")
    return r
def step(cur, nks, nb, last, first_wait=True):
    R = reads(nks, nb)
    waits = [8, 9, 10, 11, 11]; parts = [R[0:3], R[3:6], R[6:9], R[9:11], [last]]
    for ft in range(5):
        if first_wait: a(f"s_waitcnt lgkmcnt({waits[ft]})")
        a(f"v_mfma_f32_32x32x16_bf16 {vr(ACC+16*ft,16)}, {vr(cur+4+4*ft,4)}, {vr(cur,4)}, {vr(ACC+16*ft,16)}")
        for r in parts[ft]: a(r)
a("s_barrier")
stamp(1)
a(clr_issue(173, 170))
for r in reads(0, BUF[0]): a(r)
a("L_c_loop:")
step(BUF[0], 1, BUF[1], f"s_add_u32 s15, s15, {STG}\ns_cmp_eq_u32 s15, {4*STG}\ns_cselect_b32 s15, 0, s15\nv_add_u32 v8, s15, v2")
step(BUF[1], 2, BUF[0], "v_add_u32 v9, s15, v3\nv_add_u32 v10, s15, v4\ns_cmp_eq_u32 s3, s14\ns_cbranch_scc1 L_hook\nL_hookret:")
step(BUF[0], 3, BUF[1], "v_add_u32 v12, s15, v6\ns_waitcnt lgkmcnt(0)\ns_barrier")
step(BUF[1], 0, BUF[0], "v_add_u32 v11, s15, v5\ns_add_u32 s3, s3, 1\ns_cmp_lt_u32 s3, 10\ns_cbranch_scc1 L_c_loop", first_wait=False)
stamp(2)
t = f"v_and_b32 v1, v{SF+5}, v{SF+7}\n" + "\n".join(f"v_and_b32 v1, v1, v{SF+5+4*ft}\nv_and_b32 v1, v1, v{SF+7+4*ft}" for ft in range(1, 5))
t += f"\nv_and_b32 v1, 1, v1\nv_min_u32 v1, v1, v{SF}\n" + nz_test(1)
poll(s_issue, t, sleep=8)
stamp(3)
a("s_waitcnt lgkmcnt(0)")
a(f"v_xor_b32 v17, 0x8000, v{SF}\nv_and_b32 v19, 0xffff, v17\nv_lshl_or_b32 v16, v19, 16, v19\nv_mov_b32 v18, v16")
a("v_cmp_gt_u32 vcc, 32, v0\nv_cndmask_b32 v17, v19, v17, vcc")
a(f"v_and_b32 v10, 0xffff0000, v{SF}\nv_rcp_f32 v7, v10\nv_mov_b32 v11, v10")
for ft in range(5):
    a(f"v_mfma_f32_32x32x16_bf16 {vr(ACC+16*ft,16)}, {vr(SF+4+4*ft,4)}, v[16:19], {vr(ACC+16*ft,16)}")
    if ft == 0:
        k1c = -2.0 * math.log2(math.e) * math.sqrt(2.0/math.pi); k2c = k1c * 0.044715
        a(f"v_mul_f32 v8, {f32(k1c)}, v7\nv_mul_f32 v12, v7, v7\nv_mul_f32 v12, v12, v7\nv_mul_f32 v12, {f32(k2c)}, v12\nv_mov_b32 v9, v8\nv_mov_b32 v13, v12")
    if ft == 1:
        a("v_bfe_u32 v1, v0, 4, 1\nv_mul_u32_u24 v1, 55296, v1\nv_lshl_add_u32 v1, v14, 8, v1\nv_and_b32 v7, 15, v0\nv_lshl_add_u32 v1, v7, 4, v1")
    if ft == 2:
        a(f"s_lshl_b32 s8, s9, 3\ns_lshl_b32 s11, {WV}, 1\ns_add_u32 s8, s8, s11\ns_mul_i32 s8, s8, 54\ns_mul_i32 s11, s10, 5")
    if ft == 3:
        a(f"s_add_u32 s8, s8, s11\ns_lshl_b32 s8, s8, 10\ns_add_u32 s8, s8, {HF}\nv_mov_b32 v174, 0")
mb_issue = f"buffer_load_dwordx2 v[176:177], v174, {WS}, s{S_MB} offen sc1"
def stA(h):
    A0 = ACC + 8*h; T = 16 + 8*(h % 3)
    return ([f"v_pk_mul_f32 {vr(T+2*p,2)}, {vr(A0+2*p,2)}, {vr(A0+2*p,2)}" for p in range(4)] +
            [f"v_pk_fma_f32 {vr(T+2*p,2)}, {vr(T+2*p,2)}, v[12:13], v[8:9]" for p in range(4)] +
            [f"v_pk_mul_f32 {vr(T+2*p,2)}, {vr(T+2*p,2)}, {vr(A0+2*p,2)}" for p in range(4)])
def stE(h):
    T = 16 + 8*(h % 3); return [f"v_exp_f32 v{T+e}, v{T+e}" for e in range(8)]
def stB(h):
    T = 16 + 8*(h % 3); return [f"v_pk_fma_f32 {vr(T+2*p,2)}, {vr(T+2*p,2)}, v[10:11], v[10:11]" for p in range(4)]
def stR(h):
    T = 16 + 8*(h % 3); return [f"v_rcp_f32 v{T+e}, v{T+e}" for e in range(8)]
def stC(h):
    A0 = ACC + 8*h; T = 16 + 8*(h % 3); pk = 48 + 4*(h % 4)
    return ([f"v_pk_mul_f32 {vr(T+2*p,2)}, {vr(T+2*p,2)}, {vr(A0+2*p,2)}" for p in range(4)] +
            [f"v_cvt_pk_bf16_f32 v{pk+p}, v{T+2*p}, v{T+2*p+1}" for p in range(4)] +
            [f"buffer_store_dwordx4 {vr(pk,4)}, v1, {WS}, s8 offen offset:{(h//2 % 4)*1024 + (h%2)*512} sc1"])
def mix(tr, nt):
    i = 0
    for k, x in enumerate(tr):
        a(x)
        n = (len(nt) * (k+1)) // len(tr)
        while i < n: a(nt[i]); i += 1
def epi(nh):
    for x in stA(0): a(x)
    for h in range(nh):
        mix(stE(h), (stC(h-1) if h else []))
        if h == 8: a("s_add_u32 s8, s8, 4096")
        for x in stB(h): a(x)
        mix(stR(h), (stA(h+1) if h+1 < nh else []))
        if h == 2: a(mb_issue)
        if h == 7:
            a(f"s_cmp_eq_u32 s10, 10\ns_cbranch_scc1 L_c_short")
    for x in stC(nh-1): a(x)
epi(10)
a("s_branch L_c_done")
a("L_c_short:")
for x in stC(7): a(x)
a("L_c_done:")
stamp(4)
a(f"s_lshl_b32 s8, s9, 1\ns_lshr_b32 s11, {WV}, 1\ns_add_u32 s8, s8, s11")
a(f"s_and_b32 s11, s8, 7\ns_lshl_b32 s11, s11, 5\ns_lshr_b32 s8, s8, 3\ns_lshl_b32 s8, s8, 1\ns_add_u32 s8, s8, s11\ns_lshl_b32 s8, s8, 7\ns_add_u32 s8, s8, {MBOX}")
a(f"s_and_b32 s11, {WV}, 1\ns_mul_i32 s11, s11, 11\ns_add_u32 s11, s11, s10\ns_lshl_b32 s11, 1, s11")
a("v_and_b32 v1, 3, v0\nv_lshlrev_b32 v1, 10, v1\nv_bfe_u32 v2, v0, 2, 1\nv_lshl_add_u32 v1, v2, 7, v1\nv_mov_b32 v2, s11")
a(f"s_waitcnt vmcnt(0)\ns_mov_b64 exec, 0xff\nbuffer_atomic_or v2, v1, {WS}, s8 offen sc1\ns_mov_b64 exec, -1")
stamp(5)

a("L_g2:")
G2B = [16, 52, 88, 124]; AC2 = 160
a(f"s_lshl_b32 s8, s{S_XR}, 3\ns_lshr_b32 s9, s{S_J}, 2\ns_add_u32 s8, s8, s9")
a(f"s_lshl_b32 s9, s{S_XC}, 2\ns_and_b32 s10, s{S_J}, 3\ns_add_u32 s9, s9, s10")
a("s_mul_i32 s69, s9, 5\ns_lshr_b32 s69, s69, 2\ns_lshl_b32 s69, 3, s69")
K0 = [0, 12, 24, 39, 54]
a(f"s_mul_i32 s13, {WV}, 12\ns_cmp_eq_u32 {WV}, 3\ns_cselect_b32 s13, 39, s13\ns_cmp_lt_u32 {WV}, 2\ns_cselect_b32 s10, 12, 15")
if opt("rot2", 1):
    a(f"s_and_b32 s15, s{S_J}, 3\ns_mul_i32 s15, s15, 3\ns_lshr_b32 s14, s{S_J}, 2\ns_mul_i32 s14, s14, 3\ns_lshr_b32 s14, s14, 1\ns_add_u32 s15, s15, s14\ns_add_u32 s15, s15, s{S_XC}")
    a("s_cmp_ge_u32 s15, s10\ns_cselect_b32 s14, s10, 0\ns_sub_u32 s15, s15, s14")
else:
    a("s_mov_b32 s15, 0")
a("s_add_u32 s13, s13, s15\ns_lshl_b32 s70, s10, 10\ns_mov_b32 s71, s10")
a(f"s_mul_i32 s11, s8, {4*55296}\ns_lshl_b32 s12, s13, 10\ns_add_u32 s11, s11, s12\ns_add_u32 s11, s11, {HF}")
a(f"s_mul_i32 s13, s9, {5*55296}\ns_add_u32 s12, s13, s12\ns_add_u32 s12, s12, {W2F}")
a("v_lshlrev_b32 v1, 4, v0")
for i in range(1, 5): a(f"v_add_u32 v{1+i}, {55296*i}, v1")
for i in range(4):
    a(f"s_add_u32 s13, {WV}, {i}\ns_and_b32 s13, s13, 3\ns_mul_i32 s13, s13, 55296\nv_add_u32 v{6+i}, s13, v1")
masks = []
for w in range(4):
    c0, c1 = K0[w]//5, (K0[w+1]-1)//5
    m = ((1 << (c1-c0+1)) - 1) << c0
    masks.append(m | (m << 11))
a(f"s_mov_b32 s68, {hex(masks[0])}\ns_cmp_eq_u32 {WV}, 1\ns_cselect_b32 s68, {hex(masks[1])}, s68\ns_cmp_eq_u32 {WV}, 2\ns_cselect_b32 s68, {hex(masks[2])}, s68\ns_cmp_eq_u32 {WV}, 3\ns_cselect_b32 s68, {hex(masks[3])}, s68")
a("s_mov_b32 s96, 0")
for s in range(1, 4):
    a(f"s_add_u32 s{96+s}, s{95+s}, 1024\ns_add_u32 s15, s15, 1\ns_cmp_eq_u32 s15, s71\ns_cselect_b32 s14, s70, 0\ns_cselect_b32 s15, 0, s15\ns_sub_u32 s{96+s}, s{96+s}, s14")
def ldh(b, so="s11"): return [f"buffer_load_dwordx4 {vr(b+4*i,4)}, v{6+i}, {WS}, {so} offen sc1" for i in range(4)]
def ldw(b, so="s12"): return [f"buffer_load_dwordx4 {vr(b+16+4*i,4)}, v{1+i}, {WS}, {so} offen sc1" for i in range(5)]
poll(mb_issue, "v_readfirstlane_b32 s13, v177\ns_and_b32 s13, s13, s69\ns_cmp_eq_u32 s13, s69", sleep=10)
for s in range(3):
    a(f"s_add_u32 s13, s12, s{96+s}")
    for l in ldw(G2B[s], "s13"): a(l)
srd(S_A, P['b2'], 1280)
a(f"v_lshrrev_b32 v10, 4, v0\nv_lshlrev_b32 v10, 3, v10\ns_mul_i32 s13, s9, 160\nv_mov_b32 v11, 0")
for dt in range(5): a(f"buffer_load_dwordx2 {vr(240+2*dt,2)}, v10, {SA}, s13 offen offset:{32*dt}")
zero(AC2, 80)
poll(f"buffer_load_dword v12, v11, {WS}, s{S_MB} offen sc1", "v_readfirstlane_b32 s13, v12\ns_and_b32 s13, s13, s68\ns_cmp_eq_u32 s13, s68", sleep=opt('msleep', 4), issued=False)
stamp(6)
for s in range(3):
    a(f"s_add_u32 s13, s11, s{96+s}")
    for l in ldh(G2B[s], "s13"): a(l)
a("s_add_u32 s11, s11, s99\ns_add_u32 s12, s12, s99\ns_sub_u32 s13, s10, 3")
a("s_waitcnt vmcnt(0)")
stamp(7)
a("L_g_loop:")
for s in range(4):
    b = G2B[s]; L = ldh(G2B[(s+3) % 4]) + ldw(G2B[(s+3) % 4])
    extra = {1: f"s_cmp_eq_u32 s13, 0\ns_cselect_b32 s11, {OOB}, s11\ns_cselect_b32 s12, {OOB}, s12\ns_cselect_b32 s14, 0, 1\ns_sub_u32 s13, s13, s14"}
    a("s_waitcnt vmcnt(18)")
    n = 0
    for i in range(4):
        for dt in range(5):
            acc = AC2 + 4*(5*i+dt)
            a(f"v_mfma_f32_16x16x32_bf16 {vr(acc,4)}, {vr(b+16+4*dt,4)}, {vr(b+4*i,4)}, {vr(acc,4)}")
            if n == 0: a(f"s_cmp_eq_u32 s13, 0\ns_cselect_b32 s11, {OOB}, s11")
            if n == 1: a(f"s_cselect_b32 s12, {OOB}, s12\ns_cselect_b32 s14, 0, 1")
            if n >= 2 and n % 2 == 0 and (n-2)//2 < 9: a(L[(n-2)//2])
            if n == 3: a("s_sub_u32 s13, s13, s14\ns_add_u32 s15, s15, 1")
            if n == 5: a("s_cmp_eq_u32 s15, s71\ns_cselect_b32 s14, s70, 0")
            if n == 7: a("s_cselect_b32 s15, 0, s15\ns_sub_u32 s14, 1024, s14")
            if n == 9: a("s_add_u32 s11, s11, s14")
            if n == 17: a("s_sub_u32 s10, s10, 1")
            n += 1
    a("s_add_u32 s12, s12, s14\ns_cmp_eq_u32 s10, 0")
    a("s_cbranch_scc1 L_g_done" if s < 3 else "s_cbranch_scc0 L_g_loop")
a("L_g_done:")
stamp(8)
a(f"s_mul_i32 s13, {WV}, {AREG}\nv_add_u32 v2, s13, v1\ns_nop 4")
for i in range(1, 4):
    for dt in range(5): a(f"ds_write_b128 v2, {vr(AC2+4*(5*i+dt),4)} offset:{5120*(i-1)+1024*dt}")
for i in range(1, 4):
    a(f"s_sub_u32 s13, {WV}, {i}\ns_and_b32 s13, s13, 3\ns_mul_i32 s13, s13, {AREG}\ns_add_u32 s13, s13, {5120*(i-1)}\nv_add_u32 v{12+i}, s13, v1")
a("v_lshrrev_b32 v3, 2, v0\nv_lshlrev_b32 v3, 7, v3\nv_bfe_u32 v4, v0, 1, 1\nv_lshl_add_u32 v3, v4, 6, v3\nv_and_b32 v4, 1, v0\nv_lshl_add_u32 v3, v4, 3, v3")
a(f"s_lshl_b32 s13, {WV}, 4\ns_add_u32 s13, s13, {YAT}\nv_add_u32 v3, s13, v3")
a("v_and_b32 v4, 15, v0\nv_mul_u32_u24 v4, 160, v4\nv_lshrrev_b32 v5, 4, v0\nv_lshl_add_u32 v4, v5, 3, v4")
a(f"s_mul_i32 s13, {WV}, 2560\nv_add_u32 v4, s13, v4\nv_add_u32 v5, {XT}, v4\nv_add_u32 v4, {BREG0}, v4\ns_add_u32 s13, s13, {BREG0}\nv_add_u32 v6, s13, v1")
srd(S_A, P['out'], 2621440)
for q in range(3):
    a(f"v_add_u32 v10, {64*q}, v0\nv_mul_u32_u24 v11, 6554, v10\nv_lshrrev_b32 v11, 16, v11\nv_mul_u32_u24 v11, 1120, v11\nv_lshl_add_u32 v{7+q}, v10, 4, v11")
a(f"v_cmp_gt_u32 vcc, 32, v0\nv_mov_b32 v10, {OOB}\nv_cndmask_b32 v9, v10, v9, vcc")
a(f"s_lshl_b32 s13, s8, 6\ns_lshl_b32 s14, {WV}, 4\ns_add_u32 s13, s13, s14\ns_mul_i32 s13, s13, 1280\ns_mul_i32 s14, s9, 160\ns_add_u32 s13, s13, s14")
for dt in range(5):
    for h in range(2):
        a(f"v_lshlrev_b32 v10, 16, v{240+2*dt+h}\nv_and_b32 v11, 0xffff0000, v{240+2*dt+h}\nv_pk_add_f32 {vr(AC2+4*dt+2*h,2)}, {vr(AC2+4*dt+2*h,2)}, v[10:11]")
a("s_waitcnt vmcnt(0) lgkmcnt(0)\ns_barrier")
stamp(9)
for dt in range(5): a(f"ds_read_b64_tr_b16 {vr(80+2*dt,2)}, v3 offset:{2048*dt}\nds_read_b64 {vr(90+2*dt,2)}, v5 offset:{32*dt}")
for q in range(5): a(f"ds_read_b128 {vr(16+4*q,4)}, v13 offset:{1024*q}")
for dt in range(5):
    a(f"s_waitcnt lgkmcnt({13-2*dt})")
    for h in range(2):
        for src in (80, 90):
            a(f"v_lshlrev_b32 v10, 16, v{src+2*dt+h}\nv_and_b32 v11, 0xffff0000, v{src+2*dt+h}\nv_pk_add_f32 {vr(AC2+4*dt+2*h,2)}, {vr(AC2+4*dt+2*h,2)}, v[10:11]")
for q in range(5, 15): a(f"ds_read_b128 {vr(16+4*q,4)}, v{13+q//5} offset:{1024*(q%5)}")
for q in range(15):
    a(f"s_waitcnt lgkmcnt({14-q})")
    dt = q % 5
    for h in range(2): a(f"v_pk_add_f32 {vr(AC2+4*dt+2*h,2)}, {vr(AC2+4*dt+2*h,2)}, {vr(16+4*q+2*h,2)}")
for dt in range(5):
    for h in range(2): a(f"v_cvt_pk_bf16_f32 v{100+2*dt+h}, v{AC2+4*dt+2*h}, v{AC2+4*dt+2*h+1}")
    a(f"ds_write_b64 v4, {vr(100+2*dt,2)} offset:{32*dt}")
for q in range(3): a(f"ds_read_b128 {vr(16+4*q,4)}, v6 offset:{1024*q}")
for q in range(3):
    a(f"s_waitcnt lgkmcnt({2-q})\nbuffer_store_dwordx4 {vr(16+4*q,4)}, v{7+q}, {SA}, s13 offen")
stamp(10)
endp()

a("L_hook:")
a(f"s_cmp_eq_u32 s14, {H2}\ns_cbranch_scc1 L_hook2")
poll(clr_issue(173, 170), nz_test(173), sleep=8)
arrive_issue(68, 182, 183)
a(f"s_mov_b32 s14, {H2}\ns_branch L_hookret")
a("L_hook2:")
arrive_check(68, 183, 54, push_all(70, 4, 182, 183, 68))
a(s_issue)
a("s_branch L_hookret")

a("L_fetch:")
a(f"s_lshl_b32 s8, s{S_XR}, 3\ns_lshr_b32 s9, s{S_J}, 2\ns_add_u32 s8, s8, s9")
a(f"s_lshl_b32 s9, s{S_XC}, 2\ns_and_b32 s10, s{S_J}, 3\ns_add_u32 s9, s9, s10")
a(f"s_mul_i32 s11, s8, 81920\ns_mul_i32 s10, s9, 160\ns_add_u32 s10, s11, s10\ns_mov_b32 s3, 0\ns_mov_b32 s12, {XT}\nv_mov_b32 v10, v0")
a("L_f_x:")
a("v_mul_u32_u24 v11, 6554, v10\nv_lshrrev_b32 v11, 16, v11\nv_mul_u32_u24 v11, 1120, v11\nv_lshl_add_u32 v11, v10, 4, v11\ns_mov_b32 m0, s12")
a(f"buffer_load_dwordx4 v11, {SA}, s10 offen lds")
a("v_add_u32 v10, 64, v10\ns_add_u32 s12, s12, 1024\ns_add_u32 s3, s3, 1\ns_cmp_lt_u32 s3, 10\ns_cbranch_scc1 L_f_x")
a("v_mov_b32 v1, 0")
poll(f"buffer_load_dword v4, v1, {WS}, s{S_MB} offen offset:64 sc1", "v_readfirstlane_b32 s12, v4\ns_cmp_lg_u32 s12, 0", sleep=opt('ysleep', 12), issued=False)
stamp(11)
a(f"s_mul_i32 s10, s9, 10240\ns_add_u32 s11, s11, s10\ns_add_u32 s11, s11, {YA}\nv_lshlrev_b32 v1, 4, v0")
for q in range(10):
    a(f"buffer_load_dwordx4 {vr(16+4*q,4)}, v1, {WS}, s11 offen sc1\ns_add_u32 s11, s11, 1024")
a(f"v_add_u32 v1, {YAT}, v1")
for q in range(10):
    a(f"s_waitcnt vmcnt({9-q})\nds_write_b128 v1, {vr(16+4*q,4)} offset:{1024*q}")
a("s_waitcnt lgkmcnt(0)")
stamp(12)
a("s_barrier")
endp()

a("L_conv:")
a(f"s_sub_u32 s12, {WV}, 4\ns_mul_i32 s12, s12, {BREG}\ns_add_u32 s12, s12, {BREG0}")
a(f"s_mul_i32 s13, s{S_CH}, 410\ns_lshr_b32 s13, s13, 16\ns_lshl_b32 s13, 0x8000000, s13\ns_or_b32 s70, s71, s13")
c_issue = f"buffer_load_dword v145, v144, {WS}, s{S_MB} offen sc1"
c_test = "v_readfirstlane_b32 s15, v145\ns_and_b32 s15, s15, s70\ns_cmp_eq_u32 s15, s70"
a("v_mov_b32 v144, 0")
a(c_issue)
srd(S_B, P['dsk'], 1280)
a(f"s_lshl_b32 s15, s{S_CH}, 1\nbuffer_load_ushort v15, v144, {SB}, s15 offen")
a(f"v_lshlrev_b32 v1, 4, v0\nv_add_u32 v13, s12, v1")
a(f"v_lshrrev_b32 v146, 2, v0\nv_mul_u32_u24 v146, 40960, v146\nv_and_b32 v3, 3, v0\nv_lshl_add_u32 v146, v3, 4, v146")
def uloads():
    a(f"s_lshl_b32 s8, s{S_CH}, 6")
    for q in range(4): a(f"buffer_load_dwordx4 {vr(148+4*q,4)}, v146, {WS}, s8 offen sc1\ns_add_u32 s8, s8, 655360")
a("s_cmp_eq_u32 s71, 0\ns_cbranch_scc1 L_cv_local")
a(f"s_lshl_b32 s8, s{S_CH}, 12\ns_add_u32 s15, s8, {KD}\ns_add_u32 s{S_B}, s{P['ws']}, s15\ns_addc_u32 s{S_B+1}, s{P['ws']+1}, 0\ns_mov_b32 s{S_B+2}, 4096")
poll(c_issue, c_test, sleep=8)
stamp(6)
for r in range(4):
    a(f"buffer_load_dwordx4 {vr(16+8*r,4)}, v1, {SB}, 0 offen offset:{1024*r} sc1")
    a(f"buffer_load_dwordx2 {vr(20+8*r,2)}, v1, {SB}, 0 offen offset:{1024*r+16} sc1")
uloads()
a("s_branch L_cv_setup")
a("L_cv_local:")
for r in range(4):
    a(f"ds_read_b128 {vr(16+8*r,4)}, v13 offset:{UB+1024*r}\nds_read_b64 {vr(20+8*r,2)}, v13 offset:{UB+1024*r+16}")
a("L_cv_setup:")
zero(4, 4)
a("v_min_u32 v2, 47, v0\nv_lshl_add_u32 v2, v2, 4, s12\nds_write_b128 v2, v[4:7] offset:18432")
a("v_lshlrev_b32 v2, 6, v0\nv_lshrrev_b32 v3, 1, v0\nv_lshl_add_u32 v2, v3, 4, v2\nv_add_u32 v2, s12, v2")
a("v_and_b32 v3, 15, v0\nv_lshrrev_b32 v4, 4, v0\nv_lshlrev_b32 v5, 3, v4\nv_sub_u32 v5, v5, v3\nv_add_u32 v5, 15, v5")
a(f"s_add_u32 s14, s12, {288*7}")
a("v_lshrrev_b32 v6, 4, v5\nv_lshlrev_b32 v6, 4, v6\nv_lshl_add_u32 v6, v5, 3, v6\nv_add_u32 v8, s14, v6")
a("v_add_u32 v5, 4, v5\nv_lshrrev_b32 v6, 4, v5\nv_lshlrev_b32 v6, 4, v6\nv_lshl_add_u32 v6, v5, 3, v6\nv_add_u32 v9, s14, v6")
a(f"s_add_u32 s14, s12, {UB-32}\nv_lshlrev_b32 v10, 5, v3\nv_lshl_add_u32 v10, v4, 4, v10\nv_add_u32 v10, s14, v10")
a("v_and_b32 v5, 1, v4\nv_lshlrev_b32 v5, 2, v5\nv_lshrrev_b32 v6, 2, v3\nv_add_u32 v5, v5, v6\nv_mul_u32_u24 v11, 81920, v5")
a("v_lshrrev_b32 v5, 1, v4\nv_lshl_add_u32 v11, v5, 6, v11\nv_and_b32 v5, 3, v3\nv_lshl_add_u32 v11, v5, 4, v11")
a("v_lshlrev_b32 v5, 3, v4\nv_sub_u32 v12, v3, v5\nv_add_u32 v12, 16, v12")
a("s_cmp_lg_u32 s71, 0\ns_cbranch_scc1 L_cv_build")
a("s_waitcnt vmcnt(0)")
a(c_test)
a("s_cbranch_scc0 L_cv_build")
uloads()
a("s_mov_b32 s71, 1")
a("L_cv_build:")
a("s_waitcnt vmcnt(4) lgkmcnt(0)")
for r in range(4):
    D = 16 + 8*r; O = 64 + 16*(r & 1)
    for i in range(4):
        a(f"v_mov_b32 v{O+4*i}, v{D+i}\nv_mov_b32 v{O+4*i+1}, v{D+i+1}")
        a(f"v_alignbit_b32 v{O+4*i+2}, v{D+i+1}, v{D+i}, 16\nv_alignbit_b32 v{O+4*i+3}, v{D+i+2}, v{D+i+1}, 16")
        a(f"ds_write_b128 v2, {vr(O+4*i,4)} offset:{4608*r + 16*i}")
a("s_cmp_lg_u32 s71, 0\ns_cbranch_scc1 L_cv_haveu")
poll(c_issue, c_test, sleep=8, issued=False)
stamp(6)
uloads()
a("L_cv_haveu:")
AD = 4
a("v_lshlrev_b32 v14, 16, v15")
for k in range(4):
    a(f"v_cmp_eq_u32 vcc, {2*k}, v12\nv_cndmask_b32 v{AD+k}, 0, v15, vcc\nv_cmp_eq_u32 vcc, {2*k+1}, v12\nv_cndmask_b32 v{AD+k}, v{AD+k}, v14, vcc")
SET = [(16, 48), (80, 112)]; CA = 164
def rd(st):
    A_, B_ = SET[st]; R = []
    for x in range(8):
        R.append(f"ds_read_b64 {vr(A_+4*x,2)}, v8 offset:{2304*(7-x)}")
        R.append(f"ds_read_b64 {vr(A_+4*x+2,2)}, v9 offset:{2304*(7-x)}")
    for b in range(8): R.append(f"ds_read_b128 {vr(B_+4*b,4)}, v10 offset:{512*b}")
    return R
advk = "v_subrev_u32 v8, 288, v8\nv_subrev_u32 v9, 288, v9\nv_subrev_u32 v10, 64, v10"
R0 = rd(0)
for r_ in R0[:16]: a(r_)
a("s_waitcnt vmcnt(0)")
for q in range(4): a(f"ds_write_b128 v13, {vr(148+4*q,4)} offset:{UB+1024*q}")
stamp(7)
for r_ in R0[16:]: a(r_)
a(advk)
if opt('cprio', 0): a(f"s_setprio {opt('cprio', 0)}")
a("s_mov_b32 s3, 0\ns_waitcnt lgkmcnt(0)")
for b in range(8):
    a(f"v_mfma_f32_16x16x32_bf16 {vr(CA+4*b,4)}, {vr(AD,4)}, {vr(SET[0][1]+4*b,4)}, 0")
a("L_cv_loop:")
for st in range(2):
    A_, B_ = SET[st]; R = rd(1-st) + advk.split("\n"); n = 0
    for x in range(8):
        for b in range(8-x):
            a(f"v_mfma_f32_16x16x32_bf16 {vr(CA+4*(x+b),4)}, {vr(A_+4*x,4)}, {vr(B_+4*b,4)}, {vr(CA+4*(x+b),4)}")
            if n < len(R): a(R[n])
            if st == 1 and n == 33: a("s_add_u32 s3, s3, 1\ns_cmp_lt_u32 s3, 4")
            n += 1
    a("s_waitcnt lgkmcnt(0)")
a("s_cbranch_scc1 L_cv_loop")
stamp(8)
a("s_setprio 0")
a(f"s_lshl_b32 s14, s{S_CH}, 7\ns_add_u32 s14, s14, {YA}")
for n in range(0, 8, 2):
    o = 16 + 2*n
    a(f"v_cvt_pk_bf16_f32 v{o}, v{CA+4*n}, v{CA+4*n+1}\nv_cvt_pk_bf16_f32 v{o+1}, v{CA+4*n+2}, v{CA+4*n+3}")
    a(f"v_cvt_pk_bf16_f32 v{o+2}, v{CA+4*n+4}, v{CA+4*n+5}\nv_cvt_pk_bf16_f32 v{o+3}, v{CA+4*n+6}, v{CA+4*n+7}")
    a(f"v_permlane16_swap_b32 v{o}, v{o+2}\nv_permlane16_swap_b32 v{o+1}, v{o+3}")
    a(f"buffer_store_dwordx4 {vr(o,4)}, v11, {WS}, s14 offen sc1\ns_add_u32 s14, s14, {8*81920}")
a(f"s_mul_i32 s13, s{S_CH}, 820\ns_lshr_b32 s13, s13, 16\ns_lshl_b32 s14, s13, 7\ns_add_u32 s14, s14, {YAC}\ns_waitcnt vmcnt(0)")
arrive_issue(14, 4, 5)
arrive_check(14, 5, 80, f"s_and_b32 s14, s13, 3\ns_lshl_b32 s14, s14, 3\ns_lshr_b32 s13, s13, 2\ns_add_u32 s14, s14, s13\ns_lshl_b32 s14, s14, 7\ns_add_u32 s14, s14, {MBOX+64}\n"
   f"v_and_b32 v4, 7, v0\nv_lshlrev_b32 v4, 12, v4\nv_lshrrev_b32 v5, 3, v0\nv_lshl_add_u32 v4, v5, 8, v4\nv_mov_b32 v5, 1\ns_mov_b32 exec_hi, 0\nbuffer_store_dword v5, v4, {WS}, s14 offen sc1\ns_mov_b32 exec_hi, -1")
stamp(9)
a(f"s_cmp_eq_u32 {WV}, 7\ns_cbranch_scc1 L_fetch")
endp()

a("L_aux:")
a(f"s_sub_u32 s8, s{S_J}, s8\ns_lshl_b32 s9, s{S_XC}, 3\ns_add_u32 s8, s8, s9\ns_mul_i32 s9, s{S_XR}, 20\ns_add_u32 s9, s9, s8\ns_lshl_b32 s{S_CH}, s9, 3\ns_add_u32 s{S_CH}, s{S_CH}, {WV}")
a(f"s_lshl_b32 s10, s{S_CH}, 8\nv_lshl_add_u32 v1, v0, 2, s10")
for i, nm in enumerate(["are", "aim", "bre", "bim", "cre", "cim"]):
    a(f"global_load_dword v{240+i}, v1, s[{P[nm]}:{P[nm]+1}]{NT}")
a(f"s_lshl_b32 s10, s{S_CH}, 1\nv_mov_b32 v1, s10\nglobal_load_ushort v246, v1, s[{P['ldt']}:{P['ldt']+1}]")
a(f"s_mul_i32 s69, {WV}, {AREG}\ns_and_b32 s15, {WV}, 3\ns_mul_i32 s10, s15, {BREG}\ns_add_u32 s10, s10, {BREG0}\ns_cmp_lt_u32 {WV}, 4\ns_cselect_b32 s69, s69, s10")
a("v_and_b32 v238, 3, v0\nv_lshlrev_b32 v238, 6, v238")
a("s_cmp_ge_u32 s8, 16\ns_cbranch_scc1 L_nolnwg")
a(f"s_cmp_lt_u32 {WV}, 4\ns_cbranch_scc1 L_cs")
a(f"s_lshl_b32 s9, s{S_XR}, 4\ns_add_u32 s9, s9, s8")
a("s_lshl_b32 s10, s9, 5\ns_lshl_b32 s11, s15, 3\ns_add_u32 s14, s10, s11\ns_mul_i32 s11, s14, 1280")
a("v_lshrrev_b32 v2, 4, v0\nv_and_b32 v3, 15, v0\nv_mul_u32_u24 v1, 2560, v2\nv_lshl_add_u32 v1, v3, 4, v1")
RAW, DV = 16, 64
for sg in range(2):
    for i in range(5):
        a(f"buffer_load_dwordx4 {vr(RAW+20*sg+4*i,4)}, v1, {SA}, s11 offen offset:{sg*1280+i*256}{NT}")
a(f"s_setprio 2\nv_mov_b32 v4, {CNT}\nv_mov_b32 v5, 0\nds_write_b32 v4, v5\ns_waitcnt lgkmcnt(0)\ns_barrier")
a(f"s_lshl_b32 s11, s15, 4\ns_add_u32 s11, s11, {BREG0}\nv_lshlrev_b32 v8, 2, v2\nv_add_u32 v8, s11, v8")
for i in range(5):
    a(f"v_add_u32 v4, {16*i}, v3\nv_mul_u32_u24 v5, 3277, v4\nv_lshrrev_b32 v5, 16, v5\nv_mul_u32_u24 v5, {BREG-20*528}, v5\nv_mul_u32_u24 v4, 528, v4\nv_add3_u32 v{150+i}, v4, v5, v8")
a("s_mov_b32 s12, 0x3f803f80")
zero(4, 4)
for sg in range(2):
    for i in range(5):
        a(f"s_waitcnt vmcnt({9 - (5*sg+i)})")
        for k in range(4):
            a(f"v_dot2_f32_bf16 v{4+2*sg+(k&1)}, v{RAW+20*sg+4*i+k}, s12, v{4+2*sg+(k&1)}")
stamp(1)
a(clr_issue(239, 238))
a("v_add_f32 v4, v4, v5\nv_add_f32 v6, v6, v7")
def unp(sg, ks):
    for k in ks:
        d = DV + 40*sg + 2*k
        a(f"v_lshlrev_b32 v{d}, 16, v{RAW+20*sg+k}\nv_and_b32 v{d+1}, 0xffff0000, v{RAW+20*sg+k}")
for n, sh in enumerate((8, 4, 2, 1)):
    a(f"v_add_f32_dpp v4, v4, v4 row_ror:{sh} row_mask:0xf bank_mask:0xf\nv_add_f32_dpp v6, v6, v6 row_ror:{sh} row_mask:0xf bank_mask:0xf")
    unp(0, range(5*n, 5*n+5))
a(f"v_mul_f32 v4, {f32(1/640)}, v4\nv_mul_f32 v6, {f32(1/640)}, v6")
a("v_cvt_pk_bf16_f32 v5, v4, v6\nv_lshlrev_b32 v8, 16, v5\nv_and_b32 v9, 0xffff0000, v5")
a("v_sub_f32 v56, 0, v8\nv_sub_f32 v57, 0, v8\nv_sub_f32 v58, 0, v9\nv_sub_f32 v59, 0, v9")
zero(10, 4)
unp(1, range(20))
for sg in range(2):
    for k in range(20):
        d = DV + 40*sg + 2*k
        a(f"v_pk_add_f32 {vr(d,2)}, {vr(d,2)}, {vr(56+2*sg,2)}")
    for k in range(20):
        d = DV + 40*sg + 2*k
        a(f"v_pk_fma_f32 {vr(10+2*sg,2)}, {vr(d,2)}, {vr(d,2)}, {vr(10+2*sg,2)}")
a("v_add_f32 v10, v10, v11\nv_add_f32 v12, v12, v13")
def rnd(sg, ks):
    for k in ks:
        d = DV + 40*sg + 2*k
        a(f"v_cvt_pk_bf16_f32 v{RAW+20*sg+k}, v{d}, v{d+1}")
for n, sh in enumerate((8, 4, 2, 1)):
    a(f"v_add_f32_dpp v10, v10, v10 row_ror:{sh} row_mask:0xf bank_mask:0xf\nv_add_f32_dpp v12, v12, v12 row_ror:{sh} row_mask:0xf bank_mask:0xf")
    rnd(0, range(2*n, 2*n+2))
a("v_sub_f32 v4, v4, v8\nv_sub_f32 v6, v6, v9\nv_mul_f32 v4, v4, v4\nv_mul_f32 v6, v6, v6")
a(f"s_mov_b32 s12, {f32(1/640)}\nv_fma_f32 v4, v10, s12, -v4\nv_fma_f32 v6, v12, s12, -v6")
a("v_max_f32 v4, 0, v4\nv_max_f32 v6, 0, v6")
a("v_cvt_pk_bf16_f32 v7, v4, v6\nv_lshlrev_b32 v4, 16, v7\nv_and_b32 v6, 0xffff0000, v7")
a(f"v_add_f32 v4, {f32(1e-5)}, v4\nv_add_f32 v6, {f32(1e-5)}, v6")
a("v_cvt_pk_bf16_f32 v7, v4, v6\nv_lshlrev_b32 v4, 16, v7\nv_and_b32 v6, 0xffff0000, v7")
a("v_sqrt_f32 v4, v4\nv_sqrt_f32 v6, v6\nv_cvt_pk_bf16_f32 v7, v4, v6")
a("v_lshlrev_b32 v4, 16, v7\nv_and_b32 v6, 0xffff0000, v7\nv_rcp_f32 v60, v4\nv_rcp_f32 v61, v4\nv_rcp_f32 v62, v6\nv_rcp_f32 v63, v6")
a("v_and_b32 v12, 0xffff, v5\nv_or_b32 v12, v12, v4\nv_lshrrev_b32 v13, 16, v5\nv_or_b32 v13, v13, v6")
a(f"s_lshl_b32 s11, s14, 2\ns_add_u32 s11, s11, {STATS}\nv_lshlrev_b32 v1, 3, v2")
poll(clr_issue(239, 238), nz_test(239), sleep=8)
a(f"s_mov_b32 exec_lo, 0x10001\ns_mov_b32 exec_hi, 0x10001\nbuffer_store_dwordx2 v[12:13], v1, {WS}, s11 offen sc1\ns_mov_b64 exec, -1")
stamp(2)
rnd(0, range(8, 20)); rnd(1, range(20))
unp(0, range(20)); unp(1, range(20))
for sg in range(2):
    for k in range(20):
        d = DV + 40*sg + 2*k
        a(f"v_pk_mul_f32 {vr(d,2)}, {vr(d,2)}, {vr(60+2*sg,2)}")
for k in range(20):
    for h in range(2):
        d = DV + 2*k + h
        a(f"v_cvt_pk_bf16_f32 v{d}, v{d}, v{d+40}")
    d = DV + 2*k
    a(f"ds_write2st64_b32 v{150+k//4}, v{d}, v{d+1} offset0:0 offset1:0" if False else f"ds_write2_b32 v{150+k//4}, v{d}, v{d+1} offset0:{(k%4)*32} offset1:{(k%4)*32+16}")
a(f"v_mov_b32 v4, {CNT}\nv_mov_b32 v5, 1\nds_add_u32 v4, v5")
a("v_lshrrev_b32 v3, 5, v0\nv_lshlrev_b32 v2, 4, v0\nv_lshl_add_u32 v1, v3, 4, v2\nv_add_u32 v1, s69, v1")
a("s_mul_i32 s10, s9, 40960\ns_mul_i32 s11, s15, 10240\ns_add_u32 s10, s10, s11\ns_mov_b32 s12, 0")
a("L_sb:")
a("s_add_u32 s12, s12, 1\ns_cmp_gt_u32 s12, 2000000\ns_cbranch_scc1 L_exit")
a("ds_read_b32 v5, v4\ns_waitcnt lgkmcnt(0)\nv_readfirstlane_b32 s11, v5\ns_cmp_lt_u32 s11, 256\ns_cbranch_scc1 L_sb")
for i in range(10): a(f"ds_read_b128 {vr(16+4*i,4)}, v1 offset:{1056*i}")
for i in range(10):
    a(f"s_waitcnt lgkmcnt({9-i})\nbuffer_store_dwordx4 {vr(16+4*i,4)}, v2, {WS}, s10 offen sc1\ns_add_u32 s10, s10, 1024")
a(f"s_lshl_b32 s10, s15, 7\ns_add_u32 s10, s10, {LNC}\ns_lshl_b32 s11, 0x8000000, s15\ns_waitcnt vmcnt(0)")
arrive_issue(10, 4, 5)
arrive_check(10, 5, 64, push_all(11, 0, 4, 5, 10))
stamp(10)
a("s_setprio 0\ns_branch L_kgen")
a("L_cs:")
a(f"s_lshl_b32 s9, s{S_XR}, 3\ns_and_b32 s10, s8, 7\ns_add_u32 s9, s9, s10")
a(f"s_mul_i32 s10, s{S_XC}, 6\ns_sub_u32 s10, 30, s10\ns_cmp_ge_u32 s9, s10\ns_cbranch_scc1 L_cs_none")
a(f"s_mul_i32 s10, s{S_XC}, 30\ns_add_u32 s9, s9, s10")
a("s_mul_i32 s12, s15, 552960\ns_lshl_b32 s11, s9, 6\ns_add_u32 s12, s12, s11")
a("v_lshrrev_b32 v2, 2, v0\nv_and_b32 v3, 3, v0\nv_mul_u32_u24 v1, 3456, v2\nv_lshl_add_u32 v1, v3, 4, v1")
for i in range(10):
    a(f"buffer_load_dwordx4 {vr(16+4*i,4)}, v1, {SB}, s12 offen{NT}\ns_add_u32 s12, s12, 55296")
a(f"v_and_b32 v4, 31, v0\nv_lshlrev_b32 v4, 1, v4\nv_add_u32 v4, s11, v4\nglobal_load_ushort v14, v4, s[{P['b1']}:{P['b1']+1}]")
a("s_setprio 3\ns_barrier")
a("s_mov_b32 s12, 0x00003f80\ns_mov_b32 s13, 0x3f800000")
zero(4, 8)
for i in range(10):
    a(f"s_waitcnt vmcnt({10-i})")
    if i == 9: a(clr_issue(239, 238))
    for k in range(4):
        a(f"v_dot2_f32_bf16 v{4+2*k}, v{16+4*i+k}, s12, v{4+2*k}\nv_dot2_f32_bf16 v{5+2*k}, v{16+4*i+k}, s13, v{5+2*k}")
for sh in (8, 4):
    for r in range(8): a(f"v_add_f32_dpp v{4+r}, v{4+r}, v{4+r} row_ror:{sh} row_mask:0xf bank_mask:0xf")
a("v_lshrrev_b32 v12, 4, v0\nv_lshlrev_b32 v12, 7, v12\nv_lshl_add_u32 v12, v3, 5, v12\nv_add_u32 v12, s69, v12")
a("ds_write_b128 v12, v[4:7]\nds_write_b128 v12, v[8:11] offset:16")
a("v_and_b32 v12, 31, v0\nv_lshl_add_u32 v13, v12, 2, s69")
for p in range(4): a(f"ds_read_b32 v{16+p}, v13 offset:{128*p}")
a("s_waitcnt lgkmcnt(0)\nv_add_f32 v16, v16, v17\nv_add_f32 v18, v18, v19\nv_add_f32 v16, v16, v18")
a("v_cvt_pk_bf16_f32 v4, v16, v16\nv_lshlrev_b32 v5, 16, v4\nv_sub_f32 v5, v16, v5")
a("v_cvt_pk_bf16_f32 v6, v16, v5\nv_and_b32 v7, 0xffff0000, v6\nv_sub_f32 v7, v5, v7")
a("v_cvt_pk_bf16_f32 v7, v7, v7\nv_and_b32 v7, 0xffff, v7\nv_or_b32 v7, 1, v7")
a(f"s_lshl_b32 s12, s9, 8\ns_mul_i32 s13, s15, {CSP}\ns_add_u32 s12, s12, s13\ns_add_u32 s12, s12, {CSUM}\nv_lshlrev_b32 v12, 3, v12")
poll(clr_issue(239, 238), nz_test(239), sleep=8)
a("v_lshl_or_b32 v7, v14, 16, v7")
a(f"s_mov_b32 exec_hi, 0\nbuffer_store_dwordx2 v[6:7], v12, {WS}, s12 offen sc1\ns_mov_b32 exec_hi, -1")
stamp(2)
a("s_setprio 1\ns_branch L_kgen")
a("L_cs_none:")
a("s_barrier\ns_branch L_kwait")
a("L_nolnwg:")
a("s_cmp_lg_u32 s8, 16\ns_cbranch_scc1 L_kwait")
a(f"s_lshl_b32 s10, s{S_XR}, 15\ns_lshl_b32 s11, {WV}, 12\ns_add_u32 s10, s10, s11\ns_add_u32 s10, s10, {CLR}\nv_lshlrev_b32 v1, 4, v0")
zero(4, 4)
for i in range(4): a(f"buffer_store_dwordx4 v[4:7], v1, {WS}, s10 offen offset:{1024*i} sc1")
a(f"s_waitcnt vmcnt(0)\ns_barrier\ns_cmp_lg_u32 {WV}, 0\ns_cbranch_scc1 L_kwait")
a(f"s_lshl_b32 s10, s{S_XR}, 6\nv_mov_b32 v2, 1\ns_mov_b64 exec, 1\nbuffer_store_dword v2, v4, {DBG}, s10 offen sc1\ns_mov_b64 exec, -1")
stamp(1)
a("s_branch L_kgen")
a("L_kwait:")
a("s_waitcnt vmcnt(0)")
a("L_kgen:")
stamp(3)
a("v_lshl_add_u32 v1, v0, 2, s69")
a("v_and_b32 v2, 31, v0\nv_mul_u32_u24 v2, 272, v2\nv_lshrrev_b32 v3, 5, v0\nv_lshl_add_u32 v2, v3, 4, v2\nv_add_u32 v2, s69, v2")
KA = 128
zero(KA, 16)
a("s_mov_b32 s3, 0")
a(f"v_lshlrev_b32 v3, 16, v246\nv_mul_f32 v3, {f32(math.log2(math.e))}, v3\nv_exp_f32 v3, v3\nv_cvt_pk_bf16_f32 v3, v3, v3\nv_lshlrev_b32 v3, 16, v3")
a("L_kg_loop:")
for i in range(6): a(f"v_and_b32 v{4+i}, 0xffff0000, v{240+i}\nv_lshlrev_b32 v{240+i}, 16, v{240+i}")
for i in range(4): a(f"v_mul_f32 v{4+i}, v3, v{4+i}")
a(f"v_mul_f32 v4, {f32(math.log2(math.e))}, v4\nv_mul_f32 v5, {f32(1/(2*math.pi))}, v5")
Z1, Z8, Z256, W = 10, 12, 14, 16
for k, z in ((1, Z1), (8, Z8), (256, Z256)):
    a(f"v_mul_f32 v20, {f32(k)}, v4\nv_mul_f32 v21, {f32(k)}, v5\nv_fract_f32 v21, v21\nv_exp_f32 v20, v20\nv_cos_f32 v{z}, v21\nv_sin_f32 v{z+1}, v21")
    neg = " neg_hi:[0,1]" if k == 8 else ""
    a(f"v_pk_mul_f32 {vr(z,2)}, {vr(z,2)}, v[20:21] op_sel:[0,0] op_sel_hi:[1,0]{neg}")
cmul(W, 8, 6, 20)
rowof = {}
h0 = [[0,1,2,3],[4,5,6,7],[1024,1032,1280,1288],[1536,1544,1792,1800]]
h1 = [[256,258,260,262],[264],[512,516,520],[768,772,776]]
for q in range(4):
    for i, v in enumerate(h0[q]): rowof[v] = 8*q + i
    for i, v in enumerate(h1[q]): rowof[v] = 8*q + 4 + i
cv = [0]
def put(src, row):
    t = 24 + (cv[0] % 4); cv[0] += 1
    a(f"v_cvt_pk_bf16_f32 v{t}, v{src}, v{src+1}\nds_write_b32 v1, v{t} offset:{row*272}")
G = {0: W}
opsG = [lambda: put(W, rowof[0])]
for b in range(1, 9):
    G[b] = 32 + 2*b
    opsG.append(lambda b=b: (cmul(G[b], G[b-1], Z1, 20), put(G[b], rowof[b]) if b < 8 else None))
Pq = {1: Z256}
for q in range(1, 8):
    if q > 1:
        Pq[q] = 52 + 2*(q & 1)
        opsG.append(lambda q=q: cmul(Pq[q], Pq[q-1], Z256, 20))
    ds = {1: (0,2,4,6,8), 2: (0,4,8), 3: (0,4,8)}.get(q, (0, 8))
    for n, d in enumerate(ds):
        opsG.append(lambda q=q, d=d, n=n: (cmul(56+2*(n&1), G[d], Pq[q], 20), put(56+2*(n&1), rowof[256*q+d])))
opsE = [lambda: a(f"v_mov_b32 v28, 0x3f80\nds_write_b32 v1, v28 offset:{32*272}"), lambda: put(Z8, 33)]
for j in range(2, 32):
    src = Z8 if j == 2 else 60 + 2*((j-1) & 1)
    dst = 60 + 2*(j & 1)
    opsE.append(lambda src=src, dst=dst, j=j: (cmul(dst, src, Z8, 22), put(dst, 32+j)))
for i in range(max(len(opsG), len(opsE))):
    if i < len(opsE): opsE[i]()
    if i < len(opsG): opsG[i]()
a(clr_issue(239, 238))
for k in range(8):
    a(f"ds_read_b128 {vr(64+8*k,4)}, v2 offset:{32*k}\nds_read_b128 {vr(68+8*k,4)}, v2 offset:{32*272+32*k}")
for k in range(8):
    a(f"s_waitcnt lgkmcnt({14-2*k})")
    a(f"v_mfma_f32_32x32x16_bf16 {vr(KA,16)}, {vr(64+8*k,4)}, {vr(68+8*k,4)}, {vr(KA,16)}")
a("s_add_u32 s3, s3, 1\ns_cmp_lt_u32 s3, 2\ns_cbranch_scc1 L_kg_loop")
a(f"v_and_b32 v1, 31, v0\nv_lshlrev_b32 v1, 4, v1\nv_sub_u32 v1, 496, v1\ns_lshl_b32 s9, s{S_CH}, 12\ns_add_u32 s9, s9, {KD}")
a("v_and_b32 v2, 1, v0\nv_cmp_eq_u32 vcc, 1, v2\nv_add_u32 v2, s69, v1")
def blk(n, b256, pairs):
    o = 16 + 4*n
    for i, (lo, hi) in enumerate(pairs): a(f"v_cvt_pk_bf16_f32 v{o+i}, v{lo}, v{hi}")
    return (o, (7-b256)*512)
r = lambda i: KA + i
st0 = [blk(0, 0, [(r(7),r(6)),(r(5),r(4)),(r(3),r(2)),(r(1),r(0))])]
for q in range(4):
    v0_, v1_ = r(8+2*q), r(9+2*q)
    a(f"v_cndmask_b32 v{4+q}, v{v0_}, v{v1_}, vcc")
    st0.append(blk(1+q, 4+q, [(v1_,v1_),(v1_,4+q),(v0_,v0_),(v0_,v0_)]))
st1 = [blk(5, 1, [(r(4),r(3)),(r(2),r(2)),(r(2),r(1)),(r(0),r(0))])]
for q in range(2):
    b = 8 + 4*q
    st1.append(blk(6+q, 2+q, [(r(b+2),r(b+2)),(r(b+1),r(b+1)),(r(b+1),r(b)),(r(b),r(b))]))
stamp(4)
a(f"s_setprio 0\ns_cmp_lt_u32 {WV}, 4\ns_cbranch_scc1 L_kexp")
zero(4, 4)
a(f"v_mov_b32 v8, s69\nds_write_b128 v8, v[4:7] offset:{UB+4096}")
a("s_mov_b32 exec_hi, 0")
for o, off in st0: a(f"ds_write_b128 v2, {vr(o,4)} offset:{UB+off}")
a("s_mov_b32 exec_hi, -1\ns_mov_b32 exec_lo, 0")
for o, off in st1: a(f"ds_write_b128 v2, {vr(o,4)} offset:{UB+off}")
a("s_mov_b32 exec_lo, -1")
poll(clr_issue(239, 238), nz_test(239), sleep=8)
a("s_mov_b32 s71, 0\ns_branch L_conv")
a("L_kexp:")
a("s_mov_b32 exec_hi, 0")
for o, off in st0: a(f"buffer_store_dwordx4 {vr(o,4)}, v1, {WS}, s9 offen offset:{off} sc1")
a("s_mov_b32 exec_hi, -1\ns_mov_b32 exec_lo, 0")
for o, off in st1: a(f"buffer_store_dwordx4 {vr(o,4)}, v1, {WS}, s9 offen offset:{off} sc1")
a("s_mov_b32 exec_lo, -1")
a(f"s_lshr_b32 s8, s{S_CH}, 3\ns_lshl_b32 s8, s8, 1\ns_lshr_b32 s9, {WV}, 1\ns_add_u32 s8, s8, s9")
a("s_mul_i32 s9, s8, 1490\ns_lshr_b32 s9, s9, 16\ns_mul_i32 s10, s9, 44\ns_sub_u32 s8, s8, s10")
a("s_cmp_ge_u32 s8, 24\ns_cselect_b32 s10, 1, 0\ns_mul_i32 s11, s10, 24\ns_sub_u32 s8, s8, s11\ns_lshl_b32 s8, s8, 3\ns_lshl_b32 s9, s9, 1\ns_add_u32 s8, s8, s9\ns_add_u32 s8, s8, s10")
a(f"s_lshl_b32 s8, s8, 7\ns_add_u32 s8, s8, {MBOX}\ns_and_b32 s9, {WV}, 1\ns_lshl_b32 s9, 0x1000000, s9\nv_mov_b32 v174, 0\nv_mov_b32 v5, s9")
poll(clr_issue(239, 238), nz_test(239), sleep=8)
a(f"s_mov_b64 exec, 1\nbuffer_atomic_or v5, v174, {WS}, s8 offen sc1\ns_mov_b64 exec, -1")
stamp(5)
a(mb_issue)
a("s_branch L_g2")

a("L_end:")
if PROF:
    a(f"s_lshl_b32 s93, s2, 3\ns_add_u32 s93, s93, {WV}\ns_lshl_b32 s93, s93, 6\ns_add_u32 s93, s93, {PROFB}")
    a(f"s_memrealtime s[94:95]\ns_waitcnt lgkmcnt(0)\ns_mov_b32 s87, s94\ns_mov_b32 s72, s{S_SPIN}")
    for i in range(16): a(f"v_mov_b32 v{224+i}, s{72+i}")
    a("v_mov_b32 v255, 0\ns_mov_b64 exec, 1")
    for i in range(4): a(f"buffer_store_dwordx4 {vr(224+4*i,4)}, v255, {WS}, s93 offen offset:{16*i}")
a("L_exit:")
a("s_endpgm")

hdr = open("cdna_kernels/%s.s.ref" % NAME).read().split("; Override launch")[0]
out = hdr + "; @launch grid=(256,1,1) block=(512,1,1) lds=163840\n"
out += '.amdgcn_target "amdgcn-amd-amdhsa--gfx950"\n.text\n' + a.text()
out += f""".section .rodata,"a"
.p2align 6
.amdhsa_kernel {KN}
  .amdhsa_next_free_vgpr 256
  .amdhsa_next_free_sgpr 102
  .amdhsa_accum_offset 256
  .amdhsa_group_segment_fixed_size 0
  .amdhsa_kernarg_size 136
  .amdhsa_user_sgpr_count 2
  .amdhsa_user_sgpr_kernarg_segment_ptr 1
  .amdhsa_system_sgpr_workgroup_id_x 1
.end_amdhsa_kernel
"""
path = [x for x in sys.argv[1:] if not x.startswith("--")]
open(path[0] if path else "f.s", "w").write(out)
```

```python
import sys, struct, math
sys.path.insert(0, "dev")
from asmlib import Asm, vr, sr

NAME = "parallel_sum__ssm_conv_s4__dense_activation_gelu__prompt"
KN = NAME + "_kernel"
PROF = "--prof" in sys.argv
def opt(name, default):
    for x in sys.argv:
        if x.startswith("--%s=" % name): return int(x.split("=")[1])
    return default
def f32(x): return "0x%08x" % struct.unpack("<I", struct.pack("<f", x))[0]

XNT, KD, YA, W2F = 0x000000, 0x280000, 0x500000, 0x780000
CLR = 0x9A0000
STATS, CSUM, MBOX, LNC, W2C, YAC = CLR, CLR+0x2000, CLR+0x10000, CLR+0x18000, CLR+0x19000, CLR+0x1A000
CSP = 14080
PROFB, HF = 0x9C0000, 0xA00000
WS_SIZE = 0x1100000
OOB = "0x7f000000"
P = dict(u=16, are=18, aim=20, bre=22, bim=24, cre=26, cim=28, ldt=30, dsk=32, bx=34, w1=36, b1=38, w2=40, b2=42, out=44, dbg=46, ws=48)
S_WS, S_A, S_B, S_DBG = 52, 56, 60, 64
S_WAVE, S_XR, S_XC, S_J, S_SPIN, S_CH = 4, 5, 6, 7, 50, 51
S_MB = 34
WV = f"s{S_WAVE}"
WS = f"s[{S_WS}:{S_WS+3}]"; SA = f"s[{S_A}:{S_A+3}]"; SB = f"s[{S_B}:{S_B+3}]"; DBG = f"s[{S_DBG}:{S_DBG+3}]"
STG = 36864
AREG, BREG0, BREG = 17408, 69632, 23552
B7 = BREG0 + 3*BREG
CNT = B7 + 23424
XT, YAT = B7, B7 + 10240
UB = 19200
NT = " nt" if opt("nt", 1) else ""

a = Asm()
def srd(d, ptr, size):
    a(f"s_mov_b32 s{d}, s{ptr}\ns_mov_b32 s{d+1}, s{ptr+1}\ns_mov_b32 s{d+2}, {hex(size)}\ns_mov_b32 s{d+3}, 0x20000")
def stamp(idx):
    if PROF: a(f"s_memtime s[92:93]\ns_waitcnt lgkmcnt(0)\ns_sub_u32 s{72+idx}, s92, s90")
def endp(): a("s_branch L_end")
def cmul(d, x, y, t):
    a(f"v_pk_mul_f32 {vr(t,2)}, {vr(x,2)}, {vr(y,2)} op_sel:[0,0] op_sel_hi:[0,1]")
    a(f"v_pk_fma_f32 {vr(d,2)}, {vr(x,2)}, {vr(y,2)}, {vr(t,2)} op_sel:[1,1,0] op_sel_hi:[1,0,1] neg_lo:[0,1,0]")
def poll(issue, test, sleep=4, issued=True):
    L = a.label("L_poll"); D = a.label("L_pdone")
    if not issued: a(issue)
    a(f"{L}:")
    a("s_waitcnt vmcnt(0)")
    a(test)
    a(f"s_cbranch_scc1 {D}")
    a(f"s_add_u32 s{S_SPIN}, s{S_SPIN}, 1\ns_cmp_gt_u32 s{S_SPIN}, 100000\ns_cbranch_scc1 L_exit")
    a(f"s_sleep {sleep}")
    a(issue)
    a(f"s_branch {L}")
    a(f"{D}:")
def arrive_issue(sreg, va, vb):
    a(f"v_mov_b32 v{va}, 0\nv_mov_b32 v{vb}, 1\ns_mov_b64 exec, 1\nbuffer_atomic_add v{vb}, v{va}, {WS}, s{sreg} offen sc0 sc1\ns_mov_b64 exec, -1")
def arrive_check(st, vb, n, then):
    L = a.label("L_arr")
    a(f"s_waitcnt vmcnt(0)\nv_readfirstlane_b32 s{st}, v{vb}\ns_cmp_lg_u32 s{st}, {n-1}\ns_cbranch_scc1 {L}")
    a(then)
    a(f"{L}:")
def push_all(bitreg, off, va, vb, st):
    t = f"v_lshlrev_b32 v{va}, 7, v0\nv_mov_b32 v{vb}, s{bitreg}\ns_mov_b32 s{st}, {MBOX+off}\n"
    for i in range(4): t += f"buffer_atomic_or v{vb}, v{va}, {WS}, s{st} offen sc1\ns_add_u32 s{st}, s{st}, 8192\n"
    return t
def clr_issue(v, vo): return f"buffer_load_dword v{v}, v{vo}, {DBG}, 0 offen sc1"
def nz_test(v): return f"v_cmp_ne_u32 vcc, 0, v{v}\ns_cmp_eq_u64 vcc, -1"
def zero(b, n):
    for i in range(0, n, 2): a(f"v_pk_mov_b32 {vr(b+i,2)}, 0, 0")

a.raw(f".globl {KN}\n.p2align 8\n.type {KN},@function")
a(f"{KN}:")
a("s_cmp_ge_u32 s2, 256\ns_cbranch_scc1 L_exit")
a("s_load_dwordx16 s[16:31], s[0:1], 0\ns_load_dwordx16 s[32:47], s[0:1], 64\ns_load_dwordx2 s[48:49], s[0:1], 128")
if PROF:
    a("s_memtime s[90:91]\ns_memrealtime s[94:95]")
    for i in range(16): a(f"s_mov_b32 s{72+i}, 0")
a("v_lshrrev_b32 v1, 6, v0\nv_and_b32 v0, 63, v0")
a(f"v_readfirstlane_b32 {WV}, v1")
a(f"s_bfe_u32 s{S_XR}, s2, 0x20001\ns_and_b32 s{S_XC}, s2, 1\ns_lshr_b32 s{S_J}, s2, 3\ns_mov_b32 s{S_SPIN}, 0")
a(f"s_lshl_b32 s8, s{S_XC}, 2\ns_sub_u32 s8, 24, s8")
a(f"s_cmp_eq_u32 s{S_XC}, 0\ns_cselect_b32 s9, 43, 52\ns_mul_i32 s9, s9, s{S_J}\ns_lshr_b32 s9, s9, 8")
a(f"s_sub_u32 s11, 6, s{S_XC}\ns_mul_i32 s11, s11, s9\ns_sub_u32 s10, s{S_J}, s11\ns_mul_i32 s11, s{S_XC}, 6\ns_add_u32 s10, s10, s11")
a(f"s_lshl_b32 s11, s{S_XR}, 2\ns_add_u32 s9, s9, s11")
a("v_lshrrev_b32 v4, 3, v0\nv_mul_u32_u24 v4, 1280, v4")
a("v_and_b32 v5, 7, v0\nv_lshl_add_u32 v13, v5, 4, v4\nv_lshrrev_b32 v6, 4, v0\nv_xor_b32 v5, v5, v6\nv_lshl_add_u32 v2, v5, 4, v4")
a("v_xor_b32 v5, 4, v5\nv_lshl_add_u32 v3, v5, 4, v4\nv_add_u32 v3, 10240, v3\nv_add_u32 v4, 20480, v2\nv_add_u32 v5, 20480, v3")
for i in range(5):
    a(f"v_add_u32 v6, {64*i}, v0\nv_mul_u32_u24 v7, 3277, v6\nv_lshrrev_b32 v7, 16, v7\nv_mul_u32_u24 v7, 3136, v7\nv_lshl_add_u32 v{8+i}, v6, 4, v7")
a("s_waitcnt lgkmcnt(0)")
srd(S_WS, P['ws'], WS_SIZE)
srd(S_A, P['u'], 2621440)
srd(S_B, P['w1'], 2211840)
srd(S_DBG, P['dbg'], 256)
a(f"s_lshl_b32 s{S_MB}, s2, 7\ns_add_u32 s{S_MB}, s{S_MB}, {MBOX}")
if PROF:
    a("s_mov_b32 s86, s94"); stamp(13)
a(f"s_cmp_ge_u32 s{S_J}, s8\ns_cbranch_scc1 L_aux")
a(f"s_mul_i32 s35, s{S_XR}, 44\ns_mul_i32 s12, s{S_XC}, 24\ns_add_u32 s35, s35, s12\ns_add_u32 s35, s35, s{S_J}")
a(f"s_cmp_lt_u32 {WV}, 4\ns_cbranch_scc1 L_comp")

a(f"s_sub_u32 s8, {WV}, 4")
a("s_lshl_b32 s11, s9, 7\ns_lshl_b32 s12, s8, 5\ns_add_u32 s11, s11, s12\ns_mul_i32 s11, s11, 1280")
a("s_mul_i32 s12, s8, 55296\ns_mul_i32 s13, s10, 320\ns_add_u32 s12, s12, s13")
a("s_lshl_b32 s13, s8, 12\ns_mul_i32 s14, s8, 5120\ns_add_u32 s14, s14, 16384\ns_mov_b32 s3, 0")
a(f"s_and_b32 s15, s9, 3\ns_mul_i32 s15, s15, 5\ns_add_u32 s15, s15, 1\ns_lshr_b32 s15, s15, 1\ns_lshl_b32 s68, s10, 1\ns_add_u32 s15, s15, s68\ns_add_u32 s15, s15, s{S_XR}")
a("s_mul_i32 s68, s15, 26\ns_lshr_b32 s68, s68, 8\ns_mul_i32 s68, s68, 10\ns_sub_u32 s15, s15, s68")
a("s_lshl_b32 s68, s15, 7\ns_add_u32 s11, s11, s68\ns_mul_i32 s68, s15, 221184\ns_add_u32 s12, s12, s68\ns_mov_b32 s69, 0")
stamp(1)
DEEP = opt("deep", 0)
a("L_ld_loop:")
if DEEP:
    a("s_cmp_lt_u32 s3, 2\ns_cbranch_scc1 L_ld_nowait\ns_cmp_eq_u32 s3, 3\ns_cbranch_scc1 L_ld_nowait\ns_cmp_gt_u32 s3, 2\ns_cbranch_scc1 L_ld_w18\ns_waitcnt vmcnt(9)")
    a("L_ld_w18:")
    a("s_waitcnt vmcnt(18)\ns_barrier")
else:
    a("s_cmp_lt_u32 s3, 2\ns_cbranch_scc1 L_ld_nowait\ns_waitcnt vmcnt(9)\ns_barrier")
a("L_ld_nowait:")
a("s_add_u32 s70, s69, s13\ns_add_u32 s71, s69, s14")
for q in range(4): a(f"s_add_u32 m0, s70, {1024*q}\nbuffer_load_dwordx4 v{2+q}, {SA}, s11 offen{NT} lds")
for i in range(5): a(f"s_add_u32 m0, s71, {1024*i}\nbuffer_load_dwordx4 v{8+i}, {SB}, s12 offen{NT} lds")
a("s_add_u32 s11, s11, 128\ns_add_u32 s12, s12, 221184\ns_add_u32 s15, s15, 1\ns_cmp_lt_u32 s15, 10\ns_cbranch_scc1 L_ld_nowrap")
a("s_sub_u32 s11, s11, 1280\ns_sub_u32 s12, s12, 2211840\ns_mov_b32 s15, 0")
a("L_ld_nowrap:")
a(f"s_add_u32 s69, s69, {STG}\ns_cmp_eq_u32 s69, {4*STG}\ns_cselect_b32 s69, 0, s69")
a("s_add_u32 s3, s3, 1\ns_cmp_lt_u32 s3, 10\ns_cbranch_scc1 L_ld_loop")
for i in range(2 if DEEP else 1, -1, -1): a(f"s_waitcnt vmcnt({9*i})\ns_barrier")
a("s_barrier")
stamp(2)
a(f"s_cmp_eq_u32 {WV}, 7\ns_cbranch_scc1 L_fetch")
a(f"s_cmp_eq_u32 {WV}, 6\ns_cbranch_scc1 L_end")
a("s_cmp_ge_u32 s35, 160\ns_cbranch_scc1 L_end")
a(f"s_lshl_b32 s11, s35, 1\ns_add_u32 s11, s11, s8\ns_lshr_b32 s12, s11, 2\ns_lshl_b32 s12, s12, 3\ns_and_b32 s11, s11, 3\ns_add_u32 s{S_CH}, s11, s12")
a("s_lshl_b32 s71, 0x1000000, s8\ns_branch L_conv")

a("L_comp:")
ACC = 64; BUF = [16, 40]; SF = 144
srd(S_B, P['w2'], 2211840)
a(f"s_lshl_b32 s8, s35, 2\ns_add_u32 s8, s8, {WV}\ns_min_u32 s11, s8, 539\ns_mul_i32 s12, s11, 6554\ns_lshr_b32 s12, s12, 16\ns_mul_i32 s13, s12, 10\ns_sub_u32 s70, s11, s13")
a(f"s_mul_i32 s14, s12, 40960\ns_lshl_b32 s15, s70, 7\ns_add_u32 s14, s14, s15\ns_lshl_b32 s69, {WV}, 12\ns_add_u32 s69, s69, {4*STG}")
a(f"s_cmp_lt_u32 s8, 540\ns_cselect_b32 s14, s14, {OOB}")
for q in range(4):
    a(f"s_add_u32 m0, s69, {1024*q}\nbuffer_load_dwordx4 v13, {SB}, s14 offen{NT} lds\ns_add_u32 s14, s14, 10240")
a(f"s_mul_i32 s15, s70, 216\ns_add_u32 s15, s15, s12\ns_lshl_b32 s15, s15, 10\ns_add_u32 s71, s15, {W2F}\ns_lshl_b32 s68, s70, 7\ns_add_u32 s68, s68, {W2C}")
a(f"s_cmp_lt_u32 s8, 540\ns_cselect_b32 s71, s71, {OOB}\ns_cselect_b32 s68, s68, {OOB}\ns_lshl_b32 s70, 1, s70")
a("v_lshrrev_b32 v180, 5, v0\nv_bfe_u32 v1, v0, 4, 1\nv_lshlrev_b32 v180, 4, v180\nv_lshl_add_u32 v180, v1, 2, v180\nv_bfe_u32 v1, v0, 2, 2\nv_add_u32 v180, v180, v1")
a("v_lshlrev_b32 v180, 7, v180\nv_and_b32 v1, 3, v0\nv_lshl_add_u32 v180, v1, 3, v180\nv_add_u32 v180, s69, v180\nv_lshlrev_b32 v181, 4, v0")
a("v_and_b32 v13, 31, v0\nv_lshrrev_b32 v14, 5, v0")
a(f"s_lshl_b32 s8, {WV}, 12\nv_lshlrev_b32 v15, 7, v13\nv_add_u32 v15, s8, v15")
a("v_bfe_u32 v7, v0, 1, 3\nv_xor_b32 v7, v7, v14")
for ks in range(4): a(f"v_xor_b32 v1, {2*ks}, v7\nv_lshl_add_u32 v{2+ks}, v1, 4, v15")
a("v_bfe_u32 v1, v0, 2, 2\nv_lshl_add_u32 v1, v14, 3, v1\nv_mul_u32_u24 v1, 320, v1")
a("v_bfe_u32 v7, v0, 4, 1\nv_lshl_add_u32 v1, v7, 5, v1\nv_and_b32 v7, 3, v0\nv_lshl_add_u32 v1, v7, 3, v1\nv_add_u32 v6, 16384, v1")
for i in range(5): a(f"v_mov_b32 v{8+i}, v{2+i}")
zero(ACC, 80)
a(f"v_and_b32 v170, 3, v0\nv_lshlrev_b32 v170, 6, v170\nv_lshlrev_b32 v171, 2, v13\nv_mul_u32_u24 v172, {2*CSP}, v14\nv_lshl_add_u32 v172, v13, 3, v172\nv_add_u32 v175, {CSP}, v172")
a(f"s_lshl_b32 s11, s9, 9\ns_lshl_b32 s12, {WV}, 7\ns_add_u32 s11, s11, s12\ns_add_u32 s11, s11, {STATS}")
a(f"s_mul_i32 s12, s10, 1280\ns_add_u32 s12, s12, {CSUM}\ns_cmp_eq_u32 s10, 10\ns_cselect_b32 s13, 3, 4\ns_lshl_b32 s13, s13, 8\ns_add_u32 s13, s13, s12")
H1, H2 = opt("h1", 3), opt("h2", 6)
a(f"s_mov_b32 s15, 0\ns_mov_b32 s3, 0\ns_mov_b32 s14, {H1}")
a("s_waitcnt vmcnt(0)")
for dt in range(4):
    for s in range(2): a(f"ds_read_b64_tr_b16 {vr(184+4*dt+2*s,2)}, v180 offset:{1024*s + 32*dt}")
for dt in range(4):
    a(f"s_waitcnt lgkmcnt({6-2*dt})\nbuffer_store_dwordx4 {vr(184+4*dt,4)}, v181, {WS}, s71 offen sc1\ns_add_u32 s71, s71, 55296")
stamp(11)
s_issue = f"buffer_load_dword v{SF}, v171, {WS}, s11 offen sc1\n" + "\n".join(
    [f"buffer_load_dwordx2 {vr(SF+4+4*ft+2*p,2)}, v{(172,175)[p]}, {WS}, s12 offen offset:{256*ft} sc1" for ft in range(4) for p in range(2)] +
    [f"buffer_load_dwordx2 {vr(SF+20+2*p,2)}, v{(172,175)[p]}, {WS}, s13 offen sc1" for p in range(2)])
def reads(ks, b):
    r = [f"ds_read_b128 {vr(b,4)}, v{8+ks}"]
    for ft in range(5):
        for s in range(2):
            r.append(f"ds_read_b64_tr_b16 {vr(b+4+4*ft+2*s,2)}, v12 offset:{ks*5120 + s*1280 + ft*64}")
    return r
def step(cur, nks, nb, last, first_wait=True):
    R = reads(nks, nb)
    waits = [8, 9, 10, 11, 11]; parts = [R[0:3], R[3:6], R[6:9], R[9:11], [last]]
    for ft in range(5):
        if first_wait: a(f"s_waitcnt lgkmcnt({waits[ft]})")
        a(f"v_mfma_f32_32x32x16_bf16 {vr(ACC+16*ft,16)}, {vr(cur+4+4*ft,4)}, {vr(cur,4)}, {vr(ACC+16*ft,16)}")
        for r in parts[ft]: a(r)
a("s_barrier")
stamp(1)
a(clr_issue(173, 170))
for r in reads(0, BUF[0]): a(r)
a("L_c_loop:")
step(BUF[0], 1, BUF[1], f"s_add_u32 s15, s15, {STG}\ns_cmp_eq_u32 s15, {4*STG}\ns_cselect_b32 s15, 0, s15\nv_add_u32 v8, s15, v2")
step(BUF[1], 2, BUF[0], "v_add_u32 v9, s15, v3\nv_add_u32 v10, s15, v4\ns_cmp_eq_u32 s3, s14\ns_cbranch_scc1 L_hook\nL_hookret:")
step(BUF[0], 3, BUF[1], "v_add_u32 v12, s15, v6\ns_waitcnt lgkmcnt(0)\ns_barrier")
step(BUF[1], 0, BUF[0], "v_add_u32 v11, s15, v5\ns_add_u32 s3, s3, 1\ns_cmp_lt_u32 s3, 10\ns_cbranch_scc1 L_c_loop", first_wait=False)
stamp(2)
t = f"v_and_b32 v1, v{SF+5}, v{SF+7}\n" + "\n".join(f"v_and_b32 v1, v1, v{SF+5+4*ft}\nv_and_b32 v1, v1, v{SF+7+4*ft}" for ft in range(1, 5))
t += f"\nv_and_b32 v1, 1, v1\nv_min_u32 v1, v1, v{SF}\n" + nz_test(1)
poll(s_issue, t, sleep=8)
stamp(3)
a("s_waitcnt lgkmcnt(0)")
a(f"v_xor_b32 v17, 0x8000, v{SF}\nv_and_b32 v19, 0xffff, v17\nv_lshl_or_b32 v16, v19, 16, v19\nv_mov_b32 v18, v16")
a("v_cmp_gt_u32 vcc, 32, v0\nv_cndmask_b32 v17, v19, v17, vcc")
a(f"v_and_b32 v10, 0xffff0000, v{SF}\nv_rcp_f32 v7, v10\nv_mov_b32 v11, v10")
for ft in range(5):
    a(f"v_mfma_f32_32x32x16_bf16 {vr(ACC+16*ft,16)}, {vr(SF+4+4*ft,4)}, v[16:19], {vr(ACC+16*ft,16)}")
    if ft == 0:
        k1c = -2.0 * math.log2(math.e) * math.sqrt(2.0/math.pi); k2c = k1c * 0.044715
        a(f"v_mul_f32 v8, {f32(k1c)}, v7\nv_mul_f32 v12, v7, v7\nv_mul_f32 v12, v12, v7\nv_mul_f32 v12, {f32(k2c)}, v12\nv_mov_b32 v9, v8\nv_mov_b32 v13, v12")
    if ft == 1:
        a("v_bfe_u32 v1, v0, 4, 1\nv_mul_u32_u24 v1, 55296, v1\nv_lshl_add_u32 v1, v14, 8, v1\nv_and_b32 v7, 15, v0\nv_lshl_add_u32 v1, v7, 4, v1")
    if ft == 2:
        a(f"s_lshl_b32 s8, s9, 3\ns_lshl_b32 s11, {WV}, 1\ns_add_u32 s8, s8, s11\ns_mul_i32 s8, s8, 54\ns_mul_i32 s11, s10, 5")
    if ft == 3:
        a(f"s_add_u32 s8, s8, s11\ns_lshl_b32 s8, s8, 10\ns_add_u32 s8, s8, {HF}\nv_mov_b32 v174, 0")
mb_issue = f"buffer_load_dwordx2 v[176:177], v174, {WS}, s{S_MB} offen sc1"
def stA(h):
    A0 = ACC + 8*h; T = 16 + 8*(h % 3)
    return ([f"v_pk_mul_f32 {vr(T+2*p,2)}, {vr(A0+2*p,2)}, {vr(A0+2*p,2)}" for p in range(4)] +
            [f"v_pk_fma_f32 {vr(T+2*p,2)}, {vr(T+2*p,2)}, v[12:13], v[8:9]" for p in range(4)] +
            [f"v_pk_mul_f32 {vr(T+2*p,2)}, {vr(T+2*p,2)}, {vr(A0+2*p,2)}" for p in range(4)])
def stE(h):
    T = 16 + 8*(h % 3); return [f"v_exp_f32 v{T+e}, v{T+e}" for e in range(8)]
def stB(h):
    T = 16 + 8*(h % 3); return [f"v_pk_fma_f32 {vr(T+2*p,2)}, {vr(T+2*p,2)}, v[10:11], v[10:11]" for p in range(4)]
def stR(h):
    T = 16 + 8*(h % 3); return [f"v_rcp_f32 v{T+e}, v{T+e}" for e in range(8)]
def stC(h):
    A0 = ACC + 8*h; T = 16 + 8*(h % 3); pk = 48 + 4*(h % 4)
    return ([f"v_pk_mul_f32 {vr(T+2*p,2)}, {vr(T+2*p,2)}, {vr(A0+2*p,2)}" for p in range(4)] +
            [f"v_cvt_pk_bf16_f32 v{pk+p}, v{T+2*p}, v{T+2*p+1}" for p in range(4)] +
            [f"buffer_store_dwordx4 {vr(pk,4)}, v1, {WS}, s8 offen offset:{(h//2 % 4)*1024 + (h%2)*512} sc1"])
def mix(tr, nt):
    i = 0
    for k, x in enumerate(tr):
        a(x)
        n = (len(nt) * (k+1)) // len(tr)
        while i < n: a(nt[i]); i += 1
def epi(nh):
    for x in stA(0): a(x)
    for h in range(nh):
        mix(stE(h), (stC(h-1) if h else []))
        if h == 8: a("s_add_u32 s8, s8, 4096")
        for x in stB(h): a(x)
        mix(stR(h), (stA(h+1) if h+1 < nh else []))
        if h == 2: a(mb_issue)
        if h == 7:
            a(f"s_cmp_eq_u32 s10, 10\ns_cbranch_scc1 L_c_short")
    for x in stC(nh-1): a(x)
epi(10)
a("s_branch L_c_done")
a("L_c_short:")
for x in stC(7): a(x)
a("L_c_done:")
stamp(4)
a(f"s_lshl_b32 s8, s9, 1\ns_lshr_b32 s11, {WV}, 1\ns_add_u32 s8, s8, s11")
a(f"s_and_b32 s11, s8, 7\ns_lshl_b32 s11, s11, 5\ns_lshr_b32 s8, s8, 3\ns_lshl_b32 s8, s8, 1\ns_add_u32 s8, s8, s11\ns_lshl_b32 s8, s8, 7\ns_add_u32 s8, s8, {MBOX}")
a(f"s_and_b32 s11, {WV}, 1\ns_mul_i32 s11, s11, 11\ns_add_u32 s11, s11, s10\ns_lshl_b32 s11, 1, s11")
a("v_and_b32 v1, 3, v0\nv_lshlrev_b32 v1, 10, v1\nv_bfe_u32 v2, v0, 2, 1\nv_lshl_add_u32 v1, v2, 7, v1\nv_mov_b32 v2, s11")
a(f"s_waitcnt vmcnt(0)\ns_mov_b64 exec, 0xff\nbuffer_atomic_or v2, v1, {WS}, s8 offen sc1\ns_mov_b64 exec, -1")
stamp(5)

a("L_g2:")
G2B = [16, 52, 88, 124]; AC2 = 160
a(f"s_lshl_b32 s8, s{S_XR}, 3\ns_lshr_b32 s9, s{S_J}, 2\ns_add_u32 s8, s8, s9")
a(f"s_lshl_b32 s9, s{S_XC}, 2\ns_and_b32 s10, s{S_J}, 3\ns_add_u32 s9, s9, s10")
a("s_mul_i32 s69, s9, 5\ns_lshr_b32 s69, s69, 2\ns_lshl_b32 s69, 3, s69")
K0 = [0, 12, 24, 39, 54]
a(f"s_mul_i32 s13, {WV}, 12\ns_cmp_eq_u32 {WV}, 3\ns_cselect_b32 s13, 39, s13\ns_cmp_lt_u32 {WV}, 2\ns_cselect_b32 s10, 12, 15")
if opt("rot2", 1):
    a(f"s_and_b32 s15, s{S_J}, 3\ns_mul_i32 s15, s15, 3\ns_lshr_b32 s14, s{S_J}, 2\ns_mul_i32 s14, s14, 3\ns_lshr_b32 s14, s14, 1\ns_add_u32 s15, s15, s14\ns_add_u32 s15, s15, s{S_XC}")
    a("s_cmp_ge_u32 s15, s10\ns_cselect_b32 s14, s10, 0\ns_sub_u32 s15, s15, s14")
else:
    a("s_mov_b32 s15, 0")
a("s_add_u32 s13, s13, s15\ns_lshl_b32 s70, s10, 10\ns_mov_b32 s71, s10")
a(f"s_mul_i32 s11, s8, {4*55296}\ns_lshl_b32 s12, s13, 10\ns_add_u32 s11, s11, s12\ns_add_u32 s11, s11, {HF}")
a(f"s_mul_i32 s13, s9, {5*55296}\ns_add_u32 s12, s13, s12\ns_add_u32 s12, s12, {W2F}")
a("v_lshlrev_b32 v1, 4, v0")
for i in range(1, 5): a(f"v_add_u32 v{1+i}, {55296*i}, v1")
for i in range(4):
    a(f"s_add_u32 s13, {WV}, {i}\ns_and_b32 s13, s13, 3\ns_mul_i32 s13, s13, 55296\nv_add_u32 v{6+i}, s13, v1")
masks = []
for w in range(4):
    c0, c1 = K0[w]//5, (K0[w+1]-1)//5
    m = ((1 << (c1-c0+1)) - 1) << c0
    masks.append(m | (m << 11))
a(f"s_mov_b32 s68, {hex(masks[0])}\ns_cmp_eq_u32 {WV}, 1\ns_cselect_b32 s68, {hex(masks[1])}, s68\ns_cmp_eq_u32 {WV}, 2\ns_cselect_b32 s68, {hex(masks[2])}, s68\ns_cmp_eq_u32 {WV}, 3\ns_cselect_b32 s68, {hex(masks[3])}, s68")
a("s_mov_b32 s96, 0")
for s in range(1, 4):
    a(f"s_add_u32 s{96+s}, s{95+s}, 1024\ns_add_u32 s15, s15, 1\ns_cmp_eq_u32 s15, s71\ns_cselect_b32 s14, s70, 0\ns_cselect_b32 s15, 0, s15\ns_sub_u32 s{96+s}, s{96+s}, s14")
def ldh(b, so="s11"): return [f"buffer_load_dwordx4 {vr(b+4*i,4)}, v{6+i}, {WS}, {so} offen sc1" for i in range(4)]
def ldw(b, so="s12"): return [f"buffer_load_dwordx4 {vr(b+16+4*i,4)}, v{1+i}, {WS}, {so} offen sc1" for i in range(5)]
poll(mb_issue, "v_readfirstlane_b32 s13, v177\ns_and_b32 s13, s13, s69\ns_cmp_eq_u32 s13, s69", sleep=10)
for s in range(3):
    a(f"s_add_u32 s13, s12, s{96+s}")
    for l in ldw(G2B[s], "s13"): a(l)
srd(S_A, P['b2'], 1280)
a(f"v_lshrrev_b32 v10, 4, v0\nv_lshlrev_b32 v10, 3, v10\ns_mul_i32 s13, s9, 160\nv_mov_b32 v11, 0")
for dt in range(5): a(f"buffer_load_dwordx2 {vr(240+2*dt,2)}, v10, {SA}, s13 offen offset:{32*dt}")
zero(AC2, 80)
poll(f"buffer_load_dword v12, v11, {WS}, s{S_MB} offen sc1", "v_readfirstlane_b32 s13, v12\ns_and_b32 s13, s13, s68\ns_cmp_eq_u32 s13, s68", sleep=opt('msleep', 4), issued=False)
stamp(6)
for s in range(3):
    a(f"s_add_u32 s13, s11, s{96+s}")
    for l in ldh(G2B[s], "s13"): a(l)
a("s_add_u32 s11, s11, s99\ns_add_u32 s12, s12, s99\ns_sub_u32 s13, s10, 3")
a("s_waitcnt vmcnt(0)")
stamp(7)
a("L_g_loop:")
for s in range(4):
    b = G2B[s]; L = ldh(G2B[(s+3) % 4]) + ldw(G2B[(s+3) % 4])
    extra = {1: f"s_cmp_eq_u32 s13, 0\ns_cselect_b32 s11, {OOB}, s11\ns_cselect_b32 s12, {OOB}, s12\ns_cselect_b32 s14, 0, 1\ns_sub_u32 s13, s13, s14"}
    a("s_waitcnt vmcnt(18)")
    n = 0
    for i in range(4):
        for dt in range(5):
            acc = AC2 + 4*(5*i+dt)
            a(f"v_mfma_f32_16x16x32_bf16 {vr(acc,4)}, {vr(b+16+4*dt,4)}, {vr(b+4*i,4)}, {vr(acc,4)}")
            if n == 0: a(f"s_cmp_eq_u32 s13, 0\ns_cselect_b32 s11, {OOB}, s11")
            if n == 1: a(f"s_cselect_b32 s12, {OOB}, s12\ns_cselect_b32 s14, 0, 1")
            if n >= 2 and n % 2 == 0 and (n-2)//2 < 9: a(L[(n-2)//2])
            if n == 3: a("s_sub_u32 s13, s13, s14\ns_add_u32 s15, s15, 1")
            if n == 5: a("s_cmp_eq_u32 s15, s71\ns_cselect_b32 s14, s70, 0")
            if n == 7: a("s_cselect_b32 s15, 0, s15\ns_sub_u32 s14, 1024, s14")
            if n == 9: a("s_add_u32 s11, s11, s14")
            if n == 17: a("s_sub_u32 s10, s10, 1")
            n += 1
    a("s_add_u32 s12, s12, s14\ns_cmp_eq_u32 s10, 0")
    a("s_cbranch_scc1 L_g_done" if s < 3 else "s_cbranch_scc0 L_g_loop")
a("L_g_done:")
stamp(8)
a(f"s_mul_i32 s13, {WV}, {AREG}\nv_add_u32 v2, s13, v1\ns_nop 4")
for i in range(1, 4):
    for dt in range(5): a(f"ds_write_b128 v2, {vr(AC2+4*(5*i+dt),4)} offset:{5120*(i-1)+1024*dt}")
for i in range(1, 4):
    a(f"s_sub_u32 s13, {WV}, {i}\ns_and_b32 s13, s13, 3\ns_mul_i32 s13, s13, {AREG}\ns_add_u32 s13, s13, {5120*(i-1)}\nv_add_u32 v{12+i}, s13, v1")
a("v_lshrrev_b32 v3, 2, v0\nv_lshlrev_b32 v3, 7, v3\nv_bfe_u32 v4, v0, 1, 1\nv_lshl_add_u32 v3, v4, 6, v3\nv_and_b32 v4, 1, v0\nv_lshl_add_u32 v3, v4, 3, v3")
a(f"s_lshl_b32 s13, {WV}, 4\ns_add_u32 s13, s13, {YAT}\nv_add_u32 v3, s13, v3")
a("v_and_b32 v4, 15, v0\nv_mul_u32_u24 v4, 160, v4\nv_lshrrev_b32 v5, 4, v0\nv_lshl_add_u32 v4, v5, 3, v4")
a(f"s_mul_i32 s13, {WV}, 2560\nv_add_u32 v4, s13, v4\nv_add_u32 v5, {XT}, v4\nv_add_u32 v4, {BREG0}, v4\ns_add_u32 s13, s13, {BREG0}\nv_add_u32 v6, s13, v1")
srd(S_A, P['out'], 2621440)
for q in range(3):
    a(f"v_add_u32 v10, {64*q}, v0\nv_mul_u32_u24 v11, 6554, v10\nv_lshrrev_b32 v11, 16, v11\nv_mul_u32_u24 v11, 1120, v11\nv_lshl_add_u32 v{7+q}, v10, 4, v11")
a(f"v_cmp_gt_u32 vcc, 32, v0\nv_mov_b32 v10, {OOB}\nv_cndmask_b32 v9, v10, v9, vcc")
a(f"s_lshl_b32 s13, s8, 6\ns_lshl_b32 s14, {WV}, 4\ns_add_u32 s13, s13, s14\ns_mul_i32 s13, s13, 1280\ns_mul_i32 s14, s9, 160\ns_add_u32 s13, s13, s14")
for dt in range(5):
    for h in range(2):
        a(f"v_lshlrev_b32 v10, 16, v{240+2*dt+h}\nv_and_b32 v11, 0xffff0000, v{240+2*dt+h}\nv_pk_add_f32 {vr(AC2+4*dt+2*h,2)}, {vr(AC2+4*dt+2*h,2)}, v[10:11]")
a("s_waitcnt vmcnt(0) lgkmcnt(0)\ns_barrier")
stamp(9)
for dt in range(5): a(f"ds_read_b64_tr_b16 {vr(80+2*dt,2)}, v3 offset:{2048*dt}\nds_read_b64 {vr(90+2*dt,2)}, v5 offset:{32*dt}")
for q in range(5): a(f"ds_read_b128 {vr(16+4*q,4)}, v13 offset:{1024*q}")
for dt in range(5):
    a(f"s_waitcnt lgkmcnt({13-2*dt})")
    for h in range(2):
        for src in (80, 90):
            a(f"v_lshlrev_b32 v10, 16, v{src+2*dt+h}\nv_and_b32 v11, 0xffff0000, v{src+2*dt+h}\nv_pk_add_f32 {vr(AC2+4*dt+2*h,2)}, {vr(AC2+4*dt+2*h,2)}, v[10:11]")
for q in range(5, 15): a(f"ds_read_b128 {vr(16+4*q,4)}, v{13+q//5} offset:{1024*(q%5)}")
for q in range(15):
    a(f"s_waitcnt lgkmcnt({14-q})")
    dt = q % 5
    for h in range(2): a(f"v_pk_add_f32 {vr(AC2+4*dt+2*h,2)}, {vr(AC2+4*dt+2*h,2)}, {vr(16+4*q+2*h,2)}")
for dt in range(5):
    for h in range(2): a(f"v_cvt_pk_bf16_f32 v{100+2*dt+h}, v{AC2+4*dt+2*h}, v{AC2+4*dt+2*h+1}")
    a(f"ds_write_b64 v4, {vr(100+2*dt,2)} offset:{32*dt}")
for q in range(3): a(f"ds_read_b128 {vr(16+4*q,4)}, v6 offset:{1024*q}")
for q in range(3):
    a(f"s_waitcnt lgkmcnt({2-q})\nbuffer_store_dwordx4 {vr(16+4*q,4)}, v{7+q}, {SA}, s13 offen")
stamp(10)
endp()

a("L_hook:")
a(f"s_cmp_eq_u32 s14, {H2}\ns_cbranch_scc1 L_hook2")
poll(clr_issue(173, 170), nz_test(173), sleep=8)
arrive_issue(68, 182, 183)
a(f"s_mov_b32 s14, {H2}\ns_branch L_hookret")
a("L_hook2:")
arrive_check(68, 183, 54, push_all(70, 4, 182, 183, 68))
a(s_issue)
a("s_branch L_hookret")

a("L_fetch:")
a(f"s_lshl_b32 s8, s{S_XR}, 3\ns_lshr_b32 s9, s{S_J}, 2\ns_add_u32 s8, s8, s9")
a(f"s_lshl_b32 s9, s{S_XC}, 2\ns_and_b32 s10, s{S_J}, 3\ns_add_u32 s9, s9, s10")
a(f"s_mul_i32 s11, s8, 81920\ns_mul_i32 s10, s9, 160\ns_add_u32 s10, s11, s10\ns_mov_b32 s3, 0\ns_mov_b32 s12, {XT}\nv_mov_b32 v10, v0")
a("L_f_x:")
a("v_mul_u32_u24 v11, 6554, v10\nv_lshrrev_b32 v11, 16, v11\nv_mul_u32_u24 v11, 1120, v11\nv_lshl_add_u32 v11, v10, 4, v11\ns_mov_b32 m0, s12")
a(f"buffer_load_dwordx4 v11, {SA}, s10 offen lds")
a("v_add_u32 v10, 64, v10\ns_add_u32 s12, s12, 1024\ns_add_u32 s3, s3, 1\ns_cmp_lt_u32 s3, 10\ns_cbranch_scc1 L_f_x")
a("v_mov_b32 v1, 0")
poll(f"buffer_load_dword v4, v1, {WS}, s{S_MB} offen offset:64 sc1", "v_readfirstlane_b32 s12, v4\ns_cmp_lg_u32 s12, 0", sleep=opt('ysleep', 12), issued=False)
stamp(11)
a(f"s_mul_i32 s10, s9, 10240\ns_add_u32 s11, s11, s10\ns_add_u32 s11, s11, {YA}\nv_lshlrev_b32 v1, 4, v0")
for q in range(10):
    a(f"buffer_load_dwordx4 {vr(16+4*q,4)}, v1, {WS}, s11 offen sc1\ns_add_u32 s11, s11, 1024")
a(f"v_add_u32 v1, {YAT}, v1")
for q in range(10):
    a(f"s_waitcnt vmcnt({9-q})\nds_write_b128 v1, {vr(16+4*q,4)} offset:{1024*q}")
a("s_waitcnt lgkmcnt(0)")
stamp(12)
a("s_barrier")
endp()

a("L_conv:")
a(f"s_sub_u32 s12, {WV}, 4\ns_mul_i32 s12, s12, {BREG}\ns_add_u32 s12, s12, {BREG0}")
a(f"s_mul_i32 s13, s{S_CH}, 410\ns_lshr_b32 s13, s13, 16\ns_lshl_b32 s13, 0x8000000, s13\ns_or_b32 s70, s71, s13")
c_issue = f"buffer_load_dword v145, v144, {WS}, s{S_MB} offen sc1"
c_test = "v_readfirstlane_b32 s15, v145\ns_and_b32 s15, s15, s70\ns_cmp_eq_u32 s15, s70"
a("v_mov_b32 v144, 0")
a(c_issue)
srd(S_B, P['dsk'], 1280)
a(f"s_lshl_b32 s15, s{S_CH}, 1\nbuffer_load_ushort v15, v144, {SB}, s15 offen")
a(f"v_lshlrev_b32 v1, 4, v0\nv_add_u32 v13, s12, v1")
a(f"v_lshrrev_b32 v146, 2, v0\nv_mul_u32_u24 v146, 40960, v146\nv_and_b32 v3, 3, v0\nv_lshl_add_u32 v146, v3, 4, v146")
def uloads():
    a(f"s_lshl_b32 s8, s{S_CH}, 6")
    for q in range(4): a(f"buffer_load_dwordx4 {vr(148+4*q,4)}, v146, {WS}, s8 offen sc1\ns_add_u32 s8, s8, 655360")
a("s_cmp_eq_u32 s71, 0\ns_cbranch_scc1 L_cv_local")
a(f"s_lshl_b32 s8, s{S_CH}, 12\ns_add_u32 s15, s8, {KD}\ns_add_u32 s{S_B}, s{P['ws']}, s15\ns_addc_u32 s{S_B+1}, s{P['ws']+1}, 0\ns_mov_b32 s{S_B+2}, 4096")
poll(c_issue, c_test, sleep=8)
stamp(6)
for r in range(4):
    a(f"buffer_load_dwordx4 {vr(16+8*r,4)}, v1, {SB}, 0 offen offset:{1024*r} sc1")
    a(f"buffer_load_dwordx2 {vr(20+8*r,2)}, v1, {SB}, 0 offen offset:{1024*r+16} sc1")
uloads()
a("s_branch L_cv_setup")
a("L_cv_local:")
for r in range(4):
    a(f"ds_read_b128 {vr(16+8*r,4)}, v13 offset:{UB+1024*r}\nds_read_b64 {vr(20+8*r,2)}, v13 offset:{UB+1024*r+16}")
a("L_cv_setup:")
zero(4, 4)
a("v_min_u32 v2, 47, v0\nv_lshl_add_u32 v2, v2, 4, s12\nds_write_b128 v2, v[4:7] offset:18432")
a("v_lshlrev_b32 v2, 6, v0\nv_lshrrev_b32 v3, 1, v0\nv_lshl_add_u32 v2, v3, 4, v2\nv_add_u32 v2, s12, v2")
a("v_and_b32 v3, 15, v0\nv_lshrrev_b32 v4, 4, v0\nv_lshlrev_b32 v5, 3, v4\nv_sub_u32 v5, v5, v3\nv_add_u32 v5, 15, v5")
a(f"s_add_u32 s14, s12, {288*7}")
a("v_lshrrev_b32 v6, 4, v5\nv_lshlrev_b32 v6, 4, v6\nv_lshl_add_u32 v6, v5, 3, v6\nv_add_u32 v8, s14, v6")
a("v_add_u32 v5, 4, v5\nv_lshrrev_b32 v6, 4, v5\nv_lshlrev_b32 v6, 4, v6\nv_lshl_add_u32 v6, v5, 3, v6\nv_add_u32 v9, s14, v6")
a(f"s_add_u32 s14, s12, {UB-32}\nv_lshlrev_b32 v10, 5, v3\nv_lshl_add_u32 v10, v4, 4, v10\nv_add_u32 v10, s14, v10")
a("v_and_b32 v5, 1, v4\nv_lshlrev_b32 v5, 2, v5\nv_lshrrev_b32 v6, 2, v3\nv_add_u32 v5, v5, v6\nv_mul_u32_u24 v11, 81920, v5")
a("v_lshrrev_b32 v5, 1, v4\nv_lshl_add_u32 v11, v5, 6, v11\nv_and_b32 v5, 3, v3\nv_lshl_add_u32 v11, v5, 4, v11")
a("v_lshlrev_b32 v5, 3, v4\nv_sub_u32 v12, v3, v5\nv_add_u32 v12, 16, v12")
a("s_cmp_lg_u32 s71, 0\ns_cbranch_scc1 L_cv_build")
a("s_waitcnt vmcnt(0)")
a(c_test)
a("s_cbranch_scc0 L_cv_build")
uloads()
a("s_mov_b32 s71, 1")
a("L_cv_build:")
a("s_waitcnt vmcnt(4) lgkmcnt(0)")
for r in range(4):
    D = 16 + 8*r; O = 64 + 16*(r & 1)
    for i in range(4):
        a(f"v_mov_b32 v{O+4*i}, v{D+i}\nv_mov_b32 v{O+4*i+1}, v{D+i+1}")
        a(f"v_alignbit_b32 v{O+4*i+2}, v{D+i+1}, v{D+i}, 16\nv_alignbit_b32 v{O+4*i+3}, v{D+i+2}, v{D+i+1}, 16")
        a(f"ds_write_b128 v2, {vr(O+4*i,4)} offset:{4608*r + 16*i}")
a("s_cmp_lg_u32 s71, 0\ns_cbranch_scc1 L_cv_haveu")
poll(c_issue, c_test, sleep=8, issued=False)
stamp(6)
uloads()
a("L_cv_haveu:")
AD = 4
a("v_lshlrev_b32 v14, 16, v15")
for k in range(4):
    a(f"v_cmp_eq_u32 vcc, {2*k}, v12\nv_cndmask_b32 v{AD+k}, 0, v15, vcc\nv_cmp_eq_u32 vcc, {2*k+1}, v12\nv_cndmask_b32 v{AD+k}, v{AD+k}, v14, vcc")
SET = [(16, 48), (80, 112)]; CA = 164
def rd(st):
    A_, B_ = SET[st]; R = []
    for x in range(8):
        R.append(f"ds_read_b64 {vr(A_+4*x,2)}, v8 offset:{2304*(7-x)}")
        R.append(f"ds_read_b64 {vr(A_+4*x+2,2)}, v9 offset:{2304*(7-x)}")
    for b in range(8): R.append(f"ds_read_b128 {vr(B_+4*b,4)}, v10 offset:{512*b}")
    return R
advk = "v_subrev_u32 v8, 288, v8\nv_subrev_u32 v9, 288, v9\nv_subrev_u32 v10, 64, v10"
R0 = rd(0)
for r_ in R0[:16]: a(r_)
a("s_waitcnt vmcnt(0)")
for q in range(4): a(f"ds_write_b128 v13, {vr(148+4*q,4)} offset:{UB+1024*q}")
stamp(7)
for r_ in R0[16:]: a(r_)
a(advk)
if opt('cprio', 0): a(f"s_setprio {opt('cprio', 0)}")
a("s_mov_b32 s3, 0\ns_waitcnt lgkmcnt(0)")
for b in range(8):
    a(f"v_mfma_f32_16x16x32_bf16 {vr(CA+4*b,4)}, {vr(AD,4)}, {vr(SET[0][1]+4*b,4)}, 0")
a("L_cv_loop:")
for st in range(2):
    A_, B_ = SET[st]; R = rd(1-st) + advk.split("\n"); n = 0
    for x in range(8):
        for b in range(8-x):
            a(f"v_mfma_f32_16x16x32_bf16 {vr(CA+4*(x+b),4)}, {vr(A_+4*x,4)}, {vr(B_+4*b,4)}, {vr(CA+4*(x+b),4)}")
            if n < len(R): a(R[n])
            if st == 1 and n == 33: a("s_add_u32 s3, s3, 1\ns_cmp_lt_u32 s3, 4")
            n += 1
    a("s_waitcnt lgkmcnt(0)")
a("s_cbranch_scc1 L_cv_loop")
stamp(8)
a("s_setprio 0")
a(f"s_lshl_b32 s14, s{S_CH}, 7\ns_add_u32 s14, s14, {YA}")
for n in range(0, 8, 2):
    o = 16 + 2*n
    a(f"v_cvt_pk_bf16_f32 v{o}, v{CA+4*n}, v{CA+4*n+1}\nv_cvt_pk_bf16_f32 v{o+1}, v{CA+4*n+2}, v{CA+4*n+3}")
    a(f"v_cvt_pk_bf16_f32 v{o+2}, v{CA+4*n+4}, v{CA+4*n+5}\nv_cvt_pk_bf16_f32 v{o+3}, v{CA+4*n+6}, v{CA+4*n+7}")
    a(f"v_permlane16_swap_b32 v{o}, v{o+2}\nv_permlane16_swap_b32 v{o+1}, v{o+3}")
    a(f"buffer_store_dwordx4 {vr(o,4)}, v11, {WS}, s14 offen sc1\ns_add_u32 s14, s14, {8*81920}")
a(f"s_mul_i32 s13, s{S_CH}, 820\ns_lshr_b32 s13, s13, 16\ns_lshl_b32 s14, s13, 7\ns_add_u32 s14, s14, {YAC}\ns_waitcnt vmcnt(0)")
arrive_issue(14, 4, 5)
arrive_check(14, 5, 80, f"s_and_b32 s14, s13, 3\ns_lshl_b32 s14, s14, 3\ns_lshr_b32 s13, s13, 2\ns_add_u32 s14, s14, s13\ns_lshl_b32 s14, s14, 7\ns_add_u32 s14, s14, {MBOX+64}\n"
   f"v_and_b32 v4, 7, v0\nv_lshlrev_b32 v4, 12, v4\nv_lshrrev_b32 v5, 3, v0\nv_lshl_add_u32 v4, v5, 8, v4\nv_mov_b32 v5, 1\ns_mov_b32 exec_hi, 0\nbuffer_store_dword v5, v4, {WS}, s14 offen sc1\ns_mov_b32 exec_hi, -1")
stamp(9)
a(f"s_cmp_eq_u32 {WV}, 7\ns_cbranch_scc1 L_fetch")
endp()

a("L_aux:")
a(f"s_sub_u32 s8, s{S_J}, s8\ns_lshl_b32 s9, s{S_XC}, 3\ns_add_u32 s8, s8, s9\ns_mul_i32 s9, s{S_XR}, 20\ns_add_u32 s9, s9, s8\ns_lshl_b32 s{S_CH}, s9, 3\ns_add_u32 s{S_CH}, s{S_CH}, {WV}")
a(f"s_lshl_b32 s10, s{S_CH}, 8\nv_lshl_add_u32 v1, v0, 2, s10")
for i, nm in enumerate(["are", "aim", "bre", "bim", "cre", "cim"]):
    a(f"global_load_dword v{240+i}, v1, s[{P[nm]}:{P[nm]+1}]{NT}")
a(f"s_lshl_b32 s10, s{S_CH}, 1\nv_mov_b32 v1, s10\nglobal_load_ushort v246, v1, s[{P['ldt']}:{P['ldt']+1}]")
a(f"s_mul_i32 s69, {WV}, {AREG}\ns_and_b32 s15, {WV}, 3\ns_mul_i32 s10, s15, {BREG}\ns_add_u32 s10, s10, {BREG0}\ns_cmp_lt_u32 {WV}, 4\ns_cselect_b32 s69, s69, s10")
a("v_and_b32 v238, 3, v0\nv_lshlrev_b32 v238, 6, v238")
a("s_cmp_ge_u32 s8, 16\ns_cbranch_scc1 L_nolnwg")
a(f"s_cmp_lt_u32 {WV}, 4\ns_cbranch_scc1 L_cs")
a(f"s_lshl_b32 s9, s{S_XR}, 4\ns_add_u32 s9, s9, s8")
a("s_lshl_b32 s10, s9, 5\ns_lshl_b32 s11, s15, 3\ns_add_u32 s14, s10, s11\ns_mul_i32 s11, s14, 1280")
a("v_lshrrev_b32 v2, 4, v0\nv_and_b32 v3, 15, v0\nv_mul_u32_u24 v1, 2560, v2\nv_lshl_add_u32 v1, v3, 4, v1")
RAW, DV = 16, 64
for sg in range(2):
    for i in range(5):
        a(f"buffer_load_dwordx4 {vr(RAW+20*sg+4*i,4)}, v1, {SA}, s11 offen offset:{sg*1280+i*256}{NT}")
a(f"s_setprio 2\nv_mov_b32 v4, {CNT}\nv_mov_b32 v5, 0\nds_write_b32 v4, v5\ns_waitcnt lgkmcnt(0)\ns_barrier")
a(f"s_lshl_b32 s11, s15, 4\ns_add_u32 s11, s11, {BREG0}\nv_lshlrev_b32 v8, 2, v2\nv_add_u32 v8, s11, v8")
for i in range(5):
    a(f"v_add_u32 v4, {16*i}, v3\nv_mul_u32_u24 v5, 3277, v4\nv_lshrrev_b32 v5, 16, v5\nv_mul_u32_u24 v5, {BREG-20*528}, v5\nv_mul_u32_u24 v4, 528, v4\nv_add3_u32 v{150+i}, v4, v5, v8")
a("s_mov_b32 s12, 0x3f803f80")
zero(4, 4)
for sg in range(2):
    for i in range(5):
        a(f"s_waitcnt vmcnt({9 - (5*sg+i)})")
        for k in range(4):
            a(f"v_dot2_f32_bf16 v{4+2*sg+(k&1)}, v{RAW+20*sg+4*i+k}, s12, v{4+2*sg+(k&1)}")
stamp(1)
a(clr_issue(239, 238))
a("v_add_f32 v4, v4, v5\nv_add_f32 v6, v6, v7")
def unp(sg, ks):
    for k in ks:
        d = DV + 40*sg + 2*k
        a(f"v_lshlrev_b32 v{d}, 16, v{RAW+20*sg+k}\nv_and_b32 v{d+1}, 0xffff0000, v{RAW+20*sg+k}")
for n, sh in enumerate((8, 4, 2, 1)):
    a(f"v_add_f32_dpp v4, v4, v4 row_ror:{sh} row_mask:0xf bank_mask:0xf\nv_add_f32_dpp v6, v6, v6 row_ror:{sh} row_mask:0xf bank_mask:0xf")
    unp(0, range(5*n, 5*n+5))
a(f"v_mul_f32 v4, {f32(1/640)}, v4\nv_mul_f32 v6, {f32(1/640)}, v6")
a("v_cvt_pk_bf16_f32 v5, v4, v6\nv_lshlrev_b32 v8, 16, v5\nv_and_b32 v9, 0xffff0000, v5")
a("v_sub_f32 v56, 0, v8\nv_sub_f32 v57, 0, v8\nv_sub_f32 v58, 0, v9\nv_sub_f32 v59, 0, v9")
zero(10, 4)
unp(1, range(20))
for sg in range(2):
    for k in range(20):
        d = DV + 40*sg + 2*k
        a(f"v_pk_add_f32 {vr(d,2)}, {vr(d,2)}, {vr(56+2*sg,2)}")
    for k in range(20):
        d = DV + 40*sg + 2*k
        a(f"v_pk_fma_f32 {vr(10+2*sg,2)}, {vr(d,2)}, {vr(d,2)}, {vr(10+2*sg,2)}")
a("v_add_f32 v10, v10, v11\nv_add_f32 v12, v12, v13")
def rnd(sg, ks):
    for k in ks:
        d = DV + 40*sg + 2*k
        a(f"v_cvt_pk_bf16_f32 v{RAW+20*sg+k}, v{d}, v{d+1}")
for n, sh in enumerate((8, 4, 2, 1)):
    a(f"v_add_f32_dpp v10, v10, v10 row_ror:{sh} row_mask:0xf bank_mask:0xf\nv_add_f32_dpp v12, v12, v12 row_ror:{sh} row_mask:0xf bank_mask:0xf")
    rnd(0, range(2*n, 2*n+2))
a("v_sub_f32 v4, v4, v8\nv_sub_f32 v6, v6, v9\nv_mul_f32 v4, v4, v4\nv_mul_f32 v6, v6, v6")
a(f"s_mov_b32 s12, {f32(1/640)}\nv_fma_f32 v4, v10, s12, -v4\nv_fma_f32 v6, v12, s12, -v6")
a("v_max_f32 v4, 0, v4\nv_max_f32 v6, 0, v6")
a("v_cvt_pk_bf16_f32 v7, v4, v6\nv_lshlrev_b32 v4, 16, v7\nv_and_b32 v6, 0xffff0000, v7")
a(f"v_add_f32 v4, {f32(1e-5)}, v4\nv_add_f32 v6, {f32(1e-5)}, v6")
a("v_cvt_pk_bf16_f32 v7, v4, v6\nv_lshlrev_b32 v4, 16, v7\nv_and_b32 v6, 0xffff0000, v7")
a("v_sqrt_f32 v4, v4\nv_sqrt_f32 v6, v6\nv_cvt_pk_bf16_f32 v7, v4, v6")
a("v_lshlrev_b32 v4, 16, v7\nv_and_b32 v6, 0xffff0000, v7\nv_rcp_f32 v60, v4\nv_rcp_f32 v61, v4\nv_rcp_f32 v62, v6\nv_rcp_f32 v63, v6")
a("v_and_b32 v12, 0xffff, v5\nv_or_b32 v12, v12, v4\nv_lshrrev_b32 v13, 16, v5\nv_or_b32 v13, v13, v6")
a(f"s_lshl_b32 s11, s14, 2\ns_add_u32 s11, s11, {STATS}\nv_lshlrev_b32 v1, 3, v2")
poll(clr_issue(239, 238), nz_test(239), sleep=8)
a(f"s_mov_b32 exec_lo, 0x10001\ns_mov_b32 exec_hi, 0x10001\nbuffer_store_dwordx2 v[12:13], v1, {WS}, s11 offen sc1\ns_mov_b64 exec, -1")
stamp(2)
rnd(0, range(8, 20)); rnd(1, range(20))
unp(0, range(20)); unp(1, range(20))
for sg in range(2):
    for k in range(20):
        d = DV + 40*sg + 2*k
        a(f"v_pk_mul_f32 {vr(d,2)}, {vr(d,2)}, {vr(60+2*sg,2)}")
for k in range(20):
    for h in range(2):
        d = DV + 2*k + h
        a(f"v_cvt_pk_bf16_f32 v{d}, v{d}, v{d+40}")
    d = DV + 2*k
    a(f"ds_write2st64_b32 v{150+k//4}, v{d}, v{d+1} offset0:0 offset1:0" if False else f"ds_write2_b32 v{150+k//4}, v{d}, v{d+1} offset0:{(k%4)*32} offset1:{(k%4)*32+16}")
a(f"v_mov_b32 v4, {CNT}\nv_mov_b32 v5, 1\nds_add_u32 v4, v5")
a("v_lshrrev_b32 v3, 5, v0\nv_lshlrev_b32 v2, 4, v0\nv_lshl_add_u32 v1, v3, 4, v2\nv_add_u32 v1, s69, v1")
a("s_mul_i32 s10, s9, 40960\ns_mul_i32 s11, s15, 10240\ns_add_u32 s10, s10, s11\ns_mov_b32 s12, 0")
a("L_sb:")
a("s_add_u32 s12, s12, 1\ns_cmp_gt_u32 s12, 2000000\ns_cbranch_scc1 L_exit")
a("ds_read_b32 v5, v4\ns_waitcnt lgkmcnt(0)\nv_readfirstlane_b32 s11, v5\ns_cmp_lt_u32 s11, 256\ns_cbranch_scc1 L_sb")
for i in range(10): a(f"ds_read_b128 {vr(16+4*i,4)}, v1 offset:{1056*i}")
for i in range(10):
    a(f"s_waitcnt lgkmcnt({9-i})\nbuffer_store_dwordx4 {vr(16+4*i,4)}, v2, {WS}, s10 offen sc1\ns_add_u32 s10, s10, 1024")
a(f"s_lshl_b32 s10, s15, 7\ns_add_u32 s10, s10, {LNC}\ns_lshl_b32 s11, 0x8000000, s15\ns_waitcnt vmcnt(0)")
arrive_issue(10, 4, 5)
arrive_check(10, 5, 64, push_all(11, 0, 4, 5, 10))
stamp(10)
a("s_setprio 0\ns_branch L_kgen")
a("L_cs:")
a(f"s_lshl_b32 s9, s{S_XR}, 3\ns_and_b32 s10, s8, 7\ns_add_u32 s9, s9, s10")
a(f"s_mul_i32 s10, s{S_XC}, 6\ns_sub_u32 s10, 30, s10\ns_cmp_ge_u32 s9, s10\ns_cbranch_scc1 L_cs_none")
a(f"s_mul_i32 s10, s{S_XC}, 30\ns_add_u32 s9, s9, s10")
a("s_mul_i32 s12, s15, 552960\ns_lshl_b32 s11, s9, 6\ns_add_u32 s12, s12, s11")
a("v_lshrrev_b32 v2, 2, v0\nv_and_b32 v3, 3, v0\nv_mul_u32_u24 v1, 3456, v2\nv_lshl_add_u32 v1, v3, 4, v1")
for i in range(10):
    a(f"buffer_load_dwordx4 {vr(16+4*i,4)}, v1, {SB}, s12 offen{NT}\ns_add_u32 s12, s12, 55296")
a(f"v_and_b32 v4, 31, v0\nv_lshlrev_b32 v4, 1, v4\nv_add_u32 v4, s11, v4\nglobal_load_ushort v14, v4, s[{P['b1']}:{P['b1']+1}]")
a("s_setprio 3\ns_barrier")
a("s_mov_b32 s12, 0x00003f80\ns_mov_b32 s13, 0x3f800000")
zero(4, 8)
for i in range(10):
    a(f"s_waitcnt vmcnt({10-i})")
    if i == 9: a(clr_issue(239, 238))
    for k in range(4):
        a(f"v_dot2_f32_bf16 v{4+2*k}, v{16+4*i+k}, s12, v{4+2*k}\nv_dot2_f32_bf16 v{5+2*k}, v{16+4*i+k}, s13, v{5+2*k}")
for sh in (8, 4):
    for r in range(8): a(f"v_add_f32_dpp v{4+r}, v{4+r}, v{4+r} row_ror:{sh} row_mask:0xf bank_mask:0xf")
a("v_lshrrev_b32 v12, 4, v0\nv_lshlrev_b32 v12, 7, v12\nv_lshl_add_u32 v12, v3, 5, v12\nv_add_u32 v12, s69, v12")
a("ds_write_b128 v12, v[4:7]\nds_write_b128 v12, v[8:11] offset:16")
a("v_and_b32 v12, 31, v0\nv_lshl_add_u32 v13, v12, 2, s69")
for p in range(4): a(f"ds_read_b32 v{16+p}, v13 offset:{128*p}")
a("s_waitcnt lgkmcnt(0)\nv_add_f32 v16, v16, v17\nv_add_f32 v18, v18, v19\nv_add_f32 v16, v16, v18")
a("v_cvt_pk_bf16_f32 v4, v16, v16\nv_lshlrev_b32 v5, 16, v4\nv_sub_f32 v5, v16, v5")
a("v_cvt_pk_bf16_f32 v6, v16, v5\nv_and_b32 v7, 0xffff0000, v6\nv_sub_f32 v7, v5, v7")
a("v_cvt_pk_bf16_f32 v7, v7, v7\nv_and_b32 v7, 0xffff, v7\nv_or_b32 v7, 1, v7")
a(f"s_lshl_b32 s12, s9, 8\ns_mul_i32 s13, s15, {CSP}\ns_add_u32 s12, s12, s13\ns_add_u32 s12, s12, {CSUM}\nv_lshlrev_b32 v12, 3, v12")
poll(clr_issue(239, 238), nz_test(239), sleep=8)
a("v_lshl_or_b32 v7, v14, 16, v7")
a(f"s_mov_b32 exec_hi, 0\nbuffer_store_dwordx2 v[6:7], v12, {WS}, s12 offen sc1\ns_mov_b32 exec_hi, -1")
stamp(2)
a("s_setprio 1\ns_branch L_kgen")
a("L_cs_none:")
a("s_barrier\ns_branch L_kwait")
a("L_nolnwg:")
a("s_cmp_lg_u32 s8, 16\ns_cbranch_scc1 L_kwait")
a(f"s_lshl_b32 s10, s{S_XR}, 15\ns_lshl_b32 s11, {WV}, 12\ns_add_u32 s10, s10, s11\ns_add_u32 s10, s10, {CLR}\nv_lshlrev_b32 v1, 4, v0")
zero(4, 4)
for i in range(4): a(f"buffer_store_dwordx4 v[4:7], v1, {WS}, s10 offen offset:{1024*i} sc1")
a(f"s_waitcnt vmcnt(0)\ns_barrier\ns_cmp_lg_u32 {WV}, 0\ns_cbranch_scc1 L_kwait")
a(f"s_lshl_b32 s10, s{S_XR}, 6\nv_mov_b32 v2, 1\ns_mov_b64 exec, 1\nbuffer_store_dword v2, v4, {DBG}, s10 offen sc1\ns_mov_b64 exec, -1")
stamp(1)
a("s_branch L_kgen")
a("L_kwait:")
a("s_waitcnt vmcnt(0)")
a("L_kgen:")
stamp(3)
a("v_lshl_add_u32 v1, v0, 2, s69")
a("v_and_b32 v2, 31, v0\nv_mul_u32_u24 v2, 272, v2\nv_lshrrev_b32 v3, 5, v0\nv_lshl_add_u32 v2, v3, 4, v2\nv_add_u32 v2, s69, v2")
KA = 128
zero(KA, 16)
a("s_mov_b32 s3, 0")
a(f"v_lshlrev_b32 v3, 16, v246\nv_mul_f32 v3, {f32(math.log2(math.e))}, v3\nv_exp_f32 v3, v3\nv_cvt_pk_bf16_f32 v3, v3, v3\nv_lshlrev_b32 v3, 16, v3")
a("L_kg_loop:")
for i in range(6): a(f"v_and_b32 v{4+i}, 0xffff0000, v{240+i}\nv_lshlrev_b32 v{240+i}, 16, v{240+i}")
for i in range(4): a(f"v_mul_f32 v{4+i}, v3, v{4+i}")
a(f"v_mul_f32 v4, {f32(math.log2(math.e))}, v4\nv_mul_f32 v5, {f32(1/(2*math.pi))}, v5")
Z1, Z8, Z256, W = 10, 12, 14, 16
for k, z in ((1, Z1), (8, Z8), (256, Z256)):
    a(f"v_mul_f32 v20, {f32(k)}, v4\nv_mul_f32 v21, {f32(k)}, v5\nv_fract_f32 v21, v21\nv_exp_f32 v20, v20\nv_cos_f32 v{z}, v21\nv_sin_f32 v{z+1}, v21")
    neg = " neg_hi:[0,1]" if k == 8 else ""
    a(f"v_pk_mul_f32 {vr(z,2)}, {vr(z,2)}, v[20:21] op_sel:[0,0] op_sel_hi:[1,0]{neg}")
cmul(W, 8, 6, 20)
rowof = {}
h0 = [[0,1,2,3],[4,5,6,7],[1024,1032,1280,1288],[1536,1544,1792,1800]]
h1 = [[256,258,260,262],[264],[512,516,520],[768,772,776]]
for q in range(4):
    for i, v in enumerate(h0[q]): rowof[v] = 8*q + i
    for i, v in enumerate(h1[q]): rowof[v] = 8*q + 4 + i
cv = [0]
def put(src, row):
    t = 24 + (cv[0] % 4); cv[0] += 1
    a(f"v_cvt_pk_bf16_f32 v{t}, v{src}, v{src+1}\nds_write_b32 v1, v{t} offset:{row*272}")
G = {0: W}
opsG = [lambda: put(W, rowof[0])]
for b in range(1, 9):
    G[b] = 32 + 2*b
    opsG.append(lambda b=b: (cmul(G[b], G[b-1], Z1, 20), put(G[b], rowof[b]) if b < 8 else None))
Pq = {1: Z256}
for q in range(1, 8):
    if q > 1:
        Pq[q] = 52 + 2*(q & 1)
        opsG.append(lambda q=q: cmul(Pq[q], Pq[q-1], Z256, 20))
    ds = {1: (0,2,4,6,8), 2: (0,4,8), 3: (0,4,8)}.get(q, (0, 8))
    for n, d in enumerate(ds):
        opsG.append(lambda q=q, d=d, n=n: (cmul(56+2*(n&1), G[d], Pq[q], 20), put(56+2*(n&1), rowof[256*q+d])))
opsE = [lambda: a(f"v_mov_b32 v28, 0x3f80\nds_write_b32 v1, v28 offset:{32*272}"), lambda: put(Z8, 33)]
for j in range(2, 32):
    src = Z8 if j == 2 else 60 + 2*((j-1) & 1)
    dst = 60 + 2*(j & 1)
    opsE.append(lambda src=src, dst=dst, j=j: (cmul(dst, src, Z8, 22), put(dst, 32+j)))
for i in range(max(len(opsG), len(opsE))):
    if i < len(opsE): opsE[i]()
    if i < len(opsG): opsG[i]()
a(clr_issue(239, 238))
for k in range(8):
    a(f"ds_read_b128 {vr(64+8*k,4)}, v2 offset:{32*k}\nds_read_b128 {vr(68+8*k,4)}, v2 offset:{32*272+32*k}")
for k in range(8):
    a(f"s_waitcnt lgkmcnt({14-2*k})")
    a(f"v_mfma_f32_32x32x16_bf16 {vr(KA,16)}, {vr(64+8*k,4)}, {vr(68+8*k,4)}, {vr(KA,16)}")
a("s_add_u32 s3, s3, 1\ns_cmp_lt_u32 s3, 2\ns_cbranch_scc1 L_kg_loop")
a(f"v_and_b32 v1, 31, v0\nv_lshlrev_b32 v1, 4, v1\nv_sub_u32 v1, 496, v1\ns_lshl_b32 s9, s{S_CH}, 12\ns_add_u32 s9, s9, {KD}")
a("v_and_b32 v2, 1, v0\nv_cmp_eq_u32 vcc, 1, v2\nv_add_u32 v2, s69, v1")
def blk(n, b256, pairs):
    o = 16 + 4*n
    for i, (lo, hi) in enumerate(pairs): a(f"v_cvt_pk_bf16_f32 v{o+i}, v{lo}, v{hi}")
    return (o, (7-b256)*512)
r = lambda i: KA + i
st0 = [blk(0, 0, [(r(7),r(6)),(r(5),r(4)),(r(3),r(2)),(r(1),r(0))])]
for q in range(4):
    v0_, v1_ = r(8+2*q), r(9+2*q)
    a(f"v_cndmask_b32 v{4+q}, v{v0_}, v{v1_}, vcc")
    st0.append(blk(1+q, 4+q, [(v1_,v1_),(v1_,4+q),(v0_,v0_),(v0_,v0_)]))
st1 = [blk(5, 1, [(r(4),r(3)),(r(2),r(2)),(r(2),r(1)),(r(0),r(0))])]
for q in range(2):
    b = 8 + 4*q
    st1.append(blk(6+q, 2+q, [(r(b+2),r(b+2)),(r(b+1),r(b+1)),(r(b+1),r(b)),(r(b),r(b))]))
stamp(4)
a(f"s_setprio 0\ns_cmp_lt_u32 {WV}, 4\ns_cbranch_scc1 L_kexp")
zero(4, 4)
a(f"v_mov_b32 v8, s69\nds_write_b128 v8, v[4:7] offset:{UB+4096}")
a("s_mov_b32 exec_hi, 0")
for o, off in st0: a(f"ds_write_b128 v2, {vr(o,4)} offset:{UB+off}")
a("s_mov_b32 exec_hi, -1\ns_mov_b32 exec_lo, 0")
for o, off in st1: a(f"ds_write_b128 v2, {vr(o,4)} offset:{UB+off}")
a("s_mov_b32 exec_lo, -1")
poll(clr_issue(239, 238), nz_test(239), sleep=8)
a("s_mov_b32 s71, 0\ns_branch L_conv")
a("L_kexp:")
a("s_mov_b32 exec_hi, 0")
for o, off in st0: a(f"buffer_store_dwordx4 {vr(o,4)}, v1, {WS}, s9 offen offset:{off} sc1")
a("s_mov_b32 exec_hi, -1\ns_mov_b32 exec_lo, 0")
for o, off in st1: a(f"buffer_store_dwordx4 {vr(o,4)}, v1, {WS}, s9 offen offset:{off} sc1")
a("s_mov_b32 exec_lo, -1")
a(f"s_lshr_b32 s8, s{S_CH}, 3\ns_lshl_b32 s8, s8, 1\ns_lshr_b32 s9, {WV}, 1\ns_add_u32 s8, s8, s9")
a("s_mul_i32 s9, s8, 1490\ns_lshr_b32 s9, s9, 16\ns_mul_i32 s10, s9, 44\ns_sub_u32 s8, s8, s10")
a("s_cmp_ge_u32 s8, 24\ns_cselect_b32 s10, 1, 0\ns_mul_i32 s11, s10, 24\ns_sub_u32 s8, s8, s11\ns_lshl_b32 s8, s8, 3\ns_lshl_b32 s9, s9, 1\ns_add_u32 s8, s8, s9\ns_add_u32 s8, s8, s10")
a(f"s_lshl_b32 s8, s8, 7\ns_add_u32 s8, s8, {MBOX}\ns_and_b32 s9, {WV}, 1\ns_lshl_b32 s9, 0x1000000, s9\nv_mov_b32 v174, 0\nv_mov_b32 v5, s9")
poll(clr_issue(239, 238), nz_test(239), sleep=8)
a(f"s_mov_b64 exec, 1\nbuffer_atomic_or v5, v174, {WS}, s8 offen sc1\ns_mov_b64 exec, -1")
stamp(5)
a(mb_issue)
a("s_branch L_g2")

a("L_end:")
if PROF:
    a(f"s_lshl_b32 s93, s2, 3\ns_add_u32 s93, s93, {WV}\ns_lshl_b32 s93, s93, 6\ns_add_u32 s93, s93, {PROFB}")
    a(f"s_memrealtime s[94:95]\ns_waitcnt lgkmcnt(0)\ns_mov_b32 s87, s94\ns_mov_b32 s72, s{S_SPIN}")
    for i in range(16): a(f"v_mov_b32 v{224+i}, s{72+i}")
    a("v_mov_b32 v255, 0\ns_mov_b64 exec, 1")
    for i in range(4): a(f"buffer_store_dwordx4 {vr(224+4*i,4)}, v255, {WS}, s93 offen offset:{16*i}")
    if opt("dbgmax", 0):
        a(f"v_not_b32 v238, v238\ns_and_b32 s93, {WV}, 3\ns_cmp_lg_u32 s93, 0\ns_cbranch_scc1 L_exit")
        sel0 = {1: 14, 2: 15, 3: 1, 4: 2, 5: 5, 6: 6, 7: 8, 8: 10}
        sel4 = {9: 10, 10: 4, 11: 7, 12: 8, 13: 9}
        a(f"s_cmp_lg_u32 {WV}, 0\ns_cbranch_scc1 L_dbg4")
        for d, i in sel0.items(): a(f"buffer_atomic_umax v{224+i}, v255, {DBG}, 0 offen offset:{4*d} sc1")
        a("s_branch L_exit")
        a("L_dbg4:")
        for d, i in sel4.items(): a(f"buffer_atomic_umax v{224+i}, v255, {DBG}, 0 offen offset:{4*d} sc1")
a("L_exit:")
a("s_endpgm")

hdr = open("cdna_kernels/%s.s.ref" % NAME).read().split("; Override launch")[0]
out = hdr + "; @launch grid=(256,1,1) block=(512,1,1) lds=163840\n"
out += '.amdgcn_target "amdgcn-amd-amdhsa--gfx950"\n.text\n' + a.text()
out += f""".section .rodata,"a"
.p2align 6
.amdhsa_kernel {KN}
  .amdhsa_next_free_vgpr 256
  .amdhsa_next_free_sgpr 102
  .amdhsa_accum_offset 256
  .amdhsa_group_segment_fixed_size 0
  .amdhsa_kernarg_size 136
  .amdhsa_user_sgpr_count 2
  .amdhsa_user_sgpr_kernarg_segment_ptr 1
  .amdhsa_system_sgpr_workgroup_id_x 1
.end_amdhsa_kernel
"""
path = [x for x in sys.argv[1:] if not x.startswith("--")]
open(path[0] if path else "f.s", "w").write(out)
```

```python
import sys, struct, math
sys.path.insert(0, "dev")
from asmlib import Asm, vr, sr

NAME = "parallel_sum__ssm_conv_s4__dense_activation_gelu__prompt"
KN = NAME + "_kernel"
PROF = "--prof" in sys.argv
def opt(name, default):
    for x in sys.argv:
        if x.startswith("--%s=" % name): return int(x.split("=")[1])
    return default
def f32(x): return "0x%08x" % struct.unpack("<I", struct.pack("<f", x))[0]

XNT, KD, YA, W2F = 0x000000, 0x280000, 0x500000, 0x780000
CLR = 0x9A0000
STATS, CSUM, MBOX, LNC, W2C, YAC = CLR, CLR+0x2000, CLR+0x10000, CLR+0x18000, CLR+0x1C000, CLR+0x1A000
CSP = 14080
PROFB, HF = 0x9C0000, 0xA00000
WS_SIZE = 0x1100000
OOB = "0x7f000000"
P = dict(u=16, are=18, aim=20, bre=22, bim=24, cre=26, cim=28, ldt=30, dsk=32, bx=34, w1=36, b1=38, w2=40, b2=42, out=44, dbg=46, ws=48)
S_WS, S_A, S_B, S_DBG = 52, 56, 60, 64
S_WAVE, S_XR, S_XC, S_J, S_SPIN, S_CH = 4, 5, 6, 7, 50, 51
S_MB = 34
WV = f"s{S_WAVE}"
WS = f"s[{S_WS}:{S_WS+3}]"; SA = f"s[{S_A}:{S_A+3}]"; SB = f"s[{S_B}:{S_B+3}]"; DBG = f"s[{S_DBG}:{S_DBG+3}]"
STG = 36864
AREG, BREG0, BREG = 17408, 69632, 23552
B7 = BREG0 + 3*BREG
CNT = B7 + 23424
XT, YAT = B7, B7 + 10240
UB = 19200
STATL = BREG0 + 2*BREG
NT = " nt" if opt("nt", 0) else ""
NT1 = " nt" if opt("nt1", 1) else ""

a = Asm()
G2F = " sc1" if opt("g2sc1", 1) else ""
def srd(d, ptr, size):
    a(f"s_mov_b32 s{d}, s{ptr}\ns_mov_b32 s{d+1}, s{ptr+1}\ns_mov_b32 s{d+2}, {hex(size)}\ns_mov_b32 s{d+3}, 0x20000")
def stamp(idx):
    if PROF: a(f"s_memtime s[92:93]\ns_waitcnt lgkmcnt(0)\ns_sub_u32 s{72+idx}, s92, s90")
def lstamp(o):
    if PROF: a(f"s_memtime s[92:93]\ns_waitcnt lgkmcnt(0)\ns_sub_u32 s92, s92, s90\ns_add_u32 m0, s3, {o}\nv_writelane_b32 v200, s92, m0")
def endp(): a("s_branch L_end")
def cmul(d, x, y, t):
    a(f"v_pk_mul_f32 {vr(t,2)}, {vr(x,2)}, {vr(y,2)} op_sel:[0,0] op_sel_hi:[0,1]")
    a(f"v_pk_fma_f32 {vr(d,2)}, {vr(x,2)}, {vr(y,2)}, {vr(t,2)} op_sel:[1,1,0] op_sel_hi:[1,0,1] neg_lo:[0,1,0]")
def poll(issue, test, sleep=4, issued=True):
    L = a.label("L_poll"); D = a.label("L_pdone")
    if not issued: a(issue)
    a(f"{L}:")
    a("s_waitcnt vmcnt(0)")
    a(test)
    a(f"s_cbranch_scc1 {D}")
    a(f"s_add_u32 s{S_SPIN}, s{S_SPIN}, 1\ns_cmp_gt_u32 s{S_SPIN}, 100000\ns_cbranch_scc1 L_exit")
    a(f"s_sleep {sleep}")
    a(issue)
    a(f"s_branch {L}")
    a(f"{D}:")
def sld(d, off): return f"s_load_dword s{d}, s[{P['ws']}:{P['ws']+1}], s{off} glc"
def spoll(issue, test, sleep=4, issued=False):
    L = a.label("L_spoll"); D = a.label("L_sdone")
    if not issued: a(issue)
    a(f"{L}:")
    a("s_waitcnt lgkmcnt(0)")
    a(test)
    a(f"s_cbranch_scc1 {D}")
    a(f"s_add_u32 s{S_SPIN}, s{S_SPIN}, 1\ns_cmp_gt_u32 s{S_SPIN}, 100000\ns_cbranch_scc1 L_exit")
    a(f"s_sleep {sleep}")
    a(issue)
    a(f"s_branch {L}")
    a(f"{D}:")
def arrive_issue(sreg, va, vb):
    a(f"v_mov_b32 v{va}, 0\nv_mov_b32 v{vb}, 1\ns_mov_b64 exec, 1\nbuffer_atomic_add v{vb}, v{va}, {WS}, s{sreg} offen sc0 sc1\ns_mov_b64 exec, -1")
def arrive_check(st, vb, n, then):
    L = a.label("L_arr")
    a(f"s_waitcnt vmcnt(0)\nv_readfirstlane_b32 s{st}, v{vb}\ns_cmp_lg_u32 s{st}, {n-1}\ns_cbranch_scc1 {L}")
    a(then)
    a(f"{L}:")
def push_all(bitreg, off, va, vb, st):
    t = f"v_lshlrev_b32 v{va}, 7, v0\nv_mov_b32 v{vb}, s{bitreg}\ns_mov_b32 s{st}, {MBOX+off}\n"
    for i in range(4): t += f"buffer_atomic_or v{vb}, v{va}, {WS}, s{st} offen sc1\ns_add_u32 s{st}, s{st}, 8192\n"
    return t
def few(mask, ins): return f"s_mov_b64 exec, {mask}\n{ins}\ns_mov_b64 exec, -1"
def clr_issue(v, vo): return few(15, f"buffer_load_dword v{v}, v{vo}, {DBG}, 0 offen sc1")
def clr_test(v): return f"v_cmp_ne_u32 vcc, 0, v{v}\ns_and_b32 vcc_lo, vcc_lo, 15\ns_cmp_eq_u32 vcc_lo, 15"
def nz_test(v): return f"v_cmp_ne_u32 vcc, 0, v{v}\ns_cmp_eq_u64 vcc, -1"
def zero(b, n):
    for i in range(0, n, 2): a(f"v_pk_mov_b32 {vr(b+i,2)}, 0, 0")

a.raw(f".globl {KN}\n.p2align 8\n.type {KN},@function")
a(f"{KN}:")
a("s_cmp_ge_u32 s2, 256\ns_cbranch_scc1 L_exit")
a("s_load_dwordx16 s[16:31], s[0:1], 0\ns_load_dwordx16 s[32:47], s[0:1], 64\ns_load_dwordx2 s[48:49], s[0:1], 128")
if PROF:
    a("s_memtime s[90:91]\ns_memrealtime s[94:95]")
    for i in range(16): a(f"s_mov_b32 s{72+i}, 0")
a("v_lshrrev_b32 v1, 6, v0\nv_and_b32 v0, 63, v0")
a(f"v_readfirstlane_b32 {WV}, v1")
a(f"s_bfe_u32 s{S_XR}, s2, 0x20001\ns_and_b32 s{S_XC}, s2, 1\ns_lshr_b32 s{S_J}, s2, 3\ns_mov_b32 s{S_SPIN}, 0")
a(f"s_lshl_b32 s8, s{S_XC}, 2\ns_sub_u32 s8, 24, s8")
a(f"s_cmp_eq_u32 s{S_XC}, 0\ns_cselect_b32 s9, 43, 52\ns_mul_i32 s9, s9, s{S_J}\ns_lshr_b32 s9, s9, 8")
a(f"s_sub_u32 s11, 6, s{S_XC}\ns_mul_i32 s11, s11, s9\ns_sub_u32 s10, s{S_J}, s11\ns_mul_i32 s11, s{S_XC}, 6\ns_add_u32 s10, s10, s11")
a(f"s_lshl_b32 s11, s{S_XR}, 2\ns_add_u32 s9, s9, s11")
a("v_lshrrev_b32 v4, 3, v0\nv_mul_u32_u24 v4, 1280, v4")
a("v_and_b32 v5, 7, v0\nv_lshl_add_u32 v13, v5, 4, v4\nv_lshrrev_b32 v6, 4, v0\nv_xor_b32 v5, v5, v6\nv_lshl_add_u32 v2, v5, 4, v4")
a("v_xor_b32 v5, 4, v5\nv_lshl_add_u32 v3, v5, 4, v4\nv_add_u32 v3, 10240, v3\nv_add_u32 v4, 20480, v2\nv_add_u32 v5, 20480, v3")
for i in range(5):
    a(f"v_add_u32 v6, {64*i}, v0\nv_mul_u32_u24 v7, 3277, v6\nv_lshrrev_b32 v7, 16, v7\nv_mul_u32_u24 v7, 3136, v7\nv_lshl_add_u32 v{8+i}, v6, 4, v7")
a("s_waitcnt lgkmcnt(0)")
srd(S_WS, P['ws'], WS_SIZE)
srd(S_A, P['u'], 2621440)
srd(S_B, P['w1'], 2211840)
srd(S_DBG, P['dbg'], 256)
a(f"s_lshl_b32 s{S_MB}, s2, 7\ns_add_u32 s{S_MB}, s{S_MB}, {MBOX}")
if PROF:
    a("s_mov_b32 s86, s94"); stamp(13)
if opt("g2only", 0):
    a(f"v_mov_b32 v174, 0\ns_mov_b32 s35, 1\ns_cmp_lt_u32 {WV}, 4\ns_cbranch_scc1 L_g2\ns_branch L_end")
a(f"s_cmp_ge_u32 s{S_J}, s8\ns_cbranch_scc1 L_aux")
a(f"s_mul_i32 s35, s{S_XR}, 44\ns_mul_i32 s12, s{S_XC}, 24\ns_add_u32 s35, s35, s12\ns_add_u32 s35, s35, s{S_J}")
a(f"s_cmp_lt_u32 {WV}, 4\ns_cbranch_scc1 L_comp")

a(f"s_sub_u32 s8, {WV}, 4")
a("s_lshl_b32 s11, s9, 7\ns_lshl_b32 s12, s8, 5\ns_add_u32 s11, s11, s12\ns_mul_i32 s11, s11, 1280")
a("s_mul_i32 s12, s8, 55296\ns_mul_i32 s13, s10, 320\ns_add_u32 s12, s12, s13")
a("s_lshl_b32 s13, s8, 12\ns_mul_i32 s14, s8, 5120\ns_add_u32 s14, s14, 16384\ns_mov_b32 s3, 0")
a(f"s_and_b32 s15, s9, 3\ns_mul_i32 s15, s15, 5\ns_add_u32 s15, s15, 1\ns_lshr_b32 s15, s15, 1\ns_lshl_b32 s68, s10, 1\ns_add_u32 s15, s15, s68\ns_add_u32 s15, s15, s{S_XR}")
a("s_mul_i32 s68, s15, 26\ns_lshr_b32 s68, s68, 8\ns_mul_i32 s68, s68, 10\ns_sub_u32 s15, s15, s68")
a("s_lshl_b32 s68, s15, 7\ns_add_u32 s11, s11, s68\ns_mul_i32 s68, s15, 221184\ns_add_u32 s12, s12, s68\ns_mov_b32 s69, 0")
stamp(1)
S_C = 96
DEEP = opt("deep", 0)
a("v_and_b32 v14, 3, v0\nv_lshlrev_b32 v14, 2, v14\nv_lshlrev_b32 v31, 7, v0\ns_mov_b32 s24, 0\nv_mov_b32 v174, 0")
a("L_ld_loop:")
a("s_cmp_lt_u32 s3, 2\ns_cbranch_scc1 L_ld_nowait\ns_cmp_eq_u32 s3, 2\ns_cbranch_scc1 L_ld_setup")
a("L_ld_wait:")
a("s_and_b32 s68, s3, 14\ns_cmp_eq_u32 s68, 4\ns_cbranch_scc1 L_ld_w10\ns_waitcnt vmcnt(9)")
a("L_ld_w10:")
a("s_waitcnt vmcnt(10)")
lstamp(0)
a("s_barrier")
lstamp(16)
a("L_ld_nowait:")
a("s_add_u32 s70, s69, s13\ns_add_u32 s71, s69, s14")
for q in range(4): a(f"s_add_u32 m0, s70, {1024*q}\nbuffer_load_dwordx4 v{2+q}, {SA}, s11 offen{NT} lds")
for i in range(5): a(f"s_add_u32 m0, s71, {1024*i}\nbuffer_load_dwordx4 v{8+i}, {SB}, s12 offen{NT} lds")
a("s_add_u32 s11, s11, 128\ns_add_u32 s12, s12, 221184\ns_add_u32 s15, s15, 1\ns_cmp_lt_u32 s15, 10\ns_cbranch_scc1 L_ld_nowrap")
a("s_sub_u32 s11, s11, 1280\ns_sub_u32 s12, s12, 2211840\ns_mov_b32 s15, 0")
a("L_ld_nowrap:")
a(f"s_add_u32 s69, s69, {STG}\ns_cmp_eq_u32 s69, {4*STG}\ns_cselect_b32 s69, 0, s69")
a(f"s_cmp_lg_u32 s3, 7\ns_cbranch_scc1 L_ld_n5\ns_load_dwordx4 s[28:31], s[{P['dbg']}:{P['dbg']+1}], 0")
a("L_ld_n5:")
a("s_cmp_lg_u32 s3, 3\ns_cbranch_scc1 L_ld_n7")
a(f"s_mov_b64 exec, 1\nbuffer_atomic_add v29, v31, {DBG}, s21 offen sc1\ns_mov_b64 exec, -1")
a("L_ld_n7:")
a("s_add_u32 s3, s3, 1\ns_cmp_lt_u32 s3, 10\ns_cbranch_scc1 L_ld_loop")
s_issue = f"buffer_load_dwordx4 v[16:19], v1, {WS}, s18 offen sc1\nbuffer_load_dwordx4 v[20:23], v6, {WS}, s19 offen sc1\nbuffer_load_dword v24, v7, {WS}, s20 offen sc1"
wc_issue = sld(26, 25)
wc_test = "s_cmp_lg_u32 s26, 0"
a("s_waitcnt lgkmcnt(0)\ns_and_b32 s28, s28, s29\ns_and_b32 s30, s30, s31\ns_and_b32 s24, s28, s30")
a(s_issue)
a("s_waitcnt vmcnt(12)")
lstamp(0)
a("s_barrier")
lstamp(16)
if PROF: a("s_add_u32 s3, s3, 1")
a("s_mov_b32 s26, 0\ns_cmp_lg_u32 s8, 2\ns_cbranch_scc1 L_ld_nwc")
a(wc_issue)
a("L_ld_nwc:")
a("s_waitcnt vmcnt(3)")
lstamp(0)
a("s_barrier")
lstamp(16)
if PROF: a("s_add_u32 s3, s3, 1")
a("s_cmp_lg_u32 s24, 0\ns_cbranch_scc1 L_ld_clr")
poll(clr_issue(15, 14), clr_test(15), sleep=8, issued=False)
a(s_issue)
a("s_waitcnt lgkmcnt(0)\ns_mov_b32 s26, 0")
a("L_ld_clr:")
s_test = "v_and_b32 v4, v17, v19\nv_and_b32 v5, v21, v23\nv_and_b32 v4, v4, v5\nv_and_b32 v4, 1, v4\nv_min_u32 v4, v4, v24\n" + nz_test(4)
poll(s_issue, s_test, sleep=8)
a("ds_write_b128 v25, v[16:19]\nds_write_b128 v26, v[20:23] offset:1024\nds_write_b32 v27, v24")
a("s_waitcnt lgkmcnt(0)\nv_mov_b32 v29, s26\nds_write_b64 v30, v[28:29]")
a("s_waitcnt lgkmcnt(0)\ns_barrier")
lstamp(16)
if PROF:
    a(f"s_lshl_b32 s93, s2, 9\ns_lshl_b32 s92, s8, 7\ns_add_u32 s93, s93, s92\ns_add_u32 s93, s93, {PROFB+0x20000}\nv_lshlrev_b32 v201, 2, v0\ns_mov_b32 exec_hi, 0\nbuffer_store_dword v200, v201, {WS}, s93 offen\ns_mov_b32 exec_hi, -1")
stamp(2)
a(f"s_cmp_eq_u32 {WV}, 7\ns_cbranch_scc1 L_fetch")
a(f"s_cmp_eq_u32 {WV}, 6\ns_cbranch_scc1 L_park")
a("s_cmp_ge_u32 s35, 160\ns_cbranch_scc1 L_end")
a(f"s_lshl_b32 s11, s35, 1\ns_add_u32 s11, s11, s8\ns_lshr_b32 s12, s11, 2\ns_lshl_b32 s12, s12, 3\ns_and_b32 s11, s11, 3\ns_add_u32 s{S_CH}, s11, s12")
a("s_lshl_b32 s71, 0x1000000, s8\ns_branch L_conv")
wc_prep = f"s_and_b32 s25, s2, 31\ns_lshl_b32 s25, s25, 7\ns_add_u32 s25, s25, {W2C+1024}\nv_mov_b32 v174, 0"
a("L_ld_setup:")
a(f"s_and_b32 s21, s35, 1\ns_lshl_b32 s21, s21, 6\ns_add_u32 s21, s21, 128\ns_cmp_eq_u32 s8, 0\ns_cselect_b32 s21, s21, {OOB}\ns_cmp_lt_u32 s35, 135\ns_cselect_b32 s21, s21, {OOB}")
a("v_lshlrev_b32 v1, 4, v0\nv_and_b32 v6, 15, v0\nv_lshlrev_b32 v6, 4, v6\nv_and_b32 v7, 31, v0\nv_lshlrev_b32 v7, 2, v7")
a(f"s_lshl_b32 s20, s9, 9\ns_lshl_b32 s23, s8, 7\ns_add_u32 s20, s20, s23\ns_add_u32 s20, s20, {STATS}\ns_add_u32 s23, s23, {STATL+5120}\nv_add_u32 v27, s23, v7")
a(f"s_mul_i32 s18, s10, 1280\ns_mul_i32 s19, s8, {CSP}\ns_add_u32 s18, s18, s19\ns_add_u32 s18, s18, {CSUM}\ns_cmp_eq_u32 s10, 10\ns_cselect_b32 s19, 0, 1024\ns_add_u32 s19, s19, s18")
a(f"s_mul_i32 s23, s8, 1280\ns_add_u32 s23, s23, {STATL}\nv_add_u32 v25, s23, v1\nv_add_u32 v26, s23, v6\nv_mov_b32 v28, 0\nv_mov_b32 v29, 1\ns_lshl_b32 s23, s8, 3\ns_add_u32 s23, s23, {CNT}\nv_mov_b32 v30, s23")
a(wc_prep)
a("s_branch L_ld_wait")

G2H = [16, 32, 48, 224]; G2W = [164, 184, 204, 144]; AC2 = 64
K0 = [0, 13, 26, 40, 54]
def g2_setup():
    a(f"s_lshl_b32 s30, s{S_XR}, 3\ns_lshr_b32 s31, s{S_J}, 2\ns_add_u32 s30, s30, s31")
    a(f"s_lshl_b32 s31, s{S_XC}, 2\ns_and_b32 s29, s{S_J}, 3\ns_add_u32 s31, s31, s29")
    a(f"s_mul_i32 s28, {WV}, 14\ns_sub_u32 s28, s28, 2\ns_cmp_eq_u32 {WV}, 0\ns_cselect_b32 s28, -1, s28\ns_lshl_b32 s28, s28, 10")
    a(f"s_mul_i32 s27, s30, {4*55296}\ns_add_u32 s27, s27, s28\ns_add_u32 s27, s27, {HF}")
    for i in range(4):
        a(f"s_add_u32 s29, {WV}, {i}\ns_and_b32 s29, s29, 3\ns_mul_i32 s29, s29, 55296\ns_add_u32 s{18+i}, s27, s29")
    a(f"s_mul_i32 s22, s31, {5*55296}\ns_add_u32 s22, s22, s28\ns_add_u32 s22, s22, {W2F}")
    for i in range(1, 5): a(f"s_add_u32 s{22+i}, s22, {55296*i}")
    a(f"s_lshl_b32 s27, s30, 6\ns_lshl_b32 s29, {WV}, 4\ns_add_u32 s27, s27, s29\ns_mul_i32 s27, s27, 1280\ns_mul_i32 s29, s31, 160\ns_add_u32 s27, s27, s29")
    masks = []
    for w in range(4):
        c0, c1 = K0[w]//5, (K0[w+1]-1)//5
        m = ((1 << (c1-c0+1)) - 1) << c0
        masks.append(m | (m << 11))
    a(f"s_mov_b32 s28, {hex(masks[0])}\ns_cmp_eq_u32 {WV}, 1\ns_cselect_b32 s28, {hex(masks[1])}, s28\ns_cmp_eq_u32 {WV}, 2\ns_cselect_b32 s28, {hex(masks[2])}, s28\ns_cmp_eq_u32 {WV}, 3\ns_cselect_b32 s28, {hex(masks[3])}, s28")
    a(f"v_lshlrev_b32 v252, 4, v0\ns_cmp_lt_u32 {WV}, 2\ns_cselect_b32 s30, {OOB}, 0\nv_add_u32 v253, s30, v252")
    a("v_lshrrev_b32 v255, 4, v0\nv_lshlrev_b32 v255, 3, v255\nv_and_b32 v254, 15, v0\nv_mul_u32_u24 v254, 1280, v254\nv_add_u32 v254, v254, v255")
    srd(S_B, P['b2'], 1280)
def ldh(k, o=0, v=252): return [f"buffer_load_dwordx4 {vr(G2H[k]+4*i,4)}, v{v}, {WS}, s{18+i} offen offset:{o}{G2F}" for i in range(4)]
def ldw(k, o=0, v=252): return [f"buffer_load_dwordx4 {vr(G2W[k]+4*i,4)}, v{v}, {WS}, s{22+i} offen offset:{o}{G2F}" for i in range(5)]
xb_loads = ([f"buffer_load_dwordx2 {vr(144+2*dt,2)}, v254, {SA}, s27 offen offset:{32*dt}" for dt in range(5)] +
            [f"buffer_load_dwordx2 {vr(154+2*dt,2)}, v255, {SB}, s29 offen offset:{32*dt}" for dt in range(5)])
w_pre = ldw(0, 0, 253) + ldw(1, 1024) + ldw(2, 2048)

a("L_comp:")
ACC = 64; BUF = [16, 40]; SF = 228
srd(S_C, P['w2'], 2211840)
a(f"s_lshl_b32 s8, s35, 2\ns_add_u32 s8, s8, {WV}\ns_mul_i32 s12, s8, 6554\ns_lshr_b32 s12, s12, 16\ns_mul_i32 s13, s12, 10\ns_sub_u32 s70, s8, s13")
a(f"s_mul_i32 s14, s12, 40960\ns_lshl_b32 s15, s70, 7\ns_add_u32 s14, s14, s15\ns_lshl_b32 s69, {WV}, 12\ns_add_u32 s69, s69, {4*STG}\ns_cmp_lt_u32 s8, 540\ns_cselect_b32 s14, s14, {OOB}")
if opt("w2late", 0): g2_setup()
for q in range(4):
    a(f"s_add_u32 m0, s69, {1024*q}\nbuffer_load_dwordx4 v13, s[{S_C}:{S_C+3}], s14 offen{NT1} lds\ns_add_u32 s14, s14, 10240")
if not opt("w2late", 0): g2_setup()
a(f"s_mul_i32 s15, s70, 216\ns_add_u32 s15, s15, s12\ns_lshl_b32 s15, s15, 10\ns_add_u32 s71, s15, {W2F}\ns_cmp_lt_u32 s8, 540\ns_cselect_b32 s71, s71, {OOB}")
a("v_lshrrev_b32 v180, 5, v0\nv_bfe_u32 v1, v0, 4, 1\nv_lshlrev_b32 v180, 4, v180\nv_lshl_add_u32 v180, v1, 2, v180\nv_bfe_u32 v1, v0, 2, 2\nv_add_u32 v180, v180, v1")
a("v_lshlrev_b32 v180, 7, v180\nv_and_b32 v1, 3, v0\nv_lshl_add_u32 v180, v1, 3, v180\nv_add_u32 v180, s69, v180")
a("v_and_b32 v13, 31, v0\nv_lshrrev_b32 v14, 5, v0")
a(f"s_lshl_b32 s8, {WV}, 12\nv_lshlrev_b32 v15, 7, v13\nv_add_u32 v15, s8, v15")
a("v_bfe_u32 v7, v0, 1, 3\nv_xor_b32 v7, v7, v14")
for ks in range(4): a(f"v_xor_b32 v1, {2*ks}, v7\nv_lshl_add_u32 v{2+ks}, v1, 4, v15")
a("v_bfe_u32 v1, v0, 2, 2\nv_lshl_add_u32 v1, v14, 3, v1\nv_mul_u32_u24 v1, 320, v1")
a("v_bfe_u32 v7, v0, 4, 1\nv_lshl_add_u32 v1, v7, 5, v1\nv_and_b32 v7, 3, v0\nv_lshl_add_u32 v1, v7, 3, v1\nv_add_u32 v6, 16384, v1")
for i in range(5): a(f"v_mov_b32 v{8+i}, v{2+i}")
zero(ACC, 80)
a(f"s_lshl_b32 s11, {WV}, 7\ns_add_u32 s11, s11, {STATL+5120}\nv_lshl_add_u32 v224, v13, 2, s11\nv_mul_u32_u24 v225, 2560, v14\nv_lshl_add_u32 v225, v13, 3, v225\nv_add_u32 v225, {STATL}, v225")
a(f"v_mov_b32 v226, {CNT+16}")
a("v_bfe_u32 v1, v0, 4, 1\nv_mul_u32_u24 v1, 55296, v1\nv_lshl_add_u32 v1, v14, 8, v1\nv_and_b32 v7, 15, v0\nv_lshl_add_u32 v1, v7, 4, v1")
a(f"s_lshl_b32 s8, s9, 3\ns_lshl_b32 s11, {WV}, 1\ns_add_u32 s8, s8, s11\ns_mul_i32 s8, s8, 54\ns_mul_i32 s11, s10, 5\ns_add_u32 s8, s8, s11\ns_lshl_b32 s8, s8, 10\ns_add_u32 s8, s8, {HF}")
a(f"s_lshl_b32 s12, s9, 1\ns_lshr_b32 s11, {WV}, 1\ns_add_u32 s12, s12, s11")
a(f"s_and_b32 s11, s12, 7\ns_lshl_b32 s11, s11, 5\ns_lshr_b32 s12, s12, 3\ns_lshl_b32 s12, s12, 1\ns_add_u32 s12, s12, s11\ns_lshl_b32 s12, s12, 7\ns_add_u32 s12, s12, {MBOX}")
a(f"s_and_b32 s11, {WV}, 1\ns_mul_i32 s11, s11, 11\ns_add_u32 s11, s11, s10\ns_lshl_b32 s11, 1, s11")
a("v_and_b32 v15, 3, v0\nv_lshlrev_b32 v15, 10, v15\nv_bfe_u32 v7, v0, 2, 1\nv_lshl_add_u32 v15, v7, 7, v15\nv_mov_b32 v14, s11")
a("s_mov_b32 s15, 0\ns_mov_b32 s3, 0\ns_waitcnt vmcnt(0)")
for dt in range(4):
    for h in range(2): a(f"ds_read_b64_tr_b16 {vr(184+4*dt+2*h,2)}, v180 offset:{1024*h + 32*dt}")
for dt in range(4):
    a(f"s_waitcnt lgkmcnt({6-2*dt})\nbuffer_store_dwordx4 {vr(184+4*dt,4)}, v252, {WS}, s71 offen sc1\ns_add_u32 s71, s71, 55296")
stamp(11)
def reads(ks, b):
    r = [f"ds_read_b128 {vr(b,4)}, v{8+ks}"]
    for ft in range(5):
        for s in range(2):
            r.append(f"ds_read_b64_tr_b16 {vr(b+4+4*ft+2*s,2)}, v12 offset:{ks*5120 + s*1280 + ft*64}")
    return r
def step(cur, nks, nb, last, first_wait=True):
    R = reads(nks, nb)
    waits = [8, 9, 10, 11, 11]; parts = [R[0:3], R[3:6], R[6:9], R[9:11], [last]]
    for ft in range(5):
        if first_wait: a(f"s_waitcnt lgkmcnt({waits[ft]})")
        a(f"v_mfma_f32_32x32x16_bf16 {vr(ACC+16*ft,16)}, {vr(cur+4+4*ft,4)}, {vr(cur,4)}, {vr(ACC+16*ft,16)}")
        for r in parts[ft]: a(r)
a("s_barrier")
stamp(1)
for r in reads(0, BUF[0]): a(r)
a("L_c_loop:")
step(BUF[0], 1, BUF[1], f"s_add_u32 s15, s15, {STG}\ns_cmp_eq_u32 s15, {4*STG}\ns_cselect_b32 s15, 0, s15\nv_add_u32 v8, s15, v2")
step(BUF[1], 2, BUF[0], "v_add_u32 v9, s15, v3\nv_add_u32 v10, s15, v4")
step(BUF[0], 3, BUF[1], "v_add_u32 v12, s15, v6\ns_waitcnt vmcnt(0) lgkmcnt(0)\ns_barrier")
step(BUF[1], 0, BUF[0], "v_add_u32 v11, s15, v5\ns_add_u32 s3, s3, 1\ns_cmp_lt_u32 s3, 10\ns_cbranch_scc1 L_c_loop", first_wait=False)
stamp(2)
a(f"s_setprio 3\nds_read_b32 v{SF}, v224\nds_read_b32 v227, v226 offset:4")
for ft in range(5):
    for p in range(2): a(f"ds_read_b64 {vr(SF+4+4*ft+2*p,2)}, v225 offset:{1280*p+256*ft}")
for l in xb_loads: a(l)
a("s_waitcnt lgkmcnt(10)")
a(f"v_xor_b32 v17, 0x8000, v{SF}\nv_and_b32 v19, 0xffff, v17\nv_lshl_or_b32 v16, v19, 16, v19\nv_mov_b32 v18, v16")
a("v_cmp_gt_u32 vcc, 32, v0\nv_readfirstlane_b32 s68, v227\nv_cndmask_b32 v17, v19, v17, vcc")
a(f"v_and_b32 v10, 0xffff0000, v{SF}\nv_rcp_f32 v7, v10\nv_mov_b32 v11, v10\ns_waitcnt lgkmcnt(0)")
for ft in range(5):
    a(f"v_mfma_f32_32x32x16_bf16 {vr(ACC+16*ft,16)}, {vr(SF+4+4*ft,4)}, v[16:19], {vr(ACC+16*ft,16)}")
    if ft == 0:
        k1c = -2.0 * math.log2(math.e) * math.sqrt(2.0/math.pi); k2c = k1c * 0.044715
        a(f"v_mul_f32 v8, {f32(k1c)}, v7\nv_mul_f32 v12, v7, v7\nv_mul_f32 v12, v12, v7\nv_mul_f32 v12, {f32(k2c)}, v12\nv_mov_b32 v9, v8\nv_mov_b32 v13, v12")
def stA(h):
    A0 = ACC + 8*h; T = 16 + 8*(h % 3)
    return ([f"v_pk_mul_f32 {vr(T+2*p,2)}, {vr(A0+2*p,2)}, {vr(A0+2*p,2)}" for p in range(4)] +
            [f"v_pk_fma_f32 {vr(T+2*p,2)}, {vr(T+2*p,2)}, v[12:13], v[8:9]" for p in range(4)] +
            [f"v_pk_mul_f32 {vr(T+2*p,2)}, {vr(T+2*p,2)}, {vr(A0+2*p,2)}" for p in range(4)])
def stE(h):
    T = 16 + 8*(h % 3); return [f"v_exp_f32 v{T+e}, v{T+e}" for e in range(8)]
def stB(h):
    T = 16 + 8*(h % 3); return [f"v_pk_fma_f32 {vr(T+2*p,2)}, {vr(T+2*p,2)}, v[10:11], v[10:11]" for p in range(4)]
def stR(h):
    T = 16 + 8*(h % 3); return [f"v_rcp_f32 v{T+e}, v{T+e}" for e in range(8)]
def stC(h):
    A0 = ACC + 8*h; T = 16 + 8*(h % 3); pk = 48 + 4*(h % 4)
    return ([f"v_pk_mul_f32 {vr(T+2*p,2)}, {vr(T+2*p,2)}, {vr(A0+2*p,2)}" for p in range(4)] +
            [f"v_cvt_pk_bf16_f32 v{pk+p}, v{T+2*p}, v{T+2*p+1}" for p in range(4)] +
            [f"buffer_store_dwordx4 {vr(pk,4)}, v1, {WS}, s8 offen offset:{(h//2 % 4)*1024 + (h%2)*512} sc1"])
def mix(tr, nt):
    i = 0
    for k, x in enumerate(tr):
        a(x)
        n = (len(nt) * (k+1)) // len(tr)
        while i < n: a(nt[i]); i += 1
a("s_nop 7\ns_nop 3")
for x in stA(0): a(x)
for h in range(10):
    mix(stE(h), (stC(h-1) if h else []))
    if h == 8: a("s_add_u32 s8, s8, 4096")
    for x in stB(h): a(x)
    if h < 5:
        a(f"s_cmp_eq_u32 s68, 0\ns_cbranch_scc1 L_c_np{h}")
        for l in w_pre[3*h:3*h+3]: a(l)
        a(f"L_c_np{h}:")
    mix(stR(h), (stA(h+1) if h < 9 else []))
    if h == 7: a("s_cmp_eq_u32 s10, 10\ns_cbranch_scc1 L_c_short")
for x in stC(9): a(x)
a("s_branch L_c_done")
a("L_c_short:")
for x in stC(7): a(x)
a("L_c_done:")
stamp(4)
def acc_init():
    for dt in range(5):
        for h in range(2):
            a(f"v_lshlrev_b32 v{AC2+4*dt+2*h}, 16, v{144+2*dt+h}\nv_and_b32 v{AC2+4*dt+2*h+1}, 0xffff0000, v{144+2*dt+h}")
            a(f"v_lshlrev_b32 v10, 16, v{154+2*dt+h}\nv_and_b32 v11, 0xffff0000, v{154+2*dt+h}\nv_pk_add_f32 {vr(AC2+4*dt+2*h,2)}, {vr(AC2+4*dt+2*h,2)}, v[10:11]")
    zero(AC2+20, 60)
a("s_waitcnt vmcnt(3)")
acc_init()
a(f"s_waitcnt vmcnt(0)\ns_mov_b64 exec, 0xff\nbuffer_atomic_or v14, v15, {WS}, s12 offen sc1\ns_mov_b64 exec, -1")
a("s_setprio 0\ns_mov_b32 s35, 0")
stamp(5)
a("s_cmp_lg_u32 s68, 0\ns_cbranch_scc1 L_g2go")
a("s_branch L_g2w")

a("L_g2:")
g2_setup()
for l in xb_loads: a(l)
a("s_waitcnt vmcnt(0)")
acc_init()
a("L_g2w:")
if opt("p1only", 0): endp()
a(wc_prep.replace("s25", "s8").replace("s26", "s9").replace("v174", "v2"))
if not opt("g2only", 0): spoll(sld(9, 8), "s_cmp_lg_u32 s9, 0", sleep=16)
PK = (4, 6, 8)
a(f"s_cmp_eq_u32 s35, 0\ns_cbranch_scc1 L_g_nopark\ns_mul_i32 s10, {WV}, {AREG}")
for p in range(3):
    for i in range(5): a(f"s_add_u32 m0, s10, {5120*p+1024*i}\ns_add_u32 s13, s{22+i}, {1024*PK[p]}\nbuffer_load_dwordx4 v252, {WS}, s13 offen{G2F} lds")
a("L_g_nopark:")
for l in w_pre: a(l)
a("L_g2go:")
if opt("p1only", 0): endp()
hm_issue = sld(14, S_MB)
a("v_mov_b32 v11, 0")
a(hm_issue)
a(f"s_mul_i32 s10, {WV}, {AREG}\nv_add_u32 v1, s10, v252")
for i in range(1, 4):
    a(f"s_sub_u32 s13, {WV}, {i}\ns_and_b32 s13, s13, 3\ns_mul_i32 s13, s13, {AREG}\ns_add_u32 s13, s13, {5120*(i-1)}\nv_add_u32 v{1+i}, s13, v252")
a("v_lshrrev_b32 v10, 2, v0\nv_lshlrev_b32 v10, 7, v10\nv_bfe_u32 v15, v0, 1, 1\nv_lshl_add_u32 v10, v15, 6, v10\nv_and_b32 v15, 1, v0\nv_lshl_add_u32 v10, v15, 3, v10")
a(f"s_lshl_b32 s13, {WV}, 4\ns_add_u32 s13, s13, {YAT}\nv_add_u32 v5, s13, v10")
a(f"v_and_b32 v10, 15, v0\nv_mul_u32_u24 v10, 160, v10\nv_add_u32 v10, v10, v255\ns_mul_i32 s13, {WV}, 2560\ns_add_u32 s13, s13, {BREG0}\nv_add_u32 v6, s13, v10\nv_add_u32 v7, s13, v252")
OUTV = (8, 9, 13)
for q in range(3):
    a(f"v_add_u32 v10, {64*q}, v0\nv_mul_u32_u24 v15, 6554, v10\nv_lshrrev_b32 v15, 16, v15\nv_mul_u32_u24 v15, 1120, v15\nv_lshl_add_u32 v{OUTV[q]}, v10, 4, v15")
a(f"v_cmp_gt_u32 vcc, 32, v0\nv_mov_b32 v10, {OOB}\nv_cndmask_b32 v13, v10, v13, vcc\nv_mov_b32 v14, {CNT}")
srd(S_A, P['out'], 2621440)
if not opt("g2only", 0): spoll(hm_issue, "s_and_b32 s13, s14, s28\ns_cmp_eq_u32 s13, s28", sleep=opt('msleep', 4), issued=True)
else: a("s_waitcnt vmcnt(0)")
stamp(6)
for l in ldh(0, 0, 253) + ldh(1, 1024) + ldh(2, 2048): a(l)
a("s_cmp_lg_u32 s35, 0\ns_cbranch_scc1 L_g_pok\ns_mov_b32 s3, 0")
a("L_g_pw:")
a("s_add_u32 s3, s3, 1\ns_cmp_gt_u32 s3, 2000000\ns_cbranch_scc1 L_exit")
a("ds_read_b32 v10, v14\ns_waitcnt lgkmcnt(0)\nv_readfirstlane_b32 s13, v10\ns_cmp_eq_u32 s13, 0\ns_cbranch_scc1 L_g_pw")
a("L_g_pok:")
nld = lambda t: 0 if t > 13 else (4 if (t < 3 or t in PK) else 9)
for t in range(14):
    k = t % 4; nt_ = t + 3; nk = nt_ % 4
    L = []
    if nt_ <= 13:
        o = 1024 * (nt_ % 4)
        if nt_ % 4 == 0: a("\n".join(f"s_add_u32 s{18+i}, s{18+i}, 4096" for i in range(9)))
        L = ldh(nk, o)
        if nt_ in PK: L += [f"ds_read_b128 {vr(G2W[nk]+4*i,4)}, v1 offset:{5120*PK.index(nt_)+1024*i}" for i in range(5)]
        else: L += ldw(nk, o)
    a(f"s_waitcnt vmcnt({nld(t+1)+nld(t+2)})" + (" lgkmcnt(0)" if t in PK else ""))
    if t == 0: stamp(7)
    n = 0
    for i in ((1, 2, 3, 0) if t == 13 else range(4)):
        for dt in range(5):
            acc = AC2 + 4*(5*i+dt)
            a(f"v_mfma_f32_16x16x32_bf16 {vr(acc,4)}, {vr(G2W[k]+4*dt,4)}, {vr(G2H[k]+4*i,4)}, {vr(acc,4)}")
            if n < len(L): a(L[n])
            if t == 13:
                pi = {2: 1, 3: 2, 0: 3}.get(i)
                if pi: a(f"ds_write_b128 v1, {vr(AC2+4*(5*pi+dt),4)} offset:{5120*(pi-1)+1024*dt}")
            n += 1
stamp(8)
a("s_waitcnt lgkmcnt(0)\ns_barrier")
stamp(9)
R_ = 144
for q in range(10): a(f"ds_read_b128 {vr(R_+4*q,4)}, v{2+q//5} offset:{1024*(q%5)}")
for dt in range(5): a(f"ds_read_b64_tr_b16 {vr(16+2*dt,2)}, v5 offset:{2048*dt}")
for q in range(10):
    a(f"s_waitcnt lgkmcnt({14 if q < 5 else 19-q})")
    dt = q % 5
    for h in range(2): a(f"v_pk_add_f32 {vr(AC2+4*dt+2*h,2)}, {vr(AC2+4*dt+2*h,2)}, {vr(R_+4*q+2*h,2)}")
    if q < 5: a(f"ds_read_b128 {vr(R_+40+4*q,4)}, v4 offset:{1024*q}")
for dt in range(5):
    a(f"s_waitcnt lgkmcnt({9-dt})")
    for h in range(2):
        a(f"v_lshlrev_b32 v10, 16, v{16+2*dt+h}\nv_and_b32 v11, 0xffff0000, v{16+2*dt+h}\nv_pk_add_f32 {vr(AC2+4*dt+2*h,2)}, {vr(AC2+4*dt+2*h,2)}, v[10:11]")
a("s_waitcnt lgkmcnt(0)")
for dt in range(5):
    for h in range(2): a(f"v_pk_add_f32 {vr(AC2+4*dt+2*h,2)}, {vr(AC2+4*dt+2*h,2)}, {vr(R_+40+4*dt+2*h,2)}")
    for h in range(2): a(f"v_cvt_pk_bf16_f32 v{32+2*dt+h}, v{AC2+4*dt+2*h}, v{AC2+4*dt+2*h+1}")
    a(f"ds_write_b64 v6, {vr(32+2*dt,2)} offset:{32*dt}")
for q in range(3): a(f"ds_read_b128 {vr(48+4*q,4)}, v7 offset:{1024*q}")
for q in range(3):
    a(f"s_waitcnt lgkmcnt({2-q})\nbuffer_store_dwordx4 {vr(48+4*q,4)}, v{OUTV[q]}, {SA}, s27 offen")
stamp(10)
endp()

a("L_park:")
if opt("p1only", 0): endp()
a(f"s_lshl_b32 s9, s{S_XC}, 2\ns_and_b32 s10, s{S_J}, 3\ns_add_u32 s9, s9, s10")
for i in range(1, 5): a(f"v_add_u32 v{1+i}, {55296*i}, v1")
a(f"s_mul_i32 s12, s9, {5*55296}\ns_add_u32 s12, s12, {W2F - 1024}\ns_mov_b32 s10, 0\ns_mov_b32 s3, 0")
spoll(wc_issue, wc_test, sleep=10, issued=True)
stamp(11)
a("L_pk_loop:")
for p in range(3):
    a(f"s_add_u32 s13, s12, {1024*PK[p]}")
    for i in range(5): a(f"s_add_u32 m0, s10, {5120*p+1024*i}\nbuffer_load_dwordx4 v{1+i}, {WS}, s13 offen{G2F} lds")
a(f"s_cmp_eq_u32 s3, 0\ns_cselect_b32 s13, 13, 14\ns_lshl_b32 s13, s13, 10\ns_add_u32 s12, s12, s13\ns_add_u32 s10, s10, {AREG}\ns_add_u32 s3, s3, 1\ns_cmp_lt_u32 s3, 4\ns_cbranch_scc1 L_pk_loop")
a(f"v_mov_b32 v2, {CNT}\nv_mov_b32 v3, 1\ns_waitcnt vmcnt(0)\nds_write_b32 v2, v3\ns_waitcnt lgkmcnt(0)")
stamp(12)
endp()

a("L_fetch:")
if opt("p1only", 0): endp()
a(f"s_lshl_b32 s8, s{S_XR}, 3\ns_lshr_b32 s9, s{S_J}, 2\ns_add_u32 s8, s8, s9")
a(f"s_lshl_b32 s9, s{S_XC}, 2\ns_and_b32 s10, s{S_J}, 3\ns_add_u32 s9, s9, s10")
a("s_mul_i32 s11, s8, 81920")
a(f"v_mov_b32 v1, 0\ns_lshl_b32 s13, s9, 2\ns_add_u32 s13, s13, s{S_XR}\ns_lshl_b32 s13, s13, 7\ns_add_u32 s13, s13, {YAC}")
spoll(sld(12, 13), "s_cmp_ge_u32 s12, 80", sleep=opt('ysleep', 12))
stamp(11)
a(f"s_mul_i32 s10, s9, 10240\ns_add_u32 s11, s11, s10\ns_add_u32 s11, s11, {YA}\nv_lshlrev_b32 v1, 4, v0")
for q in range(10):
    a(f"buffer_load_dwordx4 {vr(16+4*q,4)}, v1, {WS}, s11 offen sc1\ns_add_u32 s11, s11, 1024")
a(f"v_add_u32 v1, {YAT}, v1")
for q in range(10):
    a(f"s_waitcnt vmcnt({9-q})\nds_write_b128 v1, {vr(16+4*q,4)} offset:{1024*q}")
a("s_waitcnt lgkmcnt(0)")
stamp(12)
a("s_barrier")
endp()

a("L_conv:")
if opt("p1only", 0) == 1: endp()
c_issue = sld(33, 70)
c_test = "s_cmp_ge_u32 s33, 64"
lnc_addr = f"s_mul_i32 s13, s{S_CH}, 410\ns_lshr_b32 s13, s13, 16\ns_lshl_b32 s13, s13, 4\ns_and_b32 s70, s2, 15\ns_add_u32 s70, s70, s13\ns_lshl_b32 s70, s70, 7\ns_add_u32 s70, s70, {LNC}"
def uloads():
    a(f"s_lshl_b32 s8, s{S_CH}, 6")
    for q in range(4): a(f"buffer_load_dwordx4 {vr(148+4*q,4)}, v146, {WS}, s8 offen sc1\ns_add_u32 s8, s8, 655360")
a("v_mov_b32 v144, 0")
a(lnc_addr)
ck_issue = sld(30, 70) + "\n" + sld(31, S_MB)
a(ck_issue)
srd(S_B, P['dsk'], 1280)
a(f"s_lshl_b32 s15, s{S_CH}, 1\nbuffer_load_ushort v147, v144, {SB}, s15 offen")
a(f"v_lshrrev_b32 v146, 2, v0\nv_mul_u32_u24 v146, 40960, v146\nv_and_b32 v3, 3, v0\nv_lshl_add_u32 v146, v3, 4, v146\nv_lshlrev_b32 v1, 4, v0")
a(f"s_sub_u32 s69, {WV}, 4\ns_mul_i32 s69, s69, {BREG}\ns_add_u32 s69, s69, {BREG0}\nv_add_u32 v13, s69, v1")
a(f"s_lshl_b32 s8, s{S_CH}, 12\ns_add_u32 s15, s8, {KD}\ns_add_u32 s{S_B}, s{P['ws']}, s15\ns_addc_u32 s{S_B+1}, s{P['ws']+1}, 0\ns_mov_b32 s{S_B+2}, 4096")
spoll(ck_issue, "s_and_b32 s13, s31, s71\ns_cselect_b32 s15, s30, 0\ns_cmp_ge_u32 s15, 64", sleep=10, issued=True)
stamp(6)
for r in range(4):
    a(f"buffer_load_dwordx4 {vr(16+8*r,4)}, v1, {SB}, 0 offen offset:{1024*r} sc1")
    a(f"buffer_load_dwordx2 {vr(20+8*r,2)}, v1, {SB}, 0 offen offset:{1024*r+16} sc1")
uloads()
a("s_mov_b32 s68, 2\ns_branch L_cv_setup")
a("L_cv_local:")
if opt("p1only", 0) == 1: endp()
a("v_lshlrev_b32 v1, 4, v0\nv_add_u32 v13, s69, v1")
for r in range(4):
    a(f"ds_read_b128 {vr(16+8*r,4)}, v13 offset:{UB+1024*r}\nds_read_b64 {vr(20+8*r,2)}, v13 offset:{UB+1024*r+16}")
a("L_cv_setup:")
zero(4, 4)
a("v_min_u32 v2, 47, v0\nv_lshl_add_u32 v2, v2, 4, s69\nds_write_b128 v2, v[4:7] offset:18432")
a("v_lshlrev_b32 v2, 6, v0\nv_lshrrev_b32 v3, 1, v0\nv_lshl_add_u32 v2, v3, 4, v2\nv_add_u32 v2, s69, v2")
a("v_and_b32 v3, 15, v0\nv_lshrrev_b32 v4, 4, v0\nv_lshlrev_b32 v5, 3, v4\nv_sub_u32 v5, v5, v3\nv_add_u32 v5, 15, v5")
a(f"s_add_u32 s14, s69, {288*7}")
a("v_lshrrev_b32 v6, 4, v5\nv_lshlrev_b32 v6, 4, v6\nv_lshl_add_u32 v6, v5, 3, v6\nv_add_u32 v8, s14, v6")
a("v_add_u32 v5, 4, v5\nv_lshrrev_b32 v6, 4, v5\nv_lshlrev_b32 v6, 4, v6\nv_lshl_add_u32 v6, v5, 3, v6\nv_add_u32 v9, s14, v6")
a(f"s_add_u32 s14, s69, {UB-32}\nv_lshlrev_b32 v10, 5, v3\nv_lshl_add_u32 v10, v4, 4, v10\nv_add_u32 v10, s14, v10")
a("v_and_b32 v5, 1, v4\nv_lshlrev_b32 v5, 2, v5\nv_lshrrev_b32 v6, 2, v3\nv_add_u32 v5, v5, v6\nv_mul_u32_u24 v11, 81920, v5")
a("v_lshrrev_b32 v5, 1, v4\nv_lshl_add_u32 v11, v5, 6, v11\nv_and_b32 v5, 3, v3\nv_lshl_add_u32 v11, v5, 4, v11")
a("v_lshlrev_b32 v5, 3, v4\nv_sub_u32 v12, v3, v5\nv_add_u32 v12, 16, v12")
a("s_waitcnt vmcnt(4) lgkmcnt(0)")
for r in range(4):
    D = 16 + 8*r; O = 64 + 16*(r & 1)
    for i in range(4):
        a(f"v_mov_b32 v{O+4*i}, v{D+i}\nv_mov_b32 v{O+4*i+1}, v{D+i+1}")
        a(f"v_alignbit_b32 v{O+4*i+2}, v{D+i+1}, v{D+i}, 16\nv_alignbit_b32 v{O+4*i+3}, v{D+i+2}, v{D+i+1}, 16")
        a(f"ds_write_b128 v2, {vr(O+4*i,4)} offset:{4608*r + 16*i}")
a("s_cmp_eq_u32 s68, 2\ns_cbranch_scc1 L_cv_haveu")
spoll(c_issue, c_test, sleep=10)
stamp(6)
uloads()
a("L_cv_haveu:")
AD = 4
a("v_lshlrev_b32 v14, 16, v147")
for k in range(4):
    a(f"v_cmp_eq_u32 vcc, {2*k}, v12\nv_cndmask_b32 v{AD+k}, 0, v147, vcc\nv_cmp_eq_u32 vcc, {2*k+1}, v12\nv_cndmask_b32 v{AD+k}, v{AD+k}, v14, vcc")
SET = [(16, 48), (80, 112)]; CA = 164
def rd(st):
    A_, B_ = SET[st]; R = []
    for x in range(8):
        R.append(f"ds_read_b64 {vr(A_+4*x,2)}, v8 offset:{2304*(7-x)}")
        R.append(f"ds_read_b64 {vr(A_+4*x+2,2)}, v9 offset:{2304*(7-x)}")
    for b in range(8): R.append(f"ds_read_b128 {vr(B_+4*b,4)}, v10 offset:{512*b}")
    return R
advk = "v_subrev_u32 v8, 288, v8\nv_subrev_u32 v9, 288, v9\nv_subrev_u32 v10, 64, v10"
R0 = rd(0)
for r_ in R0[:16]: a(r_)
a("s_waitcnt vmcnt(0)")
for q in range(4): a(f"ds_write_b128 v13, {vr(148+4*q,4)} offset:{UB+1024*q}")
stamp(7)
for r_ in R0[16:]: a(r_)
a(advk)
if opt('cprio', 2): a(f"s_setprio {opt('cprio', 2)}")
a("s_mov_b32 s3, 0\ns_waitcnt lgkmcnt(0)")
for b in range(8):
    a(f"v_mfma_f32_16x16x32_bf16 {vr(CA+4*b,4)}, {vr(AD,4)}, {vr(SET[0][1]+4*b,4)}, 0")
a("L_cv_loop:")
for st in range(2):
    A_, B_ = SET[st]; R = rd(1-st) + advk.split("\n"); n = 0
    for x in range(8):
        for b in range(8-x):
            a(f"v_mfma_f32_16x16x32_bf16 {vr(CA+4*(x+b),4)}, {vr(A_+4*x,4)}, {vr(B_+4*b,4)}, {vr(CA+4*(x+b),4)}")
            if n < len(R): a(R[n])
            if st == 1 and n == 33: a("s_add_u32 s3, s3, 1\ns_cmp_lt_u32 s3, 4")
            n += 1
    a("s_waitcnt lgkmcnt(0)")
a("s_cbranch_scc1 L_cv_loop")
stamp(8)
a("s_setprio 0")
a(f"s_lshl_b32 s14, s{S_CH}, 7\ns_add_u32 s14, s14, {YA}")
for n in range(0, 8, 2):
    o = 16 + 2*n
    a(f"v_cvt_pk_bf16_f32 v{o}, v{CA+4*n}, v{CA+4*n+1}\nv_cvt_pk_bf16_f32 v{o+1}, v{CA+4*n+2}, v{CA+4*n+3}")
    a(f"v_cvt_pk_bf16_f32 v{o+2}, v{CA+4*n+4}, v{CA+4*n+5}\nv_cvt_pk_bf16_f32 v{o+3}, v{CA+4*n+6}, v{CA+4*n+7}")
    a(f"v_permlane16_swap_b32 v{o}, v{o+2}\nv_permlane16_swap_b32 v{o+1}, v{o+3}")
    a(f"buffer_store_dwordx4 {vr(o,4)}, v11, {WS}, s14 offen sc1\ns_add_u32 s14, s14, {8*81920}")
a(f"s_mul_i32 s13, s{S_CH}, 820\ns_lshr_b32 s13, s13, 16\ns_lshl_b32 s14, s13, 9\ns_add_u32 s14, s14, {YAC}\nv_lshlrev_b32 v4, 7, v0\nv_mov_b32 v5, 1")
a(f"s_waitcnt vmcnt(0)\ns_mov_b64 exec, 15\nbuffer_atomic_add v5, v4, {WS}, s14 offen sc1\ns_mov_b64 exec, -1")
stamp(9)
a(f"s_cmp_eq_u32 {WV}, 7\ns_cbranch_scc1 L_fetch")
endp()

a("L_aux:")
a(f"s_sub_u32 s8, s{S_J}, s8\ns_lshl_b32 s9, s{S_XC}, 3\ns_add_u32 s8, s8, s9\ns_mul_i32 s9, s{S_XR}, 20\ns_add_u32 s9, s9, s8\ns_lshl_b32 s{S_CH}, s9, 3\ns_add_u32 s{S_CH}, s{S_CH}, {WV}")
a("s_cmp_lg_u32 s8, 16\ns_cbranch_scc1 L_noclr")
a(f"s_lshl_b32 s10, s{S_XR}, 15\ns_lshl_b32 s11, {WV}, 12\ns_add_u32 s10, s10, s11\ns_add_u32 s10, s10, {CLR}\nv_lshlrev_b32 v1, 4, v0")
zero(4, 4)
for i in range(4): a(f"buffer_store_dwordx4 v[4:7], v1, {WS}, s10 offen offset:{1024*i} sc1")
a("L_noclr:")
a(f"s_lshl_b32 s10, s{S_CH}, 8\nv_lshl_add_u32 v1, v0, 2, s10")
for i, nm in enumerate(["are", "aim", "bre", "bim", "cre", "cim"]):
    a(f"global_load_dword v{240+i}, v1, s[{P[nm]}:{P[nm]+1}]{NT1}")
a(f"s_lshl_b32 s10, s{S_CH}, 1\nv_mov_b32 v1, s10\nglobal_load_ushort v246, v1, s[{P['ldt']}:{P['ldt']+1}]")
a(f"s_mul_i32 s69, {WV}, {AREG}\ns_and_b32 s15, {WV}, 3\ns_mul_i32 s10, s15, {BREG}\ns_add_u32 s10, s10, {BREG0}\ns_cmp_lt_u32 {WV}, 4\ns_cselect_b32 s69, s69, s10")
a("v_and_b32 v238, 3, v0\nv_lshlrev_b32 v238, 2, v238\ns_mov_b32 s35, 99\ns_mov_b32 s68, 0\ns_mov_b32 m0, s69")
a(f"global_load_ushort v147, v1, s[{P['dsk']}:{P['dsk']+1}]")
a(lnc_addr)
a("v_mov_b32 v144, 0")
a(f"v_lshrrev_b32 v146, 2, v0\nv_mul_u32_u24 v146, 40960, v146\nv_and_b32 v3, 3, v0\nv_lshl_add_u32 v146, v3, 4, v146")
a(f"s_and_b32 s10, s8, 7\ns_lshl_b32 s10, s10, 3\ns_add_u32 s10, s10, {WV}\ns_lshl_b32 s11, s{S_XR}, 4\ns_add_u32 s10, s10, s11\ns_and_b32 s10, s10, 63\ns_mul_i32 s10, s10, 17280")
a(f"s_mul_i32 s11, s{S_XC}, 1105920\ns_add_u32 s10, s10, s11\ns_add_u32 s71, s10, {W2F}\nv_lshlrev_b32 v236, 7, v0\ns_cmp_lt_u32 s8, 16\ns_cselect_b32 s71, s71, 0")
def touch():
    a(f"buffer_load_dword v237, v236, {WS}, s71 offen sc1\ns_add_u32 s71, s71, 8192\nbuffer_load_dword v237, v236, {WS}, s71 offen sc1\ns_add_u32 s71, s71, 8192")
    a(few(127, f"buffer_load_dword v237, v236, {WS}, s71 offen sc1") + "\ns_mov_b32 s71, 0")
a("s_cmp_ge_u32 s8, 16\ns_cbranch_scc1 L_nolnwg")
a(f"s_cmp_lt_u32 {WV}, 4\ns_cbranch_scc1 L_cs")
a(f"s_lshl_b32 s9, s{S_XR}, 4\ns_add_u32 s9, s9, s8")
a("s_lshl_b32 s10, s9, 5\ns_lshl_b32 s11, s15, 3\ns_add_u32 s14, s10, s11\ns_mul_i32 s11, s14, 1280")
a("v_lshrrev_b32 v2, 4, v0\nv_and_b32 v3, 15, v0\nv_mul_u32_u24 v1, 2560, v2\nv_lshl_add_u32 v1, v3, 4, v1")
RAW, DV = 16, 64
for sg in range(2):
    for i in range(5):
        a(f"buffer_load_dwordx4 {vr(RAW+20*sg+4*i,4)}, v1, {SA}, s11 offen offset:{sg*1280+i*256}{NT}")
a(f"s_setprio 2\nv_mov_b32 v4, {CNT}\nv_mov_b32 v5, 0\nds_write_b32 v4, v5\ns_waitcnt lgkmcnt(0)\ns_barrier")
a(f"s_lshl_b32 s11, s15, 4\ns_add_u32 s11, s11, {BREG0}\nv_lshlrev_b32 v8, 2, v2\nv_add_u32 v8, s11, v8")
for i in range(5):
    a(f"v_add_u32 v4, {16*i}, v3\nv_mul_u32_u24 v5, 3277, v4\nv_lshrrev_b32 v5, 16, v5\nv_mul_u32_u24 v5, {BREG-20*528}, v5\nv_mul_u32_u24 v4, 528, v4\nv_add3_u32 v{150+i}, v4, v5, v8")
a("s_mov_b32 s12, 0x3f803f80")
zero(4, 4)
for sg in range(2):
    for i in range(5):
        a(f"s_waitcnt vmcnt({9 - (5*sg+i)})")
        for k in range(4):
            a(f"v_dot2_f32_bf16 v{4+2*sg+(k&1)}, v{RAW+20*sg+4*i+k}, s12, v{4+2*sg+(k&1)}")
stamp(1)
a(clr_issue(239, 238))
a("v_add_f32 v4, v4, v5\nv_add_f32 v6, v6, v7")
def unp(sg, ks):
    for k in ks:
        d = DV + 40*sg + 2*k
        a(f"v_lshlrev_b32 v{d}, 16, v{RAW+20*sg+k}\nv_and_b32 v{d+1}, 0xffff0000, v{RAW+20*sg+k}")
for n, sh in enumerate((8, 4, 2, 1)):
    a(f"v_add_f32_dpp v4, v4, v4 row_ror:{sh} row_mask:0xf bank_mask:0xf\nv_add_f32_dpp v6, v6, v6 row_ror:{sh} row_mask:0xf bank_mask:0xf")
    unp(0, range(5*n, 5*n+5))
a(f"v_mul_f32 v4, {f32(1/640)}, v4\nv_mul_f32 v6, {f32(1/640)}, v6")
a("v_cvt_pk_bf16_f32 v5, v4, v6\nv_lshlrev_b32 v8, 16, v5\nv_and_b32 v9, 0xffff0000, v5")
a("v_sub_f32 v56, 0, v8\nv_sub_f32 v57, 0, v8\nv_sub_f32 v58, 0, v9\nv_sub_f32 v59, 0, v9")
zero(10, 4)
unp(1, range(20))
for sg in range(2):
    for k in range(20):
        d = DV + 40*sg + 2*k
        a(f"v_pk_add_f32 {vr(d,2)}, {vr(d,2)}, {vr(56+2*sg,2)}")
    for k in range(20):
        d = DV + 40*sg + 2*k
        a(f"v_pk_fma_f32 {vr(10+2*sg,2)}, {vr(d,2)}, {vr(d,2)}, {vr(10+2*sg,2)}")
a("v_add_f32 v10, v10, v11\nv_add_f32 v12, v12, v13")
def rnd(sg, ks):
    for k in ks:
        d = DV + 40*sg + 2*k
        a(f"v_cvt_pk_bf16_f32 v{RAW+20*sg+k}, v{d}, v{d+1}")
for n, sh in enumerate((8, 4, 2, 1)):
    a(f"v_add_f32_dpp v10, v10, v10 row_ror:{sh} row_mask:0xf bank_mask:0xf\nv_add_f32_dpp v12, v12, v12 row_ror:{sh} row_mask:0xf bank_mask:0xf")
    rnd(0, range(2*n, 2*n+2))
a("v_sub_f32 v4, v4, v8\nv_sub_f32 v6, v6, v9\nv_mul_f32 v4, v4, v4\nv_mul_f32 v6, v6, v6")
a(f"s_mov_b32 s12, {f32(1/640)}\nv_fma_f32 v4, v10, s12, -v4\nv_fma_f32 v6, v12, s12, -v6")
a("v_max_f32 v4, 0, v4\nv_max_f32 v6, 0, v6")
a("v_cvt_pk_bf16_f32 v7, v4, v6\nv_lshlrev_b32 v4, 16, v7\nv_and_b32 v6, 0xffff0000, v7")
a(f"v_add_f32 v4, {f32(1e-5)}, v4\nv_add_f32 v6, {f32(1e-5)}, v6")
a("v_cvt_pk_bf16_f32 v7, v4, v6\nv_lshlrev_b32 v4, 16, v7\nv_and_b32 v6, 0xffff0000, v7")
a("v_sqrt_f32 v4, v4\nv_sqrt_f32 v6, v6\nv_cvt_pk_bf16_f32 v7, v4, v6")
a("v_lshlrev_b32 v4, 16, v7\nv_and_b32 v6, 0xffff0000, v7\nv_rcp_f32 v60, v4\nv_rcp_f32 v61, v4\nv_rcp_f32 v62, v6\nv_rcp_f32 v63, v6")
a("v_and_b32 v12, 0xffff, v5\nv_or_b32 v12, v12, v4\nv_lshrrev_b32 v13, 16, v5\nv_or_b32 v13, v13, v6")
a(f"s_lshl_b32 s11, s14, 2\ns_add_u32 s11, s11, {STATS}\nv_lshlrev_b32 v1, 3, v2")
poll(clr_issue(239, 238), clr_test(239), sleep=8)
a(f"s_mov_b32 exec_lo, 0x10001\ns_mov_b32 exec_hi, 0x10001\nbuffer_store_dwordx2 v[12:13], v1, {WS}, s11 offen sc1\ns_mov_b64 exec, -1")
stamp(2)
rnd(0, range(8, 20)); rnd(1, range(20))
unp(0, range(20)); unp(1, range(20))
for sg in range(2):
    for k in range(20):
        d = DV + 40*sg + 2*k
        a(f"v_pk_mul_f32 {vr(d,2)}, {vr(d,2)}, {vr(60+2*sg,2)}")
for k in range(20):
    for h in range(2):
        d = DV + 2*k + h
        a(f"v_cvt_pk_bf16_f32 v{d}, v{d}, v{d+40}")
    d = DV + 2*k
    a(f"ds_write2st64_b32 v{150+k//4}, v{d}, v{d+1} offset0:0 offset1:0" if False else f"ds_write2_b32 v{150+k//4}, v{d}, v{d+1} offset0:{(k%4)*32} offset1:{(k%4)*32+16}")
a(f"v_mov_b32 v4, {CNT}\nv_mov_b32 v5, 1\nds_add_u32 v4, v5")
a("v_lshrrev_b32 v3, 5, v0\nv_lshlrev_b32 v2, 4, v0\nv_lshl_add_u32 v1, v3, 4, v2\nv_add_u32 v1, s69, v1")
a("s_mul_i32 s10, s9, 40960\ns_mul_i32 s11, s15, 10240\ns_add_u32 s10, s10, s11\ns_mov_b32 s12, 0")
a("L_sb:")
a("s_add_u32 s12, s12, 1\ns_cmp_gt_u32 s12, 2000000\ns_cbranch_scc1 L_exit")
a("ds_read_b32 v5, v4\ns_waitcnt lgkmcnt(0)\nv_readfirstlane_b32 s11, v5\ns_cmp_lt_u32 s11, 256\ns_cbranch_scc1 L_sb")
for i in range(10): a(f"ds_read_b128 {vr(16+4*i,4)}, v1 offset:{1056*i}")
for i in range(10):
    a(f"s_waitcnt lgkmcnt({9-i})\nbuffer_store_dwordx4 {vr(16+4*i,4)}, v2, {WS}, s10 offen sc1\ns_add_u32 s10, s10, 1024")
a(f"s_lshl_b32 s10, s15, 11\ns_add_u32 s10, s10, {LNC}\nv_lshlrev_b32 v4, 7, v0\nv_mov_b32 v5, 1")
a(f"s_waitcnt vmcnt(0)\ns_mov_b64 exec, 0xffff\nbuffer_atomic_add v5, v4, {WS}, s10 offen sc1\ns_mov_b64 exec, -1")
stamp(10)
if opt("touch", 1): touch()
a("s_setprio 0\ns_mov_b32 s68, 1\ns_branch L_kgen")
a("L_cs:")
a(f"s_lshl_b32 s9, s{S_XR}, 3\ns_and_b32 s10, s8, 7\ns_add_u32 s9, s9, s10")
a(f"s_mul_i32 s10, s{S_XC}, 6\ns_sub_u32 s10, 30, s10\ns_cmp_ge_u32 s9, s10\ns_cbranch_scc1 L_cs_none")
a(f"s_mul_i32 s10, s{S_XC}, 30\ns_add_u32 s9, s9, s10")
a("s_mul_i32 s12, s15, 552960\ns_lshl_b32 s11, s9, 6\ns_add_u32 s12, s12, s11")
a("v_lshrrev_b32 v2, 2, v0\nv_and_b32 v3, 3, v0\nv_mul_u32_u24 v1, 3456, v2\nv_lshl_add_u32 v1, v3, 4, v1\ns_barrier")
for i in range(10):
    a(f"buffer_load_dwordx4 {vr(16+4*i,4)}, v1, {SB}, s12 offen{NT}\ns_add_u32 s12, s12, 55296")
a(f"v_and_b32 v4, 31, v0\nv_lshlrev_b32 v4, 1, v4\nv_add_u32 v4, s11, v4\nglobal_load_ushort v14, v4, s[{P['b1']}:{P['b1']+1}]")
a("s_setprio 3")
a("s_mov_b32 s12, 0x00003f80\ns_mov_b32 s13, 0x3f800000")
zero(4, 8)
for i in range(10):
    a(f"s_waitcnt vmcnt({10-i})")
    if i == 9: a(clr_issue(239, 238))
    for k in range(4):
        a(f"v_dot2_f32_bf16 v{4+2*k}, v{16+4*i+k}, s12, v{4+2*k}\nv_dot2_f32_bf16 v{5+2*k}, v{16+4*i+k}, s13, v{5+2*k}")
for sh in (8, 4):
    for r in range(8): a(f"v_add_f32_dpp v{4+r}, v{4+r}, v{4+r} row_ror:{sh} row_mask:0xf bank_mask:0xf")
a("v_lshrrev_b32 v12, 4, v0\nv_lshlrev_b32 v12, 7, v12\nv_lshl_add_u32 v12, v3, 5, v12\nv_add_u32 v12, s69, v12")
a("ds_write_b128 v12, v[4:7]\nds_write_b128 v12, v[8:11] offset:16")
a("v_and_b32 v12, 31, v0\nv_lshl_add_u32 v13, v12, 2, s69")
for p in range(4): a(f"ds_read_b32 v{16+p}, v13 offset:{128*p}")
a("s_waitcnt lgkmcnt(0)\nv_add_f32 v16, v16, v17\nv_add_f32 v18, v18, v19\nv_add_f32 v16, v16, v18")
a("v_cvt_pk_bf16_f32 v4, v16, v16\nv_lshlrev_b32 v5, 16, v4\nv_sub_f32 v5, v16, v5")
a("v_cvt_pk_bf16_f32 v6, v16, v5\nv_and_b32 v7, 0xffff0000, v6\nv_sub_f32 v7, v5, v7")
a("v_cvt_pk_bf16_f32 v7, v7, v7\nv_and_b32 v7, 0xffff, v7\nv_or_b32 v7, 1, v7")
a(f"s_lshl_b32 s12, s9, 8\ns_mul_i32 s13, s15, {CSP}\ns_add_u32 s12, s12, s13\ns_add_u32 s12, s12, {CSUM}\nv_lshlrev_b32 v12, 3, v12")
poll(clr_issue(239, 238), clr_test(239), sleep=8)
a("v_lshl_or_b32 v7, v14, 16, v7")
a(f"s_mov_b32 exec_hi, 0\nbuffer_store_dwordx2 v[6:7], v12, {WS}, s12 offen sc1\ns_mov_b32 exec_hi, -1")
stamp(2)
a("s_setprio 1\ns_branch L_kgen")
a("L_cs_none:")
a("s_barrier\ns_branch L_kwait")
a("L_nolnwg:")
a("s_cmp_lg_u32 s8, 16\ns_cbranch_scc1 L_kwait")
a(f"s_waitcnt vmcnt(8)\ns_barrier\ns_cmp_lg_u32 {WV}, 0\ns_cbranch_scc1 L_kwait")
a(f"s_lshl_b32 s10, s{S_XR}, 2\nv_mov_b32 v2, 1\ns_mov_b64 exec, 1\nbuffer_store_dword v2, v4, {DBG}, s10 offen sc1\ns_mov_b64 exec, -1")
stamp(1)
a("s_waitcnt vmcnt(1)\ns_branch L_kgen")
a("L_kwait:")
a("s_waitcnt vmcnt(0)")
a("L_kgen:")
stamp(3)
a("v_and_b32 v2, 31, v0\nv_mul_u32_u24 v2, 272, v2\nv_lshrrev_b32 v3, 5, v0\nv_lshl_add_u32 v2, v3, 4, v2\nv_add_u32 v2, s69, v2")
KA = 128
zero(KA, 16)
a("s_mov_b32 s3, 0")
a(f"v_lshlrev_b32 v3, 16, v246\nv_mul_f32 v3, {f32(math.log2(math.e))}, v3\nv_exp_f32 v3, v3\nv_cvt_pk_bf16_f32 v3, v3, v3\nv_lshlrev_b32 v3, 16, v3")
a("L_kg_loop:")
a("s_cmp_lg_u32 s68, 1\ns_cbranch_scc1 L_kg_nos")
a(c_issue)
a("L_kg_nos:")
for i in range(6): a(f"v_and_b32 v{4+i}, 0xffff0000, v{240+i}\nv_lshlrev_b32 v{240+i}, 16, v{240+i}")
for i in range(4): a(f"v_mul_f32 v{4+i}, v3, v{4+i}")
a(f"v_mul_f32 v4, {f32(math.log2(math.e))}, v4\nv_mul_f32 v5, {f32(1/(2*math.pi))}, v5")
Z1, Z8, Z256, W = 10, 12, 14, 16
for k, z in ((1, Z1), (8, Z8), (256, Z256)):
    a(f"v_mul_f32 v20, {f32(k)}, v4\nv_mul_f32 v21, {f32(k)}, v5\nv_fract_f32 v21, v21\nv_exp_f32 v20, v20\nv_cos_f32 v{z}, v21\nv_sin_f32 v{z+1}, v21")
    neg = " neg_hi:[0,1]" if k == 8 else ""
    a(f"v_pk_mul_f32 {vr(z,2)}, {vr(z,2)}, v[20:21] op_sel:[0,0] op_sel_hi:[1,0]{neg}")
cmul(W, 8, 6, 20)
rowof = {}
h0 = [[0,1,2,3],[4,5,6,7],[1024,1032,1280,1288],[1536,1544,1792,1800]]
h1 = [[256,258,260,262],[264],[512,516,520],[768,772,776]]
for q in range(4):
    for i, v in enumerate(h0[q]): rowof[v] = 8*q + i
    for i, v in enumerate(h1[q]): rowof[v] = 8*q + 4 + i
cv = [0]
def put(src, row):
    t = 24 + (cv[0] % 4); cv[0] += 1
    a(f"v_cvt_pk_bf16_f32 v{t}, v{src}, v{src+1}\nds_write_addtid_b32 v{t} offset:{row*272}")
G = {0: W}
opsG = [lambda: put(W, rowof[0])]
for b in range(1, 9):
    G[b] = 32 + 2*b
    opsG.append(lambda b=b: (cmul(G[b], G[b-1], Z1, 20), put(G[b], rowof[b]) if b < 8 else None))
Pq = {1: Z256}
for q in range(1, 8):
    if q > 1:
        Pq[q] = 52 + 2*(q & 1)
        opsG.append(lambda q=q: cmul(Pq[q], Pq[q-1], Z256, 20))
    ds = {1: (0,2,4,6,8), 2: (0,4,8), 3: (0,4,8)}.get(q, (0, 8))
    for n, d in enumerate(ds):
        opsG.append(lambda q=q, d=d, n=n: (cmul(56+2*(n&1), G[d], Pq[q], 20), put(56+2*(n&1), rowof[256*q+d])))
opsE = [lambda: a(f"v_mov_b32 v28, 0x3f80\nds_write_addtid_b32 v28 offset:{32*272}"), lambda: put(Z8, 33)]
for j in range(2, 32):
    src = Z8 if j == 2 else 60 + 2*((j-1) & 1)
    dst = 60 + 2*(j & 1)
    opsE.append(lambda src=src, dst=dst, j=j: (cmul(dst, src, Z8, 22), put(dst, 32+j)))
for i in range(max(len(opsG), len(opsE))):
    if i < len(opsE): opsE[i]()
    if i < len(opsG): opsG[i]()
a("s_cmp_lg_u32 s68, 1\ns_cbranch_scc1 L_kg_nou\ns_waitcnt lgkmcnt(0)")
a(c_test)
a("s_cbranch_scc0 L_kg_nou")
uloads()
a("s_mov_b32 s68, 2")
a("L_kg_nou:")
if opt("touch", 1):
    a("s_cmp_eq_u32 s71, 0\ns_cbranch_scc1 L_kg_nt")
    touch()
    a("L_kg_nt:")
a(clr_issue(239, 238))
for k in range(8):
    a(f"ds_read_b128 {vr(64+8*k,4)}, v2 offset:{32*k}\nds_read_b128 {vr(68+8*k,4)}, v2 offset:{32*272+32*k}")
for k in range(8):
    a(f"s_waitcnt lgkmcnt({14-2*k})")
    a(f"v_mfma_f32_32x32x16_bf16 {vr(KA,16)}, {vr(64+8*k,4)}, {vr(68+8*k,4)}, {vr(KA,16)}")
a("s_add_u32 s3, s3, 1\ns_cmp_lt_u32 s3, 2\ns_cbranch_scc1 L_kg_loop")
a(f"v_and_b32 v1, 31, v0\nv_lshlrev_b32 v1, 4, v1\nv_sub_u32 v1, 496, v1\ns_lshl_b32 s9, s{S_CH}, 12\ns_add_u32 s9, s9, {KD}")
a("v_and_b32 v2, 1, v0\nv_cmp_eq_u32 vcc, 1, v2\nv_add_u32 v2, s69, v1")
def blk(n, b256, pairs):
    o = 16 + 4*n
    for i, (lo, hi) in enumerate(pairs): a(f"v_cvt_pk_bf16_f32 v{o+i}, v{lo}, v{hi}")
    return (o, (7-b256)*512)
r = lambda i: KA + i
st0 = [blk(0, 0, [(r(7),r(6)),(r(5),r(4)),(r(3),r(2)),(r(1),r(0))])]
for q in range(4):
    v0_, v1_ = r(8+2*q), r(9+2*q)
    a(f"v_cndmask_b32 v{4+q}, v{v0_}, v{v1_}, vcc")
    st0.append(blk(1+q, 4+q, [(v1_,v1_),(v1_,4+q),(v0_,v0_),(v0_,v0_)]))
st1 = [blk(5, 1, [(r(4),r(3)),(r(2),r(2)),(r(2),r(1)),(r(0),r(0))])]
for q in range(2):
    b = 8 + 4*q
    st1.append(blk(6+q, 2+q, [(r(b+2),r(b+2)),(r(b+1),r(b+1)),(r(b+1),r(b)),(r(b),r(b))]))
stamp(4)
a(f"s_setprio 0\ns_cmp_lt_u32 {WV}, 4\ns_cbranch_scc1 L_kexp")
zero(4, 4)
a(f"v_mov_b32 v8, s69\nds_write_b128 v8, v[4:7] offset:{UB+4096}")
a("s_mov_b32 exec_hi, 0")
for o, off in st0: a(f"ds_write_b128 v2, {vr(o,4)} offset:{UB+off}")
a("s_mov_b32 exec_hi, -1\ns_mov_b32 exec_lo, 0")
for o, off in st1: a(f"ds_write_b128 v2, {vr(o,4)} offset:{UB+off}")
a("s_mov_b32 exec_lo, -1")
a("s_cmp_lg_u32 s68, 0\ns_cbranch_scc1 L_cv_local")
poll(clr_issue(239, 238), clr_test(239), sleep=8)
a("s_branch L_cv_local")
a("L_kexp:")
a("s_mov_b32 exec_hi, 0")
for o, off in st0: a(f"buffer_store_dwordx4 {vr(o,4)}, v1, {WS}, s9 offen offset:{off} sc1")
a("s_mov_b32 exec_hi, -1\ns_mov_b32 exec_lo, 0")
for o, off in st1: a(f"buffer_store_dwordx4 {vr(o,4)}, v1, {WS}, s9 offen offset:{off} sc1")
a("s_mov_b32 exec_lo, -1")
a(f"s_lshr_b32 s8, s{S_CH}, 3\ns_lshl_b32 s8, s8, 1\ns_lshr_b32 s9, {WV}, 1\ns_add_u32 s8, s8, s9")
a("s_mul_i32 s9, s8, 1490\ns_lshr_b32 s9, s9, 16\ns_mul_i32 s10, s9, 44\ns_sub_u32 s8, s8, s10")
a("s_cmp_ge_u32 s8, 24\ns_cselect_b32 s10, 1, 0\ns_mul_i32 s11, s10, 24\ns_sub_u32 s8, s8, s11\ns_lshl_b32 s8, s8, 3\ns_lshl_b32 s9, s9, 1\ns_add_u32 s8, s8, s9\ns_add_u32 s8, s8, s10")
a(f"s_lshl_b32 s8, s8, 7\ns_add_u32 s8, s8, {MBOX}\ns_and_b32 s9, {WV}, 1\ns_lshl_b32 s9, 0x1000000, s9\nv_mov_b32 v174, 0\nv_mov_b32 v5, s9")
poll(clr_issue(239, 238), clr_test(239), sleep=8)
a(f"s_mov_b64 exec, 1\nbuffer_atomic_or v5, v174, {WS}, s8 offen sc1\ns_mov_b64 exec, -1")
stamp(5)
a(f"s_lshl_b32 s8, {WV}, 8\ns_add_u32 s8, s8, s2\ns_cmp_lg_u32 s8, 249\ns_cbranch_scc1 L_norelay")
a(f"v_lshlrev_b32 v4, 7, v0\nv_lshlrev_b32 v6, 6, v0\ns_mov_b32 s8, {W2C}")
poll(few(3, f"buffer_load_dword v5, v6, {DBG}, 0 offen offset:128 sc1"),
     "v_readlane_b32 s9, v5, 0\nv_readlane_b32 s10, v5, 1\ns_add_u32 s9, s9, s10\ns_cmp_ge_u32 s9, 135", sleep=4, issued=False)
stamp(11)
a(f"v_mov_b32 v5, 1\ns_mov_b32 exec_hi, 0\nbuffer_store_dword v5, v4, {WS}, s8 offen offset:1024 sc1\ns_mov_b32 exec_hi, -1")
a("L_norelay:")
a("s_mov_b32 s35, 1")
a("s_branch L_g2")

a("L_end:")
if PROF:
    a(f"s_lshl_b32 s93, s2, 3\ns_add_u32 s93, s93, {WV}\ns_lshl_b32 s93, s93, 6\ns_add_u32 s93, s93, {PROFB}")
    a(f"s_memrealtime s[94:95]\ns_waitcnt lgkmcnt(0)\ns_mov_b32 s87, s94\ns_mov_b32 s72, s{S_SPIN}")
    for i in range(16): a(f"v_mov_b32 v{224+i}, s{72+i}")
    a("v_mov_b32 v255, 0\ns_mov_b64 exec, 1")
    for i in range(4): a(f"buffer_store_dwordx4 {vr(224+4*i,4)}, v255, {WS}, s93 offen offset:{16*i}")
    if opt("dbgmax", 0):
        a(f"v_not_b32 v238, v238\ns_and_b32 s93, {WV}, 3\ns_cmp_lg_u32 s93, 0\ns_cbranch_scc1 L_exit")
        sel0 = {1: 14, 2: 15, 3: 1, 4: 2, 5: 5, 6: 6, 7: 8, 8: 10}
        sel4 = {9: 10, 10: 4, 11: 7, 12: 8, 13: 9}
        a(f"s_cmp_lg_u32 {WV}, 0\ns_cbranch_scc1 L_dbg4")
        for d, i in sel0.items(): a(f"buffer_atomic_umax v{224+i}, v255, {DBG}, 0 offen offset:{4*d} sc1")
        a("s_branch L_exit")
        a("L_dbg4:")
        for d, i in sel4.items(): a(f"buffer_atomic_umax v{224+i}, v255, {DBG}, 0 offen offset:{4*d} sc1")
a("L_exit:")
a("s_endpgm")

hdr = open("cdna_kernels/%s.s.ref" % NAME).read().split("; Override launch")[0]
out = hdr + "; @launch grid=(256,1,1) block=(512,1,1) lds=163840\n"
out += '.amdgcn_target "amdgcn-amd-amdhsa--gfx950"\n.text\n' + a.text()
out += f""".section .rodata,"a"
.p2align 6
.amdhsa_kernel {KN}
  .amdhsa_next_free_vgpr 256
  .amdhsa_next_free_sgpr 102
  .amdhsa_accum_offset 256
  .amdhsa_group_segment_fixed_size 0
  .amdhsa_kernarg_size 136
  .amdhsa_user_sgpr_count 2
  .amdhsa_user_sgpr_kernarg_segment_ptr 1
  .amdhsa_system_sgpr_workgroup_id_x 1
.end_amdhsa_kernel
"""
path = [x for x in sys.argv[1:] if not x.startswith("--")]
open(path[0] if path else "f.s", "w").write(out)
```

```python
import sys, struct, math
sys.path.insert(0, "dev")
from asmlib import Asm, vr, sr

NAME = "parallel_sum__ssm_conv_s4__dense_activation_gelu__prompt"
KN = NAME + "_kernel"
PROF = "--prof" in sys.argv
def opt(name, default):
    for x in sys.argv:
        if x.startswith("--%s=" % name): return int(x.split("=")[1])
    return default
def f32(x): return "0x%08x" % struct.unpack("<I", struct.pack("<f", x))[0]

XNT, KD, YA, W2F = 0x000000, 0x280000, 0x500000, 0x780000
CLR = 0x9A0000
STATS, CSUM, MBOX, LNC, W2C, YAC = CLR, CLR+0x2000, CLR+0x10000, CLR+0x18000, CLR+0x1C000, CLR+0x1A000
CSP = 14080
PROFB, HF = 0x9C0000, 0xA00000
WS_SIZE = 0x1100000
OOB = "0x7f000000"
P = dict(u=16, are=18, aim=20, bre=22, bim=24, cre=26, cim=28, ldt=30, dsk=32, bx=34, w1=36, b1=38, w2=40, b2=42, out=44, dbg=46, ws=48)
S_WS, S_A, S_B, S_DBG = 52, 56, 60, 64
S_WAVE, S_XR, S_XC, S_J, S_SPIN, S_CH = 4, 5, 6, 7, 50, 51
S_MB = 34
WV = f"s{S_WAVE}"
WS = f"s[{S_WS}:{S_WS+3}]"; SA = f"s[{S_A}:{S_A+3}]"; SB = f"s[{S_B}:{S_B+3}]"; DBG = f"s[{S_DBG}:{S_DBG+3}]"
STG = 36864
AREG, BREG0, BREG = 20480, 81920, 20480
B7 = BREG0 + 3*BREG
CNT = B7 + 20096
YAT = B7
UB = 5536
W3B, W5B, W7B, W9B = 9664, 12768, 15872, 17952
IMG, T2, T3 = 9664, 10816, 11840
STATL = BREG0 + 2*BREG
NT = " nt" if opt("nt", 0) else ""
NT1 = " nt" if opt("nt1", 1) else ""

a = Asm()
G2F = " sc1" if opt("g2sc1", 1) else ""
def srd(d, ptr, size):
    a(f"s_mov_b32 s{d}, s{ptr}\ns_mov_b32 s{d+1}, s{ptr+1}\ns_mov_b32 s{d+2}, {hex(size)}\ns_mov_b32 s{d+3}, 0x20000")
def stamp(idx):
    if PROF: a(f"s_memtime s[92:93]\ns_waitcnt lgkmcnt(0)\ns_sub_u32 s{72+idx}, s92, s90")
def lstamp(o):
    if PROF: a(f"s_memtime s[92:93]\ns_waitcnt lgkmcnt(0)\ns_sub_u32 s92, s92, s90\ns_add_u32 m0, s3, {o}\nv_writelane_b32 v200, s92, m0")
def endp(): a("s_branch L_end")
def cmul(d, x, y, t):
    a(f"v_pk_mul_f32 {vr(t,2)}, {vr(x,2)}, {vr(y,2)} op_sel:[0,0] op_sel_hi:[0,1]")
    a(f"v_pk_fma_f32 {vr(d,2)}, {vr(x,2)}, {vr(y,2)}, {vr(t,2)} op_sel:[1,1,0] op_sel_hi:[1,0,1] neg_lo:[0,1,0]")
def poll(issue, test, sleep=4, issued=True):
    L = a.label("L_poll"); D = a.label("L_pdone")
    if not issued: a(issue)
    a(f"{L}:")
    a("s_waitcnt vmcnt(0)")
    a(test)
    a(f"s_cbranch_scc1 {D}")
    a(f"s_add_u32 s{S_SPIN}, s{S_SPIN}, 1\ns_cmp_gt_u32 s{S_SPIN}, 100000\ns_cbranch_scc1 L_exit")
    a(f"s_sleep {sleep}")
    a(issue)
    a(f"s_branch {L}")
    a(f"{D}:")
def sld(d, off): return f"s_load_dword s{d}, s[{P['ws']}:{P['ws']+1}], s{off} glc"
def spoll(issue, test, sleep=4, issued=False):
    L = a.label("L_spoll"); D = a.label("L_sdone")
    if not issued: a(issue)
    a(f"{L}:")
    a("s_waitcnt lgkmcnt(0)")
    a(test)
    a(f"s_cbranch_scc1 {D}")
    a(f"s_add_u32 s{S_SPIN}, s{S_SPIN}, 1\ns_cmp_gt_u32 s{S_SPIN}, 100000\ns_cbranch_scc1 L_exit")
    a(f"s_sleep {sleep}")
    a(issue)
    a(f"s_branch {L}")
    a(f"{D}:")
def arrive_issue(sreg, va, vb):
    a(f"v_mov_b32 v{va}, 0\nv_mov_b32 v{vb}, 1\ns_mov_b64 exec, 1\nbuffer_atomic_add v{vb}, v{va}, {WS}, s{sreg} offen sc0 sc1\ns_mov_b64 exec, -1")
def arrive_check(st, vb, n, then):
    L = a.label("L_arr")
    a(f"s_waitcnt vmcnt(0)\nv_readfirstlane_b32 s{st}, v{vb}\ns_cmp_lg_u32 s{st}, {n-1}\ns_cbranch_scc1 {L}")
    a(then)
    a(f"{L}:")
def push_all(bitreg, off, va, vb, st):
    t = f"v_lshlrev_b32 v{va}, 7, v0\nv_mov_b32 v{vb}, s{bitreg}\ns_mov_b32 s{st}, {MBOX+off}\n"
    for i in range(4): t += f"buffer_atomic_or v{vb}, v{va}, {WS}, s{st} offen sc1\ns_add_u32 s{st}, s{st}, 8192\n"
    return t
def few(mask, ins): return f"s_mov_b64 exec, {mask}\n{ins}\ns_mov_b64 exec, -1"
def clr_issue(v, vo): return few(15, f"buffer_load_dword v{v}, v{vo}, {DBG}, 0 offen sc1")
def clr_test(v): return f"v_cmp_ne_u32 vcc, 0, v{v}\ns_and_b32 vcc_lo, vcc_lo, 15\ns_cmp_eq_u32 vcc_lo, 15"
def nz_test(v): return f"v_cmp_ne_u32 vcc, 0, v{v}\ns_cmp_eq_u64 vcc, -1"
def zero(b, n):
    for i in range(0, n, 2): a(f"v_pk_mov_b32 {vr(b+i,2)}, 0, 0")

cLIN, cIMG2, cT2, cT3, cW2, cW3, cST, cKW1, cKW2, cA0, cA1, cB, cU = 247, 248, 249, 250, 251, 252, 253, 254, 255, 231, 236, 237, 146
AD, AB, A16 = 204, 224, 232
RS = opt("rowsplit", 0)
def tile_rc(rt, cb, tmp):
    if RS: return f"s_and_b32 s{rt}, s2, 7\ns_lshl_b32 s{rt}, s{rt}, 2\ns_lshr_b32 s{cb}, s{S_J}, 3\ns_add_u32 s{rt}, s{rt}, s{cb}\ns_and_b32 s{cb}, s{S_J}, 7"
    return (f"s_lshl_b32 s{rt}, s{S_XR}, 3\ns_lshr_b32 s{cb}, s{S_J}, 2\ns_add_u32 s{rt}, s{rt}, s{cb}\n"
            f"s_lshl_b32 s{cb}, s{S_XC}, 2\ns_and_b32 s{tmp}, s{S_J}, 3\ns_add_u32 s{cb}, s{cb}, s{tmp}")
def conv_setup(t=64):
    r_, g_, h_, f_, x_, y_, z_ = (f"v{t+i}" for i in range(7))
    a(f"v_lshlrev_b32 {x_}, 4, v0\nv_add_u32 v{cLIN}, s69, {x_}\nv_min_u32 {z_}, 5, v0\nv_lshl_add_u32 v{cIMG2}, {z_}, 4, s69")
    a(f"v_lshlrev_b32 {x_}, 6, {z_}\nv_lshrrev_b32 {y_}, 1, {z_}\nv_lshl_add_u32 {x_}, {y_}, 4, {x_}\nv_add_u32 v{cKW2}, s69, {x_}")
    a(f"v_lshlrev_b32 {x_}, 6, v0\nv_lshrrev_b32 {y_}, 1, v0\nv_lshl_add_u32 {x_}, {y_}, 4, {x_}\nv_add_u32 v{cKW1}, s69, {x_}")
    a(f"v_lshrrev_b32 {x_}, 2, v0\nv_mul_u32_u24 {x_}, 40960, {x_}\nv_and_b32 {y_}, 3, v0\nv_lshl_add_u32 v{cU}, {y_}, 4, {x_}")
    a(f"v_and_b32 {r_}, 15, v0\nv_lshrrev_b32 {g_}, 4, v0\nv_and_b32 {h_}, 1, {g_}\nv_lshrrev_b32 {f_}, 1, {g_}")
    a(f"v_sub_u32 {x_}, 15, {r_}\nv_and_b32 {y_}, 1, {x_}\nv_sub_u32 {x_}, {x_}, {y_}\nv_lshlrev_b32 {x_}, 1, {x_}")
    a(f"v_lshl_add_u32 {z_}, {g_}, 1, {y_}\nv_lshl_add_u32 {z_}, {z_}, 7, {x_}\ns_add_u32 s10, s69, {T2}\nv_add_u32 v{cT2}, s10, {z_}")
    a(f"v_lshl_add_u32 {z_}, {h_}, 1, {y_}\nv_mul_u32_u24 {z_}, 160, {z_}\nv_add_u32 {z_}, {z_}, {x_}\nv_lshl_add_u32 {z_}, {f_}, 4, {z_}\ns_add_u32 s10, s69, {T3}\nv_add_u32 v{cT3}, s10, {z_}")
    a(f"v_mul_u32_u24 {x_}, {W5B-W3B}, {h_}\nv_lshlrev_b32 {y_}, 3, {g_}\nv_sub_u32 {x_}, {x_}, {y_}\nv_lshl_add_u32 {x_}, {r_}, 3, {x_}\ns_add_u32 s10, s69, {W3B-8}\nv_add_u32 v{cW2}, s10, {x_}")
    a(f"v_mul_u32_u24 {x_}, {W9B-W7B-16}, {h_}\nv_lshl_add_u32 {x_}, {f_}, 8, {x_}\nv_lshl_add_u32 {x_}, {r_}, 3, {x_}\ns_add_u32 s10, s69, {W7B-16}\nv_add_u32 v{cW3}, s10, {x_}")
    a(f"v_lshlrev_b32 {x_}, 2, {h_}\nv_lshrrev_b32 {z_}, 2, {r_}\nv_add_u32 {x_}, {x_}, {z_}\nv_mul_u32_u24 {x_}, 81920, {x_}\nv_lshl_add_u32 {x_}, {f_}, 6, {x_}\nv_and_b32 {z_}, 3, {r_}\nv_lshl_add_u32 v{cST}, {z_}, 4, {x_}")
    a(f"s_add_u32 s10, s69, {UB-32}\nv_lshlrev_b32 {x_}, 5, {r_}\nv_lshl_add_u32 {x_}, {g_}, 4, {x_}\nv_add_u32 v{cB}, s10, {x_}")
    a(f"v_sub_u32 {z_}, {y_}, {r_}\nv_add_u32 {z_}, 15, {z_}\nv_sub_u32 {y_}, {r_}, {y_}")
    a(f"v_lshrrev_b32 {x_}, 4, {z_}\nv_lshlrev_b32 {x_}, 4, {x_}\nv_lshl_add_u32 {x_}, {z_}, 3, {x_}\nv_add_u32 v{cA0}, s69, {x_}")
    a(f"v_add_u32 {z_}, 4, {z_}\nv_lshrrev_b32 {x_}, 4, {z_}\nv_lshlrev_b32 {x_}, 4, {x_}\nv_lshl_add_u32 {x_}, {z_}, 3, {x_}\nv_add_u32 v{cA1}, s69, {x_}")
    a(f"v_mov_b32 {r_}, 0xffff\nv_mov_b32 {g_}, 0xffff0000\nv_mov_b32 {h_}, -1")
    for k in range(4):
        a(f"v_cmp_eq_u32 vcc, {2*k-16}, {y_}\nv_cndmask_b32 v{AD+k}, 0, {r_}, vcc\nv_cmp_eq_u32 vcc, {2*k+1-16}, {y_}\nv_cndmask_b32 v{AD+k}, v{AD+k}, {g_}, vcc")
        a(f"v_cmp_eq_u32 vcc, {2*k-12}, {y_}\nv_cndmask_b32 v{AB+k}, 0, {h_}, vcc\nv_cmp_eq_u32 vcc, {2*k-13}, {y_}\nv_cndmask_b32 v{AB+k}, v{AB+k}, {r_}, vcc\nv_cmp_eq_u32 vcc, {2*k-11}, {y_}\nv_cndmask_b32 v{AB+k}, v{AB+k}, {g_}, vcc")
def uloads():
    a(f"s_lshl_b32 s10, s{S_CH}, 6")
    for q in range(4): a(f"buffer_load_dwordx4 {vr(148+4*q,4)}, v{cU}, {WS}, s10 offen sc1\ns_add_u32 s10, s10, 655360")
def kloads():
    a(f"s_lshl_b32 s10, s{S_CH}, 12\ns_add_u32 s10, s10, {KD}")
    for q in range(3): a(f"buffer_load_dwordx4 {vr(32+4*q,4)}, v1, {WS}, s10 offen offset:{1024*q} sc1")
lnc_addr = f"s_mul_i32 s13, s{S_CH}, 410\ns_lshr_b32 s13, s13, 16\ns_lshl_b32 s13, s13, 4\ns_and_b32 s100, s2, 15\ns_add_u32 s100, s100, s13\ns_lshl_b32 s100, s100, 7\ns_add_u32 s100, s100, {LNC}"

a.raw(f".globl {KN}\n.p2align 8\n.type {KN},@function")
a(f"{KN}:")
a("s_cmp_ge_u32 s2, 256\ns_cbranch_scc1 L_exit")
a("s_load_dwordx16 s[16:31], s[0:1], 0\ns_load_dwordx16 s[32:47], s[0:1], 64\ns_load_dwordx2 s[48:49], s[0:1], 128")
if PROF:
    a("s_memtime s[90:91]\ns_memrealtime s[94:95]")
    for i in range(16): a(f"s_mov_b32 s{72+i}, 0")
a("v_lshrrev_b32 v1, 6, v0\nv_and_b32 v0, 63, v0")
a(f"v_readfirstlane_b32 {WV}, v1")
a(f"s_bfe_u32 s{S_XR}, s2, 0x20001\ns_and_b32 s{S_XC}, s2, 1\ns_lshr_b32 s{S_J}, s2, 3\ns_mov_b32 s{S_SPIN}, 0")
a(f"s_lshl_b32 s8, s{S_XC}, 2\ns_sub_u32 s8, 24, s8")
a(f"s_cmp_eq_u32 s{S_XC}, 0\ns_cselect_b32 s9, 43, 52\ns_mul_i32 s9, s9, s{S_J}\ns_lshr_b32 s9, s9, 8")
a(f"s_sub_u32 s11, 6, s{S_XC}\ns_mul_i32 s11, s11, s9\ns_sub_u32 s10, s{S_J}, s11\ns_mul_i32 s11, s{S_XC}, 6\ns_add_u32 s10, s10, s11")
a(f"s_lshl_b32 s11, s{S_XR}, 2\ns_add_u32 s9, s9, s11")
a("v_lshrrev_b32 v4, 3, v0\nv_mul_u32_u24 v4, 1280, v4")
a("v_and_b32 v5, 7, v0\nv_lshl_add_u32 v13, v5, 4, v4\nv_lshrrev_b32 v6, 4, v0\nv_xor_b32 v5, v5, v6\nv_lshl_add_u32 v2, v5, 4, v4")
a("v_xor_b32 v5, 4, v5\nv_lshl_add_u32 v3, v5, 4, v4\nv_add_u32 v3, 10240, v3\nv_add_u32 v4, 20480, v2\nv_add_u32 v5, 20480, v3")
for i in range(5):
    a(f"v_add_u32 v6, {64*i}, v0\nv_mul_u32_u24 v7, 3277, v6\nv_lshrrev_b32 v7, 16, v7\nv_mul_u32_u24 v7, 3136, v7\nv_lshl_add_u32 v{8+i}, v6, 4, v7")
a("s_waitcnt lgkmcnt(0)")
srd(S_WS, P['ws'], WS_SIZE)
srd(S_A, P['u'], 2621440)
srd(S_B, P['w1'], 2211840)
srd(S_DBG, P['dbg'], 256)
a(f"s_lshl_b32 s{S_MB}, s2, 7\ns_add_u32 s{S_MB}, s{S_MB}, {MBOX}")
if PROF:
    a("s_mov_b32 s86, s94"); stamp(13)
if opt("g2only", 0):
    a(f"v_mov_b32 v174, 0\ns_mov_b32 s35, 1\ns_cmp_lt_u32 {WV}, 4\ns_cbranch_scc1 L_g2\ns_branch L_end")
a(f"s_cmp_ge_u32 s{S_J}, s8\ns_cbranch_scc1 L_aux")
a(f"s_mul_i32 s35, s{S_XR}, 44\ns_mul_i32 s12, s{S_XC}, 24\ns_add_u32 s35, s35, s12\ns_add_u32 s35, s35, s{S_J}")
a(f"s_cmp_lt_u32 {WV}, 4\ns_cbranch_scc1 L_comp")

a(f"s_sub_u32 s8, {WV}, 4")
a("s_lshl_b32 s11, s9, 7\ns_lshl_b32 s12, s8, 5\ns_add_u32 s11, s11, s12\ns_mul_i32 s11, s11, 1280")
a("s_mul_i32 s12, s8, 55296\ns_mul_i32 s13, s10, 320\ns_add_u32 s12, s12, s13")
a("s_lshl_b32 s13, s8, 12\ns_mul_i32 s14, s8, 5120\ns_add_u32 s14, s14, 16384\ns_mov_b32 s3, 0")
a(f"s_and_b32 s15, s9, 3\ns_mul_i32 s15, s15, 5\ns_add_u32 s15, s15, 1\ns_lshr_b32 s15, s15, 1\ns_lshl_b32 s68, s10, 1\ns_add_u32 s15, s15, s68\ns_add_u32 s15, s15, s{S_XR}")
a("s_mul_i32 s68, s15, 26\ns_lshr_b32 s68, s68, 8\ns_mul_i32 s68, s68, 10\ns_sub_u32 s15, s15, s68")
a("s_lshl_b32 s68, s15, 7\ns_add_u32 s11, s11, s68\ns_mul_i32 s68, s15, 221184\ns_add_u32 s12, s12, s68\ns_mov_b32 s69, 0")
stamp(1)
S_C = 96
DEEP = opt("deep", 0)
a("v_and_b32 v14, 3, v0\nv_lshlrev_b32 v14, 2, v14\nv_lshlrev_b32 v31, 7, v0\ns_mov_b32 s24, 0\nv_mov_b32 v146, 0\nv_mov_b32 v253, 0\ns_mov_b32 s101, 0")
a("L_ld_loop:")
a("s_cmp_lt_u32 s3, 2\ns_cbranch_scc1 L_ld_nowait\ns_cmp_eq_u32 s3, 2\ns_cbranch_scc1 L_ld_setup")
a("L_ld_wait:")
a("s_and_b32 s68, s3, 14\ns_cmp_eq_u32 s68, 4\ns_cbranch_scc1 L_ld_w10\ns_waitcnt vmcnt(9)")
a("L_ld_w10:")
a("s_waitcnt vmcnt(10)")
lstamp(0)
a("s_barrier")
lstamp(16)
a("L_ld_nowait:")
a("s_add_u32 s70, s69, s13\ns_add_u32 s71, s69, s14")
for q in range(4): a(f"s_add_u32 m0, s70, {1024*q}\nbuffer_load_dwordx4 v{2+q}, {SA}, s11 offen{NT} lds")
for i in range(5): a(f"s_add_u32 m0, s71, {1024*i}\nbuffer_load_dwordx4 v{8+i}, {SB}, s12 offen{NT} lds")
a("s_add_u32 s11, s11, 128\ns_add_u32 s12, s12, 221184\ns_add_u32 s15, s15, 1\ns_cmp_lt_u32 s15, 10\ns_cbranch_scc1 L_ld_nowrap")
a("s_sub_u32 s11, s11, 1280\ns_sub_u32 s12, s12, 2211840\ns_mov_b32 s15, 0")
a("L_ld_nowrap:")
a(f"s_add_u32 s69, s69, {STG}\ns_cmp_eq_u32 s69, {4*STG}\ns_cselect_b32 s69, 0, s69")
a(f"s_cmp_lg_u32 s3, 7\ns_cbranch_scc1 L_ld_n5\ns_load_dwordx4 s[28:31], s[{P['dbg']}:{P['dbg']+1}], 0")
a("L_ld_n5:")
a("s_cmp_lg_u32 s3, 3\ns_cbranch_scc1 L_ld_n7")
a(f"s_mov_b64 exec, 1\nbuffer_atomic_add v29, v31, {DBG}, s21 offen sc1\ns_mov_b64 exec, -1")
a("L_ld_n7:")
a("s_add_u32 s3, s3, 1\ns_cmp_lt_u32 s3, 10\ns_cbranch_scc1 L_ld_loop")
s_issue = f"buffer_load_dwordx4 v[16:19], v1, {WS}, s18 offen sc1\nbuffer_load_dwordx4 v[20:23], v6, {WS}, s19 offen sc1\nbuffer_load_dword v24, v7, {WS}, s20 offen sc1"
wc_issue = sld(26, 25)
wc_test = "s_cmp_lg_u32 s26, 0"
a("s_waitcnt lgkmcnt(0)\ns_and_b32 s28, s28, s29\ns_and_b32 s30, s30, s31\ns_and_b32 s24, s28, s30")
a(s_issue)
a("s_waitcnt vmcnt(12)")
lstamp(0)
a("s_barrier")
lstamp(16)
if PROF: a("s_add_u32 s3, s3, 1")
a("s_mov_b32 s26, 0\ns_cmp_lg_u32 s8, 2\ns_cbranch_scc1 L_ld_nwc")
a(wc_issue)
a("L_ld_nwc:")
a("s_mov_b32 s31, 0\ns_mov_b32 s33, 0\ns_cmp_eq_u32 s101, 0\ns_cbranch_scc1 L_ld_ncv")
a(sld(31, S_MB) + "\n" + sld(33, 100))
a("L_ld_ncv:")
a("s_waitcnt vmcnt(3)")
lstamp(0)
a("s_barrier")
lstamp(16)
if PROF: a("s_add_u32 s3, s3, 1")
a("s_cmp_lg_u32 s24, 0\ns_cbranch_scc1 L_ld_clr")
poll(clr_issue(15, 14), clr_test(15), sleep=8, issued=False)
a(s_issue)
a("s_waitcnt lgkmcnt(0)\ns_mov_b32 s26, 0\ns_mov_b32 s31, 0\ns_mov_b32 s33, 0")
a("L_ld_clr:")
s_test = "v_and_b32 v4, v17, v19\nv_and_b32 v5, v21, v23\nv_and_b32 v4, v4, v5\nv_and_b32 v4, 1, v4\nv_min_u32 v4, v4, v24\n" + nz_test(4)
poll(s_issue, s_test, sleep=8)
a("ds_write_b128 v25, v[16:19]\nds_write_b128 v26, v[20:23] offset:1024\nds_write_b32 v27, v24")
a("s_waitcnt lgkmcnt(0)\nv_mov_b32 v29, s26\nds_write_b64 v30, v[28:29]")
a("s_mov_b32 s68, 0\ns_and_b32 s13, s31, s101\ns_cbranch_scc0 L_ld_nk")
kloads()
a("s_mov_b32 s68, 1\ns_cmp_ge_u32 s33, 64\ns_cbranch_scc0 L_ld_nk")
uloads()
a("s_mov_b32 s68, 3")
a("L_ld_nk:")
a("s_waitcnt lgkmcnt(0)\ns_barrier")
lstamp(16)
if PROF:
    a(f"s_lshl_b32 s93, s2, 9\ns_lshl_b32 s92, s8, 7\ns_add_u32 s93, s93, s92\ns_add_u32 s93, s93, {PROFB+0x20000}\nv_lshlrev_b32 v201, 2, v0\ns_mov_b32 exec_hi, 0\nbuffer_store_dword v200, v201, {WS}, s93 offen\ns_mov_b32 exec_hi, -1")
stamp(2)
a(f"s_cmp_eq_u32 {WV}, 7\ns_cbranch_scc1 L_fetch")
a(f"s_cmp_eq_u32 {WV}, 6\ns_cbranch_scc1 L_park")
a("s_cmp_eq_u32 s101, 0\ns_cbranch_scc1 L_end\ns_branch L_conv")
wc_prep = f"s_and_b32 s25, s2, 31\ns_lshl_b32 s25, s25, 7\ns_add_u32 s25, s25, {W2C+1024}\nv_mov_b32 v174, 0"
a("L_ld_setup:")
a(f"s_and_b32 s21, s35, 1\ns_lshl_b32 s21, s21, 6\ns_add_u32 s21, s21, 128\ns_cmp_eq_u32 s8, 0\ns_cselect_b32 s21, s21, {OOB}\ns_cmp_lt_u32 s35, 135\ns_cselect_b32 s21, s21, {OOB}")
a("v_lshlrev_b32 v1, 4, v0\nv_and_b32 v6, 15, v0\nv_lshlrev_b32 v6, 4, v6\nv_and_b32 v7, 31, v0\nv_lshlrev_b32 v7, 2, v7")
a(f"s_lshl_b32 s20, s9, 9\ns_lshl_b32 s23, s8, 7\ns_add_u32 s20, s20, s23\ns_add_u32 s20, s20, {STATS}\ns_add_u32 s23, s23, {STATL+5120}\nv_add_u32 v27, s23, v7")
a(f"s_mul_i32 s18, s10, 1280\ns_mul_i32 s19, s8, {CSP}\ns_add_u32 s18, s18, s19\ns_add_u32 s18, s18, {CSUM}\ns_cmp_eq_u32 s10, 10\ns_cselect_b32 s19, 0, 1024\ns_add_u32 s19, s19, s18")
a(f"s_mul_i32 s23, s8, 1280\ns_add_u32 s23, s23, {STATL}\nv_add_u32 v25, s23, v1\nv_add_u32 v26, s23, v6\nv_mov_b32 v28, 0\nv_mov_b32 v29, 1\ns_lshl_b32 s23, s8, 3\ns_add_u32 s23, s23, {CNT}\nv_mov_b32 v30, s23")
a(wc_prep)
a("s_mov_b32 s101, 0\ns_cmp_ge_u32 s8, 2\ns_cbranch_scc1 L_ld_wait\ns_cmp_ge_u32 s35, 160\ns_cbranch_scc1 L_ld_wait")
a(f"s_lshl_b32 s23, s35, 1\ns_add_u32 s23, s23, s8\ns_lshr_b32 s22, s23, 2\ns_lshl_b32 s22, s22, 3\ns_and_b32 s23, s23, 3\ns_add_u32 s{S_CH}, s23, s22\ns_lshl_b32 s101, 0x1000000, s8")
a(f"s_mov_b32 s96, s69\ns_mov_b32 s97, s10\ns_mov_b32 s98, s13\ns_mul_i32 s69, {WV}, {AREG}")
conv_setup()
a(lnc_addr)
a(f"s_lshl_b32 s22, s{S_CH}, 1\ns_and_b32 s23, s22, 2\ns_sub_u32 s22, s22, s23\ns_load_dword s99, s[{P['dsk']}:{P['dsk']+1}], s22")
a("s_lshl_b32 s23, s23, 3\ns_waitcnt lgkmcnt(0)\ns_lshr_b32 s99, s99, s23\ns_and_b32 s99, s99, 0xffff\nv_mov_b32 v147, s99")
a("s_mov_b32 s69, s96\ns_mov_b32 s10, s97\ns_mov_b32 s13, s98\ns_branch L_ld_wait")

G2H = [16, 32, 48, 224]; G2W = [164, 184, 204, 144]; AC2 = 64
K0 = [0, 13, 26, 40, 54]
def g2_setup():
    a(tile_rc(30, 31, 29))
    a(f"s_mul_i32 s28, {WV}, 14\ns_sub_u32 s28, s28, 2\ns_cmp_eq_u32 {WV}, 0\ns_cselect_b32 s28, -1, s28\ns_lshl_b32 s28, s28, 10")
    a(f"s_mul_i32 s27, s30, {4*55296}\ns_add_u32 s27, s27, s28\ns_add_u32 s27, s27, {HF}")
    for i in range(4):
        a(f"s_add_u32 s29, {WV}, {i}\ns_and_b32 s29, s29, 3\ns_mul_i32 s29, s29, 55296\ns_add_u32 s{18+i}, s27, s29")
    a(f"s_mul_i32 s22, s31, {5*55296}\ns_add_u32 s22, s22, s28\ns_add_u32 s22, s22, {W2F}")
    for i in range(1, 5): a(f"s_add_u32 s{22+i}, s22, {55296*i}")
    a(f"s_lshl_b32 s27, s30, 6\ns_lshl_b32 s29, {WV}, 4\ns_add_u32 s27, s27, s29\ns_mul_i32 s27, s27, 1280\ns_mul_i32 s29, s31, 160\ns_add_u32 s27, s27, s29")
    masks = []
    for w in range(4):
        c0, c1 = K0[w]//5, (K0[w+1]-1)//5
        m = ((1 << (c1-c0+1)) - 1) << c0
        masks.append(m | (m << 11))
    a(f"s_mov_b32 s28, {hex(masks[0])}\ns_cmp_eq_u32 {WV}, 1\ns_cselect_b32 s28, {hex(masks[1])}, s28\ns_cmp_eq_u32 {WV}, 2\ns_cselect_b32 s28, {hex(masks[2])}, s28\ns_cmp_eq_u32 {WV}, 3\ns_cselect_b32 s28, {hex(masks[3])}, s28")
    a(f"v_lshlrev_b32 v252, 4, v0\ns_cmp_lt_u32 {WV}, 2\ns_cselect_b32 s30, {OOB}, 0\nv_add_u32 v253, s30, v252")
    a("v_lshrrev_b32 v255, 4, v0\nv_lshlrev_b32 v255, 3, v255\nv_and_b32 v254, 15, v0\nv_mul_u32_u24 v254, 160, v254\nv_add_u32 v254, v254, v255")
    srd(S_B, P['b2'], 1280)
def ldh(k, o=0, v=252): return [f"buffer_load_dwordx4 {vr(G2H[k]+4*i,4)}, v{v}, {WS}, s{18+i} offen offset:{o}{G2F}" for i in range(4)]
def ldw(k, o=0, v=252): return [f"buffer_load_dwordx4 {vr(G2W[k]+4*i,4)}, v{v}, {WS}, s{22+i} offen offset:{o}{G2F}" for i in range(5)]
OUTV = (8, 9, 13)
def xb_loads():
    for q in range(3):
        a(f"v_add_u32 v10, {64*q}, v0\nv_mul_u32_u24 v11, 6554, v10\nv_lshrrev_b32 v11, 16, v11\nv_mul_u32_u24 v11, 1120, v11\nv_lshl_add_u32 v{OUTV[q]}, v10, 4, v11")
    a(f"v_cmp_gt_u32 vcc, 32, v0\nv_mov_b32 v10, {OOB}\nv_cndmask_b32 v13, v10, v13, vcc\ns_mul_i32 s10, {WV}, {AREG}")
    for q in range(3): a(f"s_add_u32 m0, s10, {15360+1024*q}\nbuffer_load_dwordx4 v{OUTV[q]}, {SA}, s27 offen lds")
    a(f"s_add_u32 m0, s10, {18432}\ns_mov_b64 exec, 0x3ff\nbuffer_load_dwordx4 v252, {SB}, s29 offen lds\ns_mov_b64 exec, -1")
    a("v_add_u32 v2, s10, v254\nv_add_u32 v3, s10, v255")
w_pre = ldw(0, 0, 253) + ldw(1, 1024) + ldw(2, 2048)

a("L_comp:")
if opt("cpf", 1):
    a(f"s_cmp_lg_u32 s{S_J}, 0\ns_cbranch_scc1 L_nocpf")
    a("s_getpc_b64 s[12:13]")
    a("L_cpfb:")
    a(f"s_lshl_b32 s14, {WV}, 13\nv_lshl_add_u32 v20, v0, 7, s14\nv_min_u32 v20, L_exit-L_cpfb, v20\nv_mov_b32 v21, s13\nv_add_co_u32 v20, vcc, s12, v20\nv_addc_co_u32 v21, vcc, 0, v21, vcc")
    a("global_load_dword v22, v[20:21], off")
    a("L_nocpf:")
ACC = 64; BUF = [16, 40]; SF = 228
srd(S_C, P['w2'], 2211840)
a(f"s_lshl_b32 s8, s35, 2\ns_add_u32 s8, s8, {WV}\ns_mul_i32 s12, s8, 6554\ns_lshr_b32 s12, s12, 16\ns_mul_i32 s13, s12, 10\ns_sub_u32 s70, s8, s13")
a(f"s_mul_i32 s14, s12, 40960\ns_lshl_b32 s15, s70, 7\ns_add_u32 s14, s14, s15\ns_lshl_b32 s69, {WV}, 12\ns_add_u32 s69, s69, {4*STG}\ns_cmp_lt_u32 s8, 540\ns_cselect_b32 s14, s14, {OOB}")
if opt("w2late", 0): g2_setup()
for q in range(4):
    a(f"s_add_u32 m0, s69, {1024*q}\nbuffer_load_dwordx4 v13, s[{S_C}:{S_C+3}], s14 offen{NT1} lds\ns_add_u32 s14, s14, 10240")
if not opt("w2late", 0): g2_setup()
a(f"s_mul_i32 s15, s70, 216\ns_add_u32 s15, s15, s12\ns_lshl_b32 s15, s15, 10\ns_add_u32 s71, s15, {W2F}\ns_cmp_lt_u32 s8, 540\ns_cselect_b32 s71, s71, {OOB}")
a("v_lshrrev_b32 v180, 5, v0\nv_bfe_u32 v1, v0, 4, 1\nv_lshlrev_b32 v180, 4, v180\nv_lshl_add_u32 v180, v1, 2, v180\nv_bfe_u32 v1, v0, 2, 2\nv_add_u32 v180, v180, v1")
a("v_lshlrev_b32 v180, 7, v180\nv_and_b32 v1, 3, v0\nv_lshl_add_u32 v180, v1, 3, v180\nv_add_u32 v180, s69, v180")
a("v_and_b32 v13, 31, v0\nv_lshrrev_b32 v14, 5, v0")
a(f"s_lshl_b32 s8, {WV}, 12\nv_lshlrev_b32 v15, 7, v13\nv_add_u32 v15, s8, v15")
a("v_bfe_u32 v7, v0, 1, 3\nv_xor_b32 v7, v7, v14")
for ks in range(4): a(f"v_xor_b32 v1, {2*ks}, v7\nv_lshl_add_u32 v{2+ks}, v1, 4, v15")
a("v_bfe_u32 v1, v0, 2, 2\nv_lshl_add_u32 v1, v14, 3, v1\nv_mul_u32_u24 v1, 320, v1")
a("v_bfe_u32 v7, v0, 4, 1\nv_lshl_add_u32 v1, v7, 5, v1\nv_and_b32 v7, 3, v0\nv_lshl_add_u32 v1, v7, 3, v1\nv_add_u32 v6, 16384, v1")
for i in range(5): a(f"v_mov_b32 v{8+i}, v{2+i}")
zero(ACC, 80)
a(f"s_lshl_b32 s11, {WV}, 7\ns_add_u32 s11, s11, {STATL+5120}\nv_lshl_add_u32 v224, v13, 2, s11\nv_mul_u32_u24 v225, 2560, v14\nv_lshl_add_u32 v225, v13, 3, v225\nv_add_u32 v225, {STATL}, v225")
a(f"v_mov_b32 v226, {CNT+16}")
a("v_bfe_u32 v1, v0, 4, 1\nv_mul_u32_u24 v1, 55296, v1\nv_lshl_add_u32 v1, v14, 8, v1\nv_and_b32 v7, 15, v0\nv_lshl_add_u32 v1, v7, 4, v1")
a(f"s_lshl_b32 s8, s9, 3\ns_lshl_b32 s11, {WV}, 1\ns_add_u32 s8, s8, s11\ns_mul_i32 s8, s8, 54\ns_mul_i32 s11, s10, 5\ns_add_u32 s8, s8, s11\ns_lshl_b32 s8, s8, 10\ns_add_u32 s8, s8, {HF}")
a(f"s_lshl_b32 s12, s9, 1\ns_lshr_b32 s11, {WV}, 1\ns_add_u32 s12, s12, s11")
if RS: a(f"s_and_b32 s11, s12, 3\ns_lshl_b32 s11, s11, 6\ns_lshr_b32 s12, s12, 2\ns_add_u32 s12, s12, s11\ns_lshl_b32 s12, s12, 7\ns_add_u32 s12, s12, {MBOX}")
else: a(f"s_and_b32 s11, s12, 7\ns_lshl_b32 s11, s11, 5\ns_lshr_b32 s12, s12, 3\ns_lshl_b32 s12, s12, 1\ns_add_u32 s12, s12, s11\ns_lshl_b32 s12, s12, 7\ns_add_u32 s12, s12, {MBOX}")
a(f"s_and_b32 s11, {WV}, 1\ns_mul_i32 s11, s11, 11\ns_add_u32 s11, s11, s10\ns_lshl_b32 s11, 1, s11")
if RS: a("v_lshlrev_b32 v15, 10, v0\nv_mov_b32 v14, s11")
else: a("v_and_b32 v15, 3, v0\nv_lshlrev_b32 v15, 10, v15\nv_bfe_u32 v7, v0, 2, 1\nv_lshl_add_u32 v15, v7, 7, v15\nv_mov_b32 v14, s11")
a("s_mov_b32 s15, 0\ns_mov_b32 s3, 0\ns_waitcnt vmcnt(0)")
for dt in range(4):
    for h in range(2): a(f"ds_read_b64_tr_b16 {vr(184+4*dt+2*h,2)}, v180 offset:{1024*h + 32*dt}")
for dt in range(4):
    a(f"s_waitcnt lgkmcnt({6-2*dt})\nbuffer_store_dwordx4 {vr(184+4*dt,4)}, v252, {WS}, s71 offen sc1\ns_add_u32 s71, s71, 55296")
stamp(11)
def reads(ks, b):
    r = [f"ds_read_b128 {vr(b,4)}, v{8+ks}"]
    for ft in range(5):
        for s in range(2):
            r.append(f"ds_read_b64_tr_b16 {vr(b+4+4*ft+2*s,2)}, v12 offset:{ks*5120 + s*1280 + ft*64}")
    return r
def step(cur, nks, nb, last, first_wait=True):
    R = reads(nks, nb)
    waits = [8, 9, 10, 11, 11]; parts = [R[0:3], R[3:6], R[6:9], R[9:11], [last]]
    for ft in range(5):
        if first_wait: a(f"s_waitcnt lgkmcnt({waits[ft]})")
        a(f"v_mfma_f32_32x32x16_bf16 {vr(ACC+16*ft,16)}, {vr(cur+4+4*ft,4)}, {vr(cur,4)}, {vr(ACC+16*ft,16)}")
        for r in parts[ft]: a(r)
a("s_barrier")
stamp(1)
for r in reads(0, BUF[0]): a(r)
a("L_c_loop:")
step(BUF[0], 1, BUF[1], f"s_add_u32 s15, s15, {STG}\ns_cmp_eq_u32 s15, {4*STG}\ns_cselect_b32 s15, 0, s15\nv_add_u32 v8, s15, v2")
step(BUF[1], 2, BUF[0], "v_add_u32 v9, s15, v3\nv_add_u32 v10, s15, v4")
step(BUF[0], 3, BUF[1], "v_add_u32 v12, s15, v6\ns_waitcnt vmcnt(0) lgkmcnt(0)\ns_barrier")
step(BUF[1], 0, BUF[0], "v_add_u32 v11, s15, v5\ns_add_u32 s3, s3, 1\ns_cmp_lt_u32 s3, 10\ns_cbranch_scc1 L_c_loop", first_wait=False)
stamp(2)
a(f"s_setprio 3\nds_read_b32 v{SF}, v224\nds_read_b32 v227, v226 offset:4")
for ft in range(5):
    for p in range(2): a(f"ds_read_b64 {vr(SF+4+4*ft+2*p,2)}, v225 offset:{1280*p+256*ft}")
a("s_waitcnt lgkmcnt(10)")
a(f"v_xor_b32 v17, 0x8000, v{SF}\nv_and_b32 v19, 0xffff, v17\nv_lshl_or_b32 v16, v19, 16, v19\nv_mov_b32 v18, v16")
a("v_cmp_gt_u32 vcc, 32, v0\nv_readfirstlane_b32 s68, v227\nv_cndmask_b32 v17, v19, v17, vcc")
a(f"v_and_b32 v10, 0xffff0000, v{SF}\nv_rcp_f32 v7, v10\nv_mov_b32 v11, v10\ns_waitcnt lgkmcnt(0)")
for ft in range(5):
    a(f"v_mfma_f32_32x32x16_bf16 {vr(ACC+16*ft,16)}, {vr(SF+4+4*ft,4)}, v[16:19], {vr(ACC+16*ft,16)}")
    if ft == 0:
        k1c = -2.0 * math.log2(math.e) * math.sqrt(2.0/math.pi); k2c = k1c * 0.044715
        a(f"v_mul_f32 v8, {f32(k1c)}, v7\nv_mul_f32 v12, v7, v7\nv_mul_f32 v12, v12, v7\nv_mul_f32 v12, {f32(k2c)}, v12\nv_mov_b32 v9, v8\nv_mov_b32 v13, v12")
def stA(h):
    A0 = ACC + 8*h; T = 16 + 8*(h % 3)
    return ([f"v_pk_mul_f32 {vr(T+2*p,2)}, {vr(A0+2*p,2)}, {vr(A0+2*p,2)}" for p in range(4)] +
            [f"v_pk_fma_f32 {vr(T+2*p,2)}, {vr(T+2*p,2)}, v[12:13], v[8:9]" for p in range(4)] +
            [f"v_pk_mul_f32 {vr(T+2*p,2)}, {vr(T+2*p,2)}, {vr(A0+2*p,2)}" for p in range(4)])
def stE(h):
    T = 16 + 8*(h % 3); return [f"v_exp_f32 v{T+e}, v{T+e}" for e in range(8)]
def stB(h):
    T = 16 + 8*(h % 3); return [f"v_pk_fma_f32 {vr(T+2*p,2)}, {vr(T+2*p,2)}, v[10:11], v[10:11]" for p in range(4)]
def stR(h):
    T = 16 + 8*(h % 3); return [f"v_rcp_f32 v{T+e}, v{T+e}" for e in range(8)]
def stC(h):
    A0 = ACC + 8*h; T = 16 + 8*(h % 3); pk = 48 + 4*(h % 4)
    return ([f"v_pk_mul_f32 {vr(T+2*p,2)}, {vr(T+2*p,2)}, {vr(A0+2*p,2)}" for p in range(4)] +
            [f"v_cvt_pk_bf16_f32 v{pk+p}, v{T+2*p}, v{T+2*p+1}" for p in range(4)] +
            [f"buffer_store_dwordx4 {vr(pk,4)}, v1, {WS}, s8 offen offset:{(h//2 % 4)*1024 + (h%2)*512} sc1"])
def mix(tr, nt):
    i = 0
    for k, x in enumerate(tr):
        a(x)
        n = (len(nt) * (k+1)) // len(tr)
        while i < n: a(nt[i]); i += 1
a("s_nop 7\ns_nop 3")
for x in stA(0): a(x)
for h in range(10):
    mix(stE(h), (stC(h-1) if h else []))
    if h == 8: a("s_add_u32 s8, s8, 4096")
    for x in stB(h): a(x)
    mix(stR(h), (stA(h+1) if h < 9 else []))
    if h == 7: a("s_cmp_eq_u32 s10, 10\ns_cbranch_scc1 L_c_short")
for x in stC(9): a(x)
a("s_branch L_c_done")
a("L_c_short:")
for x in stC(7): a(x)
a("L_c_done:")
stamp(4)
def acc_init(z=True):
    for dt in range(5): a(f"ds_read_b64 {vr(144+2*dt,2)}, v2 offset:{15360+32*dt}\nds_read_b64 {vr(154+2*dt,2)}, v3 offset:{18432+32*dt}")
    a("s_waitcnt lgkmcnt(0)")
    for dt in range(5):
        for h in range(2):
            a(f"v_lshlrev_b32 v{AC2+4*dt+2*h}, 16, v{144+2*dt+h}\nv_and_b32 v{AC2+4*dt+2*h+1}, 0xffff0000, v{144+2*dt+h}")
            a(f"v_lshlrev_b32 v10, 16, v{154+2*dt+h}\nv_and_b32 v11, 0xffff0000, v{154+2*dt+h}\nv_pk_add_f32 {vr(AC2+4*dt+2*h,2)}, {vr(AC2+4*dt+2*h,2)}, v[10:11]")
    if z: zero(AC2+20, 60)
a(f"v_mov_b32 v2, {CNT+8}\nv_mov_b32 v3, 1\nds_write_b32 v2, v3")
xb_loads()
zero(AC2+20, 60)
a(f"s_waitcnt vmcnt(0)\ns_mov_b64 exec, 0xff\nbuffer_atomic_or v14, v15, {WS}, s12 offen sc1\ns_mov_b64 exec, -1")
a("s_setprio 0\ns_mov_b32 s35, 0")
stamp(5)
a("s_cmp_eq_u32 s68, 0\ns_cbranch_scc1 L_c_nowpre")
for l in w_pre: a(l)
a("L_c_nowpre:")
acc_init(False)
a("s_cmp_lg_u32 s68, 0\ns_cbranch_scc1 L_g2go")
a("s_branch L_g2w")

a("L_g2:")
g2_setup()
xb_loads()
a("s_waitcnt vmcnt(0)")
acc_init()
a("L_g2w:")
if opt("p1only", 0): endp()
a(wc_prep.replace("s25", "s8").replace("s26", "s9").replace("v174", "v2"))
if not opt("g2only", 0): spoll(sld(9, 8), "s_cmp_lg_u32 s9, 0", sleep=16)
PK = (4, 6, 8)
a(f"s_cmp_eq_u32 s35, 0\ns_cbranch_scc1 L_g_nopark\ns_mul_i32 s10, {WV}, {AREG}")
for p in range(3):
    for i in range(5): a(f"s_add_u32 m0, s10, {5120*p+1024*i}\ns_add_u32 s13, s{22+i}, {1024*PK[p]}\nbuffer_load_dwordx4 v252, {WS}, s13 offen{G2F} lds")
a("L_g_nopark:")
for l in w_pre: a(l)
a("L_g2go:")
if opt("p1only", 0): endp()
hm_issue = sld(14, S_MB)
a("v_mov_b32 v11, 0")
a(hm_issue)
a(f"s_mul_i32 s10, {WV}, {AREG}\nv_add_u32 v1, s10, v252")
for i in range(1, 4):
    a(f"s_sub_u32 s13, {WV}, {i}\ns_and_b32 s13, s13, 3\ns_mul_i32 s13, s13, {AREG}\ns_add_u32 s13, s13, {5120*(i-1)}\nv_add_u32 v{1+i}, s13, v252")
a("v_lshrrev_b32 v10, 2, v0\nv_lshlrev_b32 v10, 7, v10\nv_bfe_u32 v15, v0, 1, 1\nv_lshl_add_u32 v10, v15, 6, v10\nv_and_b32 v15, 1, v0\nv_lshl_add_u32 v10, v15, 3, v10")
a(f"s_lshl_b32 s13, {WV}, 4\ns_add_u32 s13, s13, {YAT}\nv_add_u32 v5, s13, v10")
a(f"s_mul_i32 s13, {WV}, 2560\ns_add_u32 s13, s13, {BREG0}\nv_add_u32 v6, s13, v254\nv_add_u32 v7, s13, v252")
a(f"v_mov_b32 v14, {CNT}")
srd(S_A, P['out'], 2621440)
if not opt("g2only", 0): spoll(hm_issue, "s_and_b32 s13, s14, s28\ns_cmp_eq_u32 s13, s28", sleep=opt('msleep', 4), issued=True)
else: a("s_waitcnt vmcnt(0)")
stamp(6)
for l in ldh(0, 0, 253) + ldh(1, 1024) + ldh(2, 2048): a(l)
a("s_cmp_lg_u32 s35, 0\ns_cbranch_scc1 L_g_pok\ns_mov_b32 s3, 0")
a("L_g_pw:")
a("s_add_u32 s3, s3, 1\ns_cmp_gt_u32 s3, 2000000\ns_cbranch_scc1 L_exit")
a("ds_read_b32 v10, v14\ns_waitcnt lgkmcnt(0)\nv_readfirstlane_b32 s13, v10\ns_cmp_eq_u32 s13, 0\ns_cbranch_scc1 L_g_pw")
a("L_g_pok:")
nld = lambda t: 0 if t > 13 else (4 if (t < 3 or t in PK) else 9)
for t in range(14):
    k = t % 4; nt_ = t + 3; nk = nt_ % 4
    L = []
    if nt_ <= 13:
        o = 1024 * (nt_ % 4)
        if nt_ % 4 == 0: a("\n".join(f"s_add_u32 s{18+i}, s{18+i}, 4096" for i in range(9)))
        L = ldh(nk, o)
        if nt_ in PK: L += [f"ds_read_b128 {vr(G2W[nk]+4*i,4)}, v1 offset:{5120*PK.index(nt_)+1024*i}" for i in range(5)]
        else: L += ldw(nk, o)
    a(f"s_waitcnt vmcnt({nld(t+1)+nld(t+2)})" + (" lgkmcnt(0)" if t in PK else ""))
    if t == 0: stamp(7)
    n = 0
    for i in ((1, 2, 3, 0) if t == 13 else range(4)):
        for dt in range(5):
            acc = AC2 + 4*(5*i+dt)
            a(f"v_mfma_f32_16x16x32_bf16 {vr(acc,4)}, {vr(G2W[k]+4*dt,4)}, {vr(G2H[k]+4*i,4)}, {vr(acc,4)}")
            if n < len(L): a(L[n])
            if t == 13:
                pi = {2: 1, 3: 2, 0: 3}.get(i)
                if pi: a(f"ds_write_b128 v1, {vr(AC2+4*(5*pi+dt),4)} offset:{5120*(pi-1)+1024*dt}")
            n += 1
stamp(8)
a("s_waitcnt lgkmcnt(0)\ns_barrier")
stamp(9)
R_ = 144
for q in range(10): a(f"ds_read_b128 {vr(R_+4*q,4)}, v{2+q//5} offset:{1024*(q%5)}")
for dt in range(5): a(f"ds_read_b64_tr_b16 {vr(16+2*dt,2)}, v5 offset:{2048*dt}")
for q in range(10):
    a(f"s_waitcnt lgkmcnt({14 if q < 5 else 19-q})")
    dt = q % 5
    for h in range(2): a(f"v_pk_add_f32 {vr(AC2+4*dt+2*h,2)}, {vr(AC2+4*dt+2*h,2)}, {vr(R_+4*q+2*h,2)}")
    if q < 5: a(f"ds_read_b128 {vr(R_+40+4*q,4)}, v4 offset:{1024*q}")
for dt in range(5):
    a(f"s_waitcnt lgkmcnt({9-dt})")
    for h in range(2):
        a(f"v_lshlrev_b32 v10, 16, v{16+2*dt+h}\nv_and_b32 v11, 0xffff0000, v{16+2*dt+h}\nv_pk_add_f32 {vr(AC2+4*dt+2*h,2)}, {vr(AC2+4*dt+2*h,2)}, v[10:11]")
a("s_waitcnt lgkmcnt(0)")
for dt in range(5):
    for h in range(2): a(f"v_pk_add_f32 {vr(AC2+4*dt+2*h,2)}, {vr(AC2+4*dt+2*h,2)}, {vr(R_+40+4*dt+2*h,2)}")
    for h in range(2): a(f"v_cvt_pk_bf16_f32 v{32+2*dt+h}, v{AC2+4*dt+2*h}, v{AC2+4*dt+2*h+1}")
    a(f"ds_write_b64 v6, {vr(32+2*dt,2)} offset:{32*dt}")
for q in range(3): a(f"ds_read_b128 {vr(48+4*q,4)}, v7 offset:{1024*q}")
for q in range(3):
    a(f"s_waitcnt lgkmcnt({2-q})\nbuffer_store_dwordx4 {vr(48+4*q,4)}, v{OUTV[q]}, {SA}, s27 offen")
stamp(10)
endp()

a("L_park:")
if opt("p1only", 0): endp()
a(tile_rc(12, 9, 10))
for i in range(1, 5): a(f"v_add_u32 v{1+i}, {55296*i}, v1")
a(f"s_mul_i32 s12, s9, {5*55296}\ns_add_u32 s12, s12, {W2F - 1024}\ns_mov_b32 s10, 0\ns_mov_b32 s3, 0")
spoll(wc_issue, wc_test, sleep=10, issued=True)
a(f"v_mov_b32 v10, {CNT+8}\ns_mov_b32 s11, 0")
a("L_pk_w:")
a("s_add_u32 s11, s11, 1\ns_cmp_gt_u32 s11, 200000\ns_cbranch_scc1 L_exit\ns_sleep 2")
a("ds_read_b32 v11, v10\ns_waitcnt lgkmcnt(0)\nv_readfirstlane_b32 s13, v11\ns_cmp_eq_u32 s13, 0\ns_cbranch_scc1 L_pk_w")
stamp(11)
a("L_pk_loop:")
for p in range(3):
    a(f"s_add_u32 s13, s12, {1024*PK[p]}")
    for i in range(5): a(f"s_add_u32 m0, s10, {5120*p+1024*i}\nbuffer_load_dwordx4 v{1+i}, {WS}, s13 offen{G2F} lds")
a(f"s_cmp_eq_u32 s3, 0\ns_cselect_b32 s13, 13, 14\ns_lshl_b32 s13, s13, 10\ns_add_u32 s12, s12, s13\ns_add_u32 s10, s10, {AREG}\ns_add_u32 s3, s3, 1\ns_cmp_lt_u32 s3, 4\ns_cbranch_scc1 L_pk_loop")
a(f"v_mov_b32 v2, {CNT}\nv_mov_b32 v3, 1\ns_waitcnt vmcnt(0)\nds_write_b32 v2, v3\ns_waitcnt lgkmcnt(0)")
stamp(12)
endp()

a("L_fetch:")
if opt("p1only", 0): endp()
a(tile_rc(8, 9, 10))
a("s_mul_i32 s11, s8, 81920")
a(f"v_mov_b32 v1, 0\ns_lshl_b32 s13, s9, 2\ns_add_u32 s13, s13, s{S_XR}\ns_lshl_b32 s13, s13, 7\ns_add_u32 s13, s13, {YAC}")
spoll(sld(12, 13), "s_cmp_ge_u32 s12, 80", sleep=opt('ysleep', 12))
stamp(11)
a(f"s_mul_i32 s10, s9, 10240\ns_add_u32 s11, s11, s10\ns_add_u32 s11, s11, {YA}\nv_lshlrev_b32 v1, 4, v0")
for q in range(10):
    a(f"buffer_load_dwordx4 {vr(16+4*q,4)}, v1, {WS}, s11 offen sc1\ns_add_u32 s11, s11, 1024")
a(f"v_add_u32 v1, {YAT}, v1")
for q in range(10):
    a(f"s_waitcnt vmcnt({9-q})\nds_write_b128 v1, {vr(16+4*q,4)} offset:{1024*q}")
a("s_waitcnt lgkmcnt(0)")
stamp(12)
a("s_barrier")
endp()

c_issue = sld(33, 100)
c_test = "s_cmp_ge_u32 s33, 64"
a("L_aux:")
a(f"s_sub_u32 s8, s{S_J}, s8\ns_lshl_b32 s9, s{S_XC}, 3\ns_add_u32 s8, s8, s9\ns_mul_i32 s9, s{S_XR}, 20\ns_add_u32 s9, s9, s8\ns_lshl_b32 s{S_CH}, s9, 3\ns_add_u32 s{S_CH}, s{S_CH}, {WV}")
a("s_cmp_lg_u32 s8, 16\ns_cbranch_scc1 L_noclr")
a(f"s_lshl_b32 s10, s{S_XR}, 15\ns_lshl_b32 s11, {WV}, 12\ns_add_u32 s10, s10, s11\ns_add_u32 s10, s10, {CLR}\nv_lshlrev_b32 v1, 4, v0")
zero(4, 4)
for i in range(4): a(f"buffer_store_dwordx4 v[4:7], v1, {WS}, s10 offen offset:{1024*i} sc1")
a("L_noclr:")
a(f"s_lshl_b32 s10, s{S_CH}, 8\nv_lshl_add_u32 v1, v0, 2, s10")
for i, nm in enumerate(["are", "aim", "bre", "bim", "cre", "cim"]):
    a(f"global_load_dword v{240+i}, v1, s[{P[nm]}:{P[nm]+1}]{NT1}")
a(f"s_lshl_b32 s10, s{S_CH}, 1\nv_mov_b32 v1, s10\nglobal_load_ushort v246, v1, s[{P['ldt']}:{P['ldt']+1}]")
a(f"global_load_ushort v147, v1, s[{P['dsk']}:{P['dsk']+1}]")
a(f"s_and_b32 s15, {WV}, 3\ns_mov_b32 s35, 0\nv_mov_b32 v230, 0\ns_mov_b32 s71, 0\nv_mov_b32 v146, 0\nv_mov_b32 v253, 0")
RAW, DV = 164, 64
a("s_cmp_ge_u32 s8, 16\ns_cbranch_scc1 L_nolnwg")
a(f"s_cmp_lt_u32 {WV}, 4\ns_cbranch_scc1 L_cs")
a(f"s_lshl_b32 s9, s{S_XR}, 4\ns_add_u32 s9, s9, s8")
a("s_lshl_b32 s10, s9, 5\ns_lshl_b32 s11, s15, 3\ns_add_u32 s14, s10, s11\ns_mul_i32 s11, s14, 1280")
a("v_lshrrev_b32 v2, 4, v0\nv_and_b32 v3, 15, v0\nv_mul_u32_u24 v1, 2560, v2\nv_lshl_add_u32 v1, v3, 4, v1")
for sg in range(2):
    for i in range(5):
        a(f"buffer_load_dwordx4 {vr(RAW+20*sg+4*i,4)}, v1, {SA}, s11 offen offset:{sg*1280+i*256}{NT}")
a(f"s_setprio 1\nv_mov_b32 v4, {CNT}\nv_mov_b32 v5, 0\nds_write_b32 v4, v5\ns_waitcnt lgkmcnt(0)\ns_barrier")
a(f"s_lshl_b32 s11, s15, 4\ns_add_u32 s11, s11, {BREG0}\nv_lshlrev_b32 v8, 2, v2\nv_add_u32 v8, s11, v8")
for i in range(5):
    a(f"v_add_u32 v4, {16*i}, v3\nv_mul_u32_u24 v5, 3277, v4\nv_lshrrev_b32 v5, 16, v5\nv_mul_u32_u24 v5, {BREG-20*528}, v5\nv_mul_u32_u24 v4, 528, v4\nv_add3_u32 v{150+i}, v4, v5, v8")
a("s_mov_b32 s35, 1\ns_branch L_kgen")
a("L_cs:")
a(f"s_lshl_b32 s9, s{S_XR}, 3\ns_and_b32 s10, s8, 7\ns_add_u32 s9, s9, s10")
a(f"s_mul_i32 s10, s{S_XC}, 6\ns_sub_u32 s10, 30, s10\ns_cmp_ge_u32 s9, s10\ns_cbranch_scc1 L_csn")
a(f"s_mul_i32 s10, s{S_XC}, 30\ns_add_u32 s9, s9, s10")
a("s_mul_i32 s12, s15, 552960\ns_lshl_b32 s11, s9, 6\ns_add_u32 s12, s12, s11")
a(f"v_and_b32 v4, 31, v0\nv_lshlrev_b32 v4, 1, v4\nv_add_u32 v4, s11, v4\nglobal_load_ushort v145, v4, s[{P['b1']}:{P['b1']+1}]")
a("v_lshrrev_b32 v2, 2, v0\nv_and_b32 v3, 3, v0\nv_mul_u32_u24 v1, 3456, v2\nv_lshl_add_u32 v230, v3, 4, v1\ns_mov_b32 s35, 2\ns_mov_b32 s71, s12")
a("L_csn:")
a("s_barrier\ns_branch L_kwait")
a("L_nolnwg:")
a("s_cmp_lg_u32 s8, 16\ns_cbranch_scc1 L_kwait")
a(f"s_waitcnt vmcnt(8)\ns_barrier\ns_cmp_lg_u32 {WV}, 0\ns_cbranch_scc1 L_kwait")
a(f"s_lshl_b32 s10, s{S_XR}, 2\nv_mov_b32 v2, 1\ns_mov_b64 exec, 1\nbuffer_store_dword v2, v4, {DBG}, s10 offen sc1\ns_mov_b64 exec, -1")
stamp(1)
a("s_waitcnt vmcnt(1)\ns_branch L_kgen")
a("L_kwait:")
a("s_waitcnt vmcnt(0)")
a("L_kgen:")
a(f"s_mul_i32 s69, {WV}, {AREG}")
a("v_and_b32 v238, 3, v0\nv_lshlrev_b32 v238, 2, v238\ns_mov_b32 s68, 0\ns_mov_b32 m0, s69")
a(lnc_addr)
a(f"s_cmp_lt_u32 {WV}, 4\ns_cbranch_scc1 L_kg_nocs")
conv_setup()
a("L_kg_nocs:")
a("v_and_b32 v2, 31, v0\nv_mul_u32_u24 v2, 272, v2\nv_lshrrev_b32 v3, 5, v0\nv_lshl_add_u32 v2, v3, 4, v2\nv_add_u32 v228, s69, v2")
KA = 208
zero(KA, 16)
a("s_mov_b32 s3, 0\ns_waitcnt vmcnt(10)")
stamp(3)
a(f"v_lshlrev_b32 v3, 16, v246\nv_mul_f32 v3, {f32(math.log2(math.e))}, v3\nv_exp_f32 v3, v3\nv_cvt_pk_bf16_f32 v3, v3, v3\nv_lshlrev_b32 v229, 16, v3")
a("s_cmp_eq_u32 s35, 1\ns_cbranch_scc1 L_ln")
a("L_kg_loop:")
for i in range(6): a(f"v_and_b32 v{4+i}, 0xffff0000, v{240+i}\nv_lshlrev_b32 v{240+i}, 16, v{240+i}")
for i in range(4): a(f"v_mul_f32 v{4+i}, v229, v{4+i}")
a(f"v_mul_f32 v4, {f32(math.log2(math.e))}, v4\nv_mul_f32 v5, {f32(1/(2*math.pi))}, v5")
Z1, Z8, Z256, W = 10, 12, 14, 16
for k, z in ((1, Z1), (8, Z8), (256, Z256)):
    a(f"v_mul_f32 v20, {f32(k)}, v4\nv_mul_f32 v21, {f32(k)}, v5\nv_fract_f32 v21, v21\nv_exp_f32 v20, v20\nv_cos_f32 v{z}, v21\nv_sin_f32 v{z+1}, v21")
    neg = " neg_hi:[0,1]" if k == 8 else ""
    a(f"v_pk_mul_f32 {vr(z,2)}, {vr(z,2)}, v[20:21] op_sel:[0,0] op_sel_hi:[1,0]{neg}")
cmul(W, 8, 6, 20)
rowof = {}
h0 = [[0,1,2,3],[4,5,6,7],[1024,1032,1280,1288],[1536,1544,1792,1800]]
h1 = [[256,258,260,262],[264],[512,516,520],[768,772,776]]
for q in range(4):
    for i, v in enumerate(h0[q]): rowof[v] = 8*q + i
    for i, v in enumerate(h1[q]): rowof[v] = 8*q + 4 + i
cv = [0]
def put(src, row):
    t = 24 + (cv[0] % 4); cv[0] += 1
    a(f"v_cvt_pk_bf16_f32 v{t}, v{src}, v{src+1}\nds_write_addtid_b32 v{t} offset:{row*272}")
G = {0: W}
opsG = [lambda: put(W, rowof[0])]
for b in range(1, 9):
    G[b] = 32 + 2*b
    opsG.append(lambda b=b: (cmul(G[b], G[b-1], Z1, 20), put(G[b], rowof[b]) if b < 8 else None))
Pq = {1: Z256}
for q in range(1, 8):
    if q > 1:
        Pq[q] = 52 + 2*(q & 1)
        opsG.append(lambda q=q: cmul(Pq[q], Pq[q-1], Z256, 20))
    ds = {1: (0,2,4,6,8), 2: (0,4,8), 3: (0,4,8)}.get(q, (0, 8))
    for n, d in enumerate(ds):
        opsG.append(lambda q=q, d=d, n=n: (cmul(56+2*(n&1), G[d], Pq[q], 20), put(56+2*(n&1), rowof[256*q+d])))
opsE = [lambda: a(f"v_mov_b32 v28, 0x3f80\nds_write_addtid_b32 v28 offset:{32*272}"), lambda: put(Z8, 33)]
for j in range(2, 32):
    src = Z8 if j == 2 else 60 + 2*((j-1) & 1)
    dst = 60 + 2*(j & 1)
    opsE.append(lambda src=src, dst=dst, j=j: (cmul(dst, src, Z8, 22), put(dst, 32+j)))
for i in range(max(len(opsG), len(opsE))):
    if i < len(opsE): opsE[i]()
    if i < len(opsG): opsG[i]()
    if i < 10:
        a(f"s_cmp_lg_u32 s35, 2\ns_cbranch_scc1 L_kg_nl{i}\nbuffer_load_dwordx4 {vr(RAW+4*i,4)}, v230, {SB}, s71 offen{NT}\ns_add_u32 s71, s71, 55296")
        a(f"L_kg_nl{i}:")
    if i == opt("lnsig", 14):
        a("s_cmp_lg_u32 s35, 3\ns_cbranch_scc1 L_kg_nsig")
        a(f"s_lshl_b32 s10, s15, 11\ns_add_u32 s10, s10, {LNC}\nv_lshlrev_b32 v4, 7, v0\nv_mov_b32 v5, 1")
        a(f"s_waitcnt vmcnt(0)\ns_mov_b64 exec, 0xffff\nbuffer_atomic_add v5, v4, {WS}, s10 offen sc1\ns_mov_b64 exec, -1")
        stamp(10)
        a("s_mov_b32 s35, 4\ns_branch L_touch")
        a("L_kg_nsig:")
for k in range(8):
    a(f"ds_read_b128 {vr(64+8*k,4)}, v228 offset:{32*k}\nds_read_b128 {vr(68+8*k,4)}, v228 offset:{32*272+32*k}")
for k in range(8):
    a(f"s_waitcnt lgkmcnt({14-2*k})")
    a(f"v_mfma_f32_32x32x16_bf16 {vr(KA,16)}, {vr(64+8*k,4)}, {vr(68+8*k,4)}, {vr(KA,16)}")
clr_s = f"s_load_dwordx4 s[28:31], s[{P['dbg']}:{P['dbg']+1}], 0"
a("s_cmp_lg_u32 s3, 0\ns_cbranch_scc1 L_kg_done")
a("s_mov_b32 s3, 1\ns_cmp_lg_u32 s35, 2\ns_cbranch_scc1 L_kg_loop")
a(clr_s)
a("s_branch L_csum")
def need_clr(tag):
    a(f"s_waitcnt lgkmcnt(0)\ns_and_b32 s28, s28, s29\ns_and_b32 s30, s30, s31\ns_and_b32 s28, s28, s30\ns_cbranch_scc1 L_clr_{tag}")
    poll(clr_issue(239, 238), clr_test(239), sleep=8, issued=False)
    a(f"L_clr_{tag}:")
def touch():
    if not opt("touch", 0): return
    n = 270 if RS else 135
    a(f"s_and_b32 s10, s8, 7\ns_lshl_b32 s10, s10, 3\ns_add_u32 s10, s10, {WV}")
    if RS: a(f"s_and_b32 s11, s2, 7\ns_lshl_b32 s11, s11, 3\ns_add_u32 s10, s10, s11\ns_and_b32 s10, s10, 63\ns_mul_i32 s10, s10, {n*128}")
    else: a(f"s_lshl_b32 s11, s{S_XR}, 4\ns_add_u32 s10, s10, s11\ns_and_b32 s10, s10, 63\ns_mul_i32 s10, s10, {n*128}\ns_mul_i32 s11, s{S_XC}, 1105920\ns_add_u32 s10, s10, s11")
    a(f"s_add_u32 s10, s10, {W2F}\nv_lshlrev_b32 v4, 7, v0")
    for i in range(n // 64): a(f"buffer_load_dword v144, v4, {WS}, s10 offen sc1\ns_add_u32 s10, s10, 8192")
    a(few((1 << (n % 64)) - 1, f"buffer_load_dword v144, v4, {WS}, s10 offen sc1"))
def lds_wait(tag, target):
    a("s_mov_b32 s12, 0")
    a(f"L_sb{tag}:")
    a("s_add_u32 s12, s12, 1\ns_cmp_gt_u32 s12, 2000000\ns_cbranch_scc1 L_exit")
    a(f"ds_read_b32 v15, v14\ns_waitcnt lgkmcnt(0)\nv_readfirstlane_b32 s11, v15\ns_cmp_lt_u32 s11, {target}\ns_cbranch_scc1 L_sb{tag}")
a("L_ln:")
a(f"s_setprio 2\nv_mov_b32 v14, {CNT}\nv_lshrrev_b32 v2, 4, v0\ns_mov_b32 s12, 0x3f803f80")
zero(4, 4)
a("s_waitcnt vmcnt(0)")
stamp(1)
a(clr_s)
for sg in range(2):
    for k in range(20):
        a(f"v_dot2_f32_bf16 v{4+2*sg+(k&1)}, v{RAW+20*sg+k}, s12, v{4+2*sg+(k&1)}")
a("v_add_f32 v4, v4, v5\nv_add_f32 v6, v6, v7")
def unp(sg, ks):
    for k in ks:
        d = DV + 40*sg + 2*k
        a(f"v_lshlrev_b32 v{d}, 16, v{RAW+20*sg+k}\nv_and_b32 v{d+1}, 0xffff0000, v{RAW+20*sg+k}")
for n, sh in enumerate((8, 4, 2, 1)):
    a(f"v_add_f32_dpp v4, v4, v4 row_ror:{sh} row_mask:0xf bank_mask:0xf\nv_add_f32_dpp v6, v6, v6 row_ror:{sh} row_mask:0xf bank_mask:0xf")
    unp(0, range(5*n, 5*n+5))
a(f"v_mul_f32 v4, {f32(1/640)}, v4\nv_mul_f32 v6, {f32(1/640)}, v6")
a("v_cvt_pk_bf16_f32 v5, v4, v6\nv_lshlrev_b32 v8, 16, v5\nv_and_b32 v9, 0xffff0000, v5")
a("v_sub_f32 v56, 0, v8\nv_sub_f32 v57, 0, v8\nv_sub_f32 v58, 0, v9\nv_sub_f32 v59, 0, v9")
zero(10, 4)
unp(1, range(20))
for sg in range(2):
    for k in range(20):
        d = DV + 40*sg + 2*k
        a(f"v_pk_add_f32 {vr(d,2)}, {vr(d,2)}, {vr(56+2*sg,2)}")
    for k in range(20):
        d = DV + 40*sg + 2*k
        a(f"v_pk_fma_f32 {vr(10+2*sg,2)}, {vr(d,2)}, {vr(d,2)}, {vr(10+2*sg,2)}")
a("v_add_f32 v10, v10, v11\nv_add_f32 v12, v12, v13")
def rnd(sg, ks):
    for k in ks:
        d = DV + 40*sg + 2*k
        a(f"v_cvt_pk_bf16_f32 v{RAW+20*sg+k}, v{d}, v{d+1}")
for n, sh in enumerate((8, 4, 2, 1)):
    a(f"v_add_f32_dpp v10, v10, v10 row_ror:{sh} row_mask:0xf bank_mask:0xf\nv_add_f32_dpp v12, v12, v12 row_ror:{sh} row_mask:0xf bank_mask:0xf")
    rnd(0, range(2*n, 2*n+2))
a("v_sub_f32 v4, v4, v8\nv_sub_f32 v6, v6, v9\nv_mul_f32 v4, v4, v4\nv_mul_f32 v6, v6, v6")
a(f"s_mov_b32 s12, {f32(1/640)}\nv_fma_f32 v4, v10, s12, -v4\nv_fma_f32 v6, v12, s12, -v6")
a("v_max_f32 v4, 0, v4\nv_max_f32 v6, 0, v6")
a("v_cvt_pk_bf16_f32 v7, v4, v6\nv_lshlrev_b32 v4, 16, v7\nv_and_b32 v6, 0xffff0000, v7")
a(f"v_add_f32 v4, {f32(1e-5)}, v4\nv_add_f32 v6, {f32(1e-5)}, v6")
a("v_cvt_pk_bf16_f32 v7, v4, v6\nv_lshlrev_b32 v4, 16, v7\nv_and_b32 v6, 0xffff0000, v7")
a("v_sqrt_f32 v4, v4\nv_sqrt_f32 v6, v6\nv_cvt_pk_bf16_f32 v7, v4, v6")
a("v_lshlrev_b32 v4, 16, v7\nv_and_b32 v6, 0xffff0000, v7\nv_rcp_f32 v60, v4\nv_rcp_f32 v61, v4\nv_rcp_f32 v62, v6\nv_rcp_f32 v63, v6")
a("v_and_b32 v12, 0xffff, v5\nv_or_b32 v12, v12, v4\nv_lshrrev_b32 v13, 16, v5\nv_or_b32 v13, v13, v6")
a(f"s_lshl_b32 s11, s14, 2\ns_add_u32 s11, s11, {STATS}\nv_lshlrev_b32 v1, 3, v2")
need_clr("ln")
a(f"s_mov_b32 exec_lo, 0x10001\ns_mov_b32 exec_hi, 0x10001\nbuffer_store_dwordx2 v[12:13], v1, {WS}, s11 offen sc1\ns_mov_b64 exec, -1")
stamp(2)
rnd(0, range(8, 20)); rnd(1, range(20))
unp(0, range(20)); unp(1, range(20))
for sg in range(2):
    for k in range(20):
        d = DV + 40*sg + 2*k
        a(f"v_pk_mul_f32 {vr(d,2)}, {vr(d,2)}, {vr(60+2*sg,2)}")
for k in range(20):
    for h in range(2):
        d = DV + 2*k + h
        a(f"v_cvt_pk_bf16_f32 v{d}, v{d}, v{d+40}")
    d = DV + 2*k
    a(f"ds_write2_b32 v{150+k//4}, v{d}, v{d+1} offset0:{(k%4)*32} offset1:{(k%4)*32+16}")
a("v_mov_b32 v15, 1\nds_add_u32 v14, v15")
a("v_lshrrev_b32 v3, 5, v0\nv_lshlrev_b32 v2, 4, v0\nv_lshl_add_u32 v1, v3, 4, v2\nv_add_u32 v1, s69, v1")
a("s_mul_i32 s10, s9, 40960\ns_mul_i32 s11, s15, 10240\ns_add_u32 s10, s10, s11")
lds_wait("b", 256)
for i in range(10): a(f"ds_read_b128 {vr(RAW+4*i,4)}, v1 offset:{1056*i}")
for i in range(10):
    a(f"s_waitcnt lgkmcnt({9-i})\nbuffer_store_dwordx4 {vr(RAW+4*i,4)}, v2, {WS}, s10 offen sc1\ns_add_u32 s10, s10, 1024")
a("s_setprio 0\ns_mov_b32 s35, 3\ns_branch L_kg_loop")
a("L_csum:")
a("s_setprio 3\ns_mov_b32 s12, 0x00003f80\ns_mov_b32 s13, 0x3f800000\nv_and_b32 v3, 3, v0")
zero(4, 8)
a("s_waitcnt vmcnt(0)")
for i in range(10):
    for k in range(4):
        a(f"v_dot2_f32_bf16 v{4+2*k}, v{RAW+4*i+k}, s12, v{4+2*k}\nv_dot2_f32_bf16 v{5+2*k}, v{RAW+4*i+k}, s13, v{5+2*k}")
for sh in (8, 4):
    for r in range(8): a(f"v_add_f32_dpp v{4+r}, v{4+r}, v{4+r} row_ror:{sh} row_mask:0xf bank_mask:0xf")
a("v_lshrrev_b32 v12, 4, v0\nv_lshlrev_b32 v12, 7, v12\nv_lshl_add_u32 v12, v3, 5, v12\nv_add_u32 v12, s69, v12")
a("ds_write_b128 v12, v[4:7]\nds_write_b128 v12, v[8:11] offset:16")
a("v_and_b32 v12, 31, v0\nv_lshl_add_u32 v13, v12, 2, s69")
for p in range(4): a(f"ds_read_b32 v{16+p}, v13 offset:{128*p}")
a("s_waitcnt lgkmcnt(0)\nv_add_f32 v16, v16, v17\nv_add_f32 v18, v18, v19\nv_add_f32 v16, v16, v18")
a("v_cvt_pk_bf16_f32 v4, v16, v16\nv_lshlrev_b32 v5, 16, v4\nv_sub_f32 v5, v16, v5")
a("v_cvt_pk_bf16_f32 v6, v16, v5\nv_and_b32 v7, 0xffff0000, v6\nv_sub_f32 v7, v5, v7")
a("v_cvt_pk_bf16_f32 v7, v7, v7\nv_and_b32 v7, 0xffff, v7\nv_or_b32 v7, 1, v7")
a(f"s_lshl_b32 s12, s9, 8\ns_mul_i32 s13, s15, {CSP}\ns_add_u32 s12, s12, s13\ns_add_u32 s12, s12, {CSUM}\nv_lshlrev_b32 v12, 3, v12")
need_clr("cs")
a("v_lshl_or_b32 v7, v145, 16, v7")
a(f"s_mov_b32 exec_hi, 0\nbuffer_store_dwordx2 v[6:7], v12, {WS}, s12 offen sc1\ns_mov_b32 exec_hi, -1")
stamp(2)
touch()
a("s_setprio 1\ns_mov_b32 s35, 4\ns_branch L_kg_loop")
a("L_touch:")
touch()
a("s_branch L_kg_nsig")
a("L_kg_done:")
a("s_cmp_ge_u32 s35, 3\ns_cbranch_scc1 L_clr_fin")
a(clr_s)
need_clr("fin")
a(f"s_waitcnt lgkmcnt(0)\ns_cmp_lt_u32 {WV}, 4\ns_cbranch_scc1 L_kg_nc")
a(c_issue)
a("L_kg_nc:")
a("s_nop 7")
stamp(4)
a("s_setprio 0")
r = lambda i: KA + i
a("v_lshlrev_b32 v1, 4, v0\nv_add_u32 v13, s69, v1")
zero(4, 4)
for i in range(3): a(f"ds_write_b128 v13, v[4:7] offset:{9632+1024*i}")
a("v_and_b32 v3, 31, v0\nv_lshlrev_b32 v2, 4, v3\nv_sub_u32 v2, s69, v2\nv_add_u32 v2, 512, v2")
def pack(o, pairs):
    for i, (lo, hi) in enumerate(pairs): a(f"v_cvt_pk_bf16_f32 v{o+i}, {lo}, {hi}")
R = lambda i: f"v{KA+i}"
pack(16, [(R(7),R(6)),(R(5),R(4)),(R(3),R(2)),(R(1),R(0))])
pack(20, [(R(4),R(3)),(R(2),R(2)),(R(2),R(1)),(R(0),R(0))])
pack(24, [("0","0"),(R(9),R(9)),(R(9),R(8)),(R(8),R(8))])
pack(28, [(R(9),R(10)),(R(13),R(14))])
pack(30, [(R(9),R(11)),(R(13),R(15))])
a(f"v_and_b32 v8, 1, v3\nv_and_b32 v10, 30, v3\nv_mul_u32_u24 v9, 320, v8\nv_lshlrev_b32 v8, 9, v8\ns_add_u32 s10, s69, {T2}\nv_sub_u32 v10, s10, v10\nv_add_u32 v8, v8, v10\nv_add_u32 v9, v9, v10")
a("s_mov_b32 exec_hi, 0")
a(f"ds_write_b128 v2, v[16:19] offset:{IMG+1072-512}")
for q in range(4):
    for cp in range(2): a(f"ds_write_b16{'_d16_hi' if q & 1 else ''} v9, v{30+q//2} offset:{T3-T2 + 160*cp + 2*(63-16*q-cp)}")
a("s_mov_b32 exec_hi, -1\ns_mov_b32 exec_lo, 0")
a(f"ds_write_b128 v2, v[20:23] offset:{IMG+560-512}")
for q in range(2):
    for w in range(2):
        for cp in range(2): a(f"ds_write_b16{'_d16_hi' if w else ''} v8, v{28+q} offset:{256*w + 128*cp + 2*(47-16*q-cp)}")
a(f"s_mov_b32 exec_hi, 1\nds_write_b128 v2, v[24:27] offset:{IMG+48-512}\nds_write_b16 v8, v4 offset:{2*47}\nds_write_b16 v8, v4 offset:{128+2*46}\ns_mov_b64 exec, -1")
a(f"s_cmp_lt_u32 {WV}, 4\ns_cbranch_scc1 L_kexp")
a("L_cv_common:")
B2, B3 = 164, 188
a(f"v_mov_b32 v5, s69\nds_read_u16 v34, v5 offset:{T2 + 6*128 + 2*16}")
a(f"ds_read_b128 v[16:19], v{cLIN} offset:{IMG}\nds_read_b64 v[20:21], v{cLIN} offset:{IMG+16}\nds_read_b128 v[24:27], v{cIMG2} offset:{IMG+1024}\nds_read_b64 v[28:29], v{cIMG2} offset:{IMG+1040}")
for i in range(6):
    for h in range(2): a(f"ds_read2_b32 {vr(B2+4*i+2*h,2)}, v{cT2} offset0:{4*i+2*h} offset1:{4*i+2*h+1}")
for d in range(4):
    for h in range(2): a(f"ds_read2_b32 {vr(B3+4*d+2*h,2)}, v{cT3} offset0:{8*(3-d)+2*h} offset1:{8*(3-d)+2*h+1}")
zero(4, 4)
a(f"s_mov_b64 exec, 0x3fffffff\nds_write_b128 v{cLIN}, v[4:7] offset:{UB-480}\ns_mov_b64 exec, 3")
for o in (W3B-48, W5B-48, W7B-48, W9B-48, W9B+2032): a(f"ds_write_b128 v{cLIN}, v[4:7] offset:{o}")
a("s_mov_b64 exec, -1\nv_lshl_or_b32 v5, v147, 16, v147")
for k in range(4): a(f"v_and_b32 v{AD+k}, v{AD+k}, v5")
a("s_waitcnt lgkmcnt(0)")
a("s_bitcmp1_b32 s68, 1\ns_cbranch_scc1 L_cv_u1")
a(c_test)
a("s_cbranch_scc0 L_cv_u1")
uloads()
a("s_mov_b32 s68, 3")
a("L_cv_u1:")
a("v_lshl_or_b32 v5, v34, 16, v34")
for k in range(4): a(f"v_and_b32 v{AB+k}, v{AB+k}, v5")
for rr, (D, va, off) in enumerate(((16, cKW1, 0), (24, cKW2, 4608))):
    O = 64 + 16*rr
    for i in range(4):
        a(f"v_mov_b32 v{O+4*i}, v{D+i}\nv_mov_b32 v{O+4*i+1}, v{D+i+1}")
        a(f"v_alignbit_b32 v{O+4*i+2}, v{D+i+1}, v{D+i}, 16\nv_alignbit_b32 v{O+4*i+3}, v{D+i+2}, v{D+i+1}, 16")
        a(f"ds_write_b128 v{va}, {vr(O+4*i,4)} offset:{off + 16*i}")
a(f"ds_read_b64 {vr(A16,2)}, v{cA0}\nds_read_b64 {vr(A16+2,2)}, v{cA1}\nv_add_u32 v8, 2304, v{cA0}\nv_add_u32 v9, 2304, v{cA1}\nv_mov_b32 v10, v{cB}\nv_mov_b32 v13, v{cLIN}")
stamp(5)
a("s_bitcmp1_b32 s68, 1\ns_cbranch_scc1 L_cv_u2")
spoll(c_issue, c_test, sleep=opt("lsleep", 6))
uloads()
a("L_cv_u2:")
stamp(6)
for q in range(4): a(f"s_waitcnt vmcnt({3-q})\nds_write_b128 v13, {vr(148+4*q,4)} offset:{UB+1024*q}")
SET = [(16, 24), (56, 64)]; CA = 96
a("L_cv_win:")
for k in range(3):
    o = UB - 16 + 1024*k
    a(f"ds_read_b64 {vr(128+8*k,2)}, v13 offset:{o-8}\nds_read_b128 {vr(130+8*k,4)}, v13 offset:{o}\nds_read_b64 {vr(134+8*k,2)}, v13 offset:{o+16}")
for k in range(3):
    D = 128 + 8*k; Pf = 16
    lo, hi = (0, 16) if k < 2 else (2, 14)
    a(f"s_waitcnt lgkmcnt({6 if k == 0 else 7 if k == 1 else 8})")
    for e in range(lo, hi):
        a(f"v_lshlrev_b32 v{Pf+e}, 16, v{D+e//2}" if e % 2 == 0 else f"v_and_b32 v{Pf+e}, 0xffff0000, v{D+e//2}")
    for e in range(lo+1, hi): a(f"v_add_f32 v{Pf+e}, v{Pf+e}, v{Pf+e-1}")
    for h, base in ((1, W3B), (2, W5B), (3, W7B), (4, W9B)):
        if k == 2 and h > 2: continue
        T = 32 + 12*(h & 1)
        for i in range(8):
            b = 4+i-h-1
            a(f"v_sub_f32 v{T+i}, v{Pf+4+i+h}, v{Pf+b}" if b >= lo else f"v_mov_b32 v{T+i}, v{Pf+4+i+h}")
        for i in range(4): a(f"v_cvt_pk_bf16_f32 v{T+8+i}, v{T+2*i}, v{T+2*i+1}")
        a(f"ds_write_b128 v13, {vr(T+8,4)} offset:{base-16+1024*k}")
a("L_cv_direct:")
def rd(st):
    A_, B_ = SET[st]; Rr = []
    for x in range(2):
        Rr.append(f"ds_read_b64 {vr(A_+4*x,2)}, v8 offset:{2304*(1-x)}")
        Rr.append(f"ds_read_b64 {vr(A_+4*x+2,2)}, v9 offset:{2304*(1-x)}")
    for b in range(8): Rr.append(f"ds_read_b128 {vr(B_+4*b,4)}, v10 offset:{512*b}")
    return Rr
advk = ["v_subrev_u32 v8, 288, v8", "v_subrev_u32 v9, 288, v9", "v_subrev_u32 v10, 64, v10"]
for x in rd(0) + advk: a(x)
a(f"s_setprio {opt('cprio', 2)}\ns_mov_b32 s3, 0\ns_waitcnt lgkmcnt(0)")
if PROF: a("s_cmp_lt_u32 s4, 4\ns_cbranch_scc1 L_ns7")
stamp(7)
if PROF: a("L_ns7:")
def mf(n, A_, B_, c=None): a(f"v_mfma_f32_16x16x32_bf16 {vr(CA+4*n,4)}, {vr(A_,4)}, {vr(B_,4)}, {c if c else vr(CA+4*n,4)}")
for b in range(8): mf(b, AD, SET[0][1]+4*b, "0")
for b in range(6): mf(b+2, A16, SET[0][1]+4*b)
for b in range(4): mf(b+4, AB, SET[0][1]+4*b)
a("L_cv_loop:")
for st in range(2):
    A_, B_ = SET[st]; Rr = rd(1-st); n = 0
    for x in range(2):
        for b in range(8-x):
            mf(x+b, A_+4*x, B_+4*b)
            if n < 6: a(Rr[2*n]); a(Rr[2*n+1])
            elif n < 9: a(advk[n-6])
            if st == 1 and n == 12: a("s_add_u32 s3, s3, 1\ns_cmp_lt_u32 s3, 4")
            n += 1
    a("s_waitcnt lgkmcnt(0)")
a("s_cbranch_scc1 L_cv_loop")
a("L_cv_far:")
for f in range(12):
    for h in range(2): a(f"ds_read_b64_tr_b16 {vr(16+4*f+2*h,2)}, v{cW2} offset:{256*f+128*h}")
    if f == 6: a("s_waitcnt lgkmcnt(8)")
for f in range(4):
    for h in range(2): a(f"ds_read_b64_tr_b16 {vr(64+4*f+2*h,2)}, v{cW3} offset:{512*f+128*h}")
a("s_waitcnt lgkmcnt(8)")
for f in range(12):
    for n in range(2, 8):
        i = f + 8 - 2*n
        if 0 <= i < 6: mf(n, 16+4*f, B2+4*i)
a("s_waitcnt lgkmcnt(0)")
for f in range(4):
    for n in range(4+f, 8): mf(n, 64+4*f, B3+4*(n-f-4))
if PROF: a("s_cmp_lt_u32 s4, 4\ns_cbranch_scc1 L_ns8")
stamp(8)
if PROF: a("L_ns8:")
a(f"s_lshl_b32 s14, s{S_CH}, 7\ns_add_u32 s14, s14, {YA}\ns_nop 7")
for n in range(0, 8, 2):
    o = 16 + 2*n
    a(f"v_cvt_pk_bf16_f32 v{o}, v{CA+4*n}, v{CA+4*n+1}\nv_cvt_pk_bf16_f32 v{o+1}, v{CA+4*n+2}, v{CA+4*n+3}")
    a(f"v_cvt_pk_bf16_f32 v{o+2}, v{CA+4*n+4}, v{CA+4*n+5}\nv_cvt_pk_bf16_f32 v{o+3}, v{CA+4*n+6}, v{CA+4*n+7}")
    a(f"v_permlane16_swap_b32 v{o}, v{o+2}\nv_permlane16_swap_b32 v{o+1}, v{o+3}")
    a(f"buffer_store_dwordx4 {vr(o,4)}, v{cST}, {WS}, s14 offen sc1\ns_add_u32 s14, s14, {8*81920}")
a(f"s_mul_i32 s13, s{S_CH}, 820\ns_lshr_b32 s13, s13, 16\ns_lshl_b32 s14, s13, 9\ns_add_u32 s14, s14, {YAC}\nv_lshlrev_b32 v4, 7, v0\nv_mov_b32 v5, 1")
a(f"s_waitcnt vmcnt(0)\ns_mov_b64 exec, 15\nbuffer_atomic_add v5, v4, {WS}, s14 offen sc1\ns_mov_b64 exec, -1")
a("s_setprio 0")
stamp(9)
a(f"s_cmp_eq_u32 {WV}, 7\ns_cbranch_scc1 L_fetch")
endp()
a("L_kexp:")
for q in range(3): a(f"ds_read_b128 {vr(16+4*q,4)}, v13 offset:{9632+1024*q}")
a(f"s_lshl_b32 s9, s{S_CH}, 12\ns_add_u32 s9, s9, {KD}")
for q in range(3): a(f"s_waitcnt lgkmcnt({2-q})\nbuffer_store_dwordx4 {vr(16+4*q,4)}, v1, {WS}, s9 offen offset:{1024*q} sc1")
a(f"s_lshr_b32 s8, s{S_CH}, 3\ns_lshl_b32 s8, s8, 1\ns_lshr_b32 s9, {WV}, 1\ns_add_u32 s8, s8, s9")
a("s_mul_i32 s9, s8, 1490\ns_lshr_b32 s9, s9, 16\ns_mul_i32 s10, s9, 44\ns_sub_u32 s8, s8, s10")
a("s_cmp_ge_u32 s8, 24\ns_cselect_b32 s10, 1, 0\ns_mul_i32 s11, s10, 24\ns_sub_u32 s8, s8, s11\ns_lshl_b32 s8, s8, 3\ns_lshl_b32 s9, s9, 1\ns_add_u32 s8, s8, s9\ns_add_u32 s8, s8, s10")
a(f"s_lshl_b32 s8, s8, 7\ns_add_u32 s8, s8, {MBOX}\ns_and_b32 s9, {WV}, 1\ns_lshl_b32 s9, 0x1000000, s9\nv_mov_b32 v4, 0\nv_mov_b32 v5, s9")
a(f"s_waitcnt vmcnt(0)\ns_mov_b64 exec, 1\nbuffer_atomic_or v5, v4, {WS}, s8 offen sc1\ns_mov_b64 exec, -1")
stamp(12)
a(f"s_lshl_b32 s8, {WV}, 8\ns_add_u32 s8, s8, s2\ns_cmp_lg_u32 s8, 249\ns_cbranch_scc1 L_norelay")
a(f"v_lshlrev_b32 v4, 7, v0\nv_lshlrev_b32 v6, 6, v0\ns_mov_b32 s8, {W2C}")
poll(few(3, f"buffer_load_dword v5, v6, {DBG}, 0 offen offset:128 sc1"),
     "v_readlane_b32 s9, v5, 0\nv_readlane_b32 s10, v5, 1\ns_add_u32 s9, s9, s10\ns_cmp_ge_u32 s9, 135", sleep=4, issued=False)
stamp(11)
a(f"v_mov_b32 v5, 1\ns_mov_b32 exec_hi, 0\nbuffer_store_dword v5, v4, {WS}, s8 offen offset:1024 sc1\ns_mov_b32 exec_hi, -1")
a("L_norelay:")
a("s_mov_b32 s35, 1\ns_branch L_g2")
a("L_conv:")
if opt("p1only", 0): endp()
a(f"s_mul_i32 s69, {WV}, {AREG}\ns_bitcmp1_b32 s68, 0\ns_cbranch_scc1 L_cv_k1")
spoll(sld(31, S_MB), "s_and_b32 s13, s31, s101", sleep=8)
kloads()
a("L_cv_k1:")
a("s_bitcmp1_b32 s68, 1\ns_cbranch_scc1 L_cv_k2")
a(c_issue)
a("s_waitcnt vmcnt(0)")
a("L_cv_k2:")
a("s_waitcnt vmcnt(4)")
for q in range(3): a(f"ds_write_b128 v{cLIN}, {vr(32+4*q,4)} offset:{9632+1024*q}")
stamp(4)
a("s_branch L_cv_common")

a("L_end:")
if PROF:
    a(f"s_lshl_b32 s93, s2, 3\ns_add_u32 s93, s93, {WV}\ns_lshl_b32 s93, s93, 6\ns_add_u32 s93, s93, {PROFB}")
    a(f"s_memrealtime s[94:95]\ns_waitcnt lgkmcnt(0)\ns_mov_b32 s87, s94\ns_mov_b32 s72, s{S_SPIN}")
    for i in range(16): a(f"v_mov_b32 v{224+i}, s{72+i}")
    a("v_mov_b32 v255, 0\ns_mov_b64 exec, 1")
    for i in range(4): a(f"buffer_store_dwordx4 {vr(224+4*i,4)}, v255, {WS}, s93 offen offset:{16*i}")
    if opt("dbgmax", 0):
        a(f"v_not_b32 v238, v238\ns_and_b32 s93, {WV}, 3\ns_cmp_lg_u32 s93, 0\ns_cbranch_scc1 L_exit")
        sel0 = {1: 14, 2: 15, 3: 1, 4: 2, 5: 5, 6: 6, 7: 8, 8: 10}
        sel4 = {9: 10, 10: 4, 11: 7, 12: 8, 13: 9}
        a(f"s_cmp_lg_u32 {WV}, 0\ns_cbranch_scc1 L_dbg4")
        for d, i in sel0.items(): a(f"buffer_atomic_umax v{224+i}, v255, {DBG}, 0 offen offset:{4*d} sc1")
        a("s_branch L_exit")
        a("L_dbg4:")
        for d, i in sel4.items(): a(f"buffer_atomic_umax v{224+i}, v255, {DBG}, 0 offen offset:{4*d} sc1")
a("L_exit:")
a("s_endpgm")

hdr = open("cdna_kernels/%s.s.ref" % NAME).read().split("; Override launch")[0]
out = hdr + "; @launch grid=(256,1,1) block=(512,1,1) lds=163840\n"
out += '.amdgcn_target "amdgcn-amd-amdhsa--gfx950"\n.text\n' + a.text()
out += f""".section .rodata,"a"
.p2align 6
.amdhsa_kernel {KN}
  .amdhsa_next_free_vgpr 256
  .amdhsa_next_free_sgpr 102
  .amdhsa_accum_offset 256
  .amdhsa_group_segment_fixed_size 0
  .amdhsa_kernarg_size 136
  .amdhsa_user_sgpr_count 2
  .amdhsa_user_sgpr_kernarg_segment_ptr 1
  .amdhsa_system_sgpr_workgroup_id_x 1
.end_amdhsa_kernel
"""
path = [x for x in sys.argv[1:] if not x.startswith("--")]
open(path[0] if path else "f.s", "w").write(out)
```

```python
import sys, struct, math
sys.path.insert(0, "dev")
from asmlib import Asm, vr, sr

NAME = "parallel_sum__ssm_conv_s4__dense_activation_gelu__prompt"
KN = NAME + "_kernel"
PROF = "--prof" in sys.argv
def opt(name, default):
    for x in sys.argv:
        if x.startswith("--%s=" % name): return int(x.split("=")[1])
    return default
def f32(x): return "0x%08x" % struct.unpack("<I", struct.pack("<f", x))[0]

XNT, KD, YA, W2F = 0x000000, 0x280000, 0x500000, 0x780000
CLR = 0x9A0000
STATS, CSUM, MBOX, LNC, W2C, YAC = CLR, CLR+0x2000, CLR+0x10000, CLR+0x18000, CLR+0x1C000, CLR+0x1A000
CSP = 13824
PROFB, HF = 0x9C0000, 0xA00000
WS_SIZE = 0x1100000
OOB = "0x7f000000"
P = dict(u=16, are=18, aim=20, bre=22, bim=24, cre=26, cim=28, ldt=30, dsk=32, bx=34, w1=36, b1=38, w2=40, b2=42, out=44, dbg=46, ws=48)
S_WS, S_A, S_B, S_DBG = 52, 56, 60, 64
S_WAVE, S_XR, S_XC, S_J, S_SPIN, S_CH = 4, 5, 6, 7, 50, 51
S_MB = 34
WV = f"s{S_WAVE}"
WS = f"s[{S_WS}:{S_WS+3}]"; SA = f"s[{S_A}:{S_A+3}]"; SB = f"s[{S_B}:{S_B+3}]"; DBG = f"s[{S_DBG}:{S_DBG+3}]"
STG = 40960
NST = 3
AREG, BREG0, BREG = 20480, 81920, 20480
B7 = BREG0 + 3*BREG
CNT = B7 + 20096
YAT = B7
UB = 5536
W3B, W5B, W7B, W9B = 9664, 12768, 15872, 17952
SCR = 512
IMG, T2, T3 = SCR, SCR+1136, SCR+2416
STATL = BREG0 + 2*BREG
NT = " nt" if opt("nt", 0) else ""
NT1 = " nt" if opt("nt1", 1) else ""

a = Asm()
G2F = " sc1" if opt("g2sc1", 1) else ""
def srd(d, ptr, size):
    a(f"s_mov_b32 s{d}, s{ptr}\ns_mov_b32 s{d+1}, s{ptr+1}\ns_mov_b32 s{d+2}, {hex(size)}\ns_mov_b32 s{d+3}, 0x20000")
def stamp(idx):
    if PROF: a(f"s_memtime s[92:93]\ns_waitcnt lgkmcnt(0)\ns_sub_u32 s{72+idx}, s92, s90")
def lstamp(o):
    if PROF: a(f"s_memtime s[92:93]\ns_waitcnt lgkmcnt(0)\ns_sub_u32 s92, s92, s90\ns_add_u32 m0, s3, {o}\nv_writelane_b32 v200, s92, m0")
def endp(): a("s_branch L_end")
def cmul(d, x, y, t):
    a(f"v_pk_mul_f32 {vr(t,2)}, {vr(x,2)}, {vr(y,2)} op_sel:[0,0] op_sel_hi:[0,1]")
    a(f"v_pk_fma_f32 {vr(d,2)}, {vr(x,2)}, {vr(y,2)}, {vr(t,2)} op_sel:[1,1,0] op_sel_hi:[1,0,1] neg_lo:[0,1,0]")
def poll(issue, test, sleep=4, issued=True):
    L = a.label("L_poll"); D = a.label("L_pdone")
    if not issued: a(issue)
    a(f"{L}:")
    a("s_waitcnt vmcnt(0)")
    a(test)
    a(f"s_cbranch_scc1 {D}")
    a(f"s_add_u32 s{S_SPIN}, s{S_SPIN}, 1\ns_cmp_gt_u32 s{S_SPIN}, 100000\ns_cbranch_scc1 L_exit")
    a(f"s_sleep {sleep}")
    a(issue)
    a(f"s_branch {L}")
    a(f"{D}:")
def sld(d, off): return f"s_load_dword s{d}, s[{P['ws']}:{P['ws']+1}], s{off} glc"
def spoll(issue, test, sleep=4, issued=False, far=None):
    L = a.label("L_spoll"); D = a.label("L_sdone")
    if not issued: a(issue)
    a(f"{L}:")
    a("s_waitcnt lgkmcnt(0)")
    a(test)
    a(f"s_cbranch_scc1 {D}")
    a(f"s_add_u32 s{S_SPIN}, s{S_SPIN}, 1\ns_cmp_gt_u32 s{S_SPIN}, 100000\ns_cbranch_scc1 L_exit")
    a(f"s_sleep {sleep}")
    if far:
        N = a.label("L_near")
        a(f"{far[0]}\ns_cbranch_scc1 {N}\ns_sleep {far[1]}")
        a(f"{N}:")
    a(issue)
    a(f"s_branch {L}")
    a(f"{D}:")
def arrive_issue(sreg, va, vb):
    a(f"v_mov_b32 v{va}, 0\nv_mov_b32 v{vb}, 1\ns_mov_b64 exec, 1\nbuffer_atomic_add v{vb}, v{va}, {WS}, s{sreg} offen sc0 sc1\ns_mov_b64 exec, -1")
def arrive_check(st, vb, n, then):
    L = a.label("L_arr")
    a(f"s_waitcnt vmcnt(0)\nv_readfirstlane_b32 s{st}, v{vb}\ns_cmp_lg_u32 s{st}, {n-1}\ns_cbranch_scc1 {L}")
    a(then)
    a(f"{L}:")
def push_all(bitreg, off, va, vb, st):
    t = f"v_lshlrev_b32 v{va}, 7, v0\nv_mov_b32 v{vb}, s{bitreg}\ns_mov_b32 s{st}, {MBOX+off}\n"
    for i in range(4): t += f"buffer_atomic_or v{vb}, v{va}, {WS}, s{st} offen sc1\ns_add_u32 s{st}, s{st}, 8192\n"
    return t
def few(mask, ins): return f"s_mov_b64 exec, {mask}\n{ins}\ns_mov_b64 exec, -1"
def clr_issue(v, vo): return few(15, f"buffer_load_dword v{v}, v{vo}, {DBG}, 0 offen sc1")
def clr_test(v): return f"v_cmp_ne_u32 vcc, 0, v{v}\ns_and_b32 vcc_lo, vcc_lo, 15\ns_cmp_eq_u32 vcc_lo, 15"
def nz_test(v): return f"v_cmp_ne_u32 vcc, 0, v{v}\ns_cmp_eq_u64 vcc, -1"
def zero(b, n):
    for i in range(0, n, 2): a(f"v_pk_mov_b32 {vr(b+i,2)}, 0, 0")

cLIN, cIMG2, cT2, cT3, cW2, cW3, cST, cKW1, cKW2, cA0, cA1, cB, cU = 247, 248, 249, 250, 251, 252, 253, 254, 255, 231, 236, 237, 146
AD, AB, A16 = 204, 224, 232
RS = opt("rowsplit", 0)
def tile_rc(rt, cb, tmp):
    if RS: return f"s_and_b32 s{rt}, s2, 7\ns_lshl_b32 s{rt}, s{rt}, 2\ns_lshr_b32 s{cb}, s{S_J}, 3\ns_add_u32 s{rt}, s{rt}, s{cb}\ns_and_b32 s{cb}, s{S_J}, 7"
    return (f"s_lshl_b32 s{rt}, s{S_XR}, 3\ns_lshr_b32 s{cb}, s{S_J}, 2\ns_add_u32 s{rt}, s{rt}, s{cb}\n"
            f"s_lshl_b32 s{cb}, s{S_XC}, 2\ns_and_b32 s{tmp}, s{S_J}, 3\ns_add_u32 s{cb}, s{cb}, s{tmp}")
def conv_setup(t=64):
    r_, g_, h_, f_, x_, y_, z_ = (f"v{t+i}" for i in range(7))
    a(f"v_lshlrev_b32 {x_}, 4, v0\nv_add_u32 v{cLIN}, s69, {x_}\nv_min_u32 {z_}, 5, v0\nv_lshl_add_u32 v{cIMG2}, {z_}, 4, s69")
    a(f"v_lshlrev_b32 {x_}, 6, {z_}\nv_lshrrev_b32 {y_}, 1, {z_}\nv_lshl_add_u32 {x_}, {y_}, 4, {x_}\nv_add_u32 v{cKW2}, s69, {x_}")
    a(f"v_lshlrev_b32 {x_}, 6, v0\nv_lshrrev_b32 {y_}, 1, v0\nv_lshl_add_u32 {x_}, {y_}, 4, {x_}\nv_add_u32 v{cKW1}, s69, {x_}")
    a(f"v_lshrrev_b32 {x_}, 2, v0\nv_mul_u32_u24 {x_}, 40960, {x_}\nv_and_b32 {y_}, 3, v0\nv_lshl_add_u32 v{cU}, {y_}, 4, {x_}")
    a(f"v_and_b32 {r_}, 15, v0\nv_lshrrev_b32 {g_}, 4, v0\nv_and_b32 {h_}, 1, {g_}\nv_lshrrev_b32 {f_}, 1, {g_}")
    a(f"v_sub_u32 {x_}, 15, {r_}\nv_and_b32 {y_}, 1, {x_}\nv_sub_u32 {x_}, {x_}, {y_}\nv_lshlrev_b32 {x_}, 1, {x_}")
    a(f"v_lshl_add_u32 {z_}, {g_}, 1, {y_}\nv_mul_u32_u24 {z_}, 160, {z_}\nv_add_u32 {z_}, {z_}, {x_}\ns_add_u32 s10, s69, {T2}\nv_add_u32 v{cT2}, s10, {z_}")
    a(f"v_lshl_add_u32 {z_}, {h_}, 1, {y_}\nv_mul_u32_u24 {z_}, 160, {z_}\nv_add_u32 {z_}, {z_}, {x_}\nv_lshl_add_u32 {z_}, {f_}, 4, {z_}\ns_add_u32 s10, s69, {T3}\nv_add_u32 v{cT3}, s10, {z_}")
    a(f"v_mul_u32_u24 {x_}, {W5B-W3B}, {h_}\nv_lshlrev_b32 {y_}, 3, {g_}\nv_sub_u32 {x_}, {x_}, {y_}\nv_lshl_add_u32 {x_}, {r_}, 3, {x_}\ns_add_u32 s10, s69, {W3B-8}\nv_add_u32 v{cW2}, s10, {x_}")
    a(f"v_mul_u32_u24 {x_}, {W9B-W7B-16}, {h_}\nv_lshl_add_u32 {x_}, {f_}, 8, {x_}\nv_lshl_add_u32 {x_}, {r_}, 3, {x_}\ns_add_u32 s10, s69, {W7B-16}\nv_add_u32 v{cW3}, s10, {x_}")
    a(f"v_lshlrev_b32 {x_}, 2, {h_}\nv_lshrrev_b32 {z_}, 2, {r_}\nv_add_u32 {x_}, {x_}, {z_}\nv_mul_u32_u24 {x_}, 81920, {x_}\nv_lshl_add_u32 {x_}, {f_}, 6, {x_}\nv_and_b32 {z_}, 3, {r_}\nv_lshl_add_u32 v{cST}, {z_}, 4, {x_}")
    a(f"s_add_u32 s10, s69, {UB-32}\nv_lshlrev_b32 {x_}, 5, {r_}\nv_lshl_add_u32 {x_}, {g_}, 4, {x_}\nv_add_u32 v{cB}, s10, {x_}")
    a(f"v_sub_u32 {z_}, {y_}, {r_}\nv_add_u32 {z_}, 15, {z_}\nv_sub_u32 {y_}, {r_}, {y_}")
    a(f"v_lshrrev_b32 {x_}, 4, {z_}\nv_lshlrev_b32 {x_}, 4, {x_}\nv_lshl_add_u32 {x_}, {z_}, 3, {x_}\nv_add_u32 v{cA0}, s69, {x_}")
    a(f"v_add_u32 {z_}, 4, {z_}\nv_lshrrev_b32 {x_}, 4, {z_}\nv_lshlrev_b32 {x_}, 4, {x_}\nv_lshl_add_u32 {x_}, {z_}, 3, {x_}\nv_add_u32 v{cA1}, s69, {x_}")
    a(f"v_mov_b32 {r_}, 0xffff\nv_mov_b32 {g_}, 0xffff0000\nv_mov_b32 {h_}, -1")
    for k in range(4):
        a(f"v_cmp_eq_u32 vcc, {2*k-16}, {y_}\nv_cndmask_b32 v{AD+k}, 0, {r_}, vcc\nv_cmp_eq_u32 vcc, {2*k+1-16}, {y_}\nv_cndmask_b32 v{AD+k}, v{AD+k}, {g_}, vcc")
        a(f"v_cmp_eq_u32 vcc, {2*k-12}, {y_}\nv_cndmask_b32 v{AB+k}, 0, {h_}, vcc\nv_cmp_eq_u32 vcc, {2*k-13}, {y_}\nv_cndmask_b32 v{AB+k}, v{AB+k}, {r_}, vcc\nv_cmp_eq_u32 vcc, {2*k-11}, {y_}\nv_cndmask_b32 v{AB+k}, v{AB+k}, {g_}, vcc")
def uloads():
    a(f"s_lshl_b32 s10, s{S_CH}, 6")
    for q in range(4): a(f"buffer_load_dwordx4 {vr(148+4*q,4)}, v{cU}, {WS}, s10 offen sc1\ns_add_u32 s10, s10, 655360")
def kloads():
    a(f"s_lshl_b32 s10, s{S_CH}, 12\ns_add_u32 s10, s10, {KD}")
    for q in range(3): a(f"buffer_load_dwordx4 {vr(32+4*q,4)}, v1, {WS}, s10 offen offset:{1024*q} sc1")
lnc_addr = f"s_mul_i32 s13, s{S_CH}, 410\ns_lshr_b32 s13, s13, 16\ns_lshl_b32 s13, s13, 4\ns_and_b32 s100, s2, 15\ns_add_u32 s100, s100, s13\ns_lshl_b32 s100, s100, 7\ns_add_u32 s100, s100, {LNC}"

a.raw(f".globl {KN}\n.p2align 8\n.type {KN},@function")
a(f"{KN}:")
a("s_cmp_ge_u32 s2, 256\ns_cbranch_scc1 L_exit")
a("s_load_dwordx16 s[16:31], s[0:1], 0\ns_load_dwordx16 s[32:47], s[0:1], 64\ns_load_dwordx2 s[48:49], s[0:1], 128")
if opt("cpf", 1):
    a(f"s_cmp_ge_u32 s2, {opt('cpfn', 8)}\ns_cbranch_scc1 L_nocpf")
    a("s_getpc_b64 s[12:13]")
    a("L_cpfb:")
    a("v_lshlrev_b32 v20, 7, v0\nv_min_u32 v20, L_exit-L_cpfb, v20\nv_mov_b32 v21, s13\nv_add_co_u32 v20, vcc, s12, v20\nv_addc_co_u32 v21, vcc, 0, v21, vcc")
    a("global_load_dword v22, v[20:21], off")
    a("L_nocpf:")
if PROF:
    a("s_memtime s[90:91]\ns_memrealtime s[94:95]")
    for i in range(16): a(f"s_mov_b32 s{72+i}, 0")
a("v_lshrrev_b32 v1, 6, v0\nv_and_b32 v0, 63, v0")
a(f"v_readfirstlane_b32 {WV}, v1")
a(f"s_bfe_u32 s{S_XR}, s2, 0x20001\ns_and_b32 s{S_XC}, s2, 1\ns_lshr_b32 s{S_J}, s2, 3\ns_mov_b32 s{S_SPIN}, 0")
a(f"s_lshl_b32 s8, s{S_XC}, 2\ns_sub_u32 s8, 20, s8")
a(f"s_cmp_eq_u32 s{S_XC}, 0\ns_cselect_b32 s9, 52, 64\ns_mul_i32 s9, s9, s{S_J}\ns_lshr_b32 s9, s9, 8")
a(f"s_sub_u32 s11, 5, s{S_XC}\ns_mul_i32 s11, s11, s9\ns_sub_u32 s10, s{S_J}, s11\ns_mul_i32 s11, s{S_XC}, 5\ns_add_u32 s10, s10, s11")
a(f"s_lshl_b32 s11, s{S_XR}, 2\ns_add_u32 s9, s9, s11")
a("v_lshrrev_b32 v4, 3, v0\nv_mul_u32_u24 v4, 1280, v4")
a("v_and_b32 v5, 7, v0\nv_lshrrev_b32 v6, 4, v0\nv_xor_b32 v5, v5, v6\nv_lshl_add_u32 v2, v5, 4, v4")
a("v_xor_b32 v5, 4, v5\nv_lshl_add_u32 v3, v5, 4, v4\nv_add_u32 v3, 10240, v3\nv_add_u32 v4, 20480, v2\nv_add_u32 v5, 20480, v3")
for i in range(3):
    a(f"v_add_u32 v6, {64*i}, v0\nv_mul_u32_u24 v7, 2731, v6\nv_lshrrev_b32 v7, 16, v7\nv_lshlrev_b32 v14, 1, v7\nv_and_b32 v14, 4, v14\nv_xor_b32 v6, v6, v14")
    a(f"v_mul_u32_u24 v7, 3072, v7\nv_lshl_add_u32 v{8+i}, v6, 4, v7\nv_add_u32 v{11+i}, 27648, v{8+i}")
a("s_waitcnt lgkmcnt(0)")
srd(S_WS, P['ws'], WS_SIZE)
srd(S_A, P['u'], 2621440)
srd(S_B, P['w1'], 2211840)
srd(S_DBG, P['dbg'], 256)
a(f"s_lshl_b32 s{S_MB}, s2, 7\ns_add_u32 s{S_MB}, s{S_MB}, {MBOX}")
if PROF:
    a("s_mov_b32 s86, s94"); stamp(13)
if opt("g2only", 0):
    a(f"v_mov_b32 v174, 0\ns_mov_b32 s35, 1\ns_cmp_lt_u32 {WV}, 4\ns_cbranch_scc1 L_g2\ns_branch L_end")
a(f"s_cmp_ge_u32 s{S_J}, s8\ns_cbranch_scc1 L_aux")
a(f"s_cmp_lt_u32 {WV}, 4\ns_cbranch_scc1 L_comp")

a(f"s_sub_u32 s8, {WV}, 4")
a("s_lshl_b32 s11, s9, 7\ns_lshl_b32 s12, s8, 5\ns_add_u32 s11, s11, s12\ns_mul_i32 s11, s11, 1280")
a("s_mul_i32 s12, s8, 55296\ns_mul_i32 s13, s10, 384\ns_add_u32 s12, s12, s13")
a("s_lshl_b32 s13, s8, 12\ns_mul_i32 s14, s8, 6144\ns_add_u32 s14, s14, 16384\ns_mov_b32 s3, 0")
a(f"s_and_b32 s15, s9, 3\ns_mul_i32 s15, s15, 5\ns_add_u32 s15, s15, 1\ns_lshr_b32 s15, s15, 1\ns_lshl_b32 s68, s10, 1\ns_add_u32 s15, s15, s68\ns_add_u32 s15, s15, s{S_XR}")
a("s_mul_i32 s68, s15, 26\ns_lshr_b32 s68, s68, 8\ns_mul_i32 s68, s68, 10\ns_sub_u32 s15, s15, s68")
a("s_lshl_b32 s68, s15, 7\ns_add_u32 s11, s11, s68\ns_mul_i32 s68, s15, 221184\ns_add_u32 s12, s12, s68\ns_mov_b32 s69, 0")
stamp(1)
S_C = 96
a("v_mov_b32 v146, 0\nv_mov_b32 v253, 0\ns_mov_b32 s101, 0")
a("L_ld_loop:")
a("s_cmp_lt_u32 s3, 2\ns_cbranch_scc1 L_ld_nowait\ns_cmp_eq_u32 s3, 2\ns_cbranch_scc1 L_ld_setup")
a("L_ld_wait:")
a("s_waitcnt vmcnt(10)")
lstamp(0)
a("s_barrier")
lstamp(16)
a("L_ld_nowait:")
a("s_add_u32 s70, s69, s13\ns_add_u32 s71, s69, s14")
for q in range(4): a(f"s_add_u32 m0, s70, {1024*q}\nbuffer_load_dwordx4 v{2+q}, {SA}, s11 offen{NT} lds")
for i in range(6): a(f"s_add_u32 m0, s71, {1024*i}\nbuffer_load_dwordx4 v{8+i}, {SB}, s12 offen{NT} lds")
a("s_add_u32 s11, s11, 128\ns_add_u32 s12, s12, 221184\ns_add_u32 s15, s15, 1\ns_cmp_lt_u32 s15, 10\ns_cbranch_scc1 L_ld_nowrap")
a("s_sub_u32 s11, s11, 1280\ns_sub_u32 s12, s12, 2211840\ns_mov_b32 s15, 0")
a("L_ld_nowrap:")
a(f"s_add_u32 s69, s69, {STG}\ns_cmp_eq_u32 s69, {NST*STG}\ns_cselect_b32 s69, 0, s69")
a(f"s_cmp_lg_u32 s3, 7\ns_cbranch_scc1 L_ld_n5\ns_load_dwordx4 s[28:31], s[{P['dbg']}:{P['dbg']+1}], 0")
a("L_ld_n5:")
a("s_add_u32 s3, s3, 1\ns_cmp_lt_u32 s3, 10\ns_cbranch_scc1 L_ld_loop")
s_issue = f"buffer_load_dwordx4 v[16:19], v1, {WS}, s18 offen sc1\nbuffer_load_dwordx4 v[20:23], v6, {WS}, s18 offen offset:1024 sc1\nbuffer_load_dword v24, v7, {WS}, s20 offen sc1"
wc_issue = sld(26, 25)
wc_test = "s_cmp_lg_u32 s26, 0"
a("s_waitcnt lgkmcnt(0)\ns_and_b32 s28, s28, s29\ns_and_b32 s30, s30, s31\ns_and_b32 s24, s28, s30")
a(s_issue)
for w in (13, 3):
    if w == 3:
        a("s_mov_b32 s31, 0\ns_mov_b32 s33, 0\ns_cmp_eq_u32 s101, 0\ns_cbranch_scc1 L_ld_ncv")
        a(sld(31, S_MB) + "\n" + sld(33, 100))
        a("L_ld_ncv:")
    a(f"s_waitcnt vmcnt({w})")
    lstamp(0)
    a("s_barrier")
    lstamp(16)
    if PROF: a("s_add_u32 s3, s3, 1")
a("s_cmp_lg_u32 s24, 0\ns_cbranch_scc1 L_ld_clr")
poll(clr_issue(15, 14), clr_test(15), sleep=8, issued=False)
a(s_issue)
a("s_waitcnt lgkmcnt(0)\ns_mov_b32 s31, 0\ns_mov_b32 s33, 0")
a("L_ld_clr:")
s_test = "v_and_b32 v4, v17, v19\nv_and_b32 v5, v21, v23\nv_and_b32 v4, v4, v5\nv_and_b32 v4, 1, v4\nv_min_u32 v4, v4, v24\n" + nz_test(4)
poll(s_issue, s_test, sleep=8)
a("ds_write_b128 v25, v[16:19]\nds_write_b128 v26, v[20:23] offset:1024\nds_write_b32 v27, v24")
a("s_waitcnt lgkmcnt(0)\ns_mov_b32 s68, 0\ns_and_b32 s13, s31, s101\ns_cbranch_scc0 L_ld_nk0")
kloads()
a("s_mov_b32 s68, 1")
a("L_ld_nk0:")
a("s_cmp_ge_u32 s33, 64\ns_cbranch_scc0 L_ld_nk")
uloads()
a("s_or_b32 s68, s68, 2")
a("L_ld_nk:")
a("s_barrier")
lstamp(16)
if PROF:
    a(f"s_lshl_b32 s93, s2, 9\ns_lshl_b32 s92, s8, 7\ns_add_u32 s93, s93, s92\ns_add_u32 s93, s93, {PROFB+0x20000}\nv_lshlrev_b32 v201, 2, v0\ns_mov_b32 exec_hi, 0\nbuffer_store_dword v200, v201, {WS}, s93 offen\ns_mov_b32 exec_hi, -1")
stamp(2)
a(f"s_cmp_eq_u32 {WV}, 7\ns_cbranch_scc1 L_fetch")
a(f"s_cmp_eq_u32 {WV}, 6\ns_cbranch_scc1 L_park")
a(f"s_cmp_eq_u32 s101, 0\ns_cbranch_scc1 L_end\ns_mul_i32 s69, {WV}, {AREG}\ns_branch L_cv_upart")
wc_prep = f"s_and_b32 s25, s2, 31\ns_lshl_b32 s25, s25, 7\ns_add_u32 s25, s25, {W2C+1024}"
a("L_ld_setup:")
a("v_lshlrev_b32 v1, 4, v0\nv_and_b32 v7, 31, v0\nv_lshlrev_b32 v6, 4, v7\nv_lshlrev_b32 v7, 2, v7\nv_and_b32 v14, 3, v0\nv_lshlrev_b32 v14, 2, v14")
a(f"s_lshl_b32 s20, s9, 9\ns_lshl_b32 s23, s8, 7\ns_add_u32 s20, s20, s23\ns_add_u32 s20, s20, {STATS}\ns_add_u32 s23, s23, {STATL+6144}\nv_add_u32 v27, s23, v7")
a(f"s_mul_i32 s18, s10, 1536\ns_mul_i32 s19, s8, {CSP}\ns_add_u32 s18, s18, s19\ns_add_u32 s18, s18, {CSUM}")
a(f"s_mul_i32 s23, s8, 1536\ns_add_u32 s23, s23, {STATL}\nv_add_u32 v25, s23, v1\nv_add_u32 v26, s23, v6\nv_mov_b32 v30, {CNT}")
zero(32, 4)
a("ds_write_b128 v30, v[32:35]")
a(wc_prep)
a(f"s_mul_i32 s23, s{S_XR}, 36\ns_mul_i32 s22, s{S_XC}, 20\ns_add_u32 s23, s23, s22\ns_add_u32 s23, s23, s{S_J}\ns_mul_i32 s22, s8, 144\ns_add_u32 s23, s23, s22\ns_cmp_ge_u32 s23, 192\ns_cbranch_scc1 L_ld_wait")
a(f"s_lshr_b32 s22, s23, 2\ns_lshl_b32 s22, s22, 3\ns_and_b32 s23, s23, 3\ns_add_u32 s{S_CH}, s23, s22\ns_add_u32 s{S_CH}, s{S_CH}, 256\ns_lshl_b32 s101, 0x1000000, s8")
a(f"s_mov_b32 s96, s69\ns_mov_b32 s97, s10\ns_mov_b32 s98, s13\ns_mul_i32 s69, {WV}, {AREG}")
conv_setup()
a(lnc_addr)
a(f"s_lshl_b32 s22, s{S_CH}, 1\ns_and_b32 s23, s22, 2\ns_sub_u32 s22, s22, s23\ns_load_dword s99, s[{P['dsk']}:{P['dsk']+1}], s22")
a("s_lshl_b32 s23, s23, 3\ns_waitcnt lgkmcnt(0)\ns_lshr_b32 s99, s99, s23\ns_and_b32 s99, s99, 0xffff\nv_mov_b32 v147, s99")
a("s_mov_b32 s69, s96\ns_mov_b32 s10, s97\ns_mov_b32 s13, s98\ns_branch L_ld_wait")

G2H = [16, 32, 48, 224]; G2W = [164, 184, 204, 144]; AC2 = 64
K0 = [0, 13, 26, 40, 54]
def g2_setup():
    a(tile_rc(30, 31, 29))
    a(f"s_mul_i32 s28, {WV}, 14\ns_sub_u32 s28, s28, 2\ns_cmp_eq_u32 {WV}, 0\ns_cselect_b32 s28, -1, s28\ns_lshl_b32 s28, s28, 10")
    a(f"s_mul_i32 s27, s30, {4*55296}\ns_add_u32 s27, s27, s28\ns_add_u32 s27, s27, {HF}")
    for i in range(4):
        a(f"s_add_u32 s29, {WV}, {i}\ns_and_b32 s29, s29, 3\ns_mul_i32 s29, s29, 55296\ns_add_u32 s{18+i}, s27, s29")
    a(f"s_mul_i32 s22, s31, {5*55296}\ns_add_u32 s22, s22, s28\ns_add_u32 s22, s22, {W2F}")
    for i in range(1, 5): a(f"s_add_u32 s{22+i}, s22, {55296*i}")
    a(f"s_lshl_b32 s27, s30, 6\ns_lshl_b32 s29, {WV}, 4\ns_add_u32 s27, s27, s29\ns_mul_i32 s27, s27, 1280\ns_mul_i32 s29, s31, 160\ns_add_u32 s27, s27, s29")
    masks = []
    for w in range(4):
        c0, c1 = K0[w]//6, (K0[w+1]-1)//6
        m = ((1 << (c1-c0+1)) - 1) << c0
        masks.append(m | (m << 11))
    a(f"s_mov_b32 s28, {hex(masks[0])}\ns_cmp_eq_u32 {WV}, 1\ns_cselect_b32 s28, {hex(masks[1])}, s28\ns_cmp_eq_u32 {WV}, 2\ns_cselect_b32 s28, {hex(masks[2])}, s28\ns_cmp_eq_u32 {WV}, 3\ns_cselect_b32 s28, {hex(masks[3])}, s28")
    a(f"v_lshlrev_b32 v252, 4, v0\ns_cmp_lt_u32 {WV}, 2\ns_cselect_b32 s30, {OOB}, 0\nv_add_u32 v253, s30, v252")
    a("v_lshrrev_b32 v255, 4, v0\nv_lshlrev_b32 v255, 3, v255\nv_and_b32 v254, 15, v0\nv_mul_u32_u24 v254, 160, v254\nv_add_u32 v254, v254, v255")
    srd(S_B, P['b2'], 1280)
def ldh(k, o=0, v=252): return [f"buffer_load_dwordx4 {vr(G2H[k]+4*i,4)}, v{v}, {WS}, s{18+i} offen offset:{o}{G2F}" for i in range(4)]
def ldw(k, o=0, v=252): return [f"buffer_load_dwordx4 {vr(G2W[k]+4*i,4)}, v{v}, {WS}, s{22+i} offen offset:{o}{G2F}" for i in range(5)]
OUTV = (8, 9, 13)
def xb_loads():
    for q in range(3):
        a(f"v_add_u32 v10, {64*q}, v0\nv_mul_u32_u24 v11, 6554, v10\nv_lshrrev_b32 v11, 16, v11\nv_mul_u32_u24 v11, 1120, v11\nv_lshl_add_u32 v{OUTV[q]}, v10, 4, v11")
    a(f"v_cmp_gt_u32 vcc, 32, v0\nv_mov_b32 v10, {OOB}\nv_cndmask_b32 v13, v10, v13, vcc\ns_mul_i32 s10, {WV}, {AREG}")
    for q in range(3): a(f"s_add_u32 m0, s10, {15360+1024*q}\nbuffer_load_dwordx4 v{OUTV[q]}, {SA}, s27 offen lds")
    a(f"s_add_u32 m0, s10, {18432}\ns_mov_b64 exec, 0x3ff\nbuffer_load_dwordx4 v252, {SB}, s29 offen lds\ns_mov_b64 exec, -1")
    a("v_add_u32 v2, s10, v254\nv_add_u32 v3, s10, v255")
w_pre = ldw(0, 0, 253) + ldw(1, 1024) + ldw(2, 2048)

a("L_comp:")
ACC = 72; BUF = [16, 44]; SF = 172
g2_setup()
a("v_and_b32 v13, 31, v0\nv_lshrrev_b32 v14, 5, v0")
a(f"s_lshl_b32 s8, {WV}, 12\nv_lshlrev_b32 v15, 7, v13\nv_add_u32 v15, s8, v15")
a("v_bfe_u32 v7, v0, 1, 3\nv_xor_b32 v7, v7, v14")
for ks in range(4): a(f"v_xor_b32 v1, {2*ks}, v7\nv_lshl_add_u32 v{2+ks}, v1, 4, v15")
a("v_bfe_u32 v1, v0, 2, 2\nv_lshl_add_u32 v1, v14, 3, v1\nv_mul_u32_u24 v1, 384, v1")
a("v_bfe_u32 v7, v0, 4, 1\nv_lshl_add_u32 v1, v7, 5, v1\nv_and_b32 v7, 3, v0\nv_lshl_add_u32 v1, v7, 3, v1\nv_add_u32 v1, 16384, v1")
a("v_bfe_u32 v7, v0, 3, 1\nv_lshlrev_b32 v7, 6, v7\nv_add_u32 v6, v1, v7\nv_sub_u32 v196, v1, v7\nv_mov_b32 v197, v196")
for i in range(5): a(f"v_mov_b32 v{8+i}, v{2+i}")
zero(ACC, 96)
a(f"s_lshl_b32 s11, {WV}, 7\ns_add_u32 s11, s11, {STATL+6144}\nv_lshl_add_u32 v168, v13, 2, s11\nv_mul_u32_u24 v169, 3072, v14\nv_lshl_add_u32 v169, v13, 3, v169\nv_add_u32 v169, {STATL}, v169")
a("v_bfe_u32 v1, v0, 4, 1\nv_mul_u32_u24 v1, 55296, v1\nv_lshl_add_u32 v1, v14, 8, v1\nv_and_b32 v7, 15, v0\nv_lshl_add_u32 v1, v7, 4, v1")
a(f"s_lshl_b32 s8, s9, 3\ns_lshl_b32 s11, {WV}, 1\ns_add_u32 s8, s8, s11\ns_mul_i32 s8, s8, 54\ns_mul_i32 s11, s10, 6\ns_add_u32 s8, s8, s11\ns_lshl_b32 s8, s8, 10\ns_add_u32 s8, s8, {HF}")
a(f"s_lshl_b32 s12, s9, 1\ns_lshr_b32 s11, {WV}, 1\ns_add_u32 s12, s12, s11")
a(f"s_and_b32 s11, s12, 7\ns_lshl_b32 s11, s11, 5\ns_lshr_b32 s12, s12, 3\ns_lshl_b32 s12, s12, 1\ns_add_u32 s12, s12, s11\ns_lshl_b32 s12, s12, 7\ns_add_u32 s12, s12, {MBOX}")
a(f"s_and_b32 s11, {WV}, 1\ns_mul_i32 s11, s11, 11\ns_add_u32 s11, s11, s10\ns_lshl_b32 s11, 1, s11")
a("v_and_b32 v15, 3, v0\nv_lshlrev_b32 v15, 10, v15\nv_bfe_u32 v7, v0, 2, 1\nv_lshl_add_u32 v15, v7, 7, v15\nv_mov_b32 v14, s11")
a(wc_prep.replace("s25", "s69"))
a("s_mov_b32 s15, 0\ns_mov_b32 s3, 0")
def reads(ks, b):
    r = [f"ds_read_b128 {vr(b,4)}, v{8+ks}"]
    for ft in range(6):
        for s in range(2):
            r.append(f"ds_read_b64_tr_b16 {vr(b+4+4*ft+2*s,2)}, v{197 if ft & 1 else 12} offset:{ks*6144 + s*1536 + ft*64}")
    return r
def step(cur, nks, nb, last, first_wait=True):
    R = reads(nks, nb)
    waits = [10, 11, 12, 13, 13, 13]; parts = [R[0:3], R[3:6], R[6:9], R[9:11], R[11:13], [last]]
    for ft in range(6):
        if first_wait: a(f"s_waitcnt lgkmcnt({waits[ft]})")
        a(f"v_mfma_f32_32x32x16_bf16 {vr(ACC+16*ft,16)}, {vr(cur+4+4*ft,4)}, {vr(cur,4)}, {vr(ACC+16*ft,16)}")
        for r in parts[ft]: a(r)
a("s_barrier")
stamp(1)
for r in reads(0, BUF[0]): a(r)
a("L_c_loop:")
step(BUF[0], 1, BUF[1], f"s_add_u32 s15, s15, {STG}\ns_cmp_eq_u32 s15, {NST*STG}\ns_cselect_b32 s15, 0, s15\nv_add_u32 v8, s15, v2")
step(BUF[1], 2, BUF[0], "v_add_u32 v9, s15, v3\nv_add_u32 v10, s15, v4")
step(BUF[0], 3, BUF[1], "v_add_u32 v12, s15, v6\nv_add_u32 v197, s15, v196\ns_waitcnt lgkmcnt(0)\ns_barrier")
step(BUF[1], 0, BUF[0], "v_add_u32 v11, s15, v5\ns_add_u32 s3, s3, 1\ns_cmp_lt_u32 s3, 10\ns_cbranch_scc1 L_c_loop", first_wait=False)
stamp(2)
a("s_setprio 3\nds_read_b32 v170, v168")
for ft in range(6):
    for p in range(2): a(f"ds_read_b64 {vr(SF+4*ft+2*p,2)}, v169 offset:{1536*p+256*ft}")
a("s_waitcnt lgkmcnt(12)")
a("v_xor_b32 v17, 0x8000, v170\nv_and_b32 v19, 0xffff, v17\nv_lshl_or_b32 v16, v19, 16, v19\nv_mov_b32 v18, v16")
a("v_cmp_gt_u32 vcc, 32, v0\nv_cndmask_b32 v17, v19, v17, vcc")
a("v_and_b32 v10, 0xffff0000, v170\nv_rcp_f32 v7, v10\nv_mov_b32 v11, v10\ns_waitcnt lgkmcnt(0)")
for ft in range(6):
    a(f"v_mfma_f32_32x32x16_bf16 {vr(ACC+16*ft,16)}, {vr(SF+4*ft,4)}, v[16:19], {vr(ACC+16*ft,16)}")
    if ft == 0:
        k1c = -2.0 * math.log2(math.e) * math.sqrt(2.0/math.pi); k2c = k1c * 0.044715
        a(f"v_mul_f32 v8, {f32(k1c)}, v7\nv_mul_f32 v12, v7, v7\nv_mul_f32 v12, v12, v7\nv_mul_f32 v12, {f32(k2c)}, v12\nv_mov_b32 v9, v8\nv_mov_b32 v13, v12")
def stA(h):
    A0 = ACC + 8*h; T = 16 + 8*(h % 3)
    return ([f"v_pk_mul_f32 {vr(T+2*p,2)}, {vr(A0+2*p,2)}, {vr(A0+2*p,2)}" for p in range(4)] +
            [f"v_pk_fma_f32 {vr(T+2*p,2)}, {vr(T+2*p,2)}, v[12:13], v[8:9]" for p in range(4)] +
            [f"v_pk_mul_f32 {vr(T+2*p,2)}, {vr(T+2*p,2)}, {vr(A0+2*p,2)}" for p in range(4)])
def stE(h):
    T = 16 + 8*(h % 3); return [f"v_exp_f32 v{T+e}, v{T+e}" for e in range(8)]
def stB(h):
    T = 16 + 8*(h % 3); return [f"v_pk_fma_f32 {vr(T+2*p,2)}, {vr(T+2*p,2)}, v[10:11], v[10:11]" for p in range(4)]
def stR(h):
    T = 16 + 8*(h % 3); return [f"v_rcp_f32 v{T+e}, v{T+e}" for e in range(8)]
def stC(h):
    A0 = ACC + 8*h; T = 16 + 8*(h % 3); pk = 48 + 4*(h % 4)
    return ([f"v_pk_mul_f32 {vr(T+2*p,2)}, {vr(T+2*p,2)}, {vr(A0+2*p,2)}" for p in range(4)] +
            [f"v_cvt_pk_bf16_f32 v{pk+p}, v{T+2*p}, v{T+2*p+1}" for p in range(4)] +
            [f"buffer_store_dwordx4 {vr(pk,4)}, v1, {WS}, s8 offen offset:{(h//2 % 4)*1024 + (h%2)*512} sc1"])
def mix(tr, nt):
    i = 0
    for k, x in enumerate(tr):
        a(x)
        n = (len(nt) * (k+1)) // len(tr)
        while i < n: a(nt[i]); i += 1
for x in stA(0): a(x)
for h in range(12):
    mix(stE(h), (stC(h-1) if h else []))
    if h == 8: a("s_add_u32 s8, s8, 4096\n" + sld(68, 69))
    for x in stB(h): a(x)
    mix(stR(h), (stA(h+1) if h < 11 else []))
for x in stC(11): a(x)
stamp(4)
def acc_init(z=True):
    for dt in range(5): a(f"ds_read_b64 {vr(144+2*dt,2)}, v2 offset:{15360+32*dt}\nds_read_b64 {vr(154+2*dt,2)}, v3 offset:{18432+32*dt}")
    a("s_waitcnt lgkmcnt(0)")
    for dt in range(5):
        for h in range(2):
            a(f"v_lshlrev_b32 v{AC2+4*dt+2*h}, 16, v{144+2*dt+h}\nv_and_b32 v{AC2+4*dt+2*h+1}, 0xffff0000, v{144+2*dt+h}")
            a(f"v_lshlrev_b32 v10, 16, v{154+2*dt+h}\nv_and_b32 v11, 0xffff0000, v{154+2*dt+h}\nv_pk_add_f32 {vr(AC2+4*dt+2*h,2)}, {vr(AC2+4*dt+2*h,2)}, v[10:11]")
    if z: zero(AC2+20, 60)
a(f"v_mov_b32 v2, {CNT+8}\nv_mov_b32 v3, 1\nds_write_b32 v2, v3")
xb_loads()
zero(AC2+20, 60)
a(f"s_waitcnt vmcnt(0)\ns_mov_b64 exec, 0xff\nbuffer_atomic_or v14, v15, {WS}, s12 offen sc1\ns_mov_b64 exec, -1")
a("s_setprio 0\ns_mov_b32 s35, 0\ns_waitcnt lgkmcnt(0)")
stamp(5)
a("s_cmp_eq_u32 s68, 0\ns_cbranch_scc1 L_c_nowpre")
for l in w_pre: a(l)
a("L_c_nowpre:")
acc_init(False)
a("s_cmp_lg_u32 s68, 0\ns_cbranch_scc1 L_g2go")
a("s_branch L_g2w")

a("L_g2:")
g2_setup()
xb_loads()
a("s_waitcnt vmcnt(0)")
acc_init()
a("L_g2w:")
if opt("p1only", 0): endp()
a(wc_prep.replace("s25", "s8"))
if not opt("g2only", 0): spoll(sld(9, 8), "s_cmp_lg_u32 s9, 0", sleep=16)
PK = (4, 6, 8)
a(f"s_cmp_eq_u32 s35, 0\ns_cbranch_scc1 L_g_nopark\ns_mul_i32 s10, {WV}, {AREG}")
for p in range(3):
    for i in range(5): a(f"s_add_u32 m0, s10, {5120*p+1024*i}\ns_add_u32 s13, s{22+i}, {1024*PK[p]}\nbuffer_load_dwordx4 v252, {WS}, s13 offen{G2F} lds")
if opt("touch2", 1):
    a(f"s_lshl_b32 s8, s{S_XC}, 2\ns_add_u32 s8, s8, s{S_J}\ns_sub_u32 s8, s8, 20\ns_lshl_b32 s8, s8, 2\ns_add_u32 s8, s8, {WV}\ns_cmp_ge_u32 s8, 48\ns_cbranch_scc1 L_g_nopark")
    a(f"s_mul_i32 s9, s{S_XR}, 12\ns_add_u32 s8, s8, s9\ns_cmp_ge_u32 s8, 48\ns_cselect_b32 s9, 48, 0\ns_sub_u32 s8, s8, s9\ns_mul_i32 s8, s8, 23040\ns_mul_i32 s9, s{S_XC}, 1105920\ns_add_u32 s8, s8, s9\ns_add_u32 s8, s8, {W2F}")
    a("v_lshlrev_b32 v4, 7, v0\ns_mov_b32 exec_hi, 0xfffffff")
    for i in range(3): a(f"buffer_load_dword v5, v4, {WS}, s8 offen sc1\ns_add_u32 s8, s8, 7680")
    a("s_mov_b32 exec_hi, -1")
a("L_g_nopark:")
for l in w_pre: a(l)
a("L_g2go:")
if opt("p1only", 0): endp()
hm_issue = sld(14, S_MB)
a("v_mov_b32 v11, 0")
a(hm_issue)
a(f"s_mul_i32 s10, {WV}, {AREG}\nv_add_u32 v1, s10, v252")
for i in range(1, 4):
    a(f"s_sub_u32 s13, {WV}, {i}\ns_and_b32 s13, s13, 3\ns_mul_i32 s13, s13, {AREG}\ns_add_u32 s13, s13, {5120*(i-1)}\nv_add_u32 v{1+i}, s13, v252")
a("v_lshrrev_b32 v10, 2, v0\nv_lshlrev_b32 v10, 7, v10\nv_bfe_u32 v15, v0, 1, 1\nv_lshl_add_u32 v10, v15, 6, v10\nv_and_b32 v15, 1, v0\nv_lshl_add_u32 v10, v15, 3, v10")
a(f"s_lshl_b32 s13, {WV}, 4\ns_add_u32 s13, s13, {YAT}\nv_add_u32 v5, s13, v10")
a(f"s_mul_i32 s13, {WV}, 2560\ns_add_u32 s13, s13, {BREG0}\nv_add_u32 v6, s13, v254\nv_add_u32 v7, s13, v252")
a(f"v_mov_b32 v14, {CNT}")
srd(S_A, P['out'], 2621440)
if not opt("g2only", 0): spoll(hm_issue, "s_and_b32 s13, s14, s28\ns_cmp_eq_u32 s13, s28", sleep=opt('msleep', 4), issued=True, far=('s_and_b32 s13, s14, 0x3fffff', opt('mfar', 28)))
else: a("s_waitcnt vmcnt(0)")
stamp(6)
for l in ldh(0, 0, 253) + ldh(1, 1024) + ldh(2, 2048): a(l)
a("s_cmp_lg_u32 s35, 0\ns_cbranch_scc1 L_g_pok\ns_mov_b32 s3, 0")
a("L_g_pw:")
a("s_add_u32 s3, s3, 1\ns_cmp_gt_u32 s3, 2000000\ns_cbranch_scc1 L_exit")
a("ds_read_b32 v10, v14\ns_waitcnt lgkmcnt(0)\nv_readfirstlane_b32 s13, v10\ns_cmp_eq_u32 s13, 0\ns_cbranch_scc1 L_g_pw")
a("L_g_pok:")
nld = lambda t: 0 if t > 13 else (4 if (t < 3 or t in PK) else 9)
for t in range(14):
    k = t % 4; nt_ = t + 3; nk = nt_ % 4
    L = []
    if nt_ <= 13:
        o = 1024 * (nt_ % 4)
        if nt_ % 4 == 0: a("\n".join(f"s_add_u32 s{18+i}, s{18+i}, 4096" for i in range(9)))
        L = ldh(nk, o)
        if nt_ in PK: L += [f"ds_read_b128 {vr(G2W[nk]+4*i,4)}, v1 offset:{5120*PK.index(nt_)+1024*i}" for i in range(5)]
        else: L += ldw(nk, o)
    a(f"s_waitcnt vmcnt({nld(t+1)+nld(t+2)})" + (" lgkmcnt(0)" if t in PK else ""))
    if t == 0: stamp(7)
    n = 0
    for i in ((1, 2, 3, 0) if t == 13 else range(4)):
        for dt in range(5):
            acc = AC2 + 4*(5*i+dt)
            a(f"v_mfma_f32_16x16x32_bf16 {vr(acc,4)}, {vr(G2W[k]+4*dt,4)}, {vr(G2H[k]+4*i,4)}, {vr(acc,4)}")
            if n < len(L): a(L[n])
            if t == 13:
                pi = {2: 1, 3: 2, 0: 3}.get(i)
                if pi: a(f"ds_write_b128 v1, {vr(AC2+4*(5*pi+dt),4)} offset:{5120*(pi-1)+1024*dt}")
            n += 1
stamp(8)
a("s_waitcnt lgkmcnt(0)\ns_barrier")
stamp(9)
R_ = 144
for q in range(10): a(f"ds_read_b128 {vr(R_+4*q,4)}, v{2+q//5} offset:{1024*(q%5)}")
for dt in range(5): a(f"ds_read_b64_tr_b16 {vr(16+2*dt,2)}, v5 offset:{2048*dt}")
for q in range(10):
    a(f"s_waitcnt lgkmcnt({14 if q < 5 else 19-q})")
    dt = q % 5
    for h in range(2): a(f"v_pk_add_f32 {vr(AC2+4*dt+2*h,2)}, {vr(AC2+4*dt+2*h,2)}, {vr(R_+4*q+2*h,2)}")
    if q < 5: a(f"ds_read_b128 {vr(R_+40+4*q,4)}, v4 offset:{1024*q}")
for dt in range(5):
    a(f"s_waitcnt lgkmcnt({9-dt})")
    for h in range(2):
        a(f"v_lshlrev_b32 v10, 16, v{16+2*dt+h}\nv_and_b32 v11, 0xffff0000, v{16+2*dt+h}\nv_pk_add_f32 {vr(AC2+4*dt+2*h,2)}, {vr(AC2+4*dt+2*h,2)}, v[10:11]")
a("s_waitcnt lgkmcnt(0)")
for dt in range(5):
    for h in range(2): a(f"v_pk_add_f32 {vr(AC2+4*dt+2*h,2)}, {vr(AC2+4*dt+2*h,2)}, {vr(R_+40+4*dt+2*h,2)}")
    for h in range(2): a(f"v_cvt_pk_bf16_f32 v{32+2*dt+h}, v{AC2+4*dt+2*h}, v{AC2+4*dt+2*h+1}")
    a(f"ds_write_b64 v6, {vr(32+2*dt,2)} offset:{32*dt}")
for q in range(3): a(f"ds_read_b128 {vr(48+4*q,4)}, v7 offset:{1024*q}")
for q in range(3):
    a(f"s_waitcnt lgkmcnt({2-q})\nbuffer_store_dwordx4 {vr(48+4*q,4)}, v{OUTV[q]}, {SA}, s27 offen")
stamp(10)
endp()

a("L_park:")
if opt("p1only", 0): endp()
a(tile_rc(12, 9, 10))
for i in range(1, 5): a(f"v_add_u32 v{1+i}, {55296*i}, v1")
a(f"s_mul_i32 s12, s9, {5*55296}\ns_add_u32 s12, s12, {W2F - 1024}\ns_mov_b32 s10, 0\ns_mov_b32 s3, 0")
spoll(wc_issue, wc_test, sleep=10)
a(f"v_mov_b32 v10, {CNT+8}\ns_mov_b32 s11, 0")
a("L_pk_w:")
a("s_add_u32 s11, s11, 1\ns_cmp_gt_u32 s11, 200000\ns_cbranch_scc1 L_exit\ns_sleep 2")
a("ds_read_b32 v11, v10\ns_waitcnt lgkmcnt(0)\nv_readfirstlane_b32 s13, v11\ns_cmp_eq_u32 s13, 0\ns_cbranch_scc1 L_pk_w")
stamp(11)
a("L_pk_loop:")
for p in range(3):
    a(f"s_add_u32 s13, s12, {1024*PK[p]}")
    for i in range(5): a(f"s_add_u32 m0, s10, {5120*p+1024*i}\nbuffer_load_dwordx4 v{1+i}, {WS}, s13 offen{G2F} lds")
a(f"s_cmp_eq_u32 s3, 0\ns_cselect_b32 s13, 13, 14\ns_lshl_b32 s13, s13, 10\ns_add_u32 s12, s12, s13\ns_add_u32 s10, s10, {AREG}\ns_add_u32 s3, s3, 1\ns_cmp_lt_u32 s3, 4\ns_cbranch_scc1 L_pk_loop")
a(f"v_mov_b32 v2, {CNT}\nv_mov_b32 v3, 1\ns_waitcnt vmcnt(0)\nds_write_b32 v2, v3\ns_waitcnt lgkmcnt(0)")
stamp(12)
endp()

a("L_fetch:")
if opt("p1only", 0): endp()
a(tile_rc(8, 9, 10))
a("s_mul_i32 s11, s8, 81920")
a(f"v_mov_b32 v1, 0\ns_lshl_b32 s13, s9, 2\ns_add_u32 s13, s13, s{S_XR}\ns_lshl_b32 s13, s13, 7\ns_add_u32 s13, s13, {YAC}")
spoll(sld(12, 13), "s_cmp_ge_u32 s12, 80", sleep=opt('ysleep', 8), far=('s_cmp_ge_u32 s12, 24', opt('yfar', 32)))
stamp(11)
a(f"s_mul_i32 s10, s9, 10240\ns_add_u32 s11, s11, s10\ns_add_u32 s11, s11, {YA}\nv_lshlrev_b32 v1, 4, v0")
for q in range(10):
    a(f"buffer_load_dwordx4 {vr(16+4*q,4)}, v1, {WS}, s11 offen sc1\ns_add_u32 s11, s11, 1024")
a(f"v_add_u32 v1, {YAT}, v1")
for q in range(10):
    a(f"s_waitcnt vmcnt({9-q})\nds_write_b128 v1, {vr(16+4*q,4)} offset:{1024*q}")
a("s_waitcnt lgkmcnt(0)")
stamp(12)
a("s_barrier")
endp()

c_issue = sld(33, 100)
c_test = "s_cmp_ge_u32 s33, 64"
a("L_aux:")
a(f"s_sub_u32 s8, s{S_J}, s8\ns_and_b32 s15, {WV}, 3\ns_mov_b32 s35, 0\nv_mov_b32 v230, 0\ns_mov_b32 s71, 0\ns_mul_i32 s69, {WV}, {AREG}")
a(f"s_lshl_b32 s9, s{S_XR}, 4\ns_lshl_b32 s10, s{S_XC}, 3\ns_add_u32 s9, s9, s10\ns_add_u32 s9, s9, s8")
RAW, DV = 164, 64
a("v_and_b32 v238, 3, v0\nv_lshlrev_b32 v238, 2, v238")
a(f"s_cmp_ge_u32 s8, 8\ns_cbranch_scc1 L_nolnwg\ns_cmp_lt_u32 {WV}, 4\ns_cbranch_scc1 L_lnw")
a(f"s_lshl_b32 s{S_CH}, s9, 2\ns_add_u32 s{S_CH}, s{S_CH}, s15\ns_branch L_par")
a("L_nolnwg:")
a(f"s_mul_i32 s10, s{S_XR}, 12\ns_lshl_b32 s11, s{S_XC}, 2\ns_add_u32 s10, s10, s11\ns_add_u32 s10, s10, s8\ns_lshl_b32 s10, s10, 3\ns_add_u32 s10, s10, {WV}\ns_add_u32 s{S_CH}, s10, 192")
a(f"s_lshl_b32 s10, s{S_XC}, 4\ns_add_u32 s10, s10, s8\ns_cmp_lg_u32 s10, 8\ns_cbranch_scc1 L_par")
a(f"s_lshl_b32 s10, s{S_XR}, 15\ns_lshl_b32 s11, {WV}, 12\ns_add_u32 s10, s10, s11\ns_add_u32 s10, s10, {CLR}\nv_lshlrev_b32 v1, 4, v0\ns_mov_b32 s35, 5")
zero(4, 4)
for i in range(4): a(f"buffer_store_dwordx4 v[4:7], v1, {WS}, s10 offen offset:{1024*i} sc1")
a("L_par:")
a(f"s_lshl_b32 s10, s{S_CH}, 8\nv_lshl_add_u32 v1, v0, 2, s10")
for i, nm in enumerate(["are", "aim", "bre", "bim", "cre", "cim"]):
    a(f"global_load_dword v{240+i}, v1, s[{P[nm]}:{P[nm]+1}]{NT1}")
a(f"s_lshl_b32 s10, s{S_CH}, 1\nv_mov_b32 v1, s10\nglobal_load_ushort v246, v1, s[{P['ldt']}:{P['ldt']+1}]")
a(f"global_load_ushort v147, v1, s[{P['dsk']}:{P['dsk']+1}]")
a("s_cmp_lt_u32 s8, 8\ns_cbranch_scc1 L_cs\ns_cmp_lg_u32 s35, 5\ns_cbranch_scc1 L_kgen")
a(f"s_mov_b32 s35, 0\ns_waitcnt vmcnt(8)\ns_barrier\ns_cmp_lg_u32 {WV}, 0\ns_cbranch_scc1 L_kgen")
a(f"s_lshl_b32 s10, s{S_XR}, 2\nv_mov_b32 v2, 1\nv_mov_b32 v4, 0\ns_mov_b64 exec, 1\nbuffer_store_dword v2, v4, {DBG}, s10 offen sc1\ns_mov_b64 exec, -1")
stamp(1)
a("s_branch L_kgen")
a("L_cs:")
a(f"s_lshl_b32 s9, s{S_XR}, 3\ns_add_u32 s9, s9, s8")
a(f"s_mul_i32 s10, s{S_XC}, 6\ns_sub_u32 s10, 30, s10\ns_cmp_ge_u32 s9, s10\ns_cbranch_scc1 L_csn")
a(f"s_mul_i32 s10, s{S_XC}, 30\ns_add_u32 s9, s9, s10")
a("s_mul_i32 s12, s15, 552960\ns_lshl_b32 s11, s9, 6\ns_add_u32 s71, s12, s11")
a(f"v_and_b32 v4, 31, v0\nv_lshlrev_b32 v4, 1, v4\nv_add_u32 v4, s11, v4\nglobal_load_ushort v145, v4, s[{P['b1']}:{P['b1']+1}]")
a("v_lshrrev_b32 v2, 2, v0\nv_and_b32 v3, 3, v0\nv_mul_u32_u24 v1, 3456, v2\nv_lshl_add_u32 v230, v3, 4, v1\ns_mov_b32 s35, 2")
a("L_csn:")
a(f"s_setprio {opt('csprio', 2)}\ns_barrier")
a("L_kgen:")
a("s_mov_b32 s68, 0\ns_mov_b32 m0, s69")
a(lnc_addr)
a(f"s_mov_b32 s101, 0\nv_mov_b32 v146, 0\nv_mov_b32 v253, 0\ns_cmp_lt_u32 {WV}, 4\ns_cbranch_scc1 L_kg_nocs")
conv_setup()
a("L_kg_nocs:")
a("v_and_b32 v2, 31, v0\nv_mul_u32_u24 v2, 272, v2\nv_lshrrev_b32 v3, 5, v0\nv_lshl_add_u32 v2, v3, 4, v2\nv_add_u32 v228, s69, v2")
KA = 208
zero(KA, 16)
a("s_mov_b32 s3, 0\ns_waitcnt vmcnt(1)")
stamp(3)
a(f"v_lshlrev_b32 v3, 16, v246\nv_mul_f32 v3, {f32(math.log2(math.e))}, v3\nv_exp_f32 v3, v3\nv_cvt_pk_bf16_f32 v3, v3, v3\nv_lshlrev_b32 v229, 16, v3")
a("L_kg_loop:")
for i in range(6): a(f"v_and_b32 v{4+i}, 0xffff0000, v{240+i}\nv_lshlrev_b32 v{240+i}, 16, v{240+i}")
for i in range(4): a(f"v_mul_f32 v{4+i}, v229, v{4+i}")
a(f"v_mul_f32 v4, {f32(math.log2(math.e))}, v4\nv_mul_f32 v5, {f32(1/(2*math.pi))}, v5")
Z1, Z8, Z256, W = 10, 12, 14, 16
for k, z in ((1, Z1), (8, Z8), (256, Z256)):
    a(f"v_mul_f32 v20, {f32(k)}, v4\nv_mul_f32 v21, {f32(k)}, v5\nv_fract_f32 v21, v21\nv_exp_f32 v20, v20\nv_cos_f32 v{z}, v21\nv_sin_f32 v{z+1}, v21")
    neg = " neg_hi:[0,1]" if k == 8 else ""
    a(f"v_pk_mul_f32 {vr(z,2)}, {vr(z,2)}, v[20:21] op_sel:[0,0] op_sel_hi:[1,0]{neg}")
cmul(W, 8, 6, 20)
rowof = {}
h0 = [[0,1,2,3],[4,5,6,7],[1024,1032,1280,1288],[1536,1544,1792,1800]]
h1 = [[256,258,260,262],[264],[512,516,520],[768,772,776]]
for q in range(4):
    for i, v in enumerate(h0[q]): rowof[v] = 8*q + i
    for i, v in enumerate(h1[q]): rowof[v] = 8*q + 4 + i
cv = [0]
def put(src, row):
    t = 24 + (cv[0] % 4); cv[0] += 1
    a(f"v_cvt_pk_bf16_f32 v{t}, v{src}, v{src+1}\nds_write_addtid_b32 v{t} offset:{row*272}")
G = {0: W}
opsG = [lambda: put(W, rowof[0])]
for b in range(1, 9):
    G[b] = 32 + 2*b
    opsG.append(lambda b=b: (cmul(G[b], G[b-1], Z1, 20), put(G[b], rowof[b]) if b < 8 else None))
Pq = {1: Z256}
for q in range(1, 8):
    if q > 1:
        Pq[q] = 52 + 2*(q & 1)
        opsG.append(lambda q=q: cmul(Pq[q], Pq[q-1], Z256, 20))
    ds = {1: (0,2,4,6,8), 2: (0,4,8), 3: (0,4,8)}.get(q, (0, 8))
    for n, d in enumerate(ds):
        opsG.append(lambda q=q, d=d, n=n: (cmul(56+2*(n&1), G[d], Pq[q], 20), put(56+2*(n&1), rowof[256*q+d])))
opsE = [lambda: a(f"v_mov_b32 v28, 0x3f80\nds_write_addtid_b32 v28 offset:{32*272}"), lambda: put(Z8, 33)]
for j in range(2, 32):
    src = Z8 if j == 2 else 60 + 2*((j-1) & 1)
    dst = 60 + 2*(j & 1)
    opsE.append(lambda src=src, dst=dst, j=j: (cmul(dst, src, Z8, 22), put(dst, 32+j)))
for i in range(max(len(opsG), len(opsE))):
    if i < len(opsE): opsE[i]()
    if i < len(opsG): opsG[i]()
    if i < 10:
        a(f"s_cmp_lg_u32 s35, 2\ns_cbranch_scc1 L_kg_nl{i}\nbuffer_load_dwordx4 {vr(RAW+4*i,4)}, v230, {SB}, s71 offen{NT}\ns_add_u32 s71, s71, 55296")
        a(f"L_kg_nl{i}:")
for k in range(8):
    a(f"ds_read_b128 {vr(64+8*k,4)}, v228 offset:{32*k}\nds_read_b128 {vr(68+8*k,4)}, v228 offset:{32*272+32*k}")
for k in range(8):
    a(f"s_waitcnt lgkmcnt({14-2*k})")
    a(f"v_mfma_f32_32x32x16_bf16 {vr(KA,16)}, {vr(64+8*k,4)}, {vr(68+8*k,4)}, {vr(KA,16)}")
clr_s = f"s_load_dwordx4 s[28:31], s[{P['dbg']}:{P['dbg']+1}], 0"
a("s_cmp_lg_u32 s3, 0\ns_cbranch_scc1 L_kg_done")
a("s_mov_b32 s3, 1\ns_cmp_lg_u32 s35, 2\ns_cbranch_scc1 L_kg_loop")
a(clr_s)
a("s_branch L_csum")
def need_clr(tag):
    a(f"s_waitcnt lgkmcnt(0)\ns_and_b32 s28, s28, s29\ns_and_b32 s30, s30, s31\ns_and_b32 s28, s28, s30\ns_cbranch_scc1 L_clr_{tag}")
    poll(clr_issue(239, 238), clr_test(239), sleep=8, issued=False)
    a(f"L_clr_{tag}:")
def touch():
    if not opt("touch", 0): return
    n = 270 if RS else 135
    a(f"s_and_b32 s10, s8, 7\ns_lshl_b32 s10, s10, 3\ns_add_u32 s10, s10, {WV}")
    if RS: a(f"s_and_b32 s11, s2, 7\ns_lshl_b32 s11, s11, 3\ns_add_u32 s10, s10, s11\ns_and_b32 s10, s10, 63\ns_mul_i32 s10, s10, {n*128}")
    else: a(f"s_lshl_b32 s11, s{S_XR}, 4\ns_add_u32 s10, s10, s11\ns_and_b32 s10, s10, 63\ns_mul_i32 s10, s10, {n*128}\ns_mul_i32 s11, s{S_XC}, 1105920\ns_add_u32 s10, s10, s11")
    a(f"s_add_u32 s10, s10, {W2F}\nv_lshlrev_b32 v4, 7, v0")
    for i in range(n // 64): a(f"buffer_load_dword v144, v4, {WS}, s10 offen sc1\ns_add_u32 s10, s10, 8192")
    a(few((1 << (n % 64)) - 1, f"buffer_load_dword v144, v4, {WS}, s10 offen sc1"))
def lds_wait(tag, target):
    a("s_mov_b32 s12, 0")
    a(f"L_sb{tag}:")
    a("s_add_u32 s12, s12, 1\ns_cmp_gt_u32 s12, 2000000\ns_cbranch_scc1 L_exit")
    a(f"ds_read_b32 v15, v14\ns_waitcnt lgkmcnt(0)\nv_readfirstlane_b32 s11, v15\ns_cmp_lt_u32 s11, {target}\ns_cbranch_scc1 L_sb{tag}")
W2R = lambda i: (204 + 4*i) if i < 8 else (240 + 4*(i-8))
a("L_lnw:")
a("s_lshl_b32 s10, s9, 5\ns_lshl_b32 s11, s15, 3\ns_add_u32 s14, s10, s11\ns_mul_i32 s11, s14, 1280")
a("v_lshrrev_b32 v2, 4, v0\nv_and_b32 v3, 15, v0\nv_mul_u32_u24 v1, 2560, v2\nv_lshl_add_u32 v1, v3, 4, v1")
for sg in range(2):
    for i in range(5):
        a(f"buffer_load_dwordx4 {vr(RAW+20*sg+4*i,4)}, v1, {SA}, s11 offen offset:{sg*1280+i*256}{NT}")
a(f"v_mov_b32 v4, {CNT}\nv_mov_b32 v5, 0\nds_write_b32 v4, v5\ns_waitcnt lgkmcnt(0)\ns_barrier")
a("s_lshl_b32 s11, s15, 4\nv_lshlrev_b32 v8, 2, v2\nv_add_u32 v8, s11, v8")
for i in range(5):
    a(f"v_add_u32 v4, {16*i}, v3\nv_mul_u32_u24 v5, 3277, v4\nv_lshrrev_b32 v5, 16, v5\nv_mul_u32_u24 v5, {BREG-20*528}, v5\nv_mul_u32_u24 v4, 528, v4\nv_add3_u32 v{150+i}, v4, v5, v8")
a(f"s_setprio 2\nv_mov_b32 v14, {CNT}\nv_lshrrev_b32 v2, 4, v0\ns_mov_b32 s12, 0x3f803f80")
zero(4, 4)
a("s_waitcnt vmcnt(0)")
stamp(1)
a(clr_s)
srd(S_B, P['w2'], 2211840)
a("v_lshrrev_b32 v8, 3, v0\nv_mul_u32_u24 v8, 1280, v8\nv_and_b32 v9, 7, v0\nv_lshl_add_u32 v8, v9, 4, v8\ns_lshl_b32 s8, s9, 2\ns_add_u32 s8, s8, s15")
for u_ in range(3):
    a(f"s_add_u32 s10, s8, {256*u_}\ns_mul_i32 s11, s10, 6554\ns_lshr_b32 s11, s11, 16\ns_mul_i32 s70, s11, 10\ns_sub_u32 s70, s10, s70")
    a(f"s_mul_i32 s13, s11, 40960\ns_lshl_b32 s71, s70, 7\ns_add_u32 s13, s13, s71\ns_mul_i32 s71, s70, 216\ns_add_u32 s71, s71, s11\ns_lshl_b32 s71, s71, 10\ns_add_u32 s{96+u_}, s71, {W2F}")
    if u_ == 2: a(f"s_cmp_lt_u32 s10, 540\ns_cselect_b32 s13, s13, {OOB}\ns_cselect_b32 s98, s98, {OOB}")
    for q in range(4): a(f"buffer_load_dwordx4 {vr(W2R(4*u_+q),4)}, v8, {SB}, s13 offen{NT1}\ns_add_u32 s13, s13, 10240")
for sg in range(2):
    for k in range(20):
        a(f"v_dot2_f32_bf16 v{4+2*sg+(k&1)}, v{RAW+20*sg+k}, s12, v{4+2*sg+(k&1)}")
a("v_add_f32 v4, v4, v5\nv_add_f32 v6, v6, v7")
def unp(sg, ks):
    for k in ks:
        d = DV + 40*sg + 2*k
        a(f"v_lshlrev_b32 v{d}, 16, v{RAW+20*sg+k}\nv_and_b32 v{d+1}, 0xffff0000, v{RAW+20*sg+k}")
for n, sh in enumerate((8, 4, 2, 1)):
    a(f"v_add_f32_dpp v4, v4, v4 row_ror:{sh} row_mask:0xf bank_mask:0xf\nv_add_f32_dpp v6, v6, v6 row_ror:{sh} row_mask:0xf bank_mask:0xf")
    unp(0, range(5*n, 5*n+5))
a(f"v_mul_f32 v4, {f32(1/640)}, v4\nv_mul_f32 v6, {f32(1/640)}, v6")
a("v_cvt_pk_bf16_f32 v5, v4, v6\nv_lshlrev_b32 v8, 16, v5\nv_and_b32 v9, 0xffff0000, v5")
a("v_sub_f32 v56, 0, v8\nv_sub_f32 v57, 0, v8\nv_sub_f32 v58, 0, v9\nv_sub_f32 v59, 0, v9")
zero(10, 4)
unp(1, range(20))
for sg in range(2):
    for k in range(20):
        d = DV + 40*sg + 2*k
        a(f"v_pk_add_f32 {vr(d,2)}, {vr(d,2)}, {vr(56+2*sg,2)}")
    for k in range(20):
        d = DV + 40*sg + 2*k
        a(f"v_pk_fma_f32 {vr(10+2*sg,2)}, {vr(d,2)}, {vr(d,2)}, {vr(10+2*sg,2)}")
a("v_add_f32 v10, v10, v11\nv_add_f32 v12, v12, v13")
def rnd(sg, ks):
    for k in ks:
        d = DV + 40*sg + 2*k
        a(f"v_cvt_pk_bf16_f32 v{RAW+20*sg+k}, v{d}, v{d+1}")
for n, sh in enumerate((8, 4, 2, 1)):
    a(f"v_add_f32_dpp v10, v10, v10 row_ror:{sh} row_mask:0xf bank_mask:0xf\nv_add_f32_dpp v12, v12, v12 row_ror:{sh} row_mask:0xf bank_mask:0xf")
    rnd(0, range(2*n, 2*n+2))
a("v_sub_f32 v4, v4, v8\nv_sub_f32 v6, v6, v9\nv_mul_f32 v4, v4, v4\nv_mul_f32 v6, v6, v6")
a(f"s_mov_b32 s12, {f32(1/640)}\nv_fma_f32 v4, v10, s12, -v4\nv_fma_f32 v6, v12, s12, -v6")
a("v_max_f32 v4, 0, v4\nv_max_f32 v6, 0, v6")
a("v_cvt_pk_bf16_f32 v7, v4, v6\nv_lshlrev_b32 v4, 16, v7\nv_and_b32 v6, 0xffff0000, v7")
a(f"v_add_f32 v4, {f32(1e-5)}, v4\nv_add_f32 v6, {f32(1e-5)}, v6")
a("v_cvt_pk_bf16_f32 v7, v4, v6\nv_lshlrev_b32 v4, 16, v7\nv_and_b32 v6, 0xffff0000, v7")
a("v_sqrt_f32 v4, v4\nv_sqrt_f32 v6, v6\nv_cvt_pk_bf16_f32 v7, v4, v6")
a("v_lshlrev_b32 v4, 16, v7\nv_and_b32 v6, 0xffff0000, v7\nv_rcp_f32 v60, v4\nv_rcp_f32 v61, v4\nv_rcp_f32 v62, v6\nv_rcp_f32 v63, v6")
a("v_and_b32 v12, 0xffff, v5\nv_or_b32 v12, v12, v4\nv_lshrrev_b32 v13, 16, v5\nv_or_b32 v13, v13, v6")
a(f"s_lshl_b32 s11, s14, 2\ns_add_u32 s11, s11, {STATS}\nv_lshlrev_b32 v1, 3, v2")
need_clr("ln")
a(f"s_mov_b32 exec_lo, 0x10001\ns_mov_b32 exec_hi, 0x10001\nbuffer_store_dwordx2 v[12:13], v1, {WS}, s11 offen sc1\ns_mov_b64 exec, -1")
stamp(2)
rnd(0, range(8, 20)); rnd(1, range(20))
unp(0, range(20)); unp(1, range(20))
for sg in range(2):
    for k in range(20):
        d = DV + 40*sg + 2*k
        a(f"v_pk_mul_f32 {vr(d,2)}, {vr(d,2)}, {vr(60+2*sg,2)}")
for k in range(20):
    for h in range(2):
        d = DV + 2*k + h
        a(f"v_cvt_pk_bf16_f32 v{d}, v{d}, v{d+40}")
    d = DV + 2*k
    a(f"ds_write2_b32 v{150+k//4}, v{d}, v{d+1} offset0:{(k%4)*32} offset1:{(k%4)*32+16}")
a("v_mov_b32 v15, 1\nds_add_u32 v14, v15")
a("v_lshrrev_b32 v3, 5, v0\nv_lshlrev_b32 v2, 4, v0\nv_lshl_add_u32 v1, v3, 4, v2\nv_add_u32 v1, s69, v1")
a("s_mul_i32 s10, s9, 40960\ns_mul_i32 s11, s15, 10240\ns_add_u32 s10, s10, s11")
lds_wait("b", 256)
for i in range(10): a(f"ds_read_b128 {vr(RAW+4*i,4)}, v1 offset:{1056*i}")
for i in range(10):
    a(f"s_waitcnt lgkmcnt({9-i})\nbuffer_store_dwordx4 {vr(RAW+4*i,4)}, v2, {WS}, s10 offen sc1\ns_add_u32 s10, s10, 1024")
a(f"s_lshl_b32 s10, s15, 11\ns_add_u32 s10, s10, {LNC}\nv_lshlrev_b32 v4, 7, v0\nv_mov_b32 v5, 1")
a("v_add_u32 v7, s69, v2\ns_waitcnt vmcnt(10)")
for i in range(12): a(f"ds_write_b128 v7, {vr(W2R(i),4)} offset:{1024*i}")
a("v_lshrrev_b32 v6, 5, v0\nv_bfe_u32 v7, v0, 4, 1\nv_lshlrev_b32 v6, 4, v6\nv_lshl_add_u32 v6, v7, 2, v6\nv_bfe_u32 v7, v0, 2, 2\nv_add_u32 v6, v6, v7")
a("v_lshlrev_b32 v6, 7, v6\nv_and_b32 v7, 3, v0\nv_lshl_add_u32 v6, v7, 3, v6\nv_add_u32 v6, s69, v6")
for u_ in range(3):
    for dt in range(4):
        for h in range(2): a(f"ds_read_b64_tr_b16 {vr(16+16*u_+4*dt+2*h,2)}, v6 offset:{4096*u_+1024*h+32*dt}")
a(f"s_waitcnt vmcnt(0)\ns_mov_b64 exec, 0xffff\nbuffer_atomic_add v5, v4, {WS}, s10 offen sc1\ns_mov_b64 exec, -1\ns_setprio 0\ns_waitcnt lgkmcnt(0)")
stamp(3)
for u_ in range(3):
    for dt in range(4):
        a(f"buffer_store_dwordx4 {vr(16+16*u_+4*dt,4)}, v2, {WS}, s{96+u_} offen sc1\ns_add_u32 s{96+u_}, s{96+u_}, 55296")
a("s_waitcnt vmcnt(0)\ns_mov_b64 exec, 1\nds_add_rtn_u32 v7, v14, v5\ns_waitcnt lgkmcnt(0)\nv_readfirstlane_b32 s10, v7")
a(f"s_and_b32 s11, s9, 1\ns_lshl_b32 s11, s11, 6\ns_add_u32 s11, s11, 128\ns_cmp_eq_u32 s10, 259\ns_cselect_b32 s11, s11, {OOB}\nbuffer_atomic_add v5, v4, {DBG}, s11 offen sc1\ns_mov_b64 exec, -1")
stamp(4)
a("s_cmp_lg_u32 s8, 255\ns_cbranch_scc1 L_norelay")
a(f"v_lshlrev_b32 v6, 6, v0\ns_mov_b32 s8, {W2C}")
poll(few(3, f"buffer_load_dword v7, v6, {DBG}, 0 offen offset:128 sc1"),
     "v_readlane_b32 s9, v7, 0\nv_readlane_b32 s10, v7, 1\ns_add_u32 s9, s9, s10\ns_cmp_ge_u32 s9, 64", sleep=4, issued=False)
stamp(11)
a(f"s_mov_b32 exec_hi, 0\nbuffer_store_dword v5, v4, {WS}, s8 offen offset:1024 sc1\ns_mov_b32 exec_hi, -1")
a("L_norelay:")
a("s_mov_b32 s35, 1\ns_branch L_g2")
a("L_csum:")
a("s_setprio 3\ns_mov_b32 s12, 0x00003f80\ns_mov_b32 s13, 0x3f800000\nv_and_b32 v3, 3, v0")
zero(4, 8)
a("s_waitcnt vmcnt(0)")
for i in range(10):
    for k in range(4):
        a(f"v_dot2_f32_bf16 v{4+2*k}, v{RAW+4*i+k}, s12, v{4+2*k}\nv_dot2_f32_bf16 v{5+2*k}, v{RAW+4*i+k}, s13, v{5+2*k}")
for sh in (8, 4):
    for r in range(8): a(f"v_add_f32_dpp v{4+r}, v{4+r}, v{4+r} row_ror:{sh} row_mask:0xf bank_mask:0xf")
a("v_lshrrev_b32 v12, 4, v0\nv_lshlrev_b32 v12, 7, v12\nv_lshl_add_u32 v12, v3, 5, v12\nv_add_u32 v12, s69, v12")
a("ds_write_b128 v12, v[4:7]\nds_write_b128 v12, v[8:11] offset:16")
a("v_and_b32 v12, 31, v0\nv_lshl_add_u32 v13, v12, 2, s69")
for p in range(4): a(f"ds_read_b32 v{16+p}, v13 offset:{128*p}")
a("s_waitcnt lgkmcnt(0)\nv_add_f32 v16, v16, v17\nv_add_f32 v18, v18, v19\nv_add_f32 v16, v16, v18")
a("v_cvt_pk_bf16_f32 v4, v16, v16\nv_lshlrev_b32 v5, 16, v4\nv_sub_f32 v5, v16, v5")
a("v_cvt_pk_bf16_f32 v6, v16, v5\nv_and_b32 v7, 0xffff0000, v6\nv_sub_f32 v7, v5, v7")
a("v_cvt_pk_bf16_f32 v7, v7, v7\nv_and_b32 v7, 0xffff, v7\nv_or_b32 v7, 1, v7")
a(f"s_lshl_b32 s12, s9, 8\ns_mul_i32 s13, s15, {CSP}\ns_add_u32 s12, s12, s13\ns_add_u32 s12, s12, {CSUM}\nv_lshlrev_b32 v12, 3, v12")
need_clr("cs")
a("v_lshl_or_b32 v7, v145, 16, v7")
a(f"s_mov_b32 exec_hi, 0\nbuffer_store_dwordx2 v[6:7], v12, {WS}, s12 offen sc1\ns_mov_b32 exec_hi, -1")
stamp(2)
a("s_setprio 0\ns_mov_b32 s35, 4\ns_branch L_kg_loop")
a("L_kg_done:")
a("s_waitcnt vmcnt(0)")
a("s_cmp_ge_u32 s35, 3\ns_cbranch_scc1 L_clr_fin")
a(clr_s)
need_clr("fin")
a(f"s_waitcnt lgkmcnt(0)\ns_cmp_lt_u32 {WV}, 4\ns_cbranch_scc1 L_kg_nc")
a(c_issue)
a("L_kg_nc:")
a("s_nop 7")
stamp(4)
a("s_setprio 0")
r = lambda i: KA + i
a("v_lshlrev_b32 v1, 4, v0\nv_add_u32 v13, s69, v1")
zero(4, 4)
for i in range(3): a(f"ds_write_b128 v13, v[4:7] offset:{SCR+1024*i}")
a("v_and_b32 v3, 31, v0\nv_lshlrev_b32 v2, 4, v3\nv_sub_u32 v2, s69, v2\nv_add_u32 v2, 512, v2")
def pack(o, pairs):
    for i, (lo, hi) in enumerate(pairs): a(f"v_cvt_pk_bf16_f32 v{o+i}, {lo}, {hi}")
R = lambda i: f"v{KA+i}"
pack(16, [(R(7),R(6)),(R(5),R(4)),(R(3),R(2)),(R(1),R(0))])
pack(20, [(R(4),R(3)),(R(2),R(2)),(R(2),R(1)),(R(0),R(0))])
pack(24, [("0","0"),(R(9),R(9)),(R(9),R(8)),(R(8),R(8))])
pack(28, [(R(9),R(10)),(R(13),R(14))])
pack(30, [(R(9),R(11)),(R(13),R(15))])
a(f"v_and_b32 v8, 1, v3\nv_and_b32 v10, 30, v3\nv_mul_u32_u24 v9, 320, v8\nv_mul_u32_u24 v8, 640, v8\ns_add_u32 s10, s69, {T2}\nv_sub_u32 v10, s10, v10\nv_add_u32 v8, v8, v10\nv_add_u32 v9, v9, v10")
a("s_mov_b32 exec_hi, 0")
a(f"ds_write_b128 v2, v[16:19] offset:{IMG+1072-512}")
for q in range(4):
    for cp in range(2): a(f"ds_write_b16{'_d16_hi' if q & 1 else ''} v9, v{30+q//2} offset:{T3-T2 + 160*cp + 2*(63-16*q-cp)}")
a("s_mov_b32 exec_hi, -1\ns_mov_b32 exec_lo, 0")
a(f"ds_write_b128 v2, v[20:23] offset:{IMG+560-512}")
for q in range(2):
    for w in range(2):
        for cp in range(2): a(f"ds_write_b16{'_d16_hi' if w else ''} v8, v{28+q} offset:{320*w + 160*cp + 2*(47-16*q-cp)}")
a(f"s_mov_b32 exec_hi, 1\nds_write_b128 v2, v[24:27] offset:{IMG+48-512}\nds_write_b16 v8, v4 offset:{2*47}\nds_write_b16 v8, v4 offset:{160+2*46}\ns_mov_b64 exec, -1")
a(f"s_cmp_lt_u32 {WV}, 4\ns_cbranch_scc1 L_kexp")
a("s_waitcnt lgkmcnt(0)")
a(c_test)
a("s_cbranch_scc0 L_cv_kpart")
uloads()
a("s_mov_b32 s68, 2")
a("L_cv_kpart:")
B2, B3 = 164, 188
a(f"v_mov_b32 v5, s69\nds_read_u16 v34, v5 offset:{T2 + 6*160 + 2*16}")
a(f"ds_read_b128 v[16:19], v{cLIN} offset:{IMG}\nds_read_b64 v[20:21], v{cLIN} offset:{IMG+16}\nds_read_b128 v[24:27], v{cIMG2} offset:{IMG+1024}\nds_read_b64 v[28:29], v{cIMG2} offset:{IMG+1040}")
for i in range(6):
    for h in range(2): a(f"ds_read2_b32 {vr(B2+4*i+2*h,2)}, v{cT2} offset0:{4*i+2*h} offset1:{4*i+2*h+1}")
for d in range(4):
    for h in range(2): a(f"ds_read2_b32 {vr(B3+4*d+2*h,2)}, v{cT3} offset0:{8*(3-d)+2*h} offset1:{8*(3-d)+2*h+1}")
a("v_lshl_or_b32 v5, v147, 16, v147")
for k in range(4): a(f"v_and_b32 v{AD+k}, v{AD+k}, v5")
a("s_waitcnt lgkmcnt(15)\nv_lshl_or_b32 v5, v34, 16, v34")
for k in range(4): a(f"v_and_b32 v{AB+k}, v{AB+k}, v5")
for rr, (D, va, off) in enumerate(((16, cKW1, 0), (24, cKW2, 4608))):
    O = 64 + 16*rr
    for i in range(4):
        a(f"v_mov_b32 v{O+4*i}, v{D+i}\nv_mov_b32 v{O+4*i+1}, v{D+i+1}")
        a(f"v_alignbit_b32 v{O+4*i+2}, v{D+i+1}, v{D+i}, 16\nv_alignbit_b32 v{O+4*i+3}, v{D+i+2}, v{D+i+1}, 16")
        a(f"ds_write_b128 v{va}, {vr(O+4*i,4)} offset:{off + 16*i}")
a(f"ds_read_b64 {vr(A16,2)}, v{cA0}\nds_read_b64 {vr(A16+2,2)}, v{cA1}")
stamp(5)
a("s_cmp_lg_u32 s101, 0\ns_cbranch_scc1 L_cv_direct")
a("L_cv_upart:")
zero(4, 4)
a(f"s_mov_b64 exec, 0x3fffffff\nds_write_b128 v{cLIN}, v[4:7] offset:{UB-480}\ns_mov_b64 exec, 3")
for o in (W3B-48, W5B-48, W7B-48, W9B-48, W9B+2032): a(f"ds_write_b128 v{cLIN}, v[4:7] offset:{o}")
a("s_mov_b64 exec, -1")
a("s_bitcmp1_b32 s68, 1\ns_cbranch_scc1 L_cv_u2")
spoll(c_issue, c_test, sleep=opt("lsleep", 6))
uloads()
a("L_cv_u2:")
stamp(6)
a("s_waitcnt vmcnt(0)")
for q in range(4): a(f"ds_write_b128 v{cLIN}, {vr(148+4*q,4)} offset:{UB+1024*q}")
SET = [(16, 24), (56, 64)]; CA = 96
a(f"v_mov_b32 v13, v{cLIN}\ns_mov_b32 s3, 0")
o = UB - 16
wrd = f"ds_read_b64 v[128:129], v13 offset:{o-8}\nds_read_b128 v[130:133], v13 offset:{o}\nds_read_b64 v[134:135], v13 offset:{o+16}"
a(wrd)
a("s_waitcnt lgkmcnt(0)")
a("L_cv_win:")
D = 128; Pf = 96
for e in range(16):
    a(f"v_lshlrev_b32 v{Pf+e}, 16, v{D+e//2}" if e % 2 == 0 else f"v_and_b32 v{Pf+e}, 0xffff0000, v{D+e//2}")
a(wrd.replace(f"offset:{o-8}", f"offset:{o-8+1024}").replace(f"offset:{o}\n", f"offset:{o+1024}\n").replace(f"offset:{o+16}", f"offset:{o+16+1024}"))
for e in range(1, 16): a(f"v_add_f32 v{Pf+e}, v{Pf+e}, v{Pf+e-1}")
for h, base in ((1, W3B), (2, W5B), (3, W7B), (4, W9B)):
    if h == 3: a("s_cmp_eq_u32 s3, 2\ns_cbranch_scc1 L_cv_wend")
    T = 112
    for i in range(8):
        b = 4+i-h-1
        a(f"v_sub_f32 v{T+i}, v{Pf+4+i+h}, v{Pf+b}" if b >= 0 else f"v_mov_b32 v{T+i}, v{Pf+4+i+h}")
    for i in range(4): a(f"v_cvt_pk_bf16_f32 v{120+4*(h&1)+i}, v{T+2*i}, v{T+2*i+1}")
    a(f"ds_write_b128 v13, {vr(120+4*(h&1),4)} offset:{base-16}")
a("v_add_u32 v13, 1024, v13\ns_add_u32 s3, s3, 1\ns_waitcnt lgkmcnt(4)\ns_branch L_cv_win")
a("L_cv_wend:")
a("s_cmp_lg_u32 s101, 0\ns_cbranch_scc1 L_cv_rk")
a("L_cv_direct:")
a(f"v_add_u32 v8, 2304, v{cA0}\nv_add_u32 v9, 2304, v{cA1}\nv_mov_b32 v10, v{cB}")
def rd(st):
    A_, B_ = SET[st]; Rr = []
    for x in range(2):
        Rr.append(f"ds_read_b64 {vr(A_+4*x,2)}, v8 offset:{2304*(1-x)}")
        Rr.append(f"ds_read_b64 {vr(A_+4*x+2,2)}, v9 offset:{2304*(1-x)}")
    for b in range(8): Rr.append(f"ds_read_b128 {vr(B_+4*b,4)}, v10 offset:{512*b}")
    return Rr
advk = ["v_subrev_u32 v8, 288, v8", "v_subrev_u32 v9, 288, v9", "v_subrev_u32 v10, 64, v10"]
for x in rd(0) + advk: a(x)
a(f"s_setprio {opt('cprio', 2)}\ns_mov_b32 s3, 0\ns_waitcnt lgkmcnt(0)")
if PROF: a("s_cmp_lt_u32 s4, 4\ns_cbranch_scc1 L_ns7")
stamp(7)
if PROF: a("L_ns7:")
def mf(n, A_, B_, c=None): a(f"v_mfma_f32_16x16x32_bf16 {vr(CA+4*n,4)}, {vr(A_,4)}, {vr(B_,4)}, {c if c else vr(CA+4*n,4)}")
for b in range(8): mf(b, AD, SET[0][1]+4*b, "0")
for b in range(6): mf(b+2, A16, SET[0][1]+4*b)
for b in range(4): mf(b+4, AB, SET[0][1]+4*b)
a("L_cv_loop:")
for st in range(2):
    A_, B_ = SET[st]; Rr = rd(1-st); n = 0
    for x in range(2):
        for b in range(8-x):
            mf(x+b, A_+4*x, B_+4*b)
            if n < 6: a(Rr[2*n]); a(Rr[2*n+1])
            elif n < 9: a(advk[n-6])
            if st == 1 and n == 12: a("s_add_u32 s3, s3, 1\ns_cmp_lt_u32 s3, 4")
            n += 1
    a("s_waitcnt lgkmcnt(0)")
a("s_cbranch_scc1 L_cv_loop")
a("L_cv_far:")
for f in range(12):
    for h in range(2): a(f"ds_read_b64_tr_b16 {vr(16+4*f+2*h,2)}, v{cW2} offset:{256*f+128*h}")
    if f == 6: a("s_waitcnt lgkmcnt(8)")
for f in range(4):
    for h in range(2): a(f"ds_read_b64_tr_b16 {vr(64+4*f+2*h,2)}, v{cW3} offset:{512*f+128*h}")
a("s_waitcnt lgkmcnt(8)")
for f in range(12):
    for n in range(2, 8):
        i = f + 8 - 2*n
        if 0 <= i < 6: mf(n, 16+4*f, B2+4*i)
a("s_waitcnt lgkmcnt(0)")
for f in range(4):
    for n in range(4+f, 8): mf(n, 64+4*f, B3+4*(n-f-4))
if PROF: a("s_cmp_lt_u32 s4, 4\ns_cbranch_scc1 L_ns8")
stamp(8)
if PROF: a("L_ns8:")
a(f"s_lshl_b32 s14, s{S_CH}, 7\ns_add_u32 s14, s14, {YA}\ns_nop 7")
for n in range(0, 8, 2):
    o = 16 + 2*n
    a(f"v_cvt_pk_bf16_f32 v{o}, v{CA+4*n}, v{CA+4*n+1}\nv_cvt_pk_bf16_f32 v{o+1}, v{CA+4*n+2}, v{CA+4*n+3}")
    a(f"v_cvt_pk_bf16_f32 v{o+2}, v{CA+4*n+4}, v{CA+4*n+5}\nv_cvt_pk_bf16_f32 v{o+3}, v{CA+4*n+6}, v{CA+4*n+7}")
    a(f"v_permlane16_swap_b32 v{o}, v{o+2}\nv_permlane16_swap_b32 v{o+1}, v{o+3}")
    a(f"buffer_store_dwordx4 {vr(o,4)}, v{cST}, {WS}, s14 offen sc1\ns_add_u32 s14, s14, {8*81920}")
a(f"s_mul_i32 s13, s{S_CH}, 820\ns_lshr_b32 s13, s13, 16\ns_lshl_b32 s14, s13, 9\ns_add_u32 s14, s14, {YAC}\nv_lshlrev_b32 v4, 7, v0\nv_mov_b32 v5, 1")
a(f"s_waitcnt vmcnt(0)\ns_mov_b64 exec, 15\nbuffer_atomic_add v5, v4, {WS}, s14 offen sc1\ns_mov_b64 exec, -1")
a("s_setprio 0")
stamp(9)
a(f"s_cmp_eq_u32 {WV}, 7\ns_cbranch_scc1 L_fetch")
endp()
a("L_kexp:")
for q in range(3): a(f"ds_read_b128 {vr(16+4*q,4)}, v13 offset:{SCR+1024*q}")
a(f"s_lshl_b32 s9, s{S_CH}, 12\ns_add_u32 s9, s9, {KD}")
for q in range(3): a(f"s_waitcnt lgkmcnt({2-q})\nbuffer_store_dwordx4 {vr(16+4*q,4)}, v1, {WS}, s9 offen offset:{1024*q} sc1")
a(f"s_sub_u32 s8, s{S_CH}, 256\ns_lshr_b32 s8, s8, 3\ns_lshl_b32 s8, s8, 2\ns_add_u32 s8, s8, {WV}\ns_cmp_ge_u32 s8, 144\ns_cselect_b32 s12, 1, 0\ns_mul_i32 s9, s12, 144\ns_sub_u32 s8, s8, s9")
a("s_mul_i32 s9, s8, 1821\ns_lshr_b32 s9, s9, 16\ns_mul_i32 s10, s9, 36\ns_sub_u32 s8, s8, s10")
a("s_cmp_ge_u32 s8, 20\ns_cselect_b32 s10, 1, 0\ns_mul_i32 s11, s10, 20\ns_sub_u32 s8, s8, s11\ns_lshl_b32 s8, s8, 3\ns_lshl_b32 s9, s9, 1\ns_add_u32 s8, s8, s9\ns_add_u32 s8, s8, s10")
a(f"s_lshl_b32 s8, s8, 7\ns_add_u32 s8, s8, {MBOX}\ns_lshl_b32 s9, 0x1000000, s12\nv_mov_b32 v4, 0\nv_mov_b32 v5, s9")
a(f"s_waitcnt vmcnt(0)\ns_mov_b64 exec, 1\nbuffer_atomic_or v5, v4, {WS}, s8 offen sc1\ns_mov_b64 exec, -1")
stamp(12)
a("s_mov_b32 s35, 1\ns_branch L_g2")
a("L_cv_rk:")
a("s_bitcmp1_b32 s68, 0\ns_cbranch_scc1 L_cv_k1")
spoll(sld(31, S_MB), "s_and_b32 s13, s31, s101", sleep=6)
kloads()
a("L_cv_k1:")
for q in range(3): a(f"s_waitcnt vmcnt({2-q})\nds_write_b128 v{cLIN}, {vr(32+4*q,4)} offset:{SCR+1024*q}")
stamp(4)
a("s_branch L_cv_kpart")

a("L_end:")
if PROF:
    a(f"s_lshl_b32 s93, s2, 3\ns_add_u32 s93, s93, {WV}\ns_lshl_b32 s93, s93, 6\ns_add_u32 s93, s93, {PROFB}")
    a(f"s_memrealtime s[94:95]\ns_waitcnt lgkmcnt(0)\ns_mov_b32 s87, s94\ns_mov_b32 s72, s{S_SPIN}")
    for i in range(16): a(f"v_mov_b32 v{224+i}, s{72+i}")
    a("v_mov_b32 v255, 0\ns_mov_b64 exec, 1")
    for i in range(4): a(f"buffer_store_dwordx4 {vr(224+4*i,4)}, v255, {WS}, s93 offen offset:{16*i}")
    if opt("dbgmax", 0):
        a(f"v_not_b32 v238, v238\ns_and_b32 s93, {WV}, 3\ns_cmp_lg_u32 s93, 0\ns_cbranch_scc1 L_exit")
        sel0 = {1: 14, 2: 15, 3: 1, 4: 2, 5: 5, 6: 6, 7: 8, 8: 10}
        sel4 = {9: 10, 10: 4, 11: 7, 12: 8, 13: 9}
        a(f"s_cmp_lg_u32 {WV}, 0\ns_cbranch_scc1 L_dbg4")
        for d, i in sel0.items(): a(f"buffer_atomic_umax v{224+i}, v255, {DBG}, 0 offen offset:{4*d} sc1")
        a("s_branch L_exit")
        a("L_dbg4:")
        for d, i in sel4.items(): a(f"buffer_atomic_umax v{224+i}, v255, {DBG}, 0 offen offset:{4*d} sc1")
a("L_exit:")
a("s_endpgm")

hdr = open("cdna_kernels/%s.s.ref" % NAME).read().split("; Override launch")[0]
out = hdr + "; @launch grid=(256,1,1) block=(512,1,1) lds=163840\n"
out += '.amdgcn_target "amdgcn-amd-amdhsa--gfx950"\n.text\n' + a.text()
out += f""".section .rodata,"a"
.p2align 6
.amdhsa_kernel {KN}
  .amdhsa_next_free_vgpr 256
  .amdhsa_next_free_sgpr 102
  .amdhsa_accum_offset 256
  .amdhsa_group_segment_fixed_size 0
  .amdhsa_kernarg_size 136
  .amdhsa_user_sgpr_count 2
  .amdhsa_user_sgpr_kernarg_segment_ptr 1
  .amdhsa_system_sgpr_workgroup_id_x 1
.end_amdhsa_kernel
"""
path = [x for x in sys.argv[1:] if not x.startswith("--")]
open(path[0] if path else "f.s", "w").write(out)
```

```python
import sys, struct, math
sys.path.insert(0, "dev")
from asmlib import Asm, vr, sr

NAME = "parallel_sum__ssm_conv_s4__dense_activation_gelu__prompt"
KN = NAME + "_kernel"
PROF = "--prof" in sys.argv
def opt(name, default):
    for x in sys.argv:
        if x.startswith("--%s=" % name): return int(x.split("=")[1])
    return default
def f32(x): return "0x%08x" % struct.unpack("<I", struct.pack("<f", x))[0]

XNT, KD, YA, W2F = 0x000000, 0x280000, 0x500000, 0x780000
CLR = 0x9A0000
STATS, CSUM, MBOX, LNC, W2C, YAC = CLR, CLR+0x2000, CLR+0x10000, CLR+0x18000, CLR+0x1C000, CLR+0x1A000
CSP = 13824
PROFB, HF = 0x9C0000, 0xA00000
WS_SIZE = 0x1100000
OOB = "0x7f000000"
P = dict(u=16, are=18, aim=20, bre=22, bim=24, cre=26, cim=28, ldt=30, dsk=32, bx=34, w1=36, b1=38, w2=40, b2=42, out=44, dbg=46, ws=48)
S_WS, S_A, S_B, S_DBG = 52, 56, 60, 64
S_WAVE, S_XR, S_XC, S_J, S_SPIN, S_CH = 4, 5, 6, 7, 50, 51
S_MB = 34
WV = f"s{S_WAVE}"
WS = f"s[{S_WS}:{S_WS+3}]"; SA = f"s[{S_A}:{S_A+3}]"; SB = f"s[{S_B}:{S_B+3}]"; DBG = f"s[{S_DBG}:{S_DBG+3}]"
STG = 40960
NST = 3
AREG, BREG0, BREG = 20480, 81920, 20480
B7 = BREG0 + 3*BREG
CNT = B7 + 20096
YAT = B7
UB = 5536
W3B, W5B, W7B, W9B = 9664, 12768, 15872, 17952
SCR = 512
IMG, T2, T3 = SCR, SCR+1136, SCR+2416
STATL = BREG0 + 2*BREG
NT = " nt" if opt("nt", 0) else ""
NT1 = " nt" if opt("nt1", 1) else ""

a = Asm()
G2F = " sc1" if opt("g2sc1", 1) else ""
def srd(d, ptr, size):
    a(f"s_mov_b32 s{d}, s{ptr}\ns_mov_b32 s{d+1}, s{ptr+1}\ns_mov_b32 s{d+2}, {hex(size)}\ns_mov_b32 s{d+3}, 0x20000")
def stamp(idx):
    if PROF: a(f"s_memtime s[92:93]\ns_waitcnt lgkmcnt(0)\ns_sub_u32 s{72+idx}, s92, s90")
def lstamp(o):
    if PROF: a(f"s_memtime s[92:93]\ns_waitcnt lgkmcnt(0)\ns_sub_u32 s92, s92, s90\ns_add_u32 m0, s3, {o}\nv_writelane_b32 v200, s92, m0")
def endp(): a("s_branch L_end")
def cmul(d, x, y, t):
    a(f"v_pk_mul_f32 {vr(t,2)}, {vr(x,2)}, {vr(y,2)} op_sel:[0,0] op_sel_hi:[0,1]")
    a(f"v_pk_fma_f32 {vr(d,2)}, {vr(x,2)}, {vr(y,2)}, {vr(t,2)} op_sel:[1,1,0] op_sel_hi:[1,0,1] neg_lo:[0,1,0]")
def poll(issue, test, sleep=4, issued=True):
    L = a.label("L_poll"); D = a.label("L_pdone")
    if not issued: a(issue)
    a(f"{L}:")
    a("s_waitcnt vmcnt(0)")
    a(test)
    a(f"s_cbranch_scc1 {D}")
    a(f"s_add_u32 s{S_SPIN}, s{S_SPIN}, 1\ns_cmp_gt_u32 s{S_SPIN}, 100000\ns_cbranch_scc1 L_exit")
    a(f"s_sleep {sleep}")
    a(issue)
    a(f"s_branch {L}")
    a(f"{D}:")
def sld(d, off): return f"s_load_dword s{d}, s[{P['ws']}:{P['ws']+1}], s{off} glc"
def spoll(issue, test, sleep=4, issued=False, far=None):
    L = a.label("L_spoll"); D = a.label("L_sdone")
    if not issued: a(issue)
    a(f"{L}:")
    a("s_waitcnt lgkmcnt(0)")
    a(test)
    a(f"s_cbranch_scc1 {D}")
    a(f"s_add_u32 s{S_SPIN}, s{S_SPIN}, 1\ns_cmp_gt_u32 s{S_SPIN}, 100000\ns_cbranch_scc1 L_exit")
    a(f"s_sleep {sleep}")
    if far:
        N = a.label("L_near")
        a(f"{far[0]}\ns_cbranch_scc1 {N}\ns_sleep {far[1]}")
        a(f"{N}:")
    a(issue)
    a(f"s_branch {L}")
    a(f"{D}:")
def arrive_issue(sreg, va, vb):
    a(f"v_mov_b32 v{va}, 0\nv_mov_b32 v{vb}, 1\ns_mov_b64 exec, 1\nbuffer_atomic_add v{vb}, v{va}, {WS}, s{sreg} offen sc0 sc1\ns_mov_b64 exec, -1")
def arrive_check(st, vb, n, then):
    L = a.label("L_arr")
    a(f"s_waitcnt vmcnt(0)\nv_readfirstlane_b32 s{st}, v{vb}\ns_cmp_lg_u32 s{st}, {n-1}\ns_cbranch_scc1 {L}")
    a(then)
    a(f"{L}:")
def push_all(bitreg, off, va, vb, st):
    t = f"v_lshlrev_b32 v{va}, 7, v0\nv_mov_b32 v{vb}, s{bitreg}\ns_mov_b32 s{st}, {MBOX+off}\n"
    for i in range(4): t += f"buffer_atomic_or v{vb}, v{va}, {WS}, s{st} offen sc1\ns_add_u32 s{st}, s{st}, 8192\n"
    return t
def few(mask, ins): return f"s_mov_b64 exec, {mask}\n{ins}\ns_mov_b64 exec, -1"
def clr_issue(v, vo): return few(15, f"buffer_load_dword v{v}, v{vo}, {DBG}, 0 offen sc1")
def clr_test(v): return f"v_cmp_ne_u32 vcc, 0, v{v}\ns_and_b32 vcc_lo, vcc_lo, 15\ns_cmp_eq_u32 vcc_lo, 15"
def nz_test(v): return f"v_cmp_ne_u32 vcc, 0, v{v}\ns_cmp_eq_u64 vcc, -1"
def zero(b, n):
    for i in range(0, n, 2): a(f"v_pk_mov_b32 {vr(b+i,2)}, 0, 0")

cLIN, cIMG2, cT2, cT3, cW2, cW3, cST, cKW1, cKW2, cA0, cA1, cB, cU = 247, 248, 249, 250, 251, 252, 253, 254, 255, 231, 236, 237, 146
AD, AB, A16 = 204, 224, 232
RS = opt("rowsplit", 0)
def tile_rc(rt, cb, tmp):
    if RS: return f"s_and_b32 s{rt}, s2, 7\ns_lshl_b32 s{rt}, s{rt}, 2\ns_lshr_b32 s{cb}, s{S_J}, 3\ns_add_u32 s{rt}, s{rt}, s{cb}\ns_and_b32 s{cb}, s{S_J}, 7"
    return (f"s_lshl_b32 s{rt}, s{S_XR}, 3\ns_lshr_b32 s{cb}, s{S_J}, 2\ns_add_u32 s{rt}, s{rt}, s{cb}\n"
            f"s_lshl_b32 s{cb}, s{S_XC}, 2\ns_and_b32 s{tmp}, s{S_J}, 3\ns_add_u32 s{cb}, s{cb}, s{tmp}")
def conv_setup(t=64):
    r_, g_, h_, f_, x_, y_, z_ = (f"v{t+i}" for i in range(7))
    a(f"v_lshlrev_b32 {x_}, 4, v0\nv_add_u32 v{cLIN}, s69, {x_}\nv_min_u32 {z_}, 5, v0\nv_lshl_add_u32 v{cIMG2}, {z_}, 4, s69")
    a(f"v_lshlrev_b32 {x_}, 6, {z_}\nv_lshrrev_b32 {y_}, 1, {z_}\nv_lshl_add_u32 {x_}, {y_}, 4, {x_}\nv_add_u32 v{cKW2}, s69, {x_}")
    a(f"v_lshlrev_b32 {x_}, 6, v0\nv_lshrrev_b32 {y_}, 1, v0\nv_lshl_add_u32 {x_}, {y_}, 4, {x_}\nv_add_u32 v{cKW1}, s69, {x_}")
    a(f"v_lshrrev_b32 {x_}, 2, v0\nv_mul_u32_u24 {x_}, 40960, {x_}\nv_and_b32 {y_}, 3, v0\nv_lshl_add_u32 v{cU}, {y_}, 4, {x_}")
    a(f"v_and_b32 {r_}, 15, v0\nv_lshrrev_b32 {g_}, 4, v0\nv_and_b32 {h_}, 1, {g_}\nv_lshrrev_b32 {f_}, 1, {g_}")
    a(f"v_sub_u32 {x_}, 15, {r_}\nv_and_b32 {y_}, 1, {x_}\nv_sub_u32 {x_}, {x_}, {y_}\nv_lshlrev_b32 {x_}, 1, {x_}")
    a(f"v_lshl_add_u32 {z_}, {g_}, 1, {y_}\nv_mul_u32_u24 {z_}, 160, {z_}\nv_add_u32 {z_}, {z_}, {x_}\ns_add_u32 s10, s69, {T2}\nv_add_u32 v{cT2}, s10, {z_}")
    a(f"v_lshl_add_u32 {z_}, {h_}, 1, {y_}\nv_mul_u32_u24 {z_}, 160, {z_}\nv_add_u32 {z_}, {z_}, {x_}\nv_lshl_add_u32 {z_}, {f_}, 4, {z_}\ns_add_u32 s10, s69, {T3}\nv_add_u32 v{cT3}, s10, {z_}")
    a(f"v_mul_u32_u24 {x_}, {W5B-W3B}, {h_}\nv_lshlrev_b32 {y_}, 3, {g_}\nv_sub_u32 {x_}, {x_}, {y_}\nv_lshl_add_u32 {x_}, {r_}, 3, {x_}\ns_add_u32 s10, s69, {W3B-8}\nv_add_u32 v{cW2}, s10, {x_}")
    a(f"v_mul_u32_u24 {x_}, {W9B-W7B-16}, {h_}\nv_lshl_add_u32 {x_}, {f_}, 8, {x_}\nv_lshl_add_u32 {x_}, {r_}, 3, {x_}\ns_add_u32 s10, s69, {W7B-16}\nv_add_u32 v{cW3}, s10, {x_}")
    a(f"v_lshlrev_b32 {x_}, 2, {h_}\nv_lshrrev_b32 {z_}, 2, {r_}\nv_add_u32 {x_}, {x_}, {z_}\nv_mul_u32_u24 {x_}, 81920, {x_}\nv_lshl_add_u32 {x_}, {f_}, 6, {x_}\nv_and_b32 {z_}, 3, {r_}\nv_lshl_add_u32 v{cST}, {z_}, 4, {x_}")
    a(f"s_add_u32 s10, s69, {UB-32}\nv_lshlrev_b32 {x_}, 5, {r_}\nv_lshl_add_u32 {x_}, {g_}, 4, {x_}\nv_add_u32 v{cB}, s10, {x_}")
    a(f"v_sub_u32 {z_}, {y_}, {r_}\nv_add_u32 {z_}, 15, {z_}\nv_sub_u32 {y_}, {r_}, {y_}")
    a(f"v_lshrrev_b32 {x_}, 4, {z_}\nv_lshlrev_b32 {x_}, 4, {x_}\nv_lshl_add_u32 {x_}, {z_}, 3, {x_}\nv_add_u32 v{cA0}, s69, {x_}")
    a(f"v_add_u32 {z_}, 4, {z_}\nv_lshrrev_b32 {x_}, 4, {z_}\nv_lshlrev_b32 {x_}, 4, {x_}\nv_lshl_add_u32 {x_}, {z_}, 3, {x_}\nv_add_u32 v{cA1}, s69, {x_}")
    a(f"v_mov_b32 {r_}, 0xffff\nv_mov_b32 {g_}, 0xffff0000\nv_mov_b32 {h_}, -1")
    for k in range(4):
        a(f"v_cmp_eq_u32 vcc, {2*k-16}, {y_}\nv_cndmask_b32 v{AD+k}, 0, {r_}, vcc\nv_cmp_eq_u32 vcc, {2*k+1-16}, {y_}\nv_cndmask_b32 v{AD+k}, v{AD+k}, {g_}, vcc")
        a(f"v_cmp_eq_u32 vcc, {2*k-12}, {y_}\nv_cndmask_b32 v{AB+k}, 0, {h_}, vcc\nv_cmp_eq_u32 vcc, {2*k-13}, {y_}\nv_cndmask_b32 v{AB+k}, v{AB+k}, {r_}, vcc\nv_cmp_eq_u32 vcc, {2*k-11}, {y_}\nv_cndmask_b32 v{AB+k}, v{AB+k}, {g_}, vcc")
def uloads():
    a(f"s_lshl_b32 s10, s{S_CH}, 6")
    for q in range(4): a(f"buffer_load_dwordx4 {vr(148+4*q,4)}, v{cU}, {WS}, s10 offen sc1\ns_add_u32 s10, s10, 655360")
def kloads():
    a(f"s_lshl_b32 s10, s{S_CH}, 12\ns_add_u32 s10, s10, {KD}")
    for q in range(3): a(f"buffer_load_dwordx4 {vr(32+4*q,4)}, v1, {WS}, s10 offen offset:{1024*q} sc1")
lnc_addr = f"s_mul_i32 s13, s{S_CH}, 410\ns_lshr_b32 s13, s13, 16\ns_lshl_b32 s13, s13, 4\ns_and_b32 s100, s2, 15\ns_add_u32 s100, s100, s13\ns_lshl_b32 s100, s100, 7\ns_add_u32 s100, s100, {LNC}"

a.raw(f".globl {KN}\n.p2align 8\n.type {KN},@function")
a(f"{KN}:")
a("s_cmp_ge_u32 s2, 256\ns_cbranch_scc1 L_exit")
a("s_load_dwordx16 s[16:31], s[0:1], 0\ns_load_dwordx16 s[32:47], s[0:1], 64\ns_load_dwordx2 s[48:49], s[0:1], 128")
if opt("cpf", 1):
    a(f"s_cmp_ge_u32 s2, {opt('cpfn', 8)}\ns_cbranch_scc1 L_nocpf")
    a("s_getpc_b64 s[12:13]")
    a("L_cpfb:")
    a("v_lshlrev_b32 v20, 7, v0\nv_min_u32 v20, L_exit-L_cpfb, v20\nv_mov_b32 v21, s13\nv_add_co_u32 v20, vcc, s12, v20\nv_addc_co_u32 v21, vcc, 0, v21, vcc")
    a("global_load_dword v22, v[20:21], off")
    a("L_nocpf:")
if PROF:
    a("s_memtime s[90:91]\ns_memrealtime s[94:95]")
    for i in range(16): a(f"s_mov_b32 s{72+i}, 0")
if opt("dly", 0) == 4: a("s_sleep 64")
a("v_lshrrev_b32 v1, 6, v0\nv_and_b32 v0, 63, v0")
a(f"v_readfirstlane_b32 {WV}, v1")
a(f"s_bfe_u32 s{S_XR}, s2, 0x20001\ns_and_b32 s{S_XC}, s2, 1\ns_lshr_b32 s{S_J}, s2, 3\ns_mov_b32 s{S_SPIN}, 0")
a(f"s_lshl_b32 s8, s{S_XC}, 2\ns_sub_u32 s8, 20, s8")
a(f"s_cmp_eq_u32 s{S_XC}, 0\ns_cselect_b32 s9, 52, 64\ns_mul_i32 s9, s9, s{S_J}\ns_lshr_b32 s9, s9, 8")
a(f"s_sub_u32 s11, 5, s{S_XC}\ns_mul_i32 s11, s11, s9\ns_sub_u32 s10, s{S_J}, s11\ns_mul_i32 s11, s{S_XC}, 5\ns_add_u32 s10, s10, s11")
a(f"s_lshl_b32 s11, s{S_XR}, 2\ns_add_u32 s9, s9, s11")
a("v_lshrrev_b32 v4, 3, v0\nv_mul_u32_u24 v4, 1280, v4")
a("v_and_b32 v5, 7, v0\nv_lshrrev_b32 v6, 4, v0\nv_xor_b32 v5, v5, v6\nv_lshl_add_u32 v2, v5, 4, v4")
a("v_xor_b32 v5, 4, v5\nv_lshl_add_u32 v3, v5, 4, v4\nv_add_u32 v3, 10240, v3\nv_add_u32 v4, 20480, v2\nv_add_u32 v5, 20480, v3")
for i in range(3):
    a(f"v_add_u32 v6, {64*i}, v0\nv_mul_u32_u24 v7, 2731, v6\nv_lshrrev_b32 v7, 16, v7\nv_lshlrev_b32 v14, 1, v7\nv_and_b32 v14, 4, v14\nv_xor_b32 v6, v6, v14")
    a(f"v_mul_u32_u24 v7, 3072, v7\nv_lshl_add_u32 v{8+i}, v6, 4, v7\nv_add_u32 v{11+i}, 27648, v{8+i}")
a("s_waitcnt lgkmcnt(0)")
srd(S_WS, P['ws'], WS_SIZE)
srd(S_A, P['u'], 2621440)
srd(S_B, P['w1'], 2211840)
srd(S_DBG, P['dbg'], 256)
a(f"s_lshl_b32 s{S_MB}, s2, 7\ns_add_u32 s{S_MB}, s{S_MB}, {MBOX}")
if PROF:
    a("s_mov_b32 s86, s94"); stamp(13)
if opt("g2only", 0):
    a(f"v_mov_b32 v174, 0\ns_mov_b32 s35, 1\ns_cmp_lt_u32 {WV}, 4\ns_cbranch_scc1 L_g2\ns_branch L_end")
a(f"s_cmp_ge_u32 s{S_J}, s8\ns_cbranch_scc1 L_aux")
a(f"s_cmp_lt_u32 {WV}, 4\ns_cbranch_scc1 L_comp")

a(f"s_sub_u32 s8, {WV}, 4")
a("s_lshl_b32 s11, s9, 7\ns_lshl_b32 s12, s8, 5\ns_add_u32 s11, s11, s12\ns_mul_i32 s11, s11, 1280")
a("s_mul_i32 s12, s8, 55296\ns_mul_i32 s13, s10, 384\ns_add_u32 s12, s12, s13")
a("s_lshl_b32 s13, s8, 12\ns_mul_i32 s14, s8, 6144\ns_add_u32 s14, s14, 16384\ns_mov_b32 s3, 0")
a(f"s_and_b32 s15, s9, 3\ns_mul_i32 s15, s15, 5\ns_add_u32 s15, s15, 1\ns_lshr_b32 s15, s15, 1\ns_lshl_b32 s68, s10, 1\ns_add_u32 s15, s15, s68\ns_add_u32 s15, s15, s{S_XR}")
a("s_mul_i32 s68, s15, 26\ns_lshr_b32 s68, s68, 8\ns_mul_i32 s68, s68, 10\ns_sub_u32 s15, s15, s68")
a("s_lshl_b32 s68, s15, 7\ns_add_u32 s11, s11, s68\ns_mul_i32 s68, s15, 221184\ns_add_u32 s12, s12, s68\ns_mov_b32 s69, 0")
stamp(1)
S_C = 96
a("v_mov_b32 v146, 0\nv_mov_b32 v253, 0\ns_mov_b32 s101, 0")
a("L_ld_loop:")
a("s_cmp_lt_u32 s3, 2\ns_cbranch_scc1 L_ld_nowait\ns_cmp_eq_u32 s3, 2\ns_cbranch_scc1 L_ld_setup")
a("L_ld_wait:")
a("s_waitcnt vmcnt(10)")
lstamp(0)
a("s_barrier")
lstamp(16)
a("L_ld_nowait:")
a("s_add_u32 s70, s69, s13\ns_add_u32 s71, s69, s14")
for q in range(4): a(f"s_add_u32 m0, s70, {1024*q}\nbuffer_load_dwordx4 v{2+q}, {SA}, s11 offen{NT} lds")
for i in range(6): a(f"s_add_u32 m0, s71, {1024*i}\nbuffer_load_dwordx4 v{8+i}, {SB}, s12 offen{NT} lds")
a("s_add_u32 s11, s11, 128\ns_add_u32 s12, s12, 221184\ns_add_u32 s15, s15, 1\ns_cmp_lt_u32 s15, 10\ns_cbranch_scc1 L_ld_nowrap")
a("s_sub_u32 s11, s11, 1280\ns_sub_u32 s12, s12, 2211840\ns_mov_b32 s15, 0")
a("L_ld_nowrap:")
a(f"s_add_u32 s69, s69, {STG}\ns_cmp_eq_u32 s69, {NST*STG}\ns_cselect_b32 s69, 0, s69")
a(f"s_cmp_lg_u32 s3, 7\ns_cbranch_scc1 L_ld_n5\ns_load_dwordx4 s[28:31], s[{P['dbg']}:{P['dbg']+1}], 0")
a("L_ld_n5:")
a("s_add_u32 s3, s3, 1\ns_cmp_lt_u32 s3, 10\ns_cbranch_scc1 L_ld_loop")
s_issue = f"buffer_load_dwordx4 v[16:19], v1, {WS}, s18 offen sc1\nbuffer_load_dwordx4 v[20:23], v6, {WS}, s18 offen offset:1024 sc1\nbuffer_load_dword v24, v7, {WS}, s20 offen sc1"
wc_issue = sld(26, 25)
wc_test = "s_cmp_lg_u32 s26, 0"
a("s_waitcnt lgkmcnt(0)\ns_and_b32 s28, s28, s29\ns_and_b32 s30, s30, s31\ns_and_b32 s24, s28, s30")
a(s_issue)
for w in (13, 3):
    if w == 3:
        a("s_mov_b32 s31, 0\ns_mov_b32 s33, 0\ns_cmp_eq_u32 s101, 0\ns_cbranch_scc1 L_ld_ncv")
        a(sld(31, S_MB) + "\n" + sld(33, 100))
        a("L_ld_ncv:")
    a(f"s_waitcnt vmcnt({w})")
    lstamp(0)
    a("s_barrier")
    lstamp(16)
    if PROF: a("s_add_u32 s3, s3, 1")
a("s_cmp_lg_u32 s24, 0\ns_cbranch_scc1 L_ld_clr")
poll(clr_issue(15, 14), clr_test(15), sleep=8, issued=False)
a(s_issue)
a("s_waitcnt lgkmcnt(0)\ns_mov_b32 s31, 0\ns_mov_b32 s33, 0")
a("L_ld_clr:")
s_test = "v_and_b32 v4, v17, v19\nv_and_b32 v5, v21, v23\nv_and_b32 v4, v4, v5\nv_and_b32 v4, 1, v4\nv_min_u32 v4, v4, v24\n" + nz_test(4)
poll(s_issue, s_test, sleep=8)
a("ds_write_b128 v25, v[16:19]\nds_write_b128 v26, v[20:23] offset:1024\nds_write_b32 v27, v24")
a("s_waitcnt lgkmcnt(0)\ns_mov_b32 s68, 0\ns_and_b32 s13, s31, s101\ns_cbranch_scc0 L_ld_nk0")
kloads()
a("s_mov_b32 s68, 1")
a("L_ld_nk0:")
a("s_cmp_ge_u32 s33, 64\ns_cbranch_scc0 L_ld_nk")
uloads()
a("s_or_b32 s68, s68, 2")
a("L_ld_nk:")
a("s_barrier")
lstamp(16)
if PROF:
    a(f"s_lshl_b32 s93, s2, 9\ns_lshl_b32 s92, s8, 7\ns_add_u32 s93, s93, s92\ns_add_u32 s93, s93, {PROFB+0x20000}\nv_lshlrev_b32 v201, 2, v0\ns_mov_b32 exec_hi, 0\nbuffer_store_dword v200, v201, {WS}, s93 offen\ns_mov_b32 exec_hi, -1")
stamp(2)
a(f"s_cmp_eq_u32 {WV}, 7\ns_cbranch_scc1 L_fetch")
a(f"s_cmp_eq_u32 {WV}, 6\ns_cbranch_scc1 L_park")
a(f"s_cmp_eq_u32 s101, 0\ns_cbranch_scc1 L_end\ns_mul_i32 s69, {WV}, {AREG}\ns_branch L_cv_upart")
wc_prep = f"s_and_b32 s25, s2, 31\ns_lshl_b32 s25, s25, 7\ns_add_u32 s25, s25, {W2C+1024}"
a("L_ld_setup:")
a("v_lshlrev_b32 v1, 4, v0\nv_and_b32 v7, 31, v0\nv_lshlrev_b32 v6, 4, v7\nv_lshlrev_b32 v7, 2, v7\nv_and_b32 v14, 3, v0\nv_lshlrev_b32 v14, 2, v14")
a(f"s_lshl_b32 s20, s9, 9\ns_lshl_b32 s23, s8, 7\ns_add_u32 s20, s20, s23\ns_add_u32 s20, s20, {STATS}\ns_add_u32 s23, s23, {STATL+6144}\nv_add_u32 v27, s23, v7")
a(f"s_mul_i32 s18, s10, 1536\ns_mul_i32 s19, s8, {CSP}\ns_add_u32 s18, s18, s19\ns_add_u32 s18, s18, {CSUM}")
a(f"s_mul_i32 s23, s8, 1536\ns_add_u32 s23, s23, {STATL}\nv_add_u32 v25, s23, v1\nv_add_u32 v26, s23, v6\nv_mov_b32 v30, {CNT}")
zero(32, 4)
a("ds_write_b128 v30, v[32:35]")
a(wc_prep)
a(f"s_mul_i32 s23, s{S_XR}, 36\ns_mul_i32 s22, s{S_XC}, 20\ns_add_u32 s23, s23, s22\ns_add_u32 s23, s23, s{S_J}\ns_mul_i32 s22, s8, 144\ns_add_u32 s23, s23, s22\ns_cmp_ge_u32 s23, 192\ns_cbranch_scc1 L_ld_wait")
a(f"s_lshr_b32 s22, s23, 2\ns_lshl_b32 s22, s22, 3\ns_and_b32 s23, s23, 3\ns_add_u32 s{S_CH}, s23, s22\ns_add_u32 s{S_CH}, s{S_CH}, 256\ns_lshl_b32 s101, 0x1000000, s8")
a(f"s_mov_b32 s96, s69\ns_mov_b32 s97, s10\ns_mov_b32 s98, s13\ns_mul_i32 s69, {WV}, {AREG}")
conv_setup()
a(lnc_addr)
a(f"s_lshl_b32 s22, s{S_CH}, 1\ns_and_b32 s23, s22, 2\ns_sub_u32 s22, s22, s23\ns_load_dword s99, s[{P['dsk']}:{P['dsk']+1}], s22")
a("s_lshl_b32 s23, s23, 3\ns_waitcnt lgkmcnt(0)\ns_lshr_b32 s99, s99, s23\ns_and_b32 s99, s99, 0xffff\nv_mov_b32 v147, s99")
a("s_mov_b32 s69, s96\ns_mov_b32 s10, s97\ns_mov_b32 s13, s98\ns_branch L_ld_wait")

G2H = [16, 32, 48, 224]; G2W = [164, 184, 204, 144]; AC2 = 64
K0 = [0, 13, 26, 40, 54]
def g2_setup():
    a(tile_rc(30, 31, 29))
    a(f"s_mul_i32 s28, {WV}, 14\ns_sub_u32 s28, s28, 2\ns_cmp_eq_u32 {WV}, 0\ns_cselect_b32 s28, -1, s28\ns_lshl_b32 s28, s28, 10")
    a(f"s_mul_i32 s27, s30, {4*55296}\ns_add_u32 s27, s27, s28\ns_add_u32 s27, s27, {HF}")
    for i in range(4):
        a(f"s_add_u32 s29, {WV}, {i}\ns_and_b32 s29, s29, 3\ns_mul_i32 s29, s29, 55296\ns_add_u32 s{18+i}, s27, s29")
    a(f"s_mul_i32 s22, s31, {5*55296}\ns_add_u32 s22, s22, s28\ns_add_u32 s22, s22, {W2F}")
    for i in range(1, 5): a(f"s_add_u32 s{22+i}, s22, {55296*i}")
    a(f"s_lshl_b32 s27, s30, 6\ns_lshl_b32 s29, {WV}, 4\ns_add_u32 s27, s27, s29\ns_mul_i32 s27, s27, 1280\ns_mul_i32 s29, s31, 160\ns_add_u32 s27, s27, s29")
    masks = []
    for w in range(4):
        c0, c1 = K0[w]//6, (K0[w+1]-1)//6
        m = ((1 << (c1-c0+1)) - 1) << c0
        masks.append(m | (m << 11))
    a(f"s_mov_b32 s28, {hex(masks[0])}\ns_cmp_eq_u32 {WV}, 1\ns_cselect_b32 s28, {hex(masks[1])}, s28\ns_cmp_eq_u32 {WV}, 2\ns_cselect_b32 s28, {hex(masks[2])}, s28\ns_cmp_eq_u32 {WV}, 3\ns_cselect_b32 s28, {hex(masks[3])}, s28")
    a(f"v_lshlrev_b32 v252, 4, v0\ns_cmp_lt_u32 {WV}, 2\ns_cselect_b32 s30, {OOB}, 0\nv_add_u32 v253, s30, v252")
    a("v_lshrrev_b32 v255, 4, v0\nv_lshlrev_b32 v255, 3, v255\nv_and_b32 v254, 15, v0\nv_mul_u32_u24 v254, 160, v254\nv_add_u32 v254, v254, v255")
    srd(S_B, P['b2'], 1280)
def ldh(k, o=0, v=252): return [f"buffer_load_dwordx4 {vr(G2H[k]+4*i,4)}, v{v}, {WS}, s{18+i} offen offset:{o}{G2F}" for i in range(4)]
def ldw(k, o=0, v=252): return [f"buffer_load_dwordx4 {vr(G2W[k]+4*i,4)}, v{v}, {WS}, s{22+i} offen offset:{o}{G2F}" for i in range(5)]
OUTV = (8, 9, 13)
def xb_loads():
    for q in range(3):
        a(f"v_add_u32 v10, {64*q}, v0\nv_mul_u32_u24 v11, 6554, v10\nv_lshrrev_b32 v11, 16, v11\nv_mul_u32_u24 v11, 1120, v11\nv_lshl_add_u32 v{OUTV[q]}, v10, 4, v11")
    a(f"v_cmp_gt_u32 vcc, 32, v0\nv_mov_b32 v10, {OOB}\nv_cndmask_b32 v13, v10, v13, vcc\ns_mul_i32 s10, {WV}, {AREG}")
    for q in range(3): a(f"s_add_u32 m0, s10, {15360+1024*q}\nbuffer_load_dwordx4 v{OUTV[q]}, {SA}, s27 offen lds")
    a(f"s_add_u32 m0, s10, {18432}\ns_mov_b64 exec, 0x3ff\nbuffer_load_dwordx4 v252, {SB}, s29 offen lds\ns_mov_b64 exec, -1")
    a("v_add_u32 v2, s10, v254\nv_add_u32 v3, s10, v255")
w_pre = ldw(0, 0, 253) + ldw(1, 1024) + ldw(2, 2048) + ldw(3, 3072)

a("L_comp:")
ACC = 72; BUF = [16, 44]; SF = 172
g2_setup()
a("v_and_b32 v13, 31, v0\nv_lshrrev_b32 v14, 5, v0")
a(f"s_lshl_b32 s8, {WV}, 12\nv_lshlrev_b32 v15, 7, v13\nv_add_u32 v15, s8, v15")
a("v_bfe_u32 v7, v0, 1, 3\nv_xor_b32 v7, v7, v14")
for ks in range(4): a(f"v_xor_b32 v1, {2*ks}, v7\nv_lshl_add_u32 v{2+ks}, v1, 4, v15")
a("v_bfe_u32 v1, v0, 2, 2\nv_lshl_add_u32 v1, v14, 3, v1\nv_mul_u32_u24 v1, 384, v1")
a("v_bfe_u32 v7, v0, 4, 1\nv_lshl_add_u32 v1, v7, 5, v1\nv_and_b32 v7, 3, v0\nv_lshl_add_u32 v1, v7, 3, v1\nv_add_u32 v1, 16384, v1")
a("v_bfe_u32 v7, v0, 3, 1\nv_lshlrev_b32 v7, 6, v7\nv_add_u32 v6, v1, v7\nv_sub_u32 v196, v1, v7\nv_mov_b32 v197, v196")
for i in range(5): a(f"v_mov_b32 v{8+i}, v{2+i}")
zero(ACC, 96)
a(f"s_lshl_b32 s11, {WV}, 7\ns_add_u32 s11, s11, {STATL+6144}\nv_lshl_add_u32 v168, v13, 2, s11\nv_mul_u32_u24 v169, 3072, v14\nv_lshl_add_u32 v169, v13, 3, v169\nv_add_u32 v169, {STATL}, v169")
a("v_bfe_u32 v1, v0, 4, 1\nv_mul_u32_u24 v1, 55296, v1\nv_lshl_add_u32 v1, v14, 8, v1\nv_and_b32 v7, 15, v0\nv_lshl_add_u32 v1, v7, 4, v1")
a(f"s_lshl_b32 s8, s9, 3\ns_lshl_b32 s11, {WV}, 1\ns_add_u32 s8, s8, s11\ns_mul_i32 s8, s8, 54\ns_mul_i32 s11, s10, 6\ns_add_u32 s8, s8, s11\ns_lshl_b32 s8, s8, 10\ns_add_u32 s8, s8, {HF}")
a(f"s_lshl_b32 s12, s9, 1\ns_lshr_b32 s11, {WV}, 1\ns_add_u32 s12, s12, s11")
a(f"s_and_b32 s11, s12, 7\ns_lshl_b32 s11, s11, 5\ns_lshr_b32 s12, s12, 3\ns_lshl_b32 s12, s12, 1\ns_add_u32 s12, s12, s11\ns_lshl_b32 s12, s12, 7\ns_add_u32 s12, s12, {MBOX}")
a(f"s_and_b32 s11, {WV}, 1\ns_mul_i32 s11, s11, 11\ns_add_u32 s11, s11, s10\ns_lshl_b32 s11, 1, s11")
a("v_and_b32 v15, 3, v0\nv_lshlrev_b32 v15, 10, v15\nv_bfe_u32 v7, v0, 2, 1\nv_lshl_add_u32 v15, v7, 7, v15\nv_mov_b32 v14, s11")
a(wc_prep.replace("s25", "s69"))
a("s_mov_b32 s15, 0\ns_mov_b32 s3, 0")
def reads(ks, b):
    r = [f"ds_read_b128 {vr(b,4)}, v{8+ks}"]
    for ft in range(6):
        for s in range(2):
            r.append(f"ds_read_b64_tr_b16 {vr(b+4+4*ft+2*s,2)}, v{197 if ft & 1 else 12} offset:{ks*6144 + s*1536 + ft*64}")
    return r
def step(cur, nks, nb, last, first_wait=True):
    R = reads(nks, nb)
    waits = [10, 11, 12, 13, 13, 13]; parts = [R[0:3], R[3:6], R[6:9], R[9:11], R[11:13], [last]]
    for ft in range(6):
        if first_wait: a(f"s_waitcnt lgkmcnt({waits[ft]})")
        a(f"v_mfma_f32_32x32x16_bf16 {vr(ACC+16*ft,16)}, {vr(cur+4+4*ft,4)}, {vr(cur,4)}, {vr(ACC+16*ft,16)}")
        for r in parts[ft]: a(r)
a("s_barrier")
stamp(1)
for r in reads(0, BUF[0]): a(r)
a("L_c_loop:")
step(BUF[0], 1, BUF[1], f"s_add_u32 s15, s15, {STG}\ns_cmp_eq_u32 s15, {NST*STG}\ns_cselect_b32 s15, 0, s15\nv_add_u32 v8, s15, v2")
step(BUF[1], 2, BUF[0], "v_add_u32 v9, s15, v3\nv_add_u32 v10, s15, v4")
step(BUF[0], 3, BUF[1], "v_add_u32 v12, s15, v6\nv_add_u32 v197, s15, v196\ns_waitcnt lgkmcnt(0)\ns_barrier")
step(BUF[1], 0, BUF[0], "v_add_u32 v11, s15, v5\ns_add_u32 s3, s3, 1\ns_cmp_lt_u32 s3, 10\ns_cbranch_scc1 L_c_loop", first_wait=False)
stamp(2)
if opt("dly", 0) == 1: a("s_sleep 64")
a("s_setprio 3\nds_read_b32 v170, v168")
for ft in range(6):
    for p in range(2): a(f"ds_read_b64 {vr(SF+4*ft+2*p,2)}, v169 offset:{1536*p+256*ft}")
a("s_waitcnt lgkmcnt(12)")
a("v_xor_b32 v17, 0x8000, v170\nv_and_b32 v19, 0xffff, v17\nv_lshl_or_b32 v16, v19, 16, v19\nv_mov_b32 v18, v16")
a("v_cmp_gt_u32 vcc, 32, v0\nv_cndmask_b32 v17, v19, v17, vcc")
a("v_and_b32 v10, 0xffff0000, v170\nv_rcp_f32 v7, v10\nv_mov_b32 v11, v10\ns_waitcnt lgkmcnt(0)")
for ft in range(6):
    a(f"v_mfma_f32_32x32x16_bf16 {vr(ACC+16*ft,16)}, {vr(SF+4*ft,4)}, v[16:19], {vr(ACC+16*ft,16)}")
    if ft == 0:
        k1c = -2.0 * math.log2(math.e) * math.sqrt(2.0/math.pi); k2c = k1c * 0.044715
        a(f"v_mul_f32 v8, {f32(k1c)}, v7\nv_mul_f32 v12, v7, v7\nv_mul_f32 v12, v12, v7\nv_mul_f32 v12, {f32(k2c)}, v12\nv_mov_b32 v9, v8\nv_mov_b32 v13, v12")
def stA(h):
    A0 = ACC + 8*h; T = 16 + 8*(h % 3)
    return ([f"v_pk_mul_f32 {vr(T+2*p,2)}, {vr(A0+2*p,2)}, {vr(A0+2*p,2)}" for p in range(4)] +
            [f"v_pk_fma_f32 {vr(T+2*p,2)}, {vr(T+2*p,2)}, v[12:13], v[8:9]" for p in range(4)] +
            [f"v_pk_mul_f32 {vr(T+2*p,2)}, {vr(T+2*p,2)}, {vr(A0+2*p,2)}" for p in range(4)])
def stE(h):
    T = 16 + 8*(h % 3); return [f"v_exp_f32 v{T+e}, v{T+e}" for e in range(8)]
def stB(h):
    T = 16 + 8*(h % 3); return [f"v_pk_fma_f32 {vr(T+2*p,2)}, {vr(T+2*p,2)}, v[10:11], v[10:11]" for p in range(4)]
def stR(h):
    T = 16 + 8*(h % 3); return [f"v_rcp_f32 v{T+e}, v{T+e}" for e in range(8)]
def stC(h):
    A0 = ACC + 8*h; T = 16 + 8*(h % 3); pk = 48 + 4*(h % 4)
    return ([f"v_pk_mul_f32 {vr(T+2*p,2)}, {vr(T+2*p,2)}, {vr(A0+2*p,2)}" for p in range(4)] +
            [f"v_cvt_pk_bf16_f32 v{pk+p}, v{T+2*p}, v{T+2*p+1}" for p in range(4)] +
            [f"buffer_store_dwordx4 {vr(pk,4)}, v1, {WS}, s8 offen offset:{(h//2 % 4)*1024 + (h%2)*512} sc1"])
def mix(tr, nt):
    i = 0
    for k, x in enumerate(tr):
        a(x)
        n = (len(nt) * (k+1)) // len(tr)
        while i < n: a(nt[i]); i += 1
for x in stA(0): a(x)
for h in range(12):
    mix(stE(h), (stC(h-1) if h else []))
    if h == 8: a("s_add_u32 s8, s8, 4096\n" + sld(68, 69))
    for x in stB(h): a(x)
    mix(stR(h), (stA(h+1) if h < 11 else []))
for x in stC(11): a(x)
stamp(4)
def acc_init(z=True):
    for dt in range(5): a(f"ds_read_b64 {vr(224+2*dt,2)}, v2 offset:{15360+32*dt}\nds_read_b64 {vr(234+2*dt,2)}, v3 offset:{18432+32*dt}")
    a("s_waitcnt lgkmcnt(0)")
    for dt in range(5):
        for h in range(2):
            a(f"v_lshlrev_b32 v{AC2+4*dt+2*h}, 16, v{224+2*dt+h}\nv_and_b32 v{AC2+4*dt+2*h+1}, 0xffff0000, v{224+2*dt+h}")
            a(f"v_lshlrev_b32 v10, 16, v{234+2*dt+h}\nv_and_b32 v11, 0xffff0000, v{234+2*dt+h}\nv_pk_add_f32 {vr(AC2+4*dt+2*h,2)}, {vr(AC2+4*dt+2*h,2)}, v[10:11]")
    if z: zero(AC2+20, 60)
a(f"v_mov_b32 v2, {CNT+8}\nv_mov_b32 v3, 1\nds_write_b32 v2, v3")
xb_loads()
zero(AC2+20, 60)
a(f"s_waitcnt vmcnt(0)\ns_mov_b64 exec, 0xff\nbuffer_atomic_or v14, v15, {WS}, s12 offen sc1\ns_mov_b64 exec, -1")
a("s_setprio 0\ns_mov_b32 s35, 0\ns_waitcnt lgkmcnt(0)")
stamp(5)
a("s_cmp_eq_u32 s68, 0\ns_cbranch_scc1 L_c_nowpre")
for l in w_pre: a(l)
a("L_c_nowpre:")
acc_init(False)
a("s_cmp_lg_u32 s68, 0\ns_cbranch_scc1 L_g2go")
a("s_branch L_g2w")

a("L_g2:")
g2_setup()
xb_loads()
a("s_waitcnt vmcnt(0)")
acc_init()
a("L_g2w:")
if opt("p1only", 0): endp()
a(wc_prep.replace("s25", "s8"))
if not opt("g2only", 0): spoll(sld(9, 8), "s_cmp_lg_u32 s9, 0", sleep=16)
PK = (5, 7, 9)
a(f"s_cmp_eq_u32 s35, 0\ns_cbranch_scc1 L_g_nopark\ns_mul_i32 s10, {WV}, {AREG}")
for p in range(3):
    for i in range(5): a(f"s_add_u32 m0, s10, {5120*p+1024*i}\ns_add_u32 s13, s{22+i}, {1024*PK[p]}\nbuffer_load_dwordx4 v252, {WS}, s13 offen{G2F} lds")
if opt("touch2", 0):
    a(f"s_lshl_b32 s8, s{S_XC}, 2\ns_add_u32 s8, s8, s{S_J}\ns_sub_u32 s8, s8, 20\ns_lshl_b32 s8, s8, 2\ns_add_u32 s8, s8, {WV}\ns_cmp_ge_u32 s8, 48\ns_cbranch_scc1 L_g_nopark")
    a(f"s_mul_i32 s9, s{S_XR}, 12\ns_add_u32 s8, s8, s9\ns_cmp_ge_u32 s8, 48\ns_cselect_b32 s9, 48, 0\ns_sub_u32 s8, s8, s9\ns_mul_i32 s8, s8, 23040\ns_mul_i32 s9, s{S_XC}, 1105920\ns_add_u32 s8, s8, s9\ns_add_u32 s8, s8, {W2F}")
    a("v_lshlrev_b32 v4, 7, v0\ns_mov_b32 exec_hi, 0xfffffff")
    for i in range(3): a(f"buffer_load_dword v240, v4, {WS}, s8 offen sc1\ns_add_u32 s8, s8, 7680")
    a("s_mov_b32 exec_hi, -1")
a("L_g_nopark:")
for l in w_pre: a(l)
a("L_g2go:")
if opt("p1only", 0): endp()
hm_issue = sld(14, S_MB)
a("v_mov_b32 v11, 0")
a(hm_issue)
a(f"s_mul_i32 s10, {WV}, {AREG}\nv_add_u32 v1, s10, v252")
for i in range(1, 4):
    a(f"s_sub_u32 s13, {WV}, {i}\ns_and_b32 s13, s13, 3\ns_mul_i32 s13, s13, {AREG}\ns_add_u32 s13, s13, {5120*(i-1)}\nv_add_u32 v{1+i}, s13, v252")
a("v_lshrrev_b32 v10, 2, v0\nv_lshlrev_b32 v10, 7, v10\nv_bfe_u32 v15, v0, 1, 1\nv_lshl_add_u32 v10, v15, 6, v10\nv_and_b32 v15, 1, v0\nv_lshl_add_u32 v10, v15, 3, v10")
a(f"s_lshl_b32 s13, {WV}, 4\ns_add_u32 s13, s13, {YAT}\nv_add_u32 v5, s13, v10")
a(f"s_mul_i32 s13, {WV}, 2560\ns_add_u32 s13, s13, {BREG0}\nv_add_u32 v6, s13, v254\nv_add_u32 v7, s13, v252")
a(f"v_mov_b32 v14, {CNT}")
srd(S_A, P['out'], 2621440)
if not opt("g2only", 0): spoll(hm_issue, "s_and_b32 s13, s14, s28\ns_cmp_eq_u32 s13, s28", sleep=opt('msleep', 4), issued=True, far=('s_and_b32 s13, s14, 0x3fffff', opt('mfar', 28)))
else: a("s_waitcnt vmcnt(0)")
stamp(6)
for l in ldh(0, 0, 253) + ldh(1, 1024) + ldh(2, 2048): a(l)
a("s_cmp_lg_u32 s35, 0\ns_cbranch_scc1 L_g_pok\ns_mov_b32 s3, 0")
a("L_g_pw:")
a("s_add_u32 s3, s3, 1\ns_cmp_gt_u32 s3, 2000000\ns_cbranch_scc1 L_exit")
a("ds_read_b32 v10, v14\ns_waitcnt lgkmcnt(0)\nv_readfirstlane_b32 s13, v10\ns_cmp_eq_u32 s13, 0\ns_cbranch_scc1 L_g_pw")
a("L_g_pok:")
nld = lambda t: 0 if t > 13 else (4 if (t < 4 or t in PK) else 9)
for t in range(14):
    k = t % 4; nt_ = t + 3; nk = nt_ % 4
    L = []
    if nt_ <= 13:
        o = 1024 * (nt_ % 4)
        if nt_ % 4 == 0: a("\n".join(f"s_add_u32 s{18+i}, s{18+i}, 4096" for i in range(9)))
        L = ldh(nk, o)
        if nt_ in PK: L += [f"ds_read_b128 {vr(G2W[nk]+4*i,4)}, v1 offset:{5120*PK.index(nt_)+1024*i}" for i in range(5)]
        elif nt_ > 3: L += ldw(nk, o)
    a(f"s_waitcnt vmcnt({nld(t+1)+nld(t+2)})" + (" lgkmcnt(0)" if t in PK else ""))
    if t == 0: stamp(7)
    n = 0
    for i in ((1, 2, 3, 0) if t == 13 else range(4)):
        for dt in range(5):
            acc = AC2 + 4*(5*i+dt)
            a(f"v_mfma_f32_16x16x32_bf16 {vr(acc,4)}, {vr(G2W[k]+4*dt,4)}, {vr(G2H[k]+4*i,4)}, {vr(acc,4)}")
            if n < len(L): a(L[n])
            if t == 13:
                pi = {2: 1, 3: 2, 0: 3}.get(i)
                if pi: a(f"ds_write_b128 v1, {vr(AC2+4*(5*pi+dt),4)} offset:{5120*(pi-1)+1024*dt}")
            n += 1
stamp(8)
a("s_waitcnt lgkmcnt(0)\ns_barrier")
stamp(9)
R_ = 144
for q in range(10): a(f"ds_read_b128 {vr(R_+4*q,4)}, v{2+q//5} offset:{1024*(q%5)}")
for dt in range(5): a(f"ds_read_b64_tr_b16 {vr(16+2*dt,2)}, v5 offset:{2048*dt}")
for q in range(10):
    a(f"s_waitcnt lgkmcnt({14 if q < 5 else 19-q})")
    dt = q % 5
    for h in range(2): a(f"v_pk_add_f32 {vr(AC2+4*dt+2*h,2)}, {vr(AC2+4*dt+2*h,2)}, {vr(R_+4*q+2*h,2)}")
    if q < 5: a(f"ds_read_b128 {vr(R_+40+4*q,4)}, v4 offset:{1024*q}")
for dt in range(5):
    a(f"s_waitcnt lgkmcnt({9-dt})")
    for h in range(2):
        a(f"v_lshlrev_b32 v10, 16, v{16+2*dt+h}\nv_and_b32 v11, 0xffff0000, v{16+2*dt+h}\nv_pk_add_f32 {vr(AC2+4*dt+2*h,2)}, {vr(AC2+4*dt+2*h,2)}, v[10:11]")
a("s_waitcnt lgkmcnt(0)")
for dt in range(5):
    for h in range(2): a(f"v_pk_add_f32 {vr(AC2+4*dt+2*h,2)}, {vr(AC2+4*dt+2*h,2)}, {vr(R_+40+4*dt+2*h,2)}")
    for h in range(2): a(f"v_cvt_pk_bf16_f32 v{32+2*dt+h}, v{AC2+4*dt+2*h}, v{AC2+4*dt+2*h+1}")
    a(f"ds_write_b64 v6, {vr(32+2*dt,2)} offset:{32*dt}")
for q in range(3): a(f"ds_read_b128 {vr(48+4*q,4)}, v7 offset:{1024*q}")
for q in range(3):
    a(f"s_waitcnt lgkmcnt({2-q})\nbuffer_store_dwordx4 {vr(48+4*q,4)}, v{OUTV[q]}, {SA}, s27 offen")
stamp(10)
endp()

a("L_park:")
if opt("p1only", 0): endp()
a(tile_rc(12, 9, 10))
for i in range(1, 5): a(f"v_add_u32 v{1+i}, {55296*i}, v1")
a(f"s_mul_i32 s12, s9, {5*55296}\ns_add_u32 s12, s12, {W2F - 1024}\ns_mov_b32 s10, 0\ns_mov_b32 s3, 0")
spoll(wc_issue, wc_test, sleep=10)
a(f"v_mov_b32 v10, {CNT+8}\ns_mov_b32 s11, 0")
a("L_pk_w:")
a("s_add_u32 s11, s11, 1\ns_cmp_gt_u32 s11, 200000\ns_cbranch_scc1 L_exit\ns_sleep 2")
a("ds_read_b32 v11, v10\ns_waitcnt lgkmcnt(0)\nv_readfirstlane_b32 s13, v11\ns_cmp_eq_u32 s13, 0\ns_cbranch_scc1 L_pk_w")
stamp(11)
a("L_pk_loop:")
for p in range(3):
    a(f"s_add_u32 s13, s12, {1024*PK[p]}")
    for i in range(5): a(f"s_add_u32 m0, s10, {5120*p+1024*i}\nbuffer_load_dwordx4 v{1+i}, {WS}, s13 offen{G2F} lds")
a(f"s_cmp_eq_u32 s3, 0\ns_cselect_b32 s13, 13, 14\ns_lshl_b32 s13, s13, 10\ns_add_u32 s12, s12, s13\ns_add_u32 s10, s10, {AREG}\ns_add_u32 s3, s3, 1\ns_cmp_lt_u32 s3, 4\ns_cbranch_scc1 L_pk_loop")
a(f"v_mov_b32 v2, {CNT}\nv_mov_b32 v3, 1\ns_waitcnt vmcnt(0)\nds_write_b32 v2, v3\ns_waitcnt lgkmcnt(0)")
stamp(12)
endp()

a("L_fetch:")
if opt("p1only", 0): endp()
a(tile_rc(8, 9, 10))
a("s_mul_i32 s11, s8, 81920")
a(f"v_mov_b32 v1, 0\ns_lshl_b32 s13, s9, 2\ns_add_u32 s13, s13, s{S_XR}\ns_lshl_b32 s13, s13, 7\ns_add_u32 s13, s13, {YAC}")
spoll(sld(12, 13), "s_cmp_ge_u32 s12, 80", sleep=opt('ysleep', 8), far=('s_cmp_ge_u32 s12, 24', opt('yfar', 32)))
stamp(11)
a(f"s_mul_i32 s10, s9, 10240\ns_add_u32 s11, s11, s10\ns_add_u32 s11, s11, {YA}\nv_lshlrev_b32 v1, 4, v0")
for q in range(10):
    a(f"buffer_load_dwordx4 {vr(16+4*q,4)}, v1, {WS}, s11 offen sc1\ns_add_u32 s11, s11, 1024")
a(f"v_add_u32 v1, {YAT}, v1")
for q in range(10):
    a(f"s_waitcnt vmcnt({9-q})\nds_write_b128 v1, {vr(16+4*q,4)} offset:{1024*q}")
a("s_waitcnt lgkmcnt(0)")
stamp(12)
a("s_barrier")
endp()

c_issue = sld(33, 100)
c_test = "s_cmp_ge_u32 s33, 64"
a("L_aux:")
a(f"s_sub_u32 s8, s{S_J}, s8\ns_and_b32 s15, {WV}, 3\ns_mov_b32 s35, 0\nv_mov_b32 v230, 0\ns_mov_b32 s71, 0\ns_mul_i32 s69, {WV}, {AREG}")
a(f"s_lshl_b32 s9, s{S_XR}, 4\ns_lshl_b32 s10, s{S_XC}, 3\ns_add_u32 s9, s9, s10\ns_add_u32 s9, s9, s8")
RAW, DV = 164, 64
a("v_and_b32 v238, 3, v0\nv_lshlrev_b32 v238, 2, v238")
a(f"s_cmp_ge_u32 s8, 8\ns_cbranch_scc1 L_nolnwg\ns_cmp_lt_u32 {WV}, 4\ns_cbranch_scc1 L_lnw")
a(f"s_lshl_b32 s{S_CH}, s9, 2\ns_add_u32 s{S_CH}, s{S_CH}, s15\ns_branch L_par")
a("L_nolnwg:")
a(f"s_mul_i32 s10, s{S_XR}, 12\ns_lshl_b32 s11, s{S_XC}, 2\ns_add_u32 s10, s10, s11\ns_add_u32 s10, s10, s8\ns_lshl_b32 s10, s10, 3\ns_add_u32 s10, s10, {WV}\ns_add_u32 s{S_CH}, s10, 192")
a(f"s_lshl_b32 s10, s{S_XC}, 4\ns_add_u32 s10, s10, s8\ns_cmp_lg_u32 s10, 8\ns_cbranch_scc1 L_par")
a(f"s_lshl_b32 s10, s{S_XR}, 15\ns_lshl_b32 s11, {WV}, 12\ns_add_u32 s10, s10, s11\ns_add_u32 s10, s10, {CLR}\nv_lshlrev_b32 v1, 4, v0\ns_mov_b32 s35, 5")
zero(4, 4)
for i in range(4): a(f"buffer_store_dwordx4 v[4:7], v1, {WS}, s10 offen offset:{1024*i} sc1")
a("L_par:")
a(f"s_lshl_b32 s10, s{S_CH}, 8\nv_lshl_add_u32 v1, v0, 2, s10")
for i, nm in enumerate(["are", "aim", "bre", "bim", "cre", "cim"]):
    a(f"global_load_dword v{240+i}, v1, s[{P[nm]}:{P[nm]+1}]{NT1}")
a(f"s_lshl_b32 s10, s{S_CH}, 1\nv_mov_b32 v1, s10\nglobal_load_ushort v246, v1, s[{P['ldt']}:{P['ldt']+1}]")
a(f"global_load_ushort v147, v1, s[{P['dsk']}:{P['dsk']+1}]")
a("s_cmp_lt_u32 s8, 8\ns_cbranch_scc1 L_cs\ns_cmp_lg_u32 s35, 5\ns_cbranch_scc1 L_kgen")
a(f"s_mov_b32 s35, 0\ns_waitcnt vmcnt(8)\ns_barrier\ns_cmp_lg_u32 {WV}, 0\ns_cbranch_scc1 L_kgen")
a(f"s_lshl_b32 s10, s{S_XR}, 2\nv_mov_b32 v2, 1\nv_mov_b32 v4, 0\ns_mov_b64 exec, 1\nbuffer_store_dword v2, v4, {DBG}, s10 offen sc1\ns_mov_b64 exec, -1")
stamp(1)
a("s_branch L_kgen")
a("L_cs:")
a(f"s_lshl_b32 s9, s{S_XR}, 3\ns_add_u32 s9, s9, s8")
a(f"s_mul_i32 s10, s{S_XC}, 6\ns_sub_u32 s10, 30, s10\ns_cmp_ge_u32 s9, s10\ns_cbranch_scc1 L_csn")
a(f"s_mul_i32 s10, s{S_XC}, 30\ns_add_u32 s9, s9, s10")
a("s_mul_i32 s12, s15, 552960\ns_lshl_b32 s11, s9, 6\ns_add_u32 s71, s12, s11")
a(f"v_and_b32 v4, 31, v0\nv_lshlrev_b32 v4, 1, v4\nv_add_u32 v4, s11, v4\nglobal_load_ushort v145, v4, s[{P['b1']}:{P['b1']+1}]")
a("v_lshrrev_b32 v2, 2, v0\nv_and_b32 v3, 3, v0\nv_mul_u32_u24 v1, 3456, v2\nv_lshl_add_u32 v230, v3, 4, v1\ns_mov_b32 s35, 2")
a("L_csn:")
a(f"s_setprio {opt('csprio', 2)}\ns_barrier")
a("L_kgen:")
a("s_mov_b32 s68, 0\ns_mov_b32 m0, s69")
a(lnc_addr)
a(f"s_mov_b32 s101, 0\nv_mov_b32 v146, 0\nv_mov_b32 v253, 0\ns_cmp_lt_u32 {WV}, 4\ns_cbranch_scc1 L_kg_nocs")
conv_setup()
a("L_kg_nocs:")
a("v_and_b32 v2, 31, v0\nv_mul_u32_u24 v2, 272, v2\nv_lshrrev_b32 v3, 5, v0\nv_lshl_add_u32 v2, v3, 4, v2\nv_add_u32 v228, s69, v2")
KA = 208
zero(KA, 16)
a("s_mov_b32 s3, 0\ns_waitcnt vmcnt(1)")
stamp(3)
a(f"v_lshlrev_b32 v3, 16, v246\nv_mul_f32 v3, {f32(math.log2(math.e))}, v3\nv_exp_f32 v3, v3\nv_cvt_pk_bf16_f32 v3, v3, v3\nv_lshlrev_b32 v229, 16, v3")
a("L_kg_loop:")
for i in range(6): a(f"v_and_b32 v{4+i}, 0xffff0000, v{240+i}\nv_lshlrev_b32 v{240+i}, 16, v{240+i}")
for i in range(4): a(f"v_mul_f32 v{4+i}, v229, v{4+i}")
a(f"v_mul_f32 v4, {f32(math.log2(math.e))}, v4\nv_mul_f32 v5, {f32(1/(2*math.pi))}, v5")
Z1, Z8, Z256, W = 10, 12, 14, 16
for k, z in ((1, Z1), (8, Z8), (256, Z256)):
    a(f"v_mul_f32 v20, {f32(k)}, v4\nv_mul_f32 v21, {f32(k)}, v5\nv_fract_f32 v21, v21\nv_exp_f32 v20, v20\nv_cos_f32 v{z}, v21\nv_sin_f32 v{z+1}, v21")
    neg = " neg_hi:[0,1]" if k == 8 else ""
    a(f"v_pk_mul_f32 {vr(z,2)}, {vr(z,2)}, v[20:21] op_sel:[0,0] op_sel_hi:[1,0]{neg}")
cmul(W, 8, 6, 20)
rowof = {}
h0 = [[0,1,2,3],[4,5,6,7],[1024,1032,1280,1288],[1536,1544,1792,1800]]
h1 = [[256,258,260,262],[264],[512,516,520],[768,772,776]]
for q in range(4):
    for i, v in enumerate(h0[q]): rowof[v] = 8*q + i
    for i, v in enumerate(h1[q]): rowof[v] = 8*q + 4 + i
cv = [0]
def put(src, row):
    t = 24 + (cv[0] % 4); cv[0] += 1
    a(f"v_cvt_pk_bf16_f32 v{t}, v{src}, v{src+1}\nds_write_addtid_b32 v{t} offset:{row*272}")
G = {0: W}
opsG = [lambda: put(W, rowof[0])]
for b in range(1, 9):
    G[b] = 32 + 2*b
    opsG.append(lambda b=b: (cmul(G[b], G[b-1], Z1, 20), put(G[b], rowof[b]) if b < 8 else None))
Pq = {1: Z256}
for q in range(1, 8):
    if q > 1:
        Pq[q] = 52 + 2*(q & 1)
        opsG.append(lambda q=q: cmul(Pq[q], Pq[q-1], Z256, 20))
    ds = {1: (0,2,4,6,8), 2: (0,4,8), 3: (0,4,8)}.get(q, (0, 8))
    for n, d in enumerate(ds):
        opsG.append(lambda q=q, d=d, n=n: (cmul(56+2*(n&1), G[d], Pq[q], 20), put(56+2*(n&1), rowof[256*q+d])))
opsE = [lambda: a(f"v_mov_b32 v28, 0x3f80\nds_write_addtid_b32 v28 offset:{32*272}"), lambda: put(Z8, 33)]
for j in range(2, 32):
    src = Z8 if j == 2 else 60 + 2*((j-1) & 1)
    dst = 60 + 2*(j & 1)
    opsE.append(lambda src=src, dst=dst, j=j: (cmul(dst, src, Z8, 22), put(dst, 32+j)))
for i in range(max(len(opsG), len(opsE))):
    if i < len(opsE): opsE[i]()
    if i < len(opsG): opsG[i]()
    if i < 10:
        a(f"s_cmp_lg_u32 s35, 2\ns_cbranch_scc1 L_kg_nl{i}\nbuffer_load_dwordx4 {vr(RAW+4*i,4)}, v230, {SB}, s71 offen{NT}\ns_add_u32 s71, s71, 55296")
        a(f"L_kg_nl{i}:")
for k in range(8):
    a(f"ds_read_b128 {vr(64+8*k,4)}, v228 offset:{32*k}\nds_read_b128 {vr(68+8*k,4)}, v228 offset:{32*272+32*k}")
for k in range(8):
    a(f"s_waitcnt lgkmcnt({14-2*k})")
    a(f"v_mfma_f32_32x32x16_bf16 {vr(KA,16)}, {vr(64+8*k,4)}, {vr(68+8*k,4)}, {vr(KA,16)}")
clr_s = f"s_load_dwordx4 s[28:31], s[{P['dbg']}:{P['dbg']+1}], 0"
a("s_cmp_lg_u32 s3, 0\ns_cbranch_scc1 L_kg_done")
a("s_mov_b32 s3, 1\ns_cmp_lg_u32 s35, 2\ns_cbranch_scc1 L_kg_loop")
a(clr_s)
a("s_branch L_csum")
def need_clr(tag):
    a(f"s_waitcnt lgkmcnt(0)\ns_and_b32 s28, s28, s29\ns_and_b32 s30, s30, s31\ns_and_b32 s28, s28, s30\ns_cbranch_scc1 L_clr_{tag}")
    poll(clr_issue(239, 238), clr_test(239), sleep=8, issued=False)
    a(f"L_clr_{tag}:")
def touch():
    if not opt("touch", 0): return
    n = 270 if RS else 135
    a(f"s_and_b32 s10, s8, 7\ns_lshl_b32 s10, s10, 3\ns_add_u32 s10, s10, {WV}")
    if RS: a(f"s_and_b32 s11, s2, 7\ns_lshl_b32 s11, s11, 3\ns_add_u32 s10, s10, s11\ns_and_b32 s10, s10, 63\ns_mul_i32 s10, s10, {n*128}")
    else: a(f"s_lshl_b32 s11, s{S_XR}, 4\ns_add_u32 s10, s10, s11\ns_and_b32 s10, s10, 63\ns_mul_i32 s10, s10, {n*128}\ns_mul_i32 s11, s{S_XC}, 1105920\ns_add_u32 s10, s10, s11")
    a(f"s_add_u32 s10, s10, {W2F}\nv_lshlrev_b32 v4, 7, v0")
    for i in range(n // 64): a(f"buffer_load_dword v144, v4, {WS}, s10 offen sc1\ns_add_u32 s10, s10, 8192")
    a(few((1 << (n % 64)) - 1, f"buffer_load_dword v144, v4, {WS}, s10 offen sc1"))
def lds_wait(tag, target):
    a("s_mov_b32 s12, 0")
    a(f"L_sb{tag}:")
    a("s_add_u32 s12, s12, 1\ns_cmp_gt_u32 s12, 2000000\ns_cbranch_scc1 L_exit")
    a(f"ds_read_b32 v15, v14\ns_waitcnt lgkmcnt(0)\nv_readfirstlane_b32 s11, v15\ns_cmp_lt_u32 s11, {target}\ns_cbranch_scc1 L_sb{tag}")
W2R = lambda i: (204 + 4*i) if i < 8 else (240 + 4*(i-8))
a("L_lnw:")
a("s_lshl_b32 s10, s9, 5\ns_lshl_b32 s11, s15, 3\ns_add_u32 s14, s10, s11\ns_mul_i32 s11, s14, 1280")
a("v_lshrrev_b32 v2, 4, v0\nv_and_b32 v3, 15, v0\nv_mul_u32_u24 v1, 2560, v2\nv_lshl_add_u32 v1, v3, 4, v1")
for sg in range(2):
    for i in range(5):
        a(f"buffer_load_dwordx4 {vr(RAW+20*sg+4*i,4)}, v1, {SA}, s11 offen offset:{sg*1280+i*256}{NT}")
a(f"v_mov_b32 v4, {CNT}\nv_mov_b32 v5, 0\nds_write_b32 v4, v5\ns_waitcnt lgkmcnt(0)\ns_barrier")
a("s_lshl_b32 s11, s15, 4\nv_lshlrev_b32 v8, 2, v2\nv_add_u32 v8, s11, v8")
for i in range(5):
    a(f"v_add_u32 v4, {16*i}, v3\nv_mul_u32_u24 v5, 3277, v4\nv_lshrrev_b32 v5, 16, v5\nv_mul_u32_u24 v5, {BREG-20*528}, v5\nv_mul_u32_u24 v4, 528, v4\nv_add3_u32 v{150+i}, v4, v5, v8")
a(f"s_setprio 2\nv_mov_b32 v14, {CNT}\nv_lshrrev_b32 v2, 4, v0\ns_mov_b32 s12, 0x3f803f80")
zero(4, 4)
a("s_waitcnt vmcnt(0)")
stamp(1)
if opt("dly", 0) == 2: a("s_sleep 64")
a(clr_s)
srd(S_B, P['w2'], 2211840)
a("v_lshrrev_b32 v8, 3, v0\nv_mul_u32_u24 v8, 1280, v8\nv_and_b32 v9, 7, v0\nv_lshl_add_u32 v8, v9, 4, v8\ns_lshl_b32 s8, s9, 2\ns_add_u32 s8, s8, s15")
for u_ in range(3):
    a(f"s_add_u32 s10, s8, {256*u_}\ns_mul_i32 s11, s10, 6554\ns_lshr_b32 s11, s11, 16\ns_mul_i32 s70, s11, 10\ns_sub_u32 s70, s10, s70")
    a(f"s_mul_i32 s13, s11, 40960\ns_lshl_b32 s71, s70, 7\ns_add_u32 s13, s13, s71\ns_mul_i32 s71, s70, 216\ns_add_u32 s71, s71, s11\ns_lshl_b32 s71, s71, 10\ns_add_u32 s{96+u_}, s71, {W2F}")
    if u_ == 2: a(f"s_cmp_lt_u32 s10, 540\ns_cselect_b32 s13, s13, {OOB}\ns_cselect_b32 s98, s98, {OOB}")
    for q in range(4): a(f"buffer_load_dwordx4 {vr(W2R(4*u_+q),4)}, v8, {SB}, s13 offen{NT1}\ns_add_u32 s13, s13, 10240")
for sg in range(2):
    for k in range(20):
        a(f"v_dot2_f32_bf16 v{4+2*sg+(k&1)}, v{RAW+20*sg+k}, s12, v{4+2*sg+(k&1)}")
a("v_add_f32 v4, v4, v5\nv_add_f32 v6, v6, v7")
def unp(sg, ks):
    for k in ks:
        d = DV + 40*sg + 2*k
        a(f"v_lshlrev_b32 v{d}, 16, v{RAW+20*sg+k}\nv_and_b32 v{d+1}, 0xffff0000, v{RAW+20*sg+k}")
for n, sh in enumerate((8, 4, 2, 1)):
    a(f"v_add_f32_dpp v4, v4, v4 row_ror:{sh} row_mask:0xf bank_mask:0xf\nv_add_f32_dpp v6, v6, v6 row_ror:{sh} row_mask:0xf bank_mask:0xf")
    unp(0, range(5*n, 5*n+5))
a(f"v_mul_f32 v4, {f32(1/640)}, v4\nv_mul_f32 v6, {f32(1/640)}, v6")
a("v_cvt_pk_bf16_f32 v5, v4, v6\nv_lshlrev_b32 v8, 16, v5\nv_and_b32 v9, 0xffff0000, v5")
a("v_sub_f32 v56, 0, v8\nv_sub_f32 v57, 0, v8\nv_sub_f32 v58, 0, v9\nv_sub_f32 v59, 0, v9")
zero(10, 4)
unp(1, range(20))
for sg in range(2):
    for k in range(20):
        d = DV + 40*sg + 2*k
        a(f"v_pk_add_f32 {vr(d,2)}, {vr(d,2)}, {vr(56+2*sg,2)}")
    for k in range(20):
        d = DV + 40*sg + 2*k
        a(f"v_pk_fma_f32 {vr(10+2*sg,2)}, {vr(d,2)}, {vr(d,2)}, {vr(10+2*sg,2)}")
a("v_add_f32 v10, v10, v11\nv_add_f32 v12, v12, v13")
def rnd(sg, ks):
    for k in ks:
        d = DV + 40*sg + 2*k
        a(f"v_cvt_pk_bf16_f32 v{RAW+20*sg+k}, v{d}, v{d+1}")
for n, sh in enumerate((8, 4, 2, 1)):
    a(f"v_add_f32_dpp v10, v10, v10 row_ror:{sh} row_mask:0xf bank_mask:0xf\nv_add_f32_dpp v12, v12, v12 row_ror:{sh} row_mask:0xf bank_mask:0xf")
    rnd(0, range(2*n, 2*n+2))
a("v_sub_f32 v4, v4, v8\nv_sub_f32 v6, v6, v9\nv_mul_f32 v4, v4, v4\nv_mul_f32 v6, v6, v6")
a(f"s_mov_b32 s12, {f32(1/640)}\nv_fma_f32 v4, v10, s12, -v4\nv_fma_f32 v6, v12, s12, -v6")
a("v_max_f32 v4, 0, v4\nv_max_f32 v6, 0, v6")
a("v_cvt_pk_bf16_f32 v7, v4, v6\nv_lshlrev_b32 v4, 16, v7\nv_and_b32 v6, 0xffff0000, v7")
a(f"v_add_f32 v4, {f32(1e-5)}, v4\nv_add_f32 v6, {f32(1e-5)}, v6")
a("v_cvt_pk_bf16_f32 v7, v4, v6\nv_lshlrev_b32 v4, 16, v7\nv_and_b32 v6, 0xffff0000, v7")
a("v_sqrt_f32 v4, v4\nv_sqrt_f32 v6, v6\nv_cvt_pk_bf16_f32 v7, v4, v6")
a("v_lshlrev_b32 v4, 16, v7\nv_and_b32 v6, 0xffff0000, v7\nv_rcp_f32 v60, v4\nv_rcp_f32 v61, v4\nv_rcp_f32 v62, v6\nv_rcp_f32 v63, v6")
a("v_and_b32 v12, 0xffff, v5\nv_or_b32 v12, v12, v4\nv_lshrrev_b32 v13, 16, v5\nv_or_b32 v13, v13, v6")
a(f"s_lshl_b32 s11, s14, 2\ns_add_u32 s11, s11, {STATS}\nv_lshlrev_b32 v1, 3, v2")
need_clr("ln")
a(f"s_mov_b32 exec_lo, 0x10001\ns_mov_b32 exec_hi, 0x10001\nbuffer_store_dwordx2 v[12:13], v1, {WS}, s11 offen sc1\ns_mov_b64 exec, -1")
stamp(2)
rnd(0, range(8, 20)); rnd(1, range(20))
unp(0, range(20)); unp(1, range(20))
for sg in range(2):
    for k in range(20):
        d = DV + 40*sg + 2*k
        a(f"v_pk_mul_f32 {vr(d,2)}, {vr(d,2)}, {vr(60+2*sg,2)}")
for k in range(20):
    for h in range(2):
        d = DV + 2*k + h
        a(f"v_cvt_pk_bf16_f32 v{d}, v{d}, v{d+40}")
    d = DV + 2*k
    a(f"ds_write2_b32 v{150+k//4}, v{d}, v{d+1} offset0:{(k%4)*32} offset1:{(k%4)*32+16}")
a("v_mov_b32 v15, 1\nds_add_u32 v14, v15")
a("v_lshrrev_b32 v3, 5, v0\nv_lshlrev_b32 v2, 4, v0\nv_lshl_add_u32 v1, v3, 4, v2\nv_add_u32 v1, s69, v1")
a("s_mul_i32 s10, s9, 40960\ns_mul_i32 s11, s15, 10240\ns_add_u32 s10, s10, s11")
lds_wait("b", 256)
for i in range(10): a(f"ds_read_b128 {vr(RAW+4*i,4)}, v1 offset:{1056*i}")
for i in range(10):
    a(f"s_waitcnt lgkmcnt({9-i})\nbuffer_store_dwordx4 {vr(RAW+4*i,4)}, v2, {WS}, s10 offen sc1\ns_add_u32 s10, s10, 1024")
a(f"s_lshl_b32 s10, s15, 11\ns_add_u32 s10, s10, {LNC}\nv_lshlrev_b32 v4, 7, v0\nv_mov_b32 v5, 1")
a("v_add_u32 v7, s69, v2\ns_waitcnt vmcnt(10)")
for i in range(12): a(f"ds_write_b128 v7, {vr(W2R(i),4)} offset:{1024*i}")
a("v_lshrrev_b32 v6, 5, v0\nv_bfe_u32 v7, v0, 4, 1\nv_lshlrev_b32 v6, 4, v6\nv_lshl_add_u32 v6, v7, 2, v6\nv_bfe_u32 v7, v0, 2, 2\nv_add_u32 v6, v6, v7")
a("v_lshlrev_b32 v6, 7, v6\nv_and_b32 v7, 3, v0\nv_lshl_add_u32 v6, v7, 3, v6\nv_add_u32 v6, s69, v6")
for u_ in range(3):
    for dt in range(4):
        for h in range(2): a(f"ds_read_b64_tr_b16 {vr(16+16*u_+4*dt+2*h,2)}, v6 offset:{4096*u_+1024*h+32*dt}")
a(f"s_waitcnt vmcnt(0)\ns_mov_b64 exec, 0xffff\nbuffer_atomic_add v5, v4, {WS}, s10 offen sc1\ns_mov_b64 exec, -1\ns_setprio 0\ns_waitcnt lgkmcnt(0)")
stamp(3)
for u_ in range(3):
    for dt in range(4):
        a(f"buffer_store_dwordx4 {vr(16+16*u_+4*dt,4)}, v2, {WS}, s{96+u_} offen sc1\ns_add_u32 s{96+u_}, s{96+u_}, 55296")
a("s_waitcnt vmcnt(0)\ns_mov_b64 exec, 1\nds_add_rtn_u32 v7, v14, v5\ns_waitcnt lgkmcnt(0)\nv_readfirstlane_b32 s10, v7")
a(f"s_and_b32 s11, s9, 1\ns_lshl_b32 s11, s11, 6\ns_add_u32 s11, s11, 128\ns_cmp_eq_u32 s10, 259\ns_cselect_b32 s11, s11, {OOB}\nbuffer_atomic_add v5, v4, {DBG}, s11 offen sc1\ns_mov_b64 exec, -1")
stamp(4)
a("s_cmp_lg_u32 s8, 255\ns_cbranch_scc1 L_norelay")
a(f"v_lshlrev_b32 v6, 6, v0\ns_mov_b32 s8, {W2C}")
poll(few(3, f"buffer_load_dword v7, v6, {DBG}, 0 offen offset:128 sc1"),
     "v_readlane_b32 s9, v7, 0\nv_readlane_b32 s10, v7, 1\ns_add_u32 s9, s9, s10\ns_cmp_ge_u32 s9, 64", sleep=4, issued=False)
stamp(11)
a(f"s_mov_b32 exec_hi, 0\nbuffer_store_dword v5, v4, {WS}, s8 offen offset:1024 sc1\ns_mov_b32 exec_hi, -1")
a("L_norelay:")
a("s_mov_b32 s35, 1\ns_branch L_g2")
a("L_csum:")
a("s_setprio 3\ns_mov_b32 s12, 0x00003f80\ns_mov_b32 s13, 0x3f800000\nv_and_b32 v3, 3, v0")
zero(4, 8)
a("s_waitcnt vmcnt(0)")
for i in range(10):
    for k in range(4):
        a(f"v_dot2_f32_bf16 v{4+2*k}, v{RAW+4*i+k}, s12, v{4+2*k}\nv_dot2_f32_bf16 v{5+2*k}, v{RAW+4*i+k}, s13, v{5+2*k}")
for sh in (8, 4):
    for r in range(8): a(f"v_add_f32_dpp v{4+r}, v{4+r}, v{4+r} row_ror:{sh} row_mask:0xf bank_mask:0xf")
a("v_lshrrev_b32 v12, 4, v0\nv_lshlrev_b32 v12, 7, v12\nv_lshl_add_u32 v12, v3, 5, v12\nv_add_u32 v12, s69, v12")
a("ds_write_b128 v12, v[4:7]\nds_write_b128 v12, v[8:11] offset:16")
a("v_and_b32 v12, 31, v0\nv_lshl_add_u32 v13, v12, 2, s69")
for p in range(4): a(f"ds_read_b32 v{16+p}, v13 offset:{128*p}")
a("s_waitcnt lgkmcnt(0)\nv_add_f32 v16, v16, v17\nv_add_f32 v18, v18, v19\nv_add_f32 v16, v16, v18")
a("v_cvt_pk_bf16_f32 v4, v16, v16\nv_lshlrev_b32 v5, 16, v4\nv_sub_f32 v5, v16, v5")
a("v_cvt_pk_bf16_f32 v6, v16, v5\nv_and_b32 v7, 0xffff0000, v6\nv_sub_f32 v7, v5, v7")
a("v_cvt_pk_bf16_f32 v7, v7, v7\nv_and_b32 v7, 0xffff, v7\nv_or_b32 v7, 1, v7")
a(f"s_lshl_b32 s12, s9, 8\ns_mul_i32 s13, s15, {CSP}\ns_add_u32 s12, s12, s13\ns_add_u32 s12, s12, {CSUM}\nv_lshlrev_b32 v12, 3, v12")
need_clr("cs")
a("v_lshl_or_b32 v7, v145, 16, v7")
a(f"s_mov_b32 exec_hi, 0\nbuffer_store_dwordx2 v[6:7], v12, {WS}, s12 offen sc1\ns_mov_b32 exec_hi, -1")
stamp(2)
a("s_setprio 0\ns_mov_b32 s35, 4\ns_branch L_kg_loop")
a("L_kg_done:")
if opt("dly", 0) == 5: a("s_sleep 64")
a("s_waitcnt vmcnt(0)")
a("s_cmp_ge_u32 s35, 3\ns_cbranch_scc1 L_clr_fin")
a(clr_s)
need_clr("fin")
a(f"s_waitcnt lgkmcnt(0)\ns_cmp_lt_u32 {WV}, 4\ns_cbranch_scc1 L_kg_nc")
a(c_issue)
a("L_kg_nc:")
a("s_nop 7")
stamp(4)
a("s_setprio 0")
r = lambda i: KA + i
a("v_lshlrev_b32 v1, 4, v0\nv_add_u32 v13, s69, v1")
zero(4, 4)
for i in range(3): a(f"ds_write_b128 v13, v[4:7] offset:{SCR+1024*i}")
a("v_and_b32 v3, 31, v0\nv_lshlrev_b32 v2, 4, v3\nv_sub_u32 v2, s69, v2\nv_add_u32 v2, 512, v2")
def pack(o, pairs):
    for i, (lo, hi) in enumerate(pairs): a(f"v_cvt_pk_bf16_f32 v{o+i}, {lo}, {hi}")
R = lambda i: f"v{KA+i}"
pack(16, [(R(7),R(6)),(R(5),R(4)),(R(3),R(2)),(R(1),R(0))])
pack(20, [(R(4),R(3)),(R(2),R(2)),(R(2),R(1)),(R(0),R(0))])
pack(24, [("0","0"),(R(9),R(9)),(R(9),R(8)),(R(8),R(8))])
pack(28, [(R(9),R(10)),(R(13),R(14))])
pack(30, [(R(9),R(11)),(R(13),R(15))])
a(f"v_and_b32 v8, 1, v3\nv_and_b32 v10, 30, v3\nv_mul_u32_u24 v9, 320, v8\nv_mul_u32_u24 v8, 640, v8\ns_add_u32 s10, s69, {T2}\nv_sub_u32 v10, s10, v10\nv_add_u32 v8, v8, v10\nv_add_u32 v9, v9, v10")
a("s_mov_b32 exec_hi, 0")
a(f"ds_write_b128 v2, v[16:19] offset:{IMG+1072-512}")
for q in range(4):
    for cp in range(2): a(f"ds_write_b16{'_d16_hi' if q & 1 else ''} v9, v{30+q//2} offset:{T3-T2 + 160*cp + 2*(63-16*q-cp)}")
a("s_mov_b32 exec_hi, -1\ns_mov_b32 exec_lo, 0")
a(f"ds_write_b128 v2, v[20:23] offset:{IMG+560-512}")
for q in range(2):
    for w in range(2):
        for cp in range(2): a(f"ds_write_b16{'_d16_hi' if w else ''} v8, v{28+q} offset:{320*w + 160*cp + 2*(47-16*q-cp)}")
a(f"s_mov_b32 exec_hi, 1\nds_write_b128 v2, v[24:27] offset:{IMG+48-512}\nds_write_b16 v8, v4 offset:{2*47}\nds_write_b16 v8, v4 offset:{160+2*46}\ns_mov_b64 exec, -1")
a(f"s_cmp_lt_u32 {WV}, 4\ns_cbranch_scc1 L_kexp")
a("s_waitcnt lgkmcnt(0)")
a(c_test)
a("s_cbranch_scc0 L_cv_kpart")
uloads()
a("s_mov_b32 s68, 2")
a("L_cv_kpart:")
B2, B3 = 164, 188
a(f"v_mov_b32 v5, s69\nds_read_u16 v34, v5 offset:{T2 + 6*160 + 2*16}")
a(f"ds_read_b128 v[16:19], v{cLIN} offset:{IMG}\nds_read_b64 v[20:21], v{cLIN} offset:{IMG+16}\nds_read_b128 v[24:27], v{cIMG2} offset:{IMG+1024}\nds_read_b64 v[28:29], v{cIMG2} offset:{IMG+1040}")
for i in range(6):
    for h in range(2): a(f"ds_read2_b32 {vr(B2+4*i+2*h,2)}, v{cT2} offset0:{4*i+2*h} offset1:{4*i+2*h+1}")
for d in range(4):
    for h in range(2): a(f"ds_read2_b32 {vr(B3+4*d+2*h,2)}, v{cT3} offset0:{8*(3-d)+2*h} offset1:{8*(3-d)+2*h+1}")
a("v_lshl_or_b32 v5, v147, 16, v147")
for k in range(4): a(f"v_and_b32 v{AD+k}, v{AD+k}, v5")
a("s_waitcnt lgkmcnt(15)\nv_lshl_or_b32 v5, v34, 16, v34")
for k in range(4): a(f"v_and_b32 v{AB+k}, v{AB+k}, v5")
for rr, (D, va, off) in enumerate(((16, cKW1, 0), (24, cKW2, 4608))):
    O = 64 + 16*rr
    for i in range(4):
        a(f"v_mov_b32 v{O+4*i}, v{D+i}\nv_mov_b32 v{O+4*i+1}, v{D+i+1}")
        a(f"v_alignbit_b32 v{O+4*i+2}, v{D+i+1}, v{D+i}, 16\nv_alignbit_b32 v{O+4*i+3}, v{D+i+2}, v{D+i+1}, 16")
        a(f"ds_write_b128 v{va}, {vr(O+4*i,4)} offset:{off + 16*i}")
a(f"ds_read_b64 {vr(A16,2)}, v{cA0}\nds_read_b64 {vr(A16+2,2)}, v{cA1}")
stamp(5)
a("s_cmp_lg_u32 s101, 0\ns_cbranch_scc1 L_cv_direct")
a("L_cv_upart:")
zero(4, 4)
a(f"s_mov_b64 exec, 0x3fffffff\nds_write_b128 v{cLIN}, v[4:7] offset:{UB-480}\ns_mov_b64 exec, 3")
for o in (W3B-48, W5B-48, W7B-48, W9B-48, W9B+2032): a(f"ds_write_b128 v{cLIN}, v[4:7] offset:{o}")
a("s_mov_b64 exec, -1")
a("s_bitcmp1_b32 s68, 1\ns_cbranch_scc1 L_cv_u2")
spoll(c_issue, c_test, sleep=opt("lsleep", 6))
uloads()
a("L_cv_u2:")
stamp(6)
a("s_waitcnt vmcnt(0)")
for q in range(4): a(f"ds_write_b128 v{cLIN}, {vr(148+4*q,4)} offset:{UB+1024*q}")
SET = [(16, 24), (56, 64)]; CA = 96
a(f"v_mov_b32 v13, v{cLIN}\ns_mov_b32 s3, 0")
o = UB - 16
wrd = f"ds_read_b64 v[128:129], v13 offset:{o-8}\nds_read_b128 v[130:133], v13 offset:{o}\nds_read_b64 v[134:135], v13 offset:{o+16}"
a(wrd)
a("s_waitcnt lgkmcnt(0)")
a("L_cv_win:")
D = 128; Pf = 96
for e in range(16):
    a(f"v_lshlrev_b32 v{Pf+e}, 16, v{D+e//2}" if e % 2 == 0 else f"v_and_b32 v{Pf+e}, 0xffff0000, v{D+e//2}")
a(wrd.replace(f"offset:{o-8}", f"offset:{o-8+1024}").replace(f"offset:{o}\n", f"offset:{o+1024}\n").replace(f"offset:{o+16}", f"offset:{o+16+1024}"))
for e in range(1, 16): a(f"v_add_f32 v{Pf+e}, v{Pf+e}, v{Pf+e-1}")
for h, base in ((1, W3B), (2, W5B), (3, W7B), (4, W9B)):
    if h == 3: a("s_cmp_eq_u32 s3, 2\ns_cbranch_scc1 L_cv_wend")
    T = 112
    for i in range(8):
        b = 4+i-h-1
        a(f"v_sub_f32 v{T+i}, v{Pf+4+i+h}, v{Pf+b}" if b >= 0 else f"v_mov_b32 v{T+i}, v{Pf+4+i+h}")
    for i in range(4): a(f"v_cvt_pk_bf16_f32 v{120+4*(h&1)+i}, v{T+2*i}, v{T+2*i+1}")
    a(f"ds_write_b128 v13, {vr(120+4*(h&1),4)} offset:{base-16}")
a("v_add_u32 v13, 1024, v13\ns_add_u32 s3, s3, 1\ns_waitcnt lgkmcnt(4)\ns_branch L_cv_win")
a("L_cv_wend:")
a("s_cmp_lg_u32 s101, 0\ns_cbranch_scc1 L_cv_rk")
a("L_cv_direct:")
if opt("dly", 0) == 3: a("s_sleep 64")
a(f"v_add_u32 v8, 2304, v{cA0}\nv_add_u32 v9, 2304, v{cA1}\nv_mov_b32 v10, v{cB}")
def rd(st):
    A_, B_ = SET[st]; Rr = []
    for x in range(2):
        Rr.append(f"ds_read_b64 {vr(A_+4*x,2)}, v8 offset:{2304*(1-x)}")
        Rr.append(f"ds_read_b64 {vr(A_+4*x+2,2)}, v9 offset:{2304*(1-x)}")
    for b in range(8): Rr.append(f"ds_read_b128 {vr(B_+4*b,4)}, v10 offset:{512*b}")
    return Rr
advk = ["v_subrev_u32 v8, 288, v8", "v_subrev_u32 v9, 288, v9", "v_subrev_u32 v10, 64, v10"]
for x in rd(0) + advk: a(x)
a(f"s_setprio {opt('cprio', 2)}\ns_mov_b32 s3, 0\ns_waitcnt lgkmcnt(0)")
if PROF: a("s_cmp_lt_u32 s4, 4\ns_cbranch_scc1 L_ns7")
stamp(7)
if PROF: a("L_ns7:")
def mf(n, A_, B_, c=None): a(f"v_mfma_f32_16x16x32_bf16 {vr(CA+4*n,4)}, {vr(A_,4)}, {vr(B_,4)}, {c if c else vr(CA+4*n,4)}")
for b in range(8): mf(b, AD, SET[0][1]+4*b, "0")
for b in range(6): mf(b+2, A16, SET[0][1]+4*b)
for b in range(4): mf(b+4, AB, SET[0][1]+4*b)
a("L_cv_loop:")
for st in range(2):
    A_, B_ = SET[st]; Rr = rd(1-st); n = 0
    for x in range(2):
        for b in range(8-x):
            mf(x+b, A_+4*x, B_+4*b)
            if n < 6: a(Rr[2*n]); a(Rr[2*n+1])
            elif n < 9: a(advk[n-6])
            if st == 1 and n == 12: a("s_add_u32 s3, s3, 1\ns_cmp_lt_u32 s3, 4")
            n += 1
    a("s_waitcnt lgkmcnt(0)")
a("s_cbranch_scc1 L_cv_loop")
a("L_cv_far:")
for f in range(12):
    for h in range(2): a(f"ds_read_b64_tr_b16 {vr(16+4*f+2*h,2)}, v{cW2} offset:{256*f+128*h}")
    if f == 6: a("s_waitcnt lgkmcnt(8)")
for f in range(4):
    for h in range(2): a(f"ds_read_b64_tr_b16 {vr(64+4*f+2*h,2)}, v{cW3} offset:{512*f+128*h}")
a("s_waitcnt lgkmcnt(8)")
for f in range(12):
    for n in range(2, 8):
        i = f + 8 - 2*n
        if 0 <= i < 6: mf(n, 16+4*f, B2+4*i)
a("s_waitcnt lgkmcnt(0)")
for f in range(4):
    for n in range(4+f, 8): mf(n, 64+4*f, B3+4*(n-f-4))
if PROF: a("s_cmp_lt_u32 s4, 4\ns_cbranch_scc1 L_ns8")
stamp(8)
if PROF: a("L_ns8:")
a(f"s_lshl_b32 s14, s{S_CH}, 7\ns_add_u32 s14, s14, {YA}\ns_nop 7")
for n in range(0, 8, 2):
    o = 16 + 2*n
    a(f"v_cvt_pk_bf16_f32 v{o}, v{CA+4*n}, v{CA+4*n+1}\nv_cvt_pk_bf16_f32 v{o+1}, v{CA+4*n+2}, v{CA+4*n+3}")
    a(f"v_cvt_pk_bf16_f32 v{o+2}, v{CA+4*n+4}, v{CA+4*n+5}\nv_cvt_pk_bf16_f32 v{o+3}, v{CA+4*n+6}, v{CA+4*n+7}")
    a(f"v_permlane16_swap_b32 v{o}, v{o+2}\nv_permlane16_swap_b32 v{o+1}, v{o+3}")
    a(f"buffer_store_dwordx4 {vr(o,4)}, v{cST}, {WS}, s14 offen sc1\ns_add_u32 s14, s14, {8*81920}")
a(f"s_mul_i32 s13, s{S_CH}, 820\ns_lshr_b32 s13, s13, 16\ns_lshl_b32 s14, s13, 9\ns_add_u32 s14, s14, {YAC}\nv_lshlrev_b32 v4, 7, v0\nv_mov_b32 v5, 1")
a(f"s_waitcnt vmcnt(0)\ns_mov_b64 exec, 15\nbuffer_atomic_add v5, v4, {WS}, s14 offen sc1\ns_mov_b64 exec, -1")
a("s_setprio 0")
stamp(9)
a(f"s_cmp_eq_u32 {WV}, 7\ns_cbranch_scc1 L_fetch")
endp()
a("L_kexp:")
for q in range(3): a(f"ds_read_b128 {vr(16+4*q,4)}, v13 offset:{SCR+1024*q}")
a(f"s_lshl_b32 s9, s{S_CH}, 12\ns_add_u32 s9, s9, {KD}")
for q in range(3): a(f"s_waitcnt lgkmcnt({2-q})\nbuffer_store_dwordx4 {vr(16+4*q,4)}, v1, {WS}, s9 offen offset:{1024*q} sc1")
a(f"s_sub_u32 s8, s{S_CH}, 256\ns_lshr_b32 s8, s8, 3\ns_lshl_b32 s8, s8, 2\ns_add_u32 s8, s8, {WV}\ns_cmp_ge_u32 s8, 144\ns_cselect_b32 s12, 1, 0\ns_mul_i32 s9, s12, 144\ns_sub_u32 s8, s8, s9")
a("s_mul_i32 s9, s8, 1821\ns_lshr_b32 s9, s9, 16\ns_mul_i32 s10, s9, 36\ns_sub_u32 s8, s8, s10")
a("s_cmp_ge_u32 s8, 20\ns_cselect_b32 s10, 1, 0\ns_mul_i32 s11, s10, 20\ns_sub_u32 s8, s8, s11\ns_lshl_b32 s8, s8, 3\ns_lshl_b32 s9, s9, 1\ns_add_u32 s8, s8, s9\ns_add_u32 s8, s8, s10")
a(f"s_lshl_b32 s8, s8, 7\ns_add_u32 s8, s8, {MBOX}\ns_lshl_b32 s9, 0x1000000, s12\nv_mov_b32 v4, 0\nv_mov_b32 v5, s9")
a(f"s_waitcnt vmcnt(0)\ns_mov_b64 exec, 1\nbuffer_atomic_or v5, v4, {WS}, s8 offen sc1\ns_mov_b64 exec, -1")
stamp(12)
a("s_mov_b32 s35, 1\ns_branch L_g2")
a("L_cv_rk:")
a("s_bitcmp1_b32 s68, 0\ns_cbranch_scc1 L_cv_k1")
spoll(sld(31, S_MB), "s_and_b32 s13, s31, s101", sleep=6)
kloads()
a("L_cv_k1:")
for q in range(3): a(f"s_waitcnt vmcnt({2-q})\nds_write_b128 v{cLIN}, {vr(32+4*q,4)} offset:{SCR+1024*q}")
stamp(4)
a("s_branch L_cv_kpart")

a("L_end:")
if PROF:
    a(f"s_lshl_b32 s93, s2, 3\ns_add_u32 s93, s93, {WV}\ns_lshl_b32 s93, s93, 6\ns_add_u32 s93, s93, {PROFB}")
    a(f"s_memrealtime s[94:95]\ns_waitcnt lgkmcnt(0)\ns_mov_b32 s87, s94\ns_mov_b32 s72, s{S_SPIN}")
    for i in range(16): a(f"v_mov_b32 v{224+i}, s{72+i}")
    a("v_mov_b32 v255, 0\ns_mov_b64 exec, 1")
    for i in range(4): a(f"buffer_store_dwordx4 {vr(224+4*i,4)}, v255, {WS}, s93 offen offset:{16*i}")
    if opt("dbgmax", 0):
        a(f"v_not_b32 v238, v238\ns_and_b32 s93, {WV}, 3\ns_cmp_lg_u32 s93, 0\ns_cbranch_scc1 L_exit")
        sel0 = {1: 14, 2: 15, 3: 1, 4: 2, 5: 5, 6: 6, 7: 8, 8: 10}
        sel4 = {9: 10, 10: 4, 11: 7, 12: 8, 13: 9}
        a(f"s_cmp_lg_u32 {WV}, 0\ns_cbranch_scc1 L_dbg4")
        for d, i in sel0.items(): a(f"buffer_atomic_umax v{224+i}, v255, {DBG}, 0 offen offset:{4*d} sc1")
        a("s_branch L_exit")
        a("L_dbg4:")
        for d, i in sel4.items(): a(f"buffer_atomic_umax v{224+i}, v255, {DBG}, 0 offen offset:{4*d} sc1")
a("L_exit:")
a("s_endpgm")

hdr = open("cdna_kernels/%s.s.ref" % NAME).read().split("; Override launch")[0]
out = hdr + "; @launch grid=(256,1,1) block=(512,1,1) lds=163840\n"
out += '.amdgcn_target "amdgcn-amd-amdhsa--gfx950"\n.text\n' + a.text()
out += f""".section .rodata,"a"
.p2align 6
.amdhsa_kernel {KN}
  .amdhsa_next_free_vgpr 256
  .amdhsa_next_free_sgpr 102
  .amdhsa_accum_offset 256
  .amdhsa_group_segment_fixed_size 0
  .amdhsa_kernarg_size 136
  .amdhsa_user_sgpr_count 2
  .amdhsa_user_sgpr_kernarg_segment_ptr 1
  .amdhsa_system_sgpr_workgroup_id_x 1
.end_amdhsa_kernel
"""
path = [x for x in sys.argv[1:] if not x.startswith("--")]
open(path[0] if path else "f.s", "w").write(out)
```

```python
import sys, struct, math
sys.path.insert(0, "dev")
from asmlib import Asm, vr, sr

NAME = "parallel_sum__ssm_conv_s4__dense_activation_gelu__prompt"
KN = NAME + "_kernel"
PROF = "--prof" in sys.argv
def opt(name, default):
    for x in sys.argv:
        if x.startswith("--%s=" % name): return int(x.split("=")[1])
    return default
def f32(x): return "0x%08x" % struct.unpack("<I", struct.pack("<f", x))[0]

XNT, KD, YA, W2F = 0x000000, 0x280000, 0x500000, 0x780000
CLR = 0x9A0000
STATS, CSUM, MBOX, LNC, W2C, YAC = CLR, CLR+0x2000, CLR+0x10000, CLR+0x18000, CLR+0x1C000, CLR+0x1A000
CSP = 13824
PROFB, HF = 0x9C0000, 0xA00000
WS_SIZE = 0x1100000
OOB = "0x7f000000"
P = dict(u=16, are=18, aim=20, bre=22, bim=24, cre=26, cim=28, ldt=30, dsk=32, bx=34, w1=36, b1=38, w2=40, b2=42, out=44, dbg=46, ws=48)
S_WS, S_A, S_B, S_DBG = 52, 56, 60, 64
S_WAVE, S_XR, S_XC, S_J, S_SPIN, S_CH = 4, 5, 6, 7, 50, 51
S_MB = 34
WV = f"s{S_WAVE}"
WS = f"s[{S_WS}:{S_WS+3}]"; SA = f"s[{S_A}:{S_A+3}]"; SB = f"s[{S_B}:{S_B+3}]"; DBG = f"s[{S_DBG}:{S_DBG+3}]"
STG = 40960
NST = 3
AREG, BREG0, BREG = 20480, 81920, 20480
B7 = BREG0 + 3*BREG
CNT = B7 + 20096
YAT = B7
UB = 5536
W3B, W5B, W7B, W9B = 9664, 12768, 15872, 17952
SCR = 512
IMG, T2, T3 = SCR, SCR+1136, SCR+2416
STATL = BREG0 + 2*BREG
NT = " nt" if opt("nt", 0) else ""
NT1 = " nt" if opt("nt1", 1) else ""

a = Asm()
G2F = " sc1" if opt("g2sc1", 1) else ""
def srd(d, ptr, size):
    a(f"s_mov_b32 s{d}, s{ptr}\ns_mov_b32 s{d+1}, s{ptr+1}\ns_mov_b32 s{d+2}, {hex(size)}\ns_mov_b32 s{d+3}, 0x20000")
def stamp(idx):
    if PROF: a(f"s_memtime s[92:93]\ns_waitcnt lgkmcnt(0)\ns_sub_u32 s{72+idx}, s92, s90")
def lstamp(o):
    if PROF: a(f"s_memtime s[92:93]\ns_waitcnt lgkmcnt(0)\ns_sub_u32 s92, s92, s90\ns_add_u32 m0, s3, {o}\nv_writelane_b32 v200, s92, m0")
def endp(): a("s_branch L_end")
def cmul(d, x, y, t):
    a(f"v_pk_mul_f32 {vr(t,2)}, {vr(x,2)}, {vr(y,2)} op_sel:[0,0] op_sel_hi:[0,1]")
    a(f"v_pk_fma_f32 {vr(d,2)}, {vr(x,2)}, {vr(y,2)}, {vr(t,2)} op_sel:[1,1,0] op_sel_hi:[1,0,1] neg_lo:[0,1,0]")
def poll(issue, test, sleep=4, issued=True):
    L = a.label("L_poll"); D = a.label("L_pdone")
    if not issued: a(issue)
    a(f"{L}:")
    a("s_waitcnt vmcnt(0)")
    a(test)
    a(f"s_cbranch_scc1 {D}")
    a(f"s_add_u32 s{S_SPIN}, s{S_SPIN}, 1\ns_cmp_gt_u32 s{S_SPIN}, 100000\ns_cbranch_scc1 L_exit")
    a(f"s_sleep {sleep}")
    a(issue)
    a(f"s_branch {L}")
    a(f"{D}:")
def sld(d, off): return f"s_load_dword s{d}, s[{P['ws']}:{P['ws']+1}], s{off} glc"
def spoll(issue, test, sleep=4, issued=False, far=None):
    L = a.label("L_spoll"); D = a.label("L_sdone")
    if not issued: a(issue)
    a(f"{L}:")
    a("s_waitcnt lgkmcnt(0)")
    a(test)
    a(f"s_cbranch_scc1 {D}")
    a(f"s_add_u32 s{S_SPIN}, s{S_SPIN}, 1\ns_cmp_gt_u32 s{S_SPIN}, 100000\ns_cbranch_scc1 L_exit")
    a(f"s_sleep {sleep}")
    if far:
        N = a.label("L_near")
        a(f"{far[0]}\ns_cbranch_scc1 {N}\ns_sleep {far[1]}")
        a(f"{N}:")
    a(issue)
    a(f"s_branch {L}")
    a(f"{D}:")
def arrive_issue(sreg, va, vb):
    a(f"v_mov_b32 v{va}, 0\nv_mov_b32 v{vb}, 1\ns_mov_b64 exec, 1\nbuffer_atomic_add v{vb}, v{va}, {WS}, s{sreg} offen sc0 sc1\ns_mov_b64 exec, -1")
def arrive_check(st, vb, n, then):
    L = a.label("L_arr")
    a(f"s_waitcnt vmcnt(0)\nv_readfirstlane_b32 s{st}, v{vb}\ns_cmp_lg_u32 s{st}, {n-1}\ns_cbranch_scc1 {L}")
    a(then)
    a(f"{L}:")
def push_all(bitreg, off, va, vb, st):
    t = f"v_lshlrev_b32 v{va}, 7, v0\nv_mov_b32 v{vb}, s{bitreg}\ns_mov_b32 s{st}, {MBOX+off}\n"
    for i in range(4): t += f"buffer_atomic_or v{vb}, v{va}, {WS}, s{st} offen sc1\ns_add_u32 s{st}, s{st}, 8192\n"
    return t
def few(mask, ins): return f"s_mov_b64 exec, {mask}\n{ins}\ns_mov_b64 exec, -1"
def clr_issue(v, vo): return few(15, f"buffer_load_dword v{v}, v{vo}, {DBG}, 0 offen sc1")
def clr_test(v): return f"v_cmp_ne_u32 vcc, 0, v{v}\ns_and_b32 vcc_lo, vcc_lo, 15\ns_cmp_eq_u32 vcc_lo, 15"
def nz_test(v): return f"v_cmp_ne_u32 vcc, 0, v{v}\ns_cmp_eq_u64 vcc, -1"
def zero(b, n):
    for i in range(0, n, 2): a(f"v_pk_mov_b32 {vr(b+i,2)}, 0, 0")

cLIN, cIMG2, cT2, cT3, cW2, cW3, cST, cKW1, cKW2, cA0, cA1, cB, cU = 247, 248, 249, 250, 251, 252, 253, 254, 255, 231, 236, 237, 146
AD, AB, A16 = 204, 224, 232
RS = opt("rowsplit", 0)
def tile_rc(rt, cb, tmp):
    if RS: return f"s_and_b32 s{rt}, s2, 7\ns_lshl_b32 s{rt}, s{rt}, 2\ns_lshr_b32 s{cb}, s{S_J}, 3\ns_add_u32 s{rt}, s{rt}, s{cb}\ns_and_b32 s{cb}, s{S_J}, 7"
    return (f"s_lshl_b32 s{rt}, s{S_XR}, 3\ns_lshr_b32 s{cb}, s{S_J}, 2\ns_add_u32 s{rt}, s{rt}, s{cb}\n"
            f"s_lshl_b32 s{cb}, s{S_XC}, 2\ns_and_b32 s{tmp}, s{S_J}, 3\ns_add_u32 s{cb}, s{cb}, s{tmp}")
def conv_setup(t=64):
    r_, g_, h_, f_, x_, y_, z_ = (f"v{t+i}" for i in range(7))
    a(f"v_lshlrev_b32 {x_}, 4, v0\nv_add_u32 v{cLIN}, s69, {x_}\nv_min_u32 {z_}, 5, v0\nv_lshl_add_u32 v{cIMG2}, {z_}, 4, s69")
    a(f"v_lshlrev_b32 {x_}, 6, {z_}\nv_lshrrev_b32 {y_}, 1, {z_}\nv_lshl_add_u32 {x_}, {y_}, 4, {x_}\nv_add_u32 v{cKW2}, s69, {x_}")
    a(f"v_lshlrev_b32 {x_}, 6, v0\nv_lshrrev_b32 {y_}, 1, v0\nv_lshl_add_u32 {x_}, {y_}, 4, {x_}\nv_add_u32 v{cKW1}, s69, {x_}")
    a(f"v_lshrrev_b32 {x_}, 2, v0\nv_mul_u32_u24 {x_}, 40960, {x_}\nv_and_b32 {y_}, 3, v0\nv_lshl_add_u32 v{cU}, {y_}, 4, {x_}")
    a(f"v_and_b32 {r_}, 15, v0\nv_lshrrev_b32 {g_}, 4, v0\nv_and_b32 {h_}, 1, {g_}\nv_lshrrev_b32 {f_}, 1, {g_}")
    a(f"v_sub_u32 {x_}, 15, {r_}\nv_and_b32 {y_}, 1, {x_}\nv_sub_u32 {x_}, {x_}, {y_}\nv_lshlrev_b32 {x_}, 1, {x_}")
    a(f"v_lshl_add_u32 {z_}, {g_}, 1, {y_}\nv_mul_u32_u24 {z_}, 160, {z_}\nv_add_u32 {z_}, {z_}, {x_}\ns_add_u32 s10, s69, {T2}\nv_add_u32 v{cT2}, s10, {z_}")
    a(f"v_lshl_add_u32 {z_}, {h_}, 1, {y_}\nv_mul_u32_u24 {z_}, 160, {z_}\nv_add_u32 {z_}, {z_}, {x_}\nv_lshl_add_u32 {z_}, {f_}, 4, {z_}\ns_add_u32 s10, s69, {T3}\nv_add_u32 v{cT3}, s10, {z_}")
    a(f"v_mul_u32_u24 {x_}, {W5B-W3B}, {h_}\nv_lshlrev_b32 {y_}, 3, {g_}\nv_sub_u32 {x_}, {x_}, {y_}\nv_lshl_add_u32 {x_}, {r_}, 3, {x_}\ns_add_u32 s10, s69, {W3B-8}\nv_add_u32 v{cW2}, s10, {x_}")
    a(f"v_mul_u32_u24 {x_}, {W9B-W7B-16}, {h_}\nv_lshl_add_u32 {x_}, {f_}, 8, {x_}\nv_lshl_add_u32 {x_}, {r_}, 3, {x_}\ns_add_u32 s10, s69, {W7B-16}\nv_add_u32 v{cW3}, s10, {x_}")
    a(f"v_lshlrev_b32 {x_}, 2, {h_}\nv_lshrrev_b32 {z_}, 2, {r_}\nv_add_u32 {x_}, {x_}, {z_}\nv_mul_u32_u24 {x_}, 81920, {x_}\nv_lshl_add_u32 {x_}, {f_}, 6, {x_}\nv_and_b32 {z_}, 3, {r_}\nv_lshl_add_u32 v{cST}, {z_}, 4, {x_}")
    a(f"s_add_u32 s10, s69, {UB-32}\nv_lshlrev_b32 {x_}, 5, {r_}\nv_lshl_add_u32 {x_}, {g_}, 4, {x_}\nv_add_u32 v{cB}, s10, {x_}")
    a(f"v_sub_u32 {z_}, {y_}, {r_}\nv_add_u32 {z_}, 15, {z_}\nv_sub_u32 {y_}, {r_}, {y_}")
    a(f"v_lshrrev_b32 {x_}, 4, {z_}\nv_lshlrev_b32 {x_}, 4, {x_}\nv_lshl_add_u32 {x_}, {z_}, 3, {x_}\nv_add_u32 v{cA0}, s69, {x_}")
    a(f"v_add_u32 {z_}, 4, {z_}\nv_lshrrev_b32 {x_}, 4, {z_}\nv_lshlrev_b32 {x_}, 4, {x_}\nv_lshl_add_u32 {x_}, {z_}, 3, {x_}\nv_add_u32 v{cA1}, s69, {x_}")
    a(f"v_mov_b32 {r_}, 0xffff\nv_mov_b32 {g_}, 0xffff0000\nv_mov_b32 {h_}, -1")
    for k in range(4):
        a(f"v_cmp_eq_u32 vcc, {2*k-16}, {y_}\nv_cndmask_b32 v{AD+k}, 0, {r_}, vcc\nv_cmp_eq_u32 vcc, {2*k+1-16}, {y_}\nv_cndmask_b32 v{AD+k}, v{AD+k}, {g_}, vcc")
        a(f"v_cmp_eq_u32 vcc, {2*k-12}, {y_}\nv_cndmask_b32 v{AB+k}, 0, {h_}, vcc\nv_cmp_eq_u32 vcc, {2*k-13}, {y_}\nv_cndmask_b32 v{AB+k}, v{AB+k}, {r_}, vcc\nv_cmp_eq_u32 vcc, {2*k-11}, {y_}\nv_cndmask_b32 v{AB+k}, v{AB+k}, {g_}, vcc")
def uloads():
    a(f"s_lshl_b32 s10, s{S_CH}, 6")
    for q in range(4): a(f"buffer_load_dwordx4 {vr(148+4*q,4)}, v{cU}, {WS}, s10 offen sc1\ns_add_u32 s10, s10, 655360")
def kloads():
    a(f"s_lshl_b32 s10, s{S_CH}, 12\ns_add_u32 s10, s10, {KD}")
    for q in range(3): a(f"buffer_load_dwordx4 {vr(32+4*q,4)}, v1, {WS}, s10 offen offset:{1024*q} sc1")
lnc_addr = f"s_mul_i32 s13, s{S_CH}, 410\ns_lshr_b32 s13, s13, 16\ns_lshl_b32 s13, s13, 4\ns_and_b32 s100, s2, 15\ns_add_u32 s100, s100, s13\ns_lshl_b32 s100, s100, 7\ns_add_u32 s100, s100, {LNC}"

a.raw(f".globl {KN}\n.p2align 8\n.type {KN},@function")
a(f"{KN}:")
a("s_cmp_ge_u32 s2, 256\ns_cbranch_scc1 L_exit")
a("s_load_dwordx16 s[16:31], s[0:1], 0\ns_load_dwordx16 s[32:47], s[0:1], 64\ns_load_dwordx2 s[48:49], s[0:1], 128")
if opt("cpf", 1):
    a(f"s_cmp_ge_u32 s2, {opt('cpfn', 8)}\ns_cbranch_scc1 L_nocpf")
    a("s_getpc_b64 s[12:13]")
    a("L_cpfb:")
    a("v_lshlrev_b32 v20, 7, v0\nv_min_u32 v20, L_exit-L_cpfb, v20\nv_mov_b32 v21, s13\nv_add_co_u32 v20, vcc, s12, v20\nv_addc_co_u32 v21, vcc, 0, v21, vcc")
    a("global_load_dword v22, v[20:21], off")
    a("L_nocpf:")
if PROF:
    a("s_memtime s[90:91]\ns_memrealtime s[94:95]")
    for i in range(16): a(f"s_mov_b32 s{72+i}, 0")
a("v_lshrrev_b32 v1, 6, v0\nv_and_b32 v0, 63, v0")
a(f"v_readfirstlane_b32 {WV}, v1")
a(f"s_bfe_u32 s{S_XR}, s2, 0x20001\ns_and_b32 s{S_XC}, s2, 1\ns_lshr_b32 s{S_J}, s2, 3\ns_mov_b32 s{S_SPIN}, 0")
a(f"s_lshl_b32 s8, s{S_XC}, 2\ns_sub_u32 s8, 20, s8")
a(f"s_cmp_eq_u32 s{S_XC}, 0\ns_cselect_b32 s9, 52, 64\ns_mul_i32 s9, s9, s{S_J}\ns_lshr_b32 s9, s9, 8")
a(f"s_sub_u32 s11, 5, s{S_XC}\ns_mul_i32 s11, s11, s9\ns_sub_u32 s10, s{S_J}, s11\ns_mul_i32 s11, s{S_XC}, 5\ns_add_u32 s10, s10, s11")
a(f"s_lshl_b32 s11, s{S_XR}, 2\ns_add_u32 s9, s9, s11")
a("v_lshrrev_b32 v4, 3, v0\nv_mul_u32_u24 v4, 1280, v4")
a("v_and_b32 v5, 7, v0\nv_lshrrev_b32 v6, 4, v0\nv_xor_b32 v5, v5, v6\nv_lshl_add_u32 v2, v5, 4, v4")
a("v_xor_b32 v5, 4, v5\nv_lshl_add_u32 v3, v5, 4, v4\nv_add_u32 v3, 10240, v3\nv_add_u32 v4, 20480, v2\nv_add_u32 v5, 20480, v3")
for i in range(3):
    a(f"v_add_u32 v6, {64*i}, v0\nv_mul_u32_u24 v7, 2731, v6\nv_lshrrev_b32 v7, 16, v7\nv_lshlrev_b32 v14, 1, v7\nv_and_b32 v14, 4, v14\nv_xor_b32 v6, v6, v14")
    a(f"v_mul_u32_u24 v7, 3072, v7\nv_lshl_add_u32 v{8+i}, v6, 4, v7\nv_add_u32 v{11+i}, 27648, v{8+i}")
a("s_waitcnt lgkmcnt(0)")
srd(S_WS, P['ws'], WS_SIZE)
srd(S_A, P['u'], 2621440)
srd(S_B, P['w1'], 2211840)
srd(S_DBG, P['dbg'], 256)
a(f"s_lshl_b32 s{S_MB}, s2, 7\ns_add_u32 s{S_MB}, s{S_MB}, {MBOX}")
if PROF:
    a("s_mov_b32 s86, s94"); stamp(13)
if opt("g2only", 0):
    a(f"v_mov_b32 v174, 0\ns_mov_b32 s35, 1\ns_cmp_lt_u32 {WV}, 4\ns_cbranch_scc1 L_g2\ns_branch L_end")
a(f"s_cmp_ge_u32 s{S_J}, s8\ns_cbranch_scc1 L_aux")
a(f"s_cmp_lt_u32 {WV}, 4\ns_cbranch_scc1 L_comp")

a(f"s_sub_u32 s8, {WV}, 4")
a("s_lshl_b32 s11, s9, 7\ns_lshl_b32 s12, s8, 5\ns_add_u32 s11, s11, s12\ns_mul_i32 s11, s11, 1280")
a("s_mul_i32 s12, s8, 55296\ns_mul_i32 s13, s10, 384\ns_add_u32 s12, s12, s13")
a("s_lshl_b32 s13, s8, 12\ns_mul_i32 s14, s8, 6144\ns_add_u32 s14, s14, 16384\ns_mov_b32 s3, 0")
a(f"s_and_b32 s15, s9, 3\ns_mul_i32 s15, s15, 5\ns_add_u32 s15, s15, 1\ns_lshr_b32 s15, s15, 1\ns_lshl_b32 s68, s10, 1\ns_add_u32 s15, s15, s68\ns_add_u32 s15, s15, s{S_XR}")
a("s_mul_i32 s68, s15, 26\ns_lshr_b32 s68, s68, 8\ns_mul_i32 s68, s68, 10\ns_sub_u32 s15, s15, s68")
a("s_lshl_b32 s68, s15, 7\ns_add_u32 s11, s11, s68\ns_mul_i32 s68, s15, 221184\ns_add_u32 s12, s12, s68\ns_mov_b32 s69, 0")
stamp(1)
S_C = 96
a("v_mov_b32 v146, 0\nv_mov_b32 v253, 0\ns_mov_b32 s101, 0")
a("L_ld_loop:")
a("s_cmp_lt_u32 s3, 2\ns_cbranch_scc1 L_ld_nowait\ns_cmp_eq_u32 s3, 2\ns_cbranch_scc1 L_ld_setup")
a("L_ld_wait:")
a("s_waitcnt vmcnt(10)")
lstamp(0)
a("s_barrier")
lstamp(16)
a("L_ld_nowait:")
a("s_add_u32 s70, s69, s13\ns_add_u32 s71, s69, s14")
for q in range(4): a(f"s_add_u32 m0, s70, {1024*q}\nbuffer_load_dwordx4 v{2+q}, {SA}, s11 offen{NT} lds")
for i in range(6): a(f"s_add_u32 m0, s71, {1024*i}\nbuffer_load_dwordx4 v{8+i}, {SB}, s12 offen{NT} lds")
a("s_add_u32 s11, s11, 128\ns_add_u32 s12, s12, 221184\ns_add_u32 s15, s15, 1\ns_cmp_lt_u32 s15, 10\ns_cbranch_scc1 L_ld_nowrap")
a("s_sub_u32 s11, s11, 1280\ns_sub_u32 s12, s12, 2211840\ns_mov_b32 s15, 0")
a("L_ld_nowrap:")
a(f"s_add_u32 s69, s69, {STG}\ns_cmp_eq_u32 s69, {NST*STG}\ns_cselect_b32 s69, 0, s69")
a(f"s_cmp_lg_u32 s3, 7\ns_cbranch_scc1 L_ld_n5\ns_load_dwordx4 s[28:31], s[{P['dbg']}:{P['dbg']+1}], 0")
a("L_ld_n5:")
a("s_add_u32 s3, s3, 1\ns_cmp_lt_u32 s3, 10\ns_cbranch_scc1 L_ld_loop")
s_issue = f"buffer_load_dwordx4 v[16:19], v1, {WS}, s18 offen sc1\nbuffer_load_dwordx4 v[20:23], v6, {WS}, s18 offen offset:1024 sc1\nbuffer_load_dword v24, v7, {WS}, s20 offen sc1"
wc_issue = sld(26, 25)
wc_test = "s_cmp_lg_u32 s26, 0"
a("s_waitcnt lgkmcnt(0)\ns_and_b32 s28, s28, s29\ns_and_b32 s30, s30, s31\ns_and_b32 s24, s28, s30")
a(s_issue)
for w in (13, 3):
    if w == 3:
        a("s_mov_b32 s31, 0\ns_mov_b32 s33, 0\ns_cmp_eq_u32 s101, 0\ns_cbranch_scc1 L_ld_ncv")
        a(sld(31, S_MB) + "\n" + sld(33, 100))
        a("L_ld_ncv:")
    a(f"s_waitcnt vmcnt({w})")
    lstamp(0)
    a("s_barrier")
    lstamp(16)
    if PROF: a("s_add_u32 s3, s3, 1")
a("s_cmp_lg_u32 s24, 0\ns_cbranch_scc1 L_ld_clr")
poll(clr_issue(15, 14), clr_test(15), sleep=8, issued=False)
a(s_issue)
a("s_waitcnt lgkmcnt(0)\ns_mov_b32 s31, 0\ns_mov_b32 s33, 0")
a("L_ld_clr:")
s_test = "v_and_b32 v4, v17, v19\nv_and_b32 v5, v21, v23\nv_and_b32 v4, v4, v5\nv_and_b32 v4, 1, v4\nv_min_u32 v4, v4, v24\n" + nz_test(4)
poll(s_issue, s_test, sleep=8)
a("ds_write_b128 v25, v[16:19]\nds_write_b128 v26, v[20:23] offset:1024\nds_write_b32 v27, v24")
a("s_waitcnt lgkmcnt(0)\ns_mov_b32 s68, 0\ns_and_b32 s13, s31, s101\ns_cbranch_scc0 L_ld_nk0")
kloads()
a("s_mov_b32 s68, 1")
a("L_ld_nk0:")
a("s_cmp_ge_u32 s33, 64\ns_cbranch_scc0 L_ld_nk")
uloads()
a("s_or_b32 s68, s68, 2")
a("L_ld_nk:")
a("s_barrier")
lstamp(16)
if PROF:
    a(f"s_lshl_b32 s93, s2, 9\ns_lshl_b32 s92, s8, 7\ns_add_u32 s93, s93, s92\ns_add_u32 s93, s93, {PROFB+0x20000}\nv_lshlrev_b32 v201, 2, v0\ns_mov_b32 exec_hi, 0\nbuffer_store_dword v200, v201, {WS}, s93 offen\ns_mov_b32 exec_hi, -1")
stamp(2)
a(f"s_cmp_eq_u32 {WV}, 7\ns_cbranch_scc1 L_fetch")
a(f"s_cmp_eq_u32 {WV}, 6\ns_cbranch_scc1 L_park")
a(f"s_cmp_eq_u32 s101, 0\ns_cbranch_scc1 L_end\ns_mul_i32 s69, {WV}, {AREG}\ns_branch L_cv_upart")
wc_prep = f"s_and_b32 s25, s2, 31\ns_lshl_b32 s25, s25, 7\ns_add_u32 s25, s25, {W2C+1024}"
a("L_ld_setup:")
a("v_lshlrev_b32 v1, 4, v0\nv_and_b32 v7, 31, v0\nv_lshlrev_b32 v6, 4, v7\nv_lshlrev_b32 v7, 2, v7\nv_and_b32 v14, 3, v0\nv_lshlrev_b32 v14, 2, v14")
a(f"s_lshl_b32 s20, s9, 9\ns_lshl_b32 s23, s8, 7\ns_add_u32 s20, s20, s23\ns_add_u32 s20, s20, {STATS}\ns_add_u32 s23, s23, {STATL+6144}\nv_add_u32 v27, s23, v7")
a(f"s_mul_i32 s18, s10, 1536\ns_mul_i32 s19, s8, {CSP}\ns_add_u32 s18, s18, s19\ns_add_u32 s18, s18, {CSUM}")
a(f"s_mul_i32 s23, s8, 1536\ns_add_u32 s23, s23, {STATL}\nv_add_u32 v25, s23, v1\nv_add_u32 v26, s23, v6\nv_mov_b32 v30, {CNT}")
zero(32, 4)
a("ds_write_b128 v30, v[32:35]")
a(wc_prep)
a(f"s_mul_i32 s23, s{S_XR}, 36\ns_mul_i32 s22, s{S_XC}, 20\ns_add_u32 s23, s23, s22\ns_add_u32 s23, s23, s{S_J}\ns_mul_i32 s22, s8, 144\ns_add_u32 s23, s23, s22\ns_cmp_ge_u32 s23, 192\ns_cbranch_scc1 L_ld_wait")
a(f"s_lshr_b32 s22, s23, 2\ns_lshl_b32 s22, s22, 3\ns_and_b32 s23, s23, 3\ns_add_u32 s{S_CH}, s23, s22\ns_add_u32 s{S_CH}, s{S_CH}, 256\ns_lshl_b32 s101, 0x1000000, s8")
a(f"s_mov_b32 s96, s69\ns_mov_b32 s97, s10\ns_mov_b32 s98, s13\ns_mul_i32 s69, {WV}, {AREG}")
conv_setup()
a(lnc_addr)
a(f"s_lshl_b32 s22, s{S_CH}, 1\ns_and_b32 s23, s22, 2\ns_sub_u32 s22, s22, s23\ns_load_dword s99, s[{P['dsk']}:{P['dsk']+1}], s22")
a("s_lshl_b32 s23, s23, 3\ns_waitcnt lgkmcnt(0)\ns_lshr_b32 s99, s99, s23\ns_and_b32 s99, s99, 0xffff\nv_mov_b32 v147, s99")
a("s_mov_b32 s69, s96\ns_mov_b32 s10, s97\ns_mov_b32 s13, s98\ns_branch L_ld_wait")

G2H = [16, 32, 48, 224]; G2W = [164, 184, 204, 144]; AC2 = 64
K0 = [0, 13, 26, 40, 54]
def g2_setup():
    a(tile_rc(30, 31, 29))
    a(f"s_mul_i32 s28, {WV}, 7168")
    a(f"s_mul_i32 s27, s30, {4*55296}\ns_add_u32 s27, s27, s28\ns_add_u32 s27, s27, {HF}")
    for i in range(4):
        a(f"s_add_u32 s29, {WV}, {i}\ns_and_b32 s29, s29, 3\ns_mul_i32 s29, s29, 55296\ns_add_u32 s{18+i}, s27, s29")
    a(f"s_mul_i32 s22, s31, {5*55296}\ns_add_u32 s22, s22, s28\ns_add_u32 s22, s22, {W2F}")
    for i in range(1, 5): a(f"s_add_u32 s{22+i}, s22, {55296*i}")
    a(f"s_lshl_b32 s27, s30, 6\ns_lshl_b32 s29, {WV}, 4\ns_add_u32 s27, s27, s29\ns_mul_i32 s27, s27, 1280\ns_mul_i32 s29, s31, 160\ns_add_u32 s27, s27, s29")
    masks = []
    for w in range(4):
        c0, c1 = (7*w)//3, min(26, 7*w+6)//3
        m = ((1 << (c1-c0+1)) - 1) << c0
        masks.append(m | (m << 11))
    a(f"s_mov_b32 s28, {hex(masks[0])}\ns_cmp_eq_u32 {WV}, 1\ns_cselect_b32 s28, {hex(masks[1])}, s28\ns_cmp_eq_u32 {WV}, 2\ns_cselect_b32 s28, {hex(masks[2])}, s28\ns_cmp_eq_u32 {WV}, 3\ns_cselect_b32 s28, {hex(masks[3])}, s28")
    a(f"v_lshlrev_b32 v252, 4, v0\ns_cmp_eq_u32 {WV}, 3\ns_cselect_b32 s30, {OOB}, 0\nv_add_u32 v253, s30, v252")
    a("v_lshrrev_b32 v255, 4, v0\nv_lshlrev_b32 v255, 3, v255\nv_and_b32 v254, 15, v0\nv_mul_u32_u24 v254, 160, v254\nv_add_u32 v254, v254, v255")
    srd(S_B, P['b2'], 1280)
def ldh(k, o=0, v=252): return [f"buffer_load_dwordx4 {vr(G2H[k]+4*i,4)}, v{v}, {WS}, s{18+i} offen offset:{o}{G2F}" for i in range(4)]
def ldw(k, o=0, v=252): return [f"buffer_load_dwordx4 {vr(G2W[k]+4*i,4)}, v{v}, {WS}, s{22+i} offen offset:{o}{G2F}" for i in range(5)]
OUTV = (8, 9, 13)
def xb_loads():
    for q in range(3):
        a(f"v_add_u32 v10, {64*q}, v0\nv_mul_u32_u24 v11, 6554, v10\nv_lshrrev_b32 v11, 16, v11\nv_mul_u32_u24 v11, 1120, v11\nv_lshl_add_u32 v{OUTV[q]}, v10, 4, v11")
    a(f"v_cmp_gt_u32 vcc, 32, v0\nv_mov_b32 v10, {OOB}\nv_cndmask_b32 v13, v10, v13, vcc\ns_mul_i32 s10, {WV}, {AREG}")
    for q in range(3): a(f"s_add_u32 m0, s10, {15360+1024*q}\nbuffer_load_dwordx4 v{OUTV[q]}, {SA}, s27 offen lds")
    a(f"s_add_u32 m0, s10, {18432}\ns_mov_b64 exec, 0x3ff\nbuffer_load_dwordx4 v252, {SB}, s29 offen lds\ns_mov_b64 exec, -1")
    a("v_add_u32 v2, s10, v254\nv_add_u32 v3, s10, v255")
off = lambda t: 1024*t if t < 7 else 27648 + 1024*(t-7)
w_pre = ldw(0, 0) + ldw(1, 1024) + ldw(2, 2048) + ldw(3, 3072)

a("L_comp:")
ACC = 72; BUF = [16, 44]; SF = 172
g2_setup()
a("v_and_b32 v13, 31, v0\nv_lshrrev_b32 v14, 5, v0")
a(f"s_lshl_b32 s8, {WV}, 12\nv_lshlrev_b32 v15, 7, v13\nv_add_u32 v15, s8, v15")
a("v_bfe_u32 v7, v0, 1, 3\nv_xor_b32 v7, v7, v14")
for ks in range(4): a(f"v_xor_b32 v1, {2*ks}, v7\nv_lshl_add_u32 v{2+ks}, v1, 4, v15")
a("v_bfe_u32 v1, v0, 2, 2\nv_lshl_add_u32 v1, v14, 3, v1\nv_mul_u32_u24 v1, 384, v1")
a("v_bfe_u32 v7, v0, 4, 1\nv_lshl_add_u32 v1, v7, 5, v1\nv_and_b32 v7, 3, v0\nv_lshl_add_u32 v1, v7, 3, v1\nv_add_u32 v1, 16384, v1")
a("v_bfe_u32 v7, v0, 3, 1\nv_lshlrev_b32 v7, 6, v7\nv_add_u32 v6, v1, v7\nv_sub_u32 v196, v1, v7\nv_mov_b32 v197, v196")
for i in range(5): a(f"v_mov_b32 v{8+i}, v{2+i}")
zero(ACC, 96)
a(f"s_lshl_b32 s11, {WV}, 7\ns_add_u32 s11, s11, {STATL+6144}\nv_lshl_add_u32 v168, v13, 2, s11\nv_mul_u32_u24 v169, 3072, v14\nv_lshl_add_u32 v169, v13, 3, v169\nv_add_u32 v169, {STATL}, v169")
a("v_bfe_u32 v1, v0, 4, 1\nv_mul_u32_u24 v1, 55296, v1\nv_lshl_add_u32 v1, v14, 8, v1\nv_and_b32 v7, 15, v0\nv_lshl_add_u32 v1, v7, 4, v1")
a(f"s_lshl_b32 s8, s9, 3\ns_lshl_b32 s11, {WV}, 1\ns_add_u32 s8, s8, s11\ns_mul_i32 s8, s8, 54\ns_mul_i32 s11, s10, 3\ns_add_u32 s8, s8, s11\ns_lshl_b32 s8, s8, 10\ns_add_u32 s8, s8, {HF}")
a(f"s_lshl_b32 s12, s9, 1\ns_lshr_b32 s11, {WV}, 1\ns_add_u32 s12, s12, s11")
if RS: a(f"s_and_b32 s11, s12, 3\ns_lshl_b32 s11, s11, 6\ns_lshr_b32 s12, s12, 2\ns_add_u32 s12, s12, s11\ns_lshl_b32 s12, s12, 7\ns_add_u32 s12, s12, {MBOX}")
else: a(f"s_and_b32 s11, s12, 7\ns_lshl_b32 s11, s11, 5\ns_lshr_b32 s12, s12, 3\ns_lshl_b32 s12, s12, 1\ns_add_u32 s12, s12, s11\ns_lshl_b32 s12, s12, 7\ns_add_u32 s12, s12, {MBOX}")
a(f"s_and_b32 s11, {WV}, 1\ns_mul_i32 s11, s11, 11\ns_add_u32 s11, s11, s10\ns_lshl_b32 s11, 1, s11")
if RS: a("v_lshlrev_b32 v15, 10, v0\nv_mov_b32 v14, s11")
else: a("v_and_b32 v15, 3, v0\nv_lshlrev_b32 v15, 10, v15\nv_bfe_u32 v7, v0, 2, 1\nv_lshl_add_u32 v15, v7, 7, v15\nv_mov_b32 v14, s11")
a(wc_prep.replace("s25", "s69"))
a("s_mov_b32 s15, 0\ns_mov_b32 s3, 0")
def reads(ks, b):
    r = [f"ds_read_b128 {vr(b,4)}, v{8+ks}"]
    for ft in range(6):
        for s in range(2):
            r.append(f"ds_read_b64_tr_b16 {vr(b+4+4*ft+2*s,2)}, v{197 if ft & 1 else 12} offset:{ks*6144 + s*1536 + ft*64}")
    return r
def step(cur, nks, nb, last, first_wait=True):
    R = reads(nks, nb)
    waits = [10, 11, 12, 13, 13, 13]; parts = [R[0:3], R[3:6], R[6:9], R[9:11], R[11:13], [last]]
    for ft in range(6):
        if first_wait: a(f"s_waitcnt lgkmcnt({waits[ft]})")
        a(f"v_mfma_f32_32x32x16_bf16 {vr(ACC+16*ft,16)}, {vr(cur+4+4*ft,4)}, {vr(cur,4)}, {vr(ACC+16*ft,16)}")
        for r in parts[ft]: a(r)
a("s_barrier")
stamp(1)
for r in reads(0, BUF[0]): a(r)
a("L_c_loop:")
step(BUF[0], 1, BUF[1], f"s_add_u32 s15, s15, {STG}\ns_cmp_eq_u32 s15, {NST*STG}\ns_cselect_b32 s15, 0, s15\nv_add_u32 v8, s15, v2")
step(BUF[1], 2, BUF[0], "v_add_u32 v9, s15, v3\nv_add_u32 v10, s15, v4")
step(BUF[0], 3, BUF[1], "v_add_u32 v12, s15, v6\nv_add_u32 v197, s15, v196\ns_waitcnt lgkmcnt(0)\ns_barrier")
step(BUF[1], 0, BUF[0], "v_add_u32 v11, s15, v5\ns_add_u32 s3, s3, 1\ns_cmp_lt_u32 s3, 10\ns_cbranch_scc1 L_c_loop", first_wait=False)
stamp(2)
a("s_setprio 3\nds_read_b32 v170, v168")
for ft in range(6):
    for p in range(2): a(f"ds_read_b64 {vr(SF+4*ft+2*p,2)}, v169 offset:{1536*p+256*ft}")
a("s_waitcnt lgkmcnt(12)")
a("v_xor_b32 v17, 0x8000, v170\nv_and_b32 v19, 0xffff, v17\nv_lshl_or_b32 v16, v19, 16, v19\nv_mov_b32 v18, v16")
a("v_cmp_gt_u32 vcc, 32, v0\nv_cndmask_b32 v17, v19, v17, vcc")
a("v_and_b32 v10, 0xffff0000, v170\nv_rcp_f32 v7, v10\nv_mov_b32 v11, v10\ns_waitcnt lgkmcnt(0)")
for ft in range(6):
    a(f"v_mfma_f32_32x32x16_bf16 {vr(ACC+16*ft,16)}, {vr(SF+4*ft,4)}, v[16:19], {vr(ACC+16*ft,16)}")
    if ft == 0:
        k1c = -2.0 * math.log2(math.e) * math.sqrt(2.0/math.pi); k2c = k1c * 0.044715
        a(f"v_mul_f32 v8, {f32(k1c)}, v7\nv_mul_f32 v12, v7, v7\nv_mul_f32 v12, v12, v7\nv_mul_f32 v12, {f32(k2c)}, v12\nv_mov_b32 v9, v8\nv_mov_b32 v13, v12")
def stA(h):
    A0 = ACC + 8*h; T = 16 + 8*(h % 3)
    return ([f"v_pk_mul_f32 {vr(T+2*p,2)}, {vr(A0+2*p,2)}, {vr(A0+2*p,2)}" for p in range(4)] +
            [f"v_pk_fma_f32 {vr(T+2*p,2)}, {vr(T+2*p,2)}, v[12:13], v[8:9]" for p in range(4)] +
            [f"v_pk_mul_f32 {vr(T+2*p,2)}, {vr(T+2*p,2)}, {vr(A0+2*p,2)}" for p in range(4)])
def stE(h):
    T = 16 + 8*(h % 3); return [f"v_exp_f32 v{T+e}, v{T+e}" for e in range(8)]
def stB(h):
    T = 16 + 8*(h % 3); return [f"v_pk_fma_f32 {vr(T+2*p,2)}, {vr(T+2*p,2)}, v[10:11], v[10:11]" for p in range(4)]
def stR(h):
    T = 16 + 8*(h % 3); return [f"v_rcp_f32 v{T+e}, v{T+e}" for e in range(8)]
def stC(h):
    A0 = ACC + 8*h; T = 16 + 8*(h % 3); pk = 48 + 4*(h % 4)
    return ([f"v_pk_mul_f32 {vr(T+2*p,2)}, {vr(T+2*p,2)}, {vr(A0+2*p,2)}" for p in range(4)] +
            [f"v_cvt_pk_bf16_f32 v{pk+p}, v{T+2*p}, v{T+2*p+1}" for p in range(4)] +
            [f"buffer_store_dwordx4 {vr(pk,4)}, v1, {WS}, s8 offen offset:{(h//2 % 3)*1024 + (h%2)*512} sc1"])
def mix(tr, nt):
    i = 0
    for k, x in enumerate(tr):
        a(x)
        n = (len(nt) * (k+1)) // len(tr)
        while i < n: a(nt[i]); i += 1
for x in stA(0): a(x)
for h in range(12):
    mix(stE(h), (stC(h-1) if h else []))
    if h == 6: a("s_add_u32 s8, s8, 27648")
    if h == opt("eflag", 10): a(f"s_waitcnt vmcnt({h-6})\ns_mov_b64 exec, 0xff\nbuffer_atomic_or v14, v15, {WS}, s12 offen sc1\ns_mov_b64 exec, -1\n" + sld(68, 69))
    for x in stB(h): a(x)
    mix(stR(h), (stA(h+1) if h < 11 else []))
for x in stC(11): a(x)
stamp(4)
def acc_init(z=True):
    for dt in range(5): a(f"ds_read_b64 {vr(224+2*dt,2)}, v2 offset:{15360+32*dt}\nds_read_b64 {vr(234+2*dt,2)}, v3 offset:{18432+32*dt}")
    a("s_waitcnt lgkmcnt(0)")
    for dt in range(5):
        for h in range(2):
            a(f"v_lshlrev_b32 v{AC2+4*dt+2*h}, 16, v{224+2*dt+h}\nv_and_b32 v{AC2+4*dt+2*h+1}, 0xffff0000, v{224+2*dt+h}")
            a(f"v_lshlrev_b32 v10, 16, v{234+2*dt+h}\nv_and_b32 v11, 0xffff0000, v{234+2*dt+h}\nv_pk_add_f32 {vr(AC2+4*dt+2*h,2)}, {vr(AC2+4*dt+2*h,2)}, v[10:11]")
    if z: zero(AC2+20, 60)
a(f"v_mov_b32 v2, {CNT+8}\nv_mov_b32 v3, 1\nds_write_b32 v2, v3")
xb_loads()
a("s_waitcnt lgkmcnt(0)\ns_cmp_lg_u32 s68, 0\ns_cbranch_scc1 L_c_wpre\ns_waitcnt vmcnt(0)\ns_branch L_c_push")
a("L_c_wpre:")
for l in w_pre: a(l)
a("L_c_push:")
zero(AC2+20, 60)
a(f"s_waitcnt vmcnt(20)\ns_mov_b64 exec, 0xff\nbuffer_atomic_or v14, v15, {WS}, s12 offen offset:64 sc1\ns_mov_b64 exec, -1")
a("s_setprio 0\ns_mov_b32 s35, 0")
stamp(5)
acc_init(False)
a("s_cmp_lg_u32 s68, 0\ns_cbranch_scc1 L_g2go")
a("s_branch L_g2w")

a("L_g2:")
g2_setup()
xb_loads()
a("s_waitcnt vmcnt(0)")
acc_init()
a("L_g2w:")
if opt("p1only", 0): endp()
a(wc_prep.replace("s25", "s8"))
if not opt("g2only", 0): spoll(sld(9, 8), "s_cmp_lg_u32 s9, 0", sleep=16)
PK = (8, 10, 12)
a(f"s_cmp_eq_u32 s35, 0\ns_cbranch_scc1 L_g_nopark\ns_mul_i32 s10, {WV}, {AREG}")
for p in range(3):
    for i in range(5): a(f"s_add_u32 m0, s10, {5120*p+1024*i}\ns_add_u32 s13, s{22+i}, {off(PK[p])}\nbuffer_load_dwordx4 v252, {WS}, s13 offen{G2F} lds")
    if opt("thr", 0): a(f"s_waitcnt vmcnt({opt('thr', 0)})")
a("L_g_nopark:")
for n_, l in enumerate(w_pre):
    a(l)
    if opt("thr", 0) and n_ % 5 == 4 and n_ < 19: a(f"s_waitcnt vmcnt({opt('thr', 0)})")
if opt("touch2", 0):
    nt2 = 6 if RS else 3
    a("s_cmp_eq_u32 s35, 0\ns_cbranch_scc1 L_g2go")
    a(f"s_lshl_b32 s8, s{S_XC}, 2\ns_add_u32 s8, s8, s{S_J}\ns_sub_u32 s8, s8, 20\ns_lshl_b32 s8, s8, 2\ns_add_u32 s8, s8, {WV}\ns_cmp_ge_u32 s8, 48\ns_cbranch_scc1 L_g2go")
    if RS: a(f"s_and_b32 s9, s2, 7\ns_mul_i32 s9, s9, 6\ns_add_u32 s8, s8, s9\ns_cmp_ge_u32 s8, 48\ns_cselect_b32 s9, 48, 0\ns_sub_u32 s8, s8, s9\ns_mul_i32 s8, s8, 46080\ns_add_u32 s8, s8, {W2F}")
    else: a(f"s_mul_i32 s9, s{S_XR}, 12\ns_add_u32 s8, s8, s9\ns_cmp_ge_u32 s8, 48\ns_cselect_b32 s9, 48, 0\ns_sub_u32 s8, s8, s9\ns_mul_i32 s8, s8, 23040\ns_mul_i32 s9, s{S_XC}, 1105920\ns_add_u32 s8, s8, s9\ns_add_u32 s8, s8, {W2F}")
    a("v_lshlrev_b32 v4, 7, v0\ns_mov_b32 exec_hi, 0xfffffff")
    for i in range(nt2): a(f"buffer_load_dword v244, v4, {WS}, s8 offen sc1\ns_add_u32 s8, s8, 7680")
    a("s_mov_b32 exec_hi, -1")
a("L_g2go:")
if opt("p1only", 0): endp()
hm_issue = sld(14, S_MB)
a("v_mov_b32 v11, 0")
a(hm_issue)
a(f"s_mul_i32 s10, {WV}, {AREG}\nv_add_u32 v1, s10, v252")
for i in range(1, 4):
    a(f"s_sub_u32 s13, {WV}, {i}\ns_and_b32 s13, s13, 3\ns_mul_i32 s13, s13, {AREG}\ns_add_u32 s13, s13, {5120*(i-1)}\nv_add_u32 v{1+i}, s13, v252")
a("v_lshrrev_b32 v10, 2, v0\nv_lshlrev_b32 v10, 7, v10\nv_bfe_u32 v15, v0, 1, 1\nv_lshl_add_u32 v10, v15, 6, v10\nv_and_b32 v15, 1, v0\nv_lshl_add_u32 v10, v15, 3, v10")
a(f"s_lshl_b32 s13, {WV}, 4\ns_add_u32 s13, s13, {YAT}\nv_add_u32 v5, s13, v10")
a(f"s_mul_i32 s13, {WV}, 2560\ns_add_u32 s13, s13, {BREG0}\nv_add_u32 v6, s13, v254\nv_add_u32 v7, s13, v252")
a(f"v_mov_b32 v14, {CNT}")
srd(S_A, P['out'], 2621440)
if not opt("g2only", 0): spoll(hm_issue, "s_and_b32 s13, s14, s28\ns_cmp_eq_u32 s13, s28", sleep=opt('msleep', 4), issued=True, far=('s_and_b32 s13, s14, 0x3fffff', opt('mfar', 28)))
else: a("s_waitcnt vmcnt(0)")
stamp(6)
for l in ldh(0, 0) + ldh(1, 1024) + ldh(2, 2048): a(l)
a(f"s_add_u32 s15, s{S_MB}, 64")
nld = lambda t: 0 if t > 13 else (4 if (t < 4 or t in PK) else 9)
cur = 0
for t in range(14):
    k = t % 4; nt_ = t + 3; nk = nt_ % 4
    L = []
    if t == 2: a(sld(14, 15))
    if t == 4 and not opt("g2only", 0):
        spoll(sld(14, 15), "s_and_b32 s13, s14, s28\ns_cmp_eq_u32 s13, s28", sleep=2, issued=True)
        stamp(3)
    if nt_ == PK[0]:
        a("s_cmp_lg_u32 s35, 0\ns_cbranch_scc1 L_g_pok\ns_mov_b32 s3, 0")
        a("L_g_pw:")
        a("s_add_u32 s3, s3, 1\ns_cmp_gt_u32 s3, 2000000\ns_cbranch_scc1 L_exit")
        a("ds_read_b32 v10, v14\ns_waitcnt lgkmcnt(0)\nv_readfirstlane_b32 s13, v10\ns_cmp_eq_u32 s13, 0\ns_cbranch_scc1 L_g_pw")
        a("L_g_pok:")
    if nt_ <= 13:
        if off(nt_) - cur > 3072:
            a("\n".join(f"s_add_u32 s{18+i}, s{18+i}, {off(nt_)-cur}" for i in range(9))); cur = off(nt_)
        o = off(nt_) - cur; vv = 253 if nt_ in (6, 13) else 252
        L = ldh(nk, o, vv)
        if nt_ in PK: L += [f"ds_read_b128 {vr(G2W[nk]+4*i,4)}, v1 offset:{5120*PK.index(nt_)+1024*i}" for i in range(5)]
        elif nt_ > 3: L += ldw(nk, o, vv)
    a(f"s_waitcnt vmcnt({nld(t+1)+nld(t+2)})" + (" lgkmcnt(0)" if t in PK else ""))
    if t == 0: stamp(7)
    n = 0
    for i in ((1, 2, 3, 0) if t == 13 else range(4)):
        for dt in range(5):
            acc = AC2 + 4*(5*i+dt)
            a(f"v_mfma_f32_16x16x32_bf16 {vr(acc,4)}, {vr(G2W[k]+4*dt,4)}, {vr(G2H[k]+4*i,4)}, {vr(acc,4)}")
            if n < len(L): a(L[n])
            if t == 13:
                pi = {2: 1, 3: 2, 0: 3}.get(i)
                if pi: a(f"ds_write_b128 v1, {vr(AC2+4*(5*pi+dt),4)} offset:{5120*(pi-1)+1024*dt}")
            n += 1
stamp(8)
a("s_waitcnt lgkmcnt(0)\ns_barrier")
stamp(9)
R_ = 144
for q in range(10): a(f"ds_read_b128 {vr(R_+4*q,4)}, v{2+q//5} offset:{1024*(q%5)}")
for dt in range(5): a(f"ds_read_b64_tr_b16 {vr(16+2*dt,2)}, v5 offset:{2048*dt}")
for q in range(10):
    a(f"s_waitcnt lgkmcnt({14 if q < 5 else 19-q})")
    dt = q % 5
    for h in range(2): a(f"v_pk_add_f32 {vr(AC2+4*dt+2*h,2)}, {vr(AC2+4*dt+2*h,2)}, {vr(R_+4*q+2*h,2)}")
    if q < 5: a(f"ds_read_b128 {vr(R_+40+4*q,4)}, v4 offset:{1024*q}")
for dt in range(5):
    a(f"s_waitcnt lgkmcnt({9-dt})")
    for h in range(2):
        a(f"v_lshlrev_b32 v10, 16, v{16+2*dt+h}\nv_and_b32 v11, 0xffff0000, v{16+2*dt+h}\nv_pk_add_f32 {vr(AC2+4*dt+2*h,2)}, {vr(AC2+4*dt+2*h,2)}, v[10:11]")
a("s_waitcnt lgkmcnt(0)")
for dt in range(5):
    for h in range(2): a(f"v_pk_add_f32 {vr(AC2+4*dt+2*h,2)}, {vr(AC2+4*dt+2*h,2)}, {vr(R_+40+4*dt+2*h,2)}")
    for h in range(2): a(f"v_cvt_pk_bf16_f32 v{32+2*dt+h}, v{AC2+4*dt+2*h}, v{AC2+4*dt+2*h+1}")
    a(f"ds_write_b64 v6, {vr(32+2*dt,2)} offset:{32*dt}")
for q in range(3): a(f"ds_read_b128 {vr(48+4*q,4)}, v7 offset:{1024*q}")
for q in range(3):
    a(f"s_waitcnt lgkmcnt({2-q})\nbuffer_store_dwordx4 {vr(48+4*q,4)}, v{OUTV[q]}, {SA}, s27 offen")
stamp(10)
endp()

a("L_park:")
if opt("p1only", 0): endp()
a(tile_rc(12, 9, 10))
for i in range(1, 5): a(f"v_add_u32 v{1+i}, {55296*i}, v1")
a(f"s_mul_i32 s12, s9, {5*55296}\ns_add_u32 s12, s12, {W2F}\ns_mov_b32 s10, 0\ns_mov_b32 s3, 0")
spoll(wc_issue, wc_test, sleep=10)
a(f"v_mov_b32 v10, {CNT+8}\ns_mov_b32 s11, 0")
a("L_pk_w:")
a("s_add_u32 s11, s11, 1\ns_cmp_gt_u32 s11, 200000\ns_cbranch_scc1 L_exit\ns_sleep 2")
a("ds_read_b32 v11, v10\ns_waitcnt lgkmcnt(0)\nv_readfirstlane_b32 s13, v11\ns_cmp_eq_u32 s13, 0\ns_cbranch_scc1 L_pk_w")
stamp(11)
a("L_pk_loop:")
for p in range(3):
    a(f"s_add_u32 s13, s12, {off(PK[p])}")
    for i in range(5): a(f"s_add_u32 m0, s10, {5120*p+1024*i}\nbuffer_load_dwordx4 v{1+i}, {WS}, s13 offen{G2F} lds")
a(f"s_add_u32 s12, s12, 7168\ns_add_u32 s10, s10, {AREG}\ns_add_u32 s3, s3, 1\ns_cmp_lt_u32 s3, 4\ns_cbranch_scc1 L_pk_loop")
a(f"v_mov_b32 v2, {CNT}\nv_mov_b32 v3, 1\ns_waitcnt vmcnt(0)\nds_write_b32 v2, v3\ns_waitcnt lgkmcnt(0)")
stamp(12)
endp()

a("L_fetch:")
if opt("p1only", 0): endp()
a(tile_rc(8, 9, 10))
a("s_mul_i32 s11, s8, 81920")
a(f"v_mov_b32 v1, 0\ns_lshl_b32 s13, s9, 2\ns_add_u32 s13, s13, s{S_XR}\ns_lshl_b32 s13, s13, 7\ns_add_u32 s13, s13, {YAC}")
spoll(sld(12, 13), "s_cmp_ge_u32 s12, 80", sleep=opt('ysleep', 8), far=('s_cmp_ge_u32 s12, 24', opt('yfar', 32)))
stamp(11)
a(f"s_mul_i32 s10, s9, 10240\ns_add_u32 s11, s11, s10\ns_add_u32 s11, s11, {YA}\nv_lshlrev_b32 v1, 4, v0")
for q in range(10):
    a(f"buffer_load_dwordx4 {vr(16+4*q,4)}, v1, {WS}, s11 offen sc1\ns_add_u32 s11, s11, 1024")
a(f"v_add_u32 v1, {YAT}, v1")
for q in range(10):
    a(f"s_waitcnt vmcnt({9-q})\nds_write_b128 v1, {vr(16+4*q,4)} offset:{1024*q}")
a("s_waitcnt lgkmcnt(0)")
stamp(12)
a("s_barrier")
endp()

c_issue = sld(33, 100)
c_test = "s_cmp_ge_u32 s33, 64"
clr_s = f"s_load_dwordx4 s[28:31], s[{P['dbg']}:{P['dbg']+1}], 0"
a("L_aux:")
a(f"s_sub_u32 s8, s{S_J}, s8\ns_and_b32 s15, {WV}, 3\ns_mov_b32 s35, 0\nv_mov_b32 v230, 0\ns_mov_b32 s71, 0\ns_mul_i32 s69, {WV}, {AREG}")
a(f"s_lshl_b32 s9, s{S_XR}, 4\ns_lshl_b32 s10, s{S_XC}, 3\ns_add_u32 s9, s9, s10\ns_add_u32 s9, s9, s8")
RAW, DV = 164, 64
a("v_and_b32 v238, 3, v0\nv_lshlrev_b32 v238, 2, v238")
a(f"s_cmp_ge_u32 s8, 8\ns_cbranch_scc1 L_nolnwg\ns_cmp_lt_u32 {WV}, 4\ns_cbranch_scc1 L_lnw")
a(f"s_lshl_b32 s{S_CH}, s9, 2\ns_add_u32 s{S_CH}, s{S_CH}, s15\ns_branch L_par")
a("L_nolnwg:")
a(f"s_mul_i32 s10, s{S_XR}, 12\ns_lshl_b32 s11, s{S_XC}, 2\ns_add_u32 s10, s10, s11\ns_add_u32 s10, s10, s8\ns_lshl_b32 s10, s10, 3\ns_add_u32 s10, s10, {WV}\ns_add_u32 s{S_CH}, s10, 192")
a(f"s_lshl_b32 s10, s{S_XC}, 4\ns_add_u32 s10, s10, s8\ns_cmp_lg_u32 s10, 8\ns_cbranch_scc1 L_par")
a(f"s_lshl_b32 s10, s{S_XR}, 15\ns_lshl_b32 s11, {WV}, 12\ns_add_u32 s10, s10, s11\ns_add_u32 s10, s10, {CLR}\nv_lshlrev_b32 v1, 4, v0\ns_mov_b32 s35, 5")
zero(4, 4)
for i in range(4): a(f"buffer_store_dwordx4 v[4:7], v1, {WS}, s10 offen offset:{1024*i} sc1")
a("L_par:")
a(f"s_lshl_b32 s10, s{S_CH}, 8\nv_lshl_add_u32 v1, v0, 2, s10")
for i, nm in enumerate(["are", "aim", "bre", "bim", "cre", "cim"]):
    a(f"global_load_dword v{240+i}, v1, s[{P[nm]}:{P[nm]+1}]{NT1}")
a(f"s_lshl_b32 s10, s{S_CH}, 1\nv_mov_b32 v1, s10\nglobal_load_ushort v246, v1, s[{P['ldt']}:{P['ldt']+1}]")
a(f"global_load_ushort v147, v1, s[{P['dsk']}:{P['dsk']+1}]")
a("s_cmp_lt_u32 s8, 8\ns_cbranch_scc1 L_wrole\ns_cmp_lg_u32 s35, 5\ns_cbranch_scc1 L_cs")
a(f"s_waitcnt vmcnt(8)\ns_barrier\ns_cmp_lg_u32 {WV}, 0\ns_cbranch_scc1 L_cs")
a(f"s_lshl_b32 s10, s{S_XR}, 2\nv_mov_b32 v2, 1\nv_mov_b32 v4, 0\ns_mov_b64 exec, 1\nbuffer_store_dword v2, v4, {DBG}, s10 offen sc1\ns_mov_b64 exec, -1\ns_waitcnt vmcnt(1)")
stamp(1)
a("L_cs:")
a(f"s_mov_b32 s35, 0\ns_sub_u32 s9, s8, 8\ns_lshl_b32 s10, s{S_XR}, 2\ns_lshl_b32 s10, s10, s{S_XC}\ns_add_u32 s9, s9, s10")
a(f"s_cmp_eq_u32 s{S_XC}, 0\ns_cselect_b32 s10, 8, 3\ns_movk_i32 s11, 120\ns_mul_i32 s9, s9, s10\ns_add_u32 s9, s9, {WV}\ns_cmp_ge_u32 {WV}, s10\ns_cbranch_scc1 L_kgen\ns_cmp_ge_u32 s9, s11\ns_cbranch_scc1 L_kgen")
a(f"s_and_b32 s15, s9, 3\ns_lshr_b32 s9, s9, 2\ns_mul_i32 s10, s{S_XC}, 30\ns_add_u32 s9, s9, s10")
a("s_mul_i32 s12, s15, 552960\ns_lshl_b32 s11, s9, 6\ns_add_u32 s71, s12, s11")
a(f"v_and_b32 v4, 31, v0\nv_lshlrev_b32 v4, 1, v4\nv_add_u32 v4, s11, v4\nglobal_load_ushort v145, v4, s[{P['b1']}:{P['b1']+1}]")
a("v_lshrrev_b32 v2, 2, v0\nv_and_b32 v3, 3, v0\nv_mul_u32_u24 v1, 3456, v2\nv_lshl_add_u32 v230, v3, 4, v1\ns_mov_b32 s35, 2\ns_branch L_kgen")
a("L_wrole:")
W2R = lambda i: (RAW + 4*i) if i < 10 else (148 + 4*(i-10))
a("s_barrier")
srd(S_B, P['w2'], 2211840)
a("v_lshrrev_b32 v8, 3, v0\nv_mul_u32_u24 v8, 1280, v8\nv_and_b32 v9, 7, v0\nv_lshl_add_u32 v8, v9, 4, v8\ns_lshl_b32 s8, s9, 2\ns_add_u32 s8, s8, s15")
for u_ in range(3):
    a(f"s_add_u32 s10, s8, {256*u_}\ns_mul_i32 s11, s10, 6554\ns_lshr_b32 s11, s11, 16\ns_mul_i32 s70, s11, 10\ns_sub_u32 s70, s10, s70")
    a(f"s_mul_i32 s13, s11, 40960\ns_lshl_b32 s71, s70, 7\ns_add_u32 s13, s13, s71\ns_mul_i32 s71, s70, 216\ns_mul_i32 s70, s11, 43\ns_lshr_b32 s70, s70, 8\ns_mul_i32 s70, s70, 3\ns_sub_u32 s11, s11, s70\ns_sub_u32 s70, s11, s70\ns_cmp_ge_u32 s70, 3\ns_cselect_b32 s70, 24, 0\ns_add_u32 s11, s11, s70\ns_add_u32 s71, s71, s11\ns_lshl_b32 s71, s71, 10\ns_add_u32 s{96+u_}, s71, {W2F}")
    if u_ == 2: a(f"s_cmp_lt_u32 s10, 540\ns_cselect_b32 s13, s13, {OOB}\ns_cselect_b32 s98, s98, {OOB}")
    for q in range(4): a(f"buffer_load_dwordx4 {vr(W2R(4*u_+q),4)}, v8, {SB}, s13 offen{NT1}\ns_add_u32 s13, s13, 10240")
a("s_mov_b32 s35, 1")
a("L_kgen:")
a("s_mov_b32 s68, 0\ns_mov_b32 m0, s69")
a(lnc_addr)
a(f"s_mov_b32 s101, 0\nv_mov_b32 v146, 0\nv_mov_b32 v253, 0\ns_cmp_lt_u32 {WV}, 4\ns_cbranch_scc1 L_kg_nocs")
conv_setup()
a("L_kg_nocs:")
a("v_and_b32 v2, 31, v0\nv_mul_u32_u24 v2, 272, v2\nv_lshrrev_b32 v3, 5, v0\nv_lshl_add_u32 v2, v3, 4, v2\nv_add_u32 v228, s69, v2")
KA = 208
zero(KA, 16)
a("s_mov_b32 s3, 0\ns_cmp_eq_u32 s35, 1\ns_cbranch_scc1 L_kw12\ns_waitcnt vmcnt(1)")
a("L_kw12:")
a("s_waitcnt vmcnt(12)")
stamp(3)
a(f"v_lshlrev_b32 v3, 16, v246\nv_mul_f32 v3, {f32(math.log2(math.e))}, v3\nv_exp_f32 v3, v3\nv_cvt_pk_bf16_f32 v3, v3, v3\nv_lshlrev_b32 v229, 16, v3")
a("s_cmp_eq_u32 s35, 1\ns_cbranch_scc1 L_w2mid")
a("L_kg_loop:")
for i in range(6): a(f"v_and_b32 v{4+i}, 0xffff0000, v{240+i}\nv_lshlrev_b32 v{240+i}, 16, v{240+i}")
for i in range(4): a(f"v_mul_f32 v{4+i}, v229, v{4+i}")
a(f"v_mul_f32 v4, {f32(math.log2(math.e))}, v4\nv_mul_f32 v5, {f32(1/(2*math.pi))}, v5")
Z1, Z8, Z256, W = 10, 12, 14, 16
for k, z in ((1, Z1), (8, Z8), (256, Z256)):
    a(f"v_mul_f32 v20, {f32(k)}, v4\nv_mul_f32 v21, {f32(k)}, v5\nv_fract_f32 v21, v21\nv_exp_f32 v20, v20\nv_cos_f32 v{z}, v21\nv_sin_f32 v{z+1}, v21")
    neg = " neg_hi:[0,1]" if k == 8 else ""
    a(f"v_pk_mul_f32 {vr(z,2)}, {vr(z,2)}, v[20:21] op_sel:[0,0] op_sel_hi:[1,0]{neg}")
cmul(W, 8, 6, 20)
rowof = {}
h0 = [[0,1,2,3],[4,5,6,7],[1024,1032,1280,1288],[1536,1544,1792,1800]]
h1 = [[256,258,260,262],[264],[512,516,520],[768,772,776]]
for q in range(4):
    for i, v in enumerate(h0[q]): rowof[v] = 8*q + i
    for i, v in enumerate(h1[q]): rowof[v] = 8*q + 4 + i
cv = [0]
def put(src, row):
    t = 24 + (cv[0] % 4); cv[0] += 1
    a(f"v_cvt_pk_bf16_f32 v{t}, v{src}, v{src+1}\nds_write_addtid_b32 v{t} offset:{row*272}")
G = {0: W}
opsG = [lambda: put(W, rowof[0])]
for b in range(1, 9):
    G[b] = 32 + 2*b
    opsG.append(lambda b=b: (cmul(G[b], G[b-1], Z1, 20), put(G[b], rowof[b]) if b < 8 else None))
Pq = {1: Z256}
for q in range(1, 8):
    if q > 1:
        Pq[q] = 52 + 2*(q & 1)
        opsG.append(lambda q=q: cmul(Pq[q], Pq[q-1], Z256, 20))
    ds = {1: (0,2,4,6,8), 2: (0,4,8), 3: (0,4,8)}.get(q, (0, 8))
    for n, d in enumerate(ds):
        opsG.append(lambda q=q, d=d, n=n: (cmul(56+2*(n&1), G[d], Pq[q], 20), put(56+2*(n&1), rowof[256*q+d])))
opsE = [lambda: a(f"v_mov_b32 v28, 0x3f80\nds_write_addtid_b32 v28 offset:{32*272}"), lambda: put(Z8, 33)]
for j in range(2, 32):
    src = Z8 if j == 2 else 60 + 2*((j-1) & 1)
    dst = 60 + 2*(j & 1)
    opsE.append(lambda src=src, dst=dst, j=j: (cmul(dst, src, Z8, 22), put(dst, 32+j)))
for i in range(max(len(opsG), len(opsE))):
    if i < len(opsE): opsE[i]()
    if i < len(opsG): opsG[i]()
    if i < 10:
        a(f"s_cmp_lg_u32 s35, 2\ns_cbranch_scc1 L_kg_nl{i}\nbuffer_load_dwordx4 {vr(RAW+4*i,4)}, v230, {SB}, s71 offen{NT}\ns_add_u32 s71, s71, 55296")
        a(f"L_kg_nl{i}:")
    if i == 12 and opt("eu", 1):
        a(f"s_lshl_b32 s10, s3, 2\ns_and_b32 s10, s10, {WV}\ns_cbranch_scc1 L_eu0")
        a("L_kg_ne1:")
    if i == 31 and opt("eu", 1):
        a("s_cmp_eq_u32 s68, 1\ns_cbranch_scc1 L_eu")
        a("L_kg_ne2:")
    if i == opt("wsig", 14):
        a("s_cmp_eq_u32 s35, 6\ns_cbranch_scc1 L_w2sig")
        a("L_kg_nsig:")
a("s_waitcnt lgkmcnt(0)")
for k in range(8):
    a(f"ds_read_b128 {vr(64+8*k,4)}, v228 offset:{32*k}\nds_read_b128 {vr(68+8*k,4)}, v228 offset:{32*272+32*k}")
for k in range(8):
    a(f"s_waitcnt lgkmcnt({14-2*k})")
    a(f"v_mfma_f32_32x32x16_bf16 {vr(KA,16)}, {vr(64+8*k,4)}, {vr(68+8*k,4)}, {vr(KA,16)}")
a("s_cmp_lg_u32 s3, 0\ns_cbranch_scc1 L_kg_done")
a(clr_s)
a("s_mov_b32 s3, 1\ns_cmp_lg_u32 s35, 2\ns_cbranch_scc1 L_kg_loop\ns_branch L_csum")
a("L_eu0:")
a("s_waitcnt lgkmcnt(0)\ns_and_b32 s10, s28, s29\ns_and_b32 s11, s30, s31\ns_and_b32 s10, s10, s11\ns_cselect_b32 s35, 4, s35\ns_cmp_lt_u32 s35, 4\ns_cbranch_scc1 L_kg_ne1")
a(c_issue)
a("s_mov_b32 s68, 1\ns_branch L_kg_ne1")
a("L_eu:")
a("s_mov_b32 s68, 0\ns_waitcnt lgkmcnt(0)")
a(c_test)
a("s_cbranch_scc0 L_kg_ne2")
uloads()
a("s_mov_b32 s68, 2\ns_branch L_kg_ne2")
def need_clr(tag):
    a(f"s_waitcnt lgkmcnt(0)\ns_and_b32 s28, s28, s29\ns_and_b32 s30, s30, s31\ns_and_b32 s28, s28, s30\ns_cbranch_scc1 L_clr_{tag}")
    poll(clr_issue(239, 238), clr_test(239), sleep=8, issued=False)
    a(f"L_clr_{tag}:")
def touch():
    if not opt("touch", 0): return
    n = 270 if RS else 135
    a(f"s_and_b32 s10, s8, 7\ns_lshl_b32 s10, s10, 3\ns_add_u32 s10, s10, {WV}")
    if RS: a(f"s_and_b32 s11, s2, 7\ns_lshl_b32 s11, s11, 3\ns_add_u32 s10, s10, s11\ns_and_b32 s10, s10, 63\ns_mul_i32 s10, s10, {n*128}")
    else: a(f"s_lshl_b32 s11, s{S_XR}, 4\ns_add_u32 s10, s10, s11\ns_and_b32 s10, s10, 63\ns_mul_i32 s10, s10, {n*128}\ns_mul_i32 s11, s{S_XC}, 1105920\ns_add_u32 s10, s10, s11")
    a(f"s_add_u32 s10, s10, {W2F}\nv_lshlrev_b32 v4, 7, v0")
    for i in range(n // 64): a(f"buffer_load_dword v144, v4, {WS}, s10 offen sc1\ns_add_u32 s10, s10, 8192")
    a(few((1 << (n % 64)) - 1, f"buffer_load_dword v144, v4, {WS}, s10 offen sc1"))
def lds_wait(tag, target):
    a("s_mov_b32 s12, 0")
    a(f"L_sb{tag}:")
    a("s_add_u32 s12, s12, 1\ns_cmp_gt_u32 s12, 2000000\ns_cbranch_scc1 L_exit")
    a(f"ds_read_b32 v15, v14\ns_waitcnt lgkmcnt(0)\nv_readfirstlane_b32 s11, v15\ns_cmp_lt_u32 s11, {target}\ns_cbranch_scc1 L_sb{tag}")
a("L_lnw:")
a("s_lshl_b32 s10, s9, 5\ns_lshl_b32 s11, s15, 3\ns_add_u32 s14, s10, s11\ns_mul_i32 s11, s14, 1280")
a("v_lshrrev_b32 v2, 4, v0\nv_and_b32 v3, 15, v0\nv_mul_u32_u24 v1, 2560, v2\nv_lshl_add_u32 v1, v3, 4, v1")
for sg in range(2):
    for i in range(5):
        a(f"buffer_load_dwordx4 {vr(RAW+20*sg+4*i,4)}, v1, {SA}, s11 offen offset:{sg*1280+i*256}{NT}")
a(f"v_mov_b32 v4, {CNT}\nv_mov_b32 v6, 0\nv_mov_b32 v7, 0\nds_write_b64 v4, v[6:7]\ns_waitcnt lgkmcnt(0)\ns_barrier")
a("s_lshl_b32 s11, s15, 4\nv_lshlrev_b32 v8, 2, v2\nv_add_u32 v8, s11, v8")
for i in range(5):
    a(f"v_add_u32 v4, {16*i}, v3\nv_mul_u32_u24 v5, 3277, v4\nv_lshrrev_b32 v5, 16, v5\nv_mul_u32_u24 v5, {BREG-20*528}, v5\nv_mul_u32_u24 v4, 528, v4\nv_add3_u32 v{150+i}, v4, v5, v8")
a(f"s_setprio 2\nv_mov_b32 v14, {CNT}\nv_lshrrev_b32 v2, 4, v0\ns_mov_b32 s12, 0x3f803f80")
zero(4, 4)
a("s_waitcnt vmcnt(0)")
stamp(1)
a(clr_s)
for sg in range(2):
    for k in range(20):
        a(f"v_dot2_f32_bf16 v{4+2*sg+(k&1)}, v{RAW+20*sg+k}, s12, v{4+2*sg+(k&1)}")
a("v_add_f32 v4, v4, v5\nv_add_f32 v6, v6, v7")
def unp(sg, ks):
    for k in ks:
        d = DV + 40*sg + 2*k
        a(f"v_lshlrev_b32 v{d}, 16, v{RAW+20*sg+k}\nv_and_b32 v{d+1}, 0xffff0000, v{RAW+20*sg+k}")
for n, sh in enumerate((8, 4, 2, 1)):
    a(f"v_add_f32_dpp v4, v4, v4 row_ror:{sh} row_mask:0xf bank_mask:0xf\nv_add_f32_dpp v6, v6, v6 row_ror:{sh} row_mask:0xf bank_mask:0xf")
    unp(0, range(5*n, 5*n+5))
a(f"v_mul_f32 v4, {f32(1/640)}, v4\nv_mul_f32 v6, {f32(1/640)}, v6")
a("v_cvt_pk_bf16_f32 v5, v4, v6\nv_lshlrev_b32 v8, 16, v5\nv_and_b32 v9, 0xffff0000, v5")
a("v_sub_f32 v56, 0, v8\nv_sub_f32 v57, 0, v8\nv_sub_f32 v58, 0, v9\nv_sub_f32 v59, 0, v9")
zero(10, 4)
unp(1, range(20))
for sg in range(2):
    for k in range(20):
        d = DV + 40*sg + 2*k
        a(f"v_pk_add_f32 {vr(d,2)}, {vr(d,2)}, {vr(56+2*sg,2)}")
    for k in range(20):
        d = DV + 40*sg + 2*k
        a(f"v_pk_fma_f32 {vr(10+2*sg,2)}, {vr(d,2)}, {vr(d,2)}, {vr(10+2*sg,2)}")
a("v_add_f32 v10, v10, v11\nv_add_f32 v12, v12, v13")
def rnd(sg, ks):
    for k in ks:
        d = DV + 40*sg + 2*k
        a(f"v_cvt_pk_bf16_f32 v{RAW+20*sg+k}, v{d}, v{d+1}")
for n, sh in enumerate((8, 4, 2, 1)):
    a(f"v_add_f32_dpp v10, v10, v10 row_ror:{sh} row_mask:0xf bank_mask:0xf\nv_add_f32_dpp v12, v12, v12 row_ror:{sh} row_mask:0xf bank_mask:0xf")
    rnd(0, range(2*n, 2*n+2))
a("v_sub_f32 v4, v4, v8\nv_sub_f32 v6, v6, v9\nv_mul_f32 v4, v4, v4\nv_mul_f32 v6, v6, v6")
a(f"s_mov_b32 s12, {f32(1/640)}\nv_fma_f32 v4, v10, s12, -v4\nv_fma_f32 v6, v12, s12, -v6")
a("v_max_f32 v4, 0, v4\nv_max_f32 v6, 0, v6")
a("v_cvt_pk_bf16_f32 v7, v4, v6\nv_lshlrev_b32 v4, 16, v7\nv_and_b32 v6, 0xffff0000, v7")
a(f"v_add_f32 v4, {f32(1e-5)}, v4\nv_add_f32 v6, {f32(1e-5)}, v6")
a("v_cvt_pk_bf16_f32 v7, v4, v6\nv_lshlrev_b32 v4, 16, v7\nv_and_b32 v6, 0xffff0000, v7")
a("v_sqrt_f32 v4, v4\nv_sqrt_f32 v6, v6\nv_cvt_pk_bf16_f32 v7, v4, v6")
a("v_lshlrev_b32 v4, 16, v7\nv_and_b32 v6, 0xffff0000, v7\nv_rcp_f32 v60, v4\nv_rcp_f32 v61, v4\nv_rcp_f32 v62, v6\nv_rcp_f32 v63, v6")
a("v_and_b32 v12, 0xffff, v5\nv_or_b32 v12, v12, v4\nv_lshrrev_b32 v13, 16, v5\nv_or_b32 v13, v13, v6")
a(f"s_lshl_b32 s11, s14, 2\ns_add_u32 s11, s11, {STATS}\nv_lshlrev_b32 v1, 3, v2")
need_clr("ln")
a(f"s_mov_b32 exec_lo, 0x10001\ns_mov_b32 exec_hi, 0x10001\nbuffer_store_dwordx2 v[12:13], v1, {WS}, s11 offen sc1\ns_mov_b64 exec, -1")
stamp(2)
rnd(0, range(8, 20)); rnd(1, range(20))
unp(0, range(20)); unp(1, range(20))
for sg in range(2):
    for k in range(20):
        d = DV + 40*sg + 2*k
        a(f"v_pk_mul_f32 {vr(d,2)}, {vr(d,2)}, {vr(60+2*sg,2)}")
for k in range(20):
    for h in range(2):
        d = DV + 2*k + h
        a(f"v_cvt_pk_bf16_f32 v{d}, v{d}, v{d+40}")
    d = DV + 2*k
    a(f"ds_write2_b32 v{150+k//4}, v{d}, v{d+1} offset0:{(k%4)*32} offset1:{(k%4)*32+16}")
a("v_mov_b32 v15, 1\nds_add_u32 v14, v15")
a("v_lshrrev_b32 v3, 5, v0\nv_lshlrev_b32 v2, 4, v0\nv_lshl_add_u32 v1, v3, 4, v2\nv_add_u32 v1, s69, v1")
a("s_mul_i32 s10, s9, 40960\ns_mul_i32 s11, s15, 10240\ns_add_u32 s10, s10, s11")
lds_wait("b", 256)
for i in range(10): a(f"ds_read_b128 {vr(RAW+4*i,4)}, v1 offset:{1056*i}")
for i in range(10):
    a(f"s_waitcnt lgkmcnt({9-i})\nbuffer_store_dwordx4 {vr(RAW+4*i,4)}, v2, {WS}, s10 offen sc1\ns_add_u32 s10, s10, 1024")
a(f"s_lshl_b32 s10, s15, 11\ns_add_u32 s10, s10, {LNC}\nv_lshlrev_b32 v4, 7, v0\nv_mov_b32 v5, 1")
a(f"s_waitcnt vmcnt(0)\ns_mov_b64 exec, 0xffff\nbuffer_atomic_add v5, v4, {WS}, s10 offen sc1\ns_mov_b64 exec, -1\ns_setprio 0")
stamp(4)
a("s_lshl_b32 s8, s9, 2\ns_add_u32 s8, s8, s15")
a("s_cmp_lg_u32 s8, 255\ns_cbranch_scc1 L_norelay")
a(f"v_lshlrev_b32 v6, 6, v0\ns_mov_b32 s8, {W2C}")
poll(few(3, f"buffer_load_dword v7, v6, {DBG}, 0 offen offset:128 sc1"),
     "v_readlane_b32 s9, v7, 0\nv_readlane_b32 s10, v7, 1\ns_add_u32 s9, s9, s10\ns_cmp_ge_u32 s9, 64", sleep=4, issued=False)
stamp(11)
a(f"s_mov_b32 exec_hi, 0\nbuffer_store_dword v5, v4, {WS}, s8 offen offset:1024 sc1\ns_mov_b32 exec_hi, -1")
a("L_norelay:")
a("s_mov_b32 s35, 1\ns_branch L_g2")
a("L_csum:")
a("s_setprio 3\ns_mov_b32 s12, 0x00003f80\ns_mov_b32 s13, 0x3f800000\nv_and_b32 v3, 3, v0")
zero(4, 8)
a("s_waitcnt vmcnt(0)")
for i in range(10):
    for k in range(4):
        a(f"v_dot2_f32_bf16 v{4+2*k}, v{RAW+4*i+k}, s12, v{4+2*k}\nv_dot2_f32_bf16 v{5+2*k}, v{RAW+4*i+k}, s13, v{5+2*k}")
for sh in (8, 4):
    for r in range(8): a(f"v_add_f32_dpp v{4+r}, v{4+r}, v{4+r} row_ror:{sh} row_mask:0xf bank_mask:0xf")
a("v_lshrrev_b32 v12, 4, v0\nv_lshlrev_b32 v12, 7, v12\nv_lshl_add_u32 v12, v3, 5, v12\nv_add_u32 v12, s69, v12")
a("ds_write_b128 v12, v[4:7]\nds_write_b128 v12, v[8:11] offset:16")
a("v_and_b32 v12, 31, v0\nv_lshl_add_u32 v13, v12, 2, s69")
for p in range(4): a(f"ds_read_b32 v{16+p}, v13 offset:{128*p}")
a("s_waitcnt lgkmcnt(0)\nv_add_f32 v16, v16, v17\nv_add_f32 v18, v18, v19\nv_add_f32 v16, v16, v18")
a("v_cvt_pk_bf16_f32 v4, v16, v16\nv_lshlrev_b32 v5, 16, v4\nv_sub_f32 v5, v16, v5")
a("v_cvt_pk_bf16_f32 v6, v16, v5\nv_and_b32 v7, 0xffff0000, v6\nv_sub_f32 v7, v5, v7")
a("v_cvt_pk_bf16_f32 v7, v7, v7\nv_and_b32 v7, 0xffff, v7\nv_or_b32 v7, 1, v7")
a(f"s_lshl_b32 s12, s9, 8\ns_mul_i32 s13, s15, {CSP}\ns_add_u32 s12, s12, s13\ns_add_u32 s12, s12, {CSUM}\nv_lshlrev_b32 v12, 3, v12")
need_clr("cs")
a("v_lshl_or_b32 v7, v145, 16, v7")
a(f"s_mov_b32 exec_hi, 0\nbuffer_store_dwordx2 v[6:7], v12, {WS}, s12 offen sc1\ns_mov_b32 exec_hi, -1")
stamp(2)
a("s_setprio 0\ns_mov_b32 s35, 4\ns_branch L_kg_loop")
a("L_w2mid:")
a("s_setprio 3")
a("v_lshlrev_b32 v2, 4, v0\ns_waitcnt vmcnt(0)")
for i in range(12): a(f"ds_write_b128 v{cLIN}, {vr(W2R(i),4)} offset:{1024*i}")
a("v_lshrrev_b32 v6, 5, v0\nv_bfe_u32 v7, v0, 4, 1\nv_lshlrev_b32 v6, 4, v6\nv_lshl_add_u32 v6, v7, 2, v6\nv_bfe_u32 v7, v0, 2, 2\nv_add_u32 v6, v6, v7")
a("v_lshlrev_b32 v6, 7, v6\nv_and_b32 v7, 3, v0\nv_lshl_add_u32 v6, v7, 3, v6\nv_add_u32 v6, s69, v6")
for u_ in range(3):
    for dt in range(4):
        for h in range(2): a(f"ds_read_b64_tr_b16 {vr(W2R(4*u_+dt)+2*h,2)}, v6 offset:{4096*u_+1024*h+32*dt}")
    for dt in range(4):
        a(f"s_waitcnt lgkmcnt({6-2*dt})\nbuffer_store_dwordx4 {vr(W2R(4*u_+dt),4)}, v2, {WS}, s{96+u_} offen sc1\ns_add_u32 s{96+u_}, s{96+u_}, 55296")
a("s_setprio 2\ns_mov_b32 s35, 6\ns_branch L_kg_loop")
a("L_w2sig:")
a(f"v_mov_b32 v4, {CNT+4}\nv_mov_b32 v5, 1\nv_mov_b32 v6, 0\ns_waitcnt vmcnt(0)\ns_mov_b64 exec, 1\nds_add_rtn_u32 v7, v4, v5\ns_waitcnt lgkmcnt(0)\nv_readfirstlane_b32 s10, v7")
a(f"s_and_b32 s11, s9, 1\ns_lshl_b32 s11, s11, 6\ns_add_u32 s11, s11, 128\ns_cmp_eq_u32 s10, 3\ns_cselect_b32 s11, s11, {OOB}\nbuffer_atomic_add v5, v6, {DBG}, s11 offen sc1\ns_mov_b64 exec, -1")
stamp(2)
a(f"s_setprio {opt('wprio', 1)}\ns_mov_b32 s35, 0\ns_branch L_kg_nsig")
a("L_kg_done:")
a("s_waitcnt vmcnt(4)")
a("s_cmp_ge_u32 s35, 3\ns_cbranch_scc1 L_clr_fin")
a(clr_s)
need_clr("fin")
a(f"s_waitcnt lgkmcnt(0)\ns_cmp_lt_u32 {WV}, 4\ns_cbranch_scc1 L_kg_nc\ns_cmp_eq_u32 s68, 2\ns_cbranch_scc1 L_kg_nc\ns_waitcnt vmcnt(0)")
a(c_issue)
a("L_kg_nc:")
a("s_nop 7")
stamp(4)
a(f"s_setprio {opt('pprio', 2)}")
r = lambda i: KA + i
a("v_lshlrev_b32 v1, 4, v0\nv_add_u32 v13, s69, v1")
zero(4, 4)
for i in range(3): a(f"ds_write_b128 v13, v[4:7] offset:{SCR+1024*i}")
a("v_and_b32 v3, 31, v0\nv_lshlrev_b32 v2, 4, v3\nv_sub_u32 v2, s69, v2\nv_add_u32 v2, 512, v2")
def pack(o, pairs):
    for i, (lo, hi) in enumerate(pairs): a(f"v_cvt_pk_bf16_f32 v{o+i}, {lo}, {hi}")
R = lambda i: f"v{KA+i}"
pack(16, [(R(7),R(6)),(R(5),R(4)),(R(3),R(2)),(R(1),R(0))])
pack(20, [(R(4),R(3)),(R(2),R(2)),(R(2),R(1)),(R(0),R(0))])
pack(24, [("0","0"),(R(9),R(9)),(R(9),R(8)),(R(8),R(8))])
pack(28, [(R(9),R(10)),(R(13),R(14))])
pack(30, [(R(9),R(11)),(R(13),R(15))])
a(f"v_and_b32 v8, 1, v3\nv_and_b32 v10, 30, v3\nv_mul_u32_u24 v9, 320, v8\nv_mul_u32_u24 v8, 640, v8\ns_add_u32 s10, s69, {T2}\nv_sub_u32 v10, s10, v10\nv_add_u32 v8, v8, v10\nv_add_u32 v9, v9, v10")
a("s_mov_b32 exec_hi, 0")
a(f"ds_write_b128 v2, v[16:19] offset:{IMG+1072-512}")
for q in range(4):
    for cp in range(2): a(f"ds_write_b16{'_d16_hi' if q & 1 else ''} v9, v{30+q//2} offset:{T3-T2 + 160*cp + 2*(63-16*q-cp)}")
a("s_mov_b32 exec_hi, -1\ns_mov_b32 exec_lo, 0")
a(f"ds_write_b128 v2, v[20:23] offset:{IMG+560-512}")
for q in range(2):
    for w in range(2):
        for cp in range(2): a(f"ds_write_b16{'_d16_hi' if w else ''} v8, v{28+q} offset:{320*w + 160*cp + 2*(47-16*q-cp)}")
a(f"s_mov_b32 exec_hi, 1\nds_write_b128 v2, v[24:27] offset:{IMG+48-512}\nds_write_b16 v8, v4 offset:{2*47}\nds_write_b16 v8, v4 offset:{160+2*46}\ns_mov_b64 exec, -1")
a(f"s_cmp_lt_u32 {WV}, 4\ns_cbranch_scc1 L_kexp")
a("s_cmp_eq_u32 s68, 2\ns_cbranch_scc1 L_cv_kpart\ns_waitcnt lgkmcnt(0)")
a(c_test)
a("s_cbranch_scc0 L_cv_kpart")
uloads()
a("s_mov_b32 s68, 2")
a("L_cv_kpart:")
B2, B3 = 164, 188
a(f"v_mov_b32 v5, s69\nds_read_u16 v34, v5 offset:{T2 + 6*160 + 2*16}")
a(f"ds_read_b128 v[16:19], v{cLIN} offset:{IMG}\nds_read_b64 v[20:21], v{cLIN} offset:{IMG+16}\nds_read_b128 v[24:27], v{cIMG2} offset:{IMG+1024}\nds_read_b64 v[28:29], v{cIMG2} offset:{IMG+1040}")
for i in range(6):
    for h in range(2): a(f"ds_read2_b32 {vr(B2+4*i+2*h,2)}, v{cT2} offset0:{4*i+2*h} offset1:{4*i+2*h+1}")
for d in range(4):
    for h in range(2): a(f"ds_read2_b32 {vr(B3+4*d+2*h,2)}, v{cT3} offset0:{8*(3-d)+2*h} offset1:{8*(3-d)+2*h+1}")
a("v_lshl_or_b32 v5, v147, 16, v147")
for k in range(4): a(f"v_and_b32 v{AD+k}, v{AD+k}, v5")
a("s_waitcnt lgkmcnt(15)\nv_lshl_or_b32 v5, v34, 16, v34")
for k in range(4): a(f"v_and_b32 v{AB+k}, v{AB+k}, v5")
for rr, (D, va, off) in enumerate(((16, cKW1, 0), (24, cKW2, 4608))):
    O = 64 + 16*rr
    for i in range(4):
        a(f"v_mov_b32 v{O+4*i}, v{D+i}\nv_mov_b32 v{O+4*i+1}, v{D+i+1}")
        a(f"v_alignbit_b32 v{O+4*i+2}, v{D+i+1}, v{D+i}, 16\nv_alignbit_b32 v{O+4*i+3}, v{D+i+2}, v{D+i+1}, 16")
        a(f"ds_write_b128 v{va}, {vr(O+4*i,4)} offset:{off + 16*i}")
a(f"ds_read_b64 {vr(A16,2)}, v{cA0}\nds_read_b64 {vr(A16+2,2)}, v{cA1}")
stamp(5)
a("s_cmp_lg_u32 s101, 0\ns_cbranch_scc1 L_cv_direct")
a("L_cv_upart:")
a(f"s_setprio {opt('pprio', 2)}")
zero(4, 4)
a(f"s_mov_b64 exec, 0x3fffffff\nds_write_b128 v{cLIN}, v[4:7] offset:{UB-480}\ns_mov_b64 exec, 3")
for o in (W3B-48, W5B-48, W7B-48, W9B-48, W9B+2032): a(f"ds_write_b128 v{cLIN}, v[4:7] offset:{o}")
a("s_mov_b64 exec, -1")
a("s_bitcmp1_b32 s68, 1\ns_cbranch_scc1 L_cv_u2")
spoll(c_issue, c_test, sleep=opt("lsleep", 6))
uloads()
a("L_cv_u2:")
stamp(6)
a("s_waitcnt vmcnt(0)")
for q in range(4): a(f"ds_write_b128 v{cLIN}, {vr(148+4*q,4)} offset:{UB+1024*q}")
SET = [(16, 24), (56, 64)]; CA = 96
a(f"v_mov_b32 v13, v{cLIN}\ns_mov_b32 s3, 0")
o = UB - 16
wrd = f"ds_read_b64 v[128:129], v13 offset:{o-8}\nds_read_b128 v[130:133], v13 offset:{o}\nds_read_b64 v[134:135], v13 offset:{o+16}"
a(wrd)
a("s_waitcnt lgkmcnt(0)")
a("L_cv_win:")
D = 128; Pf = 96
for e in range(16):
    a(f"v_lshlrev_b32 v{Pf+e}, 16, v{D+e//2}" if e % 2 == 0 else f"v_and_b32 v{Pf+e}, 0xffff0000, v{D+e//2}")
a(wrd.replace(f"offset:{o-8}", f"offset:{o-8+1024}").replace(f"offset:{o}\n", f"offset:{o+1024}\n").replace(f"offset:{o+16}", f"offset:{o+16+1024}"))
for e in range(1, 16): a(f"v_add_f32 v{Pf+e}, v{Pf+e}, v{Pf+e-1}")
for h, base in ((1, W3B), (2, W5B), (3, W7B), (4, W9B)):
    if h == 3: a("s_cmp_eq_u32 s3, 2\ns_cbranch_scc1 L_cv_wend")
    T = 112
    for i in range(8):
        b = 4+i-h-1
        a(f"v_sub_f32 v{T+i}, v{Pf+4+i+h}, v{Pf+b}" if b >= 0 else f"v_mov_b32 v{T+i}, v{Pf+4+i+h}")
    for i in range(4): a(f"v_cvt_pk_bf16_f32 v{120+4*(h&1)+i}, v{T+2*i}, v{T+2*i+1}")
    a(f"ds_write_b128 v13, {vr(120+4*(h&1),4)} offset:{base-16}")
a("v_add_u32 v13, 1024, v13\ns_add_u32 s3, s3, 1\ns_waitcnt lgkmcnt(4)\ns_branch L_cv_win")
a("L_cv_wend:")
a("s_cmp_lg_u32 s101, 0\ns_cbranch_scc1 L_cv_rk")
a("L_cv_direct:")
a(f"v_add_u32 v8, 2304, v{cA0}\nv_add_u32 v9, 2304, v{cA1}\nv_mov_b32 v10, v{cB}")
def rd(st):
    A_, B_ = SET[st]; Rr = []
    for x in range(2):
        Rr.append(f"ds_read_b64 {vr(A_+4*x,2)}, v8 offset:{2304*(1-x)}")
        Rr.append(f"ds_read_b64 {vr(A_+4*x+2,2)}, v9 offset:{2304*(1-x)}")
    for b in range(8): Rr.append(f"ds_read_b128 {vr(B_+4*b,4)}, v10 offset:{512*b}")
    return Rr
advk = ["v_subrev_u32 v8, 288, v8", "v_subrev_u32 v9, 288, v9", "v_subrev_u32 v10, 64, v10"]
for x in rd(0) + advk: a(x)
a(f"s_setprio {opt('cprio', 2)}\ns_mov_b32 s3, 0\ns_waitcnt lgkmcnt(0)")
if PROF: a("s_cmp_lt_u32 s4, 4\ns_cbranch_scc1 L_ns7")
stamp(7)
if PROF: a("L_ns7:")
def mf(n, A_, B_, c=None): a(f"v_mfma_f32_16x16x32_bf16 {vr(CA+4*n,4)}, {vr(A_,4)}, {vr(B_,4)}, {c if c else vr(CA+4*n,4)}")
for b in range(8): mf(b, AD, SET[0][1]+4*b, "0")
for b in range(6): mf(b+2, A16, SET[0][1]+4*b)
for b in range(4): mf(b+4, AB, SET[0][1]+4*b)
a("L_cv_loop:")
for st in range(2):
    A_, B_ = SET[st]; Rr = rd(1-st); n = 0
    for x in range(2):
        for b in range(8-x):
            mf(x+b, A_+4*x, B_+4*b)
            if n < 6: a(Rr[2*n]); a(Rr[2*n+1])
            elif n < 9: a(advk[n-6])
            if st == 1 and n == 12: a("s_add_u32 s3, s3, 1\ns_cmp_lt_u32 s3, 4")
            n += 1
    a("s_waitcnt lgkmcnt(0)")
a("s_cbranch_scc1 L_cv_loop")
a("L_cv_far:")
for f in range(12):
    for h in range(2): a(f"ds_read_b64_tr_b16 {vr(16+4*f+2*h,2)}, v{cW2} offset:{256*f+128*h}")
    if f == 6: a("s_waitcnt lgkmcnt(8)")
for f in range(4):
    for h in range(2): a(f"ds_read_b64_tr_b16 {vr(64+4*f+2*h,2)}, v{cW3} offset:{512*f+128*h}")
a("s_waitcnt lgkmcnt(8)")
for f in range(12):
    for n in range(2, 8):
        i = f + 8 - 2*n
        if 0 <= i < 6: mf(n, 16+4*f, B2+4*i)
a("s_waitcnt lgkmcnt(0)")
for f in range(4):
    for n in range(4+f, 8): mf(n, 64+4*f, B3+4*(n-f-4))
if PROF: a("s_cmp_lt_u32 s4, 4\ns_cbranch_scc1 L_ns8")
stamp(8)
if PROF: a("L_ns8:")
a(f"s_lshl_b32 s14, s{S_CH}, 7\ns_add_u32 s14, s14, {YA}\ns_nop 7")
for n in range(0, 8, 2):
    o = 16 + 2*n
    a(f"v_cvt_pk_bf16_f32 v{o}, v{CA+4*n}, v{CA+4*n+1}\nv_cvt_pk_bf16_f32 v{o+1}, v{CA+4*n+2}, v{CA+4*n+3}")
    a(f"v_cvt_pk_bf16_f32 v{o+2}, v{CA+4*n+4}, v{CA+4*n+5}\nv_cvt_pk_bf16_f32 v{o+3}, v{CA+4*n+6}, v{CA+4*n+7}")
    a(f"v_permlane16_swap_b32 v{o}, v{o+2}\nv_permlane16_swap_b32 v{o+1}, v{o+3}")
    a(f"buffer_store_dwordx4 {vr(o,4)}, v{cST}, {WS}, s14 offen sc1\ns_add_u32 s14, s14, {8*81920}")
a(f"s_mul_i32 s13, s{S_CH}, 820\ns_lshr_b32 s13, s13, 16\ns_lshl_b32 s14, s13, 9\ns_add_u32 s14, s14, {YAC}\nv_lshlrev_b32 v4, 7, v0\nv_mov_b32 v5, 1")
a(f"s_waitcnt vmcnt(0)\ns_mov_b64 exec, 15\nbuffer_atomic_add v5, v4, {WS}, s14 offen sc1\ns_mov_b64 exec, -1")
a("s_setprio 0")
stamp(9)
a(f"s_cmp_eq_u32 {WV}, 7\ns_cbranch_scc1 L_fetch")
endp()
a("L_kexp:")
for q in range(3): a(f"ds_read_b128 {vr(16+4*q,4)}, v13 offset:{SCR+1024*q}")
a(f"s_lshl_b32 s9, s{S_CH}, 12\ns_add_u32 s9, s9, {KD}")
for q in range(3): a(f"s_waitcnt lgkmcnt({2-q})\nbuffer_store_dwordx4 {vr(16+4*q,4)}, v1, {WS}, s9 offen offset:{1024*q} sc1")
a(f"s_sub_u32 s8, s{S_CH}, 256\ns_lshr_b32 s8, s8, 3\ns_lshl_b32 s8, s8, 2\ns_add_u32 s8, s8, {WV}\ns_cmp_ge_u32 s8, 144\ns_cselect_b32 s12, 1, 0\ns_mul_i32 s9, s12, 144\ns_sub_u32 s8, s8, s9")
a("s_mul_i32 s9, s8, 1821\ns_lshr_b32 s9, s9, 16\ns_mul_i32 s10, s9, 36\ns_sub_u32 s8, s8, s10")
a("s_cmp_ge_u32 s8, 20\ns_cselect_b32 s10, 1, 0\ns_mul_i32 s11, s10, 20\ns_sub_u32 s8, s8, s11\ns_lshl_b32 s8, s8, 3\ns_lshl_b32 s9, s9, 1\ns_add_u32 s8, s8, s9\ns_add_u32 s8, s8, s10")
a(f"s_lshl_b32 s8, s8, 7\ns_add_u32 s8, s8, {MBOX}\ns_lshl_b32 s9, 0x1000000, s12\nv_mov_b32 v4, 0\nv_mov_b32 v5, s9")
a(f"s_waitcnt vmcnt(0)\ns_mov_b64 exec, 1\nbuffer_atomic_or v5, v4, {WS}, s8 offen sc1\ns_mov_b64 exec, -1")
stamp(12)
a("s_setprio 0\ns_mov_b32 s35, 1\ns_branch L_g2")
a("L_cv_rk:")
a("s_bitcmp1_b32 s68, 0\ns_cbranch_scc1 L_cv_k1")
spoll(sld(31, S_MB), "s_and_b32 s13, s31, s101", sleep=6)
kloads()
a("L_cv_k1:")
for q in range(3): a(f"s_waitcnt vmcnt({2-q})\nds_write_b128 v{cLIN}, {vr(32+4*q,4)} offset:{SCR+1024*q}")
stamp(4)
a("s_branch L_cv_kpart")

a("L_end:")
if PROF:
    a(f"s_lshl_b32 s93, s2, 3\ns_add_u32 s93, s93, {WV}\ns_lshl_b32 s93, s93, 6\ns_add_u32 s93, s93, {PROFB}")
    a(f"s_memrealtime s[94:95]\ns_waitcnt lgkmcnt(0)\ns_mov_b32 s87, s94\ns_mov_b32 s72, s{S_SPIN}")
    for i in range(16): a(f"v_mov_b32 v{224+i}, s{72+i}")
    a("v_mov_b32 v255, 0\ns_mov_b64 exec, 1")
    for i in range(4): a(f"buffer_store_dwordx4 {vr(224+4*i,4)}, v255, {WS}, s93 offen offset:{16*i}")
    if opt("dbgmax", 0):
        a(f"v_not_b32 v238, v238\ns_and_b32 s93, {WV}, 3\ns_cmp_lg_u32 s93, 0\ns_cbranch_scc1 L_exit")
        sel0 = {1: 14, 2: 15, 3: 1, 4: 2, 5: 5, 6: 6, 7: 8, 8: 10}
        sel4 = {9: 10, 10: 4, 11: 7, 12: 8, 13: 9}
        a(f"s_cmp_lg_u32 {WV}, 0\ns_cbranch_scc1 L_dbg4")
        for d, i in sel0.items(): a(f"buffer_atomic_umax v{224+i}, v255, {DBG}, 0 offen offset:{4*d} sc1")
        a("s_branch L_exit")
        a("L_dbg4:")
        for d, i in sel4.items(): a(f"buffer_atomic_umax v{224+i}, v255, {DBG}, 0 offen offset:{4*d} sc1")
a("L_exit:")
a("s_endpgm")

hdr = open("cdna_kernels/%s.s.ref" % NAME).read().split("; Override launch")[0]
out = hdr + "; @launch grid=(256,1,1) block=(512,1,1) lds=163840\n"
out += '.amdgcn_target "amdgcn-amd-amdhsa--gfx950"\n.text\n' + a.text()
out += f""".section .rodata,"a"
.p2align 6
.amdhsa_kernel {KN}
  .amdhsa_next_free_vgpr 256
  .amdhsa_next_free_sgpr 102
  .amdhsa_accum_offset 256
  .amdhsa_group_segment_fixed_size 0
  .amdhsa_kernarg_size 136
  .amdhsa_user_sgpr_count 2
  .amdhsa_user_sgpr_kernarg_segment_ptr 1
  .amdhsa_system_sgpr_workgroup_id_x 1
.end_amdhsa_kernel
"""
path = [x for x in sys.argv[1:] if not x.startswith("--")]
open(path[0] if path else "f.s", "w").write(out)
```

```python
import sys, struct, math
sys.path.insert(0, "dev")
from asmlib import Asm, vr, sr

NAME = "parallel_sum__ssm_conv_s4__dense_activation_gelu__prompt"
KN = NAME + "_kernel"
PROF = "--prof" in sys.argv
def opt(name, default):
    for x in sys.argv:
        if x.startswith("--%s=" % name): return int(x.split("=")[1])
    return default
def f32(x): return "0x%08x" % struct.unpack("<I", struct.pack("<f", x))[0]

XNT, KD, YA, W2F = 0x000000, 0x280000, 0x500000, 0x780000
CLR = 0x9A0000
STATS, CSUM, MBOX, LNC, W2C, YAC = CLR, CLR+0x2000, CLR+0x10000, CLR+0x18000, CLR+0x1C000, CLR+0x1A000
CSP = 13824
PROFB, HF = 0x9C0000, 0xA00000
WS_SIZE = 0x1100000
OOB = "0x7f000000"
P = dict(u=16, are=18, aim=20, bre=22, bim=24, cre=26, cim=28, ldt=30, dsk=32, bx=34, w1=36, b1=38, w2=40, b2=42, out=44, dbg=46, ws=48)
S_WS, S_A, S_B, S_DBG = 52, 56, 60, 64
S_WAVE, S_XR, S_XC, S_J, S_SPIN, S_CH = 4, 5, 6, 7, 50, 51
S_MB = 34
WV = f"s{S_WAVE}"
WS = f"s[{S_WS}:{S_WS+3}]"; SA = f"s[{S_A}:{S_A+3}]"; SB = f"s[{S_B}:{S_B+3}]"; DBG = f"s[{S_DBG}:{S_DBG+3}]"
STG = 40960
NST = 3
AREG, BREG0, BREG = 20480, 81920, 20480
B7 = BREG0 + 3*BREG
CNT = B7 + 20096
YAT = B7
UB = 5536
W3B, W5B, W7B, W9B = 9664, 12768, 15872, 17952
SCR = 512
IMG, T2, T3 = SCR, SCR+1136, SCR+2416
STATL = BREG0 + 2*BREG
NT = " nt" if opt("nt", 0) else ""
NT1 = " nt" if opt("nt1", 1) else ""

a = Asm()
G2F = " sc1" if opt("g2sc1", 1) else ""
def srd(d, ptr, size):
    a(f"s_mov_b32 s{d}, s{ptr}\ns_mov_b32 s{d+1}, s{ptr+1}\ns_mov_b32 s{d+2}, {hex(size)}\ns_mov_b32 s{d+3}, 0x20000")
def stamp(idx):
    if PROF: a(f"s_memtime s[92:93]\ns_waitcnt lgkmcnt(0)\ns_sub_u32 s{72+idx}, s92, s90")
def lstamp(o):
    if PROF: a(f"s_memtime s[92:93]\ns_waitcnt lgkmcnt(0)\ns_sub_u32 s92, s92, s90\ns_add_u32 m0, s3, {o}\nv_writelane_b32 v200, s92, m0")
def endp(): a("s_branch L_end")
def cmul(d, x, y, t):
    a(f"v_pk_mul_f32 {vr(t,2)}, {vr(x,2)}, {vr(y,2)} op_sel:[0,0] op_sel_hi:[0,1]")
    a(f"v_pk_fma_f32 {vr(d,2)}, {vr(x,2)}, {vr(y,2)}, {vr(t,2)} op_sel:[1,1,0] op_sel_hi:[1,0,1] neg_lo:[0,1,0]")
def poll(issue, test, sleep=4, issued=True):
    L = a.label("L_poll"); D = a.label("L_pdone")
    if not issued: a(issue)
    a(f"{L}:")
    a("s_waitcnt vmcnt(0)")
    a(test)
    a(f"s_cbranch_scc1 {D}")
    a(f"s_add_u32 s{S_SPIN}, s{S_SPIN}, 1\ns_cmp_gt_u32 s{S_SPIN}, 100000\ns_cbranch_scc1 L_exit")
    a(f"s_sleep {sleep}")
    a(issue)
    a(f"s_branch {L}")
    a(f"{D}:")
def sld(d, off): return f"s_load_dword s{d}, s[{P['ws']}:{P['ws']+1}], s{off} glc"
def spoll(issue, test, sleep=4, issued=False, far=None):
    L = a.label("L_spoll"); D = a.label("L_sdone")
    if not issued: a(issue)
    a(f"{L}:")
    a("s_waitcnt lgkmcnt(0)")
    a(test)
    a(f"s_cbranch_scc1 {D}")
    a(f"s_add_u32 s{S_SPIN}, s{S_SPIN}, 1\ns_cmp_gt_u32 s{S_SPIN}, 100000\ns_cbranch_scc1 L_exit")
    a(f"s_sleep {sleep}")
    if far:
        N = a.label("L_near")
        a(f"{far[0]}\ns_cbranch_scc1 {N}\ns_sleep {far[1]}")
        a(f"{N}:")
    a(issue)
    a(f"s_branch {L}")
    a(f"{D}:")
def arrive_issue(sreg, va, vb):
    a(f"v_mov_b32 v{va}, 0\nv_mov_b32 v{vb}, 1\ns_mov_b64 exec, 1\nbuffer_atomic_add v{vb}, v{va}, {WS}, s{sreg} offen sc0 sc1\ns_mov_b64 exec, -1")
def arrive_check(st, vb, n, then):
    L = a.label("L_arr")
    a(f"s_waitcnt vmcnt(0)\nv_readfirstlane_b32 s{st}, v{vb}\ns_cmp_lg_u32 s{st}, {n-1}\ns_cbranch_scc1 {L}")
    a(then)
    a(f"{L}:")
def push_all(bitreg, off, va, vb, st):
    t = f"v_lshlrev_b32 v{va}, 7, v0\nv_mov_b32 v{vb}, s{bitreg}\ns_mov_b32 s{st}, {MBOX+off}\n"
    for i in range(4): t += f"buffer_atomic_or v{vb}, v{va}, {WS}, s{st} offen sc1\ns_add_u32 s{st}, s{st}, 8192\n"
    return t
def few(mask, ins): return f"s_mov_b64 exec, {mask}\n{ins}\ns_mov_b64 exec, -1"
def clr_issue(v, vo): return few(15, f"buffer_load_dword v{v}, v{vo}, {DBG}, 0 offen sc1")
def clr_test(v): return f"v_cmp_ne_u32 vcc, 0, v{v}\ns_and_b32 vcc_lo, vcc_lo, 15\ns_cmp_eq_u32 vcc_lo, 15"
def nz_test(v): return f"v_cmp_ne_u32 vcc, 0, v{v}\ns_cmp_eq_u64 vcc, -1"
def zero(b, n):
    for i in range(0, n, 2): a(f"v_pk_mov_b32 {vr(b+i,2)}, 0, 0")

cLIN, cIMG2, cT2, cT3, cW2, cW3, cST, cKW1, cKW2, cA0, cA1, cB, cU = 247, 248, 249, 250, 251, 252, 253, 254, 255, 231, 236, 237, 146
AD, AB, A16 = 204, 224, 232
RS = opt("rowsplit", 0)
def tile_rc(rt, cb, tmp):
    if RS: return f"s_and_b32 s{rt}, s2, 7\ns_lshl_b32 s{rt}, s{rt}, 2\ns_lshr_b32 s{cb}, s{S_J}, 3\ns_add_u32 s{rt}, s{rt}, s{cb}\ns_and_b32 s{cb}, s{S_J}, 7"
    return (f"s_lshl_b32 s{rt}, s{S_XR}, 3\ns_lshr_b32 s{cb}, s{S_J}, 2\ns_add_u32 s{rt}, s{rt}, s{cb}\n"
            f"s_lshl_b32 s{cb}, s{S_XC}, 2\ns_and_b32 s{tmp}, s{S_J}, 3\ns_add_u32 s{cb}, s{cb}, s{tmp}")
def conv_setup(t=64):
    r_, g_, h_, f_, x_, y_, z_ = (f"v{t+i}" for i in range(7))
    a(f"v_lshlrev_b32 {x_}, 4, v0\nv_add_u32 v{cLIN}, s69, {x_}\nv_min_u32 {z_}, 5, v0\nv_lshl_add_u32 v{cIMG2}, {z_}, 4, s69")
    a(f"v_lshlrev_b32 {x_}, 6, {z_}\nv_lshrrev_b32 {y_}, 1, {z_}\nv_lshl_add_u32 {x_}, {y_}, 4, {x_}\nv_add_u32 v{cKW2}, s69, {x_}")
    a(f"v_lshlrev_b32 {x_}, 6, v0\nv_lshrrev_b32 {y_}, 1, v0\nv_lshl_add_u32 {x_}, {y_}, 4, {x_}\nv_add_u32 v{cKW1}, s69, {x_}")
    a(f"v_lshrrev_b32 {x_}, 2, v0\nv_mul_u32_u24 {x_}, 40960, {x_}\nv_and_b32 {y_}, 3, v0\nv_lshl_add_u32 v{cU}, {y_}, 4, {x_}")
    a(f"v_and_b32 {r_}, 15, v0\nv_lshrrev_b32 {g_}, 4, v0\nv_and_b32 {h_}, 1, {g_}\nv_lshrrev_b32 {f_}, 1, {g_}")
    a(f"v_sub_u32 {x_}, 15, {r_}\nv_and_b32 {y_}, 1, {x_}\nv_sub_u32 {x_}, {x_}, {y_}\nv_lshlrev_b32 {x_}, 1, {x_}")
    a(f"v_lshl_add_u32 {z_}, {g_}, 1, {y_}\nv_mul_u32_u24 {z_}, 160, {z_}\nv_add_u32 {z_}, {z_}, {x_}\ns_add_u32 s10, s69, {T2}\nv_add_u32 v{cT2}, s10, {z_}")
    a(f"v_lshl_add_u32 {z_}, {h_}, 1, {y_}\nv_mul_u32_u24 {z_}, 160, {z_}\nv_add_u32 {z_}, {z_}, {x_}\nv_lshl_add_u32 {z_}, {f_}, 4, {z_}\ns_add_u32 s10, s69, {T3}\nv_add_u32 v{cT3}, s10, {z_}")
    a(f"v_mul_u32_u24 {x_}, {W5B-W3B}, {h_}\nv_lshlrev_b32 {y_}, 3, {g_}\nv_sub_u32 {x_}, {x_}, {y_}\nv_lshl_add_u32 {x_}, {r_}, 3, {x_}\ns_add_u32 s10, s69, {W3B-8}\nv_add_u32 v{cW2}, s10, {x_}")
    a(f"v_mul_u32_u24 {x_}, {W9B-W7B-16}, {h_}\nv_lshl_add_u32 {x_}, {f_}, 8, {x_}\nv_lshl_add_u32 {x_}, {r_}, 3, {x_}\ns_add_u32 s10, s69, {W7B-16}\nv_add_u32 v{cW3}, s10, {x_}")
    a(f"v_lshlrev_b32 {x_}, 2, {h_}\nv_lshrrev_b32 {z_}, 2, {r_}\nv_add_u32 {x_}, {x_}, {z_}\nv_mul_u32_u24 {x_}, 81920, {x_}\nv_lshl_add_u32 {x_}, {f_}, 6, {x_}\nv_and_b32 {z_}, 3, {r_}\nv_lshl_add_u32 v{cST}, {z_}, 4, {x_}")
    a(f"s_add_u32 s10, s69, {UB-32}\nv_lshlrev_b32 {x_}, 5, {r_}\nv_lshl_add_u32 {x_}, {g_}, 4, {x_}\nv_add_u32 v{cB}, s10, {x_}")
    a(f"v_sub_u32 {z_}, {y_}, {r_}\nv_add_u32 {z_}, 15, {z_}\nv_sub_u32 {y_}, {r_}, {y_}")
    a(f"v_lshrrev_b32 {x_}, 4, {z_}\nv_lshlrev_b32 {x_}, 4, {x_}\nv_lshl_add_u32 {x_}, {z_}, 3, {x_}\nv_add_u32 v{cA0}, s69, {x_}")
    a(f"v_add_u32 {z_}, 4, {z_}\nv_lshrrev_b32 {x_}, 4, {z_}\nv_lshlrev_b32 {x_}, 4, {x_}\nv_lshl_add_u32 {x_}, {z_}, 3, {x_}\nv_add_u32 v{cA1}, s69, {x_}")
    a(f"v_mov_b32 {r_}, 0xffff\nv_mov_b32 {g_}, 0xffff0000\nv_mov_b32 {h_}, -1")
    for k in range(4):
        a(f"v_cmp_eq_u32 vcc, {2*k-16}, {y_}\nv_cndmask_b32 v{AD+k}, 0, {r_}, vcc\nv_cmp_eq_u32 vcc, {2*k+1-16}, {y_}\nv_cndmask_b32 v{AD+k}, v{AD+k}, {g_}, vcc")
        a(f"v_cmp_eq_u32 vcc, {2*k-12}, {y_}\nv_cndmask_b32 v{AB+k}, 0, {h_}, vcc\nv_cmp_eq_u32 vcc, {2*k-13}, {y_}\nv_cndmask_b32 v{AB+k}, v{AB+k}, {r_}, vcc\nv_cmp_eq_u32 vcc, {2*k-11}, {y_}\nv_cndmask_b32 v{AB+k}, v{AB+k}, {g_}, vcc")
def uloads():
    a(f"s_lshl_b32 s10, s{S_CH}, 6")
    for q in range(4): a(f"buffer_load_dwordx4 {vr(148+4*q,4)}, v{cU}, {WS}, s10 offen sc1\ns_add_u32 s10, s10, 655360")
def kloads():
    a(f"s_lshl_b32 s10, s{S_CH}, 12\ns_add_u32 s10, s10, {KD}")
    for q in range(3): a(f"buffer_load_dwordx4 {vr(32+4*q,4)}, v1, {WS}, s10 offen offset:{1024*q} sc1")
lnc_addr = f"s_mul_i32 s13, s{S_CH}, 410\ns_lshr_b32 s13, s13, 16\ns_lshl_b32 s13, s13, 4\ns_and_b32 s100, s2, 15\ns_add_u32 s100, s100, s13\ns_lshl_b32 s100, s100, 7\ns_add_u32 s100, s100, {LNC}"

a.raw(f".globl {KN}\n.p2align 8\n.type {KN},@function")
a(f"{KN}:")
a("s_cmp_ge_u32 s2, 256\ns_cbranch_scc1 L_exit")
a("s_load_dwordx16 s[16:31], s[0:1], 0\ns_load_dwordx16 s[32:47], s[0:1], 64\ns_load_dwordx2 s[48:49], s[0:1], 128")
if opt("cpf", 1):
    a(f"s_cmp_ge_u32 s2, {opt('cpfn', 8)}\ns_cbranch_scc1 L_nocpf")
    a("s_getpc_b64 s[12:13]")
    a("L_cpfb:")
    a("v_lshlrev_b32 v20, 7, v0\nv_min_u32 v20, L_exit-L_cpfb, v20\nv_mov_b32 v21, s13\nv_add_co_u32 v20, vcc, s12, v20\nv_addc_co_u32 v21, vcc, 0, v21, vcc")
    a("global_load_dword v22, v[20:21], off")
    a("L_nocpf:")
if PROF:
    a("s_memtime s[90:91]\ns_memrealtime s[94:95]")
    for i in range(16): a(f"s_mov_b32 s{72+i}, 0")
a("v_lshrrev_b32 v1, 6, v0\nv_and_b32 v0, 63, v0")
a(f"v_readfirstlane_b32 {WV}, v1")
a(f"s_bfe_u32 s{S_XR}, s2, 0x20001\ns_and_b32 s{S_XC}, s2, 1\ns_lshr_b32 s{S_J}, s2, 3\ns_mov_b32 s{S_SPIN}, 0")
a(f"s_lshl_b32 s8, s{S_XC}, 2\ns_sub_u32 s8, 20, s8")
a(f"s_cmp_eq_u32 s{S_XC}, 0\ns_cselect_b32 s9, 52, 64\ns_mul_i32 s9, s9, s{S_J}\ns_lshr_b32 s9, s9, 8")
a(f"s_sub_u32 s11, 5, s{S_XC}\ns_mul_i32 s11, s11, s9\ns_sub_u32 s10, s{S_J}, s11\ns_mul_i32 s11, s{S_XC}, 5\ns_add_u32 s10, s10, s11")
a(f"s_lshl_b32 s11, s{S_XR}, 2\ns_add_u32 s9, s9, s11")
a("v_lshrrev_b32 v4, 3, v0\nv_mul_u32_u24 v4, 1280, v4")
a("v_and_b32 v5, 7, v0\nv_lshrrev_b32 v6, 4, v0\nv_xor_b32 v5, v5, v6\nv_lshl_add_u32 v2, v5, 4, v4")
a("v_xor_b32 v5, 4, v5\nv_lshl_add_u32 v3, v5, 4, v4\nv_add_u32 v3, 10240, v3\nv_add_u32 v4, 20480, v2\nv_add_u32 v5, 20480, v3")
for i in range(3):
    a(f"v_add_u32 v6, {64*i}, v0\nv_mul_u32_u24 v7, 2731, v6\nv_lshrrev_b32 v7, 16, v7\nv_lshlrev_b32 v14, 1, v7\nv_and_b32 v14, 4, v14\nv_xor_b32 v6, v6, v14")
    a(f"v_mul_u32_u24 v7, 3072, v7\nv_lshl_add_u32 v{8+i}, v6, 4, v7\nv_add_u32 v{11+i}, 27648, v{8+i}")
a("s_waitcnt lgkmcnt(0)")
srd(S_WS, P['ws'], WS_SIZE)
srd(S_A, P['u'], 2621440)
srd(S_B, P['w1'], 2211840)
srd(S_DBG, P['dbg'], 256)
a(f"s_lshl_b32 s{S_MB}, s2, 7\ns_add_u32 s{S_MB}, s{S_MB}, {MBOX}")
if PROF:
    a("s_mov_b32 s86, s94"); stamp(13)
if opt("g2only", 0):
    a(f"v_mov_b32 v174, 0\ns_mov_b32 s35, 1\ns_cmp_lt_u32 {WV}, 4\ns_cbranch_scc1 L_g2\ns_branch L_end")
a(f"s_cmp_ge_u32 s{S_J}, s8\ns_cbranch_scc1 L_aux")
a(f"s_cmp_lt_u32 {WV}, 4\ns_cbranch_scc1 L_comp")

a(f"s_sub_u32 s8, {WV}, 4")
a("s_lshl_b32 s11, s9, 7\ns_lshl_b32 s12, s8, 5\ns_add_u32 s11, s11, s12\ns_mul_i32 s11, s11, 1280")
a("s_mul_i32 s12, s8, 55296\ns_mul_i32 s13, s10, 384\ns_add_u32 s12, s12, s13")
a("s_lshl_b32 s13, s8, 12\ns_mul_i32 s14, s8, 6144\ns_add_u32 s14, s14, 16384\ns_mov_b32 s3, 0")
a(f"s_and_b32 s15, s9, 3\ns_mul_i32 s15, s15, 5\ns_add_u32 s15, s15, 1\ns_lshr_b32 s15, s15, 1\ns_lshl_b32 s68, s10, 1\ns_add_u32 s15, s15, s68\ns_add_u32 s15, s15, s{S_XR}")
a("s_mul_i32 s68, s15, 26\ns_lshr_b32 s68, s68, 8\ns_mul_i32 s68, s68, 10\ns_sub_u32 s15, s15, s68")
a("s_lshl_b32 s68, s15, 7\ns_add_u32 s11, s11, s68\ns_mul_i32 s68, s15, 221184\ns_add_u32 s12, s12, s68\ns_mov_b32 s69, 0")
stamp(1)
S_C = 96
a("v_mov_b32 v146, 0\nv_mov_b32 v253, 0\ns_mov_b32 s101, 0")
a("L_ld_loop:")
a("s_cmp_lt_u32 s3, 2\ns_cbranch_scc1 L_ld_nowait\ns_cmp_eq_u32 s3, 2\ns_cbranch_scc1 L_ld_setup")
a("L_ld_wait:")
a("s_waitcnt vmcnt(10)")
lstamp(0)
a("s_barrier")
lstamp(16)
a("L_ld_nowait:")
a("s_add_u32 s70, s69, s13\ns_add_u32 s71, s69, s14")
for q in range(4): a(f"s_add_u32 m0, s70, {1024*q}\nbuffer_load_dwordx4 v{2+q}, {SA}, s11 offen{NT} lds")
for i in range(6): a(f"s_add_u32 m0, s71, {1024*i}\nbuffer_load_dwordx4 v{8+i}, {SB}, s12 offen{NT} lds")
a("s_add_u32 s11, s11, 128\ns_add_u32 s12, s12, 221184\ns_add_u32 s15, s15, 1\ns_cmp_lt_u32 s15, 10\ns_cbranch_scc1 L_ld_nowrap")
a("s_sub_u32 s11, s11, 1280\ns_sub_u32 s12, s12, 2211840\ns_mov_b32 s15, 0")
a("L_ld_nowrap:")
a(f"s_add_u32 s69, s69, {STG}\ns_cmp_eq_u32 s69, {NST*STG}\ns_cselect_b32 s69, 0, s69")
a(f"s_cmp_lg_u32 s3, 7\ns_cbranch_scc1 L_ld_n5\ns_load_dwordx4 s[28:31], s[{P['dbg']}:{P['dbg']+1}], 0")
a("L_ld_n5:")
a("s_add_u32 s3, s3, 1\ns_cmp_lt_u32 s3, 10\ns_cbranch_scc1 L_ld_loop")
s_issue = f"buffer_load_dwordx4 v[16:19], v1, {WS}, s18 offen sc1\nbuffer_load_dwordx4 v[20:23], v6, {WS}, s18 offen offset:1024 sc1\nbuffer_load_dword v24, v7, {WS}, s20 offen sc1"
wc_issue = sld(26, 25)
wc_test = "s_cmp_lg_u32 s26, 0"
a("s_waitcnt lgkmcnt(0)\ns_and_b32 s28, s28, s29\ns_and_b32 s30, s30, s31\ns_and_b32 s24, s28, s30")
a(s_issue)
for w in (13, 3):
    if w == 3:
        a("s_mov_b32 s31, 0\ns_mov_b32 s33, 0\ns_cmp_eq_u32 s101, 0\ns_cbranch_scc1 L_ld_ncv")
        a(sld(31, S_MB) + "\n" + sld(33, 100))
        a("L_ld_ncv:")
    a(f"s_waitcnt vmcnt({w})")
    lstamp(0)
    a("s_barrier")
    lstamp(16)
    if PROF: a("s_add_u32 s3, s3, 1")
a("s_cmp_lg_u32 s24, 0\ns_cbranch_scc1 L_ld_clr")
poll(clr_issue(15, 14), clr_test(15), sleep=8, issued=False)
a(s_issue)
a("s_waitcnt lgkmcnt(0)\ns_mov_b32 s31, 0\ns_mov_b32 s33, 0")
a("L_ld_clr:")
s_test = "v_and_b32 v4, v17, v19\nv_and_b32 v5, v21, v23\nv_and_b32 v4, v4, v5\nv_and_b32 v4, 1, v4\nv_min_u32 v4, v4, v24\n" + nz_test(4)
poll(s_issue, s_test, sleep=8)
a("ds_write_b128 v25, v[16:19]\nds_write_b128 v26, v[20:23] offset:1024\nds_write_b32 v27, v24")
a("s_waitcnt lgkmcnt(0)\ns_mov_b32 s68, 0\ns_and_b32 s13, s31, s101\ns_cbranch_scc0 L_ld_nk0")
kloads()
a("s_mov_b32 s68, 1")
a("L_ld_nk0:")
a("s_cmp_ge_u32 s33, 64\ns_cbranch_scc0 L_ld_nk")
uloads()
a("s_or_b32 s68, s68, 2")
a("L_ld_nk:")
a("s_barrier")
lstamp(16)
if PROF:
    a(f"s_lshl_b32 s93, s2, 9\ns_lshl_b32 s92, s8, 7\ns_add_u32 s93, s93, s92\ns_add_u32 s93, s93, {PROFB+0x20000}\nv_lshlrev_b32 v201, 2, v0\ns_mov_b32 exec_hi, 0\nbuffer_store_dword v200, v201, {WS}, s93 offen\ns_mov_b32 exec_hi, -1")
stamp(2)
a(f"s_cmp_eq_u32 {WV}, 7\ns_cbranch_scc1 L_fetch")
a(f"s_cmp_eq_u32 {WV}, 6\ns_cbranch_scc1 L_park")
a(f"s_cmp_eq_u32 s101, 0\ns_cbranch_scc1 L_end\ns_mul_i32 s69, {WV}, {AREG}\ns_branch L_cv_upart")
wc_prep = f"s_and_b32 s25, s2, 31\ns_lshl_b32 s25, s25, 7\ns_add_u32 s25, s25, {W2C+1024}"
a("L_ld_setup:")
a("v_lshlrev_b32 v1, 4, v0\nv_and_b32 v7, 31, v0\nv_lshlrev_b32 v6, 4, v7\nv_lshlrev_b32 v7, 2, v7\nv_and_b32 v14, 3, v0\nv_lshlrev_b32 v14, 2, v14")
a(f"s_lshl_b32 s20, s9, 9\ns_lshl_b32 s23, s8, 7\ns_add_u32 s20, s20, s23\ns_add_u32 s20, s20, {STATS}\ns_add_u32 s23, s23, {STATL+6144}\nv_add_u32 v27, s23, v7")
a(f"s_mul_i32 s18, s10, 1536\ns_mul_i32 s19, s8, {CSP}\ns_add_u32 s18, s18, s19\ns_add_u32 s18, s18, {CSUM}")
a(f"s_mul_i32 s23, s8, 1536\ns_add_u32 s23, s23, {STATL}\nv_add_u32 v25, s23, v1\nv_add_u32 v26, s23, v6\nv_mov_b32 v30, {CNT}")
zero(32, 4)
a("ds_write_b128 v30, v[32:35]")
a(wc_prep)
a(f"s_mul_i32 s23, s{S_XR}, 36\ns_mul_i32 s22, s{S_XC}, 20\ns_add_u32 s23, s23, s22\ns_add_u32 s23, s23, s{S_J}\ns_mul_i32 s22, s8, 144\ns_add_u32 s23, s23, s22\ns_cmp_ge_u32 s23, 192\ns_cbranch_scc1 L_ld_wait")
a(f"s_lshr_b32 s22, s23, 2\ns_lshl_b32 s22, s22, 3\ns_and_b32 s23, s23, 3\ns_add_u32 s{S_CH}, s23, s22\ns_add_u32 s{S_CH}, s{S_CH}, 256\ns_lshl_b32 s101, 0x1000000, s8")
a(f"s_mov_b32 s96, s69\ns_mov_b32 s97, s10\ns_mov_b32 s98, s13\ns_mul_i32 s69, {WV}, {AREG}")
conv_setup()
a(lnc_addr)
a(f"s_lshl_b32 s22, s{S_CH}, 1\ns_and_b32 s23, s22, 2\ns_sub_u32 s22, s22, s23\ns_load_dword s99, s[{P['dsk']}:{P['dsk']+1}], s22")
a("s_lshl_b32 s23, s23, 3\ns_waitcnt lgkmcnt(0)\ns_lshr_b32 s99, s99, s23\ns_and_b32 s99, s99, 0xffff\nv_mov_b32 v147, s99")
a("s_mov_b32 s69, s96\ns_mov_b32 s10, s97\ns_mov_b32 s13, s98\ns_branch L_ld_wait")

G2H = [16, 32, 48, 224]; G2W = [164, 184, 204, 144]; AC2 = 64
K0 = [0, 13, 26, 40, 54]
def g2_setup():
    a(tile_rc(30, 31, 29))
    a(f"s_mul_i32 s28, {WV}, 7168")
    a(f"s_mul_i32 s27, s30, {4*55296}\ns_add_u32 s27, s27, s28\ns_add_u32 s27, s27, {HF}")
    for i in range(4):
        a(f"s_add_u32 s29, {WV}, {i}\ns_and_b32 s29, s29, 3\ns_mul_i32 s29, s29, 55296\ns_add_u32 s{18+i}, s27, s29")
    a(f"s_mul_i32 s22, s31, {5*55296}\ns_add_u32 s22, s22, s28\ns_add_u32 s22, s22, {W2F}")
    for i in range(1, 5): a(f"s_add_u32 s{22+i}, s22, {55296*i}")
    a(f"s_lshl_b32 s27, s30, 6\ns_lshl_b32 s29, {WV}, 4\ns_add_u32 s27, s27, s29\ns_mul_i32 s27, s27, 1280\ns_mul_i32 s29, s31, 160\ns_add_u32 s27, s27, s29")
    masks = []
    for w in range(4):
        c0, c1 = (7*w)//3, min(26, 7*w+6)//3
        m = ((1 << (c1-c0+1)) - 1) << c0
        masks.append(m | (m << 11))
    a(f"s_mov_b32 s28, {hex(masks[0])}\ns_cmp_eq_u32 {WV}, 1\ns_cselect_b32 s28, {hex(masks[1])}, s28\ns_cmp_eq_u32 {WV}, 2\ns_cselect_b32 s28, {hex(masks[2])}, s28\ns_cmp_eq_u32 {WV}, 3\ns_cselect_b32 s28, {hex(masks[3])}, s28")
    a(f"v_lshlrev_b32 v252, 4, v0\ns_cmp_eq_u32 {WV}, 3\ns_cselect_b32 s30, {OOB}, 0\nv_add_u32 v253, s30, v252")
    a("v_lshrrev_b32 v255, 4, v0\nv_lshlrev_b32 v255, 3, v255\nv_and_b32 v254, 15, v0\nv_mul_u32_u24 v254, 160, v254\nv_add_u32 v254, v254, v255")
    srd(S_B, P['b2'], 1280)
def ldh(k, o=0, v=252): return [f"buffer_load_dwordx4 {vr(G2H[k]+4*i,4)}, v{v}, {WS}, s{18+i} offen offset:{o}{G2F}" for i in range(4)]
def ldw(k, o=0, v=252): return [f"buffer_load_dwordx4 {vr(G2W[k]+4*i,4)}, v{v}, {WS}, s{22+i} offen offset:{o}{G2F}" for i in range(5)]
OUTV = (8, 9, 13)
def xb_loads():
    for q in range(3):
        a(f"v_add_u32 v10, {64*q}, v0\nv_mul_u32_u24 v11, 6554, v10\nv_lshrrev_b32 v11, 16, v11\nv_mul_u32_u24 v11, 1120, v11\nv_lshl_add_u32 v{OUTV[q]}, v10, 4, v11")
    a(f"v_cmp_gt_u32 vcc, 32, v0\nv_mov_b32 v10, {OOB}\nv_cndmask_b32 v13, v10, v13, vcc\ns_mul_i32 s10, {WV}, {AREG}")
    for q in range(3): a(f"s_add_u32 m0, s10, {15360+1024*q}\nbuffer_load_dwordx4 v{OUTV[q]}, {SA}, s27 offen lds")
    a(f"s_add_u32 m0, s10, {18432}\ns_mov_b64 exec, 0x3ff\nbuffer_load_dwordx4 v252, {SB}, s29 offen lds\ns_mov_b64 exec, -1")
    a("v_add_u32 v2, s10, v254\nv_add_u32 v3, s10, v255")
off = lambda t: 1024*t if t < 7 else 27648 + 1024*(t-7)
w_pre = ldw(0, 0) + ldw(1, 1024) + ldw(2, 2048) + ldw(3, 3072)

a("L_comp:")
ACC = 72; BUF = [16, 44]; SF = 172
g2_setup()
a("v_and_b32 v13, 31, v0\nv_lshrrev_b32 v14, 5, v0")
a(f"s_lshl_b32 s8, {WV}, 12\nv_lshlrev_b32 v15, 7, v13\nv_add_u32 v15, s8, v15")
a("v_bfe_u32 v7, v0, 1, 3\nv_xor_b32 v7, v7, v14")
for ks in range(4): a(f"v_xor_b32 v1, {2*ks}, v7\nv_lshl_add_u32 v{2+ks}, v1, 4, v15")
a("v_bfe_u32 v1, v0, 2, 2\nv_lshl_add_u32 v1, v14, 3, v1\nv_mul_u32_u24 v1, 384, v1")
a("v_bfe_u32 v7, v0, 4, 1\nv_lshl_add_u32 v1, v7, 5, v1\nv_and_b32 v7, 3, v0\nv_lshl_add_u32 v1, v7, 3, v1\nv_add_u32 v1, 16384, v1")
a("v_bfe_u32 v7, v0, 3, 1\nv_lshlrev_b32 v7, 6, v7\nv_add_u32 v6, v1, v7\nv_sub_u32 v196, v1, v7\nv_mov_b32 v197, v196")
for i in range(5): a(f"v_mov_b32 v{8+i}, v{2+i}")
zero(ACC, 96)
a(f"s_lshl_b32 s11, {WV}, 7\ns_add_u32 s11, s11, {STATL+6144}\nv_lshl_add_u32 v168, v13, 2, s11\nv_mul_u32_u24 v169, 3072, v14\nv_lshl_add_u32 v169, v13, 3, v169\nv_add_u32 v169, {STATL}, v169")
a("v_bfe_u32 v1, v0, 4, 1\nv_mul_u32_u24 v1, 55296, v1\nv_lshl_add_u32 v1, v14, 8, v1\nv_and_b32 v7, 15, v0\nv_lshl_add_u32 v1, v7, 4, v1")
a(f"s_lshl_b32 s8, s9, 3\ns_lshl_b32 s11, {WV}, 1\ns_add_u32 s8, s8, s11\ns_mul_i32 s8, s8, 54\ns_mul_i32 s11, s10, 3\ns_add_u32 s8, s8, s11\ns_lshl_b32 s8, s8, 10\ns_add_u32 s8, s8, {HF}")
a(f"s_lshl_b32 s12, s9, 1\ns_lshr_b32 s11, {WV}, 1\ns_add_u32 s12, s12, s11")
if RS: a(f"s_and_b32 s11, s12, 3\ns_lshl_b32 s11, s11, 6\ns_lshr_b32 s12, s12, 2\ns_add_u32 s12, s12, s11\ns_lshl_b32 s12, s12, 7\ns_add_u32 s12, s12, {MBOX}")
else: a(f"s_and_b32 s11, s12, 7\ns_lshl_b32 s11, s11, 5\ns_lshr_b32 s12, s12, 3\ns_lshl_b32 s12, s12, 1\ns_add_u32 s12, s12, s11\ns_lshl_b32 s12, s12, 7\ns_add_u32 s12, s12, {MBOX}")
a(f"s_and_b32 s11, {WV}, 1\ns_mul_i32 s11, s11, 11\ns_add_u32 s11, s11, s10\ns_lshl_b32 s11, 1, s11")
if RS: a("v_lshlrev_b32 v15, 10, v0\nv_mov_b32 v14, s11")
else: a("v_and_b32 v15, 3, v0\nv_lshlrev_b32 v15, 10, v15\nv_bfe_u32 v7, v0, 2, 1\nv_lshl_add_u32 v15, v7, 7, v15\nv_mov_b32 v14, s11")
a(wc_prep.replace("s25", "s69"))
a("s_mov_b32 s15, 0\ns_mov_b32 s3, 0")
def reads(ks, b):
    r = [f"ds_read_b128 {vr(b,4)}, v{8+ks}"]
    for ft in range(6):
        for s in range(2):
            r.append(f"ds_read_b64_tr_b16 {vr(b+4+4*ft+2*s,2)}, v{197 if ft & 1 else 12} offset:{ks*6144 + s*1536 + ft*64}")
    return r
def step(cur, nks, nb, last, first_wait=True):
    R = reads(nks, nb)
    waits = [10, 11, 12, 13, 13, 13]; parts = [R[0:3], R[3:6], R[6:9], R[9:11], R[11:13], [last]]
    for ft in range(6):
        if first_wait: a(f"s_waitcnt lgkmcnt({waits[ft]})")
        a(f"v_mfma_f32_32x32x16_bf16 {vr(ACC+16*ft,16)}, {vr(cur+4+4*ft,4)}, {vr(cur,4)}, {vr(ACC+16*ft,16)}")
        for r in parts[ft]: a(r)
a("s_barrier")
stamp(1)
for r in reads(0, BUF[0]): a(r)
a("L_c_loop:")
step(BUF[0], 1, BUF[1], f"s_add_u32 s15, s15, {STG}\ns_cmp_eq_u32 s15, {NST*STG}\ns_cselect_b32 s15, 0, s15\nv_add_u32 v8, s15, v2")
step(BUF[1], 2, BUF[0], "v_add_u32 v9, s15, v3\nv_add_u32 v10, s15, v4")
step(BUF[0], 3, BUF[1], "v_add_u32 v12, s15, v6\nv_add_u32 v197, s15, v196\ns_waitcnt lgkmcnt(0)\ns_barrier")
step(BUF[1], 0, BUF[0], "v_add_u32 v11, s15, v5\ns_add_u32 s3, s3, 1\ns_cmp_lt_u32 s3, 10\ns_cbranch_scc1 L_c_loop", first_wait=False)
stamp(2)
a("s_setprio 3\nds_read_b32 v170, v168")
for ft in range(6):
    for p in range(2): a(f"ds_read_b64 {vr(SF+4*ft+2*p,2)}, v169 offset:{1536*p+256*ft}")
a("s_waitcnt lgkmcnt(12)")
a("v_xor_b32 v17, 0x8000, v170\nv_and_b32 v19, 0xffff, v17\nv_lshl_or_b32 v16, v19, 16, v19\nv_mov_b32 v18, v16")
a("v_cmp_gt_u32 vcc, 32, v0\nv_cndmask_b32 v17, v19, v17, vcc")
a("v_and_b32 v10, 0xffff0000, v170\nv_rcp_f32 v7, v10\nv_mov_b32 v11, v10\ns_waitcnt lgkmcnt(0)")
for ft in range(6):
    a(f"v_mfma_f32_32x32x16_bf16 {vr(ACC+16*ft,16)}, {vr(SF+4*ft,4)}, v[16:19], {vr(ACC+16*ft,16)}")
    if ft == 0:
        k1c = -2.0 * math.log2(math.e) * math.sqrt(2.0/math.pi); k2c = k1c * 0.044715
        a(f"v_mul_f32 v8, {f32(k1c)}, v7\nv_mul_f32 v12, v7, v7\nv_mul_f32 v12, v12, v7\nv_mul_f32 v12, {f32(k2c)}, v12\nv_mov_b32 v9, v8\nv_mov_b32 v13, v12")
def stA(h):
    A0 = ACC + 8*h; T = 16 + 8*(h % 3)
    return ([f"v_pk_mul_f32 {vr(T+2*p,2)}, {vr(A0+2*p,2)}, {vr(A0+2*p,2)}" for p in range(4)] +
            [f"v_pk_fma_f32 {vr(T+2*p,2)}, {vr(T+2*p,2)}, v[12:13], v[8:9]" for p in range(4)] +
            [f"v_pk_mul_f32 {vr(T+2*p,2)}, {vr(T+2*p,2)}, {vr(A0+2*p,2)}" for p in range(4)])
def stE(h):
    T = 16 + 8*(h % 3); return [f"v_exp_f32 v{T+e}, v{T+e}" for e in range(8)]
def stB(h):
    T = 16 + 8*(h % 3); return [f"v_pk_fma_f32 {vr(T+2*p,2)}, {vr(T+2*p,2)}, v[10:11], v[10:11]" for p in range(4)]
def stR(h):
    T = 16 + 8*(h % 3); return [f"v_rcp_f32 v{T+e}, v{T+e}" for e in range(8)]
def stC(h):
    A0 = ACC + 8*h; T = 16 + 8*(h % 3); pk = 48 + 4*(h % 4)
    return ([f"v_pk_mul_f32 {vr(T+2*p,2)}, {vr(T+2*p,2)}, {vr(A0+2*p,2)}" for p in range(4)] +
            [f"v_cvt_pk_bf16_f32 v{pk+p}, v{T+2*p}, v{T+2*p+1}" for p in range(4)] +
            [f"buffer_store_dwordx4 {vr(pk,4)}, v1, {WS}, s8 offen offset:{(h//2 % 3)*1024 + (h%2)*512} sc1"])
def mix(tr, nt):
    i = 0
    for k, x in enumerate(tr):
        a(x)
        n = (len(nt) * (k+1)) // len(tr)
        while i < n: a(nt[i]); i += 1
for x in stA(0): a(x)
for h in range(12):
    mix(stE(h), (stC(h-1) if h else []))
    if h == 6: a("s_add_u32 s8, s8, 27648")
    if h == opt("eflag", 10): a(f"s_waitcnt vmcnt({h-6})\ns_mov_b64 exec, 0xff\nbuffer_atomic_or v14, v15, {WS}, s12 offen sc1\ns_mov_b64 exec, -1\n" + sld(68, 69))
    for x in stB(h): a(x)
    mix(stR(h), (stA(h+1) if h < 11 else []))
for x in stC(11): a(x)
stamp(4)
def acc_init(z=True):
    for dt in range(5): a(f"ds_read_b64 {vr(224+2*dt,2)}, v2 offset:{15360+32*dt}\nds_read_b64 {vr(234+2*dt,2)}, v3 offset:{18432+32*dt}")
    a("s_waitcnt lgkmcnt(0)")
    for dt in range(5):
        for h in range(2):
            a(f"v_lshlrev_b32 v{AC2+4*dt+2*h}, 16, v{224+2*dt+h}\nv_and_b32 v{AC2+4*dt+2*h+1}, 0xffff0000, v{224+2*dt+h}")
            a(f"v_lshlrev_b32 v10, 16, v{234+2*dt+h}\nv_and_b32 v11, 0xffff0000, v{234+2*dt+h}\nv_pk_add_f32 {vr(AC2+4*dt+2*h,2)}, {vr(AC2+4*dt+2*h,2)}, v[10:11]")
    if z: zero(AC2+20, 60)
a(f"v_mov_b32 v2, {CNT+8}\nv_mov_b32 v3, 1\nds_write_b32 v2, v3")
xb_loads()
a("s_waitcnt lgkmcnt(0)\ns_cmp_lg_u32 s68, 0\ns_cbranch_scc1 L_c_wpre\ns_waitcnt vmcnt(0)\ns_branch L_c_push")
a("L_c_wpre:")
for l in w_pre: a(l)
a("L_c_push:")
zero(AC2+20, 60)
a(f"s_waitcnt vmcnt(20)\ns_mov_b64 exec, 0xff\nbuffer_atomic_or v14, v15, {WS}, s12 offen offset:64 sc1\ns_mov_b64 exec, -1")
a("s_setprio 0\ns_mov_b32 s35, 0")
stamp(5)
acc_init(False)
a("s_cmp_lg_u32 s68, 0\ns_cbranch_scc1 L_g2go")
a("s_branch L_g2w")

a("L_g2:")
g2_setup()
xb_loads()
a("s_waitcnt vmcnt(0)")
acc_init()
a("L_g2w:")
if opt("p1only", 0): endp()
a(wc_prep.replace("s25", "s8"))
if not opt("g2only", 0): spoll(sld(9, 8), "s_cmp_lg_u32 s9, 0", sleep=16)
PK = (8, 10, 12)
a(f"s_cmp_eq_u32 s35, 0\ns_cbranch_scc1 L_g_nopark\ns_mul_i32 s10, {WV}, {AREG}")
for p in range(3):
    for i in range(5): a(f"s_add_u32 m0, s10, {5120*p+1024*i}\ns_add_u32 s13, s{22+i}, {off(PK[p])}\nbuffer_load_dwordx4 v252, {WS}, s13 offen{G2F} lds")
    if opt("thr", 0): a(f"s_waitcnt vmcnt({opt('thr', 0)})")
a("L_g_nopark:")
for n_, l in enumerate(w_pre):
    a(l)
    if opt("thr", 0) and n_ % 5 == 4 and n_ < 19: a(f"s_waitcnt vmcnt({opt('thr', 0)})")
if opt("touch2", 0):
    nt2 = 6 if RS else 3
    a("s_cmp_eq_u32 s35, 0\ns_cbranch_scc1 L_g2go")
    a(f"s_lshl_b32 s8, s{S_XC}, 2\ns_add_u32 s8, s8, s{S_J}\ns_sub_u32 s8, s8, 20\ns_lshl_b32 s8, s8, 2\ns_add_u32 s8, s8, {WV}\ns_cmp_ge_u32 s8, 48\ns_cbranch_scc1 L_g2go")
    if RS: a(f"s_and_b32 s9, s2, 7\ns_mul_i32 s9, s9, 6\ns_add_u32 s8, s8, s9\ns_cmp_ge_u32 s8, 48\ns_cselect_b32 s9, 48, 0\ns_sub_u32 s8, s8, s9\ns_mul_i32 s8, s8, 46080\ns_add_u32 s8, s8, {W2F}")
    else: a(f"s_mul_i32 s9, s{S_XR}, 12\ns_add_u32 s8, s8, s9\ns_cmp_ge_u32 s8, 48\ns_cselect_b32 s9, 48, 0\ns_sub_u32 s8, s8, s9\ns_mul_i32 s8, s8, 23040\ns_mul_i32 s9, s{S_XC}, 1105920\ns_add_u32 s8, s8, s9\ns_add_u32 s8, s8, {W2F}")
    a("v_lshlrev_b32 v4, 7, v0\ns_mov_b32 exec_hi, 0xfffffff")
    for i in range(nt2): a(f"buffer_load_dword v244, v4, {WS}, s8 offen sc1\ns_add_u32 s8, s8, 7680")
    a("s_mov_b32 exec_hi, -1")
a("L_g2go:")
if opt("p1only", 0): endp()
hm_issue = sld(14, S_MB)
a("v_mov_b32 v11, 0")
a(hm_issue)
a(f"s_mul_i32 s10, {WV}, {AREG}\nv_add_u32 v1, s10, v252")
for i in range(1, 4):
    a(f"s_sub_u32 s13, {WV}, {i}\ns_and_b32 s13, s13, 3\ns_mul_i32 s13, s13, {AREG}\ns_add_u32 s13, s13, {5120*(i-1)}\nv_add_u32 v{1+i}, s13, v252")
a("v_lshrrev_b32 v10, 2, v0\nv_lshlrev_b32 v10, 7, v10\nv_bfe_u32 v15, v0, 1, 1\nv_lshl_add_u32 v10, v15, 6, v10\nv_and_b32 v15, 1, v0\nv_lshl_add_u32 v10, v15, 3, v10")
a(f"s_lshl_b32 s13, {WV}, 4\ns_add_u32 s13, s13, {YAT}\nv_add_u32 v5, s13, v10")
a(f"s_mul_i32 s13, {WV}, 2560\ns_add_u32 s13, s13, {BREG0}\nv_add_u32 v6, s13, v254\nv_add_u32 v7, s13, v252")
a(f"v_mov_b32 v14, {CNT}")
srd(S_A, P['out'], 2621440)
if not opt("g2only", 0): spoll(hm_issue, "s_and_b32 s13, s14, s28\ns_cmp_eq_u32 s13, s28", sleep=opt('msleep', 4), issued=True, far=('s_and_b32 s13, s14, 0x3fffff', opt('mfar', 28)))
else: a("s_waitcnt vmcnt(0)")
stamp(6)
for l in ldh(0, 0) + ldh(1, 1024) + ldh(2, 2048): a(l)
a(f"s_add_u32 s15, s{S_MB}, 64")
nld = lambda t: 0 if t > 13 else (4 if (t < 4 or t in PK) else 9)
cur = 0
for t in range(14):
    k = t % 4; nt_ = t + 3; nk = nt_ % 4
    L = []
    if t == 2: a(sld(14, 15))
    if t == 4 and not opt("g2only", 0):
        spoll(sld(14, 15), "s_and_b32 s13, s14, s28\ns_cmp_eq_u32 s13, s28", sleep=2, issued=True)
        stamp(3)
    if nt_ == PK[0]:
        a("s_cmp_lg_u32 s35, 0\ns_cbranch_scc1 L_g_pok\ns_mov_b32 s3, 0")
        a("L_g_pw:")
        a("s_add_u32 s3, s3, 1\ns_cmp_gt_u32 s3, 2000000\ns_cbranch_scc1 L_exit")
        a("ds_read_b32 v10, v14\ns_waitcnt lgkmcnt(0)\nv_readfirstlane_b32 s13, v10\ns_cmp_eq_u32 s13, 0\ns_cbranch_scc1 L_g_pw")
        a("L_g_pok:")
    if nt_ <= 13:
        if off(nt_) - cur > 3072:
            a("\n".join(f"s_add_u32 s{18+i}, s{18+i}, {off(nt_)-cur}" for i in range(9))); cur = off(nt_)
        o = off(nt_) - cur; vv = 253 if nt_ in (6, 13) else 252
        L = ldh(nk, o, vv)
        if nt_ in PK: L += [f"ds_read_b128 {vr(G2W[nk]+4*i,4)}, v1 offset:{5120*PK.index(nt_)+1024*i}" for i in range(5)]
        elif nt_ > 3: L += ldw(nk, o, vv)
    a(f"s_waitcnt vmcnt({nld(t+1)+nld(t+2)})" + (" lgkmcnt(0)" if t in PK else ""))
    if t == 0: stamp(7)
    n = 0
    for i in ((1, 2, 3, 0) if t == 13 else range(4)):
        for dt in range(5):
            acc = AC2 + 4*(5*i+dt)
            a(f"v_mfma_f32_16x16x32_bf16 {vr(acc,4)}, {vr(G2W[k]+4*dt,4)}, {vr(G2H[k]+4*i,4)}, {vr(acc,4)}")
            if n < len(L): a(L[n])
            if t == 13:
                pi = {2: 1, 3: 2, 0: 3}.get(i)
                if pi: a(f"ds_write_b128 v1, {vr(AC2+4*(5*pi+dt),4)} offset:{5120*(pi-1)+1024*dt}")
            n += 1
stamp(8)
a("s_waitcnt lgkmcnt(0)\ns_barrier")
stamp(9)
R_ = 144
for q in range(10): a(f"ds_read_b128 {vr(R_+4*q,4)}, v{2+q//5} offset:{1024*(q%5)}")
for dt in range(5): a(f"ds_read_b64_tr_b16 {vr(16+2*dt,2)}, v5 offset:{2048*dt}")
for q in range(10):
    a(f"s_waitcnt lgkmcnt({14 if q < 5 else 19-q})")
    dt = q % 5
    for h in range(2): a(f"v_pk_add_f32 {vr(AC2+4*dt+2*h,2)}, {vr(AC2+4*dt+2*h,2)}, {vr(R_+4*q+2*h,2)}")
    if q < 5: a(f"ds_read_b128 {vr(R_+40+4*q,4)}, v4 offset:{1024*q}")
for dt in range(5):
    a(f"s_waitcnt lgkmcnt({9-dt})")
    for h in range(2):
        a(f"v_lshlrev_b32 v10, 16, v{16+2*dt+h}\nv_and_b32 v11, 0xffff0000, v{16+2*dt+h}\nv_pk_add_f32 {vr(AC2+4*dt+2*h,2)}, {vr(AC2+4*dt+2*h,2)}, v[10:11]")
a("s_waitcnt lgkmcnt(0)")
for dt in range(5):
    for h in range(2): a(f"v_pk_add_f32 {vr(AC2+4*dt+2*h,2)}, {vr(AC2+4*dt+2*h,2)}, {vr(R_+40+4*dt+2*h,2)}")
    if opt("bias", 0):
        for q_ in range(4): a(f"v_add_f32 v{AC2+4*dt+q_}, {f32(opt('bias', 0)*1e-4)}, v{AC2+4*dt+q_}")
    for h in range(2): a(f"v_cvt_pk_bf16_f32 v{32+2*dt+h}, v{AC2+4*dt+2*h}, v{AC2+4*dt+2*h+1}")
    a(f"ds_write_b64 v6, {vr(32+2*dt,2)} offset:{32*dt}")
for q in range(3): a(f"ds_read_b128 {vr(48+4*q,4)}, v7 offset:{1024*q}")
for q in range(3):
    a(f"s_waitcnt lgkmcnt({2-q})\nbuffer_store_dwordx4 {vr(48+4*q,4)}, v{OUTV[q]}, {SA}, s27 offen")
stamp(10)
endp()

a("L_park:")
if opt("p1only", 0): endp()
a(tile_rc(12, 9, 10))
for i in range(1, 5): a(f"v_add_u32 v{1+i}, {55296*i}, v1")
a(f"s_mul_i32 s12, s9, {5*55296}\ns_add_u32 s12, s12, {W2F}\ns_mov_b32 s10, 0\ns_mov_b32 s3, 0")
spoll(wc_issue, wc_test, sleep=10)
a(f"v_mov_b32 v10, {CNT+8}\ns_mov_b32 s11, 0")
a("L_pk_w:")
a("s_add_u32 s11, s11, 1\ns_cmp_gt_u32 s11, 200000\ns_cbranch_scc1 L_exit\ns_sleep 2")
a("ds_read_b32 v11, v10\ns_waitcnt lgkmcnt(0)\nv_readfirstlane_b32 s13, v11\ns_cmp_eq_u32 s13, 0\ns_cbranch_scc1 L_pk_w")
stamp(11)
a("L_pk_loop:")
for p in range(3):
    a(f"s_add_u32 s13, s12, {off(PK[p])}")
    for i in range(5): a(f"s_add_u32 m0, s10, {5120*p+1024*i}\nbuffer_load_dwordx4 v{1+i}, {WS}, s13 offen{G2F} lds")
a(f"s_add_u32 s12, s12, 7168\ns_add_u32 s10, s10, {AREG}\ns_add_u32 s3, s3, 1\ns_cmp_lt_u32 s3, 4\ns_cbranch_scc1 L_pk_loop")
a(f"v_mov_b32 v2, {CNT}\nv_mov_b32 v3, 1\ns_waitcnt vmcnt(0)\nds_write_b32 v2, v3\ns_waitcnt lgkmcnt(0)")
stamp(12)
endp()

a("L_fetch:")
if opt("p1only", 0): endp()
a(tile_rc(8, 9, 10))
a("s_mul_i32 s11, s8, 81920")
a(f"v_mov_b32 v1, 0\ns_lshl_b32 s13, s9, 2\ns_add_u32 s13, s13, s{S_XR}\ns_lshl_b32 s13, s13, 7\ns_add_u32 s13, s13, {YAC}")
spoll(sld(12, 13), "s_cmp_ge_u32 s12, 80", sleep=opt('ysleep', 8), far=('s_cmp_ge_u32 s12, 24', opt('yfar', 32)))
stamp(11)
a(f"s_mul_i32 s10, s9, 10240\ns_add_u32 s11, s11, s10\ns_add_u32 s11, s11, {YA}\nv_lshlrev_b32 v1, 4, v0")
for q in range(10):
    a(f"buffer_load_dwordx4 {vr(16+4*q,4)}, v1, {WS}, s11 offen sc1\ns_add_u32 s11, s11, 1024")
a(f"v_add_u32 v1, {YAT}, v1")
for q in range(10):
    a(f"s_waitcnt vmcnt({9-q})\nds_write_b128 v1, {vr(16+4*q,4)} offset:{1024*q}")
a("s_waitcnt lgkmcnt(0)")
stamp(12)
a("s_barrier")
endp()

c_issue = sld(33, 100)
c_test = "s_cmp_ge_u32 s33, 64"
clr_s = f"s_load_dwordx4 s[28:31], s[{P['dbg']}:{P['dbg']+1}], 0"
a("L_aux:")
a(f"s_sub_u32 s8, s{S_J}, s8\ns_and_b32 s15, {WV}, 3\ns_mov_b32 s35, 0\nv_mov_b32 v230, 0\ns_mov_b32 s71, 0\ns_mul_i32 s69, {WV}, {AREG}")
a(f"s_lshl_b32 s9, s{S_XR}, 4\ns_lshl_b32 s10, s{S_XC}, 3\ns_add_u32 s9, s9, s10\ns_add_u32 s9, s9, s8")
RAW, DV = 164, 64
a("v_and_b32 v238, 3, v0\nv_lshlrev_b32 v238, 2, v238")
a(f"s_cmp_ge_u32 s8, 8\ns_cbranch_scc1 L_nolnwg\ns_cmp_lt_u32 {WV}, 4\ns_cbranch_scc1 L_lnw")
a(f"s_lshl_b32 s{S_CH}, s9, 2\ns_add_u32 s{S_CH}, s{S_CH}, s15\ns_branch L_par")
a("L_nolnwg:")
a(f"s_mul_i32 s10, s{S_XR}, 12\ns_lshl_b32 s11, s{S_XC}, 2\ns_add_u32 s10, s10, s11\ns_add_u32 s10, s10, s8\ns_lshl_b32 s10, s10, 3\ns_add_u32 s10, s10, {WV}\ns_add_u32 s{S_CH}, s10, 192")
a(f"s_lshl_b32 s10, s{S_XC}, 4\ns_add_u32 s10, s10, s8\ns_cmp_lg_u32 s10, 8\ns_cbranch_scc1 L_par")
a(f"s_lshl_b32 s10, s{S_XR}, 15\ns_lshl_b32 s11, {WV}, 12\ns_add_u32 s10, s10, s11\ns_add_u32 s10, s10, {CLR}\nv_lshlrev_b32 v1, 4, v0\ns_mov_b32 s35, 5")
zero(4, 4)
for i in range(4): a(f"buffer_store_dwordx4 v[4:7], v1, {WS}, s10 offen offset:{1024*i} sc1")
a("L_par:")
a(f"s_lshl_b32 s10, s{S_CH}, 8\nv_lshl_add_u32 v1, v0, 2, s10")
for i, nm in enumerate(["are", "aim", "bre", "bim", "cre", "cim"]):
    a(f"global_load_dword v{240+i}, v1, s[{P[nm]}:{P[nm]+1}]{NT1}")
a(f"s_lshl_b32 s10, s{S_CH}, 1\nv_mov_b32 v1, s10\nglobal_load_ushort v246, v1, s[{P['ldt']}:{P['ldt']+1}]")
a(f"global_load_ushort v147, v1, s[{P['dsk']}:{P['dsk']+1}]")
a("s_cmp_lt_u32 s8, 8\ns_cbranch_scc1 L_wrole\ns_cmp_lg_u32 s35, 5\ns_cbranch_scc1 L_cs")
a(f"s_waitcnt vmcnt(8)\ns_barrier\ns_cmp_lg_u32 {WV}, 0\ns_cbranch_scc1 L_cs")
a(f"s_lshl_b32 s10, s{S_XR}, 2\nv_mov_b32 v2, 1\nv_mov_b32 v4, 0\ns_mov_b64 exec, 1\nbuffer_store_dword v2, v4, {DBG}, s10 offen sc1\ns_mov_b64 exec, -1\ns_waitcnt vmcnt(1)")
stamp(1)
a("L_cs:")
a(f"s_mov_b32 s35, 0\ns_sub_u32 s9, s8, 8\ns_lshl_b32 s10, s{S_XR}, 2\ns_lshl_b32 s10, s10, s{S_XC}\ns_add_u32 s9, s9, s10")
a(f"s_cmp_eq_u32 s{S_XC}, 0\ns_cselect_b32 s10, 8, 3\ns_movk_i32 s11, 120\ns_mul_i32 s9, s9, s10\ns_add_u32 s9, s9, {WV}\ns_cmp_ge_u32 {WV}, s10\ns_cbranch_scc1 L_kgen\ns_cmp_ge_u32 s9, s11\ns_cbranch_scc1 L_kgen")
a(f"s_and_b32 s15, s9, 3\ns_lshr_b32 s9, s9, 2\ns_mul_i32 s10, s{S_XC}, 30\ns_add_u32 s9, s9, s10")
a("s_mul_i32 s12, s15, 552960\ns_lshl_b32 s11, s9, 6\ns_add_u32 s71, s12, s11")
a(f"v_and_b32 v4, 31, v0\nv_lshlrev_b32 v4, 1, v4\nv_add_u32 v4, s11, v4\nglobal_load_ushort v145, v4, s[{P['b1']}:{P['b1']+1}]")
a("v_lshrrev_b32 v2, 2, v0\nv_and_b32 v3, 3, v0\nv_mul_u32_u24 v1, 3456, v2\nv_lshl_add_u32 v230, v3, 4, v1\ns_mov_b32 s35, 2\ns_branch L_kgen")
a("L_wrole:")
W2R = lambda i: (RAW + 4*i) if i < 10 else (148 + 4*(i-10))
a("s_barrier")
srd(S_B, P['w2'], 2211840)
a("v_lshrrev_b32 v8, 3, v0\nv_mul_u32_u24 v8, 1280, v8\nv_and_b32 v9, 7, v0\nv_lshl_add_u32 v8, v9, 4, v8\ns_lshl_b32 s8, s9, 2\ns_add_u32 s8, s8, s15")
for u_ in range(3):
    a(f"s_add_u32 s10, s8, {256*u_}\ns_mul_i32 s11, s10, 6554\ns_lshr_b32 s11, s11, 16\ns_mul_i32 s70, s11, 10\ns_sub_u32 s70, s10, s70")
    a(f"s_mul_i32 s13, s11, 40960\ns_lshl_b32 s71, s70, 7\ns_add_u32 s13, s13, s71\ns_mul_i32 s71, s70, 216\ns_mul_i32 s70, s11, 43\ns_lshr_b32 s70, s70, 8\ns_mul_i32 s70, s70, 3\ns_sub_u32 s11, s11, s70\ns_sub_u32 s70, s11, s70\ns_cmp_ge_u32 s70, 3\ns_cselect_b32 s70, 24, 0\ns_add_u32 s11, s11, s70\ns_add_u32 s71, s71, s11\ns_lshl_b32 s71, s71, 10\ns_add_u32 s{96+u_}, s71, {W2F}")
    if u_ == 2: a(f"s_cmp_lt_u32 s10, 540\ns_cselect_b32 s13, s13, {OOB}\ns_cselect_b32 s98, s98, {OOB}")
    for q in range(4): a(f"buffer_load_dwordx4 {vr(W2R(4*u_+q),4)}, v8, {SB}, s13 offen{NT1}\ns_add_u32 s13, s13, 10240")
a("s_mov_b32 s35, 1")
a("L_kgen:")
a("s_mov_b32 s68, 0\ns_mov_b32 m0, s69")
a(lnc_addr)
a(f"s_mov_b32 s101, 0\nv_mov_b32 v146, 0\nv_mov_b32 v253, 0\ns_cmp_lt_u32 {WV}, 4\ns_cbranch_scc1 L_kg_nocs")
conv_setup()
a("L_kg_nocs:")
a("v_and_b32 v2, 31, v0\nv_mul_u32_u24 v2, 272, v2\nv_lshrrev_b32 v3, 5, v0\nv_lshl_add_u32 v2, v3, 4, v2\nv_add_u32 v228, s69, v2")
KA = 208
zero(KA, 16)
a("s_mov_b32 s3, 0\ns_cmp_eq_u32 s35, 1\ns_cbranch_scc1 L_kw12\ns_waitcnt vmcnt(1)")
a("L_kw12:")
a("s_waitcnt vmcnt(12)")
stamp(3)
a(f"v_lshlrev_b32 v3, 16, v246\nv_mul_f32 v3, {f32(math.log2(math.e))}, v3\nv_exp_f32 v3, v3\nv_cvt_pk_bf16_f32 v3, v3, v3\nv_lshlrev_b32 v229, 16, v3")
a("s_cmp_eq_u32 s35, 1\ns_cbranch_scc1 L_w2mid")
a("L_kg_loop:")
for i in range(6): a(f"v_and_b32 v{4+i}, 0xffff0000, v{240+i}\nv_lshlrev_b32 v{240+i}, 16, v{240+i}")
for i in range(4): a(f"v_mul_f32 v{4+i}, v229, v{4+i}")
a(f"v_mul_f32 v4, {f32(math.log2(math.e))}, v4\nv_mul_f32 v5, {f32(1/(2*math.pi))}, v5")
Z1, Z8, Z256, W = 10, 12, 14, 16
for k, z in ((1, Z1), (8, Z8), (256, Z256)):
    a(f"v_mul_f32 v20, {f32(k)}, v4\nv_mul_f32 v21, {f32(k)}, v5\nv_fract_f32 v21, v21\nv_exp_f32 v20, v20\nv_cos_f32 v{z}, v21\nv_sin_f32 v{z+1}, v21")
    neg = " neg_hi:[0,1]" if k == 8 else ""
    a(f"v_pk_mul_f32 {vr(z,2)}, {vr(z,2)}, v[20:21] op_sel:[0,0] op_sel_hi:[1,0]{neg}")
cmul(W, 8, 6, 20)
rowof = {}
h0 = [[0,1,2,3],[4,5,6,7],[1024,1032,1280,1288],[1536,1544,1792,1800]]
h1 = [[256,258,260,262],[264],[512,516,520],[768,772,776]]
for q in range(4):
    for i, v in enumerate(h0[q]): rowof[v] = 8*q + i
    for i, v in enumerate(h1[q]): rowof[v] = 8*q + 4 + i
cv = [0]
def put(src, row):
    t = 24 + (cv[0] % 4); cv[0] += 1
    a(f"v_cvt_pk_bf16_f32 v{t}, v{src}, v{src+1}\nds_write_addtid_b32 v{t} offset:{row*272}")
G = {0: W}
opsG = [lambda: put(W, rowof[0])]
for b in range(1, 9):
    G[b] = 32 + 2*b
    opsG.append(lambda b=b: (cmul(G[b], G[b-1], Z1, 20), put(G[b], rowof[b]) if b < 8 else None))
Pq = {1: Z256}
for q in range(1, 8):
    if q > 1:
        Pq[q] = 52 + 2*(q & 1)
        opsG.append(lambda q=q: cmul(Pq[q], Pq[q-1], Z256, 20))
    ds = {1: (0,2,4,6,8), 2: (0,4,8), 3: (0,4,8)}.get(q, (0, 8))
    for n, d in enumerate(ds):
        opsG.append(lambda q=q, d=d, n=n: (cmul(56+2*(n&1), G[d], Pq[q], 20), put(56+2*(n&1), rowof[256*q+d])))
opsE = [lambda: a(f"v_mov_b32 v28, 0x3f80\nds_write_addtid_b32 v28 offset:{32*272}"), lambda: put(Z8, 33)]
for j in range(2, 32):
    src = Z8 if j == 2 else 60 + 2*((j-1) & 1)
    dst = 60 + 2*(j & 1)
    opsE.append(lambda src=src, dst=dst, j=j: (cmul(dst, src, Z8, 22), put(dst, 32+j)))
for i in range(max(len(opsG), len(opsE))):
    if i < len(opsE): opsE[i]()
    if i < len(opsG): opsG[i]()
    if i < 10:
        a(f"s_cmp_lg_u32 s35, 2\ns_cbranch_scc1 L_kg_nl{i}\nbuffer_load_dwordx4 {vr(RAW+4*i,4)}, v230, {SB}, s71 offen{NT}\ns_add_u32 s71, s71, 55296")
        a(f"L_kg_nl{i}:")
    if i == 12 and opt("eu", 1):
        a(f"s_lshl_b32 s10, s3, 2\ns_and_b32 s10, s10, {WV}\ns_cbranch_scc1 L_eu0")
        a("L_kg_ne1:")
    if i == 31 and opt("eu", 1):
        a("s_cmp_eq_u32 s68, 1\ns_cbranch_scc1 L_eu")
        a("L_kg_ne2:")
    if i == opt("wsig", 14):
        a("s_cmp_eq_u32 s35, 6\ns_cbranch_scc1 L_w2sig")
        a("L_kg_nsig:")
a("s_waitcnt lgkmcnt(0)")
for k in range(8):
    a(f"ds_read_b128 {vr(64+8*k,4)}, v228 offset:{32*k}\nds_read_b128 {vr(68+8*k,4)}, v228 offset:{32*272+32*k}")
for k in range(8):
    a(f"s_waitcnt lgkmcnt({14-2*k})")
    a(f"v_mfma_f32_32x32x16_bf16 {vr(KA,16)}, {vr(64+8*k,4)}, {vr(68+8*k,4)}, {vr(KA,16)}")
a("s_cmp_lg_u32 s3, 0\ns_cbranch_scc1 L_kg_done")
a(clr_s)
a("s_mov_b32 s3, 1\ns_cmp_lg_u32 s35, 2\ns_cbranch_scc1 L_kg_loop\ns_branch L_csum")
a("L_eu0:")
a("s_waitcnt lgkmcnt(0)\ns_and_b32 s10, s28, s29\ns_and_b32 s11, s30, s31\ns_and_b32 s10, s10, s11\ns_cselect_b32 s35, 4, s35\ns_cmp_lt_u32 s35, 4\ns_cbranch_scc1 L_kg_ne1")
a(c_issue)
a("s_mov_b32 s68, 1\ns_branch L_kg_ne1")
a("L_eu:")
a("s_mov_b32 s68, 0\ns_waitcnt lgkmcnt(0)")
a(c_test)
a("s_cbranch_scc0 L_kg_ne2")
uloads()
a("s_mov_b32 s68, 2\ns_branch L_kg_ne2")
def need_clr(tag):
    a(f"s_waitcnt lgkmcnt(0)\ns_and_b32 s28, s28, s29\ns_and_b32 s30, s30, s31\ns_and_b32 s28, s28, s30\ns_cbranch_scc1 L_clr_{tag}")
    poll(clr_issue(239, 238), clr_test(239), sleep=8, issued=False)
    a(f"L_clr_{tag}:")
def touch():
    if not opt("touch", 0): return
    n = 270 if RS else 135
    a(f"s_and_b32 s10, s8, 7\ns_lshl_b32 s10, s10, 3\ns_add_u32 s10, s10, {WV}")
    if RS: a(f"s_and_b32 s11, s2, 7\ns_lshl_b32 s11, s11, 3\ns_add_u32 s10, s10, s11\ns_and_b32 s10, s10, 63\ns_mul_i32 s10, s10, {n*128}")
    else: a(f"s_lshl_b32 s11, s{S_XR}, 4\ns_add_u32 s10, s10, s11\ns_and_b32 s10, s10, 63\ns_mul_i32 s10, s10, {n*128}\ns_mul_i32 s11, s{S_XC}, 1105920\ns_add_u32 s10, s10, s11")
    a(f"s_add_u32 s10, s10, {W2F}\nv_lshlrev_b32 v4, 7, v0")
    for i in range(n // 64): a(f"buffer_load_dword v144, v4, {WS}, s10 offen sc1\ns_add_u32 s10, s10, 8192")
    a(few((1 << (n % 64)) - 1, f"buffer_load_dword v144, v4, {WS}, s10 offen sc1"))
def lds_wait(tag, target):
    a("s_mov_b32 s12, 0")
    a(f"L_sb{tag}:")
    a("s_add_u32 s12, s12, 1\ns_cmp_gt_u32 s12, 2000000\ns_cbranch_scc1 L_exit")
    a(f"ds_read_b32 v15, v14\ns_waitcnt lgkmcnt(0)\nv_readfirstlane_b32 s11, v15\ns_cmp_lt_u32 s11, {target}\ns_cbranch_scc1 L_sb{tag}")
a("L_lnw:")
a("s_lshl_b32 s10, s9, 5\ns_lshl_b32 s11, s15, 3\ns_add_u32 s14, s10, s11\ns_mul_i32 s11, s14, 1280")
a("v_lshrrev_b32 v2, 4, v0\nv_and_b32 v3, 15, v0\nv_mul_u32_u24 v1, 2560, v2\nv_lshl_add_u32 v1, v3, 4, v1")
for sg in range(2):
    for i in range(5):
        a(f"buffer_load_dwordx4 {vr(RAW+20*sg+4*i,4)}, v1, {SA}, s11 offen offset:{sg*1280+i*256}{NT}")
a(f"v_mov_b32 v4, {CNT}\nv_mov_b32 v6, 0\nv_mov_b32 v7, 0\nds_write_b64 v4, v[6:7]\ns_waitcnt lgkmcnt(0)\ns_barrier")
a("s_lshl_b32 s11, s15, 4\nv_lshlrev_b32 v8, 2, v2\nv_add_u32 v8, s11, v8")
for i in range(5):
    a(f"v_add_u32 v4, {16*i}, v3\nv_mul_u32_u24 v5, 3277, v4\nv_lshrrev_b32 v5, 16, v5\nv_mul_u32_u24 v5, {BREG-20*528}, v5\nv_mul_u32_u24 v4, 528, v4\nv_add3_u32 v{150+i}, v4, v5, v8")
a(f"s_setprio 2\nv_mov_b32 v14, {CNT}\nv_lshrrev_b32 v2, 4, v0\ns_mov_b32 s12, 0x3f803f80")
zero(4, 4)
a("s_waitcnt vmcnt(0)")
stamp(1)
a(clr_s)
for sg in range(2):
    for k in range(20):
        a(f"v_dot2_f32_bf16 v{4+2*sg+(k&1)}, v{RAW+20*sg+k}, s12, v{4+2*sg+(k&1)}")
a("v_add_f32 v4, v4, v5\nv_add_f32 v6, v6, v7")
def unp(sg, ks):
    for k in ks:
        d = DV + 40*sg + 2*k
        a(f"v_lshlrev_b32 v{d}, 16, v{RAW+20*sg+k}\nv_and_b32 v{d+1}, 0xffff0000, v{RAW+20*sg+k}")
for n, sh in enumerate((8, 4, 2, 1)):
    a(f"v_add_f32_dpp v4, v4, v4 row_ror:{sh} row_mask:0xf bank_mask:0xf\nv_add_f32_dpp v6, v6, v6 row_ror:{sh} row_mask:0xf bank_mask:0xf")
    unp(0, range(5*n, 5*n+5))
a(f"v_mul_f32 v4, {f32(1/640)}, v4\nv_mul_f32 v6, {f32(1/640)}, v6")
a("v_cvt_pk_bf16_f32 v5, v4, v6\nv_lshlrev_b32 v8, 16, v5\nv_and_b32 v9, 0xffff0000, v5")
a("v_sub_f32 v56, 0, v8\nv_sub_f32 v57, 0, v8\nv_sub_f32 v58, 0, v9\nv_sub_f32 v59, 0, v9")
zero(10, 4)
unp(1, range(20))
for sg in range(2):
    for k in range(20):
        d = DV + 40*sg + 2*k
        a(f"v_pk_add_f32 {vr(d,2)}, {vr(d,2)}, {vr(56+2*sg,2)}")
    for k in range(20):
        d = DV + 40*sg + 2*k
        a(f"v_pk_fma_f32 {vr(10+2*sg,2)}, {vr(d,2)}, {vr(d,2)}, {vr(10+2*sg,2)}")
a("v_add_f32 v10, v10, v11\nv_add_f32 v12, v12, v13")
def rnd(sg, ks):
    for k in ks:
        d = DV + 40*sg + 2*k
        a(f"v_cvt_pk_bf16_f32 v{RAW+20*sg+k}, v{d}, v{d+1}")
for n, sh in enumerate((8, 4, 2, 1)):
    a(f"v_add_f32_dpp v10, v10, v10 row_ror:{sh} row_mask:0xf bank_mask:0xf\nv_add_f32_dpp v12, v12, v12 row_ror:{sh} row_mask:0xf bank_mask:0xf")
    rnd(0, range(2*n, 2*n+2))
a("v_sub_f32 v4, v4, v8\nv_sub_f32 v6, v6, v9\nv_mul_f32 v4, v4, v4\nv_mul_f32 v6, v6, v6")
a(f"s_mov_b32 s12, {f32(1/640)}\nv_fma_f32 v4, v10, s12, -v4\nv_fma_f32 v6, v12, s12, -v6")
a("v_max_f32 v4, 0, v4\nv_max_f32 v6, 0, v6")
a("v_cvt_pk_bf16_f32 v7, v4, v6\nv_lshlrev_b32 v4, 16, v7\nv_and_b32 v6, 0xffff0000, v7")
a(f"v_add_f32 v4, {f32(1e-5)}, v4\nv_add_f32 v6, {f32(1e-5)}, v6")
a("v_cvt_pk_bf16_f32 v7, v4, v6\nv_lshlrev_b32 v4, 16, v7\nv_and_b32 v6, 0xffff0000, v7")
a("v_sqrt_f32 v4, v4\nv_sqrt_f32 v6, v6\nv_cvt_pk_bf16_f32 v7, v4, v6")
a("v_lshlrev_b32 v4, 16, v7\nv_and_b32 v6, 0xffff0000, v7\nv_rcp_f32 v60, v4\nv_rcp_f32 v61, v4\nv_rcp_f32 v62, v6\nv_rcp_f32 v63, v6")
a("v_and_b32 v12, 0xffff, v5\nv_or_b32 v12, v12, v4\nv_lshrrev_b32 v13, 16, v5\nv_or_b32 v13, v13, v6")
a(f"s_lshl_b32 s11, s14, 2\ns_add_u32 s11, s11, {STATS}\nv_lshlrev_b32 v1, 3, v2")
need_clr("ln")
a(f"s_mov_b32 exec_lo, 0x10001\ns_mov_b32 exec_hi, 0x10001\nbuffer_store_dwordx2 v[12:13], v1, {WS}, s11 offen sc1\ns_mov_b64 exec, -1")
stamp(2)
rnd(0, range(8, 20)); rnd(1, range(20))
unp(0, range(20)); unp(1, range(20))
for sg in range(2):
    for k in range(20):
        d = DV + 40*sg + 2*k
        a(f"v_pk_mul_f32 {vr(d,2)}, {vr(d,2)}, {vr(60+2*sg,2)}")
for k in range(20):
    for h in range(2):
        d = DV + 2*k + h
        a(f"v_cvt_pk_bf16_f32 v{d}, v{d}, v{d+40}")
    d = DV + 2*k
    a(f"ds_write2_b32 v{150+k//4}, v{d}, v{d+1} offset0:{(k%4)*32} offset1:{(k%4)*32+16}")
a("v_mov_b32 v15, 1\nds_add_u32 v14, v15")
a("v_lshrrev_b32 v3, 5, v0\nv_lshlrev_b32 v2, 4, v0\nv_lshl_add_u32 v1, v3, 4, v2\nv_add_u32 v1, s69, v1")
a("s_mul_i32 s10, s9, 40960\ns_mul_i32 s11, s15, 10240\ns_add_u32 s10, s10, s11")
lds_wait("b", 256)
for i in range(10): a(f"ds_read_b128 {vr(RAW+4*i,4)}, v1 offset:{1056*i}")
for i in range(10):
    a(f"s_waitcnt lgkmcnt({9-i})\nbuffer_store_dwordx4 {vr(RAW+4*i,4)}, v2, {WS}, s10 offen sc1\ns_add_u32 s10, s10, 1024")
a(f"s_lshl_b32 s10, s15, 11\ns_add_u32 s10, s10, {LNC}\nv_lshlrev_b32 v4, 7, v0\nv_mov_b32 v5, 1")
a(f"s_waitcnt vmcnt(0)\ns_mov_b64 exec, 0xffff\nbuffer_atomic_add v5, v4, {WS}, s10 offen sc1\ns_mov_b64 exec, -1\ns_setprio 0")
stamp(4)
a("s_lshl_b32 s8, s9, 2\ns_add_u32 s8, s8, s15")
a("s_cmp_lg_u32 s8, 255\ns_cbranch_scc1 L_norelay")
a(f"v_lshlrev_b32 v6, 6, v0\ns_mov_b32 s8, {W2C}")
poll(few(3, f"buffer_load_dword v7, v6, {DBG}, 0 offen offset:128 sc1"),
     "v_readlane_b32 s9, v7, 0\nv_readlane_b32 s10, v7, 1\ns_add_u32 s9, s9, s10\ns_cmp_ge_u32 s9, 64", sleep=4, issued=False)
stamp(11)
a(f"s_mov_b32 exec_hi, 0\nbuffer_store_dword v5, v4, {WS}, s8 offen offset:1024 sc1\ns_mov_b32 exec_hi, -1")
a("L_norelay:")
a("s_mov_b32 s35, 1\ns_branch L_g2")
a("L_csum:")
a("s_setprio 3\ns_mov_b32 s12, 0x00003f80\ns_mov_b32 s13, 0x3f800000\nv_and_b32 v3, 3, v0")
zero(4, 8)
a("s_waitcnt vmcnt(0)")
for i in range(10):
    for k in range(4):
        a(f"v_dot2_f32_bf16 v{4+2*k}, v{RAW+4*i+k}, s12, v{4+2*k}\nv_dot2_f32_bf16 v{5+2*k}, v{RAW+4*i+k}, s13, v{5+2*k}")
for sh in (8, 4):
    for r in range(8): a(f"v_add_f32_dpp v{4+r}, v{4+r}, v{4+r} row_ror:{sh} row_mask:0xf bank_mask:0xf")
a("v_lshrrev_b32 v12, 4, v0\nv_lshlrev_b32 v12, 7, v12\nv_lshl_add_u32 v12, v3, 5, v12\nv_add_u32 v12, s69, v12")
a("ds_write_b128 v12, v[4:7]\nds_write_b128 v12, v[8:11] offset:16")
a("v_and_b32 v12, 31, v0\nv_lshl_add_u32 v13, v12, 2, s69")
for p in range(4): a(f"ds_read_b32 v{16+p}, v13 offset:{128*p}")
a("s_waitcnt lgkmcnt(0)\nv_add_f32 v16, v16, v17\nv_add_f32 v18, v18, v19\nv_add_f32 v16, v16, v18")
a("v_cvt_pk_bf16_f32 v4, v16, v16\nv_lshlrev_b32 v5, 16, v4\nv_sub_f32 v5, v16, v5")
a("v_cvt_pk_bf16_f32 v6, v16, v5\nv_and_b32 v7, 0xffff0000, v6\nv_sub_f32 v7, v5, v7")
a("v_cvt_pk_bf16_f32 v7, v7, v7\nv_and_b32 v7, 0xffff, v7\nv_or_b32 v7, 1, v7")
a(f"s_lshl_b32 s12, s9, 8\ns_mul_i32 s13, s15, {CSP}\ns_add_u32 s12, s12, s13\ns_add_u32 s12, s12, {CSUM}\nv_lshlrev_b32 v12, 3, v12")
need_clr("cs")
a("v_lshl_or_b32 v7, v145, 16, v7")
a(f"s_mov_b32 exec_hi, 0\nbuffer_store_dwordx2 v[6:7], v12, {WS}, s12 offen sc1\ns_mov_b32 exec_hi, -1")
stamp(2)
a("s_setprio 0\ns_mov_b32 s35, 4\ns_branch L_kg_loop")
a("L_w2mid:")
a("s_setprio 3")
a("v_lshlrev_b32 v2, 4, v0\ns_waitcnt vmcnt(0)")
for i in range(12): a(f"ds_write_b128 v{cLIN}, {vr(W2R(i),4)} offset:{1024*i}")
a("v_lshrrev_b32 v6, 5, v0\nv_bfe_u32 v7, v0, 4, 1\nv_lshlrev_b32 v6, 4, v6\nv_lshl_add_u32 v6, v7, 2, v6\nv_bfe_u32 v7, v0, 2, 2\nv_add_u32 v6, v6, v7")
a("v_lshlrev_b32 v6, 7, v6\nv_and_b32 v7, 3, v0\nv_lshl_add_u32 v6, v7, 3, v6\nv_add_u32 v6, s69, v6")
for u_ in range(3):
    for dt in range(4):
        for h in range(2): a(f"ds_read_b64_tr_b16 {vr(W2R(4*u_+dt)+2*h,2)}, v6 offset:{4096*u_+1024*h+32*dt}")
    for dt in range(4):
        a(f"s_waitcnt lgkmcnt({6-2*dt})\nbuffer_store_dwordx4 {vr(W2R(4*u_+dt),4)}, v2, {WS}, s{96+u_} offen sc1\ns_add_u32 s{96+u_}, s{96+u_}, 55296")
a("s_setprio 2\ns_mov_b32 s35, 6\ns_branch L_kg_loop")
a("L_w2sig:")
a(f"v_mov_b32 v4, {CNT+4}\nv_mov_b32 v5, 1\nv_mov_b32 v6, 0\ns_waitcnt vmcnt(0)\ns_mov_b64 exec, 1\nds_add_rtn_u32 v7, v4, v5\ns_waitcnt lgkmcnt(0)\nv_readfirstlane_b32 s10, v7")
a(f"s_and_b32 s11, s9, 1\ns_lshl_b32 s11, s11, 6\ns_add_u32 s11, s11, 128\ns_cmp_eq_u32 s10, 3\ns_cselect_b32 s11, s11, {OOB}\nbuffer_atomic_add v5, v6, {DBG}, s11 offen sc1\ns_mov_b64 exec, -1")
stamp(2)
a(f"s_setprio {opt('wprio', 1)}\ns_mov_b32 s35, 0\ns_branch L_kg_nsig")
a("L_kg_done:")
a("s_waitcnt vmcnt(4)")
a("s_cmp_ge_u32 s35, 3\ns_cbranch_scc1 L_clr_fin")
a(clr_s)
need_clr("fin")
a(f"s_waitcnt lgkmcnt(0)\ns_cmp_lt_u32 {WV}, 4\ns_cbranch_scc1 L_kg_nc\ns_cmp_eq_u32 s68, 2\ns_cbranch_scc1 L_kg_nc\ns_waitcnt vmcnt(0)")
a(c_issue)
a("L_kg_nc:")
a("s_nop 7")
stamp(4)
a(f"s_setprio {opt('pprio', 2)}")
r = lambda i: KA + i
a("v_lshlrev_b32 v1, 4, v0\nv_add_u32 v13, s69, v1")
zero(4, 4)
for i in range(3): a(f"ds_write_b128 v13, v[4:7] offset:{SCR+1024*i}")
a("v_and_b32 v3, 31, v0\nv_lshlrev_b32 v2, 4, v3\nv_sub_u32 v2, s69, v2\nv_add_u32 v2, 512, v2")
def pack(o, pairs):
    for i, (lo, hi) in enumerate(pairs): a(f"v_cvt_pk_bf16_f32 v{o+i}, {lo}, {hi}")
R = lambda i: f"v{KA+i}"
pack(16, [(R(7),R(6)),(R(5),R(4)),(R(3),R(2)),(R(1),R(0))])
pack(20, [(R(4),R(3)),(R(2),R(2)),(R(2),R(1)),(R(0),R(0))])
pack(24, [("0","0"),(R(9),R(9)),(R(9),R(8)),(R(8),R(8))])
pack(28, [(R(9),R(10)),(R(13),R(14))])
pack(30, [(R(9),R(11)),(R(13),R(15))])
a(f"v_and_b32 v8, 1, v3\nv_and_b32 v10, 30, v3\nv_mul_u32_u24 v9, 320, v8\nv_mul_u32_u24 v8, 640, v8\ns_add_u32 s10, s69, {T2}\nv_sub_u32 v10, s10, v10\nv_add_u32 v8, v8, v10\nv_add_u32 v9, v9, v10")
a("s_mov_b32 exec_hi, 0")
a(f"ds_write_b128 v2, v[16:19] offset:{IMG+1072-512}")
for q in range(4):
    for cp in range(2): a(f"ds_write_b16{'_d16_hi' if q & 1 else ''} v9, v{30+q//2} offset:{T3-T2 + 160*cp + 2*(63-16*q-cp)}")
a("s_mov_b32 exec_hi, -1\ns_mov_b32 exec_lo, 0")
a(f"ds_write_b128 v2, v[20:23] offset:{IMG+560-512}")
for q in range(2):
    for w in range(2):
        for cp in range(2): a(f"ds_write_b16{'_d16_hi' if w else ''} v8, v{28+q} offset:{320*w + 160*cp + 2*(47-16*q-cp)}")
a(f"s_mov_b32 exec_hi, 1\nds_write_b128 v2, v[24:27] offset:{IMG+48-512}\nds_write_b16 v8, v4 offset:{2*47}\nds_write_b16 v8, v4 offset:{160+2*46}\ns_mov_b64 exec, -1")
a(f"s_cmp_lt_u32 {WV}, 4\ns_cbranch_scc1 L_kexp")
a("s_cmp_eq_u32 s68, 2\ns_cbranch_scc1 L_cv_kpart\ns_waitcnt lgkmcnt(0)")
a(c_test)
a("s_cbranch_scc0 L_cv_kpart")
uloads()
a("s_mov_b32 s68, 2")
a("L_cv_kpart:")
B2, B3 = 164, 188
a(f"v_mov_b32 v5, s69\nds_read_u16 v34, v5 offset:{T2 + 6*160 + 2*16}")
a(f"ds_read_b128 v[16:19], v{cLIN} offset:{IMG}\nds_read_b64 v[20:21], v{cLIN} offset:{IMG+16}\nds_read_b128 v[24:27], v{cIMG2} offset:{IMG+1024}\nds_read_b64 v[28:29], v{cIMG2} offset:{IMG+1040}")
for i in range(6):
    for h in range(2): a(f"ds_read2_b32 {vr(B2+4*i+2*h,2)}, v{cT2} offset0:{4*i+2*h} offset1:{4*i+2*h+1}")
for d in range(4):
    for h in range(2): a(f"ds_read2_b32 {vr(B3+4*d+2*h,2)}, v{cT3} offset0:{8*(3-d)+2*h} offset1:{8*(3-d)+2*h+1}")
a("v_lshl_or_b32 v5, v147, 16, v147")
for k in range(4): a(f"v_and_b32 v{AD+k}, v{AD+k}, v5")
a("s_waitcnt lgkmcnt(15)\nv_lshl_or_b32 v5, v34, 16, v34")
for k in range(4): a(f"v_and_b32 v{AB+k}, v{AB+k}, v5")
for rr, (D, va, off) in enumerate(((16, cKW1, 0), (24, cKW2, 4608))):
    O = 64 + 16*rr
    for i in range(4):
        a(f"v_mov_b32 v{O+4*i}, v{D+i}\nv_mov_b32 v{O+4*i+1}, v{D+i+1}")
        a(f"v_alignbit_b32 v{O+4*i+2}, v{D+i+1}, v{D+i}, 16\nv_alignbit_b32 v{O+4*i+3}, v{D+i+2}, v{D+i+1}, 16")
        a(f"ds_write_b128 v{va}, {vr(O+4*i,4)} offset:{off + 16*i}")
a(f"ds_read_b64 {vr(A16,2)}, v{cA0}\nds_read_b64 {vr(A16+2,2)}, v{cA1}")
stamp(5)
a("s_cmp_lg_u32 s101, 0\ns_cbranch_scc1 L_cv_direct")
a("L_cv_upart:")
a(f"s_setprio {opt('pprio', 2)}")
zero(4, 4)
a(f"s_mov_b64 exec, 0x3fffffff\nds_write_b128 v{cLIN}, v[4:7] offset:{UB-480}\ns_mov_b64 exec, 3")
for o in (W3B-48, W5B-48, W7B-48, W9B-48, W9B+2032): a(f"ds_write_b128 v{cLIN}, v[4:7] offset:{o}")
a("s_mov_b64 exec, -1")
a("s_bitcmp1_b32 s68, 1\ns_cbranch_scc1 L_cv_u2")
spoll(c_issue, c_test, sleep=opt("lsleep", 6))
uloads()
a("L_cv_u2:")
stamp(6)
a("s_waitcnt vmcnt(0)")
for q in range(4): a(f"ds_write_b128 v{cLIN}, {vr(148+4*q,4)} offset:{UB+1024*q}")
SET = [(16, 24), (56, 64)]; CA = 96
a(f"v_mov_b32 v13, v{cLIN}\ns_mov_b32 s3, 0")
o = UB - 16
wrd = f"ds_read_b64 v[128:129], v13 offset:{o-8}\nds_read_b128 v[130:133], v13 offset:{o}\nds_read_b64 v[134:135], v13 offset:{o+16}"
a(wrd)
a("s_waitcnt lgkmcnt(0)")
a("L_cv_win:")
D = 128; Pf = 96
for e in range(16):
    a(f"v_lshlrev_b32 v{Pf+e}, 16, v{D+e//2}" if e % 2 == 0 else f"v_and_b32 v{Pf+e}, 0xffff0000, v{D+e//2}")
a(wrd.replace(f"offset:{o-8}", f"offset:{o-8+1024}").replace(f"offset:{o}\n", f"offset:{o+1024}\n").replace(f"offset:{o+16}", f"offset:{o+16+1024}"))
for e in range(1, 16): a(f"v_add_f32 v{Pf+e}, v{Pf+e}, v{Pf+e-1}")
for h, base in ((1, W3B), (2, W5B), (3, W7B), (4, W9B)):
    if h == 3: a("s_cmp_eq_u32 s3, 2\ns_cbranch_scc1 L_cv_wend")
    T = 112
    for i in range(8):
        b = 4+i-h-1
        a(f"v_sub_f32 v{T+i}, v{Pf+4+i+h}, v{Pf+b}" if b >= 0 else f"v_mov_b32 v{T+i}, v{Pf+4+i+h}")
    for i in range(4): a(f"v_cvt_pk_bf16_f32 v{120+4*(h&1)+i}, v{T+2*i}, v{T+2*i+1}")
    a(f"ds_write_b128 v13, {vr(120+4*(h&1),4)} offset:{base-16}")
a("v_add_u32 v13, 1024, v13\ns_add_u32 s3, s3, 1\ns_waitcnt lgkmcnt(4)\ns_branch L_cv_win")
a("L_cv_wend:")
a("s_cmp_lg_u32 s101, 0\ns_cbranch_scc1 L_cv_rk")
a("L_cv_direct:")
a(f"v_add_u32 v8, 2304, v{cA0}\nv_add_u32 v9, 2304, v{cA1}\nv_mov_b32 v10, v{cB}")
def rd(st):
    A_, B_ = SET[st]; Rr = []
    for x in range(2):
        Rr.append(f"ds_read_b64 {vr(A_+4*x,2)}, v8 offset:{2304*(1-x)}")
        Rr.append(f"ds_read_b64 {vr(A_+4*x+2,2)}, v9 offset:{2304*(1-x)}")
    for b in range(8): Rr.append(f"ds_read_b128 {vr(B_+4*b,4)}, v10 offset:{512*b}")
    return Rr
advk = ["v_subrev_u32 v8, 288, v8", "v_subrev_u32 v9, 288, v9", "v_subrev_u32 v10, 64, v10"]
for x in rd(0) + advk: a(x)
a(f"s_setprio {opt('cprio', 2)}\ns_mov_b32 s3, 0\ns_waitcnt lgkmcnt(0)")
if PROF: a("s_cmp_lt_u32 s4, 4\ns_cbranch_scc1 L_ns7")
stamp(7)
if PROF: a("L_ns7:")
def mf(n, A_, B_, c=None): a(f"v_mfma_f32_16x16x32_bf16 {vr(CA+4*n,4)}, {vr(A_,4)}, {vr(B_,4)}, {c if c else vr(CA+4*n,4)}")
for b in range(8): mf(b, AD, SET[0][1]+4*b, "0")
for b in range(6): mf(b+2, A16, SET[0][1]+4*b)
for b in range(4): mf(b+4, AB, SET[0][1]+4*b)
a("L_cv_loop:")
for st in range(2):
    A_, B_ = SET[st]; Rr = rd(1-st); n = 0
    for x in range(2):
        for b in range(8-x):
            mf(x+b, A_+4*x, B_+4*b)
            if n < 6: a(Rr[2*n]); a(Rr[2*n+1])
            elif n < 9: a(advk[n-6])
            if st == 1 and n == 12: a("s_add_u32 s3, s3, 1\ns_cmp_lt_u32 s3, 4")
            n += 1
    a("s_waitcnt lgkmcnt(0)")
a("s_cbranch_scc1 L_cv_loop")
a("L_cv_far:")
for f in range(12):
    for h in range(2): a(f"ds_read_b64_tr_b16 {vr(16+4*f+2*h,2)}, v{cW2} offset:{256*f+128*h}")
    if f == 6: a("s_waitcnt lgkmcnt(8)")
for f in range(4):
    for h in range(2): a(f"ds_read_b64_tr_b16 {vr(64+4*f+2*h,2)}, v{cW3} offset:{512*f+128*h}")
a("s_waitcnt lgkmcnt(8)")
for f in range(12):
    for n in range(2, 8):
        i = f + 8 - 2*n
        if 0 <= i < 6: mf(n, 16+4*f, B2+4*i)
a("s_waitcnt lgkmcnt(0)")
for f in range(4):
    for n in range(4+f, 8): mf(n, 64+4*f, B3+4*(n-f-4))
if PROF: a("s_cmp_lt_u32 s4, 4\ns_cbranch_scc1 L_ns8")
stamp(8)
if PROF: a("L_ns8:")
a(f"s_lshl_b32 s14, s{S_CH}, 7\ns_add_u32 s14, s14, {YA}\ns_nop 7")
for n in range(0, 8, 2):
    o = 16 + 2*n
    a(f"v_cvt_pk_bf16_f32 v{o}, v{CA+4*n}, v{CA+4*n+1}\nv_cvt_pk_bf16_f32 v{o+1}, v{CA+4*n+2}, v{CA+4*n+3}")
    a(f"v_cvt_pk_bf16_f32 v{o+2}, v{CA+4*n+4}, v{CA+4*n+5}\nv_cvt_pk_bf16_f32 v{o+3}, v{CA+4*n+6}, v{CA+4*n+7}")
    a(f"v_permlane16_swap_b32 v{o}, v{o+2}\nv_permlane16_swap_b32 v{o+1}, v{o+3}")
    a(f"buffer_store_dwordx4 {vr(o,4)}, v{cST}, {WS}, s14 offen sc1\ns_add_u32 s14, s14, {8*81920}")
a(f"s_mul_i32 s13, s{S_CH}, 820\ns_lshr_b32 s13, s13, 16\ns_lshl_b32 s14, s13, 9\ns_add_u32 s14, s14, {YAC}\nv_lshlrev_b32 v4, 7, v0\nv_mov_b32 v5, 1")
a(f"s_waitcnt vmcnt(0)\ns_mov_b64 exec, 15\nbuffer_atomic_add v5, v4, {WS}, s14 offen sc1\ns_mov_b64 exec, -1")
a("s_setprio 0")
stamp(9)
a(f"s_cmp_eq_u32 {WV}, 7\ns_cbranch_scc1 L_fetch")
endp()
a("L_kexp:")
for q in range(3): a(f"ds_read_b128 {vr(16+4*q,4)}, v13 offset:{SCR+1024*q}")
a(f"s_lshl_b32 s9, s{S_CH}, 12\ns_add_u32 s9, s9, {KD}")
for q in range(3): a(f"s_waitcnt lgkmcnt({2-q})\nbuffer_store_dwordx4 {vr(16+4*q,4)}, v1, {WS}, s9 offen offset:{1024*q} sc1")
a(f"s_sub_u32 s8, s{S_CH}, 256\ns_lshr_b32 s8, s8, 3\ns_lshl_b32 s8, s8, 2\ns_add_u32 s8, s8, {WV}\ns_cmp_ge_u32 s8, 144\ns_cselect_b32 s12, 1, 0\ns_mul_i32 s9, s12, 144\ns_sub_u32 s8, s8, s9")
a("s_mul_i32 s9, s8, 1821\ns_lshr_b32 s9, s9, 16\ns_mul_i32 s10, s9, 36\ns_sub_u32 s8, s8, s10")
a("s_cmp_ge_u32 s8, 20\ns_cselect_b32 s10, 1, 0\ns_mul_i32 s11, s10, 20\ns_sub_u32 s8, s8, s11\ns_lshl_b32 s8, s8, 3\ns_lshl_b32 s9, s9, 1\ns_add_u32 s8, s8, s9\ns_add_u32 s8, s8, s10")
a(f"s_lshl_b32 s8, s8, 7\ns_add_u32 s8, s8, {MBOX}\ns_lshl_b32 s9, 0x1000000, s12\nv_mov_b32 v4, 0\nv_mov_b32 v5, s9")
a(f"s_waitcnt vmcnt(0)\ns_mov_b64 exec, 1\nbuffer_atomic_or v5, v4, {WS}, s8 offen sc1\ns_mov_b64 exec, -1")
stamp(12)
a("s_setprio 0\ns_mov_b32 s35, 1\ns_branch L_g2")
a("L_cv_rk:")
a("s_bitcmp1_b32 s68, 0\ns_cbranch_scc1 L_cv_k1")
spoll(sld(31, S_MB), "s_and_b32 s13, s31, s101", sleep=6)
kloads()
a("L_cv_k1:")
for q in range(3): a(f"s_waitcnt vmcnt({2-q})\nds_write_b128 v{cLIN}, {vr(32+4*q,4)} offset:{SCR+1024*q}")
stamp(4)
a("s_branch L_cv_kpart")

a("L_end:")
if PROF:
    a(f"s_lshl_b32 s93, s2, 3\ns_add_u32 s93, s93, {WV}\ns_lshl_b32 s93, s93, 6\ns_add_u32 s93, s93, {PROFB}")
    a(f"s_memrealtime s[94:95]\ns_waitcnt lgkmcnt(0)\ns_mov_b32 s87, s94\ns_mov_b32 s72, s{S_SPIN}")
    for i in range(16): a(f"v_mov_b32 v{224+i}, s{72+i}")
    a("v_mov_b32 v255, 0\ns_mov_b64 exec, 1")
    for i in range(4): a(f"buffer_store_dwordx4 {vr(224+4*i,4)}, v255, {WS}, s93 offen offset:{16*i}")
    if opt("dbgmax", 0):
        a(f"v_not_b32 v238, v238\ns_and_b32 s93, {WV}, 3\ns_cmp_lg_u32 s93, 0\ns_cbranch_scc1 L_exit")
        sel0 = {1: 14, 2: 15, 3: 1, 4: 2, 5: 5, 6: 6, 7: 8, 8: 10}
        sel4 = {9: 10, 10: 4, 11: 7, 12: 8, 13: 9}
        a(f"s_cmp_lg_u32 {WV}, 0\ns_cbranch_scc1 L_dbg4")
        for d, i in sel0.items(): a(f"buffer_atomic_umax v{224+i}, v255, {DBG}, 0 offen offset:{4*d} sc1")
        a("s_branch L_exit")
        a("L_dbg4:")
        for d, i in sel4.items(): a(f"buffer_atomic_umax v{224+i}, v255, {DBG}, 0 offen offset:{4*d} sc1")
a("L_exit:")
a("s_endpgm")

hdr = open("cdna_kernels/%s.s.ref" % NAME).read().split("; Override launch")[0]
out = hdr + "; @launch grid=(256,1,1) block=(512,1,1) lds=163840\n"
out += '.amdgcn_target "amdgcn-amd-amdhsa--gfx950"\n.text\n' + a.text()
out += f""".section .rodata,"a"
.p2align 6
.amdhsa_kernel {KN}
  .amdhsa_next_free_vgpr 256
  .amdhsa_next_free_sgpr 102
  .amdhsa_accum_offset 256
  .amdhsa_group_segment_fixed_size 0
  .amdhsa_kernarg_size 136
  .amdhsa_user_sgpr_count 2
  .amdhsa_user_sgpr_kernarg_segment_ptr 1
  .amdhsa_system_sgpr_workgroup_id_x 1
.end_amdhsa_kernel
"""
path = [x for x in sys.argv[1:] if not x.startswith("--")]
open(path[0] if path else "f.s", "w").write(out)
```

```python
import sys, struct, math
sys.path.insert(0, "dev")
from asmlib import Asm, vr, sr

NAME = "parallel_sum__ssm_conv_s4__dense_activation_gelu__prompt"
KN = NAME + "_kernel"
PROF = "--prof" in sys.argv
def opt(name, default):
    for x in sys.argv:
        if x.startswith("--%s=" % name): return int(x.split("=")[1])
    return default
def f32(x): return "0x%08x" % struct.unpack("<I", struct.pack("<f", x))[0]

XNT, KD, YA, W2F = 0x000000, 0x280000, 0x500000, 0x780000
CLR = 0x9A0000
STATS, CSUM, MBOX, LNC, W2C, YAC = CLR, CLR+0x2000, CLR+0x10000, CLR+0x18000, CLR+0x1C000, CLR+0x1A000
CSP = 13824
PROFB, HF = 0x9C0000, 0xA00000
WS_SIZE = 0x1100000
OOB = "0x7f000000"
P = dict(u=16, are=18, aim=20, bre=22, bim=24, cre=26, cim=28, ldt=30, dsk=32, bx=34, w1=36, b1=38, w2=40, b2=42, out=44, dbg=46, ws=48)
S_WS, S_A, S_B, S_DBG = 52, 56, 60, 64
S_WAVE, S_XR, S_XC, S_J, S_SPIN, S_CH = 4, 5, 6, 7, 50, 51
S_MB = 34
WV = f"s{S_WAVE}"
WS = f"s[{S_WS}:{S_WS+3}]"; SA = f"s[{S_A}:{S_A+3}]"; SB = f"s[{S_B}:{S_B+3}]"; DBG = f"s[{S_DBG}:{S_DBG+3}]"
STG = 40960
NST = 3
AREG, BREG0, BREG = 20480, 81920, 20480
B7 = BREG0 + 3*BREG
CNT = B7 + 20096
YAT = B7
UB = 5536
W3B, W5B, W7B, W9B = 9664, 12768, 15872, 17952
SCR = 512
IMG, T2, T3 = SCR, SCR+1136, SCR+2416
STATL = BREG0 + 2*BREG
NT = " nt" if opt("nt", 0) else ""
NT1 = " nt" if opt("nt1", 1) else ""

a = Asm()
G2F = " sc1" if opt("g2sc1", 1) else ""
def srd(d, ptr, size):
    a(f"s_mov_b32 s{d}, s{ptr}\ns_mov_b32 s{d+1}, s{ptr+1}\ns_mov_b32 s{d+2}, {hex(size)}\ns_mov_b32 s{d+3}, 0x20000")
def stamp(idx):
    if PROF: a(f"s_memtime s[92:93]\ns_waitcnt lgkmcnt(0)\ns_sub_u32 s{72+idx}, s92, s90")
def lstamp(o):
    if PROF: a(f"s_memtime s[92:93]\ns_waitcnt lgkmcnt(0)\ns_sub_u32 s92, s92, s90\ns_add_u32 m0, s3, {o}\nv_writelane_b32 v200, s92, m0")
def endp(): a("s_branch L_end")
def cmul(d, x, y, t):
    a(f"v_pk_mul_f32 {vr(t,2)}, {vr(x,2)}, {vr(y,2)} op_sel:[0,0] op_sel_hi:[0,1]")
    a(f"v_pk_fma_f32 {vr(d,2)}, {vr(x,2)}, {vr(y,2)}, {vr(t,2)} op_sel:[1,1,0] op_sel_hi:[1,0,1] neg_lo:[0,1,0]")
def poll(issue, test, sleep=4, issued=True):
    L = a.label("L_poll"); D = a.label("L_pdone")
    if not issued: a(issue)
    a(f"{L}:")
    a("s_waitcnt vmcnt(0)")
    a(test)
    a(f"s_cbranch_scc1 {D}")
    a(f"s_add_u32 s{S_SPIN}, s{S_SPIN}, 1\ns_cmp_gt_u32 s{S_SPIN}, 100000\ns_cbranch_scc1 L_exit")
    a(f"s_sleep {sleep}")
    a(issue)
    a(f"s_branch {L}")
    a(f"{D}:")
def sld(d, off): return f"s_load_dword s{d}, s[{P['ws']}:{P['ws']+1}], s{off} glc"
def spoll(issue, test, sleep=4, issued=False, far=None):
    L = a.label("L_spoll"); D = a.label("L_sdone")
    if not issued: a(issue)
    a(f"{L}:")
    a("s_waitcnt lgkmcnt(0)")
    a(test)
    a(f"s_cbranch_scc1 {D}")
    a(f"s_add_u32 s{S_SPIN}, s{S_SPIN}, 1\ns_cmp_gt_u32 s{S_SPIN}, 100000\ns_cbranch_scc1 L_exit")
    a(f"s_sleep {sleep}")
    if far:
        N = a.label("L_near")
        a(f"{far[0]}\ns_cbranch_scc1 {N}\ns_sleep {far[1]}")
        a(f"{N}:")
    a(issue)
    a(f"s_branch {L}")
    a(f"{D}:")
def arrive_issue(sreg, va, vb):
    a(f"v_mov_b32 v{va}, 0\nv_mov_b32 v{vb}, 1\ns_mov_b64 exec, 1\nbuffer_atomic_add v{vb}, v{va}, {WS}, s{sreg} offen sc0 sc1\ns_mov_b64 exec, -1")
def arrive_check(st, vb, n, then):
    L = a.label("L_arr")
    a(f"s_waitcnt vmcnt(0)\nv_readfirstlane_b32 s{st}, v{vb}\ns_cmp_lg_u32 s{st}, {n-1}\ns_cbranch_scc1 {L}")
    a(then)
    a(f"{L}:")
def push_all(bitreg, off, va, vb, st):
    t = f"v_lshlrev_b32 v{va}, 7, v0\nv_mov_b32 v{vb}, s{bitreg}\ns_mov_b32 s{st}, {MBOX+off}\n"
    for i in range(4): t += f"buffer_atomic_or v{vb}, v{va}, {WS}, s{st} offen sc1\ns_add_u32 s{st}, s{st}, 8192\n"
    return t
def few(mask, ins): return f"s_mov_b64 exec, {mask}\n{ins}\ns_mov_b64 exec, -1"
def clr_issue(v, vo): return few(15, f"buffer_load_dword v{v}, v{vo}, {DBG}, 0 offen sc1")
def clr_test(v): return f"v_cmp_ne_u32 vcc, 0, v{v}\ns_and_b32 vcc_lo, vcc_lo, 15\ns_cmp_eq_u32 vcc_lo, 15"
def nz_test(v): return f"v_cmp_ne_u32 vcc, 0, v{v}\ns_cmp_eq_u64 vcc, -1"
def zero(b, n):
    for i in range(0, n, 2): a(f"v_pk_mov_b32 {vr(b+i,2)}, 0, 0")

cLIN, cIMG2, cT2, cT3, cW2, cW3, cST, cKW1, cKW2, cA0, cA1, cB, cU = 247, 248, 249, 250, 251, 252, 253, 254, 255, 231, 236, 237, 146
AD, AB, A16 = 204, 224, 232
RS = opt("rowsplit", 0)
def tile_rc(rt, cb, tmp):
    if RS: return f"s_and_b32 s{rt}, s2, 7\ns_lshl_b32 s{rt}, s{rt}, 2\ns_lshr_b32 s{cb}, s{S_J}, 3\ns_add_u32 s{rt}, s{rt}, s{cb}\ns_and_b32 s{cb}, s{S_J}, 7"
    return (f"s_lshl_b32 s{rt}, s{S_XR}, 3\ns_lshr_b32 s{cb}, s{S_J}, 2\ns_add_u32 s{rt}, s{rt}, s{cb}\n"
            f"s_lshl_b32 s{cb}, s{S_XC}, 2\ns_and_b32 s{tmp}, s{S_J}, 3\ns_add_u32 s{cb}, s{cb}, s{tmp}")
def conv_setup(t=64):
    r_, g_, h_, f_, x_, y_, z_ = (f"v{t+i}" for i in range(7))
    a(f"v_lshlrev_b32 {x_}, 4, v0\nv_add_u32 v{cLIN}, s69, {x_}\nv_min_u32 {z_}, 5, v0\nv_lshl_add_u32 v{cIMG2}, {z_}, 4, s69")
    a(f"v_lshlrev_b32 {x_}, 6, {z_}\nv_lshrrev_b32 {y_}, 1, {z_}\nv_lshl_add_u32 {x_}, {y_}, 4, {x_}\nv_add_u32 v{cKW2}, s69, {x_}")
    a(f"v_lshlrev_b32 {x_}, 6, v0\nv_lshrrev_b32 {y_}, 1, v0\nv_lshl_add_u32 {x_}, {y_}, 4, {x_}\nv_add_u32 v{cKW1}, s69, {x_}")
    a(f"v_lshrrev_b32 {x_}, 2, v0\nv_mul_u32_u24 {x_}, 40960, {x_}\nv_and_b32 {y_}, 3, v0\nv_lshl_add_u32 v{cU}, {y_}, 4, {x_}")
    a(f"v_and_b32 {r_}, 15, v0\nv_lshrrev_b32 {g_}, 4, v0\nv_and_b32 {h_}, 1, {g_}\nv_lshrrev_b32 {f_}, 1, {g_}")
    a(f"v_sub_u32 {x_}, 15, {r_}\nv_and_b32 {y_}, 1, {x_}\nv_sub_u32 {x_}, {x_}, {y_}\nv_lshlrev_b32 {x_}, 1, {x_}")
    a(f"v_lshl_add_u32 {z_}, {g_}, 1, {y_}\nv_mul_u32_u24 {z_}, 160, {z_}\nv_add_u32 {z_}, {z_}, {x_}\ns_add_u32 s10, s69, {T2}\nv_add_u32 v{cT2}, s10, {z_}")
    a(f"v_lshl_add_u32 {z_}, {h_}, 1, {y_}\nv_mul_u32_u24 {z_}, 160, {z_}\nv_add_u32 {z_}, {z_}, {x_}\nv_lshl_add_u32 {z_}, {f_}, 4, {z_}\ns_add_u32 s10, s69, {T3}\nv_add_u32 v{cT3}, s10, {z_}")
    a(f"v_mul_u32_u24 {x_}, {W5B-W3B}, {h_}\nv_lshlrev_b32 {y_}, 3, {g_}\nv_sub_u32 {x_}, {x_}, {y_}\nv_lshl_add_u32 {x_}, {r_}, 3, {x_}\ns_add_u32 s10, s69, {W3B-8}\nv_add_u32 v{cW2}, s10, {x_}")
    a(f"v_mul_u32_u24 {x_}, {W9B-W7B-16}, {h_}\nv_lshl_add_u32 {x_}, {f_}, 8, {x_}\nv_lshl_add_u32 {x_}, {r_}, 3, {x_}\ns_add_u32 s10, s69, {W7B-16}\nv_add_u32 v{cW3}, s10, {x_}")
    a(f"v_lshlrev_b32 {x_}, 2, {h_}\nv_lshrrev_b32 {z_}, 2, {r_}\nv_add_u32 {x_}, {x_}, {z_}\nv_mul_u32_u24 {x_}, 81920, {x_}\nv_lshl_add_u32 {x_}, {f_}, 6, {x_}\nv_and_b32 {z_}, 3, {r_}\nv_lshl_add_u32 v{cST}, {z_}, 4, {x_}")
    a(f"s_add_u32 s10, s69, {UB-32}\nv_lshlrev_b32 {x_}, 5, {r_}\nv_lshl_add_u32 {x_}, {g_}, 4, {x_}\nv_add_u32 v{cB}, s10, {x_}")
    a(f"v_sub_u32 {z_}, {y_}, {r_}\nv_add_u32 {z_}, 15, {z_}\nv_sub_u32 {y_}, {r_}, {y_}")
    a(f"v_lshrrev_b32 {x_}, 4, {z_}\nv_lshlrev_b32 {x_}, 4, {x_}\nv_lshl_add_u32 {x_}, {z_}, 3, {x_}\nv_add_u32 v{cA0}, s69, {x_}")
    a(f"v_add_u32 {z_}, 4, {z_}\nv_lshrrev_b32 {x_}, 4, {z_}\nv_lshlrev_b32 {x_}, 4, {x_}\nv_lshl_add_u32 {x_}, {z_}, 3, {x_}\nv_add_u32 v{cA1}, s69, {x_}")
    a(f"v_mov_b32 {r_}, 0xffff\nv_mov_b32 {g_}, 0xffff0000\nv_mov_b32 {h_}, -1")
    for k in range(4):
        a(f"v_cmp_eq_u32 vcc, {2*k-16}, {y_}\nv_cndmask_b32 v{AD+k}, 0, {r_}, vcc\nv_cmp_eq_u32 vcc, {2*k+1-16}, {y_}\nv_cndmask_b32 v{AD+k}, v{AD+k}, {g_}, vcc")
        a(f"v_cmp_eq_u32 vcc, {2*k-12}, {y_}\nv_cndmask_b32 v{AB+k}, 0, {h_}, vcc\nv_cmp_eq_u32 vcc, {2*k-13}, {y_}\nv_cndmask_b32 v{AB+k}, v{AB+k}, {r_}, vcc\nv_cmp_eq_u32 vcc, {2*k-11}, {y_}\nv_cndmask_b32 v{AB+k}, v{AB+k}, {g_}, vcc")
def uloads():
    a(f"s_lshl_b32 s10, s{S_CH}, 6")
    for q in range(4): a(f"buffer_load_dwordx4 {vr(148+4*q,4)}, v{cU}, {WS}, s10 offen sc1\ns_add_u32 s10, s10, 655360")
def kloads():
    a(f"s_lshl_b32 s10, s{S_CH}, 12\ns_add_u32 s10, s10, {KD}")
    for q in range(3): a(f"buffer_load_dwordx4 {vr(32+4*q,4)}, v1, {WS}, s10 offen offset:{1024*q} sc1")
lnc_addr = f"s_mul_i32 s13, s{S_CH}, 410\ns_lshr_b32 s13, s13, 16\ns_lshl_b32 s13, s13, 4\ns_and_b32 s100, s2, 15\ns_add_u32 s100, s100, s13\ns_lshl_b32 s100, s100, 7\ns_add_u32 s100, s100, {LNC}"

a.raw(f".globl {KN}\n.p2align 8\n.type {KN},@function")
a(f"{KN}:")
a("s_cmp_ge_u32 s2, 256\ns_cbranch_scc1 L_exit")
a("s_load_dwordx16 s[16:31], s[0:1], 0\ns_load_dwordx16 s[32:47], s[0:1], 64\ns_load_dwordx2 s[48:49], s[0:1], 128")
if opt("cpf", 1):
    a(f"s_cmp_ge_u32 s2, {opt('cpfn', 8)}\ns_cbranch_scc1 L_nocpf")
    a("s_getpc_b64 s[12:13]")
    a("L_cpfb:")
    a("v_lshlrev_b32 v20, 7, v0\nv_min_u32 v20, L_exit-L_cpfb, v20\nv_mov_b32 v21, s13\nv_add_co_u32 v20, vcc, s12, v20\nv_addc_co_u32 v21, vcc, 0, v21, vcc")
    a("global_load_dword v22, v[20:21], off")
    a("L_nocpf:")
if PROF:
    a("s_memtime s[90:91]\ns_memrealtime s[94:95]")
    for i in range(16): a(f"s_mov_b32 s{72+i}, 0")
a("v_lshrrev_b32 v1, 6, v0\nv_and_b32 v0, 63, v0")
a(f"v_readfirstlane_b32 {WV}, v1")
a(f"s_bfe_u32 s{S_XR}, s2, 0x20001\ns_and_b32 s{S_XC}, s2, 1\ns_lshr_b32 s{S_J}, s2, 3\ns_mov_b32 s{S_SPIN}, 0")
a(f"s_lshl_b32 s8, s{S_XC}, 2\ns_sub_u32 s8, 20, s8")
a(f"s_cmp_eq_u32 s{S_XC}, 0\ns_cselect_b32 s9, 52, 64\ns_mul_i32 s9, s9, s{S_J}\ns_lshr_b32 s9, s9, 8")
a(f"s_sub_u32 s11, 5, s{S_XC}\ns_mul_i32 s11, s11, s9\ns_sub_u32 s10, s{S_J}, s11\ns_mul_i32 s11, s{S_XC}, 5\ns_add_u32 s10, s10, s11")
a(f"s_lshl_b32 s11, s{S_XR}, 2\ns_add_u32 s9, s9, s11")
a("v_lshrrev_b32 v4, 3, v0\nv_mul_u32_u24 v4, 1280, v4")
a("v_and_b32 v5, 7, v0\nv_lshrrev_b32 v6, 4, v0\nv_xor_b32 v5, v5, v6\nv_lshl_add_u32 v2, v5, 4, v4")
a("v_xor_b32 v5, 4, v5\nv_lshl_add_u32 v3, v5, 4, v4\nv_add_u32 v3, 10240, v3\nv_add_u32 v4, 20480, v2\nv_add_u32 v5, 20480, v3")
for i in range(3):
    a(f"v_add_u32 v6, {64*i}, v0\nv_mul_u32_u24 v7, 2731, v6\nv_lshrrev_b32 v7, 16, v7\nv_lshlrev_b32 v14, 1, v7\nv_and_b32 v14, 4, v14\nv_xor_b32 v6, v6, v14")
    a(f"v_mul_u32_u24 v7, 3072, v7\nv_lshl_add_u32 v{8+i}, v6, 4, v7\nv_add_u32 v{11+i}, 27648, v{8+i}")
a("s_waitcnt lgkmcnt(0)")
srd(S_WS, P['ws'], WS_SIZE)
srd(S_A, P['u'], 2621440)
srd(S_B, P['w1'], 2211840)
srd(S_DBG, P['dbg'], 256)
a(f"s_lshl_b32 s{S_MB}, s2, 7\ns_add_u32 s{S_MB}, s{S_MB}, {MBOX}")
if PROF:
    a("s_mov_b32 s86, s94"); stamp(13)
if opt("g2only", 0):
    a(f"v_mov_b32 v174, 0\ns_mov_b32 s35, 1\ns_cmp_lt_u32 {WV}, 4\ns_cbranch_scc1 L_g2\ns_branch L_end")
a(f"s_cmp_ge_u32 s{S_J}, s8\ns_cbranch_scc1 L_aux")
a(f"s_cmp_lt_u32 {WV}, 4\ns_cbranch_scc1 L_comp")

a(f"s_sub_u32 s8, {WV}, 4")
a("s_lshl_b32 s11, s9, 7\ns_lshl_b32 s12, s8, 5\ns_add_u32 s11, s11, s12\ns_mul_i32 s11, s11, 1280")
a("s_mul_i32 s12, s8, 55296\ns_mul_i32 s13, s10, 384\ns_add_u32 s12, s12, s13")
a("s_lshl_b32 s13, s8, 12\ns_mul_i32 s14, s8, 6144\ns_add_u32 s14, s14, 16384\ns_mov_b32 s3, 0")
a(f"s_and_b32 s15, s9, 3\ns_mul_i32 s15, s15, 5\ns_add_u32 s15, s15, 1\ns_lshr_b32 s15, s15, 1\ns_lshl_b32 s68, s10, 1\ns_add_u32 s15, s15, s68\ns_add_u32 s15, s15, s{S_XR}")
a("s_mul_i32 s68, s15, 26\ns_lshr_b32 s68, s68, 8\ns_mul_i32 s68, s68, 10\ns_sub_u32 s15, s15, s68")
a("s_lshl_b32 s68, s15, 7\ns_add_u32 s11, s11, s68\ns_mul_i32 s68, s15, 221184\ns_add_u32 s12, s12, s68\ns_mov_b32 s69, 0")
stamp(1)
S_C = 96
a("v_mov_b32 v146, 0\nv_mov_b32 v253, 0\ns_mov_b32 s101, 0")
a("L_ld_loop:")
a("s_cmp_lt_u32 s3, 2\ns_cbranch_scc1 L_ld_nowait\ns_cmp_eq_u32 s3, 2\ns_cbranch_scc1 L_ld_setup")
a("L_ld_wait:")
a("s_waitcnt vmcnt(10)")
lstamp(0)
a("s_barrier")
lstamp(16)
a("L_ld_nowait:")
a("s_add_u32 s70, s69, s13\ns_add_u32 s71, s69, s14")
for q in range(4): a(f"s_add_u32 m0, s70, {1024*q}\nbuffer_load_dwordx4 v{2+q}, {SA}, s11 offen{NT} lds")
for i in range(6): a(f"s_add_u32 m0, s71, {1024*i}\nbuffer_load_dwordx4 v{8+i}, {SB}, s12 offen{NT} lds")
a("s_add_u32 s11, s11, 128\ns_add_u32 s12, s12, 221184\ns_add_u32 s15, s15, 1\ns_cmp_lt_u32 s15, 10\ns_cbranch_scc1 L_ld_nowrap")
a("s_sub_u32 s11, s11, 1280\ns_sub_u32 s12, s12, 2211840\ns_mov_b32 s15, 0")
a("L_ld_nowrap:")
a(f"s_add_u32 s69, s69, {STG}\ns_cmp_eq_u32 s69, {NST*STG}\ns_cselect_b32 s69, 0, s69")
a(f"s_cmp_lg_u32 s3, 7\ns_cbranch_scc1 L_ld_n5\ns_load_dwordx4 s[28:31], s[{P['dbg']}:{P['dbg']+1}], 0")
a("L_ld_n5:")
a("s_add_u32 s3, s3, 1\ns_cmp_lt_u32 s3, 10\ns_cbranch_scc1 L_ld_loop")
s_issue = f"buffer_load_dwordx4 v[16:19], v1, {WS}, s18 offen sc1\nbuffer_load_dwordx4 v[20:23], v6, {WS}, s18 offen offset:1024 sc1\nbuffer_load_dword v24, v7, {WS}, s20 offen sc1"
wc_issue = sld(26, 25)
wc_test = "s_cmp_lg_u32 s26, 0"
a("s_waitcnt lgkmcnt(0)\ns_and_b32 s28, s28, s29\ns_and_b32 s30, s30, s31\ns_and_b32 s24, s28, s30")
a(s_issue)
for w in (13, 3):
    if w == 3:
        a("s_mov_b32 s31, 0\ns_mov_b32 s33, 0\ns_cmp_eq_u32 s101, 0\ns_cbranch_scc1 L_ld_ncv")
        a(sld(31, S_MB) + "\n" + sld(33, 100))
        a("L_ld_ncv:")
    a(f"s_waitcnt vmcnt({w})")
    lstamp(0)
    a("s_barrier")
    lstamp(16)
    if PROF: a("s_add_u32 s3, s3, 1")
a("s_cmp_lg_u32 s24, 0\ns_cbranch_scc1 L_ld_clr")
poll(clr_issue(15, 14), clr_test(15), sleep=8, issued=False)
a(s_issue)
a("s_waitcnt lgkmcnt(0)\ns_mov_b32 s31, 0\ns_mov_b32 s33, 0")
a("L_ld_clr:")
s_test = "v_and_b32 v4, v17, v19\nv_and_b32 v5, v21, v23\nv_and_b32 v4, v4, v5\nv_and_b32 v4, 1, v4\nv_min_u32 v4, v4, v24\n" + nz_test(4)
poll(s_issue, s_test, sleep=8)
a("ds_write_b128 v25, v[16:19]\nds_write_b128 v26, v[20:23] offset:1024\nds_write_b32 v27, v24")
a("s_waitcnt lgkmcnt(0)\ns_mov_b32 s68, 0\ns_and_b32 s13, s31, s101\ns_cbranch_scc0 L_ld_nk0")
kloads()
a("s_mov_b32 s68, 1")
a("L_ld_nk0:")
a("s_cmp_ge_u32 s33, 64\ns_cbranch_scc0 L_ld_nk")
uloads()
a("s_or_b32 s68, s68, 2")
a("L_ld_nk:")
a("s_barrier")
lstamp(16)
if PROF:
    a(f"s_lshl_b32 s93, s2, 9\ns_lshl_b32 s92, s8, 7\ns_add_u32 s93, s93, s92\ns_add_u32 s93, s93, {PROFB+0x20000}\nv_lshlrev_b32 v201, 2, v0\ns_mov_b32 exec_hi, 0\nbuffer_store_dword v200, v201, {WS}, s93 offen\ns_mov_b32 exec_hi, -1")
stamp(2)
a(f"s_cmp_eq_u32 {WV}, 7\ns_cbranch_scc1 L_fetch")
a(f"s_cmp_eq_u32 {WV}, 6\ns_cbranch_scc1 L_park")
a(f"s_cmp_eq_u32 s101, 0\ns_cbranch_scc1 L_end\ns_mul_i32 s69, {WV}, {AREG}\ns_branch L_cv_upart")
wc_prep = f"s_and_b32 s25, s2, 31\ns_lshl_b32 s25, s25, 7\ns_add_u32 s25, s25, {W2C+1024}"
a("L_ld_setup:")
a("v_lshlrev_b32 v1, 4, v0\nv_and_b32 v7, 31, v0\nv_lshlrev_b32 v6, 4, v7\nv_lshlrev_b32 v7, 2, v7\nv_and_b32 v14, 3, v0\nv_lshlrev_b32 v14, 2, v14")
a(f"s_lshl_b32 s20, s9, 9\ns_lshl_b32 s23, s8, 7\ns_add_u32 s20, s20, s23\ns_add_u32 s20, s20, {STATS}\ns_add_u32 s23, s23, {STATL+6144}\nv_add_u32 v27, s23, v7")
a(f"s_mul_i32 s18, s10, 1536\ns_mul_i32 s19, s8, {CSP}\ns_add_u32 s18, s18, s19\ns_add_u32 s18, s18, {CSUM}")
a(f"s_mul_i32 s23, s8, 1536\ns_add_u32 s23, s23, {STATL}\nv_add_u32 v25, s23, v1\nv_add_u32 v26, s23, v6\nv_mov_b32 v30, {CNT}")
zero(32, 4)
a("ds_write_b128 v30, v[32:35]")
a(wc_prep)
a(f"s_mul_i32 s23, s{S_XR}, 36\ns_mul_i32 s22, s{S_XC}, 20\ns_add_u32 s23, s23, s22\ns_add_u32 s23, s23, s{S_J}\ns_mul_i32 s22, s8, 144\ns_add_u32 s23, s23, s22\ns_cmp_ge_u32 s23, 192\ns_cbranch_scc1 L_ld_wait")
a(f"s_lshr_b32 s22, s23, 2\ns_lshl_b32 s22, s22, 3\ns_and_b32 s23, s23, 3\ns_add_u32 s{S_CH}, s23, s22\ns_add_u32 s{S_CH}, s{S_CH}, 256\ns_lshl_b32 s101, 0x1000000, s8")
a(f"s_mov_b32 s96, s69\ns_mov_b32 s97, s10\ns_mov_b32 s98, s13\ns_mul_i32 s69, {WV}, {AREG}")
conv_setup()
a(lnc_addr)
a(f"s_lshl_b32 s22, s{S_CH}, 1\ns_and_b32 s23, s22, 2\ns_sub_u32 s22, s22, s23\ns_load_dword s99, s[{P['dsk']}:{P['dsk']+1}], s22")
a("s_lshl_b32 s23, s23, 3\ns_waitcnt lgkmcnt(0)\ns_lshr_b32 s99, s99, s23\ns_and_b32 s99, s99, 0xffff\nv_mov_b32 v147, s99")
a("s_mov_b32 s69, s96\ns_mov_b32 s10, s97\ns_mov_b32 s13, s98\ns_branch L_ld_wait")

G2H = [16, 32, 48, 224]; G2W = [164, 184, 204, 144]; AC2 = 64
K0 = [0, 13, 26, 40, 54]
WB = [248, 249, 250, 251, 253]
def rot_offs(dummy):
    a(f"s_and_b32 s25, s2, {7 if opt('xrot', 1) else 0}\ns_cmp_eq_u32 s25, 7\ns_cselect_b32 s25, 0, s25")
    if dummy: a(f"s_cmp_eq_u32 {WV}, 3\ns_cselect_b32 s26, 6, 9")
    for t in range(7):
        a(f"s_lshl_b32 s{18+t}, s25, 10")
        if dummy: a(f"s_cmp_eq_u32 s25, s26\ns_cselect_b32 s{18+t}, {OOB}, s{18+t}")
        if t < 6: a("s_add_u32 s25, s25, 1\ns_cmp_eq_u32 s25, 7\ns_cselect_b32 s25, 0, s25")
def g2_setup():
    a(tile_rc(30, 31, 29))
    a(f"s_mul_i32 s28, {WV}, 7168\nv_lshlrev_b32 v252, 4, v0")
    a(f"s_mul_i32 s27, s30, {4*55296}\ns_add_u32 s27, s27, s28\ns_add_u32 s27, s27, {HF}")
    for i in range(4):
        a(f"s_add_u32 s29, {WV}, {i}\ns_and_b32 s29, s29, 3\ns_mul_i32 s29, s29, 55296\ns_add_u32 s29, s27, s29\nv_add_u32 v{244+i}, s29, v252")
    a(f"s_mul_i32 s29, s31, {5*55296}\ns_add_u32 s29, s29, s28\ns_add_u32 s29, s29, {W2F}\nv_add_u32 v248, s29, v252")
    for i in range(1, 5): a(f"v_add_u32 v{WB[i]}, {55296*i}, v248")
    rot_offs(True)
    a(f"s_lshl_b32 s27, s30, 6\ns_lshl_b32 s29, {WV}, 4\ns_add_u32 s27, s27, s29\ns_mul_i32 s27, s27, 1280\ns_mul_i32 s29, s31, 160\ns_add_u32 s27, s27, s29")
    masks = []
    for w in range(4):
        c0, c1 = (7*w)//3, min(26, 7*w+6)//3
        m = ((1 << (c1-c0+1)) - 1) << c0
        masks.append(m | (m << 11))
    a(f"s_mov_b32 s28, {hex(masks[0])}\ns_cmp_eq_u32 {WV}, 1\ns_cselect_b32 s28, {hex(masks[1])}, s28\ns_cmp_eq_u32 {WV}, 2\ns_cselect_b32 s28, {hex(masks[2])}, s28\ns_cmp_eq_u32 {WV}, 3\ns_cselect_b32 s28, {hex(masks[3])}, s28")
    a("v_lshrrev_b32 v255, 4, v0\nv_lshlrev_b32 v255, 3, v255\nv_and_b32 v254, 15, v0\nv_mul_u32_u24 v254, 160, v254\nv_add_u32 v254, v254, v255")
    srd(S_B, P['b2'], 1280)
def ldh(k, t): return [f"buffer_load_dwordx4 {vr(G2H[k]+4*i,4)}, v{244+i}, {WS}, s{18+t%7} offen{G2F}" for i in range(4)]
def ldw(k, t): return [f"buffer_load_dwordx4 {vr(G2W[k]+4*i,4)}, v{WB[i]}, {WS}, s{18+t%7} offen{G2F}" for i in range(5)]
OUTV = (8, 9, 13)
def xb_loads():
    for q in range(3):
        a(f"v_add_u32 v10, {64*q}, v0\nv_mul_u32_u24 v11, 6554, v10\nv_lshrrev_b32 v11, 16, v11\nv_mul_u32_u24 v11, 1120, v11\nv_lshl_add_u32 v{OUTV[q]}, v10, 4, v11")
    a(f"v_cmp_gt_u32 vcc, 32, v0\nv_mov_b32 v10, {OOB}\nv_cndmask_b32 v13, v10, v13, vcc\ns_mul_i32 s10, {WV}, {AREG}")
    for q in range(3): a(f"s_add_u32 m0, s10, {15360+1024*q}\nbuffer_load_dwordx4 v{OUTV[q]}, {SA}, s27 offen lds")
    a(f"s_add_u32 m0, s10, {18432}\ns_mov_b64 exec, 0x3ff\nbuffer_load_dwordx4 v252, {SB}, s29 offen lds\ns_mov_b64 exec, -1")
    a("v_add_u32 v2, s10, v254\nv_add_u32 v3, s10, v255")
off = lambda t: 1024*t if t < 7 else 27648 + 1024*(t-7)
w_pre = ldw(0, 0) + ldw(1, 1) + ldw(2, 2) + ldw(3, 3)

a("L_comp:")
ACC = 72; BUF = [16, 44]; SF = 172
g2_setup()
a("v_and_b32 v13, 31, v0\nv_lshrrev_b32 v14, 5, v0")
a(f"s_lshl_b32 s8, {WV}, 12\nv_lshlrev_b32 v15, 7, v13\nv_add_u32 v15, s8, v15")
a("v_bfe_u32 v7, v0, 1, 3\nv_xor_b32 v7, v7, v14")
for ks in range(4): a(f"v_xor_b32 v1, {2*ks}, v7\nv_lshl_add_u32 v{2+ks}, v1, 4, v15")
a("v_bfe_u32 v1, v0, 2, 2\nv_lshl_add_u32 v1, v14, 3, v1\nv_mul_u32_u24 v1, 384, v1")
a("v_bfe_u32 v7, v0, 4, 1\nv_lshl_add_u32 v1, v7, 5, v1\nv_and_b32 v7, 3, v0\nv_lshl_add_u32 v1, v7, 3, v1\nv_add_u32 v1, 16384, v1")
a("v_bfe_u32 v7, v0, 3, 1\nv_lshlrev_b32 v7, 6, v7\nv_add_u32 v6, v1, v7\nv_sub_u32 v196, v1, v7\nv_mov_b32 v197, v196")
for i in range(5): a(f"v_mov_b32 v{8+i}, v{2+i}")
zero(ACC, 96)
a(f"s_lshl_b32 s11, {WV}, 7\ns_add_u32 s11, s11, {STATL+6144}\nv_lshl_add_u32 v168, v13, 2, s11\nv_mul_u32_u24 v169, 3072, v14\nv_lshl_add_u32 v169, v13, 3, v169\nv_add_u32 v169, {STATL}, v169")
a("v_bfe_u32 v1, v0, 4, 1\nv_mul_u32_u24 v1, 55296, v1\nv_lshl_add_u32 v1, v14, 8, v1\nv_and_b32 v7, 15, v0\nv_lshl_add_u32 v1, v7, 4, v1")
a(f"s_lshl_b32 s8, s9, 3\ns_lshl_b32 s11, {WV}, 1\ns_add_u32 s8, s8, s11\ns_mul_i32 s8, s8, 54\ns_mul_i32 s11, s10, 3\ns_add_u32 s8, s8, s11\ns_lshl_b32 s8, s8, 10\ns_add_u32 s8, s8, {HF}")
a(f"s_lshl_b32 s12, s9, 1\ns_lshr_b32 s11, {WV}, 1\ns_add_u32 s12, s12, s11")
if RS: a(f"s_and_b32 s11, s12, 3\ns_lshl_b32 s11, s11, 6\ns_lshr_b32 s12, s12, 2\ns_add_u32 s12, s12, s11\ns_lshl_b32 s12, s12, 7\ns_add_u32 s12, s12, {MBOX}")
else: a(f"s_and_b32 s11, s12, 7\ns_lshl_b32 s11, s11, 5\ns_lshr_b32 s12, s12, 3\ns_lshl_b32 s12, s12, 1\ns_add_u32 s12, s12, s11\ns_lshl_b32 s12, s12, 7\ns_add_u32 s12, s12, {MBOX}")
a(f"s_and_b32 s11, {WV}, 1\ns_mul_i32 s11, s11, 11\ns_add_u32 s11, s11, s10\ns_lshl_b32 s11, 1, s11")
if RS: a("v_lshlrev_b32 v15, 10, v0\nv_mov_b32 v14, s11")
else: a("v_and_b32 v15, 3, v0\nv_lshlrev_b32 v15, 10, v15\nv_bfe_u32 v7, v0, 2, 1\nv_lshl_add_u32 v15, v7, 7, v15\nv_mov_b32 v14, s11")
a(wc_prep.replace("s25", "s69"))
a("s_mov_b32 s15, 0\ns_mov_b32 s3, 0")
def reads(ks, b):
    r = [f"ds_read_b128 {vr(b,4)}, v{8+ks}"]
    for ft in range(6):
        for s in range(2):
            r.append(f"ds_read_b64_tr_b16 {vr(b+4+4*ft+2*s,2)}, v{197 if ft & 1 else 12} offset:{ks*6144 + s*1536 + ft*64}")
    return r
def step(cur, nks, nb, last, first_wait=True):
    R = reads(nks, nb)
    waits = [10, 11, 12, 13, 13, 13]; parts = [R[0:3], R[3:6], R[6:9], R[9:11], R[11:13], [last]]
    for ft in range(6):
        if first_wait: a(f"s_waitcnt lgkmcnt({waits[ft]})")
        a(f"v_mfma_f32_32x32x16_bf16 {vr(ACC+16*ft,16)}, {vr(cur+4+4*ft,4)}, {vr(cur,4)}, {vr(ACC+16*ft,16)}")
        for r in parts[ft]: a(r)
a("s_barrier")
stamp(1)
for r in reads(0, BUF[0]): a(r)
a("L_c_loop:")
step(BUF[0], 1, BUF[1], f"s_add_u32 s15, s15, {STG}\ns_cmp_eq_u32 s15, {NST*STG}\ns_cselect_b32 s15, 0, s15\nv_add_u32 v8, s15, v2")
step(BUF[1], 2, BUF[0], "v_add_u32 v9, s15, v3\nv_add_u32 v10, s15, v4")
step(BUF[0], 3, BUF[1], "v_add_u32 v12, s15, v6\nv_add_u32 v197, s15, v196\ns_waitcnt lgkmcnt(0)\ns_barrier")
step(BUF[1], 0, BUF[0], "v_add_u32 v11, s15, v5\ns_add_u32 s3, s3, 1\ns_cmp_lt_u32 s3, 10\ns_cbranch_scc1 L_c_loop", first_wait=False)
stamp(2)
a("s_setprio 3\nds_read_b32 v170, v168")
for ft in range(6):
    for p in range(2): a(f"ds_read_b64 {vr(SF+4*ft+2*p,2)}, v169 offset:{1536*p+256*ft}")
a("s_waitcnt lgkmcnt(12)")
a("v_xor_b32 v17, 0x8000, v170\nv_and_b32 v19, 0xffff, v17\nv_lshl_or_b32 v16, v19, 16, v19\nv_mov_b32 v18, v16")
a("v_cmp_gt_u32 vcc, 32, v0\nv_cndmask_b32 v17, v19, v17, vcc")
a("v_and_b32 v10, 0xffff0000, v170\nv_rcp_f32 v7, v10\nv_mov_b32 v11, v10\ns_waitcnt lgkmcnt(0)")
for ft in range(6):
    a(f"v_mfma_f32_32x32x16_bf16 {vr(ACC+16*ft,16)}, {vr(SF+4*ft,4)}, v[16:19], {vr(ACC+16*ft,16)}")
    if ft == 0:
        k1c = -2.0 * math.log2(math.e) * math.sqrt(2.0/math.pi); k2c = k1c * 0.044715
        a(f"v_mul_f32 v8, {f32(k1c)}, v7\nv_mul_f32 v12, v7, v7\nv_mul_f32 v12, v12, v7\nv_mul_f32 v12, {f32(k2c)}, v12\nv_mov_b32 v9, v8\nv_mov_b32 v13, v12")
def stA(h):
    A0 = ACC + 8*h; T = 16 + 8*(h % 3)
    return ([f"v_pk_mul_f32 {vr(T+2*p,2)}, {vr(A0+2*p,2)}, {vr(A0+2*p,2)}" for p in range(4)] +
            [f"v_pk_fma_f32 {vr(T+2*p,2)}, {vr(T+2*p,2)}, v[12:13], v[8:9]" for p in range(4)] +
            [f"v_pk_mul_f32 {vr(T+2*p,2)}, {vr(T+2*p,2)}, {vr(A0+2*p,2)}" for p in range(4)])
def stE(h):
    T = 16 + 8*(h % 3); return [f"v_exp_f32 v{T+e}, v{T+e}" for e in range(8)]
def stB(h):
    T = 16 + 8*(h % 3); return [f"v_pk_fma_f32 {vr(T+2*p,2)}, {vr(T+2*p,2)}, v[10:11], v[10:11]" for p in range(4)]
def stR(h):
    T = 16 + 8*(h % 3); return [f"v_rcp_f32 v{T+e}, v{T+e}" for e in range(8)]
def stC(h):
    A0 = ACC + 8*h; T = 16 + 8*(h % 3); pk = 48 + 4*(h % 4)
    return ([f"v_pk_mul_f32 {vr(T+2*p,2)}, {vr(T+2*p,2)}, {vr(A0+2*p,2)}" for p in range(4)] +
            [f"v_cvt_pk_bf16_f32 v{pk+p}, v{T+2*p}, v{T+2*p+1}" for p in range(4)] +
            [f"buffer_store_dwordx4 {vr(pk,4)}, v1, {WS}, s8 offen offset:{(h//2 % 3)*1024 + (h%2)*512} sc1"])
def mix(tr, nt):
    i = 0
    for k, x in enumerate(tr):
        a(x)
        n = (len(nt) * (k+1)) // len(tr)
        while i < n: a(nt[i]); i += 1
for x in stA(0): a(x)
for h in range(12):
    mix(stE(h), (stC(h-1) if h else []))
    if h == 6: a("s_add_u32 s8, s8, 27648")
    if h == opt("eflag", 10): a(f"s_waitcnt vmcnt({h-6})\ns_mov_b64 exec, 0xff\nbuffer_atomic_or v14, v15, {WS}, s12 offen sc1\ns_mov_b64 exec, -1\n" + sld(68, 69))
    for x in stB(h): a(x)
    mix(stR(h), (stA(h+1) if h < 11 else []))
for x in stC(11): a(x)
stamp(4)
def acc_init(z=True):
    for dt in range(5): a(f"ds_read_b64 {vr(224+2*dt,2)}, v2 offset:{15360+32*dt}\nds_read_b64 {vr(234+2*dt,2)}, v3 offset:{18432+32*dt}")
    a("s_waitcnt lgkmcnt(0)")
    for dt in range(5):
        for h in range(2):
            a(f"v_lshlrev_b32 v{AC2+4*dt+2*h}, 16, v{224+2*dt+h}\nv_and_b32 v{AC2+4*dt+2*h+1}, 0xffff0000, v{224+2*dt+h}")
            a(f"v_lshlrev_b32 v10, 16, v{234+2*dt+h}\nv_and_b32 v11, 0xffff0000, v{234+2*dt+h}\nv_pk_add_f32 {vr(AC2+4*dt+2*h,2)}, {vr(AC2+4*dt+2*h,2)}, v[10:11]")
    if z: zero(AC2+20, 60)
a(f"v_mov_b32 v2, {CNT+8}\nv_mov_b32 v3, 1\nds_write_b32 v2, v3")
a(sld(14, S_MB))
xb_loads()
zero(AC2+20, 60)
a(f"s_waitcnt vmcnt(4)\ns_mov_b64 exec, 0xff\nbuffer_atomic_or v14, v15, {WS}, s12 offen offset:64 sc1\ns_mov_b64 exec, -1")
a("s_setprio 0\ns_mov_b32 s35, 0\ns_mov_b32 s101, 0\ns_waitcnt lgkmcnt(0)")
stamp(5)
a("s_cmp_eq_u32 s68, 0\ns_cbranch_scc1 L_c_slow")
a("s_and_b32 s13, s14, s28\ns_cmp_eq_u32 s13, s28\ns_cbranch_scc0 L_c_mid")
for l in ldw(0, 0) + ldh(0, 0) + ldw(1, 1) + ldw(2, 2) + ldw(3, 3) + ldh(1, 1) + ldh(2, 2): a(l)
a("s_mov_b32 s101, 1\ns_waitcnt vmcnt(33)\ns_branch L_c_acc")
a("L_c_mid:")
for l in w_pre: a(l)
a("s_waitcnt vmcnt(21)\ns_branch L_c_acc")
a("L_c_slow:")
a("s_waitcnt vmcnt(0)")
a("L_c_acc:")
acc_init(False)
a("s_cmp_lg_u32 s68, 0\ns_cbranch_scc1 L_g2go")
a("s_branch L_g2w")

a("L_g2:")
g2_setup()
a("s_mov_b32 s101, 0")
xb_loads()
a("s_waitcnt vmcnt(0)")
acc_init()
a("L_g2w:")
if opt("p1only", 0): endp()
a(wc_prep.replace("s25", "s8"))
if not opt("g2only", 0): spoll(sld(9, 8), "s_cmp_lg_u32 s9, 0", sleep=16)
PK = (8, 10, 12)
a(f"s_cmp_eq_u32 s35, 0\ns_cbranch_scc1 L_g_nopark\ns_mul_i32 s10, {WV}, {AREG}")
for p in range(3):
    a(f"s_add_u32 s13, s{18+PK[p]-7}, 27648")
    for i in range(5): a(f"s_add_u32 m0, s10, {5120*p+1024*i}\nbuffer_load_dwordx4 v{WB[i]}, {WS}, s13 offen{G2F} lds")
    if opt("thr", 0): a(f"s_waitcnt vmcnt({opt('thr', 0)})")
a("L_g_nopark:")
for n_, l in enumerate(w_pre):
    a(l)
    if opt("thr", 0) and n_ % 5 == 4 and n_ < 19: a(f"s_waitcnt vmcnt({opt('thr', 0)})")
if opt("touch2", 0):
    nt2 = 6 if RS else 3
    a("s_cmp_eq_u32 s35, 0\ns_cbranch_scc1 L_g2go")
    a(f"s_lshl_b32 s8, s{S_XC}, 2\ns_add_u32 s8, s8, s{S_J}\ns_sub_u32 s8, s8, 20\ns_lshl_b32 s8, s8, 2\ns_add_u32 s8, s8, {WV}\ns_cmp_ge_u32 s8, 48\ns_cbranch_scc1 L_g2go")
    if RS: a(f"s_and_b32 s9, s2, 7\ns_mul_i32 s9, s9, 6\ns_add_u32 s8, s8, s9\ns_cmp_ge_u32 s8, 48\ns_cselect_b32 s9, 48, 0\ns_sub_u32 s8, s8, s9\ns_mul_i32 s8, s8, 46080\ns_add_u32 s8, s8, {W2F}")
    else: a(f"s_mul_i32 s9, s{S_XR}, 12\ns_add_u32 s8, s8, s9\ns_cmp_ge_u32 s8, 48\ns_cselect_b32 s9, 48, 0\ns_sub_u32 s8, s8, s9\ns_mul_i32 s8, s8, 23040\ns_mul_i32 s9, s{S_XC}, 1105920\ns_add_u32 s8, s8, s9\ns_add_u32 s8, s8, {W2F}")
    a("v_lshlrev_b32 v4, 7, v0\ns_mov_b32 exec_hi, 0xfffffff")
    for i in range(nt2): a(f"buffer_load_dword v244, v4, {WS}, s8 offen sc1\ns_add_u32 s8, s8, 7680")
    a("s_mov_b32 exec_hi, -1")
a("L_g2go:")
if opt("p1only", 0): endp()
hm_issue = sld(14, S_MB)
a("s_cmp_lg_u32 s101, 0\ns_cbranch_scc1 L_g_nohm")
a(hm_issue)
a("L_g_nohm:")
a(f"s_mul_i32 s10, {WV}, {AREG}\nv_add_u32 v1, s10, v252")
for i in range(1, 4):
    a(f"s_sub_u32 s13, {WV}, {i}\ns_and_b32 s13, s13, 3\ns_mul_i32 s13, s13, {AREG}\ns_add_u32 s13, s13, {5120*(i-1)}\nv_add_u32 v{1+i}, s13, v252")
a("v_lshrrev_b32 v10, 2, v0\nv_lshlrev_b32 v10, 7, v10\nv_bfe_u32 v15, v0, 1, 1\nv_lshl_add_u32 v10, v15, 6, v10\nv_and_b32 v15, 1, v0\nv_lshl_add_u32 v10, v15, 3, v10")
a(f"s_lshl_b32 s13, {WV}, 4\ns_add_u32 s13, s13, {YAT}\nv_add_u32 v5, s13, v10")
a(f"s_mul_i32 s13, {WV}, 2560\ns_add_u32 s13, s13, {BREG0}\nv_add_u32 v6, s13, v254\nv_add_u32 v7, s13, v252")
a(f"v_mov_b32 v14, {CNT}")
srd(S_A, P['out'], 2621440)
a("s_cmp_lg_u32 s101, 0\ns_cbranch_scc1 L_g_fast")
if not opt("g2only", 0): spoll(hm_issue, "s_and_b32 s13, s14, s28\ns_cmp_eq_u32 s13, s28", sleep=opt('msleep', 4), issued=True, far=('s_and_b32 s13, s14, 0x3fffff', opt('mfar', 28)))
else: a("s_waitcnt vmcnt(0)")
stamp(6)
for l in ldh(0, 0) + ldh(1, 1) + ldh(2, 2): a(l)
a("s_waitcnt vmcnt(8)")
a("L_g_fast:")
a(f"s_add_u32 s15, s{S_MB}, 64")
nld = lambda t: 0 if t > 13 else (4 if (t < 4 or t in PK) else 9)
cur = 0
for t in range(14):
    k = t % 4; nt_ = t + 3; nk = nt_ % 4
    L = []
    if t == 2: a("s_waitcnt lgkmcnt(0)\n" + sld(14, 15))
    if t == 4 and not opt("g2only", 0):
        spoll(sld(14, 15), "s_and_b32 s13, s14, s28\ns_cmp_eq_u32 s13, s28", sleep=2, issued=True)
        stamp(3)
    if nt_ == PK[0]:
        a("s_cmp_lg_u32 s35, 0\ns_cbranch_scc1 L_g_pok\ns_mov_b32 s3, 0")
        a("L_g_pw:")
        a("s_add_u32 s3, s3, 1\ns_cmp_gt_u32 s3, 2000000\ns_cbranch_scc1 L_exit")
        a("ds_read_b32 v10, v14\ns_waitcnt lgkmcnt(0)\nv_readfirstlane_b32 s13, v10\ns_cmp_eq_u32 s13, 0\ns_cbranch_scc1 L_g_pw")
        a("L_g_pok:")
    if nt_ <= 13:
        if nt_ >= 7: a(f"s_add_u32 s{18+nt_-7}, s{18+nt_-7}, 27648")
        L = ldh(nk, nt_)
        if nt_ in PK: L += [f"ds_read_b128 {vr(G2W[nk]+4*i,4)}, v1 offset:{5120*PK.index(nt_)+1024*i}" for i in range(5)]
        elif nt_ > 3: L += ldw(nk, nt_)
    a(f"s_waitcnt vmcnt({23 if t == 0 else nld(t+1)+nld(t+2)})" + (" lgkmcnt(0)" if t in PK else ""))
    if t == 0: stamp(7)
    n = 0
    for i in ((1, 2, 3, 0) if t == 13 else range(4)):
        for dt in range(5):
            acc = AC2 + 4*(5*i+dt)
            a(f"v_mfma_f32_16x16x32_bf16 {vr(acc,4)}, {vr(G2W[k]+4*dt,4)}, {vr(G2H[k]+4*i,4)}, {vr(acc,4)}")
            if n < len(L): a(L[n])
            if t == 13:
                pi = {2: 1, 3: 2, 0: 3}.get(i)
                if pi: a(f"ds_write_b128 v1, {vr(AC2+4*(5*pi+dt),4)} offset:{5120*(pi-1)+1024*dt}")
            n += 1
stamp(8)
a("s_waitcnt lgkmcnt(0)\ns_barrier")
stamp(9)
R_ = 144
for q in range(10): a(f"ds_read_b128 {vr(R_+4*q,4)}, v{2+q//5} offset:{1024*(q%5)}")
for dt in range(5): a(f"ds_read_b64_tr_b16 {vr(16+2*dt,2)}, v5 offset:{2048*dt}")
for q in range(10):
    a(f"s_waitcnt lgkmcnt({14 if q < 5 else 19-q})")
    dt = q % 5
    for h in range(2): a(f"v_pk_add_f32 {vr(AC2+4*dt+2*h,2)}, {vr(AC2+4*dt+2*h,2)}, {vr(R_+4*q+2*h,2)}")
    if q < 5: a(f"ds_read_b128 {vr(R_+40+4*q,4)}, v4 offset:{1024*q}")
for dt in range(5):
    a(f"s_waitcnt lgkmcnt({9-dt})")
    for h in range(2):
        a(f"v_lshlrev_b32 v10, 16, v{16+2*dt+h}\nv_and_b32 v11, 0xffff0000, v{16+2*dt+h}\nv_pk_add_f32 {vr(AC2+4*dt+2*h,2)}, {vr(AC2+4*dt+2*h,2)}, v[10:11]")
a("s_waitcnt lgkmcnt(0)")
for dt in range(5):
    for h in range(2): a(f"v_pk_add_f32 {vr(AC2+4*dt+2*h,2)}, {vr(AC2+4*dt+2*h,2)}, {vr(R_+40+4*dt+2*h,2)}")
    for h in range(2): a(f"v_cvt_pk_bf16_f32 v{32+2*dt+h}, v{AC2+4*dt+2*h}, v{AC2+4*dt+2*h+1}")
    a(f"ds_write_b64 v6, {vr(32+2*dt,2)} offset:{32*dt}")
for q in range(3): a(f"ds_read_b128 {vr(48+4*q,4)}, v7 offset:{1024*q}")
for q in range(3):
    a(f"s_waitcnt lgkmcnt({2-q})\nbuffer_store_dwordx4 {vr(48+4*q,4)}, v{OUTV[q]}, {SA}, s27 offen")
stamp(10)
endp()

a("L_park:")
if opt("p1only", 0): endp()
a(tile_rc(12, 9, 10))
for i in range(1, 5): a(f"v_add_u32 v{1+i}, {55296*i}, v1")
a(f"s_mul_i32 s12, s9, {5*55296}\ns_add_u32 s12, s12, {W2F}\ns_mov_b32 s10, 0\ns_mov_b32 s3, 0")
spoll(wc_issue, wc_test, sleep=10)
rot_offs(False)
a(f"v_mov_b32 v10, {CNT+8}\ns_mov_b32 s11, 0")
a("L_pk_w:")
a("s_add_u32 s11, s11, 1\ns_cmp_gt_u32 s11, 200000\ns_cbranch_scc1 L_exit\ns_sleep 2")
a("ds_read_b32 v11, v10\ns_waitcnt lgkmcnt(0)\nv_readfirstlane_b32 s13, v11\ns_cmp_eq_u32 s13, 0\ns_cbranch_scc1 L_pk_w")
stamp(11)
a("L_pk_loop:")
for p in range(3):
    a(f"s_add_u32 s13, s12, s{18+PK[p]-7}\ns_add_u32 s13, s13, 27648\ns_add_u32 s11, s{18+PK[p]-7}, s3\ns_cmp_eq_u32 s11, 6147\ns_cselect_b32 s13, {OOB}, s13")
    for i in range(5): a(f"s_add_u32 m0, s10, {5120*p+1024*i}\nbuffer_load_dwordx4 v{1+i}, {WS}, s13 offen{G2F} lds")
a(f"s_add_u32 s12, s12, 7168\ns_add_u32 s10, s10, {AREG}\ns_add_u32 s3, s3, 1\ns_cmp_lt_u32 s3, 4\ns_cbranch_scc1 L_pk_loop")
a(f"v_mov_b32 v2, {CNT}\nv_mov_b32 v3, 1\ns_waitcnt vmcnt(0)\nds_write_b32 v2, v3\ns_waitcnt lgkmcnt(0)")
stamp(12)
endp()

a("L_fetch:")
if opt("p1only", 0): endp()
a(tile_rc(8, 9, 10))
a("s_mul_i32 s11, s8, 81920")
a(f"v_mov_b32 v1, 0\ns_lshl_b32 s13, s9, 2\ns_add_u32 s13, s13, s{S_XR}\ns_lshl_b32 s13, s13, 7\ns_add_u32 s13, s13, {YAC}")
spoll(sld(12, 13), "s_cmp_ge_u32 s12, 80", sleep=opt('ysleep', 8), far=('s_cmp_ge_u32 s12, 24', opt('yfar', 32)))
stamp(11)
a(f"s_mul_i32 s10, s9, 10240\ns_add_u32 s11, s11, s10\ns_add_u32 s11, s11, {YA}\nv_lshlrev_b32 v1, 4, v0")
for q in range(10):
    a(f"buffer_load_dwordx4 {vr(16+4*q,4)}, v1, {WS}, s11 offen sc1\ns_add_u32 s11, s11, 1024")
a(f"v_add_u32 v1, {YAT}, v1")
for q in range(10):
    a(f"s_waitcnt vmcnt({9-q})\nds_write_b128 v1, {vr(16+4*q,4)} offset:{1024*q}")
a("s_waitcnt lgkmcnt(0)")
stamp(12)
a("s_barrier")
endp()

c_issue = sld(33, 100)
c_test = "s_cmp_ge_u32 s33, 64"
clr_s = f"s_load_dwordx4 s[28:31], s[{P['dbg']}:{P['dbg']+1}], 0"
a("L_aux:")
a(f"s_sub_u32 s8, s{S_J}, s8\ns_and_b32 s15, {WV}, 3\ns_mov_b32 s35, 0\nv_mov_b32 v230, 0\ns_mov_b32 s71, 0\ns_mul_i32 s69, {WV}, {AREG}")
a(f"s_lshl_b32 s9, s{S_XR}, 4\ns_lshl_b32 s10, s{S_XC}, 3\ns_add_u32 s9, s9, s10\ns_add_u32 s9, s9, s8")
RAW, DV = 164, 64
a("v_and_b32 v238, 3, v0\nv_lshlrev_b32 v238, 2, v238")
a(f"s_cmp_ge_u32 s8, 8\ns_cbranch_scc1 L_nolnwg\ns_cmp_lt_u32 {WV}, 4\ns_cbranch_scc1 L_lnw")
a(f"s_lshl_b32 s{S_CH}, s9, 2\ns_add_u32 s{S_CH}, s{S_CH}, s15\ns_branch L_par")
a("L_nolnwg:")
a(f"s_mul_i32 s10, s{S_XR}, 12\ns_lshl_b32 s11, s{S_XC}, 2\ns_add_u32 s10, s10, s11\ns_add_u32 s10, s10, s8\ns_lshl_b32 s10, s10, 3\ns_add_u32 s10, s10, {WV}\ns_add_u32 s{S_CH}, s10, 192")
a(f"s_lshl_b32 s10, s{S_XC}, 4\ns_add_u32 s10, s10, s8\ns_cmp_lg_u32 s10, 8\ns_cbranch_scc1 L_par")
a(f"s_lshl_b32 s10, s{S_XR}, 15\ns_lshl_b32 s11, {WV}, 12\ns_add_u32 s10, s10, s11\ns_add_u32 s10, s10, {CLR}\nv_lshlrev_b32 v1, 4, v0\ns_mov_b32 s35, 5")
zero(4, 4)
for i in range(4): a(f"buffer_store_dwordx4 v[4:7], v1, {WS}, s10 offen offset:{1024*i} sc1")
a("L_par:")
a(f"s_lshl_b32 s10, s{S_CH}, 8\nv_lshl_add_u32 v1, v0, 2, s10")
for i, nm in enumerate(["are", "aim", "bre", "bim", "cre", "cim"]):
    a(f"global_load_dword v{240+i}, v1, s[{P[nm]}:{P[nm]+1}]{NT1}")
a(f"s_lshl_b32 s10, s{S_CH}, 1\nv_mov_b32 v1, s10\nglobal_load_ushort v246, v1, s[{P['ldt']}:{P['ldt']+1}]")
a(f"global_load_ushort v147, v1, s[{P['dsk']}:{P['dsk']+1}]")
a("s_cmp_lt_u32 s8, 8\ns_cbranch_scc1 L_wrole\ns_cmp_lg_u32 s35, 5\ns_cbranch_scc1 L_cs")
a(f"s_waitcnt vmcnt(8)\ns_barrier\ns_cmp_lg_u32 {WV}, 0\ns_cbranch_scc1 L_cs")
a(f"s_lshl_b32 s10, s{S_XR}, 2\nv_mov_b32 v2, 1\nv_mov_b32 v4, 0\ns_mov_b64 exec, 1\nbuffer_store_dword v2, v4, {DBG}, s10 offen sc1\ns_mov_b64 exec, -1\ns_waitcnt vmcnt(1)")
stamp(1)
a("L_cs:")
a(f"s_mov_b32 s35, 0\ns_sub_u32 s9, s8, 8\ns_lshl_b32 s10, s{S_XR}, 2\ns_lshl_b32 s10, s10, s{S_XC}\ns_add_u32 s9, s9, s10")
a(f"s_cmp_eq_u32 s{S_XC}, 0\ns_cselect_b32 s10, 8, 3\ns_movk_i32 s11, 120\ns_mul_i32 s9, s9, s10\ns_add_u32 s9, s9, {WV}\ns_cmp_ge_u32 {WV}, s10\ns_cbranch_scc1 L_kgen\ns_cmp_ge_u32 s9, s11\ns_cbranch_scc1 L_kgen")
a(f"s_and_b32 s15, s9, 3\ns_lshr_b32 s9, s9, 2\ns_mul_i32 s10, s{S_XC}, 30\ns_add_u32 s9, s9, s10")
a("s_mul_i32 s12, s15, 552960\ns_lshl_b32 s11, s9, 6\ns_add_u32 s71, s12, s11")
a(f"v_and_b32 v4, 31, v0\nv_lshlrev_b32 v4, 1, v4\nv_add_u32 v4, s11, v4\nglobal_load_ushort v145, v4, s[{P['b1']}:{P['b1']+1}]")
a("v_lshrrev_b32 v2, 2, v0\nv_and_b32 v3, 3, v0\nv_mul_u32_u24 v1, 3456, v2\nv_lshl_add_u32 v230, v3, 4, v1\ns_mov_b32 s35, 2\ns_branch L_kgen")
a("L_wrole:")
W2R = lambda i: (RAW + 4*i) if i < 10 else (148 + 4*(i-10))
a("s_barrier")
srd(S_B, P['w2'], 2211840)
a("v_lshrrev_b32 v8, 3, v0\nv_mul_u32_u24 v8, 1280, v8\nv_and_b32 v9, 7, v0\nv_lshl_add_u32 v8, v9, 4, v8\ns_lshl_b32 s8, s9, 2\ns_add_u32 s8, s8, s15")
for u_ in range(3):
    a(f"s_add_u32 s10, s8, {256*u_}\ns_mul_i32 s11, s10, 6554\ns_lshr_b32 s11, s11, 16\ns_mul_i32 s70, s11, 10\ns_sub_u32 s70, s10, s70")
    a(f"s_mul_i32 s13, s11, 40960\ns_lshl_b32 s71, s70, 7\ns_add_u32 s13, s13, s71\ns_mul_i32 s71, s70, 216\ns_mul_i32 s70, s11, 43\ns_lshr_b32 s70, s70, 8\ns_mul_i32 s70, s70, 3\ns_sub_u32 s11, s11, s70\ns_sub_u32 s70, s11, s70\ns_cmp_ge_u32 s70, 3\ns_cselect_b32 s70, 24, 0\ns_add_u32 s11, s11, s70\ns_add_u32 s71, s71, s11\ns_lshl_b32 s71, s71, 10\ns_add_u32 s{96+u_}, s71, {W2F}")
    if u_ == 2: a(f"s_cmp_lt_u32 s10, 540\ns_cselect_b32 s13, s13, {OOB}\ns_cselect_b32 s98, s98, {OOB}")
    for q in range(4): a(f"buffer_load_dwordx4 {vr(W2R(4*u_+q),4)}, v8, {SB}, s13 offen{NT1}\ns_add_u32 s13, s13, 10240")
a("s_mov_b32 s35, 1")
a("L_kgen:")
a("s_mov_b32 s68, 0\ns_mov_b32 m0, s69")
a(lnc_addr)
a(f"s_mov_b32 s101, 0\nv_mov_b32 v146, 0\nv_mov_b32 v253, 0\ns_cmp_lt_u32 {WV}, 4\ns_cbranch_scc1 L_kg_nocs")
conv_setup()
a("L_kg_nocs:")
a("v_and_b32 v2, 31, v0\nv_mul_u32_u24 v2, 272, v2\nv_lshrrev_b32 v3, 5, v0\nv_lshl_add_u32 v2, v3, 4, v2\nv_add_u32 v228, s69, v2")
KA = 208
zero(KA, 16)
a("s_mov_b32 s3, 0\ns_cmp_eq_u32 s35, 1\ns_cbranch_scc1 L_kw12\ns_waitcnt vmcnt(1)")
a("L_kw12:")
a("s_waitcnt vmcnt(12)")
stamp(3)
a(f"v_lshlrev_b32 v3, 16, v246\nv_mul_f32 v3, {f32(math.log2(math.e))}, v3\nv_exp_f32 v3, v3\nv_cvt_pk_bf16_f32 v3, v3, v3\nv_lshlrev_b32 v229, 16, v3")
a("s_cmp_eq_u32 s35, 1\ns_cbranch_scc1 L_w2mid")
a("L_kg_loop:")
for i in range(6): a(f"v_and_b32 v{4+i}, 0xffff0000, v{240+i}\nv_lshlrev_b32 v{240+i}, 16, v{240+i}")
for i in range(4): a(f"v_mul_f32 v{4+i}, v229, v{4+i}")
a(f"v_mul_f32 v4, {f32(math.log2(math.e))}, v4\nv_mul_f32 v5, {f32(1/(2*math.pi))}, v5")
Z1, Z8, Z256, W = 10, 12, 14, 16
for k, z in ((1, Z1), (8, Z8), (256, Z256)):
    a(f"v_mul_f32 v20, {f32(k)}, v4\nv_mul_f32 v21, {f32(k)}, v5\nv_fract_f32 v21, v21\nv_exp_f32 v20, v20\nv_cos_f32 v{z}, v21\nv_sin_f32 v{z+1}, v21")
    neg = " neg_hi:[0,1]" if k == 8 else ""
    a(f"v_pk_mul_f32 {vr(z,2)}, {vr(z,2)}, v[20:21] op_sel:[0,0] op_sel_hi:[1,0]{neg}")
cmul(W, 8, 6, 20)
rowof = {}
h0 = [[0,1,2,3],[4,5,6,7],[1024,1032,1280,1288],[1536,1544,1792,1800]]
h1 = [[256,258,260,262],[264],[512,516,520],[768,772,776]]
for q in range(4):
    for i, v in enumerate(h0[q]): rowof[v] = 8*q + i
    for i, v in enumerate(h1[q]): rowof[v] = 8*q + 4 + i
cv = [0]
def put(src, row):
    t = 24 + (cv[0] % 4); cv[0] += 1
    a(f"v_cvt_pk_bf16_f32 v{t}, v{src}, v{src+1}\nds_write_addtid_b32 v{t} offset:{row*272}")
G = {0: W}
opsG = [lambda: put(W, rowof[0])]
for b in range(1, 9):
    G[b] = 32 + 2*b
    opsG.append(lambda b=b: (cmul(G[b], G[b-1], Z1, 20), put(G[b], rowof[b]) if b < 8 else None))
Pq = {1: Z256}
for q in range(1, 8):
    if q > 1:
        Pq[q] = 52 + 2*(q & 1)
        opsG.append(lambda q=q: cmul(Pq[q], Pq[q-1], Z256, 20))
    ds = {1: (0,2,4,6,8), 2: (0,4,8), 3: (0,4,8)}.get(q, (0, 8))
    for n, d in enumerate(ds):
        opsG.append(lambda q=q, d=d, n=n: (cmul(56+2*(n&1), G[d], Pq[q], 20), put(56+2*(n&1), rowof[256*q+d])))
opsE = [lambda: a(f"v_mov_b32 v28, 0x3f80\nds_write_addtid_b32 v28 offset:{32*272}"), lambda: put(Z8, 33)]
for j in range(2, 32):
    src = Z8 if j == 2 else 60 + 2*((j-1) & 1)
    dst = 60 + 2*(j & 1)
    opsE.append(lambda src=src, dst=dst, j=j: (cmul(dst, src, Z8, 22), put(dst, 32+j)))
for i in range(max(len(opsG), len(opsE))):
    if i < len(opsE): opsE[i]()
    if i < len(opsG): opsG[i]()
    if i < 10:
        a(f"s_cmp_lg_u32 s35, 2\ns_cbranch_scc1 L_kg_nl{i}\nbuffer_load_dwordx4 {vr(RAW+4*i,4)}, v230, {SB}, s71 offen{NT}\ns_add_u32 s71, s71, 55296")
        a(f"L_kg_nl{i}:")
    if i == 12 and opt("eu", 1):
        a(f"s_lshl_b32 s10, s3, 2\ns_and_b32 s10, s10, {WV}\ns_cbranch_scc1 L_eu0")
        a("L_kg_ne1:")
    if i == 31 and opt("eu", 1):
        a("s_cmp_eq_u32 s68, 1\ns_cbranch_scc1 L_eu")
        a("L_kg_ne2:")
    if i == opt("wsig", 14):
        a("s_cmp_eq_u32 s35, 6\ns_cbranch_scc1 L_w2sig")
        a("L_kg_nsig:")
a("s_waitcnt lgkmcnt(0)")
for k in range(8):
    a(f"ds_read_b128 {vr(64+8*k,4)}, v228 offset:{32*k}\nds_read_b128 {vr(68+8*k,4)}, v228 offset:{32*272+32*k}")
for k in range(8):
    a(f"s_waitcnt lgkmcnt({14-2*k})")
    a(f"v_mfma_f32_32x32x16_bf16 {vr(KA,16)}, {vr(64+8*k,4)}, {vr(68+8*k,4)}, {vr(KA,16)}")
a("s_cmp_lg_u32 s3, 0\ns_cbranch_scc1 L_kg_done")
a(clr_s)
a("s_mov_b32 s3, 1\ns_cmp_lg_u32 s35, 2\ns_cbranch_scc1 L_kg_loop\ns_branch L_csum")
a("L_eu0:")
a("s_waitcnt lgkmcnt(0)\ns_and_b32 s10, s28, s29\ns_and_b32 s11, s30, s31\ns_and_b32 s10, s10, s11\ns_cselect_b32 s35, 4, s35\ns_cmp_lt_u32 s35, 4\ns_cbranch_scc1 L_kg_ne1")
a(c_issue)
a("s_mov_b32 s68, 1\ns_branch L_kg_ne1")
a("L_eu:")
a("s_mov_b32 s68, 0\ns_waitcnt lgkmcnt(0)")
a(c_test)
a("s_cbranch_scc0 L_kg_ne2")
uloads()
a("s_mov_b32 s68, 2\ns_branch L_kg_ne2")
def need_clr(tag):
    a(f"s_waitcnt lgkmcnt(0)\ns_and_b32 s28, s28, s29\ns_and_b32 s30, s30, s31\ns_and_b32 s28, s28, s30\ns_cbranch_scc1 L_clr_{tag}")
    poll(clr_issue(239, 238), clr_test(239), sleep=8, issued=False)
    a(f"L_clr_{tag}:")
def touch():
    if not opt("touch", 0): return
    n = 270 if RS else 135
    a(f"s_and_b32 s10, s8, 7\ns_lshl_b32 s10, s10, 3\ns_add_u32 s10, s10, {WV}")
    if RS: a(f"s_and_b32 s11, s2, 7\ns_lshl_b32 s11, s11, 3\ns_add_u32 s10, s10, s11\ns_and_b32 s10, s10, 63\ns_mul_i32 s10, s10, {n*128}")
    else: a(f"s_lshl_b32 s11, s{S_XR}, 4\ns_add_u32 s10, s10, s11\ns_and_b32 s10, s10, 63\ns_mul_i32 s10, s10, {n*128}\ns_mul_i32 s11, s{S_XC}, 1105920\ns_add_u32 s10, s10, s11")
    a(f"s_add_u32 s10, s10, {W2F}\nv_lshlrev_b32 v4, 7, v0")
    for i in range(n // 64): a(f"buffer_load_dword v144, v4, {WS}, s10 offen sc1\ns_add_u32 s10, s10, 8192")
    a(few((1 << (n % 64)) - 1, f"buffer_load_dword v144, v4, {WS}, s10 offen sc1"))
def lds_wait(tag, target):
    a("s_mov_b32 s12, 0")
    a(f"L_sb{tag}:")
    a("s_add_u32 s12, s12, 1\ns_cmp_gt_u32 s12, 2000000\ns_cbranch_scc1 L_exit")
    a(f"ds_read_b32 v15, v14\ns_waitcnt lgkmcnt(0)\nv_readfirstlane_b32 s11, v15\ns_cmp_lt_u32 s11, {target}\ns_cbranch_scc1 L_sb{tag}")
a("L_lnw:")
a("s_lshl_b32 s10, s9, 5\ns_lshl_b32 s11, s15, 3\ns_add_u32 s14, s10, s11\ns_mul_i32 s11, s14, 1280")
a("v_lshrrev_b32 v2, 4, v0\nv_and_b32 v3, 15, v0\nv_mul_u32_u24 v1, 2560, v2\nv_lshl_add_u32 v1, v3, 4, v1")
for sg in range(2):
    for i in range(5):
        a(f"buffer_load_dwordx4 {vr(RAW+20*sg+4*i,4)}, v1, {SA}, s11 offen offset:{sg*1280+i*256}{NT}")
a(f"v_mov_b32 v4, {CNT}\nv_mov_b32 v6, 0\nv_mov_b32 v7, 0\nds_write_b64 v4, v[6:7]\ns_waitcnt lgkmcnt(0)\ns_barrier")
a("s_lshl_b32 s11, s15, 4\nv_lshlrev_b32 v8, 2, v2\nv_add_u32 v8, s11, v8")
for i in range(5):
    a(f"v_add_u32 v4, {16*i}, v3\nv_mul_u32_u24 v5, 3277, v4\nv_lshrrev_b32 v5, 16, v5\nv_mul_u32_u24 v5, {BREG-20*528}, v5\nv_mul_u32_u24 v4, 528, v4\nv_add3_u32 v{150+i}, v4, v5, v8")
a(f"s_setprio 2\nv_mov_b32 v14, {CNT}\nv_lshrrev_b32 v2, 4, v0\ns_mov_b32 s12, 0x3f803f80")
zero(4, 4)
a("s_waitcnt vmcnt(0)")
stamp(1)
a(clr_s)
for sg in range(2):
    for k in range(20):
        a(f"v_dot2_f32_bf16 v{4+2*sg+(k&1)}, v{RAW+20*sg+k}, s12, v{4+2*sg+(k&1)}")
a("v_add_f32 v4, v4, v5\nv_add_f32 v6, v6, v7")
def unp(sg, ks):
    for k in ks:
        d = DV + 40*sg + 2*k
        a(f"v_lshlrev_b32 v{d}, 16, v{RAW+20*sg+k}\nv_and_b32 v{d+1}, 0xffff0000, v{RAW+20*sg+k}")
for n, sh in enumerate((8, 4, 2, 1)):
    a(f"v_add_f32_dpp v4, v4, v4 row_ror:{sh} row_mask:0xf bank_mask:0xf\nv_add_f32_dpp v6, v6, v6 row_ror:{sh} row_mask:0xf bank_mask:0xf")
    unp(0, range(5*n, 5*n+5))
a(f"v_mul_f32 v4, {f32(1/640)}, v4\nv_mul_f32 v6, {f32(1/640)}, v6")
a("v_cvt_pk_bf16_f32 v5, v4, v6\nv_lshlrev_b32 v8, 16, v5\nv_and_b32 v9, 0xffff0000, v5")
a("v_sub_f32 v56, 0, v8\nv_sub_f32 v57, 0, v8\nv_sub_f32 v58, 0, v9\nv_sub_f32 v59, 0, v9")
zero(10, 4)
unp(1, range(20))
for sg in range(2):
    for k in range(20):
        d = DV + 40*sg + 2*k
        a(f"v_pk_add_f32 {vr(d,2)}, {vr(d,2)}, {vr(56+2*sg,2)}")
    for k in range(20):
        d = DV + 40*sg + 2*k
        a(f"v_pk_fma_f32 {vr(10+2*sg,2)}, {vr(d,2)}, {vr(d,2)}, {vr(10+2*sg,2)}")
a("v_add_f32 v10, v10, v11\nv_add_f32 v12, v12, v13")
def rnd(sg, ks):
    for k in ks:
        d = DV + 40*sg + 2*k
        a(f"v_cvt_pk_bf16_f32 v{RAW+20*sg+k}, v{d}, v{d+1}")
for n, sh in enumerate((8, 4, 2, 1)):
    a(f"v_add_f32_dpp v10, v10, v10 row_ror:{sh} row_mask:0xf bank_mask:0xf\nv_add_f32_dpp v12, v12, v12 row_ror:{sh} row_mask:0xf bank_mask:0xf")
    rnd(0, range(2*n, 2*n+2))
a("v_sub_f32 v4, v4, v8\nv_sub_f32 v6, v6, v9\nv_mul_f32 v4, v4, v4\nv_mul_f32 v6, v6, v6")
a(f"s_mov_b32 s12, {f32(1/640)}\nv_fma_f32 v4, v10, s12, -v4\nv_fma_f32 v6, v12, s12, -v6")
a("v_max_f32 v4, 0, v4\nv_max_f32 v6, 0, v6")
a("v_cvt_pk_bf16_f32 v7, v4, v6\nv_lshlrev_b32 v4, 16, v7\nv_and_b32 v6, 0xffff0000, v7")
a(f"v_add_f32 v4, {f32(1e-5)}, v4\nv_add_f32 v6, {f32(1e-5)}, v6")
a("v_cvt_pk_bf16_f32 v7, v4, v6\nv_lshlrev_b32 v4, 16, v7\nv_and_b32 v6, 0xffff0000, v7")
a("v_sqrt_f32 v4, v4\nv_sqrt_f32 v6, v6\nv_cvt_pk_bf16_f32 v7, v4, v6")
a("v_lshlrev_b32 v4, 16, v7\nv_and_b32 v6, 0xffff0000, v7\nv_rcp_f32 v60, v4\nv_rcp_f32 v61, v4\nv_rcp_f32 v62, v6\nv_rcp_f32 v63, v6")
a("v_and_b32 v12, 0xffff, v5\nv_or_b32 v12, v12, v4\nv_lshrrev_b32 v13, 16, v5\nv_or_b32 v13, v13, v6")
a(f"s_lshl_b32 s11, s14, 2\ns_add_u32 s11, s11, {STATS}\nv_lshlrev_b32 v1, 3, v2")
need_clr("ln")
a(f"s_mov_b32 exec_lo, 0x10001\ns_mov_b32 exec_hi, 0x10001\nbuffer_store_dwordx2 v[12:13], v1, {WS}, s11 offen sc1\ns_mov_b64 exec, -1")
stamp(2)
rnd(0, range(8, 20)); rnd(1, range(20))
unp(0, range(20)); unp(1, range(20))
for sg in range(2):
    for k in range(20):
        d = DV + 40*sg + 2*k
        a(f"v_pk_mul_f32 {vr(d,2)}, {vr(d,2)}, {vr(60+2*sg,2)}")
for k in range(20):
    for h in range(2):
        d = DV + 2*k + h
        a(f"v_cvt_pk_bf16_f32 v{d}, v{d}, v{d+40}")
    d = DV + 2*k
    a(f"ds_write2_b32 v{150+k//4}, v{d}, v{d+1} offset0:{(k%4)*32} offset1:{(k%4)*32+16}")
a("v_mov_b32 v15, 1\nds_add_u32 v14, v15")
a("v_lshrrev_b32 v3, 5, v0\nv_lshlrev_b32 v2, 4, v0\nv_lshl_add_u32 v1, v3, 4, v2\nv_add_u32 v1, s69, v1")
a("s_mul_i32 s10, s9, 40960\ns_mul_i32 s11, s15, 10240\ns_add_u32 s10, s10, s11")
lds_wait("b", 256)
for i in range(10): a(f"ds_read_b128 {vr(RAW+4*i,4)}, v1 offset:{1056*i}")
for i in range(10):
    a(f"s_waitcnt lgkmcnt({9-i})\nbuffer_store_dwordx4 {vr(RAW+4*i,4)}, v2, {WS}, s10 offen sc1\ns_add_u32 s10, s10, 1024")
a(f"s_lshl_b32 s10, s15, 11\ns_add_u32 s10, s10, {LNC}\nv_lshlrev_b32 v4, 7, v0\nv_mov_b32 v5, 1")
a(f"s_waitcnt vmcnt(0)\ns_mov_b64 exec, 0xffff\nbuffer_atomic_add v5, v4, {WS}, s10 offen sc1\ns_mov_b64 exec, -1\ns_setprio 0")
stamp(4)
a("s_lshl_b32 s8, s9, 2\ns_add_u32 s8, s8, s15")
a("s_cmp_lg_u32 s8, 255\ns_cbranch_scc1 L_norelay")
a(f"v_lshlrev_b32 v6, 6, v0\ns_mov_b32 s8, {W2C}")
poll(few(3, f"buffer_load_dword v7, v6, {DBG}, 0 offen offset:128 sc1"),
     "v_readlane_b32 s9, v7, 0\nv_readlane_b32 s10, v7, 1\ns_add_u32 s9, s9, s10\ns_cmp_ge_u32 s9, 64", sleep=4, issued=False)
stamp(11)
a(f"s_mov_b32 exec_hi, 0\nbuffer_store_dword v5, v4, {WS}, s8 offen offset:1024 sc1\ns_mov_b32 exec_hi, -1")
a("L_norelay:")
a("s_mov_b32 s35, 1\ns_branch L_g2")
a("L_csum:")
a("s_setprio 3\ns_mov_b32 s12, 0x00003f80\ns_mov_b32 s13, 0x3f800000\nv_and_b32 v3, 3, v0")
zero(4, 8)
a("s_waitcnt vmcnt(0)")
for i in range(10):
    for k in range(4):
        a(f"v_dot2_f32_bf16 v{4+2*k}, v{RAW+4*i+k}, s12, v{4+2*k}\nv_dot2_f32_bf16 v{5+2*k}, v{RAW+4*i+k}, s13, v{5+2*k}")
for sh in (8, 4):
    for r in range(8): a(f"v_add_f32_dpp v{4+r}, v{4+r}, v{4+r} row_ror:{sh} row_mask:0xf bank_mask:0xf")
a("v_lshrrev_b32 v12, 4, v0\nv_lshlrev_b32 v12, 7, v12\nv_lshl_add_u32 v12, v3, 5, v12\nv_add_u32 v12, s69, v12")
a("ds_write_b128 v12, v[4:7]\nds_write_b128 v12, v[8:11] offset:16")
a("v_and_b32 v12, 31, v0\nv_lshl_add_u32 v13, v12, 2, s69")
for p in range(4): a(f"ds_read_b32 v{16+p}, v13 offset:{128*p}")
a("s_waitcnt lgkmcnt(0)\nv_add_f32 v16, v16, v17\nv_add_f32 v18, v18, v19\nv_add_f32 v16, v16, v18")
a("v_cvt_pk_bf16_f32 v4, v16, v16\nv_lshlrev_b32 v5, 16, v4\nv_sub_f32 v5, v16, v5")
a("v_cvt_pk_bf16_f32 v6, v16, v5\nv_and_b32 v7, 0xffff0000, v6\nv_sub_f32 v7, v5, v7")
a("v_cvt_pk_bf16_f32 v7, v7, v7\nv_and_b32 v7, 0xffff, v7\nv_or_b32 v7, 1, v7")
a(f"s_lshl_b32 s12, s9, 8\ns_mul_i32 s13, s15, {CSP}\ns_add_u32 s12, s12, s13\ns_add_u32 s12, s12, {CSUM}\nv_lshlrev_b32 v12, 3, v12")
need_clr("cs")
a("v_lshl_or_b32 v7, v145, 16, v7")
a(f"s_mov_b32 exec_hi, 0\nbuffer_store_dwordx2 v[6:7], v12, {WS}, s12 offen sc1\ns_mov_b32 exec_hi, -1")
stamp(2)
a("s_setprio 0\ns_mov_b32 s35, 4\ns_branch L_kg_loop")
a("L_w2mid:")
a("s_setprio 3")
a("v_lshlrev_b32 v2, 4, v0\ns_waitcnt vmcnt(0)")
for i in range(12): a(f"ds_write_b128 v{cLIN}, {vr(W2R(i),4)} offset:{1024*i}")
a("v_lshrrev_b32 v6, 5, v0\nv_bfe_u32 v7, v0, 4, 1\nv_lshlrev_b32 v6, 4, v6\nv_lshl_add_u32 v6, v7, 2, v6\nv_bfe_u32 v7, v0, 2, 2\nv_add_u32 v6, v6, v7")
a("v_lshlrev_b32 v6, 7, v6\nv_and_b32 v7, 3, v0\nv_lshl_add_u32 v6, v7, 3, v6\nv_add_u32 v6, s69, v6")
for u_ in range(3):
    for dt in range(4):
        for h in range(2): a(f"ds_read_b64_tr_b16 {vr(W2R(4*u_+dt)+2*h,2)}, v6 offset:{4096*u_+1024*h+32*dt}")
    for dt in range(4):
        a(f"s_waitcnt lgkmcnt({6-2*dt})\nbuffer_store_dwordx4 {vr(W2R(4*u_+dt),4)}, v2, {WS}, s{96+u_} offen sc1\ns_add_u32 s{96+u_}, s{96+u_}, 55296")
a("s_setprio 2\ns_mov_b32 s35, 6\ns_branch L_kg_loop")
a("L_w2sig:")
a(f"v_mov_b32 v4, {CNT+4}\nv_mov_b32 v5, 1\nv_mov_b32 v6, 0\ns_waitcnt vmcnt(0)\ns_mov_b64 exec, 1\nds_add_rtn_u32 v7, v4, v5\ns_waitcnt lgkmcnt(0)\nv_readfirstlane_b32 s10, v7")
a(f"s_and_b32 s11, s9, 1\ns_lshl_b32 s11, s11, 6\ns_add_u32 s11, s11, 128\ns_cmp_eq_u32 s10, 3\ns_cselect_b32 s11, s11, {OOB}\nbuffer_atomic_add v5, v6, {DBG}, s11 offen sc1\ns_mov_b64 exec, -1")
stamp(2)
a(f"s_setprio {opt('wprio', 1)}\ns_mov_b32 s35, 0\ns_branch L_kg_nsig")
a("L_kg_done:")
a("s_waitcnt vmcnt(4)")
a("s_cmp_ge_u32 s35, 3\ns_cbranch_scc1 L_clr_fin")
a(clr_s)
need_clr("fin")
a(f"s_waitcnt lgkmcnt(0)\ns_cmp_lt_u32 {WV}, 4\ns_cbranch_scc1 L_kg_nc\ns_cmp_eq_u32 s68, 2\ns_cbranch_scc1 L_kg_nc\ns_waitcnt vmcnt(0)")
a(c_issue)
a("L_kg_nc:")
a("s_nop 7")
stamp(4)
a(f"s_setprio {opt('pprio', 2)}")
r = lambda i: KA + i
a("v_lshlrev_b32 v1, 4, v0\nv_add_u32 v13, s69, v1")
zero(4, 4)
for i in range(3): a(f"ds_write_b128 v13, v[4:7] offset:{SCR+1024*i}")
a("v_and_b32 v3, 31, v0\nv_lshlrev_b32 v2, 4, v3\nv_sub_u32 v2, s69, v2\nv_add_u32 v2, 512, v2")
def pack(o, pairs):
    for i, (lo, hi) in enumerate(pairs): a(f"v_cvt_pk_bf16_f32 v{o+i}, {lo}, {hi}")
R = lambda i: f"v{KA+i}"
pack(16, [(R(7),R(6)),(R(5),R(4)),(R(3),R(2)),(R(1),R(0))])
pack(20, [(R(4),R(3)),(R(2),R(2)),(R(2),R(1)),(R(0),R(0))])
pack(24, [("0","0"),(R(9),R(9)),(R(9),R(8)),(R(8),R(8))])
pack(28, [(R(9),R(10)),(R(13),R(14))])
pack(30, [(R(9),R(11)),(R(13),R(15))])
a(f"v_and_b32 v8, 1, v3\nv_and_b32 v10, 30, v3\nv_mul_u32_u24 v9, 320, v8\nv_mul_u32_u24 v8, 640, v8\ns_add_u32 s10, s69, {T2}\nv_sub_u32 v10, s10, v10\nv_add_u32 v8, v8, v10\nv_add_u32 v9, v9, v10")
a("s_mov_b32 exec_hi, 0")
a(f"ds_write_b128 v2, v[16:19] offset:{IMG+1072-512}")
for q in range(4):
    for cp in range(2): a(f"ds_write_b16{'_d16_hi' if q & 1 else ''} v9, v{30+q//2} offset:{T3-T2 + 160*cp + 2*(63-16*q-cp)}")
a("s_mov_b32 exec_hi, -1\ns_mov_b32 exec_lo, 0")
a(f"ds_write_b128 v2, v[20:23] offset:{IMG+560-512}")
for q in range(2):
    for w in range(2):
        for cp in range(2): a(f"ds_write_b16{'_d16_hi' if w else ''} v8, v{28+q} offset:{320*w + 160*cp + 2*(47-16*q-cp)}")
a(f"s_mov_b32 exec_hi, 1\nds_write_b128 v2, v[24:27] offset:{IMG+48-512}\nds_write_b16 v8, v4 offset:{2*47}\nds_write_b16 v8, v4 offset:{160+2*46}\ns_mov_b64 exec, -1")
a(f"s_cmp_lt_u32 {WV}, 4\ns_cbranch_scc1 L_kexp")
a("s_cmp_eq_u32 s68, 2\ns_cbranch_scc1 L_cv_kpart\ns_waitcnt lgkmcnt(0)")
a(c_test)
a("s_cbranch_scc0 L_cv_kpart")
uloads()
a("s_mov_b32 s68, 2")
a("L_cv_kpart:")
B2, B3 = 164, 188
a(f"v_mov_b32 v5, s69\nds_read_u16 v34, v5 offset:{T2 + 6*160 + 2*16}")
a(f"ds_read_b128 v[16:19], v{cLIN} offset:{IMG}\nds_read_b64 v[20:21], v{cLIN} offset:{IMG+16}\nds_read_b128 v[24:27], v{cIMG2} offset:{IMG+1024}\nds_read_b64 v[28:29], v{cIMG2} offset:{IMG+1040}")
for i in range(6):
    for h in range(2): a(f"ds_read2_b32 {vr(B2+4*i+2*h,2)}, v{cT2} offset0:{4*i+2*h} offset1:{4*i+2*h+1}")
for d in range(4):
    for h in range(2): a(f"ds_read2_b32 {vr(B3+4*d+2*h,2)}, v{cT3} offset0:{8*(3-d)+2*h} offset1:{8*(3-d)+2*h+1}")
a("v_lshl_or_b32 v5, v147, 16, v147")
for k in range(4): a(f"v_and_b32 v{AD+k}, v{AD+k}, v5")
a("s_waitcnt lgkmcnt(15)\nv_lshl_or_b32 v5, v34, 16, v34")
for k in range(4): a(f"v_and_b32 v{AB+k}, v{AB+k}, v5")
for rr, (D, va, off) in enumerate(((16, cKW1, 0), (24, cKW2, 4608))):
    O = 64 + 16*rr
    for i in range(4):
        a(f"v_mov_b32 v{O+4*i}, v{D+i}\nv_mov_b32 v{O+4*i+1}, v{D+i+1}")
        a(f"v_alignbit_b32 v{O+4*i+2}, v{D+i+1}, v{D+i}, 16\nv_alignbit_b32 v{O+4*i+3}, v{D+i+2}, v{D+i+1}, 16")
        a(f"ds_write_b128 v{va}, {vr(O+4*i,4)} offset:{off + 16*i}")
a(f"ds_read_b64 {vr(A16,2)}, v{cA0}\nds_read_b64 {vr(A16+2,2)}, v{cA1}")
stamp(5)
a("s_cmp_lg_u32 s101, 0\ns_cbranch_scc1 L_cv_direct")
a("L_cv_upart:")
a(f"s_setprio {opt('pprio', 2)}")
zero(4, 4)
a(f"s_mov_b64 exec, 0x3fffffff\nds_write_b128 v{cLIN}, v[4:7] offset:{UB-480}\ns_mov_b64 exec, 3")
for o in (W3B-48, W5B-48, W7B-48, W9B-48, W9B+2032): a(f"ds_write_b128 v{cLIN}, v[4:7] offset:{o}")
a("s_mov_b64 exec, -1")
a("s_bitcmp1_b32 s68, 1\ns_cbranch_scc1 L_cv_u2")
spoll(c_issue, c_test, sleep=opt("lsleep", 6))
uloads()
a("L_cv_u2:")
stamp(6)
a("s_waitcnt vmcnt(0)")
for q in range(4): a(f"ds_write_b128 v{cLIN}, {vr(148+4*q,4)} offset:{UB+1024*q}")
SET = [(16, 24), (56, 64)]; CA = 96
a(f"v_mov_b32 v13, v{cLIN}\ns_mov_b32 s3, 0")
o = UB - 16
wrd = f"ds_read_b64 v[128:129], v13 offset:{o-8}\nds_read_b128 v[130:133], v13 offset:{o}\nds_read_b64 v[134:135], v13 offset:{o+16}"
a(wrd)
a("s_waitcnt lgkmcnt(0)")
a("L_cv_win:")
D = 128; Pf = 96
for e in range(16):
    a(f"v_lshlrev_b32 v{Pf+e}, 16, v{D+e//2}" if e % 2 == 0 else f"v_and_b32 v{Pf+e}, 0xffff0000, v{D+e//2}")
a(wrd.replace(f"offset:{o-8}", f"offset:{o-8+1024}").replace(f"offset:{o}\n", f"offset:{o+1024}\n").replace(f"offset:{o+16}", f"offset:{o+16+1024}"))
for e in range(1, 16): a(f"v_add_f32 v{Pf+e}, v{Pf+e}, v{Pf+e-1}")
for h, base in ((1, W3B), (2, W5B), (3, W7B), (4, W9B)):
    if h == 3: a("s_cmp_eq_u32 s3, 2\ns_cbranch_scc1 L_cv_wend")
    T = 112
    for i in range(8):
        b = 4+i-h-1
        a(f"v_sub_f32 v{T+i}, v{Pf+4+i+h}, v{Pf+b}" if b >= 0 else f"v_mov_b32 v{T+i}, v{Pf+4+i+h}")
    for i in range(4): a(f"v_cvt_pk_bf16_f32 v{120+4*(h&1)+i}, v{T+2*i}, v{T+2*i+1}")
    a(f"ds_write_b128 v13, {vr(120+4*(h&1),4)} offset:{base-16}")
a("v_add_u32 v13, 1024, v13\ns_add_u32 s3, s3, 1\ns_waitcnt lgkmcnt(4)\ns_branch L_cv_win")
a("L_cv_wend:")
a("s_cmp_lg_u32 s101, 0\ns_cbranch_scc1 L_cv_rk")
a("L_cv_direct:")
a(f"v_add_u32 v8, 2304, v{cA0}\nv_add_u32 v9, 2304, v{cA1}\nv_mov_b32 v10, v{cB}")
def rd(st):
    A_, B_ = SET[st]; Rr = []
    for x in range(2):
        Rr.append(f"ds_read_b64 {vr(A_+4*x,2)}, v8 offset:{2304*(1-x)}")
        Rr.append(f"ds_read_b64 {vr(A_+4*x+2,2)}, v9 offset:{2304*(1-x)}")
    for b in range(8): Rr.append(f"ds_read_b128 {vr(B_+4*b,4)}, v10 offset:{512*b}")
    return Rr
advk = ["v_subrev_u32 v8, 288, v8", "v_subrev_u32 v9, 288, v9", "v_subrev_u32 v10, 64, v10"]
for x in rd(0) + advk: a(x)
a(f"s_setprio {opt('cprio', 2)}\ns_mov_b32 s3, 0\ns_waitcnt lgkmcnt(0)")
if PROF: a("s_cmp_lt_u32 s4, 4\ns_cbranch_scc1 L_ns7")
stamp(7)
if PROF: a("L_ns7:")
def mf(n, A_, B_, c=None): a(f"v_mfma_f32_16x16x32_bf16 {vr(CA+4*n,4)}, {vr(A_,4)}, {vr(B_,4)}, {c if c else vr(CA+4*n,4)}")
for b in range(8): mf(b, AD, SET[0][1]+4*b, "0")
for b in range(6): mf(b+2, A16, SET[0][1]+4*b)
for b in range(4): mf(b+4, AB, SET[0][1]+4*b)
a("L_cv_loop:")
for st in range(2):
    A_, B_ = SET[st]; Rr = rd(1-st); n = 0
    for x in range(2):
        for b in range(8-x):
            mf(x+b, A_+4*x, B_+4*b)
            if n < 6: a(Rr[2*n]); a(Rr[2*n+1])
            elif n < 9: a(advk[n-6])
            if st == 1 and n == 12: a("s_add_u32 s3, s3, 1\ns_cmp_lt_u32 s3, 4")
            n += 1
    a("s_waitcnt lgkmcnt(0)")
a("s_cbranch_scc1 L_cv_loop")
a("L_cv_far:")
for f in range(12):
    for h in range(2): a(f"ds_read_b64_tr_b16 {vr(16+4*f+2*h,2)}, v{cW2} offset:{256*f+128*h}")
    if f == 6: a("s_waitcnt lgkmcnt(8)")
for f in range(4):
    for h in range(2): a(f"ds_read_b64_tr_b16 {vr(64+4*f+2*h,2)}, v{cW3} offset:{512*f+128*h}")
a("s_waitcnt lgkmcnt(8)")
for f in range(12):
    for n in range(2, 8):
        i = f + 8 - 2*n
        if 0 <= i < 6: mf(n, 16+4*f, B2+4*i)
a("s_waitcnt lgkmcnt(0)")
for f in range(4):
    for n in range(4+f, 8): mf(n, 64+4*f, B3+4*(n-f-4))
if PROF: a("s_cmp_lt_u32 s4, 4\ns_cbranch_scc1 L_ns8")
stamp(8)
if PROF: a("L_ns8:")
a(f"s_lshl_b32 s14, s{S_CH}, 7\ns_add_u32 s14, s14, {YA}\ns_nop 7")
for n in range(0, 8, 2):
    o = 16 + 2*n
    a(f"v_cvt_pk_bf16_f32 v{o}, v{CA+4*n}, v{CA+4*n+1}\nv_cvt_pk_bf16_f32 v{o+1}, v{CA+4*n+2}, v{CA+4*n+3}")
    a(f"v_cvt_pk_bf16_f32 v{o+2}, v{CA+4*n+4}, v{CA+4*n+5}\nv_cvt_pk_bf16_f32 v{o+3}, v{CA+4*n+6}, v{CA+4*n+7}")
    a(f"v_permlane16_swap_b32 v{o}, v{o+2}\nv_permlane16_swap_b32 v{o+1}, v{o+3}")
    a(f"buffer_store_dwordx4 {vr(o,4)}, v{cST}, {WS}, s14 offen sc1\ns_add_u32 s14, s14, {8*81920}")
a(f"s_mul_i32 s13, s{S_CH}, 820\ns_lshr_b32 s13, s13, 16\ns_lshl_b32 s14, s13, 9\ns_add_u32 s14, s14, {YAC}\nv_lshlrev_b32 v4, 7, v0\nv_mov_b32 v5, 1")
a(f"s_waitcnt vmcnt(0)\ns_mov_b64 exec, 15\nbuffer_atomic_add v5, v4, {WS}, s14 offen sc1\ns_mov_b64 exec, -1")
a("s_setprio 0")
stamp(9)
a(f"s_cmp_eq_u32 {WV}, 7\ns_cbranch_scc1 L_fetch")
endp()
a("L_kexp:")
for q in range(3): a(f"ds_read_b128 {vr(16+4*q,4)}, v13 offset:{SCR+1024*q}")
a(f"s_lshl_b32 s9, s{S_CH}, 12\ns_add_u32 s9, s9, {KD}")
for q in range(3): a(f"s_waitcnt lgkmcnt({2-q})\nbuffer_store_dwordx4 {vr(16+4*q,4)}, v1, {WS}, s9 offen offset:{1024*q} sc1")
a(f"s_sub_u32 s8, s{S_CH}, 256\ns_lshr_b32 s8, s8, 3\ns_lshl_b32 s8, s8, 2\ns_add_u32 s8, s8, {WV}\ns_cmp_ge_u32 s8, 144\ns_cselect_b32 s12, 1, 0\ns_mul_i32 s9, s12, 144\ns_sub_u32 s8, s8, s9")
a("s_mul_i32 s9, s8, 1821\ns_lshr_b32 s9, s9, 16\ns_mul_i32 s10, s9, 36\ns_sub_u32 s8, s8, s10")
a("s_cmp_ge_u32 s8, 20\ns_cselect_b32 s10, 1, 0\ns_mul_i32 s11, s10, 20\ns_sub_u32 s8, s8, s11\ns_lshl_b32 s8, s8, 3\ns_lshl_b32 s9, s9, 1\ns_add_u32 s8, s8, s9\ns_add_u32 s8, s8, s10")
a(f"s_lshl_b32 s8, s8, 7\ns_add_u32 s8, s8, {MBOX}\ns_lshl_b32 s9, 0x1000000, s12\nv_mov_b32 v4, 0\nv_mov_b32 v5, s9")
a(f"s_waitcnt vmcnt(0)\ns_mov_b64 exec, 1\nbuffer_atomic_or v5, v4, {WS}, s8 offen sc1\ns_mov_b64 exec, -1")
stamp(12)
a("s_setprio 0\ns_mov_b32 s35, 1\ns_branch L_g2")
a("L_cv_rk:")
a("s_bitcmp1_b32 s68, 0\ns_cbranch_scc1 L_cv_k1")
spoll(sld(31, S_MB), "s_and_b32 s13, s31, s101", sleep=6)
kloads()
a("L_cv_k1:")
for q in range(3): a(f"s_waitcnt vmcnt({2-q})\nds_write_b128 v{cLIN}, {vr(32+4*q,4)} offset:{SCR+1024*q}")
stamp(4)
a("s_branch L_cv_kpart")

a("L_end:")
if PROF:
    a(f"s_lshl_b32 s93, s2, 3\ns_add_u32 s93, s93, {WV}\ns_lshl_b32 s93, s93, 6\ns_add_u32 s93, s93, {PROFB}")
    a(f"s_memrealtime s[94:95]\ns_waitcnt lgkmcnt(0)\ns_mov_b32 s87, s94\ns_mov_b32 s72, s{S_SPIN}")
    for i in range(16): a(f"v_mov_b32 v{224+i}, s{72+i}")
    a("v_mov_b32 v255, 0\ns_mov_b64 exec, 1")
    for i in range(4): a(f"buffer_store_dwordx4 {vr(224+4*i,4)}, v255, {WS}, s93 offen offset:{16*i}")
    if opt("dbgmax", 0):
        a(f"v_not_b32 v238, v238\ns_and_b32 s93, {WV}, 3\ns_cmp_lg_u32 s93, 0\ns_cbranch_scc1 L_exit")
        sel0 = {1: 14, 2: 15, 3: 1, 4: 2, 5: 5, 6: 6, 7: 8, 8: 10}
        sel4 = {9: 10, 10: 4, 11: 7, 12: 8, 13: 9}
        a(f"s_cmp_lg_u32 {WV}, 0\ns_cbranch_scc1 L_dbg4")
        for d, i in sel0.items(): a(f"buffer_atomic_umax v{224+i}, v255, {DBG}, 0 offen offset:{4*d} sc1")
        a("s_branch L_exit")
        a("L_dbg4:")
        for d, i in sel4.items(): a(f"buffer_atomic_umax v{224+i}, v255, {DBG}, 0 offen offset:{4*d} sc1")
a("L_exit:")
a("s_endpgm")

hdr = open("cdna_kernels/%s.s.ref" % NAME).read().split("; Override launch")[0]
out = hdr + "; @launch grid=(256,1,1) block=(512,1,1) lds=163840\n"
out += '.amdgcn_target "amdgcn-amd-amdhsa--gfx950"\n.text\n' + a.text()
out += f""".section .rodata,"a"
.p2align 6
.amdhsa_kernel {KN}
  .amdhsa_next_free_vgpr 256
  .amdhsa_next_free_sgpr 102
  .amdhsa_accum_offset 256
  .amdhsa_group_segment_fixed_size 0
  .amdhsa_kernarg_size 136
  .amdhsa_user_sgpr_count 2
  .amdhsa_user_sgpr_kernarg_segment_ptr 1
  .amdhsa_system_sgpr_workgroup_id_x 1
.end_amdhsa_kernel
"""
path = [x for x in sys.argv[1:] if not x.startswith("--")]
open(path[0] if path else "f.s", "w").write(out)
```

```python
import sys, struct, math
sys.path.insert(0, "dev")
from asmlib import Asm, vr, sr

NAME = "parallel_sum__ssm_conv_s4__dense_activation_gelu__prompt"
KN = NAME + "_kernel"
PROF = "--prof" in sys.argv
def opt(name, default):
    for x in sys.argv:
        if x.startswith("--%s=" % name): return int(x.split("=")[1])
    return default
def f32(x): return "0x%08x" % struct.unpack("<I", struct.pack("<f", x))[0]

XNT, KD, YA, W2F = 0x000000, 0x280000, 0x500000, 0x780000
CLR = 0x9A0000
STATS, CSUM, MBOX, LNC, W2C, YAC = CLR, CLR+0x2000, CLR+0x10000, CLR+0x18000, CLR+0x1C000, CLR+0x1A000
CSP = 13824
PROFB, HF = 0x9C0000, 0xA00000
WS_SIZE = 0x1100000
OOB = "0x7f000000"
P = dict(u=16, are=18, aim=20, bre=22, bim=24, cre=26, cim=28, ldt=30, dsk=32, bx=34, w1=36, b1=38, w2=40, b2=42, out=44, dbg=46, ws=48)
S_WS, S_A, S_B, S_DBG = 52, 56, 60, 64
S_WAVE, S_XR, S_XC, S_J, S_SPIN, S_CH = 4, 5, 6, 7, 50, 51
S_MB = 34
WV = f"s{S_WAVE}"
WS = f"s[{S_WS}:{S_WS+3}]"; SA = f"s[{S_A}:{S_A+3}]"; SB = f"s[{S_B}:{S_B+3}]"; DBG = f"s[{S_DBG}:{S_DBG+3}]"
STG = 40960
NST = 3
AREG, BREG0, BREG = 20480, 81920, 20480
B7 = BREG0 + 3*BREG
CNT = B7 + 20096
YAT = B7
UB = 5536
W3B, W5B, W7B, W9B = 9664, 12768, 15872, 17952
SCR = 512
IMG, T2, T3 = SCR, SCR+1136, SCR+2416
STATL = BREG0 + 2*BREG
NT = " nt" if opt("nt", 0) else ""
NT1 = " nt" if opt("nt1", 1) else ""

a = Asm()
G2F = " sc1" if opt("g2sc1", 1) else ""
def srd(d, ptr, size):
    a(f"s_mov_b32 s{d}, s{ptr}\ns_mov_b32 s{d+1}, s{ptr+1}\ns_mov_b32 s{d+2}, {hex(size)}\ns_mov_b32 s{d+3}, 0x20000")
def stamp(idx):
    if PROF: a(f"s_memtime s[92:93]\ns_waitcnt lgkmcnt(0)\ns_sub_u32 s{72+idx}, s92, s90")
def lstamp(o):
    if PROF: a(f"s_memtime s[92:93]\ns_waitcnt lgkmcnt(0)\ns_sub_u32 s92, s92, s90\ns_add_u32 m0, s3, {o}\nv_writelane_b32 v200, s92, m0")
def endp(): a("s_branch L_end")
def cmul(d, x, y, t):
    a(f"v_pk_mul_f32 {vr(t,2)}, {vr(x,2)}, {vr(y,2)} op_sel:[0,0] op_sel_hi:[0,1]")
    a(f"v_pk_fma_f32 {vr(d,2)}, {vr(x,2)}, {vr(y,2)}, {vr(t,2)} op_sel:[1,1,0] op_sel_hi:[1,0,1] neg_lo:[0,1,0]")
def poll(issue, test, sleep=4, issued=True):
    L = a.label("L_poll"); D = a.label("L_pdone")
    if not issued: a(issue)
    a(f"{L}:")
    a("s_waitcnt vmcnt(0)")
    a(test)
    a(f"s_cbranch_scc1 {D}")
    a(f"s_add_u32 s{S_SPIN}, s{S_SPIN}, 1\ns_cmp_gt_u32 s{S_SPIN}, 100000\ns_cbranch_scc1 L_exit")
    a(f"s_sleep {sleep}")
    a(issue)
    a(f"s_branch {L}")
    a(f"{D}:")
def sld(d, off): return f"s_load_dword s{d}, s[{P['ws']}:{P['ws']+1}], s{off} glc"
def spoll(issue, test, sleep=4, issued=False, far=None):
    L = a.label("L_spoll"); D = a.label("L_sdone")
    if not issued: a(issue)
    a(f"{L}:")
    a("s_waitcnt lgkmcnt(0)")
    a(test)
    a(f"s_cbranch_scc1 {D}")
    a(f"s_add_u32 s{S_SPIN}, s{S_SPIN}, 1\ns_cmp_gt_u32 s{S_SPIN}, 100000\ns_cbranch_scc1 L_exit")
    a(f"s_sleep {sleep}")
    if far:
        N = a.label("L_near")
        a(f"{far[0]}\ns_cbranch_scc1 {N}\ns_sleep {far[1]}")
        a(f"{N}:")
    a(issue)
    a(f"s_branch {L}")
    a(f"{D}:")
def arrive_issue(sreg, va, vb):
    a(f"v_mov_b32 v{va}, 0\nv_mov_b32 v{vb}, 1\ns_mov_b64 exec, 1\nbuffer_atomic_add v{vb}, v{va}, {WS}, s{sreg} offen sc0 sc1\ns_mov_b64 exec, -1")
def arrive_check(st, vb, n, then):
    L = a.label("L_arr")
    a(f"s_waitcnt vmcnt(0)\nv_readfirstlane_b32 s{st}, v{vb}\ns_cmp_lg_u32 s{st}, {n-1}\ns_cbranch_scc1 {L}")
    a(then)
    a(f"{L}:")
def push_all(bitreg, off, va, vb, st):
    t = f"v_lshlrev_b32 v{va}, 7, v0\nv_mov_b32 v{vb}, s{bitreg}\ns_mov_b32 s{st}, {MBOX+off}\n"
    for i in range(4): t += f"buffer_atomic_or v{vb}, v{va}, {WS}, s{st} offen sc1\ns_add_u32 s{st}, s{st}, 8192\n"
    return t
def few(mask, ins): return f"s_mov_b64 exec, {mask}\n{ins}\ns_mov_b64 exec, -1"
def clr_issue(v, vo): return few(15, f"buffer_load_dword v{v}, v{vo}, {DBG}, 0 offen sc1")
def clr_test(v): return f"v_cmp_ne_u32 vcc, 0, v{v}\ns_and_b32 vcc_lo, vcc_lo, 15\ns_cmp_eq_u32 vcc_lo, 15"
def nz_test(v): return f"v_cmp_ne_u32 vcc, 0, v{v}\ns_cmp_eq_u64 vcc, -1"
def zero(b, n):
    for i in range(0, n, 2): a(f"v_pk_mov_b32 {vr(b+i,2)}, 0, 0")

cLIN, cIMG2, cT2, cT3, cW2, cW3, cST, cKW1, cKW2, cA0, cA1, cB, cU = 247, 248, 249, 250, 251, 252, 253, 254, 255, 231, 236, 237, 146
AD, AB, A16 = 204, 224, 232
RS = opt("rowsplit", 0)
def tile_rc(rt, cb, tmp):
    if RS: return f"s_and_b32 s{rt}, s2, 7\ns_lshl_b32 s{rt}, s{rt}, 2\ns_lshr_b32 s{cb}, s{S_J}, 3\ns_add_u32 s{rt}, s{rt}, s{cb}\ns_and_b32 s{cb}, s{S_J}, 7"
    return (f"s_lshl_b32 s{rt}, s{S_XR}, 3\ns_lshr_b32 s{cb}, s{S_J}, 2\ns_add_u32 s{rt}, s{rt}, s{cb}\n"
            f"s_lshl_b32 s{cb}, s{S_XC}, 2\ns_and_b32 s{tmp}, s{S_J}, 3\ns_add_u32 s{cb}, s{cb}, s{tmp}")
def conv_setup(t=64):
    r_, g_, h_, f_, x_, y_, z_ = (f"v{t+i}" for i in range(7))
    a(f"v_lshlrev_b32 {x_}, 4, v0\nv_add_u32 v{cLIN}, s69, {x_}\nv_min_u32 {z_}, 5, v0\nv_lshl_add_u32 v{cIMG2}, {z_}, 4, s69")
    a(f"v_lshlrev_b32 {x_}, 6, {z_}\nv_lshrrev_b32 {y_}, 1, {z_}\nv_lshl_add_u32 {x_}, {y_}, 4, {x_}\nv_add_u32 v{cKW2}, s69, {x_}")
    a(f"v_lshlrev_b32 {x_}, 6, v0\nv_lshrrev_b32 {y_}, 1, v0\nv_lshl_add_u32 {x_}, {y_}, 4, {x_}\nv_add_u32 v{cKW1}, s69, {x_}")
    a(f"v_lshrrev_b32 {x_}, 2, v0\nv_mul_u32_u24 {x_}, 40960, {x_}\nv_and_b32 {y_}, 3, v0\nv_lshl_add_u32 v{cU}, {y_}, 4, {x_}")
    a(f"v_and_b32 {r_}, 15, v0\nv_lshrrev_b32 {g_}, 4, v0\nv_and_b32 {h_}, 1, {g_}\nv_lshrrev_b32 {f_}, 1, {g_}")
    a(f"v_sub_u32 {x_}, 15, {r_}\nv_and_b32 {y_}, 1, {x_}\nv_sub_u32 {x_}, {x_}, {y_}\nv_lshlrev_b32 {x_}, 1, {x_}")
    a(f"v_lshl_add_u32 {z_}, {g_}, 1, {y_}\nv_mul_u32_u24 {z_}, 160, {z_}\nv_add_u32 {z_}, {z_}, {x_}\ns_add_u32 s10, s69, {T2}\nv_add_u32 v{cT2}, s10, {z_}")
    a(f"v_lshl_add_u32 {z_}, {h_}, 1, {y_}\nv_mul_u32_u24 {z_}, 160, {z_}\nv_add_u32 {z_}, {z_}, {x_}\nv_lshl_add_u32 {z_}, {f_}, 4, {z_}\ns_add_u32 s10, s69, {T3}\nv_add_u32 v{cT3}, s10, {z_}")
    a(f"v_mul_u32_u24 {x_}, {W5B-W3B}, {h_}\nv_lshlrev_b32 {y_}, 3, {g_}\nv_sub_u32 {x_}, {x_}, {y_}\nv_lshl_add_u32 {x_}, {r_}, 3, {x_}\ns_add_u32 s10, s69, {W3B-8}\nv_add_u32 v{cW2}, s10, {x_}")
    a(f"v_mul_u32_u24 {x_}, {W9B-W7B-16}, {h_}\nv_lshl_add_u32 {x_}, {f_}, 8, {x_}\nv_lshl_add_u32 {x_}, {r_}, 3, {x_}\ns_add_u32 s10, s69, {W7B-16}\nv_add_u32 v{cW3}, s10, {x_}")
    a(f"v_lshlrev_b32 {x_}, 2, {h_}\nv_lshrrev_b32 {z_}, 2, {r_}\nv_add_u32 {x_}, {x_}, {z_}\nv_mul_u32_u24 {x_}, 81920, {x_}\nv_lshl_add_u32 {x_}, {f_}, 6, {x_}\nv_and_b32 {z_}, 3, {r_}\nv_lshl_add_u32 v{cST}, {z_}, 4, {x_}")
    a(f"s_add_u32 s10, s69, {UB-32}\nv_lshlrev_b32 {x_}, 5, {r_}\nv_lshl_add_u32 {x_}, {g_}, 4, {x_}\nv_add_u32 v{cB}, s10, {x_}")
    a(f"v_sub_u32 {z_}, {y_}, {r_}\nv_add_u32 {z_}, 15, {z_}\nv_sub_u32 {y_}, {r_}, {y_}")
    a(f"v_lshrrev_b32 {x_}, 4, {z_}\nv_lshlrev_b32 {x_}, 4, {x_}\nv_lshl_add_u32 {x_}, {z_}, 3, {x_}\nv_add_u32 v{cA0}, s69, {x_}")
    a(f"v_add_u32 {z_}, 4, {z_}\nv_lshrrev_b32 {x_}, 4, {z_}\nv_lshlrev_b32 {x_}, 4, {x_}\nv_lshl_add_u32 {x_}, {z_}, 3, {x_}\nv_add_u32 v{cA1}, s69, {x_}")
    a(f"v_mov_b32 {r_}, 0xffff\nv_mov_b32 {g_}, 0xffff0000\nv_mov_b32 {h_}, -1")
    for k in range(4):
        a(f"v_cmp_eq_u32 vcc, {2*k-16}, {y_}\nv_cndmask_b32 v{AD+k}, 0, {r_}, vcc\nv_cmp_eq_u32 vcc, {2*k+1-16}, {y_}\nv_cndmask_b32 v{AD+k}, v{AD+k}, {g_}, vcc")
        a(f"v_cmp_eq_u32 vcc, {2*k-12}, {y_}\nv_cndmask_b32 v{AB+k}, 0, {h_}, vcc\nv_cmp_eq_u32 vcc, {2*k-13}, {y_}\nv_cndmask_b32 v{AB+k}, v{AB+k}, {r_}, vcc\nv_cmp_eq_u32 vcc, {2*k-11}, {y_}\nv_cndmask_b32 v{AB+k}, v{AB+k}, {g_}, vcc")
def uloads():
    a(f"s_lshl_b32 s10, s{S_CH}, 6")
    for q in range(4): a(f"buffer_load_dwordx4 {vr(148+4*q,4)}, v{cU}, {WS}, s10 offen sc1\ns_add_u32 s10, s10, 655360")
def kloads():
    a(f"s_lshl_b32 s10, s{S_CH}, 12\ns_add_u32 s10, s10, {KD}")
    for q in range(3): a(f"buffer_load_dwordx4 {vr(32+4*q,4)}, v1, {WS}, s10 offen offset:{1024*q} sc1")
lnc_addr = f"s_mul_i32 s13, s{S_CH}, 410\ns_lshr_b32 s13, s13, 16\ns_lshl_b32 s13, s13, 4\ns_and_b32 s100, s2, 15\ns_add_u32 s100, s100, s13\ns_lshl_b32 s100, s100, 7\ns_add_u32 s100, s100, {LNC}"

a.raw(f".globl {KN}\n.p2align 8\n.type {KN},@function")
a(f"{KN}:")
a("s_cmp_ge_u32 s2, 256\ns_cbranch_scc1 L_exit")
a("s_load_dwordx16 s[16:31], s[0:1], 0\ns_load_dwordx16 s[32:47], s[0:1], 64\ns_load_dwordx2 s[48:49], s[0:1], 128")
if opt("cpf", 1):
    a(f"s_cmp_ge_u32 s2, {opt('cpfn', 8)}\ns_cbranch_scc1 L_nocpf")
    a("s_getpc_b64 s[12:13]")
    a("L_cpfb:")
    a("v_lshlrev_b32 v20, 7, v0\nv_min_u32 v20, L_exit-L_cpfb, v20\nv_mov_b32 v21, s13\nv_add_co_u32 v20, vcc, s12, v20\nv_addc_co_u32 v21, vcc, 0, v21, vcc")
    a("global_load_dword v22, v[20:21], off")
    a("L_nocpf:")
if PROF:
    a("s_memtime s[90:91]\ns_memrealtime s[94:95]")
    for i in range(16): a(f"s_mov_b32 s{72+i}, 0")
if opt("hold", 0): a("s_memrealtime s[94:95]")
a("v_lshrrev_b32 v1, 6, v0\nv_and_b32 v0, 63, v0")
a(f"v_readfirstlane_b32 {WV}, v1")
a(f"s_bfe_u32 s{S_XR}, s2, 0x20001\ns_and_b32 s{S_XC}, s2, 1\ns_lshr_b32 s{S_J}, s2, 3\ns_mov_b32 s{S_SPIN}, 0")
a(f"s_lshl_b32 s8, s{S_XC}, 2\ns_sub_u32 s8, 20, s8")
a(f"s_cmp_eq_u32 s{S_XC}, 0\ns_cselect_b32 s9, 52, 64\ns_mul_i32 s9, s9, s{S_J}\ns_lshr_b32 s9, s9, 8")
a(f"s_sub_u32 s11, 5, s{S_XC}\ns_mul_i32 s11, s11, s9\ns_sub_u32 s10, s{S_J}, s11\ns_mul_i32 s11, s{S_XC}, 5\ns_add_u32 s10, s10, s11")
a(f"s_lshl_b32 s11, s{S_XR}, 2\ns_add_u32 s9, s9, s11")
a("v_lshrrev_b32 v4, 3, v0\nv_mul_u32_u24 v4, 1280, v4")
a("v_and_b32 v5, 7, v0\nv_lshrrev_b32 v6, 4, v0\nv_xor_b32 v5, v5, v6\nv_lshl_add_u32 v2, v5, 4, v4")
a("v_xor_b32 v5, 4, v5\nv_lshl_add_u32 v3, v5, 4, v4\nv_add_u32 v3, 10240, v3\nv_add_u32 v4, 20480, v2\nv_add_u32 v5, 20480, v3")
for i in range(3):
    a(f"v_add_u32 v6, {64*i}, v0\nv_mul_u32_u24 v7, 2731, v6\nv_lshrrev_b32 v7, 16, v7\nv_lshlrev_b32 v14, 1, v7\nv_and_b32 v14, 4, v14\nv_xor_b32 v6, v6, v14")
    a(f"v_mul_u32_u24 v7, 3072, v7\nv_lshl_add_u32 v{8+i}, v6, 4, v7\nv_add_u32 v{11+i}, 27648, v{8+i}")
a(f"s_and_b32 s99, {WV}, 3")
a("s_lshl_b32 s11, s9, 7\ns_lshl_b32 s12, s99, 5\ns_add_u32 s11, s11, s12\ns_mul_i32 s11, s11, 1280")
a("s_mul_i32 s12, s99, 55296\ns_mul_i32 s13, s10, 384\ns_add_u32 s12, s12, s13")
a("s_lshl_b32 s13, s99, 12\ns_mul_i32 s14, s99, 6144\ns_add_u32 s14, s14, 16384\ns_mov_b32 s3, 0")
a(f"s_and_b32 s15, s9, 3\ns_mul_i32 s15, s15, 5\ns_add_u32 s15, s15, 1\ns_lshr_b32 s15, s15, 1\ns_lshl_b32 s68, s10, 1\ns_add_u32 s15, s15, s68\ns_add_u32 s15, s15, s{S_XR}")
a("s_mul_i32 s68, s15, 26\ns_lshr_b32 s68, s68, 8\ns_mul_i32 s68, s68, 10\ns_sub_u32 s15, s15, s68")
a("s_lshl_b32 s68, s15, 7\ns_add_u32 s11, s11, s68\ns_mul_i32 s68, s15, 221184\ns_add_u32 s12, s12, s68\ns_mov_b32 s69, 0")
for d, size in ((S_WS, WS_SIZE), (S_A, 2621440), (S_B, 2211840), (S_DBG, 256)): a(f"s_mov_b32 s{d+2}, {hex(size)}\ns_mov_b32 s{d+3}, 0x20000")
a("v_mov_b32 v146, 0\nv_mov_b32 v253, 0\ns_mov_b32 s101, 0")
a("s_waitcnt lgkmcnt(0)")
for d, nm in ((S_A, 'u'), (S_B, 'w1'), (S_WS, 'ws'), (S_DBG, 'dbg')): a(f"s_mov_b64 s[{d}:{d+1}], s[{P[nm]}:{P[nm]+1}]")
a(f"s_lshl_b32 s{S_MB}, s2, 7\ns_add_u32 s{S_MB}, s{S_MB}, {MBOX}")
if PROF:
    a("s_mov_b32 s86, s94"); stamp(13)
if opt("g2only", 0):
    a(f"v_mov_b32 v174, 0\ns_mov_b32 s35, 1\ns_cmp_lt_u32 {WV}, 4\ns_cbranch_scc1 L_g2\ns_branch L_end")
a(f"s_cmp_ge_u32 s{S_J}, s8\ns_cbranch_scc1 L_aux")
a(f"s_cmp_lt_u32 {WV}, 4\ns_cbranch_scc1 L_comp")

a("s_mov_b32 s8, s99")
stamp(1)
S_C = 96
a("L_ld_loop:")
a("s_cmp_lt_u32 s3, 2\ns_cbranch_scc1 L_ld_nowait\ns_cmp_eq_u32 s3, 2\ns_cbranch_scc1 L_ld_setup")
a("L_ld_wait:")
a("s_waitcnt vmcnt(10)")
lstamp(0)
a("s_barrier")
lstamp(16)
a("L_ld_nowait:")
a("s_add_u32 s70, s69, s13\ns_add_u32 s71, s69, s14")
for q in range(4): a(f"s_add_u32 m0, s70, {1024*q}\nbuffer_load_dwordx4 v{2+q}, {SA}, s11 offen{NT} lds")
for i in range(6): a(f"s_add_u32 m0, s71, {1024*i}\nbuffer_load_dwordx4 v{8+i}, {SB}, s12 offen{NT} lds")
a("s_add_u32 s11, s11, 128\ns_add_u32 s12, s12, 221184\ns_add_u32 s15, s15, 1\ns_cmp_lt_u32 s15, 10\ns_cbranch_scc1 L_ld_nowrap")
a("s_sub_u32 s11, s11, 1280\ns_sub_u32 s12, s12, 2211840\ns_mov_b32 s15, 0")
a("L_ld_nowrap:")
a(f"s_add_u32 s69, s69, {STG}\ns_cmp_eq_u32 s69, {NST*STG}\ns_cselect_b32 s69, 0, s69")
a(f"s_cmp_lg_u32 s3, 7\ns_cbranch_scc1 L_ld_n5\ns_load_dwordx4 s[28:31], s[{P['dbg']}:{P['dbg']+1}], 0")
a("L_ld_n5:")
a("s_add_u32 s3, s3, 1\ns_cmp_lt_u32 s3, 10\ns_cbranch_scc1 L_ld_loop")
s_issue = f"buffer_load_dwordx4 v[16:19], v1, {WS}, s18 offen sc1\nbuffer_load_dwordx4 v[20:23], v6, {WS}, s18 offen offset:1024 sc1\nbuffer_load_dword v24, v7, {WS}, s20 offen sc1"
wc_issue = sld(26, 25)
wc_test = "s_cmp_lg_u32 s26, 0"
a("s_waitcnt lgkmcnt(0)\ns_and_b32 s28, s28, s29\ns_and_b32 s30, s30, s31\ns_and_b32 s24, s28, s30")
a(s_issue)
for w in (13, 3):
    if w == 3:
        a("s_mov_b32 s31, 0\ns_mov_b32 s33, 0\ns_cmp_eq_u32 s101, 0\ns_cbranch_scc1 L_ld_ncv")
        a(sld(31, S_MB) + "\n" + sld(33, 100))
        a("L_ld_ncv:")
    a(f"s_waitcnt vmcnt({w})")
    lstamp(0)
    a("s_barrier")
    lstamp(16)
    if PROF: a("s_add_u32 s3, s3, 1")
a("s_cmp_lg_u32 s24, 0\ns_cbranch_scc1 L_ld_clr")
poll(clr_issue(15, 14), clr_test(15), sleep=8, issued=False)
a(s_issue)
a("s_waitcnt lgkmcnt(0)\ns_mov_b32 s31, 0\ns_mov_b32 s33, 0")
a("L_ld_clr:")
s_test = "v_and_b32 v4, v17, v19\nv_and_b32 v5, v21, v23\nv_and_b32 v4, v4, v5\nv_and_b32 v4, 1, v4\nv_min_u32 v4, v4, v24\n" + nz_test(4)
poll(s_issue, s_test, sleep=8)
a("ds_write_b128 v25, v[16:19]\nds_write_b128 v26, v[20:23] offset:1024\nds_write_b32 v27, v24")
a("s_waitcnt lgkmcnt(0)\ns_mov_b32 s68, 0\ns_and_b32 s13, s31, s101\ns_cbranch_scc0 L_ld_nk0")
kloads()
a("s_mov_b32 s68, 1")
a("L_ld_nk0:")
a("s_cmp_ge_u32 s33, 64\ns_cbranch_scc0 L_ld_nk")
uloads()
a("s_or_b32 s68, s68, 2")
a("L_ld_nk:")
a("s_barrier")
lstamp(16)
if PROF:
    a(f"s_lshl_b32 s93, s2, 9\ns_lshl_b32 s92, s8, 7\ns_add_u32 s93, s93, s92\ns_add_u32 s93, s93, {PROFB+0x20000}\nv_lshlrev_b32 v201, 2, v0\ns_mov_b32 exec_hi, 0\nbuffer_store_dword v200, v201, {WS}, s93 offen\ns_mov_b32 exec_hi, -1")
stamp(2)
a(f"s_cmp_eq_u32 {WV}, 7\ns_cbranch_scc1 L_fetch")
a(f"s_cmp_eq_u32 {WV}, 6\ns_cbranch_scc1 L_park")
a(f"s_cmp_eq_u32 s101, 0\ns_cbranch_scc1 L_end\ns_mul_i32 s69, {WV}, {AREG}\ns_branch L_cv_upart")
wc_prep = f"s_and_b32 s25, s2, 31\ns_lshl_b32 s25, s25, 7\ns_add_u32 s25, s25, {W2C+1024}"
a("L_ld_setup:")
a("v_lshlrev_b32 v1, 4, v0\nv_and_b32 v7, 31, v0\nv_lshlrev_b32 v6, 4, v7\nv_lshlrev_b32 v7, 2, v7\nv_and_b32 v14, 3, v0\nv_lshlrev_b32 v14, 2, v14")
a(f"s_lshl_b32 s20, s9, 9\ns_lshl_b32 s23, s8, 7\ns_add_u32 s20, s20, s23\ns_add_u32 s20, s20, {STATS}\ns_add_u32 s23, s23, {STATL+6144}\nv_add_u32 v27, s23, v7")
a(f"s_mul_i32 s18, s10, 1536\ns_mul_i32 s19, s8, {CSP}\ns_add_u32 s18, s18, s19\ns_add_u32 s18, s18, {CSUM}")
a(f"s_mul_i32 s23, s8, 1536\ns_add_u32 s23, s23, {STATL}\nv_add_u32 v25, s23, v1\nv_add_u32 v26, s23, v6\nv_mov_b32 v30, {CNT}")
zero(32, 4)
a("ds_write_b128 v30, v[32:35]")
a(wc_prep)
a(f"s_mul_i32 s23, s{S_XR}, 36\ns_mul_i32 s22, s{S_XC}, 20\ns_add_u32 s23, s23, s22\ns_add_u32 s23, s23, s{S_J}\ns_mul_i32 s22, s8, 144\ns_add_u32 s23, s23, s22\ns_cmp_ge_u32 s23, 192\ns_cbranch_scc1 L_ld_wait")
a(f"s_lshr_b32 s22, s23, 2\ns_lshl_b32 s22, s22, 3\ns_and_b32 s23, s23, 3\ns_add_u32 s{S_CH}, s23, s22\ns_add_u32 s{S_CH}, s{S_CH}, 256\ns_lshl_b32 s101, 0x1000000, s8")
a(f"s_mov_b32 s96, s69\ns_mov_b32 s97, s10\ns_mov_b32 s98, s13\ns_mul_i32 s69, {WV}, {AREG}")
conv_setup()
a(lnc_addr)
a(f"s_lshl_b32 s22, s{S_CH}, 1\ns_and_b32 s23, s22, 2\ns_sub_u32 s22, s22, s23\ns_load_dword s99, s[{P['dsk']}:{P['dsk']+1}], s22")
a("s_lshl_b32 s23, s23, 3\ns_waitcnt lgkmcnt(0)\ns_lshr_b32 s99, s99, s23\ns_and_b32 s99, s99, 0xffff\nv_mov_b32 v147, s99")
a("s_mov_b32 s69, s96\ns_mov_b32 s10, s97\ns_mov_b32 s13, s98\ns_branch L_ld_wait")

G2H = [16, 32, 48, 224]; G2W = [164, 184, 204, 144]; AC2 = 64
K0 = [0, 13, 26, 40, 54]
def g2_setup():
    a(tile_rc(30, 31, 29))
    a(f"s_mul_i32 s28, {WV}, 7168")
    a(f"s_mul_i32 s27, s30, {4*55296}\ns_add_u32 s27, s27, s28\ns_add_u32 s27, s27, {HF}")
    for i in range(4):
        a(f"s_add_u32 s29, {WV}, {i}\ns_and_b32 s29, s29, 3\ns_mul_i32 s29, s29, 55296\ns_add_u32 s{18+i}, s27, s29")
    a(f"s_mul_i32 s22, s31, {5*55296}\ns_add_u32 s22, s22, s28\ns_add_u32 s22, s22, {W2F}")
    for i in range(1, 5): a(f"s_add_u32 s{22+i}, s22, {55296*i}")
    a(f"s_lshl_b32 s27, s30, 6\ns_lshl_b32 s29, {WV}, 4\ns_add_u32 s27, s27, s29\ns_mul_i32 s27, s27, 1280\ns_mul_i32 s29, s31, 160\ns_add_u32 s27, s27, s29")
    masks = []
    for w in range(4):
        c0, c1 = (7*w)//3, min(26, 7*w+6)//3
        m = ((1 << (c1-c0+1)) - 1) << c0
        masks.append(m | (m << 11))
    a(f"s_mov_b32 s28, {hex(masks[0])}\ns_cmp_eq_u32 {WV}, 1\ns_cselect_b32 s28, {hex(masks[1])}, s28\ns_cmp_eq_u32 {WV}, 2\ns_cselect_b32 s28, {hex(masks[2])}, s28\ns_cmp_eq_u32 {WV}, 3\ns_cselect_b32 s28, {hex(masks[3])}, s28")
    a(f"v_lshlrev_b32 v252, 4, v0\ns_cmp_eq_u32 {WV}, 3\ns_cselect_b32 s30, {OOB}, 0\nv_add_u32 v253, s30, v252")
    a("v_lshrrev_b32 v255, 4, v0\nv_lshlrev_b32 v255, 3, v255\nv_and_b32 v254, 15, v0\nv_mul_u32_u24 v254, 160, v254\nv_add_u32 v254, v254, v255")
    srd(S_B, P['b2'], 1280)
def ldh(k, o=0, v=252): return [f"buffer_load_dwordx4 {vr(G2H[k]+4*i,4)}, v{v}, {WS}, s{18+i} offen offset:{o}{G2F}" for i in range(4)]
def ldw(k, o=0, v=252): return [f"buffer_load_dwordx4 {vr(G2W[k]+4*i,4)}, v{v}, {WS}, s{22+i} offen offset:{o}{G2F}" for i in range(5)]
OUTV = (8, 9, 13)
def xb_loads():
    for q in range(3):
        a(f"v_add_u32 v10, {64*q}, v0\nv_mul_u32_u24 v11, 6554, v10\nv_lshrrev_b32 v11, 16, v11\nv_mul_u32_u24 v11, 1120, v11\nv_lshl_add_u32 v{OUTV[q]}, v10, 4, v11")
    a(f"v_cmp_gt_u32 vcc, 32, v0\nv_mov_b32 v10, {OOB}\nv_cndmask_b32 v13, v10, v13, vcc\ns_mul_i32 s10, {WV}, {AREG}")
    for q in range(3): a(f"s_add_u32 m0, s10, {15360+1024*q}\nbuffer_load_dwordx4 v{OUTV[q]}, {SA}, s27 offen lds")
    a(f"s_add_u32 m0, s10, {18432}\ns_mov_b64 exec, 0x3ff\nbuffer_load_dwordx4 v252, {SB}, s29 offen lds\ns_mov_b64 exec, -1")
    a("v_add_u32 v2, s10, v254\nv_add_u32 v3, s10, v255")
off = lambda t: 1024*t if t < 7 else 27648 + 1024*(t-7)
w_pre = ldw(0, 0) + ldw(1, 1024) + ldw(2, 2048) + ldw(3, 3072)

a("L_comp:")
ACC = 72; BUF = [16, 44]; SF = 172
g2_setup()
a("v_and_b32 v13, 31, v0\nv_lshrrev_b32 v14, 5, v0")
a(f"s_lshl_b32 s8, {WV}, 12\nv_lshlrev_b32 v15, 7, v13\nv_add_u32 v15, s8, v15")
a("v_bfe_u32 v7, v0, 1, 3\nv_xor_b32 v7, v7, v14")
for ks in range(4): a(f"v_xor_b32 v1, {2*ks}, v7\nv_lshl_add_u32 v{2+ks}, v1, 4, v15")
a("v_bfe_u32 v1, v0, 2, 2\nv_lshl_add_u32 v1, v14, 3, v1\nv_mul_u32_u24 v1, 384, v1")
a("v_bfe_u32 v7, v0, 4, 1\nv_lshl_add_u32 v1, v7, 5, v1\nv_and_b32 v7, 3, v0\nv_lshl_add_u32 v1, v7, 3, v1\nv_add_u32 v1, 16384, v1")
a("v_bfe_u32 v7, v0, 3, 1\nv_lshlrev_b32 v7, 6, v7\nv_add_u32 v6, v1, v7\nv_sub_u32 v196, v1, v7\nv_mov_b32 v197, v196")
for i in range(5): a(f"v_mov_b32 v{8+i}, v{2+i}")
zero(ACC, 96)
a(f"s_lshl_b32 s11, {WV}, 7\ns_add_u32 s11, s11, {STATL+6144}\nv_lshl_add_u32 v168, v13, 2, s11\nv_mul_u32_u24 v169, 3072, v14\nv_lshl_add_u32 v169, v13, 3, v169\nv_add_u32 v169, {STATL}, v169")
a("v_bfe_u32 v1, v0, 4, 1\nv_mul_u32_u24 v1, 55296, v1\nv_lshl_add_u32 v1, v14, 8, v1\nv_and_b32 v7, 15, v0\nv_lshl_add_u32 v1, v7, 4, v1")
a(f"s_lshl_b32 s8, s9, 3\ns_lshl_b32 s11, {WV}, 1\ns_add_u32 s8, s8, s11\ns_mul_i32 s8, s8, 54\ns_mul_i32 s11, s10, 3\ns_add_u32 s8, s8, s11\ns_lshl_b32 s8, s8, 10\ns_add_u32 s8, s8, {HF}")
a(f"s_lshl_b32 s12, s9, 1\ns_lshr_b32 s11, {WV}, 1\ns_add_u32 s12, s12, s11")
if RS: a(f"s_and_b32 s11, s12, 3\ns_lshl_b32 s11, s11, 6\ns_lshr_b32 s12, s12, 2\ns_add_u32 s12, s12, s11\ns_lshl_b32 s12, s12, 7\ns_add_u32 s12, s12, {MBOX}")
else: a(f"s_and_b32 s11, s12, 7\ns_lshl_b32 s11, s11, 5\ns_lshr_b32 s12, s12, 3\ns_lshl_b32 s12, s12, 1\ns_add_u32 s12, s12, s11\ns_lshl_b32 s12, s12, 7\ns_add_u32 s12, s12, {MBOX}")
a(f"s_and_b32 s11, {WV}, 1\ns_mul_i32 s11, s11, 11\ns_add_u32 s11, s11, s10\ns_lshl_b32 s11, 1, s11")
if RS: a("v_lshlrev_b32 v15, 10, v0\nv_mov_b32 v14, s11")
else: a("v_and_b32 v15, 3, v0\nv_lshlrev_b32 v15, 10, v15\nv_bfe_u32 v7, v0, 2, 1\nv_lshl_add_u32 v15, v7, 7, v15\nv_mov_b32 v14, s11")
a(wc_prep.replace("s25", "s69"))
a("s_mov_b32 s15, 0\ns_mov_b32 s3, 0")
def reads(ks, b):
    r = [f"ds_read_b128 {vr(b,4)}, v{8+ks}"]
    for ft in range(6):
        for s in range(2):
            r.append(f"ds_read_b64_tr_b16 {vr(b+4+4*ft+2*s,2)}, v{197 if ft & 1 else 12} offset:{ks*6144 + s*1536 + ft*64}")
    return r
def step(cur, nks, nb, last, first_wait=True):
    R = reads(nks, nb)
    waits2 = [8, 0, 10, 0, 11, 0]
    waits = [10, 11, 12, 13, 13, 13]; parts = [R[0:3], R[3:6], R[6:9], R[9:11], R[11:13], [last]]
    for ft in range(6):
        if first_wait and (ft % 2 == 0 or not opt("fw", 1)): a(f"s_waitcnt lgkmcnt({(waits2 if opt('fw', 1) else waits)[ft]})")
        a(f"v_mfma_f32_32x32x16_bf16 {vr(ACC+16*ft,16)}, {vr(cur+4+4*ft,4)}, {vr(cur,4)}, {vr(ACC+16*ft,16)}")
        for r in parts[ft]: a(r)
a("s_barrier")
stamp(1)
for r in reads(0, BUF[0]): a(r)
a("L_c_loop:")
step(BUF[0], 1, BUF[1], f"s_add_u32 s15, s15, {STG}\ns_cmp_eq_u32 s15, {NST*STG}\ns_cselect_b32 s15, 0, s15\nv_add_u32 v8, s15, v2")
step(BUF[1], 2, BUF[0], "v_add_u32 v9, s15, v3\nv_add_u32 v10, s15, v4")
step(BUF[0], 3, BUF[1], "v_add_u32 v12, s15, v6\nv_add_u32 v197, s15, v196\ns_waitcnt lgkmcnt(0)\ns_barrier")
step(BUF[1], 0, BUF[0], "v_add_u32 v11, s15, v5\ns_add_u32 s3, s3, 1\ns_cmp_lt_u32 s3, 10\ns_cbranch_scc1 L_c_loop", first_wait=False)
stamp(2)
a(f"s_setprio {opt('eprio', 3)}\nds_read_b32 v170, v168")
for ft in range(6):
    for p in range(2): a(f"ds_read_b64 {vr(SF+4*ft+2*p,2)}, v169 offset:{1536*p+256*ft}")
a("s_waitcnt lgkmcnt(12)")
a("v_xor_b32 v17, 0x8000, v170\nv_and_b32 v19, 0xffff, v17\nv_lshl_or_b32 v16, v19, 16, v19\nv_mov_b32 v18, v16")
a("v_cmp_gt_u32 vcc, 32, v0\nv_cndmask_b32 v17, v19, v17, vcc")
a("v_and_b32 v10, 0xffff0000, v170\nv_rcp_f32 v7, v10\nv_mov_b32 v11, v10\ns_waitcnt lgkmcnt(0)")
for ft in range(6):
    a(f"v_mfma_f32_32x32x16_bf16 {vr(ACC+16*ft,16)}, {vr(SF+4*ft,4)}, v[16:19], {vr(ACC+16*ft,16)}")
    if ft == 0:
        k1c = -2.0 * math.log2(math.e) * math.sqrt(2.0/math.pi); k2c = k1c * 0.044715
        a(f"v_mul_f32 v8, {f32(k1c)}, v7\nv_mul_f32 v12, v7, v7\nv_mul_f32 v12, v12, v7\nv_mul_f32 v12, {f32(k2c)}, v12\nv_mov_b32 v9, v8\nv_mov_b32 v13, v12")
def stA(h):
    A0 = ACC + 8*h; T = 16 + 8*(h % 3)
    return ([f"v_pk_mul_f32 {vr(T+2*p,2)}, {vr(A0+2*p,2)}, {vr(A0+2*p,2)}" for p in range(4)] +
            [f"v_pk_fma_f32 {vr(T+2*p,2)}, {vr(T+2*p,2)}, v[12:13], v[8:9]" for p in range(4)] +
            [f"v_pk_mul_f32 {vr(T+2*p,2)}, {vr(T+2*p,2)}, {vr(A0+2*p,2)}" for p in range(4)])
def stE(h):
    T = 16 + 8*(h % 3); return [f"v_exp_f32 v{T+e}, v{T+e}" for e in range(8)]
def stB(h):
    T = 16 + 8*(h % 3); return [f"v_pk_fma_f32 {vr(T+2*p,2)}, {vr(T+2*p,2)}, v[10:11], v[10:11]" for p in range(4)]
def stR(h):
    T = 16 + 8*(h % 3); return [f"v_rcp_f32 v{T+e}, v{T+e}" for e in range(8)]
def stC(h):
    A0 = ACC + 8*h; T = 16 + 8*(h % 3); pk = 48 + 4*(h % 4)
    return ([f"v_pk_mul_f32 {vr(T+2*p,2)}, {vr(T+2*p,2)}, {vr(A0+2*p,2)}" for p in range(4)] +
            [f"v_cvt_pk_bf16_f32 v{pk+p}, v{T+2*p}, v{T+2*p+1}" for p in range(4)] +
            [f"buffer_store_dwordx4 {vr(pk,4)}, v1, {WS}, s8 offen offset:{(h//2 % 3)*1024 + (h%2)*512} sc1"])
def mix(tr, nt):
    i = 0
    for k, x in enumerate(tr):
        a(x)
        n = (len(nt) * (k+1)) // len(tr)
        while i < n: a(nt[i]); i += 1
for x in stA(0): a(x)
for h in range(12):
    mix(stE(h), (stC(h-1) if h else []))
    if h == 6: a("s_add_u32 s8, s8, 27648")
    if h == opt("eflag", 10): a(f"s_waitcnt vmcnt({h-6})\ns_mov_b64 exec, 0xff\nbuffer_atomic_or v14, v15, {WS}, s12 offen sc1\ns_mov_b64 exec, -1\n" + sld(68, 69))
    for x in stB(h): a(x)
    mix(stR(h), (stA(h+1) if h < 11 else []))
for x in stC(11): a(x)
stamp(4)
def acc_init(z=True):
    for dt in range(5): a(f"ds_read_b64 {vr(224+2*dt,2)}, v2 offset:{15360+32*dt}\nds_read_b64 {vr(234+2*dt,2)}, v3 offset:{18432+32*dt}")
    a("s_waitcnt lgkmcnt(0)")
    for dt in range(5):
        for h in range(2):
            a(f"v_lshlrev_b32 v{AC2+4*dt+2*h}, 16, v{224+2*dt+h}\nv_and_b32 v{AC2+4*dt+2*h+1}, 0xffff0000, v{224+2*dt+h}")
            a(f"v_lshlrev_b32 v10, 16, v{234+2*dt+h}\nv_and_b32 v11, 0xffff0000, v{234+2*dt+h}\nv_pk_add_f32 {vr(AC2+4*dt+2*h,2)}, {vr(AC2+4*dt+2*h,2)}, v[10:11]")
    if z: zero(AC2+20, 60)
a(f"v_mov_b32 v2, {CNT+8}\nv_mov_b32 v3, 1\nds_write_b32 v2, v3")
xb_loads()
a("s_waitcnt lgkmcnt(0)\ns_cmp_lg_u32 s68, 0\ns_cbranch_scc1 L_c_wpre\ns_waitcnt vmcnt(0)\ns_branch L_c_push")
a("L_c_wpre:")
for l in w_pre: a(l)
a("L_c_push:")
zero(AC2+20, 60)
a(f"s_waitcnt vmcnt(20)\ns_mov_b64 exec, 0xff\nbuffer_atomic_or v14, v15, {WS}, s12 offen offset:64 sc1\ns_mov_b64 exec, -1")
a("s_setprio 0\ns_mov_b32 s35, 0")
stamp(5)
acc_init(False)
a("s_cmp_lg_u32 s68, 0\ns_cbranch_scc1 L_g2go")
a("s_branch L_g2w")

a("L_g2:")
g2_setup()
xb_loads()
a("s_waitcnt vmcnt(0)")
acc_init()
a("L_g2w:")
if opt("p1only", 0): endp()
a(wc_prep.replace("s25", "s8"))
if not opt("g2only", 0): spoll(sld(9, 8), "s_cmp_lg_u32 s9, 0", sleep=16)
PK = (8, 10, 12)
a(f"s_cmp_eq_u32 s35, 0\ns_cbranch_scc1 L_g_nopark\ns_mul_i32 s10, {WV}, {AREG}")
for p in range(3):
    for i in range(5): a(f"s_add_u32 m0, s10, {5120*p+1024*i}\ns_add_u32 s13, s{22+i}, {off(PK[p])}\nbuffer_load_dwordx4 v252, {WS}, s13 offen{G2F} lds")
    if opt("thr", 0): a(f"s_waitcnt vmcnt({opt('thr', 0)})")
a("L_g_nopark:")
for n_, l in enumerate(w_pre):
    a(l)
    if opt("thr", 0) and n_ % 5 == 4 and n_ < 19: a(f"s_waitcnt vmcnt({opt('thr', 0)})")
if opt("touch2", 0):
    nt2 = 6 if RS else 3
    a("s_cmp_eq_u32 s35, 0\ns_cbranch_scc1 L_g2go")
    a(f"s_lshl_b32 s8, s{S_XC}, 2\ns_add_u32 s8, s8, s{S_J}\ns_sub_u32 s8, s8, 20\ns_lshl_b32 s8, s8, 2\ns_add_u32 s8, s8, {WV}\ns_cmp_ge_u32 s8, 48\ns_cbranch_scc1 L_g2go")
    if RS: a(f"s_and_b32 s9, s2, 7\ns_mul_i32 s9, s9, 6\ns_add_u32 s8, s8, s9\ns_cmp_ge_u32 s8, 48\ns_cselect_b32 s9, 48, 0\ns_sub_u32 s8, s8, s9\ns_mul_i32 s8, s8, 46080\ns_add_u32 s8, s8, {W2F}")
    else: a(f"s_mul_i32 s9, s{S_XR}, 12\ns_add_u32 s8, s8, s9\ns_cmp_ge_u32 s8, 48\ns_cselect_b32 s9, 48, 0\ns_sub_u32 s8, s8, s9\ns_mul_i32 s8, s8, 23040\ns_mul_i32 s9, s{S_XC}, 1105920\ns_add_u32 s8, s8, s9\ns_add_u32 s8, s8, {W2F}")
    a("v_lshlrev_b32 v4, 7, v0\ns_mov_b32 exec_hi, 0xfffffff")
    for i in range(nt2): a(f"buffer_load_dword v244, v4, {WS}, s8 offen sc1\ns_add_u32 s8, s8, 7680")
    a("s_mov_b32 exec_hi, -1")
a("L_g2go:")
if opt("p1only", 0): endp()
hm_issue = sld(14, S_MB)
a("v_mov_b32 v11, 0")
a(hm_issue)
a(f"s_mul_i32 s10, {WV}, {AREG}\nv_add_u32 v1, s10, v252")
for i in range(1, 4):
    a(f"s_sub_u32 s13, {WV}, {i}\ns_and_b32 s13, s13, 3\ns_mul_i32 s13, s13, {AREG}\ns_add_u32 s13, s13, {5120*(i-1)}\nv_add_u32 v{1+i}, s13, v252")
a("v_lshrrev_b32 v10, 2, v0\nv_lshlrev_b32 v10, 7, v10\nv_bfe_u32 v15, v0, 1, 1\nv_lshl_add_u32 v10, v15, 6, v10\nv_and_b32 v15, 1, v0\nv_lshl_add_u32 v10, v15, 3, v10")
a(f"s_lshl_b32 s13, {WV}, 4\ns_add_u32 s13, s13, {YAT}\nv_add_u32 v5, s13, v10")
a(f"s_mul_i32 s13, {WV}, 2560\ns_add_u32 s13, s13, {BREG0}\nv_add_u32 v6, s13, v254\nv_add_u32 v7, s13, v252")
a(f"v_mov_b32 v14, {CNT}")
srd(S_A, P['out'], 2621440)
if not opt("g2only", 0): spoll(hm_issue, "s_and_b32 s13, s14, s28\ns_cmp_eq_u32 s13, s28", sleep=opt('msleep', 4), issued=True, far=('s_and_b32 s13, s14, 0x3fffff', opt('mfar', 28)))
else: a("s_waitcnt vmcnt(0)")
stamp(6)
for l in ldh(0, 0) + ldh(1, 1024) + ldh(2, 2048): a(l)
a(f"s_add_u32 s15, s{S_MB}, 64")
nld = lambda t: 0 if t > 13 else (4 if (t < 4 or t in PK) else 9)
cur = 0
for t in range(14):
    k = t % 4; nt_ = t + 3; nk = nt_ % 4
    L = []
    if t == 2: a(sld(14, 15))
    if t == 4 and not opt("g2only", 0):
        spoll(sld(14, 15), "s_and_b32 s13, s14, s28\ns_cmp_eq_u32 s13, s28", sleep=2, issued=True)
        stamp(3)
    if nt_ == PK[0]:
        a("s_cmp_lg_u32 s35, 0\ns_cbranch_scc1 L_g_pok\ns_mov_b32 s3, 0")
        a("L_g_pw:")
        a("s_add_u32 s3, s3, 1\ns_cmp_gt_u32 s3, 2000000\ns_cbranch_scc1 L_exit")
        a("ds_read_b32 v10, v14\ns_waitcnt lgkmcnt(0)\nv_readfirstlane_b32 s13, v10\ns_cmp_eq_u32 s13, 0\ns_cbranch_scc1 L_g_pw")
        a("L_g_pok:")
    if nt_ <= 13:
        if off(nt_) - cur > 3072:
            a("\n".join(f"s_add_u32 s{18+i}, s{18+i}, {off(nt_)-cur}" for i in range(9))); cur = off(nt_)
        o = off(nt_) - cur; vv = 253 if nt_ in (6, 13) else 252
        L = ldh(nk, o, vv)
        if nt_ in PK: L += [f"ds_read_b128 {vr(G2W[nk]+4*i,4)}, v1 offset:{5120*PK.index(nt_)+1024*i}" for i in range(5)]
        elif nt_ > 3: L += ldw(nk, o, vv)
    a(f"s_waitcnt vmcnt({nld(t+1)+nld(t+2)})" + (" lgkmcnt(0)" if t in PK else ""))
    if t == 0: stamp(7)
    n = 0
    for i in ((1, 2, 3, 0) if t == 13 else range(4)):
        for dt in range(5):
            acc = AC2 + 4*(5*i+dt)
            a(f"v_mfma_f32_16x16x32_bf16 {vr(acc,4)}, {vr(G2W[k]+4*dt,4)}, {vr(G2H[k]+4*i,4)}, {vr(acc,4)}")
            if n < len(L): a(L[n])
            if t == 13:
                pi = {2: 1, 3: 2, 0: 3}.get(i)
                if pi: a(f"ds_write_b128 v1, {vr(AC2+4*(5*pi+dt),4)} offset:{5120*(pi-1)+1024*dt}")
            n += 1
stamp(8)
a("s_waitcnt lgkmcnt(0)\ns_barrier")
stamp(9)
R_ = 144
for q in range(10): a(f"ds_read_b128 {vr(R_+4*q,4)}, v{2+q//5} offset:{1024*(q%5)}")
for dt in range(5): a(f"ds_read_b64_tr_b16 {vr(16+2*dt,2)}, v5 offset:{2048*dt}")
for q in range(10):
    a(f"s_waitcnt lgkmcnt({14 if q < 5 else 19-q})")
    dt = q % 5
    for h in range(2): a(f"v_pk_add_f32 {vr(AC2+4*dt+2*h,2)}, {vr(AC2+4*dt+2*h,2)}, {vr(R_+4*q+2*h,2)}")
    if q < 5: a(f"ds_read_b128 {vr(R_+40+4*q,4)}, v4 offset:{1024*q}")
for dt in range(5):
    a(f"s_waitcnt lgkmcnt({9-dt})")
    for h in range(2):
        a(f"v_lshlrev_b32 v10, 16, v{16+2*dt+h}\nv_and_b32 v11, 0xffff0000, v{16+2*dt+h}\nv_pk_add_f32 {vr(AC2+4*dt+2*h,2)}, {vr(AC2+4*dt+2*h,2)}, v[10:11]")
a("s_waitcnt lgkmcnt(0)")
for dt in range(5):
    for h in range(2): a(f"v_pk_add_f32 {vr(AC2+4*dt+2*h,2)}, {vr(AC2+4*dt+2*h,2)}, {vr(R_+40+4*dt+2*h,2)}")
    for h in range(2): a(f"v_cvt_pk_bf16_f32 v{32+2*dt+h}, v{AC2+4*dt+2*h}, v{AC2+4*dt+2*h+1}")
    a(f"ds_write_b64 v6, {vr(32+2*dt,2)} offset:{32*dt}")
for q in range(3): a(f"ds_read_b128 {vr(48+4*q,4)}, v7 offset:{1024*q}")
for q in range(3):
    a(f"s_waitcnt lgkmcnt({2-q})\nbuffer_store_dwordx4 {vr(48+4*q,4)}, v{OUTV[q]}, {SA}, s27 offen")
stamp(10)
endp()

a("L_park:")
if opt("p1only", 0): endp()
a(tile_rc(12, 9, 10))
for i in range(1, 5): a(f"v_add_u32 v{1+i}, {55296*i}, v1")
a(f"s_mul_i32 s12, s9, {5*55296}\ns_add_u32 s12, s12, {W2F}\ns_mov_b32 s10, 0\ns_mov_b32 s3, 0")
spoll(wc_issue, wc_test, sleep=10)
if not opt("epark", 0):
    a(f"v_mov_b32 v10, {CNT+8}\ns_mov_b32 s11, 0")
    a("L_pk_w:")
    a("s_add_u32 s11, s11, 1\ns_cmp_gt_u32 s11, 200000\ns_cbranch_scc1 L_exit\ns_sleep 2")
    a("ds_read_b32 v11, v10\ns_waitcnt lgkmcnt(0)\nv_readfirstlane_b32 s13, v11\ns_cmp_eq_u32 s13, 0\ns_cbranch_scc1 L_pk_w")
stamp(11)
a("L_pk_loop:")
for p in range(3):
    a(f"s_add_u32 s13, s12, {off(PK[p])}")
    for i in range(5): a(f"s_add_u32 m0, s10, {5120*p+1024*i}\nbuffer_load_dwordx4 v{1+i}, {WS}, s13 offen{G2F} lds")
    if opt("epark", 0): a(f"s_waitcnt vmcnt({opt('epark', 0)})")
a(f"s_add_u32 s12, s12, 7168\ns_add_u32 s10, s10, {AREG}\ns_add_u32 s3, s3, 1\ns_cmp_lt_u32 s3, 4\ns_cbranch_scc1 L_pk_loop")
a(f"v_mov_b32 v2, {CNT}\nv_mov_b32 v3, 1\ns_waitcnt vmcnt(0)\nds_write_b32 v2, v3\ns_waitcnt lgkmcnt(0)")
stamp(12)
endp()

a("L_fetch:")
if opt("p1only", 0): endp()
a(tile_rc(8, 9, 10))
a("s_mul_i32 s11, s8, 81920")
a(f"v_mov_b32 v1, 0\ns_lshl_b32 s13, s9, 2\ns_add_u32 s13, s13, s{S_XR}\ns_lshl_b32 s13, s13, 7\ns_add_u32 s13, s13, {YAC}")
spoll(sld(12, 13), "s_cmp_ge_u32 s12, 80", sleep=opt('ysleep', 8), far=('s_cmp_ge_u32 s12, 24', opt('yfar', 32)))
stamp(11)
a(f"s_mul_i32 s10, s9, 10240\ns_add_u32 s11, s11, s10\ns_add_u32 s11, s11, {YA}\nv_lshlrev_b32 v1, 4, v0")
for q in range(10):
    a(f"buffer_load_dwordx4 {vr(16+4*q,4)}, v1, {WS}, s11 offen sc1\ns_add_u32 s11, s11, 1024")
a(f"v_add_u32 v1, {YAT}, v1")
for q in range(10):
    a(f"s_waitcnt vmcnt({9-q})\nds_write_b128 v1, {vr(16+4*q,4)} offset:{1024*q}")
a("s_waitcnt lgkmcnt(0)")
stamp(12)
a("s_barrier")
endp()

c_issue = sld(33, 100)
c_test = "s_cmp_ge_u32 s33, 64"
clr_s = f"s_load_dwordx4 s[28:31], s[{P['dbg']}:{P['dbg']+1}], 0"
a("L_aux:")
a(f"s_sub_u32 s8, s{S_J}, s8\ns_and_b32 s15, {WV}, 3\ns_mov_b32 s35, 0\nv_mov_b32 v230, 0\ns_mov_b32 s71, 0\ns_mul_i32 s69, {WV}, {AREG}")
a(f"s_lshl_b32 s9, s{S_XR}, 4\ns_lshl_b32 s10, s{S_XC}, 3\ns_add_u32 s9, s9, s10\ns_add_u32 s9, s9, s8")
RAW, DV = 164, 64
a("v_and_b32 v238, 3, v0\nv_lshlrev_b32 v238, 2, v238")
a(f"s_cmp_ge_u32 s8, 8\ns_cbranch_scc1 L_nolnwg\ns_cmp_lt_u32 {WV}, 4\ns_cbranch_scc1 L_lnw")
a(f"s_lshl_b32 s{S_CH}, s9, 2\ns_add_u32 s{S_CH}, s{S_CH}, s15\ns_branch L_par")
a("L_nolnwg:")
a(f"s_mul_i32 s10, s{S_XR}, 12\ns_lshl_b32 s11, s{S_XC}, 2\ns_add_u32 s10, s10, s11\ns_add_u32 s10, s10, s8\ns_lshl_b32 s10, s10, 3\ns_add_u32 s10, s10, {WV}\ns_add_u32 s{S_CH}, s10, 192")
a(f"s_lshl_b32 s10, s{S_XC}, 4\ns_add_u32 s10, s10, s8\ns_cmp_lg_u32 s10, 8\ns_cbranch_scc1 L_par")
a(f"s_lshl_b32 s10, s{S_XR}, 15\ns_lshl_b32 s11, {WV}, 12\ns_add_u32 s10, s10, s11\ns_add_u32 s10, s10, {CLR}\nv_lshlrev_b32 v1, 4, v0\ns_mov_b32 s35, 5")
zero(4, 4)
for i in range(4): a(f"buffer_store_dwordx4 v[4:7], v1, {WS}, s10 offen offset:{1024*i} sc1")
a("L_par:")
a(f"s_lshl_b32 s10, s{S_CH}, 8\nv_lshl_add_u32 v1, v0, 2, s10")
for i, nm in enumerate(["are", "aim", "bre", "bim", "cre", "cim"]):
    a(f"global_load_dword v{240+i}, v1, s[{P[nm]}:{P[nm]+1}]{NT1}")
a(f"s_lshl_b32 s10, s{S_CH}, 1\nv_mov_b32 v1, s10\nglobal_load_ushort v246, v1, s[{P['ldt']}:{P['ldt']+1}]")
a(f"global_load_ushort v147, v1, s[{P['dsk']}:{P['dsk']+1}]")
a("s_cmp_lt_u32 s8, 8\ns_cbranch_scc1 L_wrole\ns_cmp_lg_u32 s35, 5\ns_cbranch_scc1 L_cs")
a(f"s_waitcnt vmcnt(8)\ns_barrier\ns_cmp_lg_u32 {WV}, 0\ns_cbranch_scc1 L_cs")
a(f"s_lshl_b32 s10, s{S_XR}, 2\nv_mov_b32 v2, 1\nv_mov_b32 v4, 0\ns_mov_b64 exec, 1\nbuffer_store_dword v2, v4, {DBG}, s10 offen sc1\ns_mov_b64 exec, -1\ns_waitcnt vmcnt(1)")
stamp(1)
a("L_cs:")
a(f"s_mov_b32 s35, 0\ns_sub_u32 s9, s8, 8\ns_lshl_b32 s10, s{S_XR}, 2\ns_lshl_b32 s10, s10, s{S_XC}\ns_add_u32 s9, s9, s10")
a(f"s_cmp_eq_u32 s{S_XC}, 0\ns_cselect_b32 s10, 8, 3\ns_movk_i32 s11, 120\ns_mul_i32 s9, s9, s10\ns_add_u32 s9, s9, {WV}\ns_cmp_ge_u32 {WV}, s10\ns_cbranch_scc1 L_kgen\ns_cmp_ge_u32 s9, s11\ns_cbranch_scc1 L_kgen")
a(f"s_and_b32 s15, s9, 3\ns_lshr_b32 s9, s9, 2\ns_mul_i32 s10, s{S_XC}, 30\ns_add_u32 s9, s9, s10")
a("s_mul_i32 s12, s15, 552960\ns_lshl_b32 s11, s9, 6\ns_add_u32 s71, s12, s11")
a(f"v_and_b32 v4, 31, v0\nv_lshlrev_b32 v4, 1, v4\nv_add_u32 v4, s11, v4\nglobal_load_ushort v145, v4, s[{P['b1']}:{P['b1']+1}]")
a("v_lshrrev_b32 v2, 2, v0\nv_and_b32 v3, 3, v0\nv_mul_u32_u24 v1, 3456, v2\nv_lshl_add_u32 v230, v3, 4, v1\ns_mov_b32 s35, 2\ns_branch L_kgen")
a("L_wrole:")
W2R = lambda i: (RAW + 4*i) if i < 10 else (148 + 4*(i-10))
a("s_barrier")
srd(S_B, P['w2'], 2211840)
a("v_lshrrev_b32 v8, 3, v0\nv_mul_u32_u24 v8, 1280, v8\nv_and_b32 v9, 7, v0\nv_lshl_add_u32 v8, v9, 4, v8\ns_lshl_b32 s8, s9, 2\ns_add_u32 s8, s8, s15")
for u_ in range(3):
    a(f"s_add_u32 s10, s8, {256*u_}\ns_mul_i32 s11, s10, 6554\ns_lshr_b32 s11, s11, 16\ns_mul_i32 s70, s11, 10\ns_sub_u32 s70, s10, s70")
    a(f"s_mul_i32 s13, s11, 40960\ns_lshl_b32 s71, s70, 7\ns_add_u32 s13, s13, s71\ns_mul_i32 s71, s70, 216\ns_mul_i32 s70, s11, 43\ns_lshr_b32 s70, s70, 8\ns_mul_i32 s70, s70, 3\ns_sub_u32 s11, s11, s70\ns_sub_u32 s70, s11, s70\ns_cmp_ge_u32 s70, 3\ns_cselect_b32 s70, 24, 0\ns_add_u32 s11, s11, s70\ns_add_u32 s71, s71, s11\ns_lshl_b32 s71, s71, 10\ns_add_u32 s{96+u_}, s71, {W2F}")
    if u_ == 2: a(f"s_cmp_lt_u32 s10, 540\ns_cselect_b32 s13, s13, {OOB}\ns_cselect_b32 s98, s98, {OOB}")
    for q in range(4): a(f"buffer_load_dwordx4 {vr(W2R(4*u_+q),4)}, v8, {SB}, s13 offen{NT1}\ns_add_u32 s13, s13, 10240")
a("s_mov_b32 s35, 1")
a("L_kgen:")
a("s_mov_b32 s68, 0\ns_mov_b32 m0, s69")
a(lnc_addr)
a(f"s_mov_b32 s101, 0\nv_mov_b32 v146, 0\nv_mov_b32 v253, 0\ns_cmp_lt_u32 {WV}, 4\ns_cbranch_scc1 L_kg_nocs")
conv_setup()
a("L_kg_nocs:")
a("v_and_b32 v2, 31, v0\nv_mul_u32_u24 v2, 272, v2\nv_lshrrev_b32 v3, 5, v0\nv_lshl_add_u32 v2, v3, 4, v2\nv_add_u32 v228, s69, v2")
KA = 208
zero(KA, 16)
a("s_mov_b32 s3, 0\ns_cmp_eq_u32 s35, 1\ns_cbranch_scc1 L_kw12\ns_waitcnt vmcnt(1)")
a("L_kw12:")
a("s_waitcnt vmcnt(12)")
stamp(3)
a(f"v_lshlrev_b32 v3, 16, v246\nv_mul_f32 v3, {f32(math.log2(math.e))}, v3\nv_exp_f32 v3, v3\nv_cvt_pk_bf16_f32 v3, v3, v3\nv_lshlrev_b32 v229, 16, v3")
a("s_cmp_eq_u32 s35, 1\ns_cbranch_scc1 L_w2mid")
a("L_kg_loop:")
for i in range(6): a(f"v_and_b32 v{4+i}, 0xffff0000, v{240+i}\nv_lshlrev_b32 v{240+i}, 16, v{240+i}")
for i in range(4): a(f"v_mul_f32 v{4+i}, v229, v{4+i}")
a(f"v_mul_f32 v4, {f32(math.log2(math.e))}, v4\nv_mul_f32 v5, {f32(1/(2*math.pi))}, v5")
Z1, Z8, Z256, W = 10, 12, 14, 16
for k, z in ((1, Z1), (8, Z8), (256, Z256)):
    a(f"v_mul_f32 v20, {f32(k)}, v4\nv_mul_f32 v21, {f32(k)}, v5\nv_fract_f32 v21, v21\nv_exp_f32 v20, v20\nv_cos_f32 v{z}, v21\nv_sin_f32 v{z+1}, v21")
    neg = " neg_hi:[0,1]" if k == 8 else ""
    a(f"v_pk_mul_f32 {vr(z,2)}, {vr(z,2)}, v[20:21] op_sel:[0,0] op_sel_hi:[1,0]{neg}")
cmul(W, 8, 6, 20)
rowof = {}
h0 = [[0,1,2,3],[4,5,6,7],[1024,1032,1280,1288],[1536,1544,1792,1800]]
h1 = [[256,258,260,262],[264],[512,516,520],[768,772,776]]
for q in range(4):
    for i, v in enumerate(h0[q]): rowof[v] = 8*q + i
    for i, v in enumerate(h1[q]): rowof[v] = 8*q + 4 + i
cv = [0]
def put(src, row):
    t = 24 + (cv[0] % 4); cv[0] += 1
    a(f"v_cvt_pk_bf16_f32 v{t}, v{src}, v{src+1}\nds_write_addtid_b32 v{t} offset:{row*272}")
G = {0: W}
opsG = [lambda: put(W, rowof[0])]
for b in range(1, 9):
    G[b] = 32 + 2*b
    opsG.append(lambda b=b: (cmul(G[b], G[b-1], Z1, 20), put(G[b], rowof[b]) if b < 8 else None))
Pq = {1: Z256}
for q in range(1, 8):
    if q > 1:
        Pq[q] = 52 + 2*(q & 1)
        opsG.append(lambda q=q: cmul(Pq[q], Pq[q-1], Z256, 20))
    ds = {1: (0,2,4,6,8), 2: (0,4,8), 3: (0,4,8)}.get(q, (0, 8))
    for n, d in enumerate(ds):
        opsG.append(lambda q=q, d=d, n=n: (cmul(56+2*(n&1), G[d], Pq[q], 20), put(56+2*(n&1), rowof[256*q+d])))
opsE = [lambda: a(f"v_mov_b32 v28, 0x3f80\nds_write_addtid_b32 v28 offset:{32*272}"), lambda: put(Z8, 33)]
for j in range(2, 32):
    src = Z8 if j == 2 else 60 + 2*((j-1) & 1)
    dst = 60 + 2*(j & 1)
    opsE.append(lambda src=src, dst=dst, j=j: (cmul(dst, src, Z8, 22), put(dst, 32+j)))
for i in range(max(len(opsG), len(opsE))):
    if i < len(opsE): opsE[i]()
    if i < len(opsG): opsG[i]()
    if i < 10:
        a(f"s_cmp_lg_u32 s35, 2\ns_cbranch_scc1 L_kg_nl{i}\nbuffer_load_dwordx4 {vr(RAW+4*i,4)}, v230, {SB}, s71 offen{NT}\ns_add_u32 s71, s71, 55296")
        a(f"L_kg_nl{i}:")
    if i == 12 and opt("eu", 1):
        a(f"s_lshl_b32 s10, s3, 2\ns_and_b32 s10, s10, {WV}\ns_cbranch_scc1 L_eu0")
        a("L_kg_ne1:")
    if i == 31 and opt("eu", 1):
        a("s_cmp_eq_u32 s68, 1\ns_cbranch_scc1 L_eu")
        a("L_kg_ne2:")
    if i == opt("wsig", 14):
        a("s_cmp_eq_u32 s35, 6\ns_cbranch_scc1 L_w2sig")
        a("L_kg_nsig:")
a("s_waitcnt lgkmcnt(0)")
for k in range(8):
    a(f"ds_read_b128 {vr(64+8*k,4)}, v228 offset:{32*k}\nds_read_b128 {vr(68+8*k,4)}, v228 offset:{32*272+32*k}")
for k in range(8):
    a(f"s_waitcnt lgkmcnt({14-2*k})")
    a(f"v_mfma_f32_32x32x16_bf16 {vr(KA,16)}, {vr(64+8*k,4)}, {vr(68+8*k,4)}, {vr(KA,16)}")
a("s_cmp_lg_u32 s3, 0\ns_cbranch_scc1 L_kg_done")
a(clr_s)
a("s_mov_b32 s3, 1\ns_cmp_lg_u32 s35, 2\ns_cbranch_scc1 L_kg_loop\ns_branch L_csum")
a("L_eu0:")
a("s_waitcnt lgkmcnt(0)\ns_and_b32 s10, s28, s29\ns_and_b32 s11, s30, s31\ns_and_b32 s10, s10, s11\ns_cselect_b32 s35, 4, s35\ns_cmp_lt_u32 s35, 4\ns_cbranch_scc1 L_kg_ne1")
a(c_issue)
a("s_mov_b32 s68, 1\ns_branch L_kg_ne1")
a("L_eu:")
a("s_mov_b32 s68, 0\ns_waitcnt lgkmcnt(0)")
a(c_test)
a("s_cbranch_scc0 L_kg_ne2")
uloads()
a("s_mov_b32 s68, 2\ns_branch L_kg_ne2")
def need_clr(tag):
    a(f"s_waitcnt lgkmcnt(0)\ns_and_b32 s28, s28, s29\ns_and_b32 s30, s30, s31\ns_and_b32 s28, s28, s30\ns_cbranch_scc1 L_clr_{tag}")
    poll(clr_issue(239, 238), clr_test(239), sleep=8, issued=False)
    a(f"L_clr_{tag}:")
def touch():
    if not opt("touch", 0): return
    n = 270 if RS else 135
    a(f"s_and_b32 s10, s8, 7\ns_lshl_b32 s10, s10, 3\ns_add_u32 s10, s10, {WV}")
    if RS: a(f"s_and_b32 s11, s2, 7\ns_lshl_b32 s11, s11, 3\ns_add_u32 s10, s10, s11\ns_and_b32 s10, s10, 63\ns_mul_i32 s10, s10, {n*128}")
    else: a(f"s_lshl_b32 s11, s{S_XR}, 4\ns_add_u32 s10, s10, s11\ns_and_b32 s10, s10, 63\ns_mul_i32 s10, s10, {n*128}\ns_mul_i32 s11, s{S_XC}, 1105920\ns_add_u32 s10, s10, s11")
    a(f"s_add_u32 s10, s10, {W2F}\nv_lshlrev_b32 v4, 7, v0")
    for i in range(n // 64): a(f"buffer_load_dword v144, v4, {WS}, s10 offen sc1\ns_add_u32 s10, s10, 8192")
    a(few((1 << (n % 64)) - 1, f"buffer_load_dword v144, v4, {WS}, s10 offen sc1"))
def lds_wait(tag, target):
    a("s_mov_b32 s12, 0")
    a(f"L_sb{tag}:")
    a("s_add_u32 s12, s12, 1\ns_cmp_gt_u32 s12, 2000000\ns_cbranch_scc1 L_exit")
    a(f"ds_read_b32 v15, v14\ns_waitcnt lgkmcnt(0)\nv_readfirstlane_b32 s11, v15\ns_cmp_lt_u32 s11, {target}\ns_cbranch_scc1 L_sb{tag}")
a("L_lnw:")
a("s_lshl_b32 s10, s9, 5\ns_lshl_b32 s11, s15, 3\ns_add_u32 s14, s10, s11\ns_mul_i32 s11, s14, 1280")
a("v_lshrrev_b32 v2, 4, v0\nv_and_b32 v3, 15, v0\nv_mul_u32_u24 v1, 2560, v2\nv_lshl_add_u32 v1, v3, 4, v1")
for sg in range(2):
    for i in range(5):
        a(f"buffer_load_dwordx4 {vr(RAW+20*sg+4*i,4)}, v1, {SA}, s11 offen offset:{sg*1280+i*256}{NT}")
a(f"v_mov_b32 v4, {CNT}\nv_mov_b32 v6, 0\nv_mov_b32 v7, 0\nds_write_b64 v4, v[6:7]\ns_waitcnt lgkmcnt(0)\ns_barrier")
a("s_lshl_b32 s11, s15, 4\nv_lshlrev_b32 v8, 2, v2\nv_add_u32 v8, s11, v8")
for i in range(5):
    a(f"v_add_u32 v4, {16*i}, v3\nv_mul_u32_u24 v5, 3277, v4\nv_lshrrev_b32 v5, 16, v5\nv_mul_u32_u24 v5, {BREG-20*528}, v5\nv_mul_u32_u24 v4, 528, v4\nv_add3_u32 v{150+i}, v4, v5, v8")
a(f"s_setprio 2\nv_mov_b32 v14, {CNT}\nv_lshrrev_b32 v2, 4, v0\ns_mov_b32 s12, 0x3f803f80")
zero(4, 4)
a("s_waitcnt vmcnt(0)")
stamp(1)
a(clr_s)
for sg in range(2):
    for k in range(20):
        a(f"v_dot2_f32_bf16 v{4+2*sg+(k&1)}, v{RAW+20*sg+k}, s12, v{4+2*sg+(k&1)}")
a("v_add_f32 v4, v4, v5\nv_add_f32 v6, v6, v7")
def unp(sg, ks):
    for k in ks:
        d = DV + 40*sg + 2*k
        a(f"v_lshlrev_b32 v{d}, 16, v{RAW+20*sg+k}\nv_and_b32 v{d+1}, 0xffff0000, v{RAW+20*sg+k}")
for n, sh in enumerate((8, 4, 2, 1)):
    a(f"v_add_f32_dpp v4, v4, v4 row_ror:{sh} row_mask:0xf bank_mask:0xf\nv_add_f32_dpp v6, v6, v6 row_ror:{sh} row_mask:0xf bank_mask:0xf")
    unp(0, range(5*n, 5*n+5))
a(f"v_mul_f32 v4, {f32(1/640)}, v4\nv_mul_f32 v6, {f32(1/640)}, v6")
a("v_cvt_pk_bf16_f32 v5, v4, v6\nv_lshlrev_b32 v8, 16, v5\nv_and_b32 v9, 0xffff0000, v5")
a("v_sub_f32 v56, 0, v8\nv_sub_f32 v57, 0, v8\nv_sub_f32 v58, 0, v9\nv_sub_f32 v59, 0, v9")
zero(10, 4)
unp(1, range(20))
for sg in range(2):
    for k in range(20):
        d = DV + 40*sg + 2*k
        a(f"v_pk_add_f32 {vr(d,2)}, {vr(d,2)}, {vr(56+2*sg,2)}")
    for k in range(20):
        d = DV + 40*sg + 2*k
        a(f"v_pk_fma_f32 {vr(10+2*sg,2)}, {vr(d,2)}, {vr(d,2)}, {vr(10+2*sg,2)}")
a("v_add_f32 v10, v10, v11\nv_add_f32 v12, v12, v13")
def rnd(sg, ks):
    for k in ks:
        d = DV + 40*sg + 2*k
        a(f"v_cvt_pk_bf16_f32 v{RAW+20*sg+k}, v{d}, v{d+1}")
for n, sh in enumerate((8, 4, 2, 1)):
    a(f"v_add_f32_dpp v10, v10, v10 row_ror:{sh} row_mask:0xf bank_mask:0xf\nv_add_f32_dpp v12, v12, v12 row_ror:{sh} row_mask:0xf bank_mask:0xf")
    rnd(0, range(2*n, 2*n+2))
a("v_sub_f32 v4, v4, v8\nv_sub_f32 v6, v6, v9\nv_mul_f32 v4, v4, v4\nv_mul_f32 v6, v6, v6")
a(f"s_mov_b32 s12, {f32(1/640)}\nv_fma_f32 v4, v10, s12, -v4\nv_fma_f32 v6, v12, s12, -v6")
a("v_max_f32 v4, 0, v4\nv_max_f32 v6, 0, v6")
a("v_cvt_pk_bf16_f32 v7, v4, v6\nv_lshlrev_b32 v4, 16, v7\nv_and_b32 v6, 0xffff0000, v7")
a(f"v_add_f32 v4, {f32(1e-5)}, v4\nv_add_f32 v6, {f32(1e-5)}, v6")
a("v_cvt_pk_bf16_f32 v7, v4, v6\nv_lshlrev_b32 v4, 16, v7\nv_and_b32 v6, 0xffff0000, v7")
a("v_sqrt_f32 v4, v4\nv_sqrt_f32 v6, v6\nv_cvt_pk_bf16_f32 v7, v4, v6")
a("v_lshlrev_b32 v4, 16, v7\nv_and_b32 v6, 0xffff0000, v7\nv_rcp_f32 v60, v4\nv_rcp_f32 v61, v4\nv_rcp_f32 v62, v6\nv_rcp_f32 v63, v6")
a("v_and_b32 v12, 0xffff, v5\nv_or_b32 v12, v12, v4\nv_lshrrev_b32 v13, 16, v5\nv_or_b32 v13, v13, v6")
a(f"s_lshl_b32 s11, s14, 2\ns_add_u32 s11, s11, {STATS}\nv_lshlrev_b32 v1, 3, v2")
need_clr("ln")
a(f"s_mov_b32 exec_lo, 0x10001\ns_mov_b32 exec_hi, 0x10001\nbuffer_store_dwordx2 v[12:13], v1, {WS}, s11 offen sc1\ns_mov_b64 exec, -1")
stamp(2)
rnd(0, range(8, 20)); rnd(1, range(20))
unp(0, range(20)); unp(1, range(20))
for sg in range(2):
    for k in range(20):
        d = DV + 40*sg + 2*k
        a(f"v_pk_mul_f32 {vr(d,2)}, {vr(d,2)}, {vr(60+2*sg,2)}")
for k in range(20):
    for h in range(2):
        d = DV + 2*k + h
        a(f"v_cvt_pk_bf16_f32 v{d}, v{d}, v{d+40}")
    d = DV + 2*k
    a(f"ds_write2_b32 v{150+k//4}, v{d}, v{d+1} offset0:{(k%4)*32} offset1:{(k%4)*32+16}")
a("v_mov_b32 v15, 1\nds_add_u32 v14, v15")
a("v_lshrrev_b32 v3, 5, v0\nv_lshlrev_b32 v2, 4, v0\nv_lshl_add_u32 v1, v3, 4, v2\nv_add_u32 v1, s69, v1")
a("s_mul_i32 s10, s9, 40960\ns_mul_i32 s11, s15, 10240\ns_add_u32 s10, s10, s11")
lds_wait("b", 256)
for i in range(10): a(f"ds_read_b128 {vr(RAW+4*i,4)}, v1 offset:{1056*i}")
for i in range(10):
    a(f"s_waitcnt lgkmcnt({9-i})\nbuffer_store_dwordx4 {vr(RAW+4*i,4)}, v2, {WS}, s10 offen sc1\ns_add_u32 s10, s10, 1024")
a(f"s_lshl_b32 s10, s15, 11\ns_add_u32 s10, s10, {LNC}\nv_lshlrev_b32 v4, 7, v0\nv_mov_b32 v5, 1")
a(f"s_waitcnt vmcnt(0)\ns_mov_b64 exec, 0xffff\nbuffer_atomic_add v5, v4, {WS}, s10 offen sc1\ns_mov_b64 exec, -1\ns_setprio 0")
stamp(4)
a("s_lshl_b32 s8, s9, 2\ns_add_u32 s8, s8, s15")
a("s_cmp_lg_u32 s8, 255\ns_cbranch_scc1 L_norelay")
a(f"v_lshlrev_b32 v6, 6, v0\ns_mov_b32 s8, {W2C}")
poll(few(3, f"buffer_load_dword v7, v6, {DBG}, 0 offen offset:128 sc1"),
     "v_readlane_b32 s9, v7, 0\nv_readlane_b32 s10, v7, 1\ns_add_u32 s9, s9, s10\ns_cmp_ge_u32 s9, 64", sleep=4, issued=False)
stamp(11)
a(f"s_mov_b32 exec_hi, 0\nbuffer_store_dword v5, v4, {WS}, s8 offen offset:1024 sc1\ns_mov_b32 exec_hi, -1")
a("L_norelay:")
a("s_mov_b32 s35, 1\ns_branch L_g2")
a("L_csum:")
a("s_setprio 3\ns_mov_b32 s12, 0x00003f80\ns_mov_b32 s13, 0x3f800000\nv_and_b32 v3, 3, v0")
zero(4, 8)
a("s_waitcnt vmcnt(0)")
for i in range(10):
    for k in range(4):
        a(f"v_dot2_f32_bf16 v{4+2*k}, v{RAW+4*i+k}, s12, v{4+2*k}\nv_dot2_f32_bf16 v{5+2*k}, v{RAW+4*i+k}, s13, v{5+2*k}")
for sh in (8, 4):
    for r in range(8): a(f"v_add_f32_dpp v{4+r}, v{4+r}, v{4+r} row_ror:{sh} row_mask:0xf bank_mask:0xf")
a("v_lshrrev_b32 v12, 4, v0\nv_lshlrev_b32 v12, 7, v12\nv_lshl_add_u32 v12, v3, 5, v12\nv_add_u32 v12, s69, v12")
a("ds_write_b128 v12, v[4:7]\nds_write_b128 v12, v[8:11] offset:16")
a("v_and_b32 v12, 31, v0\nv_lshl_add_u32 v13, v12, 2, s69")
for p in range(4): a(f"ds_read_b32 v{16+p}, v13 offset:{128*p}")
a("s_waitcnt lgkmcnt(0)\nv_add_f32 v16, v16, v17\nv_add_f32 v18, v18, v19\nv_add_f32 v16, v16, v18")
a("v_cvt_pk_bf16_f32 v4, v16, v16\nv_lshlrev_b32 v5, 16, v4\nv_sub_f32 v5, v16, v5")
a("v_cvt_pk_bf16_f32 v6, v16, v5\nv_and_b32 v7, 0xffff0000, v6\nv_sub_f32 v7, v5, v7")
a("v_cvt_pk_bf16_f32 v7, v7, v7\nv_and_b32 v7, 0xffff, v7\nv_or_b32 v7, 1, v7")
a(f"s_lshl_b32 s12, s9, 8\ns_mul_i32 s13, s15, {CSP}\ns_add_u32 s12, s12, s13\ns_add_u32 s12, s12, {CSUM}\nv_lshlrev_b32 v12, 3, v12")
need_clr("cs")
a("v_lshl_or_b32 v7, v145, 16, v7")
a(f"s_mov_b32 exec_hi, 0\nbuffer_store_dwordx2 v[6:7], v12, {WS}, s12 offen sc1\ns_mov_b32 exec_hi, -1")
stamp(2)
a("s_setprio 0\ns_mov_b32 s35, 4\ns_branch L_kg_loop")
a("L_w2mid:")
a("s_setprio 3")
a("v_lshlrev_b32 v2, 4, v0\ns_waitcnt vmcnt(0)")
for i in range(12): a(f"ds_write_b128 v{cLIN}, {vr(W2R(i),4)} offset:{1024*i}")
a("v_lshrrev_b32 v6, 5, v0\nv_bfe_u32 v7, v0, 4, 1\nv_lshlrev_b32 v6, 4, v6\nv_lshl_add_u32 v6, v7, 2, v6\nv_bfe_u32 v7, v0, 2, 2\nv_add_u32 v6, v6, v7")
a("v_lshlrev_b32 v6, 7, v6\nv_and_b32 v7, 3, v0\nv_lshl_add_u32 v6, v7, 3, v6\nv_add_u32 v6, s69, v6")
for u_ in range(3):
    for dt in range(4):
        for h in range(2): a(f"ds_read_b64_tr_b16 {vr(W2R(4*u_+dt)+2*h,2)}, v6 offset:{4096*u_+1024*h+32*dt}")
    for dt in range(4):
        a(f"s_waitcnt lgkmcnt({6-2*dt})\nbuffer_store_dwordx4 {vr(W2R(4*u_+dt),4)}, v2, {WS}, s{96+u_} offen sc1\ns_add_u32 s{96+u_}, s{96+u_}, 55296")
a("s_setprio 2\ns_mov_b32 s35, 6\ns_branch L_kg_loop")
a("L_w2sig:")
a(f"v_mov_b32 v4, {CNT+4}\nv_mov_b32 v5, 1\nv_mov_b32 v6, 0\ns_waitcnt vmcnt(0)\ns_mov_b64 exec, 1\nds_add_rtn_u32 v7, v4, v5\ns_waitcnt lgkmcnt(0)\nv_readfirstlane_b32 s10, v7")
a(f"s_and_b32 s11, s9, 1\ns_lshl_b32 s11, s11, 6\ns_add_u32 s11, s11, 128\ns_cmp_eq_u32 s10, 3\ns_cselect_b32 s11, s11, {OOB}\nbuffer_atomic_add v5, v6, {DBG}, s11 offen sc1\ns_mov_b64 exec, -1")
stamp(2)
a(f"s_setprio {opt('wprio', 1)}\ns_mov_b32 s35, 0\ns_branch L_kg_nsig")
a("L_kg_done:")
a("s_waitcnt vmcnt(4)")
a("s_cmp_ge_u32 s35, 3\ns_cbranch_scc1 L_clr_fin")
a(clr_s)
need_clr("fin")
a(f"s_waitcnt lgkmcnt(0)\ns_cmp_lt_u32 {WV}, 4\ns_cbranch_scc1 L_kg_nc\ns_cmp_eq_u32 s68, 2\ns_cbranch_scc1 L_kg_nc\ns_waitcnt vmcnt(0)")
a(c_issue)
a("L_kg_nc:")
a("s_nop 7")
stamp(4)
a(f"s_setprio {opt('pprio', 2)}")
r = lambda i: KA + i
a("v_lshlrev_b32 v1, 4, v0\nv_add_u32 v13, s69, v1")
zero(4, 4)
for i in range(3): a(f"ds_write_b128 v13, v[4:7] offset:{SCR+1024*i}")
a("v_and_b32 v3, 31, v0\nv_lshlrev_b32 v2, 4, v3\nv_sub_u32 v2, s69, v2\nv_add_u32 v2, 512, v2")
def pack(o, pairs):
    for i, (lo, hi) in enumerate(pairs): a(f"v_cvt_pk_bf16_f32 v{o+i}, {lo}, {hi}")
R = lambda i: f"v{KA+i}"
pack(16, [(R(7),R(6)),(R(5),R(4)),(R(3),R(2)),(R(1),R(0))])
pack(20, [(R(4),R(3)),(R(2),R(2)),(R(2),R(1)),(R(0),R(0))])
pack(24, [("0","0"),(R(9),R(9)),(R(9),R(8)),(R(8),R(8))])
pack(28, [(R(9),R(10)),(R(13),R(14))])
pack(30, [(R(9),R(11)),(R(13),R(15))])
a(f"v_and_b32 v8, 1, v3\nv_and_b32 v10, 30, v3\nv_mul_u32_u24 v9, 320, v8\nv_mul_u32_u24 v8, 640, v8\ns_add_u32 s10, s69, {T2}\nv_sub_u32 v10, s10, v10\nv_add_u32 v8, v8, v10\nv_add_u32 v9, v9, v10")
a("s_mov_b32 exec_hi, 0")
a(f"ds_write_b128 v2, v[16:19] offset:{IMG+1072-512}")
for q in range(4):
    for cp in range(2): a(f"ds_write_b16{'_d16_hi' if q & 1 else ''} v9, v{30+q//2} offset:{T3-T2 + 160*cp + 2*(63-16*q-cp)}")
a("s_mov_b32 exec_hi, -1\ns_mov_b32 exec_lo, 0")
a(f"ds_write_b128 v2, v[20:23] offset:{IMG+560-512}")
for q in range(2):
    for w in range(2):
        for cp in range(2): a(f"ds_write_b16{'_d16_hi' if w else ''} v8, v{28+q} offset:{320*w + 160*cp + 2*(47-16*q-cp)}")
a(f"s_mov_b32 exec_hi, 1\nds_write_b128 v2, v[24:27] offset:{IMG+48-512}\nds_write_b16 v8, v4 offset:{2*47}\nds_write_b16 v8, v4 offset:{160+2*46}\ns_mov_b64 exec, -1")
a(f"s_cmp_lt_u32 {WV}, 4\ns_cbranch_scc1 L_kexp")
a("s_cmp_eq_u32 s68, 2\ns_cbranch_scc1 L_cv_kpart\ns_waitcnt lgkmcnt(0)")
a(c_test)
a("s_cbranch_scc0 L_cv_kpart")
uloads()
a("s_mov_b32 s68, 2")
a("L_cv_kpart:")
B2, B3 = 164, 188
a(f"v_mov_b32 v5, s69\nds_read_u16 v34, v5 offset:{T2 + 6*160 + 2*16}")
a(f"ds_read_b128 v[16:19], v{cLIN} offset:{IMG}\nds_read_b64 v[20:21], v{cLIN} offset:{IMG+16}\nds_read_b128 v[24:27], v{cIMG2} offset:{IMG+1024}\nds_read_b64 v[28:29], v{cIMG2} offset:{IMG+1040}")
for i in range(6):
    for h in range(2): a(f"ds_read2_b32 {vr(B2+4*i+2*h,2)}, v{cT2} offset0:{4*i+2*h} offset1:{4*i+2*h+1}")
for d in range(4):
    for h in range(2): a(f"ds_read2_b32 {vr(B3+4*d+2*h,2)}, v{cT3} offset0:{8*(3-d)+2*h} offset1:{8*(3-d)+2*h+1}")
a("v_lshl_or_b32 v5, v147, 16, v147")
for k in range(4): a(f"v_and_b32 v{AD+k}, v{AD+k}, v5")
a("s_waitcnt lgkmcnt(15)\nv_lshl_or_b32 v5, v34, 16, v34")
for k in range(4): a(f"v_and_b32 v{AB+k}, v{AB+k}, v5")
for rr, (D, va, off) in enumerate(((16, cKW1, 0), (24, cKW2, 4608))):
    O = 64 + 16*rr
    for i in range(4):
        a(f"v_mov_b32 v{O+4*i}, v{D+i}\nv_mov_b32 v{O+4*i+1}, v{D+i+1}")
        a(f"v_alignbit_b32 v{O+4*i+2}, v{D+i+1}, v{D+i}, 16\nv_alignbit_b32 v{O+4*i+3}, v{D+i+2}, v{D+i+1}, 16")
        a(f"ds_write_b128 v{va}, {vr(O+4*i,4)} offset:{off + 16*i}")
a(f"ds_read_b64 {vr(A16,2)}, v{cA0}\nds_read_b64 {vr(A16+2,2)}, v{cA1}")
stamp(5)
a("s_cmp_lg_u32 s101, 0\ns_cbranch_scc1 L_cv_direct")
a("L_cv_upart:")
a(f"s_setprio {opt('pprio', 2)}")
zero(4, 4)
a(f"s_mov_b64 exec, 0x3fffffff\nds_write_b128 v{cLIN}, v[4:7] offset:{UB-480}\ns_mov_b64 exec, 3")
for o in (W3B-48, W5B-48, W7B-48, W9B-48, W9B+2032): a(f"ds_write_b128 v{cLIN}, v[4:7] offset:{o}")
a("s_mov_b64 exec, -1")
a("s_bitcmp1_b32 s68, 1\ns_cbranch_scc1 L_cv_u2")
spoll(c_issue, c_test, sleep=opt("lsleep", 6))
uloads()
a("L_cv_u2:")
stamp(6)
a("s_waitcnt vmcnt(0)")
for q in range(4): a(f"ds_write_b128 v{cLIN}, {vr(148+4*q,4)} offset:{UB+1024*q}")
SET = [(16, 24), (56, 64)]; CA = 96
a(f"v_mov_b32 v13, v{cLIN}\ns_mov_b32 s3, 0")
o = UB - 16
wrd = f"ds_read_b64 v[128:129], v13 offset:{o-8}\nds_read_b128 v[130:133], v13 offset:{o}\nds_read_b64 v[134:135], v13 offset:{o+16}"
a(wrd)
a("s_waitcnt lgkmcnt(0)")
a("L_cv_win:")
D = 128; Pf = 96
for e in range(16):
    a(f"v_lshlrev_b32 v{Pf+e}, 16, v{D+e//2}" if e % 2 == 0 else f"v_and_b32 v{Pf+e}, 0xffff0000, v{D+e//2}")
a(wrd.replace(f"offset:{o-8}", f"offset:{o-8+1024}").replace(f"offset:{o}\n", f"offset:{o+1024}\n").replace(f"offset:{o+16}", f"offset:{o+16+1024}"))
for e in range(1, 16): a(f"v_add_f32 v{Pf+e}, v{Pf+e}, v{Pf+e-1}")
for h, base in ((1, W3B), (2, W5B), (3, W7B), (4, W9B)):
    if h == 3: a("s_cmp_eq_u32 s3, 2\ns_cbranch_scc1 L_cv_wend")
    T = 112
    for i in range(8):
        b = 4+i-h-1
        a(f"v_sub_f32 v{T+i}, v{Pf+4+i+h}, v{Pf+b}" if b >= 0 else f"v_mov_b32 v{T+i}, v{Pf+4+i+h}")
    for i in range(4): a(f"v_cvt_pk_bf16_f32 v{120+4*(h&1)+i}, v{T+2*i}, v{T+2*i+1}")
    a(f"ds_write_b128 v13, {vr(120+4*(h&1),4)} offset:{base-16}")
a("v_add_u32 v13, 1024, v13\ns_add_u32 s3, s3, 1\ns_waitcnt lgkmcnt(4)\ns_branch L_cv_win")
a("L_cv_wend:")
a("s_cmp_lg_u32 s101, 0\ns_cbranch_scc1 L_cv_rk")
a("L_cv_direct:")
a(f"v_add_u32 v8, 2304, v{cA0}\nv_add_u32 v9, 2304, v{cA1}\nv_mov_b32 v10, v{cB}")
def rd(st):
    A_, B_ = SET[st]; Rr = []
    for x in range(2):
        Rr.append(f"ds_read_b64 {vr(A_+4*x,2)}, v8 offset:{2304*(1-x)}")
        Rr.append(f"ds_read_b64 {vr(A_+4*x+2,2)}, v9 offset:{2304*(1-x)}")
    for b in range(8): Rr.append(f"ds_read_b128 {vr(B_+4*b,4)}, v10 offset:{512*b}")
    return Rr
advk = ["v_subrev_u32 v8, 288, v8", "v_subrev_u32 v9, 288, v9", "v_subrev_u32 v10, 64, v10"]
for x in rd(0) + advk: a(x)
a(f"s_setprio {opt('cprio', 2)}\ns_mov_b32 s3, 0\ns_waitcnt lgkmcnt(0)")
if PROF: a("s_cmp_lt_u32 s4, 4\ns_cbranch_scc1 L_ns7")
stamp(7)
if PROF: a("L_ns7:")
def mf(n, A_, B_, c=None): a(f"v_mfma_f32_16x16x32_bf16 {vr(CA+4*n,4)}, {vr(A_,4)}, {vr(B_,4)}, {c if c else vr(CA+4*n,4)}")
for b in range(8): mf(b, AD, SET[0][1]+4*b, "0")
for b in range(6): mf(b+2, A16, SET[0][1]+4*b)
for b in range(4): mf(b+4, AB, SET[0][1]+4*b)
a("L_cv_loop:")
for st in range(2):
    A_, B_ = SET[st]; Rr = rd(1-st); n = 0
    for x in range(2):
        for b in range(8-x):
            mf(x+b, A_+4*x, B_+4*b)
            if n < 6: a(Rr[2*n]); a(Rr[2*n+1])
            elif n < 9: a(advk[n-6])
            if st == 1 and n == 12: a("s_add_u32 s3, s3, 1\ns_cmp_lt_u32 s3, 4")
            n += 1
    a("s_waitcnt lgkmcnt(0)")
a("s_cbranch_scc1 L_cv_loop")
a("L_cv_far:")
for f in range(12):
    for h in range(2): a(f"ds_read_b64_tr_b16 {vr(16+4*f+2*h,2)}, v{cW2} offset:{256*f+128*h}")
    if f == 6: a("s_waitcnt lgkmcnt(8)")
for f in range(4):
    for h in range(2): a(f"ds_read_b64_tr_b16 {vr(64+4*f+2*h,2)}, v{cW3} offset:{512*f+128*h}")
a("s_waitcnt lgkmcnt(8)")
for f in range(12):
    for n in range(2, 8):
        i = f + 8 - 2*n
        if 0 <= i < 6: mf(n, 16+4*f, B2+4*i)
a("s_waitcnt lgkmcnt(0)")
for f in range(4):
    for n in range(4+f, 8): mf(n, 64+4*f, B3+4*(n-f-4))
if PROF: a("s_cmp_lt_u32 s4, 4\ns_cbranch_scc1 L_ns8")
stamp(8)
if PROF: a("L_ns8:")
a(f"s_lshl_b32 s14, s{S_CH}, 7\ns_add_u32 s14, s14, {YA}\ns_nop 7")
for n in range(0, 8, 2):
    o = 16 + 2*n
    a(f"v_cvt_pk_bf16_f32 v{o}, v{CA+4*n}, v{CA+4*n+1}\nv_cvt_pk_bf16_f32 v{o+1}, v{CA+4*n+2}, v{CA+4*n+3}")
    a(f"v_cvt_pk_bf16_f32 v{o+2}, v{CA+4*n+4}, v{CA+4*n+5}\nv_cvt_pk_bf16_f32 v{o+3}, v{CA+4*n+6}, v{CA+4*n+7}")
    a(f"v_permlane16_swap_b32 v{o}, v{o+2}\nv_permlane16_swap_b32 v{o+1}, v{o+3}")
    a(f"buffer_store_dwordx4 {vr(o,4)}, v{cST}, {WS}, s14 offen sc1\ns_add_u32 s14, s14, {8*81920}")
a(f"s_mul_i32 s13, s{S_CH}, 820\ns_lshr_b32 s13, s13, 16\ns_lshl_b32 s14, s13, 9\ns_add_u32 s14, s14, {YAC}\nv_lshlrev_b32 v4, 7, v0\nv_mov_b32 v5, 1")
a(f"s_waitcnt vmcnt(0)\ns_mov_b64 exec, 15\nbuffer_atomic_add v5, v4, {WS}, s14 offen sc1\ns_mov_b64 exec, -1")
a("s_setprio 0")
stamp(9)
a(f"s_cmp_eq_u32 {WV}, 7\ns_cbranch_scc1 L_fetch")
endp()
a("L_kexp:")
for q in range(3): a(f"ds_read_b128 {vr(16+4*q,4)}, v13 offset:{SCR+1024*q}")
a(f"s_lshl_b32 s9, s{S_CH}, 12\ns_add_u32 s9, s9, {KD}")
for q in range(3): a(f"s_waitcnt lgkmcnt({2-q})\nbuffer_store_dwordx4 {vr(16+4*q,4)}, v1, {WS}, s9 offen offset:{1024*q} sc1")
a(f"s_sub_u32 s8, s{S_CH}, 256\ns_lshr_b32 s8, s8, 3\ns_lshl_b32 s8, s8, 2\ns_add_u32 s8, s8, {WV}\ns_cmp_ge_u32 s8, 144\ns_cselect_b32 s12, 1, 0\ns_mul_i32 s9, s12, 144\ns_sub_u32 s8, s8, s9")
a("s_mul_i32 s9, s8, 1821\ns_lshr_b32 s9, s9, 16\ns_mul_i32 s10, s9, 36\ns_sub_u32 s8, s8, s10")
a("s_cmp_ge_u32 s8, 20\ns_cselect_b32 s10, 1, 0\ns_mul_i32 s11, s10, 20\ns_sub_u32 s8, s8, s11\ns_lshl_b32 s8, s8, 3\ns_lshl_b32 s9, s9, 1\ns_add_u32 s8, s8, s9\ns_add_u32 s8, s8, s10")
a(f"s_lshl_b32 s8, s8, 7\ns_add_u32 s8, s8, {MBOX}\ns_lshl_b32 s9, 0x1000000, s12\nv_mov_b32 v4, 0\nv_mov_b32 v5, s9")
a(f"s_waitcnt vmcnt(0)\ns_mov_b64 exec, 1\nbuffer_atomic_or v5, v4, {WS}, s8 offen sc1\ns_mov_b64 exec, -1")
stamp(12)
a("s_setprio 0\ns_mov_b32 s35, 1\ns_branch L_g2")
a("L_cv_rk:")
a("s_bitcmp1_b32 s68, 0\ns_cbranch_scc1 L_cv_k1")
spoll(sld(31, S_MB), "s_and_b32 s13, s31, s101", sleep=6)
kloads()
a("L_cv_k1:")
for q in range(3): a(f"s_waitcnt vmcnt({2-q})\nds_write_b128 v{cLIN}, {vr(32+4*q,4)} offset:{SCR+1024*q}")
stamp(4)
a("s_branch L_cv_kpart")

a("L_end:")
if opt("hold", 0):
    a(f"s_cmp_lg_u32 {WV}, 0\ns_cbranch_scc1 L_exit")
    if opt("hwg", -1) >= 0: a(f"s_cmp_lg_u32 s2, {opt('hwg', -1)}\ns_cbranch_scc1 L_exit")
    a("L_hold:")
    a(f"s_memrealtime s[92:93]\ns_waitcnt lgkmcnt(0)\ns_sub_u32 s92, s92, s94\ns_cmp_lt_u32 s92, {opt('hold', 0)*100}\ns_cbranch_scc1 L_hold")
if PROF:
    a(f"s_lshl_b32 s93, s2, 3\ns_add_u32 s93, s93, {WV}\ns_lshl_b32 s93, s93, 6\ns_add_u32 s93, s93, {PROFB}")
    a(f"s_memrealtime s[94:95]\ns_waitcnt lgkmcnt(0)\ns_mov_b32 s87, s94\ns_mov_b32 s72, s{S_SPIN}")
    for i in range(16): a(f"v_mov_b32 v{224+i}, s{72+i}")
    a("v_mov_b32 v255, 0\ns_mov_b64 exec, 1")
    for i in range(4): a(f"buffer_store_dwordx4 {vr(224+4*i,4)}, v255, {WS}, s93 offen offset:{16*i}")
    if opt("dbgmax", 0):
        a(f"v_not_b32 v238, v238\ns_and_b32 s93, {WV}, 3\ns_cmp_lg_u32 s93, 0\ns_cbranch_scc1 L_exit")
        sel0 = {1: 14, 2: 15, 3: 1, 4: 2, 5: 5, 6: 6, 7: 8, 8: 10}
        sel4 = {9: 10, 10: 4, 11: 7, 12: 8, 13: 9}
        a(f"s_cmp_lg_u32 {WV}, 0\ns_cbranch_scc1 L_dbg4")
        for d, i in sel0.items(): a(f"buffer_atomic_umax v{224+i}, v255, {DBG}, 0 offen offset:{4*d} sc1")
        a("s_branch L_exit")
        a("L_dbg4:")
        for d, i in sel4.items(): a(f"buffer_atomic_umax v{224+i}, v255, {DBG}, 0 offen offset:{4*d} sc1")
a("L_exit:")
a("s_endpgm")

hdr = open("cdna_kernels/%s.s.ref" % NAME).read().split("; Override launch")[0]
out = hdr + "; @launch grid=(256,1,1) block=(512,1,1) lds=163840\n"
out += '.amdgcn_target "amdgcn-amd-amdhsa--gfx950"\n.text\n' + a.text()
out += f""".section .rodata,"a"
.p2align 6
.amdhsa_kernel {KN}
  .amdhsa_next_free_vgpr 256
  .amdhsa_next_free_sgpr 102
  .amdhsa_accum_offset 256
  .amdhsa_group_segment_fixed_size 0
  .amdhsa_kernarg_size 136
  .amdhsa_user_sgpr_count 2
  .amdhsa_user_sgpr_kernarg_segment_ptr 1
  .amdhsa_system_sgpr_workgroup_id_x 1
.end_amdhsa_kernel
"""
path = [x for x in sys.argv[1:] if not x.startswith("--")]
open(path[0] if path else "f.s", "w").write(out)
```

```python
import sys, struct, math
sys.path.insert(0, "dev")
from asmlib import Asm, vr, sr

NAME = "parallel_sum__ssm_conv_s4__dense_activation_gelu__prompt"
KN = NAME + "_kernel"
PROF = "--prof" in sys.argv
def opt(name, default):
    for x in sys.argv:
        if x.startswith("--%s=" % name): return int(x.split("=")[1])
    return default
def f32(x): return "0x%08x" % struct.unpack("<I", struct.pack("<f", x))[0]

XNT, KD, YA, W2F = 0x000000, 0x280000, 0x500000, 0x780000
CLR = 0x9A0000
STATS, CSUM, MBOX, LNC, W2C, YAC = CLR, CLR+0x2000, CLR+0x10000, CLR+0x18000, CLR+0x1C000, CLR+0x1A000
CSP = 13824
PROFB, HF = 0x9C0000, 0xA00000
WS_SIZE = 0x1100000
OOB = "0x7f000000"
P = dict(u=16, are=18, aim=20, bre=22, bim=24, cre=26, cim=28, ldt=30, dsk=32, bx=34, w1=36, b1=38, w2=40, b2=42, out=44, dbg=46, ws=48)
S_WS, S_A, S_B, S_DBG = 52, 56, 60, 64
S_WAVE, S_XR, S_XC, S_J, S_SPIN, S_CH = 4, 5, 6, 7, 50, 51
S_MB = 34
WV = f"s{S_WAVE}"
WS = f"s[{S_WS}:{S_WS+3}]"; SA = f"s[{S_A}:{S_A+3}]"; SB = f"s[{S_B}:{S_B+3}]"; DBG = f"s[{S_DBG}:{S_DBG+3}]"
STG = 40960
NST = 3
AREG, BREG0, BREG = 20480, 81920, 20480
B7 = BREG0 + 3*BREG
CNT = B7 + 20096
YAT = B7
UB = 5536
W3B, W5B, W7B, W9B = 9664, 12768, 15872, 17952
SCR = 512
IMG, T2, T3 = SCR, SCR+1136, SCR+2416
STATL = BREG0 + 2*BREG
NT = " nt" if opt("nt", 0) else ""
NT1 = " nt" if opt("nt1", 1) else ""

a = Asm()
G2F = " sc1" if opt("g2sc1", 1) else ""
def srd(d, ptr, size):
    a(f"s_mov_b32 s{d}, s{ptr}\ns_mov_b32 s{d+1}, s{ptr+1}\ns_mov_b32 s{d+2}, {hex(size)}\ns_mov_b32 s{d+3}, 0x20000")
def stamp(idx):
    if PROF: a(f"s_memtime s[92:93]\ns_waitcnt lgkmcnt(0)\ns_sub_u32 s{72+idx}, s92, s90")
def lstamp(o):
    if PROF: a(f"s_memtime s[92:93]\ns_waitcnt lgkmcnt(0)\ns_sub_u32 s92, s92, s90\ns_add_u32 m0, s3, {o}\nv_writelane_b32 v200, s92, m0")
def endp(): a("s_branch L_end")
def cmul(d, x, y, t):
    a(f"v_pk_mul_f32 {vr(t,2)}, {vr(x,2)}, {vr(y,2)} op_sel:[0,0] op_sel_hi:[0,1]")
    a(f"v_pk_fma_f32 {vr(d,2)}, {vr(x,2)}, {vr(y,2)}, {vr(t,2)} op_sel:[1,1,0] op_sel_hi:[1,0,1] neg_lo:[0,1,0]")
def poll(issue, test, sleep=4, issued=True):
    L = a.label("L_poll"); D = a.label("L_pdone")
    if not issued: a(issue)
    a(f"{L}:")
    a("s_waitcnt vmcnt(0)")
    a(test)
    a(f"s_cbranch_scc1 {D}")
    a(f"s_add_u32 s{S_SPIN}, s{S_SPIN}, 1\ns_cmp_gt_u32 s{S_SPIN}, 100000\ns_cbranch_scc1 L_exit")
    a(f"s_sleep {sleep}")
    a(issue)
    a(f"s_branch {L}")
    a(f"{D}:")
def sld(d, off): return f"s_load_dword s{d}, s[{P['ws']}:{P['ws']+1}], s{off} glc"
def spoll(issue, test, sleep=4, issued=False, far=None):
    L = a.label("L_spoll"); D = a.label("L_sdone")
    if not issued: a(issue)
    a(f"{L}:")
    a("s_waitcnt lgkmcnt(0)")
    a(test)
    a(f"s_cbranch_scc1 {D}")
    a(f"s_add_u32 s{S_SPIN}, s{S_SPIN}, 1\ns_cmp_gt_u32 s{S_SPIN}, 100000\ns_cbranch_scc1 L_exit")
    a(f"s_sleep {sleep}")
    if far:
        N = a.label("L_near")
        a(f"{far[0]}\ns_cbranch_scc1 {N}\ns_sleep {far[1]}")
        a(f"{N}:")
    a(issue)
    a(f"s_branch {L}")
    a(f"{D}:")
def arrive_issue(sreg, va, vb):
    a(f"v_mov_b32 v{va}, 0\nv_mov_b32 v{vb}, 1\ns_mov_b64 exec, 1\nbuffer_atomic_add v{vb}, v{va}, {WS}, s{sreg} offen sc0 sc1\ns_mov_b64 exec, -1")
def arrive_check(st, vb, n, then):
    L = a.label("L_arr")
    a(f"s_waitcnt vmcnt(0)\nv_readfirstlane_b32 s{st}, v{vb}\ns_cmp_lg_u32 s{st}, {n-1}\ns_cbranch_scc1 {L}")
    a(then)
    a(f"{L}:")
def push_all(bitreg, off, va, vb, st):
    t = f"v_lshlrev_b32 v{va}, 7, v0\nv_mov_b32 v{vb}, s{bitreg}\ns_mov_b32 s{st}, {MBOX+off}\n"
    for i in range(4): t += f"buffer_atomic_or v{vb}, v{va}, {WS}, s{st} offen sc1\ns_add_u32 s{st}, s{st}, 8192\n"
    return t
def few(mask, ins): return f"s_mov_b64 exec, {mask}\n{ins}\ns_mov_b64 exec, -1"
def clr_issue(v, vo): return few(15, f"buffer_load_dword v{v}, v{vo}, {DBG}, 0 offen sc1")
def clr_test(v): return f"v_cmp_ne_u32 vcc, 0, v{v}\ns_and_b32 vcc_lo, vcc_lo, 15\ns_cmp_eq_u32 vcc_lo, 15"
def nz_test(v): return f"v_cmp_ne_u32 vcc, 0, v{v}\ns_cmp_eq_u64 vcc, -1"
def zero(b, n):
    for i in range(0, n, 2): a(f"v_pk_mov_b32 {vr(b+i,2)}, 0, 0")

cLIN, cIMG2, cT2, cT3, cW2, cW3, cST, cKW1, cKW2, cA0, cA1, cB, cU = 247, 248, 249, 250, 251, 252, 253, 254, 255, 231, 236, 237, 146
AD, AB, A16 = 204, 224, 232
RS = opt("rowsplit", 0)
def tile_rc(rt, cb, tmp):
    if RS: return f"s_and_b32 s{rt}, s2, 7\ns_lshl_b32 s{rt}, s{rt}, 2\ns_lshr_b32 s{cb}, s{S_J}, 3\ns_add_u32 s{rt}, s{rt}, s{cb}\ns_and_b32 s{cb}, s{S_J}, 7"
    return (f"s_lshl_b32 s{rt}, s{S_XR}, 3\ns_lshr_b32 s{cb}, s{S_J}, 2\ns_add_u32 s{rt}, s{rt}, s{cb}\n"
            f"s_lshl_b32 s{cb}, s{S_XC}, 2\ns_and_b32 s{tmp}, s{S_J}, 3\ns_add_u32 s{cb}, s{cb}, s{tmp}")
def conv_setup(t=64):
    r_, g_, h_, f_, x_, y_, z_ = (f"v{t+i}" for i in range(7))
    a(f"v_lshlrev_b32 {x_}, 4, v0\nv_add_u32 v{cLIN}, s69, {x_}\nv_min_u32 {z_}, 5, v0\nv_lshl_add_u32 v{cIMG2}, {z_}, 4, s69")
    a(f"v_lshlrev_b32 {x_}, 6, {z_}\nv_lshrrev_b32 {y_}, 1, {z_}\nv_lshl_add_u32 {x_}, {y_}, 4, {x_}\nv_add_u32 v{cKW2}, s69, {x_}")
    a(f"v_lshlrev_b32 {x_}, 6, v0\nv_lshrrev_b32 {y_}, 1, v0\nv_lshl_add_u32 {x_}, {y_}, 4, {x_}\nv_add_u32 v{cKW1}, s69, {x_}")
    a(f"v_lshrrev_b32 {x_}, 2, v0\nv_mul_u32_u24 {x_}, 40960, {x_}\nv_and_b32 {y_}, 3, v0\nv_lshl_add_u32 v{cU}, {y_}, 4, {x_}")
    a(f"v_and_b32 {r_}, 15, v0\nv_lshrrev_b32 {g_}, 4, v0\nv_and_b32 {h_}, 1, {g_}\nv_lshrrev_b32 {f_}, 1, {g_}")
    a(f"v_sub_u32 {x_}, 15, {r_}\nv_and_b32 {y_}, 1, {x_}\nv_sub_u32 {x_}, {x_}, {y_}\nv_lshlrev_b32 {x_}, 1, {x_}")
    a(f"v_lshl_add_u32 {z_}, {g_}, 1, {y_}\nv_mul_u32_u24 {z_}, 160, {z_}\nv_add_u32 {z_}, {z_}, {x_}\ns_add_u32 s10, s69, {T2}\nv_add_u32 v{cT2}, s10, {z_}")
    a(f"v_lshl_add_u32 {z_}, {h_}, 1, {y_}\nv_mul_u32_u24 {z_}, 160, {z_}\nv_add_u32 {z_}, {z_}, {x_}\nv_lshl_add_u32 {z_}, {f_}, 4, {z_}\ns_add_u32 s10, s69, {T3}\nv_add_u32 v{cT3}, s10, {z_}")
    a(f"v_mul_u32_u24 {x_}, {W5B-W3B}, {h_}\nv_lshlrev_b32 {y_}, 3, {g_}\nv_sub_u32 {x_}, {x_}, {y_}\nv_lshl_add_u32 {x_}, {r_}, 3, {x_}\ns_add_u32 s10, s69, {W3B-8}\nv_add_u32 v{cW2}, s10, {x_}")
    a(f"v_mul_u32_u24 {x_}, {W9B-W7B-16}, {h_}\nv_lshl_add_u32 {x_}, {f_}, 8, {x_}\nv_lshl_add_u32 {x_}, {r_}, 3, {x_}\ns_add_u32 s10, s69, {W7B-16}\nv_add_u32 v{cW3}, s10, {x_}")
    a(f"v_lshlrev_b32 {x_}, 2, {h_}\nv_lshrrev_b32 {z_}, 2, {r_}\nv_add_u32 {x_}, {x_}, {z_}\nv_mul_u32_u24 {x_}, 81920, {x_}\nv_lshl_add_u32 {x_}, {f_}, 6, {x_}\nv_and_b32 {z_}, 3, {r_}\nv_lshl_add_u32 v{cST}, {z_}, 4, {x_}")
    a(f"s_add_u32 s10, s69, {UB-32}\nv_lshlrev_b32 {x_}, 5, {r_}\nv_lshl_add_u32 {x_}, {g_}, 4, {x_}\nv_add_u32 v{cB}, s10, {x_}")
    a(f"v_sub_u32 {z_}, {y_}, {r_}\nv_add_u32 {z_}, 15, {z_}\nv_sub_u32 {y_}, {r_}, {y_}")
    a(f"v_lshrrev_b32 {x_}, 4, {z_}\nv_lshlrev_b32 {x_}, 4, {x_}\nv_lshl_add_u32 {x_}, {z_}, 3, {x_}\nv_add_u32 v{cA0}, s69, {x_}")
    a(f"v_add_u32 {z_}, 4, {z_}\nv_lshrrev_b32 {x_}, 4, {z_}\nv_lshlrev_b32 {x_}, 4, {x_}\nv_lshl_add_u32 {x_}, {z_}, 3, {x_}\nv_add_u32 v{cA1}, s69, {x_}")
    a(f"v_mov_b32 {r_}, 0xffff\nv_mov_b32 {g_}, 0xffff0000\nv_mov_b32 {h_}, -1")
    for k in range(4):
        a(f"v_cmp_eq_u32 vcc, {2*k-16}, {y_}\nv_cndmask_b32 v{AD+k}, 0, {r_}, vcc\nv_cmp_eq_u32 vcc, {2*k+1-16}, {y_}\nv_cndmask_b32 v{AD+k}, v{AD+k}, {g_}, vcc")
        a(f"v_cmp_eq_u32 vcc, {2*k-12}, {y_}\nv_cndmask_b32 v{AB+k}, 0, {h_}, vcc\nv_cmp_eq_u32 vcc, {2*k-13}, {y_}\nv_cndmask_b32 v{AB+k}, v{AB+k}, {r_}, vcc\nv_cmp_eq_u32 vcc, {2*k-11}, {y_}\nv_cndmask_b32 v{AB+k}, v{AB+k}, {g_}, vcc")
def uloads():
    a(f"s_lshl_b32 s10, s{S_CH}, 6")
    for q in range(4): a(f"buffer_load_dwordx4 {vr(148+4*q,4)}, v{cU}, {WS}, s10 offen sc1\ns_add_u32 s10, s10, 655360")
def kloads():
    a(f"s_lshl_b32 s10, s{S_CH}, 12\ns_add_u32 s10, s10, {KD}")
    for q in range(3): a(f"buffer_load_dwordx4 {vr(32+4*q,4)}, v1, {WS}, s10 offen offset:{1024*q} sc1")
lnc_addr = f"s_mul_i32 s13, s{S_CH}, 410\ns_lshr_b32 s13, s13, 16\ns_lshl_b32 s13, s13, 4\ns_and_b32 s100, s2, 15\ns_add_u32 s100, s100, s13\ns_lshl_b32 s100, s100, 7\ns_add_u32 s100, s100, {LNC}"

a.raw(f".globl {KN}\n.p2align 8\n.type {KN},@function")
a(f"{KN}:")
a("s_cmp_ge_u32 s2, 256\ns_cbranch_scc1 L_exit")
a("s_load_dwordx16 s[16:31], s[0:1], 0\ns_load_dwordx16 s[32:47], s[0:1], 64\ns_load_dwordx2 s[48:49], s[0:1], 128")
if opt("cpf", 1):
    a(f"s_cmp_ge_u32 s2, {opt('cpfn', 8)}\ns_cbranch_scc1 L_nocpf")
    a("s_getpc_b64 s[12:13]")
    a("L_cpfb:")
    a("v_lshlrev_b32 v20, 7, v0\nv_min_u32 v20, L_exit-L_cpfb, v20\nv_mov_b32 v21, s13\nv_add_co_u32 v20, vcc, s12, v20\nv_addc_co_u32 v21, vcc, 0, v21, vcc")
    a("global_load_dword v22, v[20:21], off")
    a("L_nocpf:")
if PROF:
    a("s_memtime s[90:91]\ns_memrealtime s[94:95]")
    for i in range(16): a(f"s_mov_b32 s{72+i}, 0")
a("v_lshrrev_b32 v1, 6, v0\nv_and_b32 v0, 63, v0")
a(f"v_readfirstlane_b32 {WV}, v1")
a(f"s_bfe_u32 s{S_XR}, s2, 0x20001\ns_and_b32 s{S_XC}, s2, 1\ns_lshr_b32 s{S_J}, s2, 3\ns_mov_b32 s{S_SPIN}, 0")
a(f"s_lshl_b32 s8, s{S_XC}, 2\ns_sub_u32 s8, 20, s8")
a(f"s_cmp_eq_u32 s{S_XC}, 0\ns_cselect_b32 s9, 52, 64\ns_mul_i32 s9, s9, s{S_J}\ns_lshr_b32 s9, s9, 8")
a(f"s_sub_u32 s11, 5, s{S_XC}\ns_mul_i32 s11, s11, s9\ns_sub_u32 s10, s{S_J}, s11\ns_mul_i32 s11, s{S_XC}, 5\ns_add_u32 s10, s10, s11")
a(f"s_lshl_b32 s11, s{S_XR}, 2\ns_add_u32 s9, s9, s11")
a("v_lshrrev_b32 v4, 3, v0\nv_mul_u32_u24 v4, 1280, v4")
a("v_and_b32 v5, 7, v0\nv_lshrrev_b32 v6, 4, v0\nv_xor_b32 v5, v5, v6\nv_lshl_add_u32 v2, v5, 4, v4")
a("v_xor_b32 v5, 4, v5\nv_lshl_add_u32 v3, v5, 4, v4\nv_add_u32 v3, 10240, v3\nv_add_u32 v4, 20480, v2\nv_add_u32 v5, 20480, v3")
for i in range(3):
    a(f"v_add_u32 v6, {64*i}, v0\nv_mul_u32_u24 v7, 2731, v6\nv_lshrrev_b32 v7, 16, v7\nv_lshlrev_b32 v14, 1, v7\nv_and_b32 v14, 4, v14\nv_xor_b32 v6, v6, v14")
    a(f"v_mul_u32_u24 v7, 3072, v7\nv_lshl_add_u32 v{8+i}, v6, 4, v7\nv_add_u32 v{11+i}, 27648, v{8+i}")
a(f"s_and_b32 s99, {WV}, 3")
a("s_lshl_b32 s11, s9, 7\ns_lshl_b32 s12, s99, 5\ns_add_u32 s11, s11, s12\ns_mul_i32 s11, s11, 1280")
a("s_mul_i32 s12, s99, 55296\ns_mul_i32 s13, s10, 384\ns_add_u32 s12, s12, s13")
a("s_lshl_b32 s13, s99, 12\ns_mul_i32 s14, s99, 6144\ns_add_u32 s14, s14, 16384\ns_mov_b32 s3, 0")
a(f"s_and_b32 s15, s9, 3\ns_mul_i32 s15, s15, 5\ns_add_u32 s15, s15, 1\ns_lshr_b32 s15, s15, 1\ns_lshl_b32 s68, s10, 1\ns_add_u32 s15, s15, s68\ns_add_u32 s15, s15, s{S_XR}")
a("s_mul_i32 s68, s15, 26\ns_lshr_b32 s68, s68, 8\ns_mul_i32 s68, s68, 10\ns_sub_u32 s15, s15, s68")
a("s_lshl_b32 s68, s15, 7\ns_add_u32 s11, s11, s68\ns_mul_i32 s68, s15, 221184\ns_add_u32 s12, s12, s68\ns_mov_b32 s69, 0")
for d, size in ((S_WS, WS_SIZE), (S_A, 2621440), (S_B, 2211840), (S_DBG, 256)): a(f"s_mov_b32 s{d+2}, {hex(size)}\ns_mov_b32 s{d+3}, 0x20000")
a("v_mov_b32 v146, 0\nv_mov_b32 v253, 0\ns_mov_b32 s101, 0")
a("s_waitcnt lgkmcnt(0)")
for d, nm in ((S_A, 'u'), (S_B, 'w1'), (S_WS, 'ws'), (S_DBG, 'dbg')): a(f"s_mov_b64 s[{d}:{d+1}], s[{P[nm]}:{P[nm]+1}]")
a(f"s_lshl_b32 s{S_MB}, s2, 7\ns_add_u32 s{S_MB}, s{S_MB}, {MBOX}")
if PROF:
    a("s_mov_b32 s86, s94"); stamp(13)
if opt("g2only", 0):
    a(f"v_mov_b32 v174, 0\ns_mov_b32 s35, 1\ns_cmp_lt_u32 {WV}, 4\ns_cbranch_scc1 L_g2\ns_branch L_end")
a(f"s_cmp_ge_u32 s{S_J}, s8\ns_cbranch_scc1 L_aux")
a(f"s_cmp_lt_u32 {WV}, 4\ns_cbranch_scc1 L_comp")

a("s_mov_b32 s8, s99")
stamp(1)
S_C = 96
a("L_ld_loop:")
a("s_cmp_lt_u32 s3, 2\ns_cbranch_scc1 L_ld_nowait\ns_cmp_eq_u32 s3, 2\ns_cbranch_scc1 L_ld_setup")
a("L_ld_wait:")
a("s_waitcnt vmcnt(10)")
lstamp(0)
a("s_barrier")
lstamp(16)
a("L_ld_nowait:")
a("s_add_u32 s70, s69, s13\ns_add_u32 s71, s69, s14")
for q in range(4): a(f"s_add_u32 m0, s70, {1024*q}\nbuffer_load_dwordx4 v{2+q}, {SA}, s11 offen{NT} lds")
for i in range(6): a(f"s_add_u32 m0, s71, {1024*i}\nbuffer_load_dwordx4 v{8+i}, {SB}, s12 offen{NT} lds")
a("s_add_u32 s11, s11, 128\ns_add_u32 s12, s12, 221184\ns_add_u32 s15, s15, 1\ns_cmp_lt_u32 s15, 10\ns_cbranch_scc1 L_ld_nowrap")
a("s_sub_u32 s11, s11, 1280\ns_sub_u32 s12, s12, 2211840\ns_mov_b32 s15, 0")
a("L_ld_nowrap:")
a(f"s_add_u32 s69, s69, {STG}\ns_cmp_eq_u32 s69, {NST*STG}\ns_cselect_b32 s69, 0, s69")
a(f"s_cmp_lg_u32 s3, 7\ns_cbranch_scc1 L_ld_n5\ns_load_dwordx4 s[28:31], s[{P['dbg']}:{P['dbg']+1}], 0")
a("L_ld_n5:")
a("s_add_u32 s3, s3, 1\ns_cmp_lt_u32 s3, 10\ns_cbranch_scc1 L_ld_loop")
s_issue = f"buffer_load_dwordx4 v[16:19], v1, {WS}, s18 offen sc1\nbuffer_load_dwordx4 v[20:23], v6, {WS}, s18 offen offset:1024 sc1\nbuffer_load_dword v24, v7, {WS}, s20 offen sc1"
wc_issue = sld(26, 25)
wc_test = "s_cmp_lg_u32 s26, 0"
a("s_waitcnt lgkmcnt(0)\ns_and_b32 s28, s28, s29\ns_and_b32 s30, s30, s31\ns_and_b32 s24, s28, s30")
a(s_issue)
for w in (13, 3):
    if w == 3:
        a("s_mov_b32 s31, 0\ns_mov_b32 s33, 0\ns_cmp_eq_u32 s101, 0\ns_cbranch_scc1 L_ld_ncv")
        a(sld(31, S_MB) + "\n" + sld(33, 100))
        a("L_ld_ncv:")
    a(f"s_waitcnt vmcnt({w})")
    lstamp(0)
    a("s_barrier")
    lstamp(16)
    if PROF: a("s_add_u32 s3, s3, 1")
a("s_cmp_lg_u32 s24, 0\ns_cbranch_scc1 L_ld_clr")
poll(clr_issue(15, 14), clr_test(15), sleep=8, issued=False)
a(s_issue)
a("s_waitcnt lgkmcnt(0)\ns_mov_b32 s31, 0\ns_mov_b32 s33, 0")
a("L_ld_clr:")
s_test = "v_and_b32 v4, v17, v19\nv_and_b32 v5, v21, v23\nv_and_b32 v4, v4, v5\nv_and_b32 v4, 1, v4\nv_min_u32 v4, v4, v24\n" + nz_test(4)
poll(s_issue, s_test, sleep=8)
a("ds_write_b128 v25, v[16:19]\nds_write_b128 v26, v[20:23] offset:1024\nds_write_b32 v27, v24")
a("s_waitcnt lgkmcnt(0)\ns_mov_b32 s68, 0\ns_and_b32 s13, s31, s101\ns_cbranch_scc0 L_ld_nk0")
kloads()
a("s_mov_b32 s68, 1")
a("L_ld_nk0:")
a("s_cmp_ge_u32 s33, 64\ns_cbranch_scc0 L_ld_nk")
uloads()
a("s_or_b32 s68, s68, 2")
a("L_ld_nk:")
a("s_barrier")
lstamp(16)
if PROF:
    a(f"s_lshl_b32 s93, s2, 9\ns_lshl_b32 s92, s8, 7\ns_add_u32 s93, s93, s92\ns_add_u32 s93, s93, {PROFB+0x20000}\nv_lshlrev_b32 v201, 2, v0\ns_mov_b32 exec_hi, 0\nbuffer_store_dword v200, v201, {WS}, s93 offen\ns_mov_b32 exec_hi, -1")
stamp(2)
a(f"s_cmp_eq_u32 {WV}, 7\ns_cbranch_scc1 L_fetch")
a(f"s_cmp_eq_u32 {WV}, 6\ns_cbranch_scc1 L_park")
a(f"s_cmp_eq_u32 s101, 0\ns_cbranch_scc1 L_end\ns_mul_i32 s69, {WV}, {AREG}\ns_branch L_cv_upart")
wc_prep = f"s_and_b32 s25, s2, 31\ns_lshl_b32 s25, s25, 7\ns_add_u32 s25, s25, {W2C+1024}"
a("L_ld_setup:")
a("v_lshlrev_b32 v1, 4, v0\nv_and_b32 v7, 31, v0\nv_lshlrev_b32 v6, 4, v7\nv_lshlrev_b32 v7, 2, v7\nv_and_b32 v14, 3, v0\nv_lshlrev_b32 v14, 2, v14")
a(f"s_lshl_b32 s20, s9, 9\ns_lshl_b32 s23, s8, 7\ns_add_u32 s20, s20, s23\ns_add_u32 s20, s20, {STATS}\ns_add_u32 s23, s23, {STATL+6144}\nv_add_u32 v27, s23, v7")
a(f"s_mul_i32 s18, s10, 1536\ns_mul_i32 s19, s8, {CSP}\ns_add_u32 s18, s18, s19\ns_add_u32 s18, s18, {CSUM}")
a(f"s_mul_i32 s23, s8, 1536\ns_add_u32 s23, s23, {STATL}\nv_add_u32 v25, s23, v1\nv_add_u32 v26, s23, v6\nv_mov_b32 v30, {CNT}")
zero(32, 4)
a("ds_write_b128 v30, v[32:35]")
a(wc_prep)
a(f"s_mul_i32 s23, s{S_XR}, 36\ns_mul_i32 s22, s{S_XC}, 20\ns_add_u32 s23, s23, s22\ns_add_u32 s23, s23, s{S_J}\ns_mul_i32 s22, s8, 144\ns_add_u32 s23, s23, s22\ns_cmp_ge_u32 s23, 192\ns_cbranch_scc1 L_ld_wait")
a(f"s_lshr_b32 s22, s23, 2\ns_lshl_b32 s22, s22, 3\ns_and_b32 s23, s23, 3\ns_add_u32 s{S_CH}, s23, s22\ns_add_u32 s{S_CH}, s{S_CH}, 256\ns_lshl_b32 s101, 0x1000000, s8")
a(f"s_mov_b32 s96, s69\ns_mov_b32 s97, s10\ns_mov_b32 s98, s13\ns_mul_i32 s69, {WV}, {AREG}")
conv_setup()
a(lnc_addr)
a(f"s_lshl_b32 s22, s{S_CH}, 1\ns_and_b32 s23, s22, 2\ns_sub_u32 s22, s22, s23\ns_load_dword s99, s[{P['dsk']}:{P['dsk']+1}], s22")
a("s_lshl_b32 s23, s23, 3\ns_waitcnt lgkmcnt(0)\ns_lshr_b32 s99, s99, s23\ns_and_b32 s99, s99, 0xffff\nv_mov_b32 v147, s99")
a("s_mov_b32 s69, s96\ns_mov_b32 s10, s97\ns_mov_b32 s13, s98\ns_branch L_ld_wait")

G2H = [16, 32, 48, 224]; G2W = [164, 184, 204, 144]; AC2 = 64
K0 = [0, 13, 26, 40, 54]
def g2_setup():
    a(tile_rc(30, 31, 29))
    a(f"s_mul_i32 s28, {WV}, 7168\ns_max_u32 s28, s28, 1024\ns_sub_u32 s28, s28, 1024")
    a(f"s_mul_i32 s27, s30, {4*55296}\ns_add_u32 s27, s27, s28\ns_add_u32 s27, s27, {HF}")
    for i in range(4):
        a(f"s_add_u32 s29, {WV}, {i}\ns_and_b32 s29, s29, 3\ns_mul_i32 s29, s29, 55296\ns_add_u32 s{18+i}, s27, s29")
    a(f"s_mul_i32 s22, s31, {5*55296}\ns_add_u32 s22, s22, s28\ns_add_u32 s22, s22, {W2F}")
    for i in range(1, 5): a(f"s_add_u32 s{22+i}, s22, {55296*i}")
    a(f"s_lshl_b32 s27, s30, 6\ns_lshl_b32 s29, {WV}, 4\ns_add_u32 s27, s27, s29\ns_mul_i32 s27, s27, 1280\ns_mul_i32 s29, s31, 160\ns_add_u32 s27, s27, s29")
    masks = []
    for w in range(4):
        c0, c1 = max(0, 7*w-1)//3, (7*w+5)//3
        m = ((1 << (c1-c0+1)) - 1) << c0
        masks.append(m | (m << 11))
    a(f"s_mov_b32 s28, {hex(masks[0])}\ns_cmp_eq_u32 {WV}, 1\ns_cselect_b32 s28, {hex(masks[1])}, s28\ns_cmp_eq_u32 {WV}, 2\ns_cselect_b32 s28, {hex(masks[2])}, s28\ns_cmp_eq_u32 {WV}, 3\ns_cselect_b32 s28, {hex(masks[3])}, s28")
    a(f"v_lshlrev_b32 v252, 4, v0\ns_cmp_eq_u32 {WV}, 0\ns_cselect_b32 s30, {OOB}, 0\nv_add_u32 v253, s30, v252")
    a("v_lshrrev_b32 v255, 4, v0\nv_lshlrev_b32 v255, 3, v255\nv_and_b32 v254, 15, v0\nv_mul_u32_u24 v254, 160, v254\nv_add_u32 v254, v254, v255")
    srd(S_B, P['b2'], 1280)
def ldh(k, o=0, v=252): return [f"buffer_load_dwordx4 {vr(G2H[k]+4*i,4)}, v{v}, {WS}, s{18+i} offen offset:{o}{G2F}" for i in range(4)]
def ldw(k, o=0, v=252): return [f"buffer_load_dwordx4 {vr(G2W[k]+4*i,4)}, v{v}, {WS}, s{22+i} offen offset:{o}{G2F}" for i in range(5)]
OUTV = (8, 9, 13)
def xb_loads():
    for q in range(3):
        a(f"v_add_u32 v10, {64*q}, v0\nv_mul_u32_u24 v11, 6554, v10\nv_lshrrev_b32 v11, 16, v11\nv_mul_u32_u24 v11, 1120, v11\nv_lshl_add_u32 v{OUTV[q]}, v10, 4, v11")
    a(f"v_cmp_gt_u32 vcc, 32, v0\nv_mov_b32 v10, {OOB}\nv_cndmask_b32 v13, v10, v13, vcc\ns_mul_i32 s10, {WV}, {AREG}")
    for q in range(3): a(f"s_add_u32 m0, s10, {15360+1024*q}\nbuffer_load_dwordx4 v{OUTV[q]}, {SA}, s27 offen lds")
    a(f"s_add_u32 m0, s10, {18432}\ns_mov_b64 exec, 0x3ff\nbuffer_load_dwordx4 v252, {SB}, s29 offen lds\ns_mov_b64 exec, -1")
    a("v_add_u32 v2, s10, v254\nv_add_u32 v3, s10, v255")
off = lambda t: 1024*t if t < 7 else 27648 + 1024*(t-7)
w_pre = ldw(0, 0) + ldw(1, 1024) + ldw(2, 2048) + ldw(3, 3072)

a("L_comp:")
ACC = 72; BUF = [16, 44]; SF = 172
g2_setup()
a("v_and_b32 v13, 31, v0\nv_lshrrev_b32 v14, 5, v0")
a(f"s_lshl_b32 s8, {WV}, 12\nv_lshlrev_b32 v15, 7, v13\nv_add_u32 v15, s8, v15")
a("v_bfe_u32 v7, v0, 1, 3\nv_xor_b32 v7, v7, v14")
for ks in range(4): a(f"v_xor_b32 v1, {2*ks}, v7\nv_lshl_add_u32 v{2+ks}, v1, 4, v15")
a("v_bfe_u32 v1, v0, 2, 2\nv_lshl_add_u32 v1, v14, 3, v1\nv_mul_u32_u24 v1, 384, v1")
a("v_bfe_u32 v7, v0, 4, 1\nv_lshl_add_u32 v1, v7, 5, v1\nv_and_b32 v7, 3, v0\nv_lshl_add_u32 v1, v7, 3, v1\nv_add_u32 v1, 16384, v1")
a("v_bfe_u32 v7, v0, 3, 1\nv_lshlrev_b32 v7, 6, v7\nv_add_u32 v6, v1, v7\nv_sub_u32 v196, v1, v7\nv_mov_b32 v197, v196")
for i in range(5): a(f"v_mov_b32 v{8+i}, v{2+i}")
zero(ACC, 96)
a(f"s_lshl_b32 s11, {WV}, 7\ns_add_u32 s11, s11, {STATL+6144}\nv_lshl_add_u32 v168, v13, 2, s11\nv_mul_u32_u24 v169, 3072, v14\nv_lshl_add_u32 v169, v13, 3, v169\nv_add_u32 v169, {STATL}, v169")
a("v_bfe_u32 v1, v0, 4, 1\nv_mul_u32_u24 v1, 55296, v1\nv_lshl_add_u32 v1, v14, 8, v1\nv_and_b32 v7, 15, v0\nv_lshl_add_u32 v1, v7, 4, v1")
a(f"s_lshl_b32 s8, s9, 3\ns_lshl_b32 s11, {WV}, 1\ns_add_u32 s8, s8, s11\ns_mul_i32 s8, s8, 54\ns_mul_i32 s11, s10, 3\ns_add_u32 s8, s8, s11\ns_lshl_b32 s8, s8, 10\ns_add_u32 s8, s8, {HF}")
a(f"s_lshl_b32 s12, s9, 1\ns_lshr_b32 s11, {WV}, 1\ns_add_u32 s12, s12, s11")
if RS: a(f"s_and_b32 s11, s12, 3\ns_lshl_b32 s11, s11, 6\ns_lshr_b32 s12, s12, 2\ns_add_u32 s12, s12, s11\ns_lshl_b32 s12, s12, 7\ns_add_u32 s12, s12, {MBOX}")
else: a(f"s_and_b32 s11, s12, 7\ns_lshl_b32 s11, s11, 5\ns_lshr_b32 s12, s12, 3\ns_lshl_b32 s12, s12, 1\ns_add_u32 s12, s12, s11\ns_lshl_b32 s12, s12, 7\ns_add_u32 s12, s12, {MBOX}")
a(f"s_and_b32 s11, {WV}, 1\ns_mul_i32 s11, s11, 11\ns_add_u32 s11, s11, s10\ns_lshl_b32 s11, 1, s11")
if RS: a("v_lshlrev_b32 v15, 10, v0\nv_mov_b32 v14, s11")
else: a("v_and_b32 v15, 3, v0\nv_lshlrev_b32 v15, 10, v15\nv_bfe_u32 v7, v0, 2, 1\nv_lshl_add_u32 v15, v7, 7, v15\nv_mov_b32 v14, s11")
a(wc_prep.replace("s25", "s69"))
a("s_mov_b32 s15, 0\ns_mov_b32 s3, 0")
def reads(ks, b):
    r = [f"ds_read_b128 {vr(b,4)}, v{8+ks}"]
    for ft in range(6):
        for s in range(2):
            r.append(f"ds_read_b64_tr_b16 {vr(b+4+4*ft+2*s,2)}, v{197 if ft & 1 else 12} offset:{ks*6144 + s*1536 + ft*64}")
    return r
def step(cur, nks, nb, last, first_wait=True):
    R = reads(nks, nb)
    waits2 = [8, 0, 10, 0, 11, 0]
    waits = [10, 11, 12, 13, 13, 13]; parts = [R[0:3], R[3:6], R[6:9], R[9:11], R[11:13], [last]]
    for ft in range(6):
        if first_wait and (ft % 2 == 0 or not opt("fw", 1)): a(f"s_waitcnt lgkmcnt({(waits2 if opt('fw', 1) else waits)[ft]})")
        a(f"v_mfma_f32_32x32x16_bf16 {vr(ACC+16*ft,16)}, {vr(cur+4+4*ft,4)}, {vr(cur,4)}, {vr(ACC+16*ft,16)}")
        for r in parts[ft]: a(r)
a("s_barrier")
stamp(1)
for r in reads(0, BUF[0]): a(r)
a("L_c_loop:")
step(BUF[0], 1, BUF[1], f"s_add_u32 s15, s15, {STG}\ns_cmp_eq_u32 s15, {NST*STG}\ns_cselect_b32 s15, 0, s15\nv_add_u32 v8, s15, v2")
step(BUF[1], 2, BUF[0], "v_add_u32 v9, s15, v3\nv_add_u32 v10, s15, v4")
step(BUF[0], 3, BUF[1], "v_add_u32 v12, s15, v6\nv_add_u32 v197, s15, v196\ns_waitcnt lgkmcnt(0)\ns_barrier")
step(BUF[1], 0, BUF[0], "v_add_u32 v11, s15, v5\ns_add_u32 s3, s3, 1\ns_cmp_lt_u32 s3, 10\ns_cbranch_scc1 L_c_loop", first_wait=False)
stamp(2)
a(f"s_setprio {opt('eprio', 3)}\nds_read_b32 v170, v168")
for ft in range(6):
    for p in range(2): a(f"ds_read_b64 {vr(SF+4*ft+2*p,2)}, v169 offset:{1536*p+256*ft}")
a("s_waitcnt lgkmcnt(12)")
a("v_xor_b32 v17, 0x8000, v170\nv_and_b32 v19, 0xffff, v17\nv_lshl_or_b32 v16, v19, 16, v19\nv_mov_b32 v18, v16")
a("v_cmp_gt_u32 vcc, 32, v0\nv_cndmask_b32 v17, v19, v17, vcc")
a("v_and_b32 v10, 0xffff0000, v170\nv_rcp_f32 v7, v10\nv_mov_b32 v11, v10\ns_waitcnt lgkmcnt(0)")
for ft in range(6):
    a(f"v_mfma_f32_32x32x16_bf16 {vr(ACC+16*ft,16)}, {vr(SF+4*ft,4)}, v[16:19], {vr(ACC+16*ft,16)}")
    if ft == 0:
        k1c = -2.0 * math.log2(math.e) * math.sqrt(2.0/math.pi); k2c = k1c * 0.044715
        a(f"v_mul_f32 v8, {f32(k1c)}, v7\nv_mul_f32 v12, v7, v7\nv_mul_f32 v12, v12, v7\nv_mul_f32 v12, {f32(k2c)}, v12\nv_mov_b32 v9, v8\nv_mov_b32 v13, v12")
def stA(h):
    A0 = ACC + 8*h; T = 16 + 8*(h % 3)
    return ([f"v_pk_mul_f32 {vr(T+2*p,2)}, {vr(A0+2*p,2)}, {vr(A0+2*p,2)}" for p in range(4)] +
            [f"v_pk_fma_f32 {vr(T+2*p,2)}, {vr(T+2*p,2)}, v[12:13], v[8:9]" for p in range(4)] +
            [f"v_pk_mul_f32 {vr(T+2*p,2)}, {vr(T+2*p,2)}, {vr(A0+2*p,2)}" for p in range(4)])
def stE(h):
    T = 16 + 8*(h % 3); return [f"v_exp_f32 v{T+e}, v{T+e}" for e in range(8)]
def stB(h):
    T = 16 + 8*(h % 3); return [f"v_pk_fma_f32 {vr(T+2*p,2)}, {vr(T+2*p,2)}, v[10:11], v[10:11]" for p in range(4)]
def stR(h):
    T = 16 + 8*(h % 3); return [f"v_rcp_f32 v{T+e}, v{T+e}" for e in range(8)]
def stC(h):
    A0 = ACC + 8*h; T = 16 + 8*(h % 3); pk = 48 + 4*(h % 4)
    return ([f"v_pk_mul_f32 {vr(T+2*p,2)}, {vr(T+2*p,2)}, {vr(A0+2*p,2)}" for p in range(4)] +
            [f"v_cvt_pk_bf16_f32 v{pk+p}, v{T+2*p}, v{T+2*p+1}" for p in range(4)] +
            [f"buffer_store_dwordx4 {vr(pk,4)}, v1, {WS}, s8 offen offset:{(h//2 % 3)*1024 + (h%2)*512} sc1"])
def mix(tr, nt):
    i = 0
    for k, x in enumerate(tr):
        a(x)
        n = (len(nt) * (k+1)) // len(tr)
        while i < n: a(nt[i]); i += 1
for x in stA(0): a(x)
for h in range(12):
    mix(stE(h), (stC(h-1) if h else []))
    if h == 6: a("s_add_u32 s8, s8, 27648")
    if h == opt("eflag", 10): a(f"s_waitcnt vmcnt({h-6})\ns_mov_b64 exec, 0xff\nbuffer_atomic_or v14, v15, {WS}, s12 offen sc1\ns_mov_b64 exec, -1\n" + sld(68, 69))
    for x in stB(h): a(x)
    mix(stR(h), (stA(h+1) if h < 11 else []))
for x in stC(11): a(x)
stamp(4)
def acc_init(z=True):
    for dt in range(5): a(f"ds_read_b64 {vr(224+2*dt,2)}, v2 offset:{15360+32*dt}\nds_read_b64 {vr(234+2*dt,2)}, v3 offset:{18432+32*dt}")
    a("s_waitcnt lgkmcnt(0)")
    for dt in range(5):
        for h in range(2):
            a(f"v_lshlrev_b32 v{AC2+4*dt+2*h}, 16, v{224+2*dt+h}\nv_and_b32 v{AC2+4*dt+2*h+1}, 0xffff0000, v{224+2*dt+h}")
            a(f"v_lshlrev_b32 v10, 16, v{234+2*dt+h}\nv_and_b32 v11, 0xffff0000, v{234+2*dt+h}\nv_add_f32 v{AC2+4*dt+2*h}, v{AC2+4*dt+2*h}, v10\nv_add_f32 v{AC2+4*dt+2*h+1}, v{AC2+4*dt+2*h+1}, v11")
a(f"v_mov_b32 v2, {CNT+8}\nv_mov_b32 v3, 1\nds_write_b32 v2, v3")
xb_loads()
a("s_waitcnt lgkmcnt(0)\ns_cmp_lg_u32 s68, 0\ns_cbranch_scc1 L_c_wpre\ns_waitcnt vmcnt(0)\ns_branch L_c_push")
a("L_c_wpre:")
for l in w_pre: a(l)
a("L_c_push:")
a(f"s_waitcnt vmcnt(20)\ns_mov_b64 exec, 0xff\nbuffer_atomic_or v14, v15, {WS}, s12 offen offset:64 sc1\ns_mov_b64 exec, -1")
a("s_setprio 0\ns_mov_b32 s35, 0")
stamp(5)
acc_init(False)
a("s_cmp_lg_u32 s68, 0\ns_cbranch_scc1 L_g2go")
a("s_branch L_g2w")

a("L_g2:")
g2_setup()
xb_loads()
a("s_waitcnt vmcnt(0)")
acc_init()
a("L_g2w:")
if opt("p1only", 0): endp()
a(wc_prep.replace("s25", "s8"))
if not opt("g2only", 0): spoll(sld(9, 8), "s_cmp_lg_u32 s9, 0", sleep=16)
PK = (8, 10, 12)
a(f"s_cmp_eq_u32 s35, 0\ns_cbranch_scc1 L_g_nopark\ns_mul_i32 s10, {WV}, {AREG}")
for p in range(3):
    for i in range(5): a(f"s_add_u32 m0, s10, {5120*p+1024*i}\ns_add_u32 s13, s{22+i}, {off(PK[p])}\nbuffer_load_dwordx4 v252, {WS}, s13 offen{G2F} lds")
    if opt("thr", 0): a(f"s_waitcnt vmcnt({opt('thr', 0)})")
a("L_g_nopark:")
for n_, l in enumerate(w_pre):
    a(l)
    if opt("thr", 0) and n_ % 5 == 4 and n_ < 19: a(f"s_waitcnt vmcnt({opt('thr', 0)})")
if opt("touch2", 0):
    nt2 = 6 if RS else 3
    a("s_cmp_eq_u32 s35, 0\ns_cbranch_scc1 L_g2go")
    a(f"s_lshl_b32 s8, s{S_XC}, 2\ns_add_u32 s8, s8, s{S_J}\ns_sub_u32 s8, s8, 20\ns_lshl_b32 s8, s8, 2\ns_add_u32 s8, s8, {WV}\ns_cmp_ge_u32 s8, 48\ns_cbranch_scc1 L_g2go")
    if RS: a(f"s_and_b32 s9, s2, 7\ns_mul_i32 s9, s9, 6\ns_add_u32 s8, s8, s9\ns_cmp_ge_u32 s8, 48\ns_cselect_b32 s9, 48, 0\ns_sub_u32 s8, s8, s9\ns_mul_i32 s8, s8, 46080\ns_add_u32 s8, s8, {W2F}")
    else: a(f"s_mul_i32 s9, s{S_XR}, 12\ns_add_u32 s8, s8, s9\ns_cmp_ge_u32 s8, 48\ns_cselect_b32 s9, 48, 0\ns_sub_u32 s8, s8, s9\ns_mul_i32 s8, s8, 23040\ns_mul_i32 s9, s{S_XC}, 1105920\ns_add_u32 s8, s8, s9\ns_add_u32 s8, s8, {W2F}")
    a("v_lshlrev_b32 v4, 7, v0\ns_mov_b32 exec_hi, 0xfffffff")
    for i in range(nt2): a(f"buffer_load_dword v244, v4, {WS}, s8 offen sc1\ns_add_u32 s8, s8, 7680")
    a("s_mov_b32 exec_hi, -1")
a("L_g2go:")
if opt("p1only", 0): endp()
hm_issue = sld(14, S_MB)
a("v_mov_b32 v11, 0")
a(hm_issue)
a(f"s_mul_i32 s10, {WV}, {AREG}\nv_add_u32 v1, s10, v252")
for i in range(1, 4):
    a(f"s_sub_u32 s13, {WV}, {i}\ns_and_b32 s13, s13, 3\ns_mul_i32 s13, s13, {AREG}\ns_add_u32 s13, s13, {5120*(i-1)}\nv_add_u32 v{1+i}, s13, v252")
a("v_lshrrev_b32 v10, 2, v0\nv_lshlrev_b32 v10, 7, v10\nv_bfe_u32 v15, v0, 1, 1\nv_lshl_add_u32 v10, v15, 6, v10\nv_and_b32 v15, 1, v0\nv_lshl_add_u32 v10, v15, 3, v10")
a(f"s_lshl_b32 s13, {WV}, 4\ns_add_u32 s13, s13, {YAT}\nv_add_u32 v5, s13, v10")
a(f"s_mul_i32 s13, {WV}, 2560\ns_add_u32 s13, s13, {BREG0}\nv_add_u32 v6, s13, v254\nv_add_u32 v7, s13, v252")
a(f"v_mov_b32 v14, {CNT}")
srd(S_A, P['out'], 2621440)
if not opt("g2only", 0): spoll(hm_issue, "s_and_b32 s13, s14, s28\ns_cmp_eq_u32 s13, s28", sleep=opt('msleep', 4), issued=True, far=('s_and_b32 s13, s14, 0x3fffff', opt('mfar', 28)))
else: a("s_waitcnt vmcnt(0)")
stamp(6)
for l in ldh(0, 0) + ldh(1, 1024) + ldh(2, 2048): a(l)
a(f"s_add_u32 s15, s{S_MB}, 64")
nld = lambda t: 0 if t > 13 else (4 if (t < 4 or t in PK) else 9)
cur = 0
for t in range(14):
    k = t % 4; nt_ = t + 3; nk = nt_ % 4
    L = []
    if t == 2: a(sld(14, 15))
    if t == 4 and not opt("g2only", 0):
        spoll(sld(14, 15), "s_and_b32 s13, s14, s28\ns_cmp_eq_u32 s13, s28", sleep=2, issued=True)
        stamp(3)
    if nt_ == PK[0]:
        a("s_cmp_lg_u32 s35, 0\ns_cbranch_scc1 L_g_pok\ns_mov_b32 s3, 0")
        a("L_g_pw:")
        a("s_add_u32 s3, s3, 1\ns_cmp_gt_u32 s3, 2000000\ns_cbranch_scc1 L_exit")
        a("ds_read_b32 v10, v14\ns_waitcnt lgkmcnt(0)\nv_readfirstlane_b32 s13, v10\ns_cmp_eq_u32 s13, 0\ns_cbranch_scc1 L_g_pw")
        a("L_g_pok:")
    if nt_ <= 13:
        if off(nt_) - cur > 3072:
            a("\n".join(f"s_add_u32 s{18+i}, s{18+i}, {off(nt_)-cur}" for i in range(9))); cur = off(nt_)
        o = off(nt_) - cur; vv = 253 if nt_ in (6, 13) else 252
        L = ldh(nk, o, vv)
        if nt_ in PK: L += [f"ds_read_b128 {vr(G2W[nk]+4*i,4)}, v1 offset:{5120*PK.index(nt_)+1024*i}" for i in range(5)]
        elif nt_ > 3: L += ldw(nk, o, vv)
    a(f"s_waitcnt vmcnt({nld(t+1)+nld(t+2)})" + (" lgkmcnt(0)" if t in PK else ""))
    if t == 0: stamp(7)
    n = 0; other = []
    if t in (6, 13): a(f"s_cmp_eq_u32 {WV}, 0\ns_cbranch_scc1 L_g_skip{t}")
    for i in ((1, 2, 3, 0) if t == 13 else range(4)):
        for dt in range(5):
            acc = AC2 + 4*(5*i+dt)
            a(f"v_mfma_f32_16x16x32_bf16 {vr(acc,4)}, {vr(G2W[k]+4*dt,4)}, {vr(G2H[k]+4*i,4)}, " + ("0" if t == 0 and i else vr(acc,4)))
            if n < len(L): a(L[n]); other.append(L[n])
            if t == 13:
                pi = {2: 1, 3: 2, 0: 3}.get(i)
                if pi:
                    w_ = f"ds_write_b128 v1, {vr(AC2+4*(5*pi+dt),4)} offset:{5120*(pi-1)+1024*dt}"; a(w_); other.append(w_)
            n += 1
    if t in (6, 13):
        a(f"s_branch L_g_join{t}")
        a(f"L_g_skip{t}:")
        a("s_nop 7")
        for x in other: a(x)
        a(f"L_g_join{t}:")
stamp(8)
a("s_waitcnt lgkmcnt(0)\ns_barrier")
stamp(9)
R_ = 144
for q in range(10): a(f"ds_read_b128 {vr(R_+4*q,4)}, v{2+q//5} offset:{1024*(q%5)}")
for dt in range(5): a(f"ds_read_b64_tr_b16 {vr(16+2*dt,2)}, v5 offset:{2048*dt}")
for q in range(10):
    a(f"s_waitcnt lgkmcnt({14 if q < 5 else 19-q})")
    dt = q % 5
    for h in range(2): a(f"v_pk_add_f32 {vr(AC2+4*dt+2*h,2)}, {vr(AC2+4*dt+2*h,2)}, {vr(R_+4*q+2*h,2)}")
    if q < 5: a(f"ds_read_b128 {vr(R_+40+4*q,4)}, v4 offset:{1024*q}")
for dt in range(5):
    a(f"s_waitcnt lgkmcnt({9-dt})")
    for h in range(2):
        a(f"v_lshlrev_b32 v10, 16, v{16+2*dt+h}\nv_and_b32 v11, 0xffff0000, v{16+2*dt+h}\nv_pk_add_f32 {vr(AC2+4*dt+2*h,2)}, {vr(AC2+4*dt+2*h,2)}, v[10:11]")
a("s_waitcnt lgkmcnt(0)")
for dt in range(5):
    for h in range(2): a(f"v_pk_add_f32 {vr(AC2+4*dt+2*h,2)}, {vr(AC2+4*dt+2*h,2)}, {vr(R_+40+4*dt+2*h,2)}")
    for h in range(2): a(f"v_cvt_pk_bf16_f32 v{32+2*dt+h}, v{AC2+4*dt+2*h}, v{AC2+4*dt+2*h+1}")
    a(f"ds_write_b64 v6, {vr(32+2*dt,2)} offset:{32*dt}")
for q in range(3): a(f"ds_read_b128 {vr(48+4*q,4)}, v7 offset:{1024*q}")
for q in range(3):
    a(f"s_waitcnt lgkmcnt({2-q})\nbuffer_store_dwordx4 {vr(48+4*q,4)}, v{OUTV[q]}, {SA}, s27 offen")
stamp(10)
endp()

a("L_park:")
if opt("p1only", 0): endp()
a(tile_rc(12, 9, 10))
for i in range(1, 5): a(f"v_add_u32 v{1+i}, {55296*i}, v1")
a(f"s_mul_i32 s12, s9, {5*55296}\ns_add_u32 s12, s12, {W2F}\ns_mov_b32 s10, 0\ns_mov_b32 s3, 0")
spoll(wc_issue, wc_test, sleep=10)
if not opt("epark", 15):
    a(f"v_mov_b32 v10, {CNT+8}\ns_mov_b32 s11, 0")
    a("L_pk_w:")
    a("s_add_u32 s11, s11, 1\ns_cmp_gt_u32 s11, 200000\ns_cbranch_scc1 L_exit\ns_sleep 2")
    a("ds_read_b32 v11, v10\ns_waitcnt lgkmcnt(0)\nv_readfirstlane_b32 s13, v11\ns_cmp_eq_u32 s13, 0\ns_cbranch_scc1 L_pk_w")
stamp(11)
a("L_pk_loop:")
for p in range(3):
    a(f"s_add_u32 s13, s12, {off(PK[p])}")
    for i in range(5): a(f"s_add_u32 m0, s10, {5120*p+1024*i}\nbuffer_load_dwordx4 v{1+i}, {WS}, s13 offen{G2F} lds")
    if opt("epark", 15): a(f"s_waitcnt vmcnt({opt('epark', 15)})")
a(f"s_cmp_eq_u32 s3, 0\ns_cselect_b32 s13, 6, 7\ns_lshl_b32 s13, s13, 10\ns_add_u32 s12, s12, s13\ns_add_u32 s10, s10, {AREG}\ns_add_u32 s3, s3, 1\ns_cmp_lt_u32 s3, 4\ns_cbranch_scc1 L_pk_loop")
a(f"v_mov_b32 v2, {CNT}\nv_mov_b32 v3, 1\ns_waitcnt vmcnt(0)\nds_write_b32 v2, v3\ns_waitcnt lgkmcnt(0)")
stamp(12)
endp()

a("L_fetch:")
if opt("p1only", 0): endp()
a(tile_rc(8, 9, 10))
a("s_mul_i32 s11, s8, 81920")
a(f"v_mov_b32 v1, 0\ns_lshl_b32 s13, s9, 2\ns_add_u32 s13, s13, s{S_XR}\ns_lshl_b32 s13, s13, 7\ns_add_u32 s13, s13, {YAC}")
spoll(sld(12, 13), "s_cmp_ge_u32 s12, 80", sleep=opt('ysleep', 8), far=('s_cmp_ge_u32 s12, 24', opt('yfar', 32)))
stamp(11)
a(f"s_mul_i32 s10, s9, 10240\ns_add_u32 s11, s11, s10\ns_add_u32 s11, s11, {YA}\nv_lshlrev_b32 v1, 4, v0")
for q in range(10):
    a(f"buffer_load_dwordx4 {vr(16+4*q,4)}, v1, {WS}, s11 offen sc1\ns_add_u32 s11, s11, 1024")
a(f"v_add_u32 v1, {YAT}, v1")
for q in range(10):
    a(f"s_waitcnt vmcnt({9-q})\nds_write_b128 v1, {vr(16+4*q,4)} offset:{1024*q}")
a("s_waitcnt lgkmcnt(0)")
stamp(12)
a("s_barrier")
endp()

c_issue = sld(33, 100)
c_test = "s_cmp_ge_u32 s33, 64"
clr_s = f"s_load_dwordx4 s[28:31], s[{P['dbg']}:{P['dbg']+1}], 0"
a("L_aux:")
a(f"s_sub_u32 s8, s{S_J}, s8\ns_and_b32 s15, {WV}, 3\ns_mov_b32 s35, 0\nv_mov_b32 v230, 0\ns_mov_b32 s71, 0\ns_mul_i32 s69, {WV}, {AREG}")
a(f"s_lshl_b32 s9, s{S_XR}, 4\ns_lshl_b32 s10, s{S_XC}, 3\ns_add_u32 s9, s9, s10\ns_add_u32 s9, s9, s8")
RAW, DV = 164, 64
a("v_and_b32 v238, 3, v0\nv_lshlrev_b32 v238, 2, v238")
a(f"s_cmp_ge_u32 s8, 8\ns_cbranch_scc1 L_nolnwg\ns_cmp_lt_u32 {WV}, 4\ns_cbranch_scc1 L_lnw")
a(f"s_lshl_b32 s{S_CH}, s9, 2\ns_add_u32 s{S_CH}, s{S_CH}, s15\ns_branch L_par")
a("L_nolnwg:")
a(f"s_mul_i32 s10, s{S_XR}, 12\ns_lshl_b32 s11, s{S_XC}, 2\ns_add_u32 s10, s10, s11\ns_add_u32 s10, s10, s8\ns_lshl_b32 s10, s10, 3\ns_add_u32 s10, s10, {WV}\ns_add_u32 s{S_CH}, s10, 192")
a(f"s_lshl_b32 s10, s{S_XC}, 4\ns_add_u32 s10, s10, s8\ns_cmp_lg_u32 s10, 8\ns_cbranch_scc1 L_par")
a(f"s_lshl_b32 s10, s{S_XR}, 15\ns_lshl_b32 s11, {WV}, 12\ns_add_u32 s10, s10, s11\ns_add_u32 s10, s10, {CLR}\nv_lshlrev_b32 v1, 4, v0\ns_mov_b32 s35, 5")
zero(4, 4)
for i in range(4): a(f"buffer_store_dwordx4 v[4:7], v1, {WS}, s10 offen offset:{1024*i} sc1")
a("L_par:")
a(f"s_lshl_b32 s10, s{S_CH}, 8\nv_lshl_add_u32 v1, v0, 2, s10")
for i, nm in enumerate(["are", "aim", "bre", "bim", "cre", "cim"]):
    a(f"global_load_dword v{240+i}, v1, s[{P[nm]}:{P[nm]+1}]{NT1}")
a(f"s_lshl_b32 s10, s{S_CH}, 1\nv_mov_b32 v1, s10\nglobal_load_ushort v246, v1, s[{P['ldt']}:{P['ldt']+1}]")
a(f"global_load_ushort v147, v1, s[{P['dsk']}:{P['dsk']+1}]")
a("s_cmp_lt_u32 s8, 8\ns_cbranch_scc1 L_wrole\ns_cmp_lg_u32 s35, 5\ns_cbranch_scc1 L_cs")
a(f"s_waitcnt vmcnt(8)\ns_barrier\ns_cmp_lg_u32 {WV}, 0\ns_cbranch_scc1 L_cs")
a(f"s_lshl_b32 s10, s{S_XR}, 2\nv_mov_b32 v2, 1\nv_mov_b32 v4, 0\ns_mov_b64 exec, 1\nbuffer_store_dword v2, v4, {DBG}, s10 offen sc1\ns_mov_b64 exec, -1\ns_waitcnt vmcnt(1)")
stamp(1)
a("L_cs:")
a(f"s_mov_b32 s35, 0\ns_sub_u32 s9, s8, 8\ns_lshl_b32 s10, s{S_XR}, 2\ns_lshl_b32 s10, s10, s{S_XC}\ns_add_u32 s9, s9, s10")
a(f"s_cmp_eq_u32 s{S_XC}, 0\ns_cselect_b32 s10, 8, 3\ns_movk_i32 s11, 120\ns_mul_i32 s9, s9, s10\ns_add_u32 s9, s9, {WV}\ns_cmp_ge_u32 {WV}, s10\ns_cbranch_scc1 L_kgen\ns_cmp_ge_u32 s9, s11\ns_cbranch_scc1 L_kgen")
a(f"s_and_b32 s15, s9, 3\ns_lshr_b32 s9, s9, 2\ns_mul_i32 s10, s{S_XC}, 30\ns_add_u32 s9, s9, s10")
a("s_mul_i32 s12, s15, 552960\ns_lshl_b32 s11, s9, 6\ns_add_u32 s71, s12, s11")
a(f"v_and_b32 v4, 31, v0\nv_lshlrev_b32 v4, 1, v4\nv_add_u32 v4, s11, v4\nglobal_load_ushort v145, v4, s[{P['b1']}:{P['b1']+1}]")
a("v_lshrrev_b32 v2, 2, v0\nv_and_b32 v3, 3, v0\nv_mul_u32_u24 v1, 3456, v2\nv_lshl_add_u32 v230, v3, 4, v1\ns_mov_b32 s35, 2\ns_branch L_kgen")
a("L_wrole:")
W2R = lambda i: (RAW + 4*i) if i < 10 else (148 + 4*(i-10))
a("s_barrier")
srd(S_B, P['w2'], 2211840)
a("v_lshrrev_b32 v8, 3, v0\nv_mul_u32_u24 v8, 1280, v8\nv_and_b32 v9, 7, v0\nv_lshl_add_u32 v8, v9, 4, v8\ns_lshl_b32 s8, s9, 2\ns_add_u32 s8, s8, s15")
for u_ in range(3):
    a(f"s_add_u32 s10, s8, {256*u_}\ns_mul_i32 s11, s10, 6554\ns_lshr_b32 s11, s11, 16\ns_mul_i32 s70, s11, 10\ns_sub_u32 s70, s10, s70")
    a(f"s_mul_i32 s13, s11, 40960\ns_lshl_b32 s71, s70, 7\ns_add_u32 s13, s13, s71\ns_mul_i32 s71, s70, 216\ns_mul_i32 s70, s11, 43\ns_lshr_b32 s70, s70, 8\ns_mul_i32 s70, s70, 3\ns_sub_u32 s11, s11, s70\ns_sub_u32 s70, s11, s70\ns_cmp_ge_u32 s70, 3\ns_cselect_b32 s70, 24, 0\ns_add_u32 s11, s11, s70\ns_add_u32 s71, s71, s11\ns_lshl_b32 s71, s71, 10\ns_add_u32 s{96+u_}, s71, {W2F}")
    if u_ == 2: a(f"s_cmp_lt_u32 s10, 540\ns_cselect_b32 s13, s13, {OOB}\ns_cselect_b32 s98, s98, {OOB}")
    for q in range(4): a(f"buffer_load_dwordx4 {vr(W2R(4*u_+q),4)}, v8, {SB}, s13 offen{NT1}\ns_add_u32 s13, s13, 10240")
a("s_mov_b32 s35, 1")
a("L_kgen:")
a("s_mov_b32 s68, 0\ns_mov_b32 m0, s69")
a(lnc_addr)
a(f"s_mov_b32 s101, 0\nv_mov_b32 v146, 0\nv_mov_b32 v253, 0\ns_cmp_lt_u32 {WV}, 4\ns_cbranch_scc1 L_kg_nocs")
conv_setup()
a("L_kg_nocs:")
a("v_and_b32 v2, 31, v0\nv_mul_u32_u24 v2, 272, v2\nv_lshrrev_b32 v3, 5, v0\nv_lshl_add_u32 v2, v3, 4, v2\nv_add_u32 v228, s69, v2")
KA = 208
zero(KA, 16)
a("s_mov_b32 s3, 0\ns_cmp_eq_u32 s35, 1\ns_cbranch_scc1 L_kw12\ns_waitcnt vmcnt(1)")
a("L_kw12:")
a("s_waitcnt vmcnt(12)")
stamp(3)
a(f"v_lshlrev_b32 v3, 16, v246\nv_mul_f32 v3, {f32(math.log2(math.e))}, v3\nv_exp_f32 v3, v3\nv_cvt_pk_bf16_f32 v3, v3, v3\nv_lshlrev_b32 v229, 16, v3")
a("s_cmp_eq_u32 s35, 1\ns_cbranch_scc1 L_w2mid")
a("L_kg_loop:")
for i in range(6): a(f"v_and_b32 v{4+i}, 0xffff0000, v{240+i}\nv_lshlrev_b32 v{240+i}, 16, v{240+i}")
for i in range(4): a(f"v_mul_f32 v{4+i}, v229, v{4+i}")
a(f"v_mul_f32 v4, {f32(math.log2(math.e))}, v4\nv_mul_f32 v5, {f32(1/(2*math.pi))}, v5")
Z1, Z8, Z256, W = 10, 12, 14, 16
for k, z in ((1, Z1), (8, Z8), (256, Z256)):
    a(f"v_mul_f32 v20, {f32(k)}, v4\nv_mul_f32 v21, {f32(k)}, v5\nv_fract_f32 v21, v21\nv_exp_f32 v20, v20\nv_cos_f32 v{z}, v21\nv_sin_f32 v{z+1}, v21")
    neg = " neg_hi:[0,1]" if k == 8 else ""
    a(f"v_pk_mul_f32 {vr(z,2)}, {vr(z,2)}, v[20:21] op_sel:[0,0] op_sel_hi:[1,0]{neg}")
cmul(W, 8, 6, 20)
rowof = {}
h0 = [[0,1,2,3],[4,5,6,7],[1024,1032,1280,1288],[1536,1544,1792,1800]]
h1 = [[256,258,260,262],[264],[512,516,520],[768,772,776]]
for q in range(4):
    for i, v in enumerate(h0[q]): rowof[v] = 8*q + i
    for i, v in enumerate(h1[q]): rowof[v] = 8*q + 4 + i
cv = [0]
def put(src, row):
    t = 24 + (cv[0] % 4); cv[0] += 1
    a(f"v_cvt_pk_bf16_f32 v{t}, v{src}, v{src+1}\nds_write_addtid_b32 v{t} offset:{row*272}")
G = {0: W}
opsG = [lambda: put(W, rowof[0])]
for b in range(1, 9):
    G[b] = 32 + 2*b
    opsG.append(lambda b=b: (cmul(G[b], G[b-1], Z1, 20), put(G[b], rowof[b]) if b < 8 else None))
Pq = {1: Z256}
for q in range(1, 8):
    if q > 1:
        Pq[q] = 52 + 2*(q & 1)
        opsG.append(lambda q=q: cmul(Pq[q], Pq[q-1], Z256, 20))
    ds = {1: (0,2,4,6,8), 2: (0,4,8), 3: (0,4,8)}.get(q, (0, 8))
    for n, d in enumerate(ds):
        opsG.append(lambda q=q, d=d, n=n: (cmul(56+2*(n&1), G[d], Pq[q], 20), put(56+2*(n&1), rowof[256*q+d])))
opsE = [lambda: a(f"v_mov_b32 v28, 0x3f80\nds_write_addtid_b32 v28 offset:{32*272}"), lambda: put(Z8, 33)]
for j in range(2, 32):
    src = Z8 if j == 2 else 60 + 2*((j-1) & 1)
    dst = 60 + 2*(j & 1)
    opsE.append(lambda src=src, dst=dst, j=j: (cmul(dst, src, Z8, 22), put(dst, 32+j)))
for i in range(max(len(opsG), len(opsE))):
    if i < len(opsE): opsE[i]()
    if i < len(opsG): opsG[i]()
    if i < 10:
        a(f"s_cmp_lg_u32 s35, 2\ns_cbranch_scc1 L_kg_nl{i}\nbuffer_load_dwordx4 {vr(RAW+4*i,4)}, v230, {SB}, s71 offen{NT}\ns_add_u32 s71, s71, 55296")
        a(f"L_kg_nl{i}:")
    if i == 12 and opt("eu", 1):
        a(f"s_lshl_b32 s10, s3, 2\ns_and_b32 s10, s10, {WV}\ns_cbranch_scc1 L_eu0")
        a("L_kg_ne1:")
    if i == 31 and opt("eu", 1):
        a("s_cmp_eq_u32 s68, 1\ns_cbranch_scc1 L_eu")
        a("L_kg_ne2:")
    if i == opt("wsig", 14):
        a("s_cmp_eq_u32 s35, 6\ns_cbranch_scc1 L_w2sig")
        a("L_kg_nsig:")
a("s_waitcnt lgkmcnt(0)")
for k in range(8):
    a(f"ds_read_b128 {vr(64+8*k,4)}, v228 offset:{32*k}\nds_read_b128 {vr(68+8*k,4)}, v228 offset:{32*272+32*k}")
for k in range(8):
    a(f"s_waitcnt lgkmcnt({14-2*k})")
    a(f"v_mfma_f32_32x32x16_bf16 {vr(KA,16)}, {vr(64+8*k,4)}, {vr(68+8*k,4)}, {vr(KA,16)}")
a("s_cmp_lg_u32 s3, 0\ns_cbranch_scc1 L_kg_done")
a(clr_s)
a("s_mov_b32 s3, 1\ns_cmp_lg_u32 s35, 2\ns_cbranch_scc1 L_kg_loop\ns_branch L_csum")
a("L_eu0:")
a("s_waitcnt lgkmcnt(0)\ns_and_b32 s10, s28, s29\ns_and_b32 s11, s30, s31\ns_and_b32 s10, s10, s11\ns_cselect_b32 s35, 4, s35\ns_cmp_lt_u32 s35, 4\ns_cbranch_scc1 L_kg_ne1")
a(c_issue)
a("s_mov_b32 s68, 1\ns_branch L_kg_ne1")
a("L_eu:")
a("s_mov_b32 s68, 0\ns_waitcnt lgkmcnt(0)")
a(c_test)
a("s_cbranch_scc0 L_kg_ne2")
uloads()
a("s_mov_b32 s68, 2\ns_branch L_kg_ne2")
def need_clr(tag):
    a(f"s_waitcnt lgkmcnt(0)\ns_and_b32 s28, s28, s29\ns_and_b32 s30, s30, s31\ns_and_b32 s28, s28, s30\ns_cbranch_scc1 L_clr_{tag}")
    poll(clr_issue(239, 238), clr_test(239), sleep=8, issued=False)
    a(f"L_clr_{tag}:")
def touch():
    if not opt("touch", 0): return
    n = 270 if RS else 135
    a(f"s_and_b32 s10, s8, 7\ns_lshl_b32 s10, s10, 3\ns_add_u32 s10, s10, {WV}")
    if RS: a(f"s_and_b32 s11, s2, 7\ns_lshl_b32 s11, s11, 3\ns_add_u32 s10, s10, s11\ns_and_b32 s10, s10, 63\ns_mul_i32 s10, s10, {n*128}")
    else: a(f"s_lshl_b32 s11, s{S_XR}, 4\ns_add_u32 s10, s10, s11\ns_and_b32 s10, s10, 63\ns_mul_i32 s10, s10, {n*128}\ns_mul_i32 s11, s{S_XC}, 1105920\ns_add_u32 s10, s10, s11")
    a(f"s_add_u32 s10, s10, {W2F}\nv_lshlrev_b32 v4, 7, v0")
    for i in range(n // 64): a(f"buffer_load_dword v144, v4, {WS}, s10 offen sc1\ns_add_u32 s10, s10, 8192")
    a(few((1 << (n % 64)) - 1, f"buffer_load_dword v144, v4, {WS}, s10 offen sc1"))
def lds_wait(tag, target):
    a("s_mov_b32 s12, 0")
    a(f"L_sb{tag}:")
    a("s_add_u32 s12, s12, 1\ns_cmp_gt_u32 s12, 2000000\ns_cbranch_scc1 L_exit")
    a(f"ds_read_b32 v15, v14\ns_waitcnt lgkmcnt(0)\nv_readfirstlane_b32 s11, v15\ns_cmp_lt_u32 s11, {target}\ns_cbranch_scc1 L_sb{tag}")
a("L_lnw:")
a("s_lshl_b32 s10, s9, 5\ns_lshl_b32 s11, s15, 3\ns_add_u32 s14, s10, s11\ns_mul_i32 s11, s14, 1280")
a("v_lshrrev_b32 v2, 4, v0\nv_and_b32 v3, 15, v0\nv_mul_u32_u24 v1, 2560, v2\nv_lshl_add_u32 v1, v3, 4, v1")
for sg in range(2):
    for i in range(5):
        a(f"buffer_load_dwordx4 {vr(RAW+20*sg+4*i,4)}, v1, {SA}, s11 offen offset:{sg*1280+i*256}{NT}")
a(f"v_mov_b32 v4, {CNT}\nv_mov_b32 v6, 0\nv_mov_b32 v7, 0\nds_write_b64 v4, v[6:7]\ns_waitcnt lgkmcnt(0)\ns_barrier")
a("s_lshl_b32 s11, s15, 4\nv_lshlrev_b32 v8, 2, v2\nv_add_u32 v8, s11, v8")
for i in range(5):
    a(f"v_add_u32 v4, {16*i}, v3\nv_mul_u32_u24 v5, 3277, v4\nv_lshrrev_b32 v5, 16, v5\nv_mul_u32_u24 v5, {BREG-20*528}, v5\nv_mul_u32_u24 v4, 528, v4\nv_add3_u32 v{150+i}, v4, v5, v8")
a(f"s_setprio 2\nv_mov_b32 v14, {CNT}\nv_lshrrev_b32 v2, 4, v0\ns_mov_b32 s12, 0x3f803f80")
zero(4, 4)
a("s_waitcnt vmcnt(0)")
stamp(1)
a(clr_s)
for sg in range(2):
    for k in range(20):
        a(f"v_dot2_f32_bf16 v{4+2*sg+(k&1)}, v{RAW+20*sg+k}, s12, v{4+2*sg+(k&1)}")
a("v_add_f32 v4, v4, v5\nv_add_f32 v6, v6, v7")
def unp(sg, ks):
    for k in ks:
        d = DV + 40*sg + 2*k
        a(f"v_lshlrev_b32 v{d}, 16, v{RAW+20*sg+k}\nv_and_b32 v{d+1}, 0xffff0000, v{RAW+20*sg+k}")
for n, sh in enumerate((8, 4, 2, 1)):
    a(f"v_add_f32_dpp v4, v4, v4 row_ror:{sh} row_mask:0xf bank_mask:0xf\nv_add_f32_dpp v6, v6, v6 row_ror:{sh} row_mask:0xf bank_mask:0xf")
    unp(0, range(5*n, 5*n+5))
a(f"v_mul_f32 v4, {f32(1/640)}, v4\nv_mul_f32 v6, {f32(1/640)}, v6")
a("v_cvt_pk_bf16_f32 v5, v4, v6\nv_lshlrev_b32 v8, 16, v5\nv_and_b32 v9, 0xffff0000, v5")
a("v_sub_f32 v56, 0, v8\nv_sub_f32 v57, 0, v8\nv_sub_f32 v58, 0, v9\nv_sub_f32 v59, 0, v9")
zero(10, 4)
unp(1, range(20))
for sg in range(2):
    for k in range(20):
        d = DV + 40*sg + 2*k
        a(f"v_pk_add_f32 {vr(d,2)}, {vr(d,2)}, {vr(56+2*sg,2)}")
    for k in range(20):
        d = DV + 40*sg + 2*k
        a(f"v_pk_fma_f32 {vr(10+2*sg,2)}, {vr(d,2)}, {vr(d,2)}, {vr(10+2*sg,2)}")
a("v_add_f32 v10, v10, v11\nv_add_f32 v12, v12, v13")
def rnd(sg, ks):
    for k in ks:
        d = DV + 40*sg + 2*k
        a(f"v_cvt_pk_bf16_f32 v{RAW+20*sg+k}, v{d}, v{d+1}")
for n, sh in enumerate((8, 4, 2, 1)):
    a(f"v_add_f32_dpp v10, v10, v10 row_ror:{sh} row_mask:0xf bank_mask:0xf\nv_add_f32_dpp v12, v12, v12 row_ror:{sh} row_mask:0xf bank_mask:0xf")
    rnd(0, range(2*n, 2*n+2))
a("v_sub_f32 v4, v4, v8\nv_sub_f32 v6, v6, v9\nv_mul_f32 v4, v4, v4\nv_mul_f32 v6, v6, v6")
a(f"s_mov_b32 s12, {f32(1/640)}\nv_fma_f32 v4, v10, s12, -v4\nv_fma_f32 v6, v12, s12, -v6")
a("v_max_f32 v4, 0, v4\nv_max_f32 v6, 0, v6")
a("v_cvt_pk_bf16_f32 v7, v4, v6\nv_lshlrev_b32 v4, 16, v7\nv_and_b32 v6, 0xffff0000, v7")
a(f"v_add_f32 v4, {f32(1e-5)}, v4\nv_add_f32 v6, {f32(1e-5)}, v6")
a("v_cvt_pk_bf16_f32 v7, v4, v6\nv_lshlrev_b32 v4, 16, v7\nv_and_b32 v6, 0xffff0000, v7")
a("v_sqrt_f32 v4, v4\nv_sqrt_f32 v6, v6\nv_cvt_pk_bf16_f32 v7, v4, v6")
a("v_lshlrev_b32 v4, 16, v7\nv_and_b32 v6, 0xffff0000, v7\nv_rcp_f32 v60, v4\nv_rcp_f32 v61, v4\nv_rcp_f32 v62, v6\nv_rcp_f32 v63, v6")
a("v_and_b32 v12, 0xffff, v5\nv_or_b32 v12, v12, v4\nv_lshrrev_b32 v13, 16, v5\nv_or_b32 v13, v13, v6")
a(f"s_lshl_b32 s11, s14, 2\ns_add_u32 s11, s11, {STATS}\nv_lshlrev_b32 v1, 3, v2")
need_clr("ln")
a(f"s_mov_b32 exec_lo, 0x10001\ns_mov_b32 exec_hi, 0x10001\nbuffer_store_dwordx2 v[12:13], v1, {WS}, s11 offen sc1\ns_mov_b64 exec, -1")
stamp(2)
rnd(0, range(8, 20)); rnd(1, range(20))
unp(0, range(20)); unp(1, range(20))
for sg in range(2):
    for k in range(20):
        d = DV + 40*sg + 2*k
        a(f"v_pk_mul_f32 {vr(d,2)}, {vr(d,2)}, {vr(60+2*sg,2)}")
for k in range(20):
    for h in range(2):
        d = DV + 2*k + h
        a(f"v_cvt_pk_bf16_f32 v{d}, v{d}, v{d+40}")
    d = DV + 2*k
    a(f"ds_write2_b32 v{150+k//4}, v{d}, v{d+1} offset0:{(k%4)*32} offset1:{(k%4)*32+16}")
a("v_mov_b32 v15, 1\nds_add_u32 v14, v15")
a("v_lshrrev_b32 v3, 5, v0\nv_lshlrev_b32 v2, 4, v0\nv_lshl_add_u32 v1, v3, 4, v2\nv_add_u32 v1, s69, v1")
a("s_mul_i32 s10, s9, 40960\ns_mul_i32 s11, s15, 10240\ns_add_u32 s10, s10, s11")
lds_wait("b", 256)
for i in range(10): a(f"ds_read_b128 {vr(RAW+4*i,4)}, v1 offset:{1056*i}")
for i in range(10):
    a(f"s_waitcnt lgkmcnt({9-i})\nbuffer_store_dwordx4 {vr(RAW+4*i,4)}, v2, {WS}, s10 offen sc1\ns_add_u32 s10, s10, 1024")
a(f"s_lshl_b32 s10, s15, 11\ns_add_u32 s10, s10, {LNC}\nv_lshlrev_b32 v4, 7, v0\nv_mov_b32 v5, 1")
a(f"s_waitcnt vmcnt(0)\ns_mov_b64 exec, 0xffff\nbuffer_atomic_add v5, v4, {WS}, s10 offen sc1\ns_mov_b64 exec, -1\ns_setprio 0")
stamp(4)
a("s_lshl_b32 s8, s9, 2\ns_add_u32 s8, s8, s15")
a("s_cmp_lg_u32 s8, 255\ns_cbranch_scc1 L_norelay")
a(f"v_lshlrev_b32 v6, 6, v0\ns_mov_b32 s8, {W2C}")
poll(few(3, f"buffer_load_dword v7, v6, {DBG}, 0 offen offset:128 sc1"),
     "v_readlane_b32 s9, v7, 0\nv_readlane_b32 s10, v7, 1\ns_add_u32 s9, s9, s10\ns_cmp_ge_u32 s9, 64", sleep=4, issued=False)
stamp(11)
a(f"s_mov_b32 exec_hi, 0\nbuffer_store_dword v5, v4, {WS}, s8 offen offset:1024 sc1\ns_mov_b32 exec_hi, -1")
a("L_norelay:")
a("s_mov_b32 s35, 1\ns_branch L_g2")
a("L_csum:")
a("s_setprio 3\ns_mov_b32 s12, 0x00003f80\ns_mov_b32 s13, 0x3f800000\nv_and_b32 v3, 3, v0")
zero(4, 8)
a("s_waitcnt vmcnt(0)")
for i in range(10):
    for k in range(4):
        a(f"v_dot2_f32_bf16 v{4+2*k}, v{RAW+4*i+k}, s12, v{4+2*k}\nv_dot2_f32_bf16 v{5+2*k}, v{RAW+4*i+k}, s13, v{5+2*k}")
for sh in (8, 4):
    for r in range(8): a(f"v_add_f32_dpp v{4+r}, v{4+r}, v{4+r} row_ror:{sh} row_mask:0xf bank_mask:0xf")
a("v_lshrrev_b32 v12, 4, v0\nv_lshlrev_b32 v12, 7, v12\nv_lshl_add_u32 v12, v3, 5, v12\nv_add_u32 v12, s69, v12")
a("ds_write_b128 v12, v[4:7]\nds_write_b128 v12, v[8:11] offset:16")
a("v_and_b32 v12, 31, v0\nv_lshl_add_u32 v13, v12, 2, s69")
for p in range(4): a(f"ds_read_b32 v{16+p}, v13 offset:{128*p}")
a("s_waitcnt lgkmcnt(0)\nv_add_f32 v16, v16, v17\nv_add_f32 v18, v18, v19\nv_add_f32 v16, v16, v18")
a("v_cvt_pk_bf16_f32 v4, v16, v16\nv_lshlrev_b32 v5, 16, v4\nv_sub_f32 v5, v16, v5")
a("v_cvt_pk_bf16_f32 v6, v16, v5\nv_and_b32 v7, 0xffff0000, v6\nv_sub_f32 v7, v5, v7")
a("v_cvt_pk_bf16_f32 v7, v7, v7\nv_and_b32 v7, 0xffff, v7\nv_or_b32 v7, 1, v7")
a(f"s_lshl_b32 s12, s9, 8\ns_mul_i32 s13, s15, {CSP}\ns_add_u32 s12, s12, s13\ns_add_u32 s12, s12, {CSUM}\nv_lshlrev_b32 v12, 3, v12")
need_clr("cs")
a("v_lshl_or_b32 v7, v145, 16, v7")
a(f"s_mov_b32 exec_hi, 0\nbuffer_store_dwordx2 v[6:7], v12, {WS}, s12 offen sc1\ns_mov_b32 exec_hi, -1")
stamp(2)
a("s_setprio 0\ns_mov_b32 s35, 4\ns_branch L_kg_loop")
a("L_w2mid:")
a("s_setprio 3")
a("v_lshlrev_b32 v2, 4, v0\ns_waitcnt vmcnt(0)")
for i in range(12): a(f"ds_write_b128 v{cLIN}, {vr(W2R(i),4)} offset:{1024*i}")
a("v_lshrrev_b32 v6, 5, v0\nv_bfe_u32 v7, v0, 4, 1\nv_lshlrev_b32 v6, 4, v6\nv_lshl_add_u32 v6, v7, 2, v6\nv_bfe_u32 v7, v0, 2, 2\nv_add_u32 v6, v6, v7")
a("v_lshlrev_b32 v6, 7, v6\nv_and_b32 v7, 3, v0\nv_lshl_add_u32 v6, v7, 3, v6\nv_add_u32 v6, s69, v6")
for u_ in range(3):
    for dt in range(4):
        for h in range(2): a(f"ds_read_b64_tr_b16 {vr(W2R(4*u_+dt)+2*h,2)}, v6 offset:{4096*u_+1024*h+32*dt}")
    for dt in range(4):
        a(f"s_waitcnt lgkmcnt({6-2*dt})\nbuffer_store_dwordx4 {vr(W2R(4*u_+dt),4)}, v2, {WS}, s{96+u_} offen sc1\ns_add_u32 s{96+u_}, s{96+u_}, 55296")
a("s_setprio 2\ns_mov_b32 s35, 6\ns_branch L_kg_loop")
a("L_w2sig:")
a(f"v_mov_b32 v4, {CNT+4}\nv_mov_b32 v5, 1\nv_mov_b32 v6, 0\ns_waitcnt vmcnt(0)\ns_mov_b64 exec, 1\nds_add_rtn_u32 v7, v4, v5\ns_waitcnt lgkmcnt(0)\nv_readfirstlane_b32 s10, v7")
a(f"s_and_b32 s11, s9, 1\ns_lshl_b32 s11, s11, 6\ns_add_u32 s11, s11, 128\ns_cmp_eq_u32 s10, 3\ns_cselect_b32 s11, s11, {OOB}\nbuffer_atomic_add v5, v6, {DBG}, s11 offen sc1\ns_mov_b64 exec, -1")
stamp(2)
a(f"s_setprio {opt('wprio', 1)}\ns_mov_b32 s35, 0\ns_branch L_kg_nsig")
a("L_kg_done:")
a("s_waitcnt vmcnt(4)")
a("s_cmp_ge_u32 s35, 3\ns_cbranch_scc1 L_clr_fin")
a(clr_s)
need_clr("fin")
a(f"s_waitcnt lgkmcnt(0)\ns_cmp_lt_u32 {WV}, 4\ns_cbranch_scc1 L_kg_nc\ns_cmp_eq_u32 s68, 2\ns_cbranch_scc1 L_kg_nc\ns_waitcnt vmcnt(0)")
a(c_issue)
a("L_kg_nc:")
a("s_nop 7")
stamp(4)
a(f"s_setprio {opt('pprio', 2)}")
r = lambda i: KA + i
a("v_lshlrev_b32 v1, 4, v0\nv_add_u32 v13, s69, v1")
zero(4, 4)
for i in range(3): a(f"ds_write_b128 v13, v[4:7] offset:{SCR+1024*i}")
a("v_and_b32 v3, 31, v0\nv_lshlrev_b32 v2, 4, v3\nv_sub_u32 v2, s69, v2\nv_add_u32 v2, 512, v2")
def pack(o, pairs):
    for i, (lo, hi) in enumerate(pairs): a(f"v_cvt_pk_bf16_f32 v{o+i}, {lo}, {hi}")
R = lambda i: f"v{KA+i}"
pack(16, [(R(7),R(6)),(R(5),R(4)),(R(3),R(2)),(R(1),R(0))])
pack(20, [(R(4),R(3)),(R(2),R(2)),(R(2),R(1)),(R(0),R(0))])
pack(24, [("0","0"),(R(9),R(9)),(R(9),R(8)),(R(8),R(8))])
pack(28, [(R(9),R(10)),(R(13),R(14))])
pack(30, [(R(9),R(11)),(R(13),R(15))])
a(f"v_and_b32 v8, 1, v3\nv_and_b32 v10, 30, v3\nv_mul_u32_u24 v9, 320, v8\nv_mul_u32_u24 v8, 640, v8\ns_add_u32 s10, s69, {T2}\nv_sub_u32 v10, s10, v10\nv_add_u32 v8, v8, v10\nv_add_u32 v9, v9, v10")
a("s_mov_b32 exec_hi, 0")
a(f"ds_write_b128 v2, v[16:19] offset:{IMG+1072-512}")
for q in range(4):
    for cp in range(2): a(f"ds_write_b16{'_d16_hi' if q & 1 else ''} v9, v{30+q//2} offset:{T3-T2 + 160*cp + 2*(63-16*q-cp)}")
a("s_mov_b32 exec_hi, -1\ns_mov_b32 exec_lo, 0")
a(f"ds_write_b128 v2, v[20:23] offset:{IMG+560-512}")
for q in range(2):
    for w in range(2):
        for cp in range(2): a(f"ds_write_b16{'_d16_hi' if w else ''} v8, v{28+q} offset:{320*w + 160*cp + 2*(47-16*q-cp)}")
a(f"s_mov_b32 exec_hi, 1\nds_write_b128 v2, v[24:27] offset:{IMG+48-512}\nds_write_b16 v8, v4 offset:{2*47}\nds_write_b16 v8, v4 offset:{160+2*46}\ns_mov_b64 exec, -1")
a(f"s_cmp_lt_u32 {WV}, 4\ns_cbranch_scc1 L_kexp")
a("s_cmp_eq_u32 s68, 2\ns_cbranch_scc1 L_cv_kpart\ns_waitcnt lgkmcnt(0)")
a(c_test)
a("s_cbranch_scc0 L_cv_kpart")
uloads()
a("s_mov_b32 s68, 2")
a("L_cv_kpart:")
B2, B3 = 164, 188
a(f"v_mov_b32 v5, s69\nds_read_u16 v34, v5 offset:{T2 + 6*160 + 2*16}")
a(f"ds_read_b128 v[16:19], v{cLIN} offset:{IMG}\nds_read_b64 v[20:21], v{cLIN} offset:{IMG+16}\nds_read_b128 v[24:27], v{cIMG2} offset:{IMG+1024}\nds_read_b64 v[28:29], v{cIMG2} offset:{IMG+1040}")
for i in range(6):
    for h in range(2): a(f"ds_read2_b32 {vr(B2+4*i+2*h,2)}, v{cT2} offset0:{4*i+2*h} offset1:{4*i+2*h+1}")
for d in range(4):
    for h in range(2): a(f"ds_read2_b32 {vr(B3+4*d+2*h,2)}, v{cT3} offset0:{8*(3-d)+2*h} offset1:{8*(3-d)+2*h+1}")
a("v_lshl_or_b32 v5, v147, 16, v147")
for k in range(4): a(f"v_and_b32 v{AD+k}, v{AD+k}, v5")
a("s_waitcnt lgkmcnt(15)\nv_lshl_or_b32 v5, v34, 16, v34")
for k in range(4): a(f"v_and_b32 v{AB+k}, v{AB+k}, v5")
for rr, (D, va, off) in enumerate(((16, cKW1, 0), (24, cKW2, 4608))):
    O = 64 + 16*rr
    for i in range(4):
        a(f"v_mov_b32 v{O+4*i}, v{D+i}\nv_mov_b32 v{O+4*i+1}, v{D+i+1}")
        a(f"v_alignbit_b32 v{O+4*i+2}, v{D+i+1}, v{D+i}, 16\nv_alignbit_b32 v{O+4*i+3}, v{D+i+2}, v{D+i+1}, 16")
        a(f"ds_write_b128 v{va}, {vr(O+4*i,4)} offset:{off + 16*i}")
a(f"ds_read_b64 {vr(A16,2)}, v{cA0}\nds_read_b64 {vr(A16+2,2)}, v{cA1}")
stamp(5)
a("s_cmp_lg_u32 s101, 0\ns_cbranch_scc1 L_cv_direct")
a("L_cv_upart:")
a(f"s_setprio {opt('pprio', 2)}")
zero(4, 4)
a(f"s_mov_b64 exec, 0x3fffffff\nds_write_b128 v{cLIN}, v[4:7] offset:{UB-480}\ns_mov_b64 exec, 3")
for o in (W3B-48, W5B-48, W7B-48, W9B-48, W9B+2032): a(f"ds_write_b128 v{cLIN}, v[4:7] offset:{o}")
a("s_mov_b64 exec, -1")
a("s_bitcmp1_b32 s68, 1\ns_cbranch_scc1 L_cv_u2")
spoll(c_issue, c_test, sleep=opt("lsleep", 6))
uloads()
a("L_cv_u2:")
stamp(6)
a("s_waitcnt vmcnt(0)")
for q in range(4): a(f"ds_write_b128 v{cLIN}, {vr(148+4*q,4)} offset:{UB+1024*q}")
SET = [(16, 24), (56, 64)]; CA = 96
a(f"v_mov_b32 v13, v{cLIN}\ns_mov_b32 s3, 0")
o = UB - 16
wrd = f"ds_read_b64 v[128:129], v13 offset:{o-8}\nds_read_b128 v[130:133], v13 offset:{o}\nds_read_b64 v[134:135], v13 offset:{o+16}"
a(wrd)
a("s_waitcnt lgkmcnt(0)")
a("L_cv_win:")
D = 128; Pf = 96
for e in range(16):
    a(f"v_lshlrev_b32 v{Pf+e}, 16, v{D+e//2}" if e % 2 == 0 else f"v_and_b32 v{Pf+e}, 0xffff0000, v{D+e//2}")
a(wrd.replace(f"offset:{o-8}", f"offset:{o-8+1024}").replace(f"offset:{o}\n", f"offset:{o+1024}\n").replace(f"offset:{o+16}", f"offset:{o+16+1024}"))
for e in range(1, 16): a(f"v_add_f32 v{Pf+e}, v{Pf+e}, v{Pf+e-1}")
for h, base in ((1, W3B), (2, W5B), (3, W7B), (4, W9B)):
    if h == 3: a("s_cmp_eq_u32 s3, 2\ns_cbranch_scc1 L_cv_wend")
    T = 112
    for i in range(8):
        b = 4+i-h-1
        a(f"v_sub_f32 v{T+i}, v{Pf+4+i+h}, v{Pf+b}" if b >= 0 else f"v_mov_b32 v{T+i}, v{Pf+4+i+h}")
    for i in range(4): a(f"v_cvt_pk_bf16_f32 v{120+4*(h&1)+i}, v{T+2*i}, v{T+2*i+1}")
    a(f"ds_write_b128 v13, {vr(120+4*(h&1),4)} offset:{base-16}")
a("v_add_u32 v13, 1024, v13\ns_add_u32 s3, s3, 1\ns_waitcnt lgkmcnt(4)\ns_branch L_cv_win")
a("L_cv_wend:")
a("s_cmp_lg_u32 s101, 0\ns_cbranch_scc1 L_cv_rk")
a("L_cv_direct:")
a(f"v_add_u32 v8, 2304, v{cA0}\nv_add_u32 v9, 2304, v{cA1}\nv_mov_b32 v10, v{cB}")
def rd(st):
    A_, B_ = SET[st]; Rr = []
    for x in range(2):
        Rr.append(f"ds_read_b64 {vr(A_+4*x,2)}, v8 offset:{2304*(1-x)}")
        Rr.append(f"ds_read_b64 {vr(A_+4*x+2,2)}, v9 offset:{2304*(1-x)}")
    for b in range(8): Rr.append(f"ds_read_b128 {vr(B_+4*b,4)}, v10 offset:{512*b}")
    return Rr
advk = ["v_subrev_u32 v8, 288, v8", "v_subrev_u32 v9, 288, v9", "v_subrev_u32 v10, 64, v10"]
for x in rd(0) + advk: a(x)
a(f"s_setprio {opt('cprio', 2)}\ns_mov_b32 s3, 0\ns_waitcnt lgkmcnt(0)")
if PROF: a("s_cmp_lt_u32 s4, 4\ns_cbranch_scc1 L_ns7")
stamp(7)
if PROF: a("L_ns7:")
def mf(n, A_, B_, c=None): a(f"v_mfma_f32_16x16x32_bf16 {vr(CA+4*n,4)}, {vr(A_,4)}, {vr(B_,4)}, {c if c else vr(CA+4*n,4)}")
for b in range(8): mf(b, AD, SET[0][1]+4*b, "0")
for b in range(6): mf(b+2, A16, SET[0][1]+4*b)
for b in range(4): mf(b+4, AB, SET[0][1]+4*b)
a("L_cv_loop:")
for st in range(2):
    A_, B_ = SET[st]; Rr = rd(1-st); n = 0
    for x in range(2):
        for b in range(8-x):
            mf(x+b, A_+4*x, B_+4*b)
            if n < 6: a(Rr[2*n]); a(Rr[2*n+1])
            elif n < 9: a(advk[n-6])
            if st == 1 and n == 12: a("s_add_u32 s3, s3, 1\ns_cmp_lt_u32 s3, 4")
            n += 1
    a("s_waitcnt lgkmcnt(0)")
a("s_cbranch_scc1 L_cv_loop")
a("L_cv_far:")
for f in range(12):
    for h in range(2): a(f"ds_read_b64_tr_b16 {vr(16+4*f+2*h,2)}, v{cW2} offset:{256*f+128*h}")
    if f == 6: a("s_waitcnt lgkmcnt(8)")
for f in range(4):
    for h in range(2): a(f"ds_read_b64_tr_b16 {vr(64+4*f+2*h,2)}, v{cW3} offset:{512*f+128*h}")
a("s_waitcnt lgkmcnt(8)")
for f in range(12):
    for n in range(2, 8):
        i = f + 8 - 2*n
        if 0 <= i < 6: mf(n, 16+4*f, B2+4*i)
a("s_waitcnt lgkmcnt(0)")
for f in range(4):
    for n in range(4+f, 8): mf(n, 64+4*f, B3+4*(n-f-4))
if PROF: a("s_cmp_lt_u32 s4, 4\ns_cbranch_scc1 L_ns8")
stamp(8)
if PROF: a("L_ns8:")
a(f"s_lshl_b32 s14, s{S_CH}, 7\ns_add_u32 s14, s14, {YA}\ns_nop 7")
for n in range(0, 8, 2):
    o = 16 + 2*n
    a(f"v_cvt_pk_bf16_f32 v{o}, v{CA+4*n}, v{CA+4*n+1}\nv_cvt_pk_bf16_f32 v{o+1}, v{CA+4*n+2}, v{CA+4*n+3}")
    a(f"v_cvt_pk_bf16_f32 v{o+2}, v{CA+4*n+4}, v{CA+4*n+5}\nv_cvt_pk_bf16_f32 v{o+3}, v{CA+4*n+6}, v{CA+4*n+7}")
    a(f"v_permlane16_swap_b32 v{o}, v{o+2}\nv_permlane16_swap_b32 v{o+1}, v{o+3}")
    a(f"buffer_store_dwordx4 {vr(o,4)}, v{cST}, {WS}, s14 offen sc1\ns_add_u32 s14, s14, {8*81920}")
a(f"s_mul_i32 s13, s{S_CH}, 820\ns_lshr_b32 s13, s13, 16\ns_lshl_b32 s14, s13, 9\ns_add_u32 s14, s14, {YAC}\nv_lshlrev_b32 v4, 7, v0\nv_mov_b32 v5, 1")
a(f"s_waitcnt vmcnt(0)\ns_mov_b64 exec, 15\nbuffer_atomic_add v5, v4, {WS}, s14 offen sc1\ns_mov_b64 exec, -1")
a("s_setprio 0")
stamp(9)
a(f"s_cmp_eq_u32 {WV}, 7\ns_cbranch_scc1 L_fetch")
endp()
a("L_kexp:")
for q in range(3): a(f"ds_read_b128 {vr(16+4*q,4)}, v13 offset:{SCR+1024*q}")
a(f"s_lshl_b32 s9, s{S_CH}, 12\ns_add_u32 s9, s9, {KD}")
for q in range(3): a(f"s_waitcnt lgkmcnt({2-q})\nbuffer_store_dwordx4 {vr(16+4*q,4)}, v1, {WS}, s9 offen offset:{1024*q} sc1")
a(f"s_sub_u32 s8, s{S_CH}, 256\ns_lshr_b32 s8, s8, 3\ns_lshl_b32 s8, s8, 2\ns_add_u32 s8, s8, {WV}\ns_cmp_ge_u32 s8, 144\ns_cselect_b32 s12, 1, 0\ns_mul_i32 s9, s12, 144\ns_sub_u32 s8, s8, s9")
a("s_mul_i32 s9, s8, 1821\ns_lshr_b32 s9, s9, 16\ns_mul_i32 s10, s9, 36\ns_sub_u32 s8, s8, s10")
a("s_cmp_ge_u32 s8, 20\ns_cselect_b32 s10, 1, 0\ns_mul_i32 s11, s10, 20\ns_sub_u32 s8, s8, s11\ns_lshl_b32 s8, s8, 3\ns_lshl_b32 s9, s9, 1\ns_add_u32 s8, s8, s9\ns_add_u32 s8, s8, s10")
a(f"s_lshl_b32 s8, s8, 7\ns_add_u32 s8, s8, {MBOX}\ns_lshl_b32 s9, 0x1000000, s12\nv_mov_b32 v4, 0\nv_mov_b32 v5, s9")
a(f"s_waitcnt vmcnt(0)\ns_mov_b64 exec, 1\nbuffer_atomic_or v5, v4, {WS}, s8 offen sc1\ns_mov_b64 exec, -1")
stamp(12)
a("s_setprio 0\ns_mov_b32 s35, 1\ns_branch L_g2")
a("L_cv_rk:")
a("s_bitcmp1_b32 s68, 0\ns_cbranch_scc1 L_cv_k1")
spoll(sld(31, S_MB), "s_and_b32 s13, s31, s101", sleep=6)
kloads()
a("L_cv_k1:")
for q in range(3): a(f"s_waitcnt vmcnt({2-q})\nds_write_b128 v{cLIN}, {vr(32+4*q,4)} offset:{SCR+1024*q}")
stamp(4)
a("s_branch L_cv_kpart")

a("L_end:")
if PROF:
    a(f"s_lshl_b32 s93, s2, 3\ns_add_u32 s93, s93, {WV}\ns_lshl_b32 s93, s93, 6\ns_add_u32 s93, s93, {PROFB}")
    a(f"s_memrealtime s[94:95]\ns_waitcnt lgkmcnt(0)\ns_mov_b32 s87, s94\ns_mov_b32 s72, s{S_SPIN}")
    for i in range(16): a(f"v_mov_b32 v{224+i}, s{72+i}")
    a("v_mov_b32 v255, 0\ns_mov_b64 exec, 1")
    for i in range(4): a(f"buffer_store_dwordx4 {vr(224+4*i,4)}, v255, {WS}, s93 offen offset:{16*i}")
    if opt("dbgmax", 0):
        a(f"v_not_b32 v238, v238\ns_and_b32 s93, {WV}, 3\ns_cmp_lg_u32 s93, 0\ns_cbranch_scc1 L_exit")
        sel0 = {1: 14, 2: 15, 3: 1, 4: 2, 5: 5, 6: 6, 7: 8, 8: 10}
        sel4 = {9: 10, 10: 4, 11: 7, 12: 8, 13: 9}
        a(f"s_cmp_lg_u32 {WV}, 0\ns_cbranch_scc1 L_dbg4")
        for d, i in sel0.items(): a(f"buffer_atomic_umax v{224+i}, v255, {DBG}, 0 offen offset:{4*d} sc1")
        a("s_branch L_exit")
        a("L_dbg4:")
        for d, i in sel4.items(): a(f"buffer_atomic_umax v{224+i}, v255, {DBG}, 0 offen offset:{4*d} sc1")
a("L_exit:")
a("s_endpgm")

hdr = open("cdna_kernels/%s.s.ref" % NAME).read().split("; Override launch")[0]
out = hdr + "; @launch grid=(256,1,1) block=(512,1,1) lds=163840\n"
out += '.amdgcn_target "amdgcn-amd-amdhsa--gfx950"\n.text\n' + a.text()
out += f""".section .rodata,"a"
.p2align 6
.amdhsa_kernel {KN}
  .amdhsa_next_free_vgpr 256
  .amdhsa_next_free_sgpr 102
  .amdhsa_accum_offset 256
  .amdhsa_group_segment_fixed_size 0
  .amdhsa_kernarg_size 136
  .amdhsa_user_sgpr_count 2
  .amdhsa_user_sgpr_kernarg_segment_ptr 1
  .amdhsa_system_sgpr_workgroup_id_x 1
.end_amdhsa_kernel
"""
path = [x for x in sys.argv[1:] if not x.startswith("--")]
open(path[0] if path else "f.s", "w").write(out)
```

```python
import sys, struct, math
sys.path.insert(0, "dev")
from asmlib import Asm, vr, sr

NAME = "parallel_sum__ssm_conv_s4__dense_activation_gelu__prompt"
KN = NAME + "_kernel"
PROF = "--prof" in sys.argv
def opt(name, default):
    for x in sys.argv:
        if x.startswith("--%s=" % name): return int(x.split("=")[1])
    return default
def f32(x): return "0x%08x" % struct.unpack("<I", struct.pack("<f", x))[0]

XNT, KD, YA, W2F = 0x000000, 0x280000, 0x500000, 0x780000
CLR = 0x9A0000
STATS, CSUM, MBOX, LNC, W2C, YAC = CLR, CLR+0x2000, CLR+0x10000, CLR+0x18000, CLR+0x1C000, CLR+0x1A000
CSP = 13824
PROFB, HF = 0x9C0000, 0xA00000
WS_SIZE = 0x1100000
OOB = "0x7f000000"
P = dict(u=16, are=18, aim=20, bre=22, bim=24, cre=26, cim=28, ldt=30, dsk=32, bx=34, w1=36, b1=38, w2=40, b2=42, out=44, dbg=46, ws=48)
S_WS, S_A, S_B, S_DBG = 52, 56, 60, 64
S_WAVE, S_XR, S_XC, S_J, S_SPIN, S_CH = 4, 5, 6, 7, 50, 51
S_MB = 34
WV = f"s{S_WAVE}"
WS = f"s[{S_WS}:{S_WS+3}]"; SA = f"s[{S_A}:{S_A+3}]"; SB = f"s[{S_B}:{S_B+3}]"; DBG = f"s[{S_DBG}:{S_DBG+3}]"
STG = 40960
NST = 3
AREG, BREG0, BREG = 20480, 81920, 20480
B7 = BREG0 + 3*BREG
CNT = B7 + 20096
YAT = B7
UB = 5536
W3B, W5B, W7B, W9B = 9664, 12768, 15872, 17952
SCR = 512
IMG, T2, T3 = SCR, SCR+1136, SCR+2416
STATL = BREG0 + 2*BREG
NT = " nt" if opt("nt", 0) else ""
NT1 = " nt" if opt("nt1", 1) else ""

a = Asm()
G2F = " sc1" if opt("g2sc1", 1) else ""
def srd(d, ptr, size):
    a(f"s_mov_b32 s{d}, s{ptr}\ns_mov_b32 s{d+1}, s{ptr+1}\ns_mov_b32 s{d+2}, {hex(size)}\ns_mov_b32 s{d+3}, 0x20000")
def stamp(idx):
    if PROF: a(f"s_memtime s[92:93]\ns_waitcnt lgkmcnt(0)\ns_sub_u32 s{72+idx}, s92, s90")
def lstamp(o):
    if PROF: a(f"s_memtime s[92:93]\ns_waitcnt lgkmcnt(0)\ns_sub_u32 s92, s92, s90\ns_add_u32 m0, s3, {o}\nv_writelane_b32 v200, s92, m0")
def endp(): a("s_branch L_end")
def cmul(d, x, y, t):
    a(f"v_pk_mul_f32 {vr(t,2)}, {vr(x,2)}, {vr(y,2)} op_sel:[0,0] op_sel_hi:[0,1]")
    a(f"v_pk_fma_f32 {vr(d,2)}, {vr(x,2)}, {vr(y,2)}, {vr(t,2)} op_sel:[1,1,0] op_sel_hi:[1,0,1] neg_lo:[0,1,0]")
def poll(issue, test, sleep=4, issued=True):
    L = a.label("L_poll"); D = a.label("L_pdone")
    if not issued: a(issue)
    a(f"{L}:")
    a("s_waitcnt vmcnt(0)")
    a(test)
    a(f"s_cbranch_scc1 {D}")
    a(f"s_add_u32 s{S_SPIN}, s{S_SPIN}, 1\ns_cmp_gt_u32 s{S_SPIN}, 100000\ns_cbranch_scc1 L_exit")
    a(f"s_sleep {sleep}")
    a(issue)
    a(f"s_branch {L}")
    a(f"{D}:")
def sld(d, off): return f"s_load_dword s{d}, s[{P['ws']}:{P['ws']+1}], s{off} glc"
def spoll(issue, test, sleep=4, issued=False, far=None):
    L = a.label("L_spoll"); D = a.label("L_sdone")
    if not issued: a(issue)
    a(f"{L}:")
    a("s_waitcnt lgkmcnt(0)")
    a(test)
    a(f"s_cbranch_scc1 {D}")
    a(f"s_add_u32 s{S_SPIN}, s{S_SPIN}, 1\ns_cmp_gt_u32 s{S_SPIN}, 100000\ns_cbranch_scc1 L_exit")
    a(f"s_sleep {sleep}")
    if far:
        N = a.label("L_near")
        a(f"{far[0]}\ns_cbranch_scc1 {N}\ns_sleep {far[1]}")
        a(f"{N}:")
    a(issue)
    a(f"s_branch {L}")
    a(f"{D}:")
def arrive_issue(sreg, va, vb):
    a(f"v_mov_b32 v{va}, 0\nv_mov_b32 v{vb}, 1\ns_mov_b64 exec, 1\nbuffer_atomic_add v{vb}, v{va}, {WS}, s{sreg} offen sc0 sc1\ns_mov_b64 exec, -1")
def arrive_check(st, vb, n, then):
    L = a.label("L_arr")
    a(f"s_waitcnt vmcnt(0)\nv_readfirstlane_b32 s{st}, v{vb}\ns_cmp_lg_u32 s{st}, {n-1}\ns_cbranch_scc1 {L}")
    a(then)
    a(f"{L}:")
def push_all(bitreg, off, va, vb, st):
    t = f"v_lshlrev_b32 v{va}, 7, v0\nv_mov_b32 v{vb}, s{bitreg}\ns_mov_b32 s{st}, {MBOX+off}\n"
    for i in range(4): t += f"buffer_atomic_or v{vb}, v{va}, {WS}, s{st} offen sc1\ns_add_u32 s{st}, s{st}, 8192\n"
    return t
def few(mask, ins): return f"s_mov_b64 exec, {mask}\n{ins}\ns_mov_b64 exec, -1"
def clr_issue(v, vo): return few(15, f"buffer_load_dword v{v}, v{vo}, {DBG}, 0 offen sc1")
def clr_test(v): return f"v_cmp_ne_u32 vcc, 0, v{v}\ns_and_b32 vcc_lo, vcc_lo, 15\ns_cmp_eq_u32 vcc_lo, 15"
def nz_test(v): return f"v_cmp_ne_u32 vcc, 0, v{v}\ns_cmp_eq_u64 vcc, -1"
def zero(b, n):
    for i in range(0, n, 2): a(f"v_pk_mov_b32 {vr(b+i,2)}, 0, 0")

cLIN, cIMG2, cT2, cT3, cW2, cW3, cST, cKW1, cKW2, cA0, cA1, cB, cU = 247, 248, 249, 250, 251, 252, 253, 254, 255, 231, 236, 237, 146
AD, AB, A16 = 204, 224, 232
RS = opt("rowsplit", 0)
def tile_rc(rt, cb, tmp):
    if RS: return f"s_and_b32 s{rt}, s2, 7\ns_lshl_b32 s{rt}, s{rt}, 2\ns_lshr_b32 s{cb}, s{S_J}, 3\ns_add_u32 s{rt}, s{rt}, s{cb}\ns_and_b32 s{cb}, s{S_J}, 7"
    return (f"s_lshl_b32 s{rt}, s{S_XR}, 3\ns_lshr_b32 s{cb}, s{S_J}, 2\ns_add_u32 s{rt}, s{rt}, s{cb}\n"
            f"s_lshl_b32 s{cb}, s{S_XC}, 2\ns_and_b32 s{tmp}, s{S_J}, 3\ns_add_u32 s{cb}, s{cb}, s{tmp}")
def conv_setup(t=64):
    r_, g_, h_, f_, x_, y_, z_ = (f"v{t+i}" for i in range(7))
    a(f"v_lshlrev_b32 {x_}, 4, v0\nv_add_u32 v{cLIN}, s69, {x_}\nv_min_u32 {z_}, 5, v0\nv_lshl_add_u32 v{cIMG2}, {z_}, 4, s69")
    a(f"v_lshlrev_b32 {x_}, 6, {z_}\nv_lshrrev_b32 {y_}, 1, {z_}\nv_lshl_add_u32 {x_}, {y_}, 4, {x_}\nv_add_u32 v{cKW2}, s69, {x_}")
    a(f"v_lshlrev_b32 {x_}, 6, v0\nv_lshrrev_b32 {y_}, 1, v0\nv_lshl_add_u32 {x_}, {y_}, 4, {x_}\nv_add_u32 v{cKW1}, s69, {x_}")
    a(f"v_lshrrev_b32 {x_}, 2, v0\nv_mul_u32_u24 {x_}, 40960, {x_}\nv_and_b32 {y_}, 3, v0\nv_lshl_add_u32 v{cU}, {y_}, 4, {x_}")
    a(f"v_and_b32 {r_}, 15, v0\nv_lshrrev_b32 {g_}, 4, v0\nv_and_b32 {h_}, 1, {g_}\nv_lshrrev_b32 {f_}, 1, {g_}")
    a(f"v_sub_u32 {x_}, 15, {r_}\nv_and_b32 {y_}, 1, {x_}\nv_sub_u32 {x_}, {x_}, {y_}\nv_lshlrev_b32 {x_}, 1, {x_}")
    a(f"v_lshl_add_u32 {z_}, {g_}, 1, {y_}\nv_mul_u32_u24 {z_}, 160, {z_}\nv_add_u32 {z_}, {z_}, {x_}\ns_add_u32 s10, s69, {T2}\nv_add_u32 v{cT2}, s10, {z_}")
    a(f"v_lshl_add_u32 {z_}, {h_}, 1, {y_}\nv_mul_u32_u24 {z_}, 160, {z_}\nv_add_u32 {z_}, {z_}, {x_}\nv_lshl_add_u32 {z_}, {f_}, 4, {z_}\ns_add_u32 s10, s69, {T3}\nv_add_u32 v{cT3}, s10, {z_}")
    a(f"v_mul_u32_u24 {x_}, {W5B-W3B}, {h_}\nv_lshlrev_b32 {y_}, 3, {g_}\nv_sub_u32 {x_}, {x_}, {y_}\nv_lshl_add_u32 {x_}, {r_}, 3, {x_}\ns_add_u32 s10, s69, {W3B-8}\nv_add_u32 v{cW2}, s10, {x_}")
    a(f"v_mul_u32_u24 {x_}, {W9B-W7B-16}, {h_}\nv_lshl_add_u32 {x_}, {f_}, 8, {x_}\nv_lshl_add_u32 {x_}, {r_}, 3, {x_}\ns_add_u32 s10, s69, {W7B-16}\nv_add_u32 v{cW3}, s10, {x_}")
    a(f"v_lshlrev_b32 {x_}, 2, {h_}\nv_lshrrev_b32 {z_}, 2, {r_}\nv_add_u32 {x_}, {x_}, {z_}\nv_mul_u32_u24 {x_}, 81920, {x_}\nv_lshl_add_u32 {x_}, {f_}, 6, {x_}\nv_and_b32 {z_}, 3, {r_}\nv_lshl_add_u32 v{cST}, {z_}, 4, {x_}")
    a(f"s_add_u32 s10, s69, {UB-32}\nv_lshlrev_b32 {x_}, 5, {r_}\nv_lshl_add_u32 {x_}, {g_}, 4, {x_}\nv_add_u32 v{cB}, s10, {x_}")
    a(f"v_sub_u32 {z_}, {y_}, {r_}\nv_add_u32 {z_}, 15, {z_}\nv_sub_u32 {y_}, {r_}, {y_}")
    a(f"v_lshrrev_b32 {x_}, 4, {z_}\nv_lshlrev_b32 {x_}, 4, {x_}\nv_lshl_add_u32 {x_}, {z_}, 3, {x_}\nv_add_u32 v{cA0}, s69, {x_}")
    a(f"v_add_u32 {z_}, 4, {z_}\nv_lshrrev_b32 {x_}, 4, {z_}\nv_lshlrev_b32 {x_}, 4, {x_}\nv_lshl_add_u32 {x_}, {z_}, 3, {x_}\nv_add_u32 v{cA1}, s69, {x_}")
    a(f"v_mov_b32 {r_}, 0xffff\nv_mov_b32 {g_}, 0xffff0000\nv_mov_b32 {h_}, -1")
    for k in range(4):
        a(f"v_cmp_eq_u32 vcc, {2*k-16}, {y_}\nv_cndmask_b32 v{AD+k}, 0, {r_}, vcc\nv_cmp_eq_u32 vcc, {2*k+1-16}, {y_}\nv_cndmask_b32 v{AD+k}, v{AD+k}, {g_}, vcc")
        a(f"v_cmp_eq_u32 vcc, {2*k-12}, {y_}\nv_cndmask_b32 v{AB+k}, 0, {h_}, vcc\nv_cmp_eq_u32 vcc, {2*k-13}, {y_}\nv_cndmask_b32 v{AB+k}, v{AB+k}, {r_}, vcc\nv_cmp_eq_u32 vcc, {2*k-11}, {y_}\nv_cndmask_b32 v{AB+k}, v{AB+k}, {g_}, vcc")
def uloads():
    a(f"s_lshl_b32 s10, s{S_CH}, 6")
    for q in range(4): a(f"buffer_load_dwordx4 {vr(148+4*q,4)}, v{cU}, {WS}, s10 offen sc1\ns_add_u32 s10, s10, 655360")
def kloads():
    a(f"s_lshl_b32 s10, s{S_CH}, 12\ns_add_u32 s10, s10, {KD}")
    for q in range(3): a(f"buffer_load_dwordx4 {vr(32+4*q,4)}, v1, {WS}, s10 offen offset:{1024*q} sc1")
lnc_addr = f"s_mul_i32 s13, s{S_CH}, 410\ns_lshr_b32 s13, s13, 16\ns_lshl_b32 s13, s13, 4\ns_and_b32 s100, s2, 15\ns_add_u32 s100, s100, s13\ns_lshl_b32 s100, s100, 7\ns_add_u32 s100, s100, {LNC}"

a.raw(f".globl {KN}\n.p2align 8\n.type {KN},@function")
a(f"{KN}:")
a("s_cmp_ge_u32 s2, 256\ns_cbranch_scc1 L_exit")
a("s_load_dwordx16 s[16:31], s[0:1], 0\ns_load_dwordx16 s[32:47], s[0:1], 64\ns_load_dwordx2 s[48:49], s[0:1], 128")
if opt("cpf", 1):
    a(f"s_cmp_ge_u32 s2, {opt('cpfn', 8)}\ns_cbranch_scc1 L_nocpf")
    a("s_getpc_b64 s[12:13]")
    a("L_cpfb:")
    a("v_lshlrev_b32 v20, 7, v0\nv_min_u32 v20, L_exit-L_cpfb, v20\nv_mov_b32 v21, s13\nv_add_co_u32 v20, vcc, s12, v20\nv_addc_co_u32 v21, vcc, 0, v21, vcc")
    a("global_load_dword v22, v[20:21], off")
    a("L_nocpf:")
if PROF:
    a("s_memtime s[90:91]\ns_memrealtime s[94:95]")
    for i in range(16): a(f"s_mov_b32 s{72+i}, 0")
a("v_lshrrev_b32 v1, 6, v0\nv_and_b32 v0, 63, v0")
a(f"v_readfirstlane_b32 {WV}, v1")
a(f"s_bfe_u32 s{S_XR}, s2, 0x20001\ns_and_b32 s{S_XC}, s2, 1\ns_lshr_b32 s{S_J}, s2, 3\ns_mov_b32 s{S_SPIN}, 0")
a(f"s_lshl_b32 s8, s{S_XC}, 2\ns_sub_u32 s8, 20, s8")
a(f"s_cmp_eq_u32 s{S_XC}, 0\ns_cselect_b32 s9, 52, 64\ns_mul_i32 s9, s9, s{S_J}\ns_lshr_b32 s9, s9, 8")
a(f"s_sub_u32 s11, 5, s{S_XC}\ns_mul_i32 s11, s11, s9\ns_sub_u32 s10, s{S_J}, s11\ns_mul_i32 s11, s{S_XC}, 5\ns_add_u32 s10, s10, s11")
a(f"s_lshl_b32 s11, s{S_XR}, 2\ns_add_u32 s9, s9, s11")
a("v_lshrrev_b32 v4, 3, v0\nv_mul_u32_u24 v4, 1280, v4")
a("v_and_b32 v5, 7, v0\nv_lshrrev_b32 v6, 4, v0\nv_xor_b32 v5, v5, v6\nv_lshl_add_u32 v2, v5, 4, v4")
a("v_xor_b32 v5, 4, v5\nv_lshl_add_u32 v3, v5, 4, v4\nv_add_u32 v3, 10240, v3\nv_add_u32 v4, 20480, v2\nv_add_u32 v5, 20480, v3")
for i in range(3):
    a(f"v_add_u32 v6, {64*i}, v0\nv_mul_u32_u24 v7, 2731, v6\nv_lshrrev_b32 v7, 16, v7\nv_lshlrev_b32 v14, 1, v7\nv_and_b32 v14, 4, v14\nv_xor_b32 v6, v6, v14")
    a(f"v_mul_u32_u24 v7, 3072, v7\nv_lshl_add_u32 v{8+i}, v6, 4, v7\nv_add_u32 v{11+i}, 27648, v{8+i}")
a(f"s_and_b32 s99, {WV}, 3")
a("s_lshl_b32 s11, s9, 7\ns_lshl_b32 s12, s99, 5\ns_add_u32 s11, s11, s12\ns_mul_i32 s11, s11, 1280")
a("s_mul_i32 s12, s99, 55296\ns_mul_i32 s13, s10, 384\ns_add_u32 s12, s12, s13")
a("s_lshl_b32 s13, s99, 12\ns_mul_i32 s14, s99, 6144\ns_add_u32 s14, s14, 16384\ns_mov_b32 s3, 0")
a(f"s_and_b32 s15, s9, 3\ns_mul_i32 s15, s15, 5\ns_add_u32 s15, s15, 1\ns_lshr_b32 s15, s15, 1\ns_lshl_b32 s68, s10, 1\ns_add_u32 s15, s15, s68\ns_add_u32 s15, s15, s{S_XR}")
a("s_mul_i32 s68, s15, 26\ns_lshr_b32 s68, s68, 8\ns_mul_i32 s68, s68, 10\ns_sub_u32 s15, s15, s68")
a("s_lshl_b32 s68, s15, 7\ns_add_u32 s11, s11, s68\ns_mul_i32 s68, s15, 221184\ns_add_u32 s12, s12, s68\ns_mov_b32 s69, 0")
for d, size in ((S_WS, WS_SIZE), (S_A, 2621440), (S_B, 2211840), (S_DBG, 256)): a(f"s_mov_b32 s{d+2}, {hex(size)}\ns_mov_b32 s{d+3}, 0x20000")
a("v_mov_b32 v146, 0\nv_mov_b32 v253, 0\ns_mov_b32 s101, 0")
a("s_waitcnt lgkmcnt(0)")
for d, nm in ((S_A, 'u'), (S_B, 'w1'), (S_WS, 'ws'), (S_DBG, 'dbg')): a(f"s_mov_b64 s[{d}:{d+1}], s[{P[nm]}:{P[nm]+1}]")
a(f"s_lshl_b32 s{S_MB}, s2, 7\ns_add_u32 s{S_MB}, s{S_MB}, {MBOX}")
if PROF:
    a("s_mov_b32 s86, s94"); stamp(13)
if opt("g2only", 0):
    a(f"v_mov_b32 v174, 0\ns_mov_b32 s35, 1\ns_cmp_lt_u32 {WV}, 4\ns_cbranch_scc1 L_g2\ns_branch L_end")
a(f"s_cmp_ge_u32 s{S_J}, s8\ns_cbranch_scc1 L_aux")
a(f"s_cmp_lt_u32 {WV}, 4\ns_cbranch_scc1 L_comp")

a("s_mov_b32 s8, s99")
stamp(1)
S_C = 96
a("L_ld_loop:")
a("s_cmp_lt_u32 s3, 2\ns_cbranch_scc1 L_ld_nowait\ns_cmp_eq_u32 s3, 2\ns_cbranch_scc1 L_ld_setup")
a("L_ld_wait:")
a("s_waitcnt vmcnt(10)")
lstamp(0)
a("s_barrier")
lstamp(16)
a("L_ld_nowait:")
a("s_add_u32 s70, s69, s13\ns_add_u32 s71, s69, s14")
for q in range(4): a(f"s_add_u32 m0, s70, {1024*q}\nbuffer_load_dwordx4 v{2+q}, {SA}, s11 offen{NT} lds")
for i in range(6): a(f"s_add_u32 m0, s71, {1024*i}\nbuffer_load_dwordx4 v{8+i}, {SB}, s12 offen{NT} lds")
a("s_add_u32 s11, s11, 128\ns_add_u32 s12, s12, 221184\ns_add_u32 s15, s15, 1\ns_cmp_lt_u32 s15, 10\ns_cbranch_scc1 L_ld_nowrap")
a("s_sub_u32 s11, s11, 1280\ns_sub_u32 s12, s12, 2211840\ns_mov_b32 s15, 0")
a("L_ld_nowrap:")
a(f"s_add_u32 s69, s69, {STG}\ns_cmp_eq_u32 s69, {NST*STG}\ns_cselect_b32 s69, 0, s69")
a(f"s_cmp_lg_u32 s3, 7\ns_cbranch_scc1 L_ld_n5\ns_load_dwordx4 s[28:31], s[{P['dbg']}:{P['dbg']+1}], 0")
a("L_ld_n5:")
a("s_add_u32 s3, s3, 1\ns_cmp_lt_u32 s3, 10\ns_cbranch_scc1 L_ld_loop")
s_issue = f"buffer_load_dwordx4 v[16:19], v1, {WS}, s18 offen sc1\nbuffer_load_dwordx4 v[20:23], v6, {WS}, s18 offen offset:1024 sc1\nbuffer_load_dword v24, v7, {WS}, s20 offen sc1"
wc_issue = sld(26, 25)
wc_test = "s_cmp_lg_u32 s26, 0"
a("s_waitcnt lgkmcnt(0)\ns_and_b32 s28, s28, s29\ns_and_b32 s30, s30, s31\ns_and_b32 s24, s28, s30")
a(s_issue)
for w in (13, 3):
    if w == 3:
        a("s_mov_b32 s31, 0\ns_mov_b32 s33, 0\ns_cmp_eq_u32 s101, 0\ns_cbranch_scc1 L_ld_ncv")
        a(sld(31, S_MB) + "\n" + sld(33, 100))
        a("L_ld_ncv:")
    a(f"s_waitcnt vmcnt({w})")
    lstamp(0)
    a("s_barrier")
    lstamp(16)
    if PROF: a("s_add_u32 s3, s3, 1")
a("s_cmp_lg_u32 s24, 0\ns_cbranch_scc1 L_ld_clr")
poll(clr_issue(15, 14), clr_test(15), sleep=8, issued=False)
a(s_issue)
a("s_waitcnt lgkmcnt(0)\ns_mov_b32 s31, 0\ns_mov_b32 s33, 0")
a("L_ld_clr:")
s_test = "v_and_b32 v4, v17, v19\nv_and_b32 v5, v21, v23\nv_and_b32 v4, v4, v5\nv_and_b32 v4, 1, v4\nv_min_u32 v4, v4, v24\n" + nz_test(4)
poll(s_issue, s_test, sleep=8)
a("ds_write_b128 v25, v[16:19]\nds_write_b128 v26, v[20:23] offset:1024\nds_write_b32 v27, v24")
a("s_waitcnt lgkmcnt(0)\ns_mov_b32 s68, 0\ns_and_b32 s13, s31, s101\ns_cbranch_scc0 L_ld_nk0")
kloads()
a("s_mov_b32 s68, 1")
a("L_ld_nk0:")
a("s_cmp_ge_u32 s33, 64\ns_cbranch_scc0 L_ld_nk")
uloads()
a("s_or_b32 s68, s68, 2")
a("L_ld_nk:")
a("s_barrier")
lstamp(16)
if PROF:
    a(f"s_lshl_b32 s93, s2, 9\ns_lshl_b32 s92, s8, 7\ns_add_u32 s93, s93, s92\ns_add_u32 s93, s93, {PROFB+0x20000}\nv_lshlrev_b32 v201, 2, v0\ns_mov_b32 exec_hi, 0\nbuffer_store_dword v200, v201, {WS}, s93 offen\ns_mov_b32 exec_hi, -1")
stamp(2)
a(f"s_cmp_eq_u32 {WV}, 7\ns_cbranch_scc1 L_fetch")
a(f"s_cmp_eq_u32 {WV}, 6\ns_cbranch_scc1 L_park")
a(f"s_cmp_eq_u32 s101, 0\ns_cbranch_scc1 L_end\ns_mul_i32 s69, {WV}, {AREG}\ns_branch L_cv_upart")
wc_prep = f"s_and_b32 s25, s2, 31\ns_lshl_b32 s25, s25, 7\ns_add_u32 s25, s25, {W2C+1024}"
a("L_ld_setup:")
a("v_lshlrev_b32 v1, 4, v0\nv_and_b32 v7, 31, v0\nv_lshlrev_b32 v6, 4, v7\nv_lshlrev_b32 v7, 2, v7\nv_and_b32 v14, 3, v0\nv_lshlrev_b32 v14, 2, v14")
a(f"s_lshl_b32 s20, s9, 9\ns_lshl_b32 s23, s8, 7\ns_add_u32 s20, s20, s23\ns_add_u32 s20, s20, {STATS}\ns_add_u32 s23, s23, {STATL+6144}\nv_add_u32 v27, s23, v7")
a(f"s_mul_i32 s18, s10, 1536\ns_mul_i32 s19, s8, {CSP}\ns_add_u32 s18, s18, s19\ns_add_u32 s18, s18, {CSUM}")
a(f"s_mul_i32 s23, s8, 1536\ns_add_u32 s23, s23, {STATL}\nv_add_u32 v25, s23, v1\nv_add_u32 v26, s23, v6\nv_mov_b32 v30, {CNT}")
zero(32, 4)
a("ds_write_b128 v30, v[32:35]")
a(wc_prep)
a(f"s_mul_i32 s23, s{S_XR}, 36\ns_mul_i32 s22, s{S_XC}, 20\ns_add_u32 s23, s23, s22\ns_add_u32 s23, s23, s{S_J}\ns_mul_i32 s22, s8, 144\ns_add_u32 s23, s23, s22\ns_cmp_ge_u32 s23, 192\ns_cbranch_scc1 L_ld_wait")
a(f"s_lshr_b32 s22, s23, 2\ns_lshl_b32 s22, s22, 3\ns_and_b32 s23, s23, 3\ns_add_u32 s{S_CH}, s23, s22\ns_add_u32 s{S_CH}, s{S_CH}, 256\ns_lshl_b32 s101, 0x1000000, s8")
a(f"s_mov_b32 s96, s69\ns_mov_b32 s97, s10\ns_mov_b32 s98, s13\ns_mul_i32 s69, {WV}, {AREG}")
conv_setup()
a(lnc_addr)
a(f"s_lshl_b32 s22, s{S_CH}, 1\ns_and_b32 s23, s22, 2\ns_sub_u32 s22, s22, s23\ns_load_dword s99, s[{P['dsk']}:{P['dsk']+1}], s22")
a("s_lshl_b32 s23, s23, 3\ns_waitcnt lgkmcnt(0)\ns_lshr_b32 s99, s99, s23\ns_and_b32 s99, s99, 0xffff\nv_mov_b32 v147, s99")
a("s_mov_b32 s69, s96\ns_mov_b32 s10, s97\ns_mov_b32 s13, s98\ns_branch L_ld_wait")

G2H = [16, 32, 48, 224]; G2W = [164, 184, 204, 144]; AC2 = 64
K0 = [0, 13, 26, 40, 54]
def g2_setup():
    a(tile_rc(30, 31, 29))
    a(f"s_mul_i32 s28, {WV}, 7168\ns_max_u32 s28, s28, 1024\ns_sub_u32 s28, s28, 1024")
    a(f"s_mul_i32 s27, s30, {4*55296}\ns_add_u32 s27, s27, s28\ns_add_u32 s27, s27, {HF}")
    for i in range(4):
        a(f"s_add_u32 s29, {WV}, {i}\ns_and_b32 s29, s29, 3\ns_mul_i32 s29, s29, 55296\ns_add_u32 s{18+i}, s27, s29")
    a(f"s_mul_i32 s22, s31, {5*55296}\ns_add_u32 s22, s22, s28\ns_add_u32 s22, s22, {W2F}")
    for i in range(1, 5): a(f"s_add_u32 s{22+i}, s22, {55296*i}")
    a(f"s_lshl_b32 s27, s30, 6\ns_lshl_b32 s29, {WV}, 4\ns_add_u32 s27, s27, s29\ns_mul_i32 s27, s27, 1280\ns_mul_i32 s29, s31, 160\ns_add_u32 s27, s27, s29")
    masks = []
    for w in range(4):
        c0, c1 = max(0, 7*w-1)//3, (7*w+5)//3
        m = ((1 << (c1-c0+1)) - 1) << c0
        masks.append(m | (m << 11))
    a(f"s_mov_b32 s28, {hex(masks[0])}\ns_cmp_eq_u32 {WV}, 1\ns_cselect_b32 s28, {hex(masks[1])}, s28\ns_cmp_eq_u32 {WV}, 2\ns_cselect_b32 s28, {hex(masks[2])}, s28\ns_cmp_eq_u32 {WV}, 3\ns_cselect_b32 s28, {hex(masks[3])}, s28")
    a(f"v_lshlrev_b32 v252, 4, v0\ns_cmp_eq_u32 {WV}, 0\ns_cselect_b32 s30, {OOB}, 0\nv_add_u32 v253, s30, v252")
    a("v_lshrrev_b32 v255, 4, v0\nv_lshlrev_b32 v255, 3, v255\nv_and_b32 v254, 15, v0\nv_mul_u32_u24 v254, 160, v254\nv_add_u32 v254, v254, v255")
    srd(S_B, P['b2'], 1280)
def ldh(k, o=0, v=252): return [f"buffer_load_dwordx4 {vr(G2H[k]+4*i,4)}, v{v}, {WS}, s{18+i} offen offset:{o}{G2F}" for i in range(4)]
def ldw(k, o=0, v=252): return [f"buffer_load_dwordx4 {vr(G2W[k]+4*i,4)}, v{v}, {WS}, s{22+i} offen offset:{o}{G2F}" for i in range(5)]
OUTV = (8, 9, 13)
def xb_loads():
    for q in range(3):
        a(f"v_add_u32 v10, {64*q}, v0\nv_mul_u32_u24 v11, 6554, v10\nv_lshrrev_b32 v11, 16, v11\nv_mul_u32_u24 v11, 1120, v11\nv_lshl_add_u32 v{OUTV[q]}, v10, 4, v11")
    a(f"v_cmp_gt_u32 vcc, 32, v0\nv_mov_b32 v10, {OOB}\nv_cndmask_b32 v13, v10, v13, vcc\ns_mul_i32 s10, {WV}, {AREG}")
    for q in range(3): a(f"s_add_u32 m0, s10, {15360+1024*q}\nbuffer_load_dwordx4 v{OUTV[q]}, {SA}, s27 offen lds")
    a(f"s_add_u32 m0, s10, {18432}\ns_mov_b64 exec, 0x3ff\nbuffer_load_dwordx4 v252, {SB}, s29 offen lds\ns_mov_b64 exec, -1")
    a("v_add_u32 v2, s10, v254\nv_add_u32 v3, s10, v255")
off = lambda t: 1024*t if t < 7 else 27648 + 1024*(t-7)
w_pre = ldw(0, 0) + ldw(1, 1024) + ldw(2, 2048) + ldw(3, 3072)

a("L_comp:")
ACC = 72; BUF = [16, 44]; SF = 172
g2_setup()
a("v_and_b32 v13, 31, v0\nv_lshrrev_b32 v14, 5, v0")
a(f"s_lshl_b32 s8, {WV}, 12\nv_lshlrev_b32 v15, 7, v13\nv_add_u32 v15, s8, v15")
a("v_bfe_u32 v7, v0, 1, 3\nv_xor_b32 v7, v7, v14")
for ks in range(4): a(f"v_xor_b32 v1, {2*ks}, v7\nv_lshl_add_u32 v{2+ks}, v1, 4, v15")
a("v_bfe_u32 v1, v0, 2, 2\nv_lshl_add_u32 v1, v14, 3, v1\nv_mul_u32_u24 v1, 384, v1")
a("v_bfe_u32 v7, v0, 4, 1\nv_lshl_add_u32 v1, v7, 5, v1\nv_and_b32 v7, 3, v0\nv_lshl_add_u32 v1, v7, 3, v1\nv_add_u32 v1, 16384, v1")
a("v_bfe_u32 v7, v0, 3, 1\nv_lshlrev_b32 v7, 6, v7\nv_add_u32 v6, v1, v7\nv_sub_u32 v196, v1, v7\nv_mov_b32 v197, v196")
for i in range(5): a(f"v_mov_b32 v{8+i}, v{2+i}")
zero(ACC, 96)
a(f"s_lshl_b32 s11, {WV}, 7\ns_add_u32 s11, s11, {STATL+6144}\nv_lshl_add_u32 v168, v13, 2, s11\nv_mul_u32_u24 v169, 3072, v14\nv_lshl_add_u32 v169, v13, 3, v169\nv_add_u32 v169, {STATL}, v169")
a("v_bfe_u32 v1, v0, 4, 1\nv_mul_u32_u24 v1, 55296, v1\nv_lshl_add_u32 v1, v14, 8, v1\nv_and_b32 v7, 15, v0\nv_lshl_add_u32 v1, v7, 4, v1")
a(f"s_lshl_b32 s8, s9, 3\ns_lshl_b32 s11, {WV}, 1\ns_add_u32 s8, s8, s11\ns_mul_i32 s8, s8, 54\ns_mul_i32 s11, s10, 3\ns_add_u32 s8, s8, s11\ns_lshl_b32 s8, s8, 10\ns_add_u32 s8, s8, {HF}")
a(f"s_lshl_b32 s12, s9, 1\ns_lshr_b32 s11, {WV}, 1\ns_add_u32 s12, s12, s11")
if RS: a(f"s_and_b32 s11, s12, 3\ns_lshl_b32 s11, s11, 6\ns_lshr_b32 s12, s12, 2\ns_add_u32 s12, s12, s11\ns_lshl_b32 s12, s12, 7\ns_add_u32 s12, s12, {MBOX}")
else: a(f"s_and_b32 s11, s12, 7\ns_lshl_b32 s11, s11, 5\ns_lshr_b32 s12, s12, 3\ns_lshl_b32 s12, s12, 1\ns_add_u32 s12, s12, s11\ns_lshl_b32 s12, s12, 7\ns_add_u32 s12, s12, {MBOX}")
a(f"s_and_b32 s11, {WV}, 1\ns_mul_i32 s11, s11, 11\ns_add_u32 s11, s11, s10\ns_lshl_b32 s11, 1, s11")
if RS: a("v_lshlrev_b32 v15, 10, v0\nv_mov_b32 v14, s11")
else: a("v_and_b32 v15, 3, v0\nv_lshlrev_b32 v15, 10, v15\nv_bfe_u32 v7, v0, 2, 1\nv_lshl_add_u32 v15, v7, 7, v15\nv_mov_b32 v14, s11")
a(wc_prep.replace("s25", "s69"))
a("s_mov_b32 s15, 0\ns_mov_b32 s3, 0")
def reads(ks, b):
    r = [f"ds_read_b128 {vr(b,4)}, v{8+ks}"]
    for ft in range(6):
        for s in range(2):
            r.append(f"ds_read_b64_tr_b16 {vr(b+4+4*ft+2*s,2)}, v{197 if ft & 1 else 12} offset:{ks*6144 + s*1536 + ft*64}")
    return r
def step(cur, nks, nb, last, first_wait=True):
    R = reads(nks, nb)
    waits2 = [8, 0, 10, 0, 11, 0]
    waits = [10, 11, 12, 13, 13, 13]; parts = [R[0:3], R[3:6], R[6:9], R[9:11], R[11:13], [last]]
    for ft in range(6):
        if first_wait and (ft % 2 == 0 or not opt("fw", 1)): a(f"s_waitcnt lgkmcnt({(waits2 if opt('fw', 1) else waits)[ft]})")
        a(f"v_mfma_f32_32x32x16_bf16 {vr(ACC+16*ft,16)}, {vr(cur+4+4*ft,4)}, {vr(cur,4)}, {vr(ACC+16*ft,16)}")
        for r in parts[ft]: a(r)
a("s_barrier")
stamp(1)
for r in reads(0, BUF[0]): a(r)
a("L_c_loop:")
step(BUF[0], 1, BUF[1], f"s_add_u32 s15, s15, {STG}\ns_cmp_eq_u32 s15, {NST*STG}\ns_cselect_b32 s15, 0, s15\nv_add_u32 v8, s15, v2")
step(BUF[1], 2, BUF[0], "v_add_u32 v9, s15, v3\nv_add_u32 v10, s15, v4")
step(BUF[0], 3, BUF[1], "v_add_u32 v12, s15, v6\nv_add_u32 v197, s15, v196\ns_waitcnt lgkmcnt(0)\ns_barrier")
step(BUF[1], 0, BUF[0], "v_add_u32 v11, s15, v5\ns_add_u32 s3, s3, 1\ns_cmp_lt_u32 s3, 10\ns_cbranch_scc1 L_c_loop", first_wait=False)
stamp(2)
a(f"s_setprio {opt('eprio', 3)}\nds_read_b32 v170, v168")
for ft in range(6):
    for p in range(2): a(f"ds_read_b64 {vr(SF+4*ft+2*p,2)}, v169 offset:{1536*p+256*ft}")
a("s_waitcnt lgkmcnt(12)")
a("v_xor_b32 v17, 0x8000, v170\nv_and_b32 v19, 0xffff, v17\nv_lshl_or_b32 v16, v19, 16, v19\nv_mov_b32 v18, v16")
a("v_cmp_gt_u32 vcc, 32, v0\nv_cndmask_b32 v17, v19, v17, vcc")
a("v_and_b32 v10, 0xffff0000, v170\nv_rcp_f32 v7, v10\nv_mov_b32 v11, v10\ns_waitcnt lgkmcnt(0)")
for ft in range(6):
    a(f"v_mfma_f32_32x32x16_bf16 {vr(ACC+16*ft,16)}, {vr(SF+4*ft,4)}, v[16:19], {vr(ACC+16*ft,16)}")
    if ft == 0:
        k1c = -2.0 * math.log2(math.e) * math.sqrt(2.0/math.pi); k2c = k1c * 0.044715
        a(f"v_mul_f32 v8, {f32(k1c)}, v7\nv_mul_f32 v12, v7, v7\nv_mul_f32 v12, v12, v7\nv_mul_f32 v12, {f32(k2c)}, v12\nv_mov_b32 v9, v8\nv_mov_b32 v13, v12")
def stA(h):
    A0 = ACC + 8*h; T = 16 + 8*(h % 3)
    return ([f"v_pk_mul_f32 {vr(T+2*p,2)}, {vr(A0+2*p,2)}, {vr(A0+2*p,2)}" for p in range(4)] +
            [f"v_pk_fma_f32 {vr(T+2*p,2)}, {vr(T+2*p,2)}, v[12:13], v[8:9]" for p in range(4)] +
            [f"v_pk_mul_f32 {vr(T+2*p,2)}, {vr(T+2*p,2)}, {vr(A0+2*p,2)}" for p in range(4)])
def stE(h):
    T = 16 + 8*(h % 3); return [f"v_exp_f32 v{T+e}, v{T+e}" for e in range(8)]
def stB(h):
    T = 16 + 8*(h % 3); return [f"v_pk_fma_f32 {vr(T+2*p,2)}, {vr(T+2*p,2)}, v[10:11], v[10:11]" for p in range(4)]
def stR(h):
    T = 16 + 8*(h % 3); return [f"v_rcp_f32 v{T+e}, v{T+e}" for e in range(8)]
def stC(h):
    A0 = ACC + 8*h; T = 16 + 8*(h % 3); pk = 48 + 4*(h % 4)
    return ([f"v_pk_mul_f32 {vr(T+2*p,2)}, {vr(T+2*p,2)}, {vr(A0+2*p,2)}" for p in range(4)] +
            [f"v_cvt_pk_bf16_f32 v{pk+p}, v{T+2*p}, v{T+2*p+1}" for p in range(4)] +
            [f"buffer_store_dwordx4 {vr(pk,4)}, v1, {WS}, s8 offen offset:{(h//2 % 3)*1024 + (h%2)*512} sc1"])
def mix(tr, nt):
    i = 0
    for k, x in enumerate(tr):
        a(x)
        n = (len(nt) * (k+1)) // len(tr)
        while i < n: a(nt[i]); i += 1
for x in stA(0): a(x)
for h in range(12):
    mix(stE(h), (stC(h-1) if h else []))
    if h == 6: a("s_add_u32 s8, s8, 27648")
    if h == opt("eflag", 10): a(f"s_waitcnt vmcnt({h-6})\ns_mov_b64 exec, 0xff\nbuffer_atomic_or v14, v15, {WS}, s12 offen sc1\ns_mov_b64 exec, -1\n" + sld(68, 69))
    for x in stB(h): a(x)
    if h == 11: a(sld(14, S_MB))
    mix(stR(h), (stA(h+1) if h < 11 else []))
for x in stC(11): a(x)
stamp(4)
def acc_init(z=True):
    for dt in range(5): a(f"ds_read_b64 {vr(224+2*dt,2)}, v2 offset:{15360+32*dt}\nds_read_b64 {vr(234+2*dt,2)}, v3 offset:{18432+32*dt}")
    a("s_waitcnt lgkmcnt(0)")
    for dt in range(5):
        for h in range(2):
            a(f"v_lshlrev_b32 v{AC2+4*dt+2*h}, 16, v{224+2*dt+h}\nv_and_b32 v{AC2+4*dt+2*h+1}, 0xffff0000, v{224+2*dt+h}")
            a(f"v_lshlrev_b32 v10, 16, v{234+2*dt+h}\nv_and_b32 v11, 0xffff0000, v{234+2*dt+h}\nv_add_f32 v{AC2+4*dt+2*h}, v{AC2+4*dt+2*h}, v10\nv_add_f32 v{AC2+4*dt+2*h+1}, v{AC2+4*dt+2*h+1}, v11")
a(f"v_mov_b32 v2, {CNT+8}\nv_mov_b32 v3, 1\nds_write_b32 v2, v3")
xb_loads()
a("s_mov_b32 s35, 0\ns_mov_b32 s101, 0\ns_waitcnt lgkmcnt(0)")
a("s_cmp_eq_u32 s68, 0\ns_cbranch_scc1 L_c_slow")
for l in ldw(0, 0): a(l)
a("s_and_b32 s13, s14, s28\ns_cmp_eq_u32 s13, s28\ns_cbranch_scc0 L_c_mid")
for l in ldh(0, 0): a(l)
a(f"s_waitcnt vmcnt(13)\ns_mov_b64 exec, 0xff\nbuffer_atomic_or v14, v15, {WS}, s12 offen offset:64 sc1\ns_mov_b64 exec, -1")
for l in ldw(1, 1024) + ldw(2, 2048) + ldw(3, 3072) + ldh(1, 1024) + ldh(2, 2048): a(l)
a("s_mov_b32 s101, 1\ns_waitcnt vmcnt(33)\ns_branch L_c_acc")
a("L_c_mid:")
a(f"s_waitcnt vmcnt(9)\ns_mov_b64 exec, 0xff\nbuffer_atomic_or v14, v15, {WS}, s12 offen offset:64 sc1\ns_mov_b64 exec, -1")
for l in ldw(1, 1024) + ldw(2, 2048) + ldw(3, 3072): a(l)
a("s_waitcnt vmcnt(21)\ns_branch L_c_acc")
a("L_c_slow:")
a(f"s_waitcnt vmcnt(0)\ns_mov_b64 exec, 0xff\nbuffer_atomic_or v14, v15, {WS}, s12 offen offset:64 sc1\ns_mov_b64 exec, -1")
a("L_c_acc:")
a("s_setprio 0")
stamp(5)
acc_init(False)
a("s_cmp_lg_u32 s68, 0\ns_cbranch_scc1 L_g2go")
a("s_branch L_g2w")

a("L_g2:")
g2_setup()
a("s_mov_b32 s101, 0")
xb_loads()
a("s_waitcnt vmcnt(0)")
acc_init()
a("L_g2w:")
if opt("p1only", 0): endp()
a(wc_prep.replace("s25", "s8"))
if not opt("g2only", 0): spoll(sld(9, 8), "s_cmp_lg_u32 s9, 0", sleep=16)
PK = (8, 10, 12)
a(f"s_cmp_eq_u32 s35, 0\ns_cbranch_scc1 L_g_nopark\ns_mul_i32 s10, {WV}, {AREG}")
for p in range(3):
    for i in range(5): a(f"s_add_u32 m0, s10, {5120*p+1024*i}\ns_add_u32 s13, s{22+i}, {off(PK[p])}\nbuffer_load_dwordx4 v252, {WS}, s13 offen{G2F} lds")
    if opt("thr", 0): a(f"s_waitcnt vmcnt({opt('thr', 0)})")
a("L_g_nopark:")
for n_, l in enumerate(w_pre):
    a(l)
    if opt("thr", 0) and n_ % 5 == 4 and n_ < 19: a(f"s_waitcnt vmcnt({opt('thr', 0)})")
if opt("touch2", 0):
    nt2 = 6 if RS else 3
    a("s_cmp_eq_u32 s35, 0\ns_cbranch_scc1 L_g2go")
    a(f"s_lshl_b32 s8, s{S_XC}, 2\ns_add_u32 s8, s8, s{S_J}\ns_sub_u32 s8, s8, 20\ns_lshl_b32 s8, s8, 2\ns_add_u32 s8, s8, {WV}\ns_cmp_ge_u32 s8, 48\ns_cbranch_scc1 L_g2go")
    if RS: a(f"s_and_b32 s9, s2, 7\ns_mul_i32 s9, s9, 6\ns_add_u32 s8, s8, s9\ns_cmp_ge_u32 s8, 48\ns_cselect_b32 s9, 48, 0\ns_sub_u32 s8, s8, s9\ns_mul_i32 s8, s8, 46080\ns_add_u32 s8, s8, {W2F}")
    else: a(f"s_mul_i32 s9, s{S_XR}, 12\ns_add_u32 s8, s8, s9\ns_cmp_ge_u32 s8, 48\ns_cselect_b32 s9, 48, 0\ns_sub_u32 s8, s8, s9\ns_mul_i32 s8, s8, 23040\ns_mul_i32 s9, s{S_XC}, 1105920\ns_add_u32 s8, s8, s9\ns_add_u32 s8, s8, {W2F}")
    a("v_lshlrev_b32 v4, 7, v0\ns_mov_b32 exec_hi, 0xfffffff")
    for i in range(nt2): a(f"buffer_load_dword v244, v4, {WS}, s8 offen sc1\ns_add_u32 s8, s8, 7680")
    a("s_mov_b32 exec_hi, -1")
a("L_g2go:")
if opt("p1only", 0): endp()
hm_issue = sld(14, S_MB)
a("s_cmp_lg_u32 s101, 0\ns_cbranch_scc1 L_g_nohm")
a(hm_issue)
a("L_g_nohm:")
a(f"s_mul_i32 s10, {WV}, {AREG}\nv_add_u32 v1, s10, v252")
for i in range(1, 4):
    a(f"s_sub_u32 s13, {WV}, {i}\ns_and_b32 s13, s13, 3\ns_mul_i32 s13, s13, {AREG}\ns_add_u32 s13, s13, {5120*(i-1)}\nv_add_u32 v{1+i}, s13, v252")
a("v_lshrrev_b32 v10, 2, v0\nv_lshlrev_b32 v10, 7, v10\nv_bfe_u32 v15, v0, 1, 1\nv_lshl_add_u32 v10, v15, 6, v10\nv_and_b32 v15, 1, v0\nv_lshl_add_u32 v10, v15, 3, v10")
a(f"s_lshl_b32 s13, {WV}, 4\ns_add_u32 s13, s13, {YAT}\nv_add_u32 v5, s13, v10")
a(f"s_mul_i32 s13, {WV}, 2560\ns_add_u32 s13, s13, {BREG0}\nv_add_u32 v6, s13, v254\nv_add_u32 v7, s13, v252")
a(f"v_mov_b32 v14, {CNT}")
srd(S_A, P['out'], 2621440)
a("s_cmp_lg_u32 s101, 0\ns_cbranch_scc1 L_g_fast")
if not opt("g2only", 0): spoll(hm_issue, "s_and_b32 s13, s14, s28\ns_cmp_eq_u32 s13, s28", sleep=opt('msleep', 4), issued=True, far=('s_and_b32 s13, s14, 0x3fffff', opt('mfar', 28)))
else: a("s_waitcnt vmcnt(0)")
stamp(6)
for l in ldh(0, 0) + ldh(1, 1024) + ldh(2, 2048): a(l)
a("s_waitcnt vmcnt(8)")
a("L_g_fast:")
a(f"s_add_u32 s15, s{S_MB}, 64")
nld = lambda t: 0 if t > 13 else (4 if (t < 4 or t in PK) else 9)
cur = 0
for t in range(14):
    k = t % 4; nt_ = t + 3; nk = nt_ % 4
    L = []
    if t == 2: a(sld(14, 15))
    if t == 4 and not opt("g2only", 0):
        spoll(sld(14, 15), "s_and_b32 s13, s14, s28\ns_cmp_eq_u32 s13, s28", sleep=2, issued=True)
        stamp(3)
    if nt_ == PK[0]:
        a("s_cmp_lg_u32 s35, 0\ns_cbranch_scc1 L_g_pok\ns_mov_b32 s3, 0")
        a("L_g_pw:")
        a("s_add_u32 s3, s3, 1\ns_cmp_gt_u32 s3, 2000000\ns_cbranch_scc1 L_exit")
        a("ds_read_b32 v10, v14\ns_waitcnt lgkmcnt(0)\nv_readfirstlane_b32 s13, v10\ns_cmp_eq_u32 s13, 0\ns_cbranch_scc1 L_g_pw")
        a("L_g_pok:")
    if nt_ <= 13:
        if off(nt_) - cur > 3072:
            a("\n".join(f"s_add_u32 s{18+i}, s{18+i}, {off(nt_)-cur}" for i in range(9))); cur = off(nt_)
        o = off(nt_) - cur; vv = 253 if nt_ in (6, 13) else 252
        L = ldh(nk, o, vv)
        if nt_ in PK: L += [f"ds_read_b128 {vr(G2W[nk]+4*i,4)}, v1 offset:{5120*PK.index(nt_)+1024*i}" for i in range(5)]
        elif nt_ > 3: L += ldw(nk, o, vv)
    a(f"s_waitcnt vmcnt({24 if t == 0 else nld(t+1)+nld(t+2)})" + (" lgkmcnt(0)" if t in PK else ""))
    if t == 0: stamp(7)
    n = 0; other = []
    if t in (6, 13): a(f"s_cmp_eq_u32 {WV}, 0\ns_cbranch_scc1 L_g_skip{t}")
    for i in ((1, 2, 3, 0) if t == 13 else range(4)):
        for dt in range(5):
            acc = AC2 + 4*(5*i+dt)
            a(f"v_mfma_f32_16x16x32_bf16 {vr(acc,4)}, {vr(G2W[k]+4*dt,4)}, {vr(G2H[k]+4*i,4)}, " + ("0" if t == 0 and i else vr(acc,4)))
            if n < len(L): a(L[n]); other.append(L[n])
            if t == 13:
                pi = {2: 1, 3: 2, 0: 3}.get(i)
                if pi:
                    w_ = f"ds_write_b128 v1, {vr(AC2+4*(5*pi+dt),4)} offset:{5120*(pi-1)+1024*dt}"; a(w_); other.append(w_)
            n += 1
    if t in (6, 13):
        a(f"s_branch L_g_join{t}")
        a(f"L_g_skip{t}:")
        a("s_nop 7")
        for x in other: a(x)
        a(f"L_g_join{t}:")
stamp(8)
a("s_waitcnt lgkmcnt(0)\ns_barrier")
stamp(9)
R_ = 144
for q in range(10): a(f"ds_read_b128 {vr(R_+4*q,4)}, v{2+q//5} offset:{1024*(q%5)}")
for dt in range(5): a(f"ds_read_b64_tr_b16 {vr(16+2*dt,2)}, v5 offset:{2048*dt}")
for q in range(10):
    a(f"s_waitcnt lgkmcnt({14 if q < 5 else 19-q})")
    dt = q % 5
    for h in range(2): a(f"v_pk_add_f32 {vr(AC2+4*dt+2*h,2)}, {vr(AC2+4*dt+2*h,2)}, {vr(R_+4*q+2*h,2)}")
    if q < 5: a(f"ds_read_b128 {vr(R_+40+4*q,4)}, v4 offset:{1024*q}")
for dt in range(5):
    a(f"s_waitcnt lgkmcnt({9-dt})")
    for h in range(2):
        a(f"v_lshlrev_b32 v10, 16, v{16+2*dt+h}\nv_and_b32 v11, 0xffff0000, v{16+2*dt+h}\nv_pk_add_f32 {vr(AC2+4*dt+2*h,2)}, {vr(AC2+4*dt+2*h,2)}, v[10:11]")
a("s_waitcnt lgkmcnt(0)")
for dt in range(5):
    for h in range(2): a(f"v_pk_add_f32 {vr(AC2+4*dt+2*h,2)}, {vr(AC2+4*dt+2*h,2)}, {vr(R_+40+4*dt+2*h,2)}")
    for h in range(2): a(f"v_cvt_pk_bf16_f32 v{32+2*dt+h}, v{AC2+4*dt+2*h}, v{AC2+4*dt+2*h+1}")
    a(f"ds_write_b64 v6, {vr(32+2*dt,2)} offset:{32*dt}")
for q in range(3): a(f"ds_read_b128 {vr(48+4*q,4)}, v7 offset:{1024*q}")
for q in range(3):
    a(f"s_waitcnt lgkmcnt({2-q})\nbuffer_store_dwordx4 {vr(48+4*q,4)}, v{OUTV[q]}, {SA}, s27 offen")
stamp(10)
endp()

a("L_park:")
if opt("p1only", 0): endp()
a(tile_rc(12, 9, 10))
for i in range(1, 5): a(f"v_add_u32 v{1+i}, {55296*i}, v1")
a(f"s_mul_i32 s12, s9, {5*55296}\ns_add_u32 s12, s12, {W2F}\ns_mov_b32 s10, 0\ns_mov_b32 s3, 0")
spoll(wc_issue, wc_test, sleep=10)
if not opt("epark", 15):
    a(f"v_mov_b32 v10, {CNT+8}\ns_mov_b32 s11, 0")
    a("L_pk_w:")
    a("s_add_u32 s11, s11, 1\ns_cmp_gt_u32 s11, 200000\ns_cbranch_scc1 L_exit\ns_sleep 2")
    a("ds_read_b32 v11, v10\ns_waitcnt lgkmcnt(0)\nv_readfirstlane_b32 s13, v11\ns_cmp_eq_u32 s13, 0\ns_cbranch_scc1 L_pk_w")
stamp(11)
a("L_pk_loop:")
for p in range(3):
    a(f"s_add_u32 s13, s12, {off(PK[p])}")
    for i in range(5): a(f"s_add_u32 m0, s10, {5120*p+1024*i}\nbuffer_load_dwordx4 v{1+i}, {WS}, s13 offen{G2F} lds")
    if opt("epark", 15): a(f"s_waitcnt vmcnt({opt('epark', 15)})")
a(f"s_cmp_eq_u32 s3, 0\ns_cselect_b32 s13, 6, 7\ns_lshl_b32 s13, s13, 10\ns_add_u32 s12, s12, s13\ns_add_u32 s10, s10, {AREG}\ns_add_u32 s3, s3, 1\ns_cmp_lt_u32 s3, 4\ns_cbranch_scc1 L_pk_loop")
a(f"v_mov_b32 v2, {CNT}\nv_mov_b32 v3, 1\ns_waitcnt vmcnt(0)\nds_write_b32 v2, v3\ns_waitcnt lgkmcnt(0)")
stamp(12)
endp()

a("L_fetch:")
if opt("p1only", 0): endp()
a(tile_rc(8, 9, 10))
a("s_mul_i32 s11, s8, 81920")
a(f"v_mov_b32 v1, 0\ns_lshl_b32 s13, s9, 2\ns_add_u32 s13, s13, s{S_XR}\ns_lshl_b32 s13, s13, 7\ns_add_u32 s13, s13, {YAC}")
spoll(sld(12, 13), "s_cmp_ge_u32 s12, 80", sleep=opt('ysleep', 8), far=('s_cmp_ge_u32 s12, 24', opt('yfar', 32)))
stamp(11)
a(f"s_mul_i32 s10, s9, 10240\ns_add_u32 s11, s11, s10\ns_add_u32 s11, s11, {YA}\nv_lshlrev_b32 v1, 4, v0")
for q in range(10):
    a(f"buffer_load_dwordx4 {vr(16+4*q,4)}, v1, {WS}, s11 offen sc1\ns_add_u32 s11, s11, 1024")
a(f"v_add_u32 v1, {YAT}, v1")
for q in range(10):
    a(f"s_waitcnt vmcnt({9-q})\nds_write_b128 v1, {vr(16+4*q,4)} offset:{1024*q}")
a("s_waitcnt lgkmcnt(0)")
stamp(12)
a("s_barrier")
endp()

c_issue = sld(33, 100)
c_test = "s_cmp_ge_u32 s33, 64"
clr_s = f"s_load_dwordx4 s[28:31], s[{P['dbg']}:{P['dbg']+1}], 0"
a("L_aux:")
a(f"s_sub_u32 s8, s{S_J}, s8\ns_and_b32 s15, {WV}, 3\ns_mov_b32 s35, 0\nv_mov_b32 v230, 0\ns_mov_b32 s71, 0\ns_mul_i32 s69, {WV}, {AREG}")
a(f"s_lshl_b32 s9, s{S_XR}, 4\ns_lshl_b32 s10, s{S_XC}, 3\ns_add_u32 s9, s9, s10\ns_add_u32 s9, s9, s8")
RAW, DV = 164, 64
a("v_and_b32 v238, 3, v0\nv_lshlrev_b32 v238, 2, v238")
a(f"s_cmp_ge_u32 s8, 8\ns_cbranch_scc1 L_nolnwg\ns_cmp_lt_u32 {WV}, 4\ns_cbranch_scc1 L_lnw")
a(f"s_lshl_b32 s{S_CH}, s9, 2\ns_add_u32 s{S_CH}, s{S_CH}, s15\ns_branch L_par")
a("L_nolnwg:")
a(f"s_mul_i32 s10, s{S_XR}, 12\ns_lshl_b32 s11, s{S_XC}, 2\ns_add_u32 s10, s10, s11\ns_add_u32 s10, s10, s8\ns_lshl_b32 s10, s10, 3\ns_add_u32 s10, s10, {WV}\ns_add_u32 s{S_CH}, s10, 192")
a(f"s_lshl_b32 s10, s{S_XC}, 4\ns_add_u32 s10, s10, s8\ns_cmp_lg_u32 s10, 8\ns_cbranch_scc1 L_par")
a(f"s_lshl_b32 s10, s{S_XR}, 15\ns_lshl_b32 s11, {WV}, 12\ns_add_u32 s10, s10, s11\ns_add_u32 s10, s10, {CLR}\nv_lshlrev_b32 v1, 4, v0\ns_mov_b32 s35, 5")
zero(4, 4)
for i in range(4): a(f"buffer_store_dwordx4 v[4:7], v1, {WS}, s10 offen offset:{1024*i} sc1")
a("L_par:")
a(f"s_lshl_b32 s10, s{S_CH}, 8\nv_lshl_add_u32 v1, v0, 2, s10")
for i, nm in enumerate(["are", "aim", "bre", "bim", "cre", "cim"]):
    a(f"global_load_dword v{240+i}, v1, s[{P[nm]}:{P[nm]+1}]{NT1}")
a(f"s_lshl_b32 s10, s{S_CH}, 1\nv_mov_b32 v1, s10\nglobal_load_ushort v246, v1, s[{P['ldt']}:{P['ldt']+1}]")
a(f"global_load_ushort v147, v1, s[{P['dsk']}:{P['dsk']+1}]")
a("s_cmp_lt_u32 s8, 8\ns_cbranch_scc1 L_wrole\ns_cmp_lg_u32 s35, 5\ns_cbranch_scc1 L_cs")
a(f"s_waitcnt vmcnt(8)\ns_barrier\ns_cmp_lg_u32 {WV}, 0\ns_cbranch_scc1 L_cs")
a(f"s_lshl_b32 s10, s{S_XR}, 2\nv_mov_b32 v2, 1\nv_mov_b32 v4, 0\ns_mov_b64 exec, 1\nbuffer_store_dword v2, v4, {DBG}, s10 offen sc1\ns_mov_b64 exec, -1\ns_waitcnt vmcnt(1)")
stamp(1)
a("L_cs:")
a(f"s_mov_b32 s35, 0\ns_sub_u32 s9, s8, 8\ns_lshl_b32 s10, s{S_XR}, 2\ns_lshl_b32 s10, s10, s{S_XC}\ns_add_u32 s9, s9, s10")
a(f"s_cmp_eq_u32 s{S_XC}, 0\ns_cselect_b32 s10, 8, 3\ns_movk_i32 s11, 120\ns_mul_i32 s9, s9, s10\ns_add_u32 s9, s9, {WV}\ns_cmp_ge_u32 {WV}, s10\ns_cbranch_scc1 L_kgen\ns_cmp_ge_u32 s9, s11\ns_cbranch_scc1 L_kgen")
a(f"s_and_b32 s15, s9, 3\ns_lshr_b32 s9, s9, 2\ns_mul_i32 s10, s{S_XC}, 30\ns_add_u32 s9, s9, s10")
a("s_mul_i32 s12, s15, 552960\ns_lshl_b32 s11, s9, 6\ns_add_u32 s71, s12, s11")
a(f"v_and_b32 v4, 31, v0\nv_lshlrev_b32 v4, 1, v4\nv_add_u32 v4, s11, v4\nglobal_load_ushort v145, v4, s[{P['b1']}:{P['b1']+1}]")
a("v_lshrrev_b32 v2, 2, v0\nv_and_b32 v3, 3, v0\nv_mul_u32_u24 v1, 3456, v2\nv_lshl_add_u32 v230, v3, 4, v1\ns_mov_b32 s35, 2\ns_branch L_kgen")
a("L_wrole:")
W2R = lambda i: (RAW + 4*i) if i < 10 else (148 + 4*(i-10))
a("s_barrier")
srd(S_B, P['w2'], 2211840)
a("v_lshrrev_b32 v8, 3, v0\nv_mul_u32_u24 v8, 1280, v8\nv_and_b32 v9, 7, v0\nv_lshl_add_u32 v8, v9, 4, v8\ns_lshl_b32 s8, s9, 2\ns_add_u32 s8, s8, s15")
for u_ in range(3):
    a(f"s_add_u32 s10, s8, {256*u_}\ns_mul_i32 s11, s10, 6554\ns_lshr_b32 s11, s11, 16\ns_mul_i32 s70, s11, 10\ns_sub_u32 s70, s10, s70")
    a(f"s_mul_i32 s13, s11, 40960\ns_lshl_b32 s71, s70, 7\ns_add_u32 s13, s13, s71\ns_mul_i32 s71, s70, 216\ns_mul_i32 s70, s11, 43\ns_lshr_b32 s70, s70, 8\ns_mul_i32 s70, s70, 3\ns_sub_u32 s11, s11, s70\ns_sub_u32 s70, s11, s70\ns_cmp_ge_u32 s70, 3\ns_cselect_b32 s70, 24, 0\ns_add_u32 s11, s11, s70\ns_add_u32 s71, s71, s11\ns_lshl_b32 s71, s71, 10\ns_add_u32 s{96+u_}, s71, {W2F}")
    if u_ == 2: a(f"s_cmp_lt_u32 s10, 540\ns_cselect_b32 s13, s13, {OOB}\ns_cselect_b32 s98, s98, {OOB}")
    for q in range(4): a(f"buffer_load_dwordx4 {vr(W2R(4*u_+q),4)}, v8, {SB}, s13 offen{NT1}\ns_add_u32 s13, s13, 10240")
a("s_mov_b32 s35, 1")
a("L_kgen:")
a("s_mov_b32 s68, 0\ns_mov_b32 m0, s69")
a(lnc_addr)
a(f"s_mov_b32 s101, 0\nv_mov_b32 v146, 0\nv_mov_b32 v253, 0\ns_cmp_lt_u32 {WV}, 4\ns_cbranch_scc1 L_kg_nocs")
conv_setup()
a("L_kg_nocs:")
a("v_and_b32 v2, 31, v0\nv_mul_u32_u24 v2, 272, v2\nv_lshrrev_b32 v3, 5, v0\nv_lshl_add_u32 v2, v3, 4, v2\nv_add_u32 v228, s69, v2")
KA = 208
zero(KA, 16)
a("s_mov_b32 s3, 0\ns_cmp_eq_u32 s35, 1\ns_cbranch_scc1 L_kw12\ns_waitcnt vmcnt(1)")
a("L_kw12:")
a("s_waitcnt vmcnt(12)")
stamp(3)
a(f"v_lshlrev_b32 v3, 16, v246\nv_mul_f32 v3, {f32(math.log2(math.e))}, v3\nv_exp_f32 v3, v3\nv_cvt_pk_bf16_f32 v3, v3, v3\nv_lshlrev_b32 v229, 16, v3")
a("s_cmp_eq_u32 s35, 1\ns_cbranch_scc1 L_w2mid")
a("L_kg_loop:")
for i in range(6): a(f"v_and_b32 v{4+i}, 0xffff0000, v{240+i}\nv_lshlrev_b32 v{240+i}, 16, v{240+i}")
for i in range(4): a(f"v_mul_f32 v{4+i}, v229, v{4+i}")
a(f"v_mul_f32 v4, {f32(math.log2(math.e))}, v4\nv_mul_f32 v5, {f32(1/(2*math.pi))}, v5")
Z1, Z8, Z256, W = 10, 12, 14, 16
for k, z in ((1, Z1), (8, Z8), (256, Z256)):
    a(f"v_mul_f32 v20, {f32(k)}, v4\nv_mul_f32 v21, {f32(k)}, v5\nv_fract_f32 v21, v21\nv_exp_f32 v20, v20\nv_cos_f32 v{z}, v21\nv_sin_f32 v{z+1}, v21")
    neg = " neg_hi:[0,1]" if k == 8 else ""
    a(f"v_pk_mul_f32 {vr(z,2)}, {vr(z,2)}, v[20:21] op_sel:[0,0] op_sel_hi:[1,0]{neg}")
cmul(W, 8, 6, 20)
rowof = {}
h0 = [[0,1,2,3],[4,5,6,7],[1024,1032,1280,1288],[1536,1544,1792,1800]]
h1 = [[256,258,260,262],[264],[512,516,520],[768,772,776]]
for q in range(4):
    for i, v in enumerate(h0[q]): rowof[v] = 8*q + i
    for i, v in enumerate(h1[q]): rowof[v] = 8*q + 4 + i
cv = [0]
def put(src, row):
    t = 24 + (cv[0] % 4); cv[0] += 1
    a(f"v_cvt_pk_bf16_f32 v{t}, v{src}, v{src+1}\nds_write_addtid_b32 v{t} offset:{row*272}")
G = {0: W}
opsG = [lambda: put(W, rowof[0])]
for b in range(1, 9):
    G[b] = 32 + 2*b
    opsG.append(lambda b=b: (cmul(G[b], G[b-1], Z1, 20), put(G[b], rowof[b]) if b < 8 else None))
Pq = {1: Z256}
for q in range(1, 8):
    if q > 1:
        Pq[q] = 52 + 2*(q & 1)
        opsG.append(lambda q=q: cmul(Pq[q], Pq[q-1], Z256, 20))
    ds = {1: (0,2,4,6,8), 2: (0,4,8), 3: (0,4,8)}.get(q, (0, 8))
    for n, d in enumerate(ds):
        opsG.append(lambda q=q, d=d, n=n: (cmul(56+2*(n&1), G[d], Pq[q], 20), put(56+2*(n&1), rowof[256*q+d])))
opsE = [lambda: a(f"v_mov_b32 v28, 0x3f80\nds_write_addtid_b32 v28 offset:{32*272}"), lambda: put(Z8, 33)]
for j in range(2, 32):
    src = Z8 if j == 2 else 60 + 2*((j-1) & 1)
    dst = 60 + 2*(j & 1)
    opsE.append(lambda src=src, dst=dst, j=j: (cmul(dst, src, Z8, 22), put(dst, 32+j)))
for i in range(max(len(opsG), len(opsE))):
    if i < len(opsE): opsE[i]()
    if i < len(opsG): opsG[i]()
    if i < 10:
        a(f"s_cmp_lg_u32 s35, 2\ns_cbranch_scc1 L_kg_nl{i}\nbuffer_load_dwordx4 {vr(RAW+4*i,4)}, v230, {SB}, s71 offen{NT}\ns_add_u32 s71, s71, 55296")
        a(f"L_kg_nl{i}:")
    if i == 12 and opt("eu", 1):
        a(f"s_lshl_b32 s10, s3, 2\ns_and_b32 s10, s10, {WV}\ns_cbranch_scc1 L_eu0")
        a("L_kg_ne1:")
    if i == 31 and opt("eu", 1):
        a("s_cmp_eq_u32 s68, 1\ns_cbranch_scc1 L_eu")
        a("L_kg_ne2:")
    if i == opt("wsig", 14):
        a("s_cmp_eq_u32 s35, 6\ns_cbranch_scc1 L_w2sig")
        a("L_kg_nsig:")
a("s_waitcnt lgkmcnt(0)")
for k in range(8):
    a(f"ds_read_b128 {vr(64+8*k,4)}, v228 offset:{32*k}\nds_read_b128 {vr(68+8*k,4)}, v228 offset:{32*272+32*k}")
for k in range(8):
    a(f"s_waitcnt lgkmcnt({14-2*k})")
    a(f"v_mfma_f32_32x32x16_bf16 {vr(KA,16)}, {vr(64+8*k,4)}, {vr(68+8*k,4)}, {vr(KA,16)}")
a("s_cmp_lg_u32 s3, 0\ns_cbranch_scc1 L_kg_done")
a(clr_s)
a("s_mov_b32 s3, 1\ns_cmp_lg_u32 s35, 2\ns_cbranch_scc1 L_kg_loop\ns_branch L_csum")
a("L_eu0:")
a("s_waitcnt lgkmcnt(0)\ns_and_b32 s10, s28, s29\ns_and_b32 s11, s30, s31\ns_and_b32 s10, s10, s11\ns_cselect_b32 s35, 4, s35\ns_cmp_lt_u32 s35, 4\ns_cbranch_scc1 L_kg_ne1")
a(c_issue)
a("s_mov_b32 s68, 1\ns_branch L_kg_ne1")
a("L_eu:")
a("s_mov_b32 s68, 0\ns_waitcnt lgkmcnt(0)")
a(c_test)
a("s_cbranch_scc0 L_kg_ne2")
uloads()
a("s_mov_b32 s68, 2\ns_branch L_kg_ne2")
def need_clr(tag):
    a(f"s_waitcnt lgkmcnt(0)\ns_and_b32 s28, s28, s29\ns_and_b32 s30, s30, s31\ns_and_b32 s28, s28, s30\ns_cbranch_scc1 L_clr_{tag}")
    poll(clr_issue(239, 238), clr_test(239), sleep=8, issued=False)
    a(f"L_clr_{tag}:")
def touch():
    if not opt("touch", 0): return
    n = 270 if RS else 135
    a(f"s_and_b32 s10, s8, 7\ns_lshl_b32 s10, s10, 3\ns_add_u32 s10, s10, {WV}")
    if RS: a(f"s_and_b32 s11, s2, 7\ns_lshl_b32 s11, s11, 3\ns_add_u32 s10, s10, s11\ns_and_b32 s10, s10, 63\ns_mul_i32 s10, s10, {n*128}")
    else: a(f"s_lshl_b32 s11, s{S_XR}, 4\ns_add_u32 s10, s10, s11\ns_and_b32 s10, s10, 63\ns_mul_i32 s10, s10, {n*128}\ns_mul_i32 s11, s{S_XC}, 1105920\ns_add_u32 s10, s10, s11")
    a(f"s_add_u32 s10, s10, {W2F}\nv_lshlrev_b32 v4, 7, v0")
    for i in range(n // 64): a(f"buffer_load_dword v144, v4, {WS}, s10 offen sc1\ns_add_u32 s10, s10, 8192")
    a(few((1 << (n % 64)) - 1, f"buffer_load_dword v144, v4, {WS}, s10 offen sc1"))
def lds_wait(tag, target):
    a("s_mov_b32 s12, 0")
    a(f"L_sb{tag}:")
    a("s_add_u32 s12, s12, 1\ns_cmp_gt_u32 s12, 2000000\ns_cbranch_scc1 L_exit")
    a(f"ds_read_b32 v15, v14\ns_waitcnt lgkmcnt(0)\nv_readfirstlane_b32 s11, v15\ns_cmp_lt_u32 s11, {target}\ns_cbranch_scc1 L_sb{tag}")
a("L_lnw:")
a("s_lshl_b32 s10, s9, 5\ns_lshl_b32 s11, s15, 3\ns_add_u32 s14, s10, s11\ns_mul_i32 s11, s14, 1280")
a("v_lshrrev_b32 v2, 4, v0\nv_and_b32 v3, 15, v0\nv_mul_u32_u24 v1, 2560, v2\nv_lshl_add_u32 v1, v3, 4, v1")
for sg in range(2):
    for i in range(5):
        a(f"buffer_load_dwordx4 {vr(RAW+20*sg+4*i,4)}, v1, {SA}, s11 offen offset:{sg*1280+i*256}{NT}")
a(f"v_mov_b32 v4, {CNT}\nv_mov_b32 v6, 0\nv_mov_b32 v7, 0\nds_write_b64 v4, v[6:7]\ns_waitcnt lgkmcnt(0)\ns_barrier")
a("s_lshl_b32 s11, s15, 4\nv_lshlrev_b32 v8, 2, v2\nv_add_u32 v8, s11, v8")
for i in range(5):
    a(f"v_add_u32 v4, {16*i}, v3\nv_mul_u32_u24 v5, 3277, v4\nv_lshrrev_b32 v5, 16, v5\nv_mul_u32_u24 v5, {BREG-20*528}, v5\nv_mul_u32_u24 v4, 528, v4\nv_add3_u32 v{150+i}, v4, v5, v8")
a(f"s_setprio 2\nv_mov_b32 v14, {CNT}\nv_lshrrev_b32 v2, 4, v0\ns_mov_b32 s12, 0x3f803f80")
zero(4, 4)
a("s_waitcnt vmcnt(0)")
stamp(1)
for sg in range(2):
    for k in range(20):
        a(f"v_dot2_f32_bf16 v{4+2*sg+(k&1)}, v{RAW+20*sg+k}, s12, v{4+2*sg+(k&1)}")
a("v_add_f32 v4, v4, v5\nv_add_f32 v6, v6, v7")
def unp(sg, ks):
    for k in ks:
        d = DV + 40*sg + 2*k
        a(f"v_lshlrev_b32 v{d}, 16, v{RAW+20*sg+k}\nv_and_b32 v{d+1}, 0xffff0000, v{RAW+20*sg+k}")
for n, sh in enumerate((8, 4, 2, 1)):
    a(f"v_add_f32_dpp v4, v4, v4 row_ror:{sh} row_mask:0xf bank_mask:0xf\nv_add_f32_dpp v6, v6, v6 row_ror:{sh} row_mask:0xf bank_mask:0xf")
    unp(0, range(5*n, 5*n+5))
a(f"v_mul_f32 v4, {f32(1/640)}, v4\nv_mul_f32 v6, {f32(1/640)}, v6")
a("v_cvt_pk_bf16_f32 v5, v4, v6\nv_lshlrev_b32 v8, 16, v5\nv_and_b32 v9, 0xffff0000, v5")
a("v_sub_f32 v56, 0, v8\nv_sub_f32 v57, 0, v8\nv_sub_f32 v58, 0, v9\nv_sub_f32 v59, 0, v9")
zero(10, 4)
unp(1, range(20))
for sg in range(2):
    for k in range(20):
        d = DV + 40*sg + 2*k
        a(f"v_pk_add_f32 {vr(d,2)}, {vr(d,2)}, {vr(56+2*sg,2)}")
    for k in range(20):
        d = DV + 40*sg + 2*k
        a(f"v_pk_fma_f32 {vr(10+2*sg,2)}, {vr(d,2)}, {vr(d,2)}, {vr(10+2*sg,2)}")
a("v_add_f32 v10, v10, v11\nv_add_f32 v12, v12, v13")
def rnd(sg, ks):
    for k in ks:
        d = DV + 40*sg + 2*k
        a(f"v_cvt_pk_bf16_f32 v{RAW+20*sg+k}, v{d}, v{d+1}")
for n, sh in enumerate((8, 4, 2, 1)):
    a(f"v_add_f32_dpp v10, v10, v10 row_ror:{sh} row_mask:0xf bank_mask:0xf\nv_add_f32_dpp v12, v12, v12 row_ror:{sh} row_mask:0xf bank_mask:0xf")
    rnd(0, range(2*n, 2*n+2))
a("v_sub_f32 v4, v4, v8\nv_sub_f32 v6, v6, v9\nv_mul_f32 v4, v4, v4\nv_mul_f32 v6, v6, v6")
a(f"s_mov_b32 s12, {f32(1/640)}\nv_fma_f32 v4, v10, s12, -v4\nv_fma_f32 v6, v12, s12, -v6")
a("v_max_f32 v4, 0, v4\nv_max_f32 v6, 0, v6")
a("v_cvt_pk_bf16_f32 v7, v4, v6\nv_lshlrev_b32 v4, 16, v7\nv_and_b32 v6, 0xffff0000, v7")
a(f"v_add_f32 v4, {f32(1e-5)}, v4\nv_add_f32 v6, {f32(1e-5)}, v6")
a("v_cvt_pk_bf16_f32 v7, v4, v6\nv_lshlrev_b32 v4, 16, v7\nv_and_b32 v6, 0xffff0000, v7")
a("v_sqrt_f32 v4, v4\nv_sqrt_f32 v6, v6\nv_cvt_pk_bf16_f32 v7, v4, v6")
a("v_lshlrev_b32 v4, 16, v7\nv_and_b32 v6, 0xffff0000, v7\nv_rcp_f32 v60, v4\nv_rcp_f32 v61, v4\nv_rcp_f32 v62, v6\nv_rcp_f32 v63, v6")
a("v_and_b32 v12, 0xffff, v5\nv_or_b32 v12, v12, v4\nv_lshrrev_b32 v13, 16, v5\nv_or_b32 v13, v13, v6")
a(f"s_lshl_b32 s11, s14, 2\ns_add_u32 s11, s11, {STATS}\nv_lshlrev_b32 v1, 3, v2")
a(clr_s)
rnd(0, range(8, 20)); rnd(1, range(20))
unp(0, range(20)); unp(1, range(20))
for sg in range(2):
    for k in range(20):
        d = DV + 40*sg + 2*k
        a(f"v_pk_mul_f32 {vr(d,2)}, {vr(d,2)}, {vr(60+2*sg,2)}")
for k in range(20):
    for h in range(2):
        d = DV + 2*k + h
        a(f"v_cvt_pk_bf16_f32 v{d}, v{d}, v{d+40}")
    d = DV + 2*k
    a(f"ds_write2_b32 v{150+k//4}, v{d}, v{d+1} offset0:{(k%4)*32} offset1:{(k%4)*32+16}")
a("v_mov_b32 v15, 1\nds_add_u32 v14, v15")
need_clr("ln")
a(f"s_mov_b32 exec_lo, 0x10001\ns_mov_b32 exec_hi, 0x10001\nbuffer_store_dwordx2 v[12:13], v1, {WS}, s11 offen sc1\ns_mov_b64 exec, -1")
stamp(2)
a("v_lshrrev_b32 v3, 5, v0\nv_lshlrev_b32 v2, 4, v0\nv_lshl_add_u32 v1, v3, 4, v2\nv_add_u32 v1, s69, v1")
a("s_mul_i32 s10, s9, 40960\ns_mul_i32 s11, s15, 10240\ns_add_u32 s10, s10, s11")
lds_wait("b", 256)
for i in range(10): a(f"ds_read_b128 {vr(RAW+4*i,4)}, v1 offset:{1056*i}")
for i in range(10):
    a(f"s_waitcnt lgkmcnt({9-i})\nbuffer_store_dwordx4 {vr(RAW+4*i,4)}, v2, {WS}, s10 offen sc1\ns_add_u32 s10, s10, 1024")
a(f"s_lshl_b32 s10, s15, 11\ns_add_u32 s10, s10, {LNC}\nv_lshlrev_b32 v4, 7, v0\nv_mov_b32 v5, 1")
a(f"s_waitcnt vmcnt(0)\ns_mov_b64 exec, 0xffff\nbuffer_atomic_add v5, v4, {WS}, s10 offen sc1\ns_mov_b64 exec, -1\ns_setprio 0")
stamp(4)
a("s_lshl_b32 s8, s9, 2\ns_add_u32 s8, s8, s15")
a("s_cmp_lg_u32 s8, 255\ns_cbranch_scc1 L_norelay")
a(f"v_lshlrev_b32 v6, 6, v0\ns_mov_b32 s8, {W2C}")
poll(few(3, f"buffer_load_dword v7, v6, {DBG}, 0 offen offset:128 sc1"),
     "v_readlane_b32 s9, v7, 0\nv_readlane_b32 s10, v7, 1\ns_add_u32 s9, s9, s10\ns_cmp_ge_u32 s9, 64", sleep=4, issued=False)
stamp(11)
a(f"s_mov_b32 exec_hi, 0\nbuffer_store_dword v5, v4, {WS}, s8 offen offset:1024 sc1\ns_mov_b32 exec_hi, -1")
a("L_norelay:")
a("s_mov_b32 s35, 1\ns_branch L_g2")
a("L_csum:")
a("s_setprio 3\ns_mov_b32 s12, 0x00003f80\ns_mov_b32 s13, 0x3f800000\nv_and_b32 v3, 3, v0")
zero(4, 8)
a("s_waitcnt vmcnt(0)")
for i in range(10):
    for k in range(4):
        a(f"v_dot2_f32_bf16 v{4+2*k}, v{RAW+4*i+k}, s12, v{4+2*k}\nv_dot2_f32_bf16 v{5+2*k}, v{RAW+4*i+k}, s13, v{5+2*k}")
for sh in (8, 4):
    for r in range(8): a(f"v_add_f32_dpp v{4+r}, v{4+r}, v{4+r} row_ror:{sh} row_mask:0xf bank_mask:0xf")
a("v_lshrrev_b32 v12, 4, v0\nv_lshlrev_b32 v12, 7, v12\nv_lshl_add_u32 v12, v3, 5, v12\nv_add_u32 v12, s69, v12")
a("ds_write_b128 v12, v[4:7]\nds_write_b128 v12, v[8:11] offset:16")
a("v_and_b32 v12, 31, v0\nv_lshl_add_u32 v13, v12, 2, s69")
for p in range(4): a(f"ds_read_b32 v{16+p}, v13 offset:{128*p}")
a("s_waitcnt lgkmcnt(0)\nv_add_f32 v16, v16, v17\nv_add_f32 v18, v18, v19\nv_add_f32 v16, v16, v18")
a("v_cvt_pk_bf16_f32 v4, v16, v16\nv_lshlrev_b32 v5, 16, v4\nv_sub_f32 v5, v16, v5")
a("v_cvt_pk_bf16_f32 v6, v16, v5\nv_and_b32 v7, 0xffff0000, v6\nv_sub_f32 v7, v5, v7")
a("v_cvt_pk_bf16_f32 v7, v7, v7\nv_and_b32 v7, 0xffff, v7\nv_or_b32 v7, 1, v7")
a(f"s_lshl_b32 s12, s9, 8\ns_mul_i32 s13, s15, {CSP}\ns_add_u32 s12, s12, s13\ns_add_u32 s12, s12, {CSUM}\nv_lshlrev_b32 v12, 3, v12")
need_clr("cs")
a("v_lshl_or_b32 v7, v145, 16, v7")
a(f"s_mov_b32 exec_hi, 0\nbuffer_store_dwordx2 v[6:7], v12, {WS}, s12 offen sc1\ns_mov_b32 exec_hi, -1")
stamp(2)
a("s_setprio 0\ns_mov_b32 s35, 4\ns_branch L_kg_loop")
a("L_w2mid:")
a("s_setprio 3")
a("v_lshlrev_b32 v2, 4, v0\ns_waitcnt vmcnt(0)")
for i in range(12): a(f"ds_write_b128 v{cLIN}, {vr(W2R(i),4)} offset:{1024*i}")
a("v_lshrrev_b32 v6, 5, v0\nv_bfe_u32 v7, v0, 4, 1\nv_lshlrev_b32 v6, 4, v6\nv_lshl_add_u32 v6, v7, 2, v6\nv_bfe_u32 v7, v0, 2, 2\nv_add_u32 v6, v6, v7")
a("v_lshlrev_b32 v6, 7, v6\nv_and_b32 v7, 3, v0\nv_lshl_add_u32 v6, v7, 3, v6\nv_add_u32 v6, s69, v6")
for u_ in range(3):
    for dt in range(4):
        for h in range(2): a(f"ds_read_b64_tr_b16 {vr(W2R(4*u_+dt)+2*h,2)}, v6 offset:{4096*u_+1024*h+32*dt}")
    for dt in range(4):
        a(f"s_waitcnt lgkmcnt({6-2*dt})\nbuffer_store_dwordx4 {vr(W2R(4*u_+dt),4)}, v2, {WS}, s{96+u_} offen sc1\ns_add_u32 s{96+u_}, s{96+u_}, 55296")
a("s_setprio 2\ns_mov_b32 s35, 6\ns_branch L_kg_loop")
a("L_w2sig:")
a(f"v_mov_b32 v4, {CNT+4}\nv_mov_b32 v5, 1\nv_mov_b32 v6, 0\ns_waitcnt vmcnt(0)\ns_mov_b64 exec, 1\nds_add_rtn_u32 v7, v4, v5\ns_waitcnt lgkmcnt(0)\nv_readfirstlane_b32 s10, v7")
a(f"s_and_b32 s11, s9, 1\ns_lshl_b32 s11, s11, 6\ns_add_u32 s11, s11, 128\ns_cmp_eq_u32 s10, 3\ns_cselect_b32 s11, s11, {OOB}\nbuffer_atomic_add v5, v6, {DBG}, s11 offen sc1\ns_mov_b64 exec, -1")
stamp(2)
a(f"s_setprio {opt('wprio', 1)}\ns_mov_b32 s35, 0\ns_branch L_kg_nsig")
a("L_kg_done:")
a("s_waitcnt vmcnt(4)")
a("s_cmp_ge_u32 s35, 3\ns_cbranch_scc1 L_clr_fin")
a(clr_s)
need_clr("fin")
a(f"s_waitcnt lgkmcnt(0)\ns_cmp_lt_u32 {WV}, 4\ns_cbranch_scc1 L_kg_nc\ns_cmp_eq_u32 s68, 2\ns_cbranch_scc1 L_kg_nc\ns_waitcnt vmcnt(0)")
a(c_issue)
a("L_kg_nc:")
a("s_nop 7")
stamp(4)
a(f"s_setprio {opt('pprio', 2)}")
r = lambda i: KA + i
a("v_lshlrev_b32 v1, 4, v0\nv_add_u32 v13, s69, v1")
zero(4, 4)
for i in range(3): a(f"ds_write_b128 v13, v[4:7] offset:{SCR+1024*i}")
a("v_and_b32 v3, 31, v0\nv_lshlrev_b32 v2, 4, v3\nv_sub_u32 v2, s69, v2\nv_add_u32 v2, 512, v2")
def pack(o, pairs):
    for i, (lo, hi) in enumerate(pairs): a(f"v_cvt_pk_bf16_f32 v{o+i}, {lo}, {hi}")
R = lambda i: f"v{KA+i}"
pack(16, [(R(7),R(6)),(R(5),R(4)),(R(3),R(2)),(R(1),R(0))])
pack(20, [(R(4),R(3)),(R(2),R(2)),(R(2),R(1)),(R(0),R(0))])
pack(24, [("0","0"),(R(9),R(9)),(R(9),R(8)),(R(8),R(8))])
pack(28, [(R(9),R(10)),(R(13),R(14))])
pack(30, [(R(9),R(11)),(R(13),R(15))])
a(f"v_and_b32 v8, 1, v3\nv_and_b32 v10, 30, v3\nv_mul_u32_u24 v9, 320, v8\nv_mul_u32_u24 v8, 640, v8\ns_add_u32 s10, s69, {T2}\nv_sub_u32 v10, s10, v10\nv_add_u32 v8, v8, v10\nv_add_u32 v9, v9, v10")
a("s_mov_b32 exec_hi, 0")
a(f"ds_write_b128 v2, v[16:19] offset:{IMG+1072-512}")
for q in range(4):
    for cp in range(2): a(f"ds_write_b16{'_d16_hi' if q & 1 else ''} v9, v{30+q//2} offset:{T3-T2 + 160*cp + 2*(63-16*q-cp)}")
a("s_mov_b32 exec_hi, -1\ns_mov_b32 exec_lo, 0")
a(f"ds_write_b128 v2, v[20:23] offset:{IMG+560-512}")
for q in range(2):
    for w in range(2):
        for cp in range(2): a(f"ds_write_b16{'_d16_hi' if w else ''} v8, v{28+q} offset:{320*w + 160*cp + 2*(47-16*q-cp)}")
a(f"s_mov_b32 exec_hi, 1\nds_write_b128 v2, v[24:27] offset:{IMG+48-512}\nds_write_b16 v8, v4 offset:{2*47}\nds_write_b16 v8, v4 offset:{160+2*46}\ns_mov_b64 exec, -1")
a(f"s_cmp_lt_u32 {WV}, 4\ns_cbranch_scc1 L_kexp")
a("s_cmp_eq_u32 s68, 2\ns_cbranch_scc1 L_cv_kpart\ns_waitcnt lgkmcnt(0)")
a(c_test)
a("s_cbranch_scc0 L_cv_kpart")
uloads()
a("s_mov_b32 s68, 2")
a("L_cv_kpart:")
B2, B3 = 164, 188
a(f"v_mov_b32 v5, s69\nds_read_u16 v34, v5 offset:{T2 + 6*160 + 2*16}")
a(f"ds_read_b128 v[16:19], v{cLIN} offset:{IMG}\nds_read_b64 v[20:21], v{cLIN} offset:{IMG+16}\nds_read_b128 v[24:27], v{cIMG2} offset:{IMG+1024}\nds_read_b64 v[28:29], v{cIMG2} offset:{IMG+1040}")
for i in range(6):
    for h in range(2): a(f"ds_read2_b32 {vr(B2+4*i+2*h,2)}, v{cT2} offset0:{4*i+2*h} offset1:{4*i+2*h+1}")
for d in range(4):
    for h in range(2): a(f"ds_read2_b32 {vr(B3+4*d+2*h,2)}, v{cT3} offset0:{8*(3-d)+2*h} offset1:{8*(3-d)+2*h+1}")
a("v_lshl_or_b32 v5, v147, 16, v147")
for k in range(4): a(f"v_and_b32 v{AD+k}, v{AD+k}, v5")
a("s_waitcnt lgkmcnt(15)\nv_lshl_or_b32 v5, v34, 16, v34")
for k in range(4): a(f"v_and_b32 v{AB+k}, v{AB+k}, v5")
for rr, (D, va, off) in enumerate(((16, cKW1, 0), (24, cKW2, 4608))):
    O = 64 + 16*rr
    for i in range(4):
        a(f"v_mov_b32 v{O+4*i}, v{D+i}\nv_mov_b32 v{O+4*i+1}, v{D+i+1}")
        a(f"v_alignbit_b32 v{O+4*i+2}, v{D+i+1}, v{D+i}, 16\nv_alignbit_b32 v{O+4*i+3}, v{D+i+2}, v{D+i+1}, 16")
        a(f"ds_write_b128 v{va}, {vr(O+4*i,4)} offset:{off + 16*i}")
a(f"ds_read_b64 {vr(A16,2)}, v{cA0}\nds_read_b64 {vr(A16+2,2)}, v{cA1}")
stamp(5)
a("s_cmp_lg_u32 s101, 0\ns_cbranch_scc1 L_cv_direct")
a("L_cv_upart:")
a(f"s_setprio {opt('pprio', 2)}")
zero(4, 4)
a(f"s_mov_b64 exec, 0x3fffffff\nds_write_b128 v{cLIN}, v[4:7] offset:{UB-480}\ns_mov_b64 exec, 3")
for o in (W3B-48, W5B-48, W7B-48, W9B-48, W9B+2032): a(f"ds_write_b128 v{cLIN}, v[4:7] offset:{o}")
a("s_mov_b64 exec, -1")
a("s_bitcmp1_b32 s68, 1\ns_cbranch_scc1 L_cv_u2")
spoll(c_issue, c_test, sleep=opt("lsleep", 6))
uloads()
a("L_cv_u2:")
a("s_mov_b32 s31, 0\ns_bitcmp1_b32 s68, 0\ns_cbranch_scc1 L_cv_u3\ns_cmp_eq_u32 s101, 0\ns_cbranch_scc1 L_cv_u3")
a(sld(31, S_MB))
a("L_cv_u3:")
stamp(6)
a("s_waitcnt vmcnt(0)")
for q in range(4): a(f"ds_write_b128 v{cLIN}, {vr(148+4*q,4)} offset:{UB+1024*q}")
SET = [(16, 24), (56, 64)]; CA = 96
a(f"v_mov_b32 v13, v{cLIN}\ns_mov_b32 s3, 0")
o = UB - 16
wrd = f"ds_read_b64 v[128:129], v13 offset:{o-8}\nds_read_b128 v[130:133], v13 offset:{o}\nds_read_b64 v[134:135], v13 offset:{o+16}"
a(wrd)
a("s_waitcnt lgkmcnt(0)\ns_and_b32 s13, s31, s101\ns_cbranch_scc0 L_cv_win")
kloads()
a("s_or_b32 s68, s68, 1")
a("L_cv_win:")
D = 128; Pf = 96
for e in range(16):
    a(f"v_lshlrev_b32 v{Pf+e}, 16, v{D+e//2}" if e % 2 == 0 else f"v_and_b32 v{Pf+e}, 0xffff0000, v{D+e//2}")
a(wrd.replace(f"offset:{o-8}", f"offset:{o-8+1024}").replace(f"offset:{o}\n", f"offset:{o+1024}\n").replace(f"offset:{o+16}", f"offset:{o+16+1024}"))
for e in range(1, 16): a(f"v_add_f32 v{Pf+e}, v{Pf+e}, v{Pf+e-1}")
for h, base in ((1, W3B), (2, W5B), (3, W7B), (4, W9B)):
    if h == 3: a("s_cmp_eq_u32 s3, 2\ns_cbranch_scc1 L_cv_wend")
    T = 112
    for i in range(8):
        b = 4+i-h-1
        a(f"v_sub_f32 v{T+i}, v{Pf+4+i+h}, v{Pf+b}" if b >= 0 else f"v_mov_b32 v{T+i}, v{Pf+4+i+h}")
    for i in range(4): a(f"v_cvt_pk_bf16_f32 v{120+4*(h&1)+i}, v{T+2*i}, v{T+2*i+1}")
    a(f"ds_write_b128 v13, {vr(120+4*(h&1),4)} offset:{base-16}")
a("v_add_u32 v13, 1024, v13\ns_add_u32 s3, s3, 1\ns_waitcnt lgkmcnt(4)\ns_branch L_cv_win")
a("L_cv_wend:")
a("s_cmp_lg_u32 s101, 0\ns_cbranch_scc1 L_cv_rk")
a("L_cv_direct:")
a(f"v_add_u32 v8, 2304, v{cA0}\nv_add_u32 v9, 2304, v{cA1}\nv_mov_b32 v10, v{cB}")
def rd(st):
    A_, B_ = SET[st]; Rr = []
    for x in range(2):
        Rr.append(f"ds_read_b64 {vr(A_+4*x,2)}, v8 offset:{2304*(1-x)}")
        Rr.append(f"ds_read_b64 {vr(A_+4*x+2,2)}, v9 offset:{2304*(1-x)}")
    for b in range(8): Rr.append(f"ds_read_b128 {vr(B_+4*b,4)}, v10 offset:{512*b}")
    return Rr
advk = ["v_subrev_u32 v8, 288, v8", "v_subrev_u32 v9, 288, v9", "v_subrev_u32 v10, 64, v10"]
for x in rd(0) + advk: a(x)
a(f"s_setprio {opt('cprio', 2)}\ns_mov_b32 s3, 0\ns_waitcnt lgkmcnt(0)")
if PROF: a("s_cmp_lt_u32 s4, 4\ns_cbranch_scc1 L_ns7")
stamp(7)
if PROF: a("L_ns7:")
def mf(n, A_, B_, c=None): a(f"v_mfma_f32_16x16x32_bf16 {vr(CA+4*n,4)}, {vr(A_,4)}, {vr(B_,4)}, {c if c else vr(CA+4*n,4)}")
for b in range(8): mf(b, AD, SET[0][1]+4*b, "0")
for b in range(6): mf(b+2, A16, SET[0][1]+4*b)
for b in range(4): mf(b+4, AB, SET[0][1]+4*b)
a("L_cv_loop:")
for st in range(2):
    A_, B_ = SET[st]; Rr = rd(1-st); n = 0
    for x in range(2):
        for b in range(8-x):
            mf(x+b, A_+4*x, B_+4*b)
            if n < 6: a(Rr[2*n]); a(Rr[2*n+1])
            elif n < 9: a(advk[n-6])
            if st == 1 and n == 12: a("s_add_u32 s3, s3, 1\ns_cmp_lt_u32 s3, 4")
            n += 1
    a("s_waitcnt lgkmcnt(0)")
a("s_cbranch_scc1 L_cv_loop")
a("L_cv_far:")
for f in range(12):
    for h in range(2): a(f"ds_read_b64_tr_b16 {vr(16+4*f+2*h,2)}, v{cW2} offset:{256*f+128*h}")
    if f == 6: a("s_waitcnt lgkmcnt(8)")
for f in range(4):
    for h in range(2): a(f"ds_read_b64_tr_b16 {vr(64+4*f+2*h,2)}, v{cW3} offset:{512*f+128*h}")
a("s_waitcnt lgkmcnt(8)")
for f in range(12):
    for n in range(2, 8):
        i = f + 8 - 2*n
        if 0 <= i < 6: mf(n, 16+4*f, B2+4*i)
a("s_waitcnt lgkmcnt(0)")
for f in range(4):
    for n in range(4+f, 8): mf(n, 64+4*f, B3+4*(n-f-4))
if PROF: a("s_cmp_lt_u32 s4, 4\ns_cbranch_scc1 L_ns8")
stamp(8)
if PROF: a("L_ns8:")
a(f"s_lshl_b32 s14, s{S_CH}, 7\ns_add_u32 s14, s14, {YA}\ns_nop 7")
for n in range(0, 8, 2):
    o = 16 + 2*n
    a(f"v_cvt_pk_bf16_f32 v{o}, v{CA+4*n}, v{CA+4*n+1}\nv_cvt_pk_bf16_f32 v{o+1}, v{CA+4*n+2}, v{CA+4*n+3}")
    a(f"v_cvt_pk_bf16_f32 v{o+2}, v{CA+4*n+4}, v{CA+4*n+5}\nv_cvt_pk_bf16_f32 v{o+3}, v{CA+4*n+6}, v{CA+4*n+7}")
    a(f"v_permlane16_swap_b32 v{o}, v{o+2}\nv_permlane16_swap_b32 v{o+1}, v{o+3}")
    a(f"buffer_store_dwordx4 {vr(o,4)}, v{cST}, {WS}, s14 offen sc1\ns_add_u32 s14, s14, {8*81920}")
a(f"s_mul_i32 s13, s{S_CH}, 820\ns_lshr_b32 s13, s13, 16\ns_lshl_b32 s14, s13, 9\ns_add_u32 s14, s14, {YAC}\nv_lshlrev_b32 v4, 7, v0\nv_mov_b32 v5, 1")
a(f"s_waitcnt vmcnt(0)\ns_mov_b64 exec, 15\nbuffer_atomic_add v5, v4, {WS}, s14 offen sc1\ns_mov_b64 exec, -1")
a("s_setprio 0")
stamp(9)
a(f"s_cmp_eq_u32 {WV}, 7\ns_cbranch_scc1 L_fetch")
endp()
a("L_kexp:")
for q in range(3): a(f"ds_read_b128 {vr(16+4*q,4)}, v13 offset:{SCR+1024*q}")
a(f"s_lshl_b32 s9, s{S_CH}, 12\ns_add_u32 s9, s9, {KD}")
for q in range(3): a(f"s_waitcnt lgkmcnt({2-q})\nbuffer_store_dwordx4 {vr(16+4*q,4)}, v1, {WS}, s9 offen offset:{1024*q} sc1")
a(f"s_sub_u32 s8, s{S_CH}, 256\ns_lshr_b32 s8, s8, 3\ns_lshl_b32 s8, s8, 2\ns_add_u32 s8, s8, {WV}\ns_cmp_ge_u32 s8, 144\ns_cselect_b32 s12, 1, 0\ns_mul_i32 s9, s12, 144\ns_sub_u32 s8, s8, s9")
a("s_mul_i32 s9, s8, 1821\ns_lshr_b32 s9, s9, 16\ns_mul_i32 s10, s9, 36\ns_sub_u32 s8, s8, s10")
a("s_cmp_ge_u32 s8, 20\ns_cselect_b32 s10, 1, 0\ns_mul_i32 s11, s10, 20\ns_sub_u32 s8, s8, s11\ns_lshl_b32 s8, s8, 3\ns_lshl_b32 s9, s9, 1\ns_add_u32 s8, s8, s9\ns_add_u32 s8, s8, s10")
a(f"s_lshl_b32 s8, s8, 7\ns_add_u32 s8, s8, {MBOX}\ns_lshl_b32 s9, 0x1000000, s12\nv_mov_b32 v4, 0\nv_mov_b32 v5, s9")
a(f"s_waitcnt vmcnt(0)\ns_mov_b64 exec, 1\nbuffer_atomic_or v5, v4, {WS}, s8 offen sc1\ns_mov_b64 exec, -1")
stamp(12)
a("s_setprio 0\ns_mov_b32 s35, 1\ns_branch L_g2")
a("L_cv_rk:")
a("s_bitcmp1_b32 s68, 0\ns_cbranch_scc1 L_cv_k1")
spoll(sld(31, S_MB), "s_and_b32 s13, s31, s101", sleep=6)
kloads()
a("L_cv_k1:")
for q in range(3): a(f"s_waitcnt vmcnt({2-q})\nds_write_b128 v{cLIN}, {vr(32+4*q,4)} offset:{SCR+1024*q}")
stamp(4)
a("s_branch L_cv_kpart")

a("L_end:")
if PROF:
    a(f"s_lshl_b32 s93, s2, 3\ns_add_u32 s93, s93, {WV}\ns_lshl_b32 s93, s93, 6\ns_add_u32 s93, s93, {PROFB}")
    a(f"s_memrealtime s[94:95]\ns_waitcnt lgkmcnt(0)\ns_mov_b32 s87, s94\ns_mov_b32 s72, s{S_SPIN}")
    for i in range(16): a(f"v_mov_b32 v{224+i}, s{72+i}")
    a("v_mov_b32 v255, 0\ns_mov_b64 exec, 1")
    for i in range(4): a(f"buffer_store_dwordx4 {vr(224+4*i,4)}, v255, {WS}, s93 offen offset:{16*i}")
    if opt("dbgmax", 0):
        a(f"v_not_b32 v238, v238\ns_and_b32 s93, {WV}, 3\ns_cmp_lg_u32 s93, 0\ns_cbranch_scc1 L_exit")
        sel0 = {1: 14, 2: 15, 3: 1, 4: 2, 5: 5, 6: 6, 7: 8, 8: 10}
        sel4 = {9: 10, 10: 4, 11: 7, 12: 8, 13: 9}
        a(f"s_cmp_lg_u32 {WV}, 0\ns_cbranch_scc1 L_dbg4")
        for d, i in sel0.items(): a(f"buffer_atomic_umax v{224+i}, v255, {DBG}, 0 offen offset:{4*d} sc1")
        a("s_branch L_exit")
        a("L_dbg4:")
        for d, i in sel4.items(): a(f"buffer_atomic_umax v{224+i}, v255, {DBG}, 0 offen offset:{4*d} sc1")
a("L_exit:")
a("s_endpgm")

hdr = open("cdna_kernels/%s.s.ref" % NAME).read().split("; Override launch")[0]
out = hdr + "; @launch grid=(256,1,1) block=(512,1,1) lds=163840\n"
out += '.amdgcn_target "amdgcn-amd-amdhsa--gfx950"\n.text\n' + a.text()
out += f""".section .rodata,"a"
.p2align 6
.amdhsa_kernel {KN}
  .amdhsa_next_free_vgpr 256
  .amdhsa_next_free_sgpr 102
  .amdhsa_accum_offset 256
  .amdhsa_group_segment_fixed_size 0
  .amdhsa_kernarg_size 136
  .amdhsa_user_sgpr_count 2
  .amdhsa_user_sgpr_kernarg_segment_ptr 1
  .amdhsa_system_sgpr_workgroup_id_x 1
.end_amdhsa_kernel
"""
path = [x for x in sys.argv[1:] if not x.startswith("--")]
open(path[0] if path else "f.s", "w").write(out)
```

```python
import sys, struct, math
sys.path.insert(0, "dev")
from asmlib import Asm, vr, sr

NAME = "parallel_sum__ssm_conv_s4__dense_activation_gelu__prompt"
KN = NAME + "_kernel"
PROF = "--prof" in sys.argv
def opt(name, default):
    for x in sys.argv:
        if x.startswith("--%s=" % name): return int(x.split("=")[1])
    return default
def f32(x): return "0x%08x" % struct.unpack("<I", struct.pack("<f", x))[0]

XNT, KD, YA, W2F = 0x000000, 0x280000, 0x500000, 0x780000
CLR = 0x9A0000
STATS, CSUM, MBOX, LNC, W2C, YAC = CLR, CLR+0x2000, CLR+0x10000, CLR+0x18000, CLR+0x1C000, CLR+0x1A000
CSP = 13824
PROFB, HF = 0x9C0000, 0xA00000
WS_SIZE = 0x1100000
OOB = "0x7f000000"
P = dict(u=16, are=18, aim=20, bre=22, bim=24, cre=26, cim=28, ldt=30, dsk=32, bx=34, w1=36, b1=38, w2=40, b2=42, out=44, dbg=46, ws=48)
S_WS, S_A, S_B, S_DBG = 52, 56, 60, 64
S_WAVE, S_XR, S_XC, S_J, S_SPIN, S_CH = 4, 5, 6, 7, 50, 51
S_MB = 34
WV = f"s{S_WAVE}"
WS = f"s[{S_WS}:{S_WS+3}]"; SA = f"s[{S_A}:{S_A+3}]"; SB = f"s[{S_B}:{S_B+3}]"; DBG = f"s[{S_DBG}:{S_DBG+3}]"
STG = 40960
NST = 3
AREG, BREG0, BREG = 20480, 81920, 20480
B7 = BREG0 + 3*BREG
CNT = B7 + 20096
YAT = B7
UB = 5536
W3B, W5B, W7B, W9B = 9664, 12768, 15872, 17952
SCR = 512
IMG, T2, T3 = SCR, SCR+1136, SCR+2416
STATL = BREG0 + 2*BREG
NT = " nt" if opt("nt", 0) else ""
NT1 = " nt" if opt("nt1", 1) else ""

a = Asm()
G2F = " sc1" if opt("g2sc1", 1) else ""
def srd(d, ptr, size):
    a(f"s_mov_b32 s{d}, s{ptr}\ns_mov_b32 s{d+1}, s{ptr+1}\ns_mov_b32 s{d+2}, {hex(size)}\ns_mov_b32 s{d+3}, 0x20000")
def stamp(idx):
    if PROF: a(f"s_memtime s[92:93]\ns_waitcnt lgkmcnt(0)\ns_sub_u32 s{72+idx}, s92, s90")
def lstamp(o):
    if PROF: a(f"s_memtime s[92:93]\ns_waitcnt lgkmcnt(0)\ns_sub_u32 s92, s92, s90\ns_add_u32 m0, s3, {o}\nv_writelane_b32 v200, s92, m0")
def endp(): a("s_branch L_end")
def cmul(d, x, y, t):
    a(f"v_pk_mul_f32 {vr(t,2)}, {vr(x,2)}, {vr(y,2)} op_sel:[0,0] op_sel_hi:[0,1]")
    a(f"v_pk_fma_f32 {vr(d,2)}, {vr(x,2)}, {vr(y,2)}, {vr(t,2)} op_sel:[1,1,0] op_sel_hi:[1,0,1] neg_lo:[0,1,0]")
def poll(issue, test, sleep=4, issued=True):
    L = a.label("L_poll"); D = a.label("L_pdone")
    if not issued: a(issue)
    a(f"{L}:")
    a("s_waitcnt vmcnt(0)")
    a(test)
    a(f"s_cbranch_scc1 {D}")
    a(f"s_add_u32 s{S_SPIN}, s{S_SPIN}, 1\ns_cmp_gt_u32 s{S_SPIN}, 100000\ns_cbranch_scc1 L_exit")
    a(f"s_sleep {sleep}")
    a(issue)
    a(f"s_branch {L}")
    a(f"{D}:")
def sld(d, off): return f"s_load_dword s{d}, s[{P['ws']}:{P['ws']+1}], s{off} glc"
def spoll(issue, test, sleep=4, issued=False, far=None):
    L = a.label("L_spoll"); D = a.label("L_sdone")
    if not issued: a(issue)
    a(f"{L}:")
    a("s_waitcnt lgkmcnt(0)")
    a(test)
    a(f"s_cbranch_scc1 {D}")
    a(f"s_add_u32 s{S_SPIN}, s{S_SPIN}, 1\ns_cmp_gt_u32 s{S_SPIN}, 100000\ns_cbranch_scc1 L_exit")
    a(f"s_sleep {sleep}")
    if far:
        N = a.label("L_near")
        a(f"{far[0]}\ns_cbranch_scc1 {N}\ns_sleep {far[1]}")
        a(f"{N}:")
    a(issue)
    a(f"s_branch {L}")
    a(f"{D}:")
def arrive_issue(sreg, va, vb):
    a(f"v_mov_b32 v{va}, 0\nv_mov_b32 v{vb}, 1\ns_mov_b64 exec, 1\nbuffer_atomic_add v{vb}, v{va}, {WS}, s{sreg} offen sc0 sc1\ns_mov_b64 exec, -1")
def arrive_check(st, vb, n, then):
    L = a.label("L_arr")
    a(f"s_waitcnt vmcnt(0)\nv_readfirstlane_b32 s{st}, v{vb}\ns_cmp_lg_u32 s{st}, {n-1}\ns_cbranch_scc1 {L}")
    a(then)
    a(f"{L}:")
def push_all(bitreg, off, va, vb, st):
    t = f"v_lshlrev_b32 v{va}, 7, v0\nv_mov_b32 v{vb}, s{bitreg}\ns_mov_b32 s{st}, {MBOX+off}\n"
    for i in range(4): t += f"buffer_atomic_or v{vb}, v{va}, {WS}, s{st} offen sc1\ns_add_u32 s{st}, s{st}, 8192\n"
    return t
def few(mask, ins): return f"s_mov_b64 exec, {mask}\n{ins}\ns_mov_b64 exec, -1"
def clr_issue(v, vo): return few(15, f"buffer_load_dword v{v}, v{vo}, {DBG}, 0 offen sc1")
def clr_test(v): return f"v_cmp_ne_u32 vcc, 0, v{v}\ns_and_b32 vcc_lo, vcc_lo, 15\ns_cmp_eq_u32 vcc_lo, 15"
def nz_test(v): return f"v_cmp_ne_u32 vcc, 0, v{v}\ns_cmp_eq_u64 vcc, -1"
def zero(b, n):
    for i in range(0, n, 2): a(f"v_pk_mov_b32 {vr(b+i,2)}, 0, 0")

cLIN, cIMG2, cT2, cT3, cW2, cW3, cST, cKW1, cKW2, cA0, cA1, cB, cU = 247, 248, 249, 250, 251, 252, 253, 254, 255, 231, 236, 237, 146
AD, AB, A16 = 204, 224, 232
RS = opt("rowsplit", 0)
def tile_rc(rt, cb, tmp):
    if RS: return f"s_and_b32 s{rt}, s2, 7\ns_lshl_b32 s{rt}, s{rt}, 2\ns_lshr_b32 s{cb}, s{S_J}, 3\ns_add_u32 s{rt}, s{rt}, s{cb}\ns_and_b32 s{cb}, s{S_J}, 7"
    return (f"s_lshl_b32 s{rt}, s{S_XR}, 3\ns_lshr_b32 s{cb}, s{S_J}, 2\ns_add_u32 s{rt}, s{rt}, s{cb}\n"
            f"s_lshl_b32 s{cb}, s{S_XC}, 2\ns_and_b32 s{tmp}, s{S_J}, 3\ns_add_u32 s{cb}, s{cb}, s{tmp}")
def conv_setup(t=64):
    r_, g_, h_, f_, x_, y_, z_ = (f"v{t+i}" for i in range(7))
    a(f"v_lshlrev_b32 {x_}, 4, v0\nv_add_u32 v{cLIN}, s69, {x_}\nv_min_u32 {z_}, 5, v0\nv_lshl_add_u32 v{cIMG2}, {z_}, 4, s69")
    a(f"v_lshlrev_b32 {x_}, 6, {z_}\nv_lshrrev_b32 {y_}, 1, {z_}\nv_lshl_add_u32 {x_}, {y_}, 4, {x_}\nv_add_u32 v{cKW2}, s69, {x_}")
    a(f"v_lshlrev_b32 {x_}, 6, v0\nv_lshrrev_b32 {y_}, 1, v0\nv_lshl_add_u32 {x_}, {y_}, 4, {x_}\nv_add_u32 v{cKW1}, s69, {x_}")
    a(f"v_lshrrev_b32 {x_}, 2, v0\nv_mul_u32_u24 {x_}, 40960, {x_}\nv_and_b32 {y_}, 3, v0\nv_lshl_add_u32 v{cU}, {y_}, 4, {x_}")
    a(f"v_and_b32 {r_}, 15, v0\nv_lshrrev_b32 {g_}, 4, v0\nv_and_b32 {h_}, 1, {g_}\nv_lshrrev_b32 {f_}, 1, {g_}")
    a(f"v_sub_u32 {x_}, 15, {r_}\nv_and_b32 {y_}, 1, {x_}\nv_sub_u32 {x_}, {x_}, {y_}\nv_lshlrev_b32 {x_}, 1, {x_}")
    a(f"v_lshl_add_u32 {z_}, {g_}, 1, {y_}\nv_mul_u32_u24 {z_}, 160, {z_}\nv_add_u32 {z_}, {z_}, {x_}\ns_add_u32 s10, s69, {T2}\nv_add_u32 v{cT2}, s10, {z_}")
    a(f"v_lshl_add_u32 {z_}, {h_}, 1, {y_}\nv_mul_u32_u24 {z_}, 160, {z_}\nv_add_u32 {z_}, {z_}, {x_}\nv_lshl_add_u32 {z_}, {f_}, 4, {z_}\ns_add_u32 s10, s69, {T3}\nv_add_u32 v{cT3}, s10, {z_}")
    a(f"v_mul_u32_u24 {x_}, {W5B-W3B}, {h_}\nv_lshlrev_b32 {y_}, 3, {g_}\nv_sub_u32 {x_}, {x_}, {y_}\nv_lshl_add_u32 {x_}, {r_}, 3, {x_}\ns_add_u32 s10, s69, {W3B-8}\nv_add_u32 v{cW2}, s10, {x_}")
    a(f"v_mul_u32_u24 {x_}, {W9B-W7B-16}, {h_}\nv_lshl_add_u32 {x_}, {f_}, 8, {x_}\nv_lshl_add_u32 {x_}, {r_}, 3, {x_}\ns_add_u32 s10, s69, {W7B-16}\nv_add_u32 v{cW3}, s10, {x_}")
    a(f"v_lshlrev_b32 {x_}, 2, {h_}\nv_lshrrev_b32 {z_}, 2, {r_}\nv_add_u32 {x_}, {x_}, {z_}\nv_mul_u32_u24 {x_}, 81920, {x_}\nv_lshl_add_u32 {x_}, {f_}, 6, {x_}\nv_and_b32 {z_}, 3, {r_}\nv_lshl_add_u32 v{cST}, {z_}, 4, {x_}")
    a(f"s_add_u32 s10, s69, {UB-32}\nv_lshlrev_b32 {x_}, 5, {r_}\nv_lshl_add_u32 {x_}, {g_}, 4, {x_}\nv_add_u32 v{cB}, s10, {x_}")
    a(f"v_sub_u32 {z_}, {y_}, {r_}\nv_add_u32 {z_}, 15, {z_}\nv_sub_u32 {y_}, {r_}, {y_}")
    a(f"v_lshrrev_b32 {x_}, 4, {z_}\nv_lshlrev_b32 {x_}, 4, {x_}\nv_lshl_add_u32 {x_}, {z_}, 3, {x_}\nv_add_u32 v{cA0}, s69, {x_}")
    a(f"v_add_u32 {z_}, 4, {z_}\nv_lshrrev_b32 {x_}, 4, {z_}\nv_lshlrev_b32 {x_}, 4, {x_}\nv_lshl_add_u32 {x_}, {z_}, 3, {x_}\nv_add_u32 v{cA1}, s69, {x_}")
    a(f"v_mov_b32 {r_}, 0xffff\nv_mov_b32 {g_}, 0xffff0000\nv_mov_b32 {h_}, -1")
    for k in range(4):
        a(f"v_cmp_eq_u32 vcc, {2*k-16}, {y_}\nv_cndmask_b32 v{AD+k}, 0, {r_}, vcc\nv_cmp_eq_u32 vcc, {2*k+1-16}, {y_}\nv_cndmask_b32 v{AD+k}, v{AD+k}, {g_}, vcc")
        a(f"v_cmp_eq_u32 vcc, {2*k-12}, {y_}\nv_cndmask_b32 v{AB+k}, 0, {h_}, vcc\nv_cmp_eq_u32 vcc, {2*k-13}, {y_}\nv_cndmask_b32 v{AB+k}, v{AB+k}, {r_}, vcc\nv_cmp_eq_u32 vcc, {2*k-11}, {y_}\nv_cndmask_b32 v{AB+k}, v{AB+k}, {g_}, vcc")
def uloads():
    a(f"s_lshl_b32 s10, s{S_CH}, 6")
    for q in range(4): a(f"buffer_load_dwordx4 {vr(148+4*q,4)}, v{cU}, {WS}, s10 offen sc1\ns_add_u32 s10, s10, 655360")
def kloads():
    a(f"s_lshl_b32 s10, s{S_CH}, 12\ns_add_u32 s10, s10, {KD}")
    for q in range(3): a(f"buffer_load_dwordx4 {vr(32+4*q,4)}, v1, {WS}, s10 offen offset:{1024*q} sc1")
lnc_addr = f"s_mul_i32 s13, s{S_CH}, 410\ns_lshr_b32 s13, s13, 16\ns_lshl_b32 s13, s13, 4\ns_and_b32 s100, s2, 15\ns_add_u32 s100, s100, s13\ns_lshl_b32 s100, s100, 7\ns_add_u32 s100, s100, {LNC}"

a.raw(f".globl {KN}\n.p2align 8\n.type {KN},@function")
a(f"{KN}:")
a("s_cmp_ge_u32 s2, 256\ns_cbranch_scc1 L_exit")
a("s_load_dwordx16 s[16:31], s[0:1], 0\ns_load_dwordx16 s[32:47], s[0:1], 64\ns_load_dwordx2 s[48:49], s[0:1], 128")
if opt("cpf", 1):
    a(f"s_cmp_ge_u32 s2, {opt('cpfn', 8)}\ns_cbranch_scc1 L_nocpf")
    a("s_getpc_b64 s[12:13]")
    a("L_cpfb:")
    a("v_lshlrev_b32 v20, 7, v0\nv_min_u32 v20, L_exit-L_cpfb, v20\nv_mov_b32 v21, s13\nv_add_co_u32 v20, vcc, s12, v20\nv_addc_co_u32 v21, vcc, 0, v21, vcc")
    a("global_load_dword v22, v[20:21], off")
    a("L_nocpf:")
if PROF:
    a("s_memtime s[90:91]\ns_memrealtime s[94:95]")
    for i in range(16): a(f"s_mov_b32 s{72+i}, 0")
a("v_lshrrev_b32 v1, 6, v0\nv_and_b32 v0, 63, v0")
a(f"v_readfirstlane_b32 {WV}, v1")
a(f"s_bfe_u32 s{S_XR}, s2, 0x20001\ns_and_b32 s{S_XC}, s2, 1\ns_lshr_b32 s{S_J}, s2, 3\ns_mov_b32 s{S_SPIN}, 0")
a(f"s_lshl_b32 s8, s{S_XC}, 2\ns_sub_u32 s8, 20, s8")
a(f"s_cmp_eq_u32 s{S_XC}, 0\ns_cselect_b32 s9, 52, 64\ns_mul_i32 s9, s9, s{S_J}\ns_lshr_b32 s9, s9, 8")
a(f"s_sub_u32 s11, 5, s{S_XC}\ns_mul_i32 s11, s11, s9\ns_sub_u32 s10, s{S_J}, s11\ns_mul_i32 s11, s{S_XC}, 5\ns_add_u32 s10, s10, s11")
a(f"s_lshl_b32 s11, s{S_XR}, 2\ns_add_u32 s9, s9, s11")
a("v_lshrrev_b32 v4, 3, v0\nv_mul_u32_u24 v4, 1280, v4")
a("v_and_b32 v5, 7, v0\nv_lshrrev_b32 v6, 4, v0\nv_xor_b32 v5, v5, v6\nv_lshl_add_u32 v2, v5, 4, v4")
a("v_xor_b32 v5, 4, v5\nv_lshl_add_u32 v3, v5, 4, v4\nv_add_u32 v3, 10240, v3\nv_add_u32 v4, 20480, v2\nv_add_u32 v5, 20480, v3")
for i in range(3):
    a(f"v_add_u32 v6, {64*i}, v0\nv_mul_u32_u24 v7, 2731, v6\nv_lshrrev_b32 v7, 16, v7\nv_lshlrev_b32 v14, 1, v7\nv_and_b32 v14, 4, v14\nv_xor_b32 v6, v6, v14")
    a(f"v_mul_u32_u24 v7, 3072, v7\nv_lshl_add_u32 v{8+i}, v6, 4, v7\nv_add_u32 v{11+i}, 27648, v{8+i}")
a(f"s_and_b32 s99, {WV}, 3")
a("s_lshl_b32 s11, s9, 7\ns_lshl_b32 s12, s99, 5\ns_add_u32 s11, s11, s12\ns_mul_i32 s11, s11, 1280")
a("s_mul_i32 s12, s99, 55296\ns_mul_i32 s13, s10, 384\ns_add_u32 s12, s12, s13")
a("s_lshl_b32 s13, s99, 12\ns_mul_i32 s14, s99, 6144\ns_add_u32 s14, s14, 16384\ns_mov_b32 s3, 0")
a(f"s_and_b32 s15, s9, 3\ns_mul_i32 s15, s15, 5\ns_add_u32 s15, s15, 1\ns_lshr_b32 s15, s15, 1\ns_lshl_b32 s68, s10, 1\ns_add_u32 s15, s15, s68\ns_add_u32 s15, s15, s{S_XR}")
a("s_mul_i32 s68, s15, 26\ns_lshr_b32 s68, s68, 8\ns_mul_i32 s68, s68, 10\ns_sub_u32 s15, s15, s68")
a("s_lshl_b32 s68, s15, 7\ns_add_u32 s11, s11, s68\ns_mul_i32 s68, s15, 221184\ns_add_u32 s12, s12, s68\ns_mov_b32 s69, 0")
for d, size in ((S_WS, WS_SIZE), (S_A, 2621440), (S_B, 2211840), (S_DBG, 256)): a(f"s_mov_b32 s{d+2}, {hex(size)}\ns_mov_b32 s{d+3}, 0x20000")
a("v_mov_b32 v146, 0\nv_mov_b32 v253, 0\ns_mov_b32 s101, 0")
a("s_waitcnt lgkmcnt(0)")
for d, nm in ((S_A, 'u'), (S_B, 'w1'), (S_WS, 'ws'), (S_DBG, 'dbg')): a(f"s_mov_b64 s[{d}:{d+1}], s[{P[nm]}:{P[nm]+1}]")
a(f"s_lshl_b32 s{S_MB}, s2, 7\ns_add_u32 s{S_MB}, s{S_MB}, {MBOX}")
if PROF:
    a("s_mov_b32 s86, s94"); stamp(13)
if opt("g2only", 0):
    a(f"v_mov_b32 v174, 0\ns_mov_b32 s35, 1\ns_cmp_lt_u32 {WV}, 4\ns_cbranch_scc1 L_g2\ns_branch L_end")
a(f"s_cmp_ge_u32 s{S_J}, s8\ns_cbranch_scc1 L_aux")
a(f"s_cmp_lt_u32 {WV}, 4\ns_cbranch_scc1 L_comp")

a("s_mov_b32 s8, s99")
stamp(1)
S_C = 96
a("L_ld_loop:")
a("s_cmp_lt_u32 s3, 2\ns_cbranch_scc1 L_ld_nowait\ns_cmp_eq_u32 s3, 2\ns_cbranch_scc1 L_ld_setup")
a("L_ld_wait:")
a("s_waitcnt vmcnt(10)")
lstamp(0)
a("s_barrier")
lstamp(16)
a("L_ld_nowait:")
a("s_add_u32 s70, s69, s13\ns_add_u32 s71, s69, s14")
for q in range(4): a(f"s_add_u32 m0, s70, {1024*q}\nbuffer_load_dwordx4 v{2+q}, {SA}, s11 offen{NT} lds")
for i in range(6): a(f"s_add_u32 m0, s71, {1024*i}\nbuffer_load_dwordx4 v{8+i}, {SB}, s12 offen{NT} lds")
a("s_add_u32 s11, s11, 128\ns_add_u32 s12, s12, 221184\ns_add_u32 s15, s15, 1\ns_cmp_lt_u32 s15, 10\ns_cbranch_scc1 L_ld_nowrap")
a("s_sub_u32 s11, s11, 1280\ns_sub_u32 s12, s12, 2211840\ns_mov_b32 s15, 0")
a("L_ld_nowrap:")
a(f"s_add_u32 s69, s69, {STG}\ns_cmp_eq_u32 s69, {NST*STG}\ns_cselect_b32 s69, 0, s69")
a(f"s_cmp_lg_u32 s3, 7\ns_cbranch_scc1 L_ld_n5\ns_load_dwordx4 s[28:31], s[{P['dbg']}:{P['dbg']+1}], 0")
a("L_ld_n5:")
a("s_add_u32 s3, s3, 1\ns_cmp_lt_u32 s3, 10\ns_cbranch_scc1 L_ld_loop")
s_issue = f"buffer_load_dwordx4 v[16:19], v1, {WS}, s18 offen sc1\nbuffer_load_dwordx4 v[20:23], v6, {WS}, s18 offen offset:1024 sc1\nbuffer_load_dword v24, v7, {WS}, s20 offen sc1"
wc_issue = sld(26, 25)
wc_test = "s_cmp_lg_u32 s26, 0"
a("s_waitcnt lgkmcnt(0)\ns_and_b32 s28, s28, s29\ns_and_b32 s30, s30, s31\ns_and_b32 s24, s28, s30")
a(s_issue)
for w in (13, 3):
    if w == 3:
        a("s_mov_b32 s31, 0\ns_mov_b32 s33, 0\ns_cmp_eq_u32 s101, 0\ns_cbranch_scc1 L_ld_ncv")
        a(sld(31, S_MB) + "\n" + sld(33, 100))
        a("L_ld_ncv:")
    a(f"s_waitcnt vmcnt({w})")
    lstamp(0)
    a("s_barrier")
    lstamp(16)
    if PROF: a("s_add_u32 s3, s3, 1")
a("s_cmp_lg_u32 s24, 0\ns_cbranch_scc1 L_ld_clr")
poll(clr_issue(15, 14), clr_test(15), sleep=8, issued=False)
a(s_issue)
a("s_waitcnt lgkmcnt(0)\ns_mov_b32 s31, 0\ns_mov_b32 s33, 0")
a("L_ld_clr:")
s_test = "v_and_b32 v4, v17, v19\nv_and_b32 v5, v21, v23\nv_and_b32 v4, v4, v5\nv_and_b32 v4, 1, v4\nv_min_u32 v4, v4, v24\n" + nz_test(4)
poll(s_issue, s_test, sleep=8)
a("ds_write_b128 v25, v[16:19]\nds_write_b128 v26, v[20:23] offset:1024\nds_write_b32 v27, v24")
a("s_waitcnt lgkmcnt(0)\ns_mov_b32 s68, 0\ns_and_b32 s13, s31, s101\ns_cbranch_scc0 L_ld_nk0")
kloads()
a("s_mov_b32 s68, 1")
a("L_ld_nk0:")
a("s_cmp_ge_u32 s33, 64\ns_cbranch_scc0 L_ld_nk")
uloads()
a("s_or_b32 s68, s68, 2")
a("L_ld_nk:")
a("s_barrier")
lstamp(16)
if PROF:
    a(f"s_lshl_b32 s93, s2, 9\ns_lshl_b32 s92, s8, 7\ns_add_u32 s93, s93, s92\ns_add_u32 s93, s93, {PROFB+0x20000}\nv_lshlrev_b32 v201, 2, v0\ns_mov_b32 exec_hi, 0\nbuffer_store_dword v200, v201, {WS}, s93 offen\ns_mov_b32 exec_hi, -1")
stamp(2)
a(f"s_cmp_eq_u32 {WV}, 7\ns_cbranch_scc1 L_fetch")
a(f"s_cmp_eq_u32 {WV}, 6\ns_cbranch_scc1 L_park")
a(f"s_cmp_eq_u32 s101, 0\ns_cbranch_scc1 L_end\ns_mul_i32 s69, {WV}, {AREG}\ns_branch L_cv_upart")
wc_prep = f"s_and_b32 s25, s2, 31\ns_lshl_b32 s25, s25, 7\ns_add_u32 s25, s25, {W2C+1024}"
a("L_ld_setup:")
a("v_lshlrev_b32 v1, 4, v0\nv_and_b32 v7, 31, v0\nv_lshlrev_b32 v6, 4, v7\nv_lshlrev_b32 v7, 2, v7\nv_and_b32 v14, 3, v0\nv_lshlrev_b32 v14, 2, v14")
a(f"s_lshl_b32 s20, s9, 9\ns_lshl_b32 s23, s8, 7\ns_add_u32 s20, s20, s23\ns_add_u32 s20, s20, {STATS}\ns_add_u32 s23, s23, {STATL+6144}\nv_add_u32 v27, s23, v7")
a(f"s_mul_i32 s18, s10, 1536\ns_mul_i32 s19, s8, {CSP}\ns_add_u32 s18, s18, s19\ns_add_u32 s18, s18, {CSUM}")
a(f"s_mul_i32 s23, s8, 1536\ns_add_u32 s23, s23, {STATL}\nv_add_u32 v25, s23, v1\nv_add_u32 v26, s23, v6\nv_mov_b32 v30, {CNT}")
zero(32, 4)
a("ds_write_b128 v30, v[32:35]")
a(wc_prep)
a(f"s_mul_i32 s23, s{S_XR}, 36\ns_mul_i32 s22, s{S_XC}, 20\ns_add_u32 s23, s23, s22\ns_add_u32 s23, s23, s{S_J}\ns_mul_i32 s22, s8, 144\ns_add_u32 s23, s23, s22\ns_cmp_ge_u32 s23, 192\ns_cbranch_scc1 L_ld_wait")
a(f"s_lshr_b32 s22, s23, 2\ns_lshl_b32 s22, s22, 3\ns_and_b32 s23, s23, 3\ns_add_u32 s{S_CH}, s23, s22\ns_add_u32 s{S_CH}, s{S_CH}, 256\ns_lshl_b32 s101, 0x1000000, s8")
a(f"s_mov_b32 s96, s69\ns_mov_b32 s97, s10\ns_mov_b32 s98, s13\ns_mul_i32 s69, {WV}, {AREG}")
conv_setup()
a(lnc_addr)
a(f"s_lshl_b32 s22, s{S_CH}, 1\ns_and_b32 s23, s22, 2\ns_sub_u32 s22, s22, s23\ns_load_dword s99, s[{P['dsk']}:{P['dsk']+1}], s22")
a("s_lshl_b32 s23, s23, 3\ns_waitcnt lgkmcnt(0)\ns_lshr_b32 s99, s99, s23\ns_and_b32 s99, s99, 0xffff\nv_mov_b32 v147, s99")
a("s_mov_b32 s69, s96\ns_mov_b32 s10, s97\ns_mov_b32 s13, s98\ns_branch L_ld_wait")

G2H = [16, 32, 48, 224]; G2W = [164, 184, 204, 144]; AC2 = 64
K0 = [0, 13, 26, 40, 54]
def g2_setup():
    a(tile_rc(30, 31, 29))
    a(f"s_mul_i32 s28, {WV}, 7168\ns_max_u32 s28, s28, 1024\ns_sub_u32 s28, s28, 1024")
    a(f"s_mul_i32 s27, s30, {4*55296}\ns_add_u32 s27, s27, s28\ns_add_u32 s27, s27, {HF}")
    for i in range(4):
        a(f"s_add_u32 s29, {WV}, {i}\ns_and_b32 s29, s29, 3\ns_mul_i32 s29, s29, 55296\ns_add_u32 s{18+i}, s27, s29")
    a(f"s_mul_i32 s22, s31, {5*55296}\ns_add_u32 s22, s22, s28\ns_add_u32 s22, s22, {W2F}")
    for i in range(1, 5): a(f"s_add_u32 s{22+i}, s22, {55296*i}")
    a(f"s_lshl_b32 s27, s30, 6\ns_lshl_b32 s29, {WV}, 4\ns_add_u32 s27, s27, s29\ns_mul_i32 s27, s27, 1280\ns_mul_i32 s29, s31, 160\ns_add_u32 s27, s27, s29")
    masks = []
    for w in range(4):
        c0, c1 = max(0, 7*w-1)//3, (7*w+5)//3
        m = ((1 << (c1-c0+1)) - 1) << c0
        masks.append(m | (m << 11))
    a(f"s_mov_b32 s28, {hex(masks[0])}\ns_cmp_eq_u32 {WV}, 1\ns_cselect_b32 s28, {hex(masks[1])}, s28\ns_cmp_eq_u32 {WV}, 2\ns_cselect_b32 s28, {hex(masks[2])}, s28\ns_cmp_eq_u32 {WV}, 3\ns_cselect_b32 s28, {hex(masks[3])}, s28")
    a(f"v_lshlrev_b32 v252, 4, v0\ns_cmp_eq_u32 {WV}, 0\ns_cselect_b32 s30, {OOB}, 0\nv_add_u32 v253, s30, v252")
    a("v_lshrrev_b32 v255, 4, v0\nv_lshlrev_b32 v255, 3, v255\nv_and_b32 v254, 15, v0\nv_mul_u32_u24 v254, 160, v254\nv_add_u32 v254, v254, v255")
    srd(S_B, P['b2'], 1280)
def ldh(k, o=0, v=252): return [f"buffer_load_dwordx4 {vr(G2H[k]+4*i,4)}, v{v}, {WS}, s{18+i} offen offset:{o}{G2F}" for i in range(4)]
def ldw(k, o=0, v=252): return [f"buffer_load_dwordx4 {vr(G2W[k]+4*i,4)}, v{v}, {WS}, s{22+i} offen offset:{o}{G2F}" for i in range(5)]
OUTV = (8, 9, 13)
def xb_loads():
    for q in range(3):
        a(f"v_add_u32 v10, {64*q}, v0\nv_mul_u32_u24 v11, 6554, v10\nv_lshrrev_b32 v11, 16, v11\nv_mul_u32_u24 v11, 1120, v11\nv_lshl_add_u32 v{OUTV[q]}, v10, 4, v11")
    a(f"v_cmp_gt_u32 vcc, 32, v0\nv_mov_b32 v10, {OOB}\nv_cndmask_b32 v13, v10, v13, vcc\ns_mul_i32 s10, {WV}, {AREG}")
    for q in range(3): a(f"s_add_u32 m0, s10, {15360+1024*q}\nbuffer_load_dwordx4 v{OUTV[q]}, {SA}, s27 offen lds")
    a(f"s_add_u32 m0, s10, {18432}\ns_mov_b64 exec, 0x3ff\nbuffer_load_dwordx4 v252, {SB}, s29 offen lds\ns_mov_b64 exec, -1")
    a("v_add_u32 v2, s10, v254\nv_add_u32 v3, s10, v255")
off = lambda t: 1024*t if t < 7 else 27648 + 1024*(t-7)
w_pre = ldw(0, 0) + ldw(1, 1024) + ldw(2, 2048) + ldw(3, 3072)

a("L_comp:")
ACC = 72; BUF = [16, 44]; SF = 172
g2_setup()
a("v_and_b32 v13, 31, v0\nv_lshrrev_b32 v14, 5, v0")
a(f"s_lshl_b32 s8, {WV}, 12\nv_lshlrev_b32 v15, 7, v13\nv_add_u32 v15, s8, v15")
a("v_bfe_u32 v7, v0, 1, 3\nv_xor_b32 v7, v7, v14")
for ks in range(4): a(f"v_xor_b32 v1, {2*ks}, v7\nv_lshl_add_u32 v{2+ks}, v1, 4, v15")
a("v_bfe_u32 v1, v0, 2, 2\nv_lshl_add_u32 v1, v14, 3, v1\nv_mul_u32_u24 v1, 384, v1")
a("v_bfe_u32 v7, v0, 4, 1\nv_lshl_add_u32 v1, v7, 5, v1\nv_and_b32 v7, 3, v0\nv_lshl_add_u32 v1, v7, 3, v1\nv_add_u32 v1, 16384, v1")
a("v_bfe_u32 v7, v0, 3, 1\nv_lshlrev_b32 v7, 6, v7\nv_add_u32 v6, v1, v7\nv_sub_u32 v196, v1, v7\nv_mov_b32 v197, v196")
for i in range(5): a(f"v_mov_b32 v{8+i}, v{2+i}")
zero(ACC, 96)
a(f"s_lshl_b32 s11, {WV}, 7\ns_add_u32 s11, s11, {STATL+6144}\nv_lshl_add_u32 v168, v13, 2, s11\nv_mul_u32_u24 v169, 3072, v14\nv_lshl_add_u32 v169, v13, 3, v169\nv_add_u32 v169, {STATL}, v169")
a("v_bfe_u32 v1, v0, 4, 1\nv_mul_u32_u24 v1, 55296, v1\nv_lshl_add_u32 v1, v14, 8, v1\nv_and_b32 v7, 15, v0\nv_lshl_add_u32 v1, v7, 4, v1")
a(f"s_lshl_b32 s8, s9, 3\ns_lshl_b32 s11, {WV}, 1\ns_add_u32 s8, s8, s11\ns_mul_i32 s8, s8, 54\ns_mul_i32 s11, s10, 3\ns_add_u32 s8, s8, s11\ns_lshl_b32 s8, s8, 10\ns_add_u32 s8, s8, {HF}")
a(f"s_lshl_b32 s12, s9, 1\ns_lshr_b32 s11, {WV}, 1\ns_add_u32 s12, s12, s11")
if RS: a(f"s_and_b32 s11, s12, 3\ns_lshl_b32 s11, s11, 6\ns_lshr_b32 s12, s12, 2\ns_add_u32 s12, s12, s11\ns_lshl_b32 s12, s12, 7\ns_add_u32 s12, s12, {MBOX}")
else: a(f"s_and_b32 s11, s12, 7\ns_lshl_b32 s11, s11, 5\ns_lshr_b32 s12, s12, 3\ns_lshl_b32 s12, s12, 1\ns_add_u32 s12, s12, s11\ns_lshl_b32 s12, s12, 7\ns_add_u32 s12, s12, {MBOX}")
a(f"s_and_b32 s11, {WV}, 1\ns_mul_i32 s11, s11, 11\ns_add_u32 s11, s11, s10\ns_lshl_b32 s11, 1, s11")
if RS: a("v_lshlrev_b32 v15, 10, v0\nv_mov_b32 v14, s11")
else: a("v_and_b32 v15, 3, v0\nv_lshlrev_b32 v15, 10, v15\nv_bfe_u32 v7, v0, 2, 1\nv_lshl_add_u32 v15, v7, 7, v15\nv_mov_b32 v14, s11")
a(wc_prep.replace("s25", "s69"))
a("s_mov_b32 s15, 0\ns_mov_b32 s3, 0")
def reads(ks, b):
    r = [f"ds_read_b128 {vr(b,4)}, v{8+ks}"]
    for ft in range(6):
        for s in range(2):
            r.append(f"ds_read_b64_tr_b16 {vr(b+4+4*ft+2*s,2)}, v{197 if ft & 1 else 12} offset:{ks*6144 + s*1536 + ft*64}")
    return r
def step(cur, nks, nb, last, first_wait=True):
    R = reads(nks, nb)
    waits2 = [8, 0, 10, 0, 11, 0]
    waits = [10, 11, 12, 13, 13, 13]; parts = [R[0:3], R[3:6], R[6:9], R[9:11], R[11:13], [last]]
    for ft in range(6):
        if first_wait and (ft % 2 == 0 or not opt("fw", 1)): a(f"s_waitcnt lgkmcnt({(waits2 if opt('fw', 1) else waits)[ft]})")
        a(f"v_mfma_f32_32x32x16_bf16 {vr(ACC+16*ft,16)}, {vr(cur+4+4*ft,4)}, {vr(cur,4)}, {vr(ACC+16*ft,16)}")
        for r in parts[ft]: a(r)
a("s_barrier")
stamp(1)
for r in reads(0, BUF[0]): a(r)
a("L_c_loop:")
step(BUF[0], 1, BUF[1], f"s_add_u32 s15, s15, {STG}\ns_cmp_eq_u32 s15, {NST*STG}\ns_cselect_b32 s15, 0, s15\nv_add_u32 v8, s15, v2")
step(BUF[1], 2, BUF[0], "v_add_u32 v9, s15, v3\nv_add_u32 v10, s15, v4")
step(BUF[0], 3, BUF[1], "v_add_u32 v12, s15, v6\nv_add_u32 v197, s15, v196\ns_waitcnt lgkmcnt(0)\ns_barrier")
step(BUF[1], 0, BUF[0], "v_add_u32 v11, s15, v5\ns_add_u32 s3, s3, 1\ns_cmp_lt_u32 s3, 10\ns_cbranch_scc1 L_c_loop", first_wait=False)
stamp(2)
a(f"s_setprio {opt('eprio', 3)}\nds_read_b32 v170, v168")
for ft in range(6):
    for p in range(2): a(f"ds_read_b64 {vr(SF+4*ft+2*p,2)}, v169 offset:{1536*p+256*ft}")
a("s_waitcnt lgkmcnt(12)")
a("v_xor_b32 v17, 0x8000, v170\nv_and_b32 v19, 0xffff, v17\nv_lshl_or_b32 v16, v19, 16, v19\nv_mov_b32 v18, v16")
a("v_cmp_gt_u32 vcc, 32, v0\nv_cndmask_b32 v17, v19, v17, vcc")
a("v_and_b32 v10, 0xffff0000, v170\nv_rcp_f32 v7, v10\nv_mov_b32 v11, v10\ns_waitcnt lgkmcnt(0)")
for ft in range(6):
    a(f"v_mfma_f32_32x32x16_bf16 {vr(ACC+16*ft,16)}, {vr(SF+4*ft,4)}, v[16:19], {vr(ACC+16*ft,16)}")
    if ft == 0:
        k1c = -2.0 * math.log2(math.e) * math.sqrt(2.0/math.pi); k2c = k1c * 0.044715
        a(f"v_mul_f32 v8, {f32(k1c)}, v7\nv_mul_f32 v12, v7, v7\nv_mul_f32 v12, v12, v7\nv_mul_f32 v12, {f32(k2c)}, v12\nv_mov_b32 v9, v8\nv_mov_b32 v13, v12")
def stA(h):
    A0 = ACC + 8*h; T = 16 + 8*(h % 3)
    return ([f"v_pk_mul_f32 {vr(T+2*p,2)}, {vr(A0+2*p,2)}, {vr(A0+2*p,2)}" for p in range(4)] +
            [f"v_pk_fma_f32 {vr(T+2*p,2)}, {vr(T+2*p,2)}, v[12:13], v[8:9]" for p in range(4)] +
            [f"v_pk_mul_f32 {vr(T+2*p,2)}, {vr(T+2*p,2)}, {vr(A0+2*p,2)}" for p in range(4)])
def stE(h):
    T = 16 + 8*(h % 3); return [f"v_exp_f32 v{T+e}, v{T+e}" for e in range(8)]
def stB(h):
    T = 16 + 8*(h % 3); return [f"v_pk_fma_f32 {vr(T+2*p,2)}, {vr(T+2*p,2)}, v[10:11], v[10:11]" for p in range(4)]
def stR(h):
    T = 16 + 8*(h % 3); return [f"v_rcp_f32 v{T+e}, v{T+e}" for e in range(8)]
def stC(h):
    A0 = ACC + 8*h; T = 16 + 8*(h % 3); pk = 48 + 4*(h % 4)
    return ([f"v_pk_mul_f32 {vr(T+2*p,2)}, {vr(T+2*p,2)}, {vr(A0+2*p,2)}" for p in range(4)] +
            [f"v_cvt_pk_bf16_f32 v{pk+p}, v{T+2*p}, v{T+2*p+1}" for p in range(4)] +
            [f"buffer_store_dwordx4 {vr(pk,4)}, v1, {WS}, s8 offen offset:{(h//2 % 3)*1024 + (h%2)*512} sc1"])
def mix(tr, nt):
    i = 0
    for k, x in enumerate(tr):
        a(x)
        n = (len(nt) * (k+1)) // len(tr)
        while i < n: a(nt[i]); i += 1
for x in stA(0): a(x)
for h in range(12):
    mix(stE(h), (stC(h-1) if h else []))
    if h == 6: a("s_add_u32 s8, s8, 27648")
    if h == opt("eflag", 10): a(f"s_waitcnt vmcnt({h-6})\ns_mov_b64 exec, 0xff\nbuffer_atomic_or v14, v15, {WS}, s12 offen sc1\ns_mov_b64 exec, -1\n" + sld(68, 69))
    for x in stB(h): a(x)
    if h == 11: a(sld(14, S_MB))
    mix(stR(h), (stA(h+1) if h < 11 else []))
for x in stC(11): a(x)
stamp(4)
def acc_init(z=True):
    for dt in range(5): a(f"ds_read_b64 {vr(224+2*dt,2)}, v2 offset:{15360+32*dt}\nds_read_b64 {vr(234+2*dt,2)}, v3 offset:{18432+32*dt}")
    a("s_waitcnt lgkmcnt(0)")
    for dt in range(5):
        for h in range(2):
            a(f"v_lshlrev_b32 v{AC2+4*dt+2*h}, 16, v{224+2*dt+h}\nv_and_b32 v{AC2+4*dt+2*h+1}, 0xffff0000, v{224+2*dt+h}")
            a(f"v_lshlrev_b32 v10, 16, v{234+2*dt+h}\nv_and_b32 v11, 0xffff0000, v{234+2*dt+h}\nv_add_f32 v{AC2+4*dt+2*h}, v{AC2+4*dt+2*h}, v10\nv_add_f32 v{AC2+4*dt+2*h+1}, v{AC2+4*dt+2*h+1}, v11")
a(f"v_mov_b32 v2, {CNT+8}\nv_mov_b32 v3, 1\nds_write_b32 v2, v3")
xb_loads()
a("s_mov_b32 s35, 0\ns_mov_b32 s101, 0\ns_waitcnt lgkmcnt(0)")
a("s_cmp_eq_u32 s68, 0\ns_cbranch_scc1 L_c_slow")
for l in ldw(0, 0): a(l)
a("s_and_b32 s13, s14, s28\ns_cmp_eq_u32 s13, s28\ns_cbranch_scc0 L_c_mid")
for l in ldh(0, 0): a(l)
a(f"s_waitcnt vmcnt(13)\ns_mov_b64 exec, 0xff\nbuffer_atomic_or v14, v15, {WS}, s12 offen offset:64 sc1\ns_mov_b64 exec, -1")
for l in ldw(1, 1024) + ldw(2, 2048) + ldw(3, 3072) + ldh(1, 1024) + ldh(2, 2048): a(l)
a("s_mov_b32 s101, 1\ns_waitcnt vmcnt(33)\ns_branch L_c_acc")
a("L_c_mid:")
a(f"s_waitcnt vmcnt(9)\ns_mov_b64 exec, 0xff\nbuffer_atomic_or v14, v15, {WS}, s12 offen offset:64 sc1\ns_mov_b64 exec, -1")
for l in ldw(1, 1024) + ldw(2, 2048) + ldw(3, 3072): a(l)
a("s_waitcnt vmcnt(21)\ns_branch L_c_acc")
a("L_c_slow:")
a(f"s_waitcnt vmcnt(0)\ns_mov_b64 exec, 0xff\nbuffer_atomic_or v14, v15, {WS}, s12 offen offset:64 sc1\ns_mov_b64 exec, -1")
a("L_c_acc:")
a("s_setprio 0")
stamp(5)
acc_init(False)
a("s_cmp_lg_u32 s68, 0\ns_cbranch_scc1 L_g2go")
a("s_branch L_g2w")

a("L_g2:")
g2_setup()
a("s_mov_b32 s101, 0")
xb_loads()
a("s_waitcnt vmcnt(0)")
acc_init()
a("L_g2w:")
if opt("p1only", 0): endp()
a(wc_prep.replace("s25", "s8"))
if not opt("g2only", 0): spoll(sld(9, 8), "s_cmp_lg_u32 s9, 0", sleep=16)
PK = (8, 10, 12)
a(f"s_cmp_eq_u32 s35, 0\ns_cbranch_scc1 L_g_nopark\ns_mul_i32 s10, {WV}, {AREG}")
for p in range(3):
    for i in range(5): a(f"s_add_u32 m0, s10, {5120*p+1024*i}\ns_add_u32 s13, s{22+i}, {off(PK[p])}\nbuffer_load_dwordx4 v252, {WS}, s13 offen{G2F} lds")
    if opt("thr", 0): a(f"s_waitcnt vmcnt({opt('thr', 0)})")
a("L_g_nopark:")
for n_, l in enumerate(w_pre):
    a(l)
    if opt("thr", 0) and n_ % 5 == 4 and n_ < 19: a(f"s_waitcnt vmcnt({opt('thr', 0)})")
if opt("touch2", 0):
    nt2 = 6 if RS else 3
    a("s_cmp_eq_u32 s35, 0\ns_cbranch_scc1 L_g2go")
    a(f"s_lshl_b32 s8, s{S_XC}, 2\ns_add_u32 s8, s8, s{S_J}\ns_sub_u32 s8, s8, 20\ns_lshl_b32 s8, s8, 2\ns_add_u32 s8, s8, {WV}\ns_cmp_ge_u32 s8, 48\ns_cbranch_scc1 L_g2go")
    if RS: a(f"s_and_b32 s9, s2, 7\ns_mul_i32 s9, s9, 6\ns_add_u32 s8, s8, s9\ns_cmp_ge_u32 s8, 48\ns_cselect_b32 s9, 48, 0\ns_sub_u32 s8, s8, s9\ns_mul_i32 s8, s8, 46080\ns_add_u32 s8, s8, {W2F}")
    else: a(f"s_mul_i32 s9, s{S_XR}, 12\ns_add_u32 s8, s8, s9\ns_cmp_ge_u32 s8, 48\ns_cselect_b32 s9, 48, 0\ns_sub_u32 s8, s8, s9\ns_mul_i32 s8, s8, 23040\ns_mul_i32 s9, s{S_XC}, 1105920\ns_add_u32 s8, s8, s9\ns_add_u32 s8, s8, {W2F}")
    a("v_lshlrev_b32 v4, 7, v0\ns_mov_b32 exec_hi, 0xfffffff")
    for i in range(nt2): a(f"buffer_load_dword v244, v4, {WS}, s8 offen sc1\ns_add_u32 s8, s8, 7680")
    a("s_mov_b32 exec_hi, -1")
a("L_g2go:")
if opt("p1only", 0): endp()
hm_issue = sld(14, S_MB)
a("s_cmp_lg_u32 s101, 0\ns_cbranch_scc1 L_g_nohm")
a(hm_issue)
a("L_g_nohm:")
a(f"s_mul_i32 s10, {WV}, {AREG}\nv_add_u32 v1, s10, v252")
for i in range(1, 4):
    a(f"s_sub_u32 s13, {WV}, {i}\ns_and_b32 s13, s13, 3\ns_mul_i32 s13, s13, {AREG}\ns_add_u32 s13, s13, {5120*(i-1)}\nv_add_u32 v{1+i}, s13, v252")
a("v_lshrrev_b32 v10, 2, v0\nv_lshlrev_b32 v10, 7, v10\nv_bfe_u32 v15, v0, 1, 1\nv_lshl_add_u32 v10, v15, 6, v10\nv_and_b32 v15, 1, v0\nv_lshl_add_u32 v10, v15, 3, v10")
a(f"s_lshl_b32 s13, {WV}, 4\ns_add_u32 s13, s13, {YAT}\nv_add_u32 v5, s13, v10")
a(f"s_mul_i32 s13, {WV}, 2560\ns_add_u32 s13, s13, {BREG0}\nv_add_u32 v6, s13, v254\nv_add_u32 v7, s13, v252")
a(f"v_mov_b32 v14, {CNT}")
srd(S_A, P['out'], 2621440)
a("s_cmp_lg_u32 s101, 0\ns_cbranch_scc1 L_g_fast")
if not opt("g2only", 0): spoll(hm_issue, "s_and_b32 s13, s14, s28\ns_cmp_eq_u32 s13, s28", sleep=opt('msleep', 4), issued=True, far=('s_and_b32 s13, s14, 0x3fffff', opt('mfar', 28)))
else: a("s_waitcnt vmcnt(0)")
stamp(6)
for l in ldh(0, 0) + ldh(1, 1024) + ldh(2, 2048): a(l)
a("s_waitcnt vmcnt(8)")
a("L_g_fast:")
a(f"s_add_u32 s15, s{S_MB}, 64")
nld = lambda t: 0 if t > 13 else (4 if (t < 4 or t in PK) else 9)
cur = 0
for t in range(14):
    k = t % 4; nt_ = t + 3; nk = nt_ % 4
    L = []
    if t == 2: a(sld(14, 15))
    if t == 4 and not opt("g2only", 0):
        spoll(sld(14, 15), "s_and_b32 s13, s14, s28\ns_cmp_eq_u32 s13, s28", sleep=2, issued=True)
        stamp(3)
    if nt_ == PK[0]:
        a("s_cmp_lg_u32 s35, 0\ns_cbranch_scc1 L_g_pok\ns_mov_b32 s3, 0")
        a("L_g_pw:")
        a("s_add_u32 s3, s3, 1\ns_cmp_gt_u32 s3, 2000000\ns_cbranch_scc1 L_exit")
        a("ds_read_b32 v10, v14\ns_waitcnt lgkmcnt(0)\nv_readfirstlane_b32 s13, v10\ns_cmp_eq_u32 s13, 0\ns_cbranch_scc1 L_g_pw")
        a("L_g_pok:")
    if nt_ <= 13:
        if off(nt_) - cur > 3072:
            a("\n".join(f"s_add_u32 s{18+i}, s{18+i}, {off(nt_)-cur}" for i in range(9))); cur = off(nt_)
        o = off(nt_) - cur; vv = 253 if nt_ in (6, 13) else 252
        L = ldh(nk, o, vv)
        if nt_ in PK: L += [f"ds_read_b128 {vr(G2W[nk]+4*i,4)}, v1 offset:{5120*PK.index(nt_)+1024*i}" for i in range(5)]
        elif nt_ > 3: L += ldw(nk, o, vv)
    a(f"s_waitcnt vmcnt({24 if t == 0 else nld(t+1)+nld(t+2)})" + (" lgkmcnt(0)" if t in PK else ""))
    if t == 0: stamp(7)
    n = 0; other = []
    if t in (6, 13): a(f"s_cmp_eq_u32 {WV}, 0\ns_cbranch_scc1 L_g_skip{t}")
    for i in ((1, 2, 3, 0) if t == 13 else range(4)):
        for dt in range(5):
            acc = AC2 + 4*(5*i+dt)
            a(f"v_mfma_f32_16x16x32_bf16 {vr(acc,4)}, {vr(G2W[k]+4*dt,4)}, {vr(G2H[k]+4*i,4)}, " + ("0" if t == 0 and i else vr(acc,4)))
            if n < len(L): a(L[n]); other.append(L[n])
            if t == 13:
                pi = {2: 1, 3: 2, 0: 3}.get(i)
                if pi:
                    w_ = f"ds_write_b128 v1, {vr(AC2+4*(5*pi+dt),4)} offset:{5120*(pi-1)+1024*dt}"; a(w_); other.append(w_)
            n += 1
    if t in (6, 13):
        a(f"s_branch L_g_join{t}")
        a(f"L_g_skip{t}:")
        a("s_nop 7")
        for x in other: a(x)
        a(f"L_g_join{t}:")
stamp(8)
a("s_waitcnt lgkmcnt(0)\ns_barrier")
stamp(9)
R_ = 144
for q in range(10): a(f"ds_read_b128 {vr(R_+4*q,4)}, v{2+q//5} offset:{1024*(q%5)}")
for dt in range(5): a(f"ds_read_b64_tr_b16 {vr(16+2*dt,2)}, v5 offset:{2048*dt}")
for q in range(10):
    a(f"s_waitcnt lgkmcnt({14 if q < 5 else 19-q})")
    dt = q % 5
    for h in range(2): a(f"v_pk_add_f32 {vr(AC2+4*dt+2*h,2)}, {vr(AC2+4*dt+2*h,2)}, {vr(R_+4*q+2*h,2)}")
    if q < 5: a(f"ds_read_b128 {vr(R_+40+4*q,4)}, v4 offset:{1024*q}")
for dt in range(5):
    a(f"s_waitcnt lgkmcnt({9-dt})")
    for h in range(2):
        a(f"v_lshlrev_b32 v10, 16, v{16+2*dt+h}\nv_and_b32 v11, 0xffff0000, v{16+2*dt+h}\nv_pk_add_f32 {vr(AC2+4*dt+2*h,2)}, {vr(AC2+4*dt+2*h,2)}, v[10:11]")
a("s_waitcnt lgkmcnt(0)")
for dt in range(5):
    for h in range(2): a(f"v_pk_add_f32 {vr(AC2+4*dt+2*h,2)}, {vr(AC2+4*dt+2*h,2)}, {vr(R_+40+4*dt+2*h,2)}")
    for h in range(2): a(f"v_cvt_pk_bf16_f32 v{32+2*dt+h}, v{AC2+4*dt+2*h}, v{AC2+4*dt+2*h+1}")
    a(f"ds_write_b64 v6, {vr(32+2*dt,2)} offset:{32*dt}")
for q in range(3): a(f"ds_read_b128 {vr(48+4*q,4)}, v7 offset:{1024*q}")
for q in range(3):
    a(f"s_waitcnt lgkmcnt({2-q})\nbuffer_store_dwordx4 {vr(48+4*q,4)}, v{OUTV[q]}, {SA}, s27 offen")
stamp(10)
endp()

a("L_park:")
if opt("p1only", 0): endp()
a(tile_rc(12, 9, 10))
for i in range(1, 5): a(f"v_add_u32 v{1+i}, {55296*i}, v1")
a(f"s_mul_i32 s12, s9, {5*55296}\ns_add_u32 s12, s12, {W2F}\ns_mov_b32 s10, 0\ns_mov_b32 s3, 0")
spoll(wc_issue, wc_test, sleep=10)
if not opt("epark", 15):
    a(f"v_mov_b32 v10, {CNT+8}\ns_mov_b32 s11, 0")
    a("L_pk_w:")
    a("s_add_u32 s11, s11, 1\ns_cmp_gt_u32 s11, 200000\ns_cbranch_scc1 L_exit\ns_sleep 2")
    a("ds_read_b32 v11, v10\ns_waitcnt lgkmcnt(0)\nv_readfirstlane_b32 s13, v11\ns_cmp_eq_u32 s13, 0\ns_cbranch_scc1 L_pk_w")
stamp(11)
a("L_pk_loop:")
for p in range(3):
    a(f"s_add_u32 s13, s12, {off(PK[p])}")
    for i in range(5): a(f"s_add_u32 m0, s10, {5120*p+1024*i}\nbuffer_load_dwordx4 v{1+i}, {WS}, s13 offen{G2F} lds")
    if opt("epark", 15): a(f"s_waitcnt vmcnt({opt('epark', 15)})")
a(f"s_cmp_eq_u32 s3, 0\ns_cselect_b32 s13, 6, 7\ns_lshl_b32 s13, s13, 10\ns_add_u32 s12, s12, s13\ns_add_u32 s10, s10, {AREG}\ns_add_u32 s3, s3, 1\ns_cmp_lt_u32 s3, 4\ns_cbranch_scc1 L_pk_loop")
a(f"v_mov_b32 v2, {CNT}\nv_mov_b32 v3, 1\ns_waitcnt vmcnt(0)\nds_write_b32 v2, v3\ns_waitcnt lgkmcnt(0)")
stamp(12)
endp()

a("L_fetch:")
if opt("p1only", 0): endp()
a(tile_rc(8, 9, 10))
a("s_mul_i32 s11, s8, 81920")
a(f"v_mov_b32 v1, 0\ns_lshl_b32 s13, s9, 2\ns_add_u32 s13, s13, s{S_XR}\ns_lshl_b32 s13, s13, 7\ns_add_u32 s13, s13, {YAC}")
spoll(sld(12, 13), "s_cmp_ge_u32 s12, 80", sleep=opt('ysleep', 8), far=('s_cmp_ge_u32 s12, 24', opt('yfar', 32)))
stamp(11)
a(f"s_mul_i32 s10, s9, 10240\ns_add_u32 s11, s11, s10\ns_add_u32 s11, s11, {YA}\nv_lshlrev_b32 v1, 4, v0")
for q in range(10):
    a(f"buffer_load_dwordx4 {vr(16+4*q,4)}, v1, {WS}, s11 offen sc1\ns_add_u32 s11, s11, 1024")
a(f"v_add_u32 v1, {YAT}, v1")
for q in range(10):
    a(f"s_waitcnt vmcnt({9-q})\nds_write_b128 v1, {vr(16+4*q,4)} offset:{1024*q}")
a("s_waitcnt lgkmcnt(0)")
stamp(12)
a("s_barrier")
endp()

c_issue = sld(33, 100)
c_test = "s_cmp_ge_u32 s33, 64"
clr_s = f"s_load_dwordx4 s[28:31], s[{P['dbg']}:{P['dbg']+1}], 0"
a("L_aux:")
a(f"s_sub_u32 s8, s{S_J}, s8\ns_and_b32 s15, {WV}, 3\ns_mov_b32 s35, 0\nv_mov_b32 v230, 0\ns_mov_b32 s71, 0\ns_mov_b32 s97, 0\ns_mov_b32 s70, 0\ns_mul_i32 s69, {WV}, {AREG}")
a(f"s_lshl_b32 s9, s{S_XR}, 4\ns_lshl_b32 s10, s{S_XC}, 3\ns_add_u32 s9, s9, s10\ns_add_u32 s9, s9, s8")
RAW, DV = 164, 64
a("v_and_b32 v238, 3, v0\nv_lshlrev_b32 v238, 2, v238")
a(f"s_cmp_ge_u32 s8, 8\ns_cbranch_scc1 L_nolnwg\ns_cmp_lt_u32 {WV}, 4\ns_cbranch_scc1 L_lnw")
a(f"s_lshl_b32 s{S_CH}, s9, 2\ns_add_u32 s{S_CH}, s{S_CH}, s15\ns_branch L_par")
a("L_nolnwg:")
a(f"s_mul_i32 s10, s{S_XR}, 12\ns_lshl_b32 s11, s{S_XC}, 2\ns_add_u32 s10, s10, s11\ns_add_u32 s10, s10, s8\ns_lshl_b32 s10, s10, 3\ns_add_u32 s10, s10, {WV}\ns_add_u32 s{S_CH}, s10, 192")
a(f"s_lshl_b32 s10, s{S_XC}, 4\ns_add_u32 s10, s10, s8\ns_cmp_lg_u32 s10, 8\ns_cbranch_scc1 L_par")
a(f"s_lshl_b32 s10, s{S_XR}, 15\ns_lshl_b32 s11, {WV}, 12\ns_add_u32 s10, s10, s11\ns_add_u32 s10, s10, {CLR}\nv_lshlrev_b32 v1, 4, v0\ns_mov_b32 s35, 5")
zero(4, 4)
for i in range(4): a(f"buffer_store_dwordx4 v[4:7], v1, {WS}, s10 offen offset:{1024*i} sc1")
a("L_par:")
a(f"s_lshl_b32 s10, s{S_CH}, 8\nv_lshl_add_u32 v1, v0, 2, s10")
for i, nm in enumerate(["are", "aim", "bre", "bim", "cre", "cim"]):
    a(f"global_load_dword v{240+i}, v1, s[{P[nm]}:{P[nm]+1}]{NT1}")
a(f"s_lshl_b32 s10, s{S_CH}, 1\nv_mov_b32 v1, s10\nglobal_load_ushort v246, v1, s[{P['ldt']}:{P['ldt']+1}]")
a(f"global_load_ushort v147, v1, s[{P['dsk']}:{P['dsk']+1}]")
a("s_cmp_lt_u32 s8, 8\ns_cbranch_scc1 L_wrole\ns_cmp_lg_u32 s35, 5\ns_cbranch_scc1 L_cs")
a(f"s_waitcnt vmcnt(8)\ns_barrier\ns_cmp_lg_u32 {WV}, 0\ns_cbranch_scc1 L_cs")
a(f"s_lshl_b32 s10, s{S_XR}, 2\nv_mov_b32 v2, 1\nv_mov_b32 v4, 0\ns_mov_b64 exec, 1\nbuffer_store_dword v2, v4, {DBG}, s10 offen sc1\ns_mov_b64 exec, -1\ns_waitcnt vmcnt(1)")
stamp(1)
a("L_cs:")
a(f"s_mov_b32 s35, 0\ns_sub_u32 s9, s8, 8\ns_lshl_b32 s10, s{S_XR}, 2\ns_lshl_b32 s10, s10, s{S_XC}\ns_add_u32 s9, s9, s10")
a(f"s_cmp_eq_u32 s{S_XC}, 0\ns_cselect_b32 s10, 8, 3\ns_movk_i32 s11, 120\ns_mul_i32 s9, s9, s10\ns_add_u32 s9, s9, {WV}\ns_cmp_ge_u32 {WV}, s10\ns_cbranch_scc1 L_kgen\ns_cmp_ge_u32 s9, s11\ns_cbranch_scc1 L_kgen")
a(f"s_and_b32 s15, s9, 3\ns_lshr_b32 s9, s9, 2\ns_mul_i32 s10, s{S_XC}, 30\ns_add_u32 s9, s9, s10")
a("s_mul_i32 s12, s15, 552960\ns_lshl_b32 s11, s9, 6\ns_add_u32 s71, s12, s11")
a(f"v_and_b32 v4, 31, v0\nv_lshlrev_b32 v4, 1, v4\nv_add_u32 v4, s11, v4\nglobal_load_ushort v145, v4, s[{P['b1']}:{P['b1']+1}]")
a("v_lshrrev_b32 v2, 2, v0\nv_and_b32 v3, 3, v0\nv_mul_u32_u24 v1, 3456, v2\nv_lshl_add_u32 v230, v3, 4, v1\ns_mov_b32 s35, 2\ns_mov_b32 s97, 10\ns_mov_b32 s70, 55296\ns_branch L_kgen")
a("L_wrole:")
W2R = lambda i: (RAW + 4*i) if i < 10 else (148 + 4*(i-10))
srd(S_B, P['w2'], 2211840)
a("v_lshrrev_b32 v8, 3, v0\nv_mul_u32_u24 v8, 1280, v8\nv_and_b32 v9, 7, v0\nv_lshl_add_u32 v230, v9, 4, v8\ns_lshl_b32 s10, s15, 6\ns_add_u32 s10, s10, s9")
a("s_mul_i32 s11, s10, 6554\ns_lshr_b32 s11, s11, 16\ns_mul_i32 s12, s11, 10\ns_sub_u32 s12, s10, s12")
a("s_mul_i32 s71, s11, 122880\ns_lshl_b32 s13, s12, 7\ns_add_u32 s71, s71, s13")
a(f"s_mul_i32 s96, s12, 216\ns_and_b32 s13, s11, 1\ns_mul_i32 s13, s13, 27\ns_add_u32 s96, s96, s13\ns_lshr_b32 s13, s11, 1\ns_mul_i32 s13, s13, 3\ns_add_u32 s96, s96, s13\ns_lshl_b32 s96, s96, 10\ns_add_u32 s96, s96, {W2F}")
a(f"s_cmp_lt_u32 s10, 180\ns_cselect_b32 s97, 12, 0\ns_cselect_b32 s35, 1, 6\ns_movk_i32 s70, 10240\ns_setprio {opt('w1prio', 0)}\ns_barrier")
a("L_kgen:")
a("s_mov_b32 s68, 0\ns_mov_b32 m0, s69")
a(lnc_addr)
a(f"s_mov_b32 s101, 0\nv_mov_b32 v146, 0\nv_mov_b32 v253, 0\ns_cmp_lt_u32 {WV}, 4\ns_cbranch_scc1 L_kg_nocs")
conv_setup()
a("L_kg_nocs:")
a("v_and_b32 v2, 31, v0\nv_mul_u32_u24 v2, 272, v2\nv_lshrrev_b32 v3, 5, v0\nv_lshl_add_u32 v2, v3, 4, v2\nv_add_u32 v228, s69, v2")
KA = 208
zero(KA, 16)
a("s_mov_b32 s3, 0\ns_waitcnt vmcnt(1)")
stamp(3)
a(f"v_lshlrev_b32 v3, 16, v246\nv_mul_f32 v3, {f32(math.log2(math.e))}, v3\nv_exp_f32 v3, v3\nv_cvt_pk_bf16_f32 v3, v3, v3\nv_lshlrev_b32 v229, 16, v3")
a("L_kg_loop:")
for i in range(6): a(f"v_and_b32 v{4+i}, 0xffff0000, v{240+i}\nv_lshlrev_b32 v{240+i}, 16, v{240+i}")
for i in range(4): a(f"v_mul_f32 v{4+i}, v229, v{4+i}")
a(f"v_mul_f32 v4, {f32(math.log2(math.e))}, v4\nv_mul_f32 v5, {f32(1/(2*math.pi))}, v5")
Z1, Z8, Z256, W = 10, 12, 14, 16
for k, z in ((1, Z1), (8, Z8), (256, Z256)):
    a(f"v_mul_f32 v20, {f32(k)}, v4\nv_mul_f32 v21, {f32(k)}, v5\nv_fract_f32 v21, v21\nv_exp_f32 v20, v20\nv_cos_f32 v{z}, v21\nv_sin_f32 v{z+1}, v21")
    neg = " neg_hi:[0,1]" if k == 8 else ""
    a(f"v_pk_mul_f32 {vr(z,2)}, {vr(z,2)}, v[20:21] op_sel:[0,0] op_sel_hi:[1,0]{neg}")
cmul(W, 8, 6, 20)
rowof = {}
h0 = [[0,1,2,3],[4,5,6,7],[1024,1032,1280,1288],[1536,1544,1792,1800]]
h1 = [[256,258,260,262],[264],[512,516,520],[768,772,776]]
for q in range(4):
    for i, v in enumerate(h0[q]): rowof[v] = 8*q + i
    for i, v in enumerate(h1[q]): rowof[v] = 8*q + 4 + i
cv = [0]
def put(src, row):
    t = 24 + (cv[0] % 4); cv[0] += 1
    a(f"v_cvt_pk_bf16_f32 v{t}, v{src}, v{src+1}\nds_write_addtid_b32 v{t} offset:{row*272}")
G = {0: W}
opsG = [lambda: put(W, rowof[0])]
for b in range(1, 9):
    G[b] = 32 + 2*b
    opsG.append(lambda b=b: (cmul(G[b], G[b-1], Z1, 20), put(G[b], rowof[b]) if b < 8 else None))
Pq = {1: Z256}
for q in range(1, 8):
    if q > 1:
        Pq[q] = 52 + 2*(q & 1)
        opsG.append(lambda q=q: cmul(Pq[q], Pq[q-1], Z256, 20))
    ds = {1: (0,2,4,6,8), 2: (0,4,8), 3: (0,4,8)}.get(q, (0, 8))
    for n, d in enumerate(ds):
        opsG.append(lambda q=q, d=d, n=n: (cmul(56+2*(n&1), G[d], Pq[q], 20), put(56+2*(n&1), rowof[256*q+d])))
opsE = [lambda: a(f"v_mov_b32 v28, 0x3f80\nds_write_addtid_b32 v28 offset:{32*272}"), lambda: put(Z8, 33)]
for j in range(2, 32):
    src = Z8 if j == 2 else 60 + 2*((j-1) & 1)
    dst = 60 + 2*(j & 1)
    opsE.append(lambda src=src, dst=dst, j=j: (cmul(dst, src, Z8, 22), put(dst, 32+j)))
for i in range(max(len(opsG), len(opsE))):
    if i < len(opsE): opsE[i]()
    if i < len(opsG): opsG[i]()
    if i < 12 and i % 2 == 0:
        a(f"s_cmp_le_u32 s97, {i}\ns_cbranch_scc1 L_kg_nl{i}")
        for k_ in (i, i+1): a(f"buffer_load_dwordx4 {vr(W2R(k_),4)}, v230, {SB}, s71 offen\ns_add_u32 s71, s71, s70")
        a(f"L_kg_nl{i}:")
    if i == 12 and opt("eu", 1):
        a(f"s_lshl_b32 s10, s3, 2\ns_and_b32 s10, s10, {WV}\ns_cbranch_scc1 L_eu0")
        a("L_kg_ne1:")
    if i == 31 and opt("eu", 1):
        a("s_cmp_eq_u32 s68, 1\ns_cbranch_scc1 L_eu")
        a("L_kg_ne2:")
    if i == opt("wsig", 11):
        a("s_cmp_eq_u32 s35, 6\ns_cbranch_scc1 L_w2sig")
        a("L_kg_nsig:")
a("s_waitcnt lgkmcnt(0)")
for k in range(8):
    a(f"ds_read_b128 {vr(64+8*k,4)}, v228 offset:{32*k}\nds_read_b128 {vr(68+8*k,4)}, v228 offset:{32*272+32*k}")
for k in range(8):
    a(f"s_waitcnt lgkmcnt({14-2*k})")
    a(f"v_mfma_f32_32x32x16_bf16 {vr(KA,16)}, {vr(64+8*k,4)}, {vr(68+8*k,4)}, {vr(KA,16)}")
a("s_cmp_lg_u32 s3, 0\ns_cbranch_scc1 L_kg_done")
a(clr_s)
a("s_mov_b32 s3, 1\ns_mov_b32 s97, 0\ns_cmp_eq_u32 s35, 1\ns_cbranch_scc1 L_w2mid\ns_cmp_lg_u32 s35, 2\ns_cbranch_scc1 L_kg_loop\ns_branch L_csum")
a("L_eu0:")
a("s_waitcnt lgkmcnt(0)\ns_and_b32 s10, s28, s29\ns_and_b32 s11, s30, s31\ns_and_b32 s10, s10, s11\ns_cselect_b32 s35, 4, s35\ns_cmp_lt_u32 s35, 4\ns_cbranch_scc1 L_kg_ne1")
a(c_issue)
a("s_mov_b32 s68, 1\ns_branch L_kg_ne1")
a("L_eu:")
a("s_mov_b32 s68, 0\ns_waitcnt lgkmcnt(0)")
a(c_test)
a("s_cbranch_scc0 L_kg_ne2")
uloads()
a("s_mov_b32 s68, 2\ns_branch L_kg_ne2")
def need_clr(tag):
    a(f"s_waitcnt lgkmcnt(0)\ns_and_b32 s28, s28, s29\ns_and_b32 s30, s30, s31\ns_and_b32 s28, s28, s30\ns_cbranch_scc1 L_clr_{tag}")
    poll(clr_issue(239, 238), clr_test(239), sleep=8, issued=False)
    a(f"L_clr_{tag}:")
def touch():
    if not opt("touch", 0): return
    n = 270 if RS else 135
    a(f"s_and_b32 s10, s8, 7\ns_lshl_b32 s10, s10, 3\ns_add_u32 s10, s10, {WV}")
    if RS: a(f"s_and_b32 s11, s2, 7\ns_lshl_b32 s11, s11, 3\ns_add_u32 s10, s10, s11\ns_and_b32 s10, s10, 63\ns_mul_i32 s10, s10, {n*128}")
    else: a(f"s_lshl_b32 s11, s{S_XR}, 4\ns_add_u32 s10, s10, s11\ns_and_b32 s10, s10, 63\ns_mul_i32 s10, s10, {n*128}\ns_mul_i32 s11, s{S_XC}, 1105920\ns_add_u32 s10, s10, s11")
    a(f"s_add_u32 s10, s10, {W2F}\nv_lshlrev_b32 v4, 7, v0")
    for i in range(n // 64): a(f"buffer_load_dword v144, v4, {WS}, s10 offen sc1\ns_add_u32 s10, s10, 8192")
    a(few((1 << (n % 64)) - 1, f"buffer_load_dword v144, v4, {WS}, s10 offen sc1"))
def lds_wait(tag, target):
    a("s_mov_b32 s12, 0")
    a(f"L_sb{tag}:")
    a("s_add_u32 s12, s12, 1\ns_cmp_gt_u32 s12, 2000000\ns_cbranch_scc1 L_exit")
    a(f"ds_read_b32 v15, v14\ns_waitcnt lgkmcnt(0)\nv_readfirstlane_b32 s11, v15\ns_cmp_lt_u32 s11, {target}\ns_cbranch_scc1 L_sb{tag}")
a("L_lnw:")
a("s_lshl_b32 s10, s9, 5\ns_lshl_b32 s11, s15, 3\ns_add_u32 s14, s10, s11\ns_mul_i32 s11, s14, 1280")
a("v_lshrrev_b32 v2, 4, v0\nv_and_b32 v3, 15, v0\nv_mul_u32_u24 v1, 2560, v2\nv_lshl_add_u32 v1, v3, 4, v1")
for sg in range(2):
    for i in range(5):
        a(f"buffer_load_dwordx4 {vr(RAW+20*sg+4*i,4)}, v1, {SA}, s11 offen offset:{sg*1280+i*256}{NT}")
a(f"v_mov_b32 v4, {CNT}\nv_mov_b32 v6, 0\nv_mov_b32 v7, 0\nds_write_b64 v4, v[6:7]\ns_waitcnt lgkmcnt(0)\ns_barrier")
a("s_lshl_b32 s11, s15, 4\nv_lshlrev_b32 v8, 2, v2\nv_add_u32 v8, s11, v8")
for i in range(5):
    a(f"v_add_u32 v4, {16*i}, v3\nv_mul_u32_u24 v5, 3277, v4\nv_lshrrev_b32 v5, 16, v5\nv_mul_u32_u24 v5, {BREG-20*528}, v5\nv_mul_u32_u24 v4, 528, v4\nv_add3_u32 v{150+i}, v4, v5, v8")
a(f"s_setprio 2\nv_mov_b32 v14, {CNT}\nv_lshrrev_b32 v2, 4, v0\ns_mov_b32 s12, 0x3f803f80")
zero(4, 4)
a("s_waitcnt vmcnt(0)")
stamp(1)
for sg in range(2):
    for k in range(20):
        a(f"v_dot2_f32_bf16 v{4+2*sg+(k&1)}, v{RAW+20*sg+k}, s12, v{4+2*sg+(k&1)}")
a("v_add_f32 v4, v4, v5\nv_add_f32 v6, v6, v7")
def unp(sg, ks):
    for k in ks:
        d = DV + 40*sg + 2*k
        a(f"v_lshlrev_b32 v{d}, 16, v{RAW+20*sg+k}\nv_and_b32 v{d+1}, 0xffff0000, v{RAW+20*sg+k}")
for n, sh in enumerate((8, 4, 2, 1)):
    a(f"v_add_f32_dpp v4, v4, v4 row_ror:{sh} row_mask:0xf bank_mask:0xf\nv_add_f32_dpp v6, v6, v6 row_ror:{sh} row_mask:0xf bank_mask:0xf")
    unp(0, range(5*n, 5*n+5))
a(f"v_mul_f32 v4, {f32(1/640)}, v4\nv_mul_f32 v6, {f32(1/640)}, v6")
a("v_cvt_pk_bf16_f32 v5, v4, v6\nv_lshlrev_b32 v8, 16, v5\nv_and_b32 v9, 0xffff0000, v5")
a("v_sub_f32 v56, 0, v8\nv_sub_f32 v57, 0, v8\nv_sub_f32 v58, 0, v9\nv_sub_f32 v59, 0, v9")
zero(10, 4)
unp(1, range(20))
for sg in range(2):
    for k in range(20):
        d = DV + 40*sg + 2*k
        a(f"v_pk_add_f32 {vr(d,2)}, {vr(d,2)}, {vr(56+2*sg,2)}")
    for k in range(20):
        d = DV + 40*sg + 2*k
        a(f"v_pk_fma_f32 {vr(10+2*sg,2)}, {vr(d,2)}, {vr(d,2)}, {vr(10+2*sg,2)}")
a("v_add_f32 v10, v10, v11\nv_add_f32 v12, v12, v13")
def rnd(sg, ks):
    for k in ks:
        d = DV + 40*sg + 2*k
        a(f"v_cvt_pk_bf16_f32 v{RAW+20*sg+k}, v{d}, v{d+1}")
for n, sh in enumerate((8, 4, 2, 1)):
    a(f"v_add_f32_dpp v10, v10, v10 row_ror:{sh} row_mask:0xf bank_mask:0xf\nv_add_f32_dpp v12, v12, v12 row_ror:{sh} row_mask:0xf bank_mask:0xf")
    rnd(0, range(2*n, 2*n+2))
a("v_sub_f32 v4, v4, v8\nv_sub_f32 v6, v6, v9\nv_mul_f32 v4, v4, v4\nv_mul_f32 v6, v6, v6")
a(f"s_mov_b32 s12, {f32(1/640)}\nv_fma_f32 v4, v10, s12, -v4\nv_fma_f32 v6, v12, s12, -v6")
a("v_max_f32 v4, 0, v4\nv_max_f32 v6, 0, v6")
a("v_cvt_pk_bf16_f32 v7, v4, v6\nv_lshlrev_b32 v4, 16, v7\nv_and_b32 v6, 0xffff0000, v7")
a(f"v_add_f32 v4, {f32(1e-5)}, v4\nv_add_f32 v6, {f32(1e-5)}, v6")
a("v_cvt_pk_bf16_f32 v7, v4, v6\nv_lshlrev_b32 v4, 16, v7\nv_and_b32 v6, 0xffff0000, v7")
a("v_sqrt_f32 v4, v4\nv_sqrt_f32 v6, v6\nv_cvt_pk_bf16_f32 v7, v4, v6")
a("v_lshlrev_b32 v4, 16, v7\nv_and_b32 v6, 0xffff0000, v7\nv_rcp_f32 v60, v4\nv_rcp_f32 v61, v4\nv_rcp_f32 v62, v6\nv_rcp_f32 v63, v6")
a("v_and_b32 v12, 0xffff, v5\nv_or_b32 v12, v12, v4\nv_lshrrev_b32 v13, 16, v5\nv_or_b32 v13, v13, v6")
a(f"s_lshl_b32 s11, s14, 2\ns_add_u32 s11, s11, {STATS}\nv_lshlrev_b32 v1, 3, v2")
a(clr_s)
rnd(0, range(8, 20)); rnd(1, range(20))
unp(0, range(20)); unp(1, range(20))
for sg in range(2):
    for k in range(20):
        d = DV + 40*sg + 2*k
        a(f"v_pk_mul_f32 {vr(d,2)}, {vr(d,2)}, {vr(60+2*sg,2)}")
for k in range(20):
    for h in range(2):
        d = DV + 2*k + h
        a(f"v_cvt_pk_bf16_f32 v{d}, v{d}, v{d+40}")
    d = DV + 2*k
    a(f"ds_write2_b32 v{150+k//4}, v{d}, v{d+1} offset0:{(k%4)*32} offset1:{(k%4)*32+16}")
a("v_mov_b32 v15, 1\nds_add_u32 v14, v15")
need_clr("ln")
a(f"s_mov_b32 exec_lo, 0x10001\ns_mov_b32 exec_hi, 0x10001\nbuffer_store_dwordx2 v[12:13], v1, {WS}, s11 offen sc1\ns_mov_b64 exec, -1")
stamp(2)
a("v_lshrrev_b32 v3, 5, v0\nv_lshlrev_b32 v2, 4, v0\nv_lshl_add_u32 v1, v3, 4, v2\nv_add_u32 v1, s69, v1")
a("s_mul_i32 s10, s9, 40960\ns_mul_i32 s11, s15, 10240\ns_add_u32 s10, s10, s11")
lds_wait("b", 256)
for i in range(10): a(f"ds_read_b128 {vr(RAW+4*i,4)}, v1 offset:{1056*i}")
for i in range(10):
    a(f"s_waitcnt lgkmcnt({9-i})\nbuffer_store_dwordx4 {vr(RAW+4*i,4)}, v2, {WS}, s10 offen sc1\ns_add_u32 s10, s10, 1024")
a(f"s_lshl_b32 s10, s15, 11\ns_add_u32 s10, s10, {LNC}\nv_lshlrev_b32 v4, 7, v0\nv_mov_b32 v5, 1")
a(f"s_waitcnt vmcnt(0)\ns_mov_b64 exec, 0xffff\nbuffer_atomic_add v5, v4, {WS}, s10 offen sc1\ns_mov_b64 exec, -1\ns_setprio 0")
stamp(4)
a("s_lshl_b32 s8, s9, 2\ns_add_u32 s8, s8, s15")
a("s_cmp_lg_u32 s8, 255\ns_cbranch_scc1 L_norelay")
a(f"v_lshlrev_b32 v6, 6, v0\ns_mov_b32 s8, {W2C}")
poll(few(3, f"buffer_load_dword v7, v6, {DBG}, 0 offen offset:128 sc1"),
     "v_readlane_b32 s9, v7, 0\nv_readlane_b32 s10, v7, 1\ns_add_u32 s9, s9, s10\ns_cmp_ge_u32 s9, 64", sleep=4, issued=False)
stamp(11)
a(f"s_mov_b32 exec_hi, 0\nbuffer_store_dword v5, v4, {WS}, s8 offen offset:1024 sc1\ns_mov_b32 exec_hi, -1")
a("L_norelay:")
a("s_mov_b32 s35, 1\ns_branch L_g2")
a("L_csum:")
a("s_setprio 3\ns_mov_b32 s12, 0x00003f80\ns_mov_b32 s13, 0x3f800000\nv_and_b32 v3, 3, v0")
zero(4, 8)
a("s_waitcnt vmcnt(0)")
for i in range(10):
    for k in range(4):
        a(f"v_dot2_f32_bf16 v{4+2*k}, v{RAW+4*i+k}, s12, v{4+2*k}\nv_dot2_f32_bf16 v{5+2*k}, v{RAW+4*i+k}, s13, v{5+2*k}")
for sh in (8, 4):
    for r in range(8): a(f"v_add_f32_dpp v{4+r}, v{4+r}, v{4+r} row_ror:{sh} row_mask:0xf bank_mask:0xf")
a("v_lshrrev_b32 v12, 4, v0\nv_lshlrev_b32 v12, 7, v12\nv_lshl_add_u32 v12, v3, 5, v12\nv_add_u32 v12, s69, v12")
a("ds_write_b128 v12, v[4:7]\nds_write_b128 v12, v[8:11] offset:16")
a("v_and_b32 v12, 31, v0\nv_lshl_add_u32 v13, v12, 2, s69")
for p in range(4): a(f"ds_read_b32 v{16+p}, v13 offset:{128*p}")
a("s_waitcnt lgkmcnt(0)\nv_add_f32 v16, v16, v17\nv_add_f32 v18, v18, v19\nv_add_f32 v16, v16, v18")
a("v_cvt_pk_bf16_f32 v4, v16, v16\nv_lshlrev_b32 v5, 16, v4\nv_sub_f32 v5, v16, v5")
a("v_cvt_pk_bf16_f32 v6, v16, v5\nv_and_b32 v7, 0xffff0000, v6\nv_sub_f32 v7, v5, v7")
a("v_cvt_pk_bf16_f32 v7, v7, v7\nv_and_b32 v7, 0xffff, v7\nv_or_b32 v7, 1, v7")
a(f"s_lshl_b32 s12, s9, 8\ns_mul_i32 s13, s15, {CSP}\ns_add_u32 s12, s12, s13\ns_add_u32 s12, s12, {CSUM}\nv_lshlrev_b32 v12, 3, v12")
need_clr("cs")
a("v_lshl_or_b32 v7, v145, 16, v7")
a(f"s_mov_b32 exec_hi, 0\nbuffer_store_dwordx2 v[6:7], v12, {WS}, s12 offen sc1\ns_mov_b32 exec_hi, -1")
stamp(2)
a("s_setprio 0\ns_mov_b32 s35, 4\ns_branch L_kg_loop")
a("L_w2mid:")
a("s_setprio 3")
a("v_lshlrev_b32 v2, 4, v0\ns_waitcnt vmcnt(0) lgkmcnt(0)")
for i in range(12): a(f"ds_write_b128 v{cLIN}, {vr(W2R(i),4)} offset:{1024*i}")
a("v_lshrrev_b32 v6, 5, v0\nv_bfe_u32 v7, v0, 4, 1\nv_lshlrev_b32 v6, 4, v6\nv_lshl_add_u32 v6, v7, 2, v6\nv_bfe_u32 v7, v0, 2, 2\nv_add_u32 v6, v6, v7")
a("v_lshlrev_b32 v6, 7, v6\nv_and_b32 v7, 3, v0\nv_lshl_add_u32 v6, v7, 3, v6\nv_add_u32 v6, s69, v6")
for dt in range(4):
    for u_ in range(3):
        for h in range(2): a(f"ds_read_b64_tr_b16 {vr(W2R(3*dt+u_)+2*h,2)}, v6 offset:{4096*u_+1024*h+32*dt}")
    for u_ in range(3):
        a(f"s_waitcnt lgkmcnt({4-2*u_})\nbuffer_store_dwordx4 {vr(W2R(3*dt+u_),4)}, v2, {WS}, s96 offen offset:{1024*u_} sc1")
    a("s_add_u32 s96, s96, 55296")
a("s_setprio 2\ns_mov_b32 s35, 6\ns_branch L_kg_loop")
a("L_w2sig:")
a(f"v_mov_b32 v4, {CNT+4}\nv_mov_b32 v5, 1\nv_mov_b32 v6, 0\ns_waitcnt vmcnt(0)\ns_mov_b64 exec, 1\nds_add_rtn_u32 v7, v4, v5\ns_waitcnt lgkmcnt(0)\nv_readfirstlane_b32 s10, v7")
a(f"s_and_b32 s11, s9, 1\ns_lshl_b32 s11, s11, 6\ns_add_u32 s11, s11, 128\ns_cmp_eq_u32 s10, 3\ns_cselect_b32 s11, s11, {OOB}\nbuffer_atomic_add v5, v6, {DBG}, s11 offen sc1\ns_mov_b64 exec, -1")
stamp(2)
a(f"s_setprio {opt('wprio', 1)}\ns_mov_b32 s35, 0\ns_branch L_kg_nsig")
a("L_kg_done:")
a("s_waitcnt vmcnt(4)")
a("s_cmp_ge_u32 s35, 3\ns_cbranch_scc1 L_clr_fin")
a(clr_s)
need_clr("fin")
a(f"s_waitcnt lgkmcnt(0)\ns_cmp_lt_u32 {WV}, 4\ns_cbranch_scc1 L_kg_nc\ns_cmp_eq_u32 s68, 2\ns_cbranch_scc1 L_kg_nc\ns_waitcnt vmcnt(0)")
a(c_issue)
a("L_kg_nc:")
a("s_nop 7")
stamp(4)
a(f"s_setprio {opt('pprio', 2)}")
r = lambda i: KA + i
a("v_lshlrev_b32 v1, 4, v0\nv_add_u32 v13, s69, v1")
zero(4, 4)
for i in range(3): a(f"ds_write_b128 v13, v[4:7] offset:{SCR+1024*i}")
a("v_and_b32 v3, 31, v0\nv_lshlrev_b32 v2, 4, v3\nv_sub_u32 v2, s69, v2\nv_add_u32 v2, 512, v2")
def pack(o, pairs):
    for i, (lo, hi) in enumerate(pairs): a(f"v_cvt_pk_bf16_f32 v{o+i}, {lo}, {hi}")
R = lambda i: f"v{KA+i}"
pack(16, [(R(7),R(6)),(R(5),R(4)),(R(3),R(2)),(R(1),R(0))])
pack(20, [(R(4),R(3)),(R(2),R(2)),(R(2),R(1)),(R(0),R(0))])
pack(24, [("0","0"),(R(9),R(9)),(R(9),R(8)),(R(8),R(8))])
pack(28, [(R(9),R(10)),(R(13),R(14))])
pack(30, [(R(9),R(11)),(R(13),R(15))])
a(f"v_and_b32 v8, 1, v3\nv_and_b32 v10, 30, v3\nv_mul_u32_u24 v9, 320, v8\nv_mul_u32_u24 v8, 640, v8\ns_add_u32 s10, s69, {T2}\nv_sub_u32 v10, s10, v10\nv_add_u32 v8, v8, v10\nv_add_u32 v9, v9, v10")
a("s_mov_b32 exec_hi, 0")
a(f"ds_write_b128 v2, v[16:19] offset:{IMG+1072-512}")
for q in range(4):
    for cp in range(2): a(f"ds_write_b16{'_d16_hi' if q & 1 else ''} v9, v{30+q//2} offset:{T3-T2 + 160*cp + 2*(63-16*q-cp)}")
a("s_mov_b32 exec_hi, -1\ns_mov_b32 exec_lo, 0")
a(f"ds_write_b128 v2, v[20:23] offset:{IMG+560-512}")
for q in range(2):
    for w in range(2):
        for cp in range(2): a(f"ds_write_b16{'_d16_hi' if w else ''} v8, v{28+q} offset:{320*w + 160*cp + 2*(47-16*q-cp)}")
a(f"s_mov_b32 exec_hi, 1\nds_write_b128 v2, v[24:27] offset:{IMG+48-512}\nds_write_b16 v8, v4 offset:{2*47}\nds_write_b16 v8, v4 offset:{160+2*46}\ns_mov_b64 exec, -1")
a(f"s_cmp_lt_u32 {WV}, 4\ns_cbranch_scc1 L_kexp")
a("s_cmp_eq_u32 s68, 2\ns_cbranch_scc1 L_cv_kpart\ns_waitcnt lgkmcnt(0)")
a(c_test)
a("s_cbranch_scc0 L_cv_kpart")
uloads()
a("s_mov_b32 s68, 2")
a("L_cv_kpart:")
B2, B3 = 164, 188
a(f"v_mov_b32 v5, s69\nds_read_u16 v34, v5 offset:{T2 + 6*160 + 2*16}")
a(f"ds_read_b128 v[16:19], v{cLIN} offset:{IMG}\nds_read_b64 v[20:21], v{cLIN} offset:{IMG+16}\nds_read_b128 v[24:27], v{cIMG2} offset:{IMG+1024}\nds_read_b64 v[28:29], v{cIMG2} offset:{IMG+1040}")
for i in range(6):
    for h in range(2): a(f"ds_read2_b32 {vr(B2+4*i+2*h,2)}, v{cT2} offset0:{4*i+2*h} offset1:{4*i+2*h+1}")
for d in range(4):
    for h in range(2): a(f"ds_read2_b32 {vr(B3+4*d+2*h,2)}, v{cT3} offset0:{8*(3-d)+2*h} offset1:{8*(3-d)+2*h+1}")
a("v_lshl_or_b32 v5, v147, 16, v147")
for k in range(4): a(f"v_and_b32 v{AD+k}, v{AD+k}, v5")
a("s_waitcnt lgkmcnt(15)\nv_lshl_or_b32 v5, v34, 16, v34")
for k in range(4): a(f"v_and_b32 v{AB+k}, v{AB+k}, v5")
for rr, (D, va, off) in enumerate(((16, cKW1, 0), (24, cKW2, 4608))):
    O = 64 + 16*rr
    for i in range(4):
        a(f"v_mov_b32 v{O+4*i}, v{D+i}\nv_mov_b32 v{O+4*i+1}, v{D+i+1}")
        a(f"v_alignbit_b32 v{O+4*i+2}, v{D+i+1}, v{D+i}, 16\nv_alignbit_b32 v{O+4*i+3}, v{D+i+2}, v{D+i+1}, 16")
        a(f"ds_write_b128 v{va}, {vr(O+4*i,4)} offset:{off + 16*i}")
a(f"ds_read_b64 {vr(A16,2)}, v{cA0}\nds_read_b64 {vr(A16+2,2)}, v{cA1}")
stamp(5)
a("s_cmp_lg_u32 s101, 0\ns_cbranch_scc1 L_cv_direct")
a("L_cv_upart:")
a(f"s_setprio {opt('pprio', 2)}")
zero(4, 4)
a(f"s_mov_b64 exec, 0x3fffffff\nds_write_b128 v{cLIN}, v[4:7] offset:{UB-480}\ns_mov_b64 exec, 3")
for o in (W3B-48, W5B-48, W7B-48, W9B-48, W9B+2032): a(f"ds_write_b128 v{cLIN}, v[4:7] offset:{o}")
a("s_mov_b64 exec, -1")
a("s_bitcmp1_b32 s68, 1\ns_cbranch_scc1 L_cv_u2")
spoll(c_issue, c_test, sleep=opt("lsleep", 6))
uloads()
a("L_cv_u2:")
a("s_mov_b32 s31, 0\ns_bitcmp1_b32 s68, 0\ns_cbranch_scc1 L_cv_u3\ns_cmp_eq_u32 s101, 0\ns_cbranch_scc1 L_cv_u3")
a(sld(31, S_MB))
a("L_cv_u3:")
stamp(6)
a("s_waitcnt vmcnt(0)")
for q in range(4): a(f"ds_write_b128 v{cLIN}, {vr(148+4*q,4)} offset:{UB+1024*q}")
SET = [(16, 24), (56, 64)]; CA = 96
a(f"v_mov_b32 v13, v{cLIN}\ns_mov_b32 s3, 0")
o = UB - 16
wrd = f"ds_read_b64 v[128:129], v13 offset:{o-8}\nds_read_b128 v[130:133], v13 offset:{o}\nds_read_b64 v[134:135], v13 offset:{o+16}"
a(wrd)
a("s_waitcnt lgkmcnt(0)\ns_and_b32 s13, s31, s101\ns_cbranch_scc0 L_cv_win")
kloads()
a("s_or_b32 s68, s68, 1")
a("L_cv_win:")
D = 128; Pf = 96
for e in range(16):
    a(f"v_lshlrev_b32 v{Pf+e}, 16, v{D+e//2}" if e % 2 == 0 else f"v_and_b32 v{Pf+e}, 0xffff0000, v{D+e//2}")
a(wrd.replace(f"offset:{o-8}", f"offset:{o-8+1024}").replace(f"offset:{o}\n", f"offset:{o+1024}\n").replace(f"offset:{o+16}", f"offset:{o+16+1024}"))
for e in range(1, 16): a(f"v_add_f32 v{Pf+e}, v{Pf+e}, v{Pf+e-1}")
for h, base in ((1, W3B), (2, W5B), (3, W7B), (4, W9B)):
    if h == 3: a("s_cmp_eq_u32 s3, 2\ns_cbranch_scc1 L_cv_wend")
    T = 112
    for i in range(8):
        b = 4+i-h-1
        a(f"v_sub_f32 v{T+i}, v{Pf+4+i+h}, v{Pf+b}" if b >= 0 else f"v_mov_b32 v{T+i}, v{Pf+4+i+h}")
    for i in range(4): a(f"v_cvt_pk_bf16_f32 v{120+4*(h&1)+i}, v{T+2*i}, v{T+2*i+1}")
    a(f"ds_write_b128 v13, {vr(120+4*(h&1),4)} offset:{base-16}")
a("v_add_u32 v13, 1024, v13\ns_add_u32 s3, s3, 1\ns_waitcnt lgkmcnt(4)\ns_branch L_cv_win")
a("L_cv_wend:")
a("s_cmp_lg_u32 s101, 0\ns_cbranch_scc1 L_cv_rk")
a("L_cv_direct:")
a(f"v_add_u32 v8, 2304, v{cA0}\nv_add_u32 v9, 2304, v{cA1}\nv_mov_b32 v10, v{cB}")
def rd(st):
    A_, B_ = SET[st]; Rr = []
    for x in range(2):
        Rr.append(f"ds_read_b64 {vr(A_+4*x,2)}, v8 offset:{2304*(1-x)}")
        Rr.append(f"ds_read_b64 {vr(A_+4*x+2,2)}, v9 offset:{2304*(1-x)}")
    for b in range(8): Rr.append(f"ds_read_b128 {vr(B_+4*b,4)}, v10 offset:{512*b}")
    return Rr
advk = ["v_subrev_u32 v8, 288, v8", "v_subrev_u32 v9, 288, v9", "v_subrev_u32 v10, 64, v10"]
for x in rd(0) + advk: a(x)
a(f"s_setprio {opt('cprio', 2)}\ns_mov_b32 s3, 0\ns_waitcnt lgkmcnt(0)")
if PROF: a("s_cmp_lt_u32 s4, 4\ns_cbranch_scc1 L_ns7")
stamp(7)
if PROF: a("L_ns7:")
def mf(n, A_, B_, c=None): a(f"v_mfma_f32_16x16x32_bf16 {vr(CA+4*n,4)}, {vr(A_,4)}, {vr(B_,4)}, {c if c else vr(CA+4*n,4)}")
for b in range(8): mf(b, AD, SET[0][1]+4*b, "0")
for b in range(6): mf(b+2, A16, SET[0][1]+4*b)
for b in range(4): mf(b+4, AB, SET[0][1]+4*b)
a("L_cv_loop:")
for st in range(2):
    A_, B_ = SET[st]; Rr = rd(1-st); n = 0
    for x in range(2):
        for b in range(8-x):
            mf(x+b, A_+4*x, B_+4*b)
            if n < 6: a(Rr[2*n]); a(Rr[2*n+1])
            elif n < 9: a(advk[n-6])
            if st == 1 and n == 12: a("s_add_u32 s3, s3, 1\ns_cmp_lt_u32 s3, 4")
            n += 1
    a("s_waitcnt lgkmcnt(0)")
a("s_cbranch_scc1 L_cv_loop")
a("L_cv_far:")
for f in range(12):
    for h in range(2): a(f"ds_read_b64_tr_b16 {vr(16+4*f+2*h,2)}, v{cW2} offset:{256*f+128*h}")
    if f == 6: a("s_waitcnt lgkmcnt(8)")
for f in range(4):
    for h in range(2): a(f"ds_read_b64_tr_b16 {vr(64+4*f+2*h,2)}, v{cW3} offset:{512*f+128*h}")
a("s_waitcnt lgkmcnt(8)")
for f in range(12):
    for n in range(2, 8):
        i = f + 8 - 2*n
        if 0 <= i < 6: mf(n, 16+4*f, B2+4*i)
a("s_waitcnt lgkmcnt(0)")
for f in range(4):
    for n in range(4+f, 8): mf(n, 64+4*f, B3+4*(n-f-4))
if PROF: a("s_cmp_lt_u32 s4, 4\ns_cbranch_scc1 L_ns8")
stamp(8)
if PROF: a("L_ns8:")
a(f"s_lshl_b32 s14, s{S_CH}, 7\ns_add_u32 s14, s14, {YA}\ns_nop 7")
for n in range(0, 8, 2):
    o = 16 + 2*n
    a(f"v_cvt_pk_bf16_f32 v{o}, v{CA+4*n}, v{CA+4*n+1}\nv_cvt_pk_bf16_f32 v{o+1}, v{CA+4*n+2}, v{CA+4*n+3}")
    a(f"v_cvt_pk_bf16_f32 v{o+2}, v{CA+4*n+4}, v{CA+4*n+5}\nv_cvt_pk_bf16_f32 v{o+3}, v{CA+4*n+6}, v{CA+4*n+7}")
    a(f"v_permlane16_swap_b32 v{o}, v{o+2}\nv_permlane16_swap_b32 v{o+1}, v{o+3}")
    a(f"buffer_store_dwordx4 {vr(o,4)}, v{cST}, {WS}, s14 offen sc1\ns_add_u32 s14, s14, {8*81920}")
a(f"s_mul_i32 s13, s{S_CH}, 820\ns_lshr_b32 s13, s13, 16\ns_lshl_b32 s14, s13, 9\ns_add_u32 s14, s14, {YAC}\nv_lshlrev_b32 v4, 7, v0\nv_mov_b32 v5, 1")
a(f"s_waitcnt vmcnt(0)\ns_mov_b64 exec, 15\nbuffer_atomic_add v5, v4, {WS}, s14 offen sc1\ns_mov_b64 exec, -1")
a("s_setprio 0")
stamp(9)
a(f"s_cmp_eq_u32 {WV}, 7\ns_cbranch_scc1 L_fetch")
endp()
a("L_kexp:")
for q in range(3): a(f"ds_read_b128 {vr(16+4*q,4)}, v13 offset:{SCR+1024*q}")
a(f"s_lshl_b32 s9, s{S_CH}, 12\ns_add_u32 s9, s9, {KD}")
for q in range(3): a(f"s_waitcnt lgkmcnt({2-q})\nbuffer_store_dwordx4 {vr(16+4*q,4)}, v1, {WS}, s9 offen offset:{1024*q} sc1")
a(f"s_sub_u32 s8, s{S_CH}, 256\ns_lshr_b32 s8, s8, 3\ns_lshl_b32 s8, s8, 2\ns_add_u32 s8, s8, {WV}\ns_cmp_ge_u32 s8, 144\ns_cselect_b32 s12, 1, 0\ns_mul_i32 s9, s12, 144\ns_sub_u32 s8, s8, s9")
a("s_mul_i32 s9, s8, 1821\ns_lshr_b32 s9, s9, 16\ns_mul_i32 s10, s9, 36\ns_sub_u32 s8, s8, s10")
a("s_cmp_ge_u32 s8, 20\ns_cselect_b32 s10, 1, 0\ns_mul_i32 s11, s10, 20\ns_sub_u32 s8, s8, s11\ns_lshl_b32 s8, s8, 3\ns_lshl_b32 s9, s9, 1\ns_add_u32 s8, s8, s9\ns_add_u32 s8, s8, s10")
a(f"s_lshl_b32 s8, s8, 7\ns_add_u32 s8, s8, {MBOX}\ns_lshl_b32 s9, 0x1000000, s12\nv_mov_b32 v4, 0\nv_mov_b32 v5, s9")
a(f"s_waitcnt vmcnt(0)\ns_mov_b64 exec, 1\nbuffer_atomic_or v5, v4, {WS}, s8 offen sc1\ns_mov_b64 exec, -1")
stamp(12)
a("s_setprio 0\ns_mov_b32 s35, 1\ns_branch L_g2")
a("L_cv_rk:")
a("s_bitcmp1_b32 s68, 0\ns_cbranch_scc1 L_cv_k1")
spoll(sld(31, S_MB), "s_and_b32 s13, s31, s101", sleep=6)
kloads()
a("L_cv_k1:")
for q in range(3): a(f"s_waitcnt vmcnt({2-q})\nds_write_b128 v{cLIN}, {vr(32+4*q,4)} offset:{SCR+1024*q}")
stamp(4)
a("s_branch L_cv_kpart")

a("L_end:")
if PROF:
    a(f"s_lshl_b32 s93, s2, 3\ns_add_u32 s93, s93, {WV}\ns_lshl_b32 s93, s93, 6\ns_add_u32 s93, s93, {PROFB}")
    a(f"s_memrealtime s[94:95]\ns_waitcnt lgkmcnt(0)\ns_mov_b32 s87, s94\ns_mov_b32 s72, s{S_SPIN}")
    for i in range(16): a(f"v_mov_b32 v{224+i}, s{72+i}")
    a("v_mov_b32 v255, 0\ns_mov_b64 exec, 1")
    for i in range(4): a(f"buffer_store_dwordx4 {vr(224+4*i,4)}, v255, {WS}, s93 offen offset:{16*i}")
    if opt("dbgmax", 0):
        a(f"v_not_b32 v238, v238\ns_and_b32 s93, {WV}, 3\ns_cmp_lg_u32 s93, 0\ns_cbranch_scc1 L_exit")
        sel0 = {1: 14, 2: 15, 3: 1, 4: 2, 5: 5, 6: 6, 7: 8, 8: 10}
        sel4 = {9: 10, 10: 4, 11: 7, 12: 8, 13: 9}
        a(f"s_cmp_lg_u32 {WV}, 0\ns_cbranch_scc1 L_dbg4")
        for d, i in sel0.items(): a(f"buffer_atomic_umax v{224+i}, v255, {DBG}, 0 offen offset:{4*d} sc1")
        a("s_branch L_exit")
        a("L_dbg4:")
        for d, i in sel4.items(): a(f"buffer_atomic_umax v{224+i}, v255, {DBG}, 0 offen offset:{4*d} sc1")
a("L_exit:")
a("s_endpgm")

hdr = open("cdna_kernels/%s.s.ref" % NAME).read().split("; Override launch")[0]
out = hdr + "; @launch grid=(256,1,1) block=(512,1,1) lds=163840\n"
DOC = """;
"""
out += DOC
out += '.amdgcn_target "amdgcn-amd-amdhsa--gfx950"\n.text\n' + a.text()
out += f""".section .rodata,"a"
.p2align 6
.amdhsa_kernel {KN}
  .amdhsa_next_free_vgpr 256
  .amdhsa_next_free_sgpr 102
  .amdhsa_accum_offset 256
  .amdhsa_group_segment_fixed_size 0
  .amdhsa_kernarg_size 136
  .amdhsa_user_sgpr_count 2
  .amdhsa_user_sgpr_kernarg_segment_ptr 1
  .amdhsa_system_sgpr_workgroup_id_x 1
.end_amdhsa_kernel
"""
path = [x for x in sys.argv[1:] if not x.startswith("--")]
open(path[0] if path else "f.s", "w").write(out)
```

```python
import sys, struct, math
sys.path.insert(0, "dev")
from asmlib import Asm, vr, sr

NAME = "parallel_sum__ssm_conv_s4__dense_activation_gelu__prompt"
KN = NAME + "_kernel"
PROF = "--prof" in sys.argv
def opt(name, default):
    for x in sys.argv:
        if x.startswith("--%s=" % name): return int(x.split("=")[1])
    return default
def f32(x): return "0x%08x" % struct.unpack("<I", struct.pack("<f", x))[0]

XNT, KD, YA, W2F = 0x000000, 0x280000, 0x500000, 0x780000
CLR = 0x9A0000
STATS, CSUM, MBOX, LNC, W2C, YAC = CLR, CLR+0x2000, CLR+0x10000, CLR+0x18000, CLR+0x1C000, CLR+0x1A000
CSP = 13824
PROFB, HF = 0x9C0000, 0xA00000
WS_SIZE = 0x1100000
OOB = "0x7f000000"
P = dict(u=16, are=18, aim=20, bre=22, bim=24, cre=26, cim=28, ldt=30, dsk=32, bx=34, w1=36, b1=38, w2=40, b2=42, out=44, dbg=46, ws=48)
S_WS, S_A, S_B, S_DBG = 52, 56, 60, 64
S_WAVE, S_XR, S_XC, S_J, S_SPIN, S_CH = 4, 5, 6, 7, 50, 51
S_MB = 34
WV = f"s{S_WAVE}"
WS = f"s[{S_WS}:{S_WS+3}]"; SA = f"s[{S_A}:{S_A+3}]"; SB = f"s[{S_B}:{S_B+3}]"; DBG = f"s[{S_DBG}:{S_DBG+3}]"
STG = 40960
NST = 3
AREG, BREG0, BREG = 20480, 81920, 20480
B7 = BREG0 + 3*BREG
CNT = B7 + 20096
YAT = B7
UB = 5536
W3B, W5B, W7B, W9B = 9664, 12768, 15872, 17952
SCR = 512
IMG, T2, T3 = SCR, SCR+1136, SCR+2416
STATL = BREG0 + 2*BREG
NT = " nt" if opt("nt", 0) else ""
NT1 = " nt" if opt("nt1", 1) else ""

a = Asm()
G2F = " sc1" if opt("g2sc1", 1) else ""
def srd(d, ptr, size):
    a(f"s_mov_b32 s{d}, s{ptr}\ns_mov_b32 s{d+1}, s{ptr+1}\ns_mov_b32 s{d+2}, {hex(size)}\ns_mov_b32 s{d+3}, 0x20000")
def stamp(idx):
    if PROF: a(f"s_memtime s[92:93]\ns_waitcnt lgkmcnt(0)\ns_sub_u32 s{72+idx}, s92, s90")
def lstamp(o):
    if PROF: a(f"s_memtime s[92:93]\ns_waitcnt lgkmcnt(0)\ns_sub_u32 s92, s92, s90\ns_add_u32 m0, s3, {o}\nv_writelane_b32 v200, s92, m0")
def endp(): a("s_branch L_end")
def cmul(d, x, y, t):
    a(f"v_pk_mul_f32 {vr(t,2)}, {vr(x,2)}, {vr(y,2)} op_sel:[0,0] op_sel_hi:[0,1]")
    a(f"v_pk_fma_f32 {vr(d,2)}, {vr(x,2)}, {vr(y,2)}, {vr(t,2)} op_sel:[1,1,0] op_sel_hi:[1,0,1] neg_lo:[0,1,0]")
def poll(issue, test, sleep=4, issued=True):
    L = a.label("L_poll"); D = a.label("L_pdone")
    if not issued: a(issue)
    a(f"{L}:")
    a("s_waitcnt vmcnt(0)")
    a(test)
    a(f"s_cbranch_scc1 {D}")
    a(f"s_add_u32 s{S_SPIN}, s{S_SPIN}, 1\ns_cmp_gt_u32 s{S_SPIN}, 100000\ns_cbranch_scc1 L_exit")
    a(f"s_sleep {sleep}")
    a(issue)
    a(f"s_branch {L}")
    a(f"{D}:")
def sld(d, off): return f"s_load_dword s{d}, s[{P['ws']}:{P['ws']+1}], s{off} glc"
def spoll(issue, test, sleep=4, issued=False, far=None):
    L = a.label("L_spoll"); D = a.label("L_sdone")
    if not issued: a(issue)
    a(f"{L}:")
    a("s_waitcnt lgkmcnt(0)")
    a(test)
    a(f"s_cbranch_scc1 {D}")
    a(f"s_add_u32 s{S_SPIN}, s{S_SPIN}, 1\ns_cmp_gt_u32 s{S_SPIN}, 100000\ns_cbranch_scc1 L_exit")
    a(f"s_sleep {sleep}")
    if far:
        N = a.label("L_near")
        a(f"{far[0]}\ns_cbranch_scc1 {N}\ns_sleep {far[1]}")
        a(f"{N}:")
    a(issue)
    a(f"s_branch {L}")
    a(f"{D}:")
def arrive_issue(sreg, va, vb):
    a(f"v_mov_b32 v{va}, 0\nv_mov_b32 v{vb}, 1\ns_mov_b64 exec, 1\nbuffer_atomic_add v{vb}, v{va}, {WS}, s{sreg} offen sc0 sc1\ns_mov_b64 exec, -1")
def arrive_check(st, vb, n, then):
    L = a.label("L_arr")
    a(f"s_waitcnt vmcnt(0)\nv_readfirstlane_b32 s{st}, v{vb}\ns_cmp_lg_u32 s{st}, {n-1}\ns_cbranch_scc1 {L}")
    a(then)
    a(f"{L}:")
def push_all(bitreg, off, va, vb, st):
    t = f"v_lshlrev_b32 v{va}, 7, v0\nv_mov_b32 v{vb}, s{bitreg}\ns_mov_b32 s{st}, {MBOX+off}\n"
    for i in range(4): t += f"buffer_atomic_or v{vb}, v{va}, {WS}, s{st} offen sc1\ns_add_u32 s{st}, s{st}, 8192\n"
    return t
def few(mask, ins): return f"s_mov_b64 exec, {mask}\n{ins}\ns_mov_b64 exec, -1"
def clr_issue(v, vo): return few(15, f"buffer_load_dword v{v}, v{vo}, {DBG}, 0 offen sc1")
def clr_test(v): return f"v_cmp_ne_u32 vcc, 0, v{v}\ns_and_b32 vcc_lo, vcc_lo, 15\ns_cmp_eq_u32 vcc_lo, 15"
def nz_test(v): return f"v_cmp_ne_u32 vcc, 0, v{v}\ns_cmp_eq_u64 vcc, -1"
def zero(b, n):
    for i in range(0, n, 2): a(f"v_pk_mov_b32 {vr(b+i,2)}, 0, 0")

cLIN, cIMG2, cT2, cT3, cW2, cW3, cST, cKW1, cKW2, cA0, cA1, cB, cU = 247, 248, 249, 250, 251, 252, 253, 254, 255, 231, 236, 237, 146
AD, AB, A16 = 204, 224, 232
RS = opt("rowsplit", 0)
def tile_rc(rt, cb, tmp):
    if RS: return f"s_and_b32 s{rt}, s2, 7\ns_lshl_b32 s{rt}, s{rt}, 2\ns_lshr_b32 s{cb}, s{S_J}, 3\ns_add_u32 s{rt}, s{rt}, s{cb}\ns_and_b32 s{cb}, s{S_J}, 7"
    return (f"s_lshl_b32 s{rt}, s{S_XR}, 3\ns_lshr_b32 s{cb}, s{S_J}, 2\ns_add_u32 s{rt}, s{rt}, s{cb}\n"
            f"s_lshl_b32 s{cb}, s{S_XC}, 2\ns_and_b32 s{tmp}, s{S_J}, 3\ns_add_u32 s{cb}, s{cb}, s{tmp}")
def conv_setup(t=64):
    r_, g_, h_, f_, x_, y_, z_ = (f"v{t+i}" for i in range(7))
    a(f"v_lshlrev_b32 {x_}, 4, v0\nv_add_u32 v{cLIN}, s69, {x_}\nv_min_u32 {z_}, 5, v0\nv_lshl_add_u32 v{cIMG2}, {z_}, 4, s69")
    a(f"v_lshlrev_b32 {x_}, 6, {z_}\nv_lshrrev_b32 {y_}, 1, {z_}\nv_lshl_add_u32 {x_}, {y_}, 4, {x_}\nv_add_u32 v{cKW2}, s69, {x_}")
    a(f"v_lshlrev_b32 {x_}, 6, v0\nv_lshrrev_b32 {y_}, 1, v0\nv_lshl_add_u32 {x_}, {y_}, 4, {x_}\nv_add_u32 v{cKW1}, s69, {x_}")
    a(f"v_lshrrev_b32 {x_}, 2, v0\nv_mul_u32_u24 {x_}, 40960, {x_}\nv_and_b32 {y_}, 3, v0\nv_lshl_add_u32 v{cU}, {y_}, 4, {x_}")
    a(f"v_and_b32 {r_}, 15, v0\nv_lshrrev_b32 {g_}, 4, v0\nv_and_b32 {h_}, 1, {g_}\nv_lshrrev_b32 {f_}, 1, {g_}")
    a(f"v_sub_u32 {x_}, 15, {r_}\nv_and_b32 {y_}, 1, {x_}\nv_sub_u32 {x_}, {x_}, {y_}\nv_lshlrev_b32 {x_}, 1, {x_}")
    a(f"v_lshl_add_u32 {z_}, {g_}, 1, {y_}\nv_mul_u32_u24 {z_}, 160, {z_}\nv_add_u32 {z_}, {z_}, {x_}\ns_add_u32 s10, s69, {T2}\nv_add_u32 v{cT2}, s10, {z_}")
    a(f"v_lshl_add_u32 {z_}, {h_}, 1, {y_}\nv_mul_u32_u24 {z_}, 160, {z_}\nv_add_u32 {z_}, {z_}, {x_}\nv_lshl_add_u32 {z_}, {f_}, 4, {z_}\ns_add_u32 s10, s69, {T3}\nv_add_u32 v{cT3}, s10, {z_}")
    a(f"v_mul_u32_u24 {x_}, {W5B-W3B}, {h_}\nv_lshlrev_b32 {y_}, 3, {g_}\nv_sub_u32 {x_}, {x_}, {y_}\nv_lshl_add_u32 {x_}, {r_}, 3, {x_}\ns_add_u32 s10, s69, {W3B-8}\nv_add_u32 v{cW2}, s10, {x_}")
    a(f"v_mul_u32_u24 {x_}, {W9B-W7B-16}, {h_}\nv_lshl_add_u32 {x_}, {f_}, 8, {x_}\nv_lshl_add_u32 {x_}, {r_}, 3, {x_}\ns_add_u32 s10, s69, {W7B-16}\nv_add_u32 v{cW3}, s10, {x_}")
    a(f"v_lshlrev_b32 {x_}, 2, {h_}\nv_lshrrev_b32 {z_}, 2, {r_}\nv_add_u32 {x_}, {x_}, {z_}\nv_mul_u32_u24 {x_}, 81920, {x_}\nv_lshl_add_u32 {x_}, {f_}, 6, {x_}\nv_and_b32 {z_}, 3, {r_}\nv_lshl_add_u32 v{cST}, {z_}, 4, {x_}")
    a(f"s_add_u32 s10, s69, {UB-32}\nv_lshlrev_b32 {x_}, 5, {r_}\nv_lshl_add_u32 {x_}, {g_}, 4, {x_}\nv_add_u32 v{cB}, s10, {x_}")
    a(f"v_sub_u32 {z_}, {y_}, {r_}\nv_add_u32 {z_}, 15, {z_}\nv_sub_u32 {y_}, {r_}, {y_}")
    a(f"v_lshrrev_b32 {x_}, 4, {z_}\nv_lshlrev_b32 {x_}, 4, {x_}\nv_lshl_add_u32 {x_}, {z_}, 3, {x_}\nv_add_u32 v{cA0}, s69, {x_}")
    a(f"v_add_u32 {z_}, 4, {z_}\nv_lshrrev_b32 {x_}, 4, {z_}\nv_lshlrev_b32 {x_}, 4, {x_}\nv_lshl_add_u32 {x_}, {z_}, 3, {x_}\nv_add_u32 v{cA1}, s69, {x_}")
    a(f"v_mov_b32 {r_}, 0xffff\nv_mov_b32 {g_}, 0xffff0000\nv_mov_b32 {h_}, -1")
    for k in range(4):
        a(f"v_cmp_eq_u32 vcc, {2*k-16}, {y_}\nv_cndmask_b32 v{AD+k}, 0, {r_}, vcc\nv_cmp_eq_u32 vcc, {2*k+1-16}, {y_}\nv_cndmask_b32 v{AD+k}, v{AD+k}, {g_}, vcc")
        a(f"v_cmp_eq_u32 vcc, {2*k-12}, {y_}\nv_cndmask_b32 v{AB+k}, 0, {h_}, vcc\nv_cmp_eq_u32 vcc, {2*k-13}, {y_}\nv_cndmask_b32 v{AB+k}, v{AB+k}, {r_}, vcc\nv_cmp_eq_u32 vcc, {2*k-11}, {y_}\nv_cndmask_b32 v{AB+k}, v{AB+k}, {g_}, vcc")
def uloads():
    a(f"s_lshl_b32 s10, s{S_CH}, 6")
    for q in range(4): a(f"buffer_load_dwordx4 {vr(148+4*q,4)}, v{cU}, {WS}, s10 offen sc1\ns_add_u32 s10, s10, 655360")
def kloads():
    a(f"s_lshl_b32 s10, s{S_CH}, 12\ns_add_u32 s10, s10, {KD}")
    for q in range(3): a(f"buffer_load_dwordx4 {vr(32+4*q,4)}, v1, {WS}, s10 offen offset:{1024*q} sc1")
lnc_addr = f"s_mul_i32 s13, s{S_CH}, 410\ns_lshr_b32 s13, s13, 16\ns_lshl_b32 s13, s13, 4\ns_and_b32 s100, s2, 15\ns_add_u32 s100, s100, s13\ns_lshl_b32 s100, s100, 7\ns_add_u32 s100, s100, {LNC}"

a.raw(f".globl {KN}\n.p2align 8\n.type {KN},@function")
a(f"{KN}:")
a("s_cmp_ge_u32 s2, 256\ns_cbranch_scc1 L_exit")
a("s_load_dwordx16 s[16:31], s[0:1], 0\ns_load_dwordx16 s[32:47], s[0:1], 64\ns_load_dwordx2 s[48:49], s[0:1], 128")
if opt("cpf", 1):
    a(f"s_cmp_ge_u32 s2, {opt('cpfn', 8)}\ns_cbranch_scc1 L_nocpf")
    a("s_getpc_b64 s[12:13]")
    a("L_cpfb:")
    a("v_lshlrev_b32 v20, 7, v0\nv_min_u32 v20, L_exit-L_cpfb, v20\nv_mov_b32 v21, s13\nv_add_co_u32 v20, vcc, s12, v20\nv_addc_co_u32 v21, vcc, 0, v21, vcc")
    a("global_load_dword v22, v[20:21], off")
    a("L_nocpf:")
if PROF:
    a("s_memtime s[90:91]\ns_memrealtime s[94:95]")
    for i in range(16): a(f"s_mov_b32 s{72+i}, 0")
a("v_lshrrev_b32 v1, 6, v0\nv_and_b32 v0, 63, v0")
a(f"v_readfirstlane_b32 {WV}, v1")
a(f"s_bfe_u32 s{S_XR}, s2, 0x20001\ns_and_b32 s{S_XC}, s2, 1\ns_lshr_b32 s{S_J}, s2, 3\ns_mov_b32 s{S_SPIN}, 0")
a(f"s_lshl_b32 s8, s{S_XC}, 2\ns_sub_u32 s8, 20, s8")
a(f"s_cmp_eq_u32 s{S_XC}, 0\ns_cselect_b32 s9, 52, 64\ns_mul_i32 s9, s9, s{S_J}\ns_lshr_b32 s9, s9, 8")
a(f"s_sub_u32 s11, 5, s{S_XC}\ns_mul_i32 s11, s11, s9\ns_sub_u32 s10, s{S_J}, s11\ns_mul_i32 s11, s{S_XC}, 5\ns_add_u32 s10, s10, s11")
a(f"s_lshl_b32 s11, s{S_XR}, 2\ns_add_u32 s9, s9, s11")
a("v_lshrrev_b32 v4, 3, v0\nv_mul_u32_u24 v4, 1280, v4")
a("v_and_b32 v5, 7, v0\nv_lshrrev_b32 v6, 4, v0\nv_xor_b32 v5, v5, v6\nv_lshl_add_u32 v2, v5, 4, v4")
a("v_xor_b32 v5, 4, v5\nv_lshl_add_u32 v3, v5, 4, v4\nv_add_u32 v3, 10240, v3\nv_add_u32 v4, 20480, v2\nv_add_u32 v5, 20480, v3")
for i in range(3):
    a(f"v_add_u32 v6, {64*i}, v0\nv_mul_u32_u24 v7, 2731, v6\nv_lshrrev_b32 v7, 16, v7\nv_lshlrev_b32 v14, 1, v7\nv_and_b32 v14, 4, v14\nv_xor_b32 v6, v6, v14")
    a(f"v_mul_u32_u24 v7, 3072, v7\nv_lshl_add_u32 v{8+i}, v6, 4, v7\nv_add_u32 v{11+i}, 27648, v{8+i}")
a(f"s_and_b32 s99, {WV}, 3")
a("s_lshl_b32 s11, s9, 7\ns_lshl_b32 s12, s99, 5\ns_add_u32 s11, s11, s12\ns_mul_i32 s11, s11, 1280")
a("s_mul_i32 s12, s99, 55296\ns_mul_i32 s13, s10, 384\ns_add_u32 s12, s12, s13")
a("s_lshl_b32 s13, s99, 12\ns_mul_i32 s14, s99, 6144\ns_add_u32 s14, s14, 16384\ns_mov_b32 s3, 0")
a(f"s_and_b32 s15, s9, 3\ns_mul_i32 s15, s15, 5\ns_add_u32 s15, s15, 1\ns_lshr_b32 s15, s15, 1\ns_lshl_b32 s68, s10, 1\ns_add_u32 s15, s15, s68\ns_add_u32 s15, s15, s{S_XR}")
a("s_mul_i32 s68, s15, 26\ns_lshr_b32 s68, s68, 8\ns_mul_i32 s68, s68, 10\ns_sub_u32 s15, s15, s68")
a("s_lshl_b32 s68, s15, 7\ns_add_u32 s11, s11, s68\ns_mul_i32 s68, s15, 221184\ns_add_u32 s12, s12, s68\ns_mov_b32 s69, 0")
for d, size in ((S_WS, WS_SIZE), (S_A, 2621440), (S_B, 2211840), (S_DBG, 256)): a(f"s_mov_b32 s{d+2}, {hex(size)}\ns_mov_b32 s{d+3}, 0x20000")
a("v_mov_b32 v146, 0\nv_mov_b32 v253, 0\ns_mov_b32 s101, 0")
a("s_waitcnt lgkmcnt(0)")
for d, nm in ((S_A, 'u'), (S_B, 'w1'), (S_WS, 'ws'), (S_DBG, 'dbg')): a(f"s_mov_b64 s[{d}:{d+1}], s[{P[nm]}:{P[nm]+1}]")
a(f"s_lshl_b32 s{S_MB}, s2, 7\ns_add_u32 s{S_MB}, s{S_MB}, {MBOX}")
if PROF:
    a("s_mov_b32 s86, s94"); stamp(13)
if opt("g2only", 0):
    a(f"v_mov_b32 v174, 0\ns_mov_b32 s35, 1\ns_cmp_lt_u32 {WV}, 4\ns_cbranch_scc1 L_g2\ns_branch L_end")
a(f"s_cmp_ge_u32 s{S_J}, s8\ns_cbranch_scc1 L_aux")
a(f"s_cmp_lt_u32 {WV}, 4\ns_cbranch_scc1 L_comp")

a("s_mov_b32 s8, s99")
stamp(1)
S_C = 96
a("L_ld_loop:")
a("s_cmp_lt_u32 s3, 2\ns_cbranch_scc1 L_ld_nowait\ns_cmp_eq_u32 s3, 2\ns_cbranch_scc1 L_ld_setup")
a("L_ld_wait:")
a("s_waitcnt vmcnt(10)")
lstamp(0)
a("s_barrier")
lstamp(16)
a("L_ld_nowait:")
a("s_add_u32 s70, s69, s13\ns_add_u32 s71, s69, s14")
for q in range(4): a(f"s_add_u32 m0, s70, {1024*q}\nbuffer_load_dwordx4 v{2+q}, {SA}, s11 offen{NT} lds")
for i in range(6): a(f"s_add_u32 m0, s71, {1024*i}\nbuffer_load_dwordx4 v{8+i}, {SB}, s12 offen{NT} lds")
a("s_add_u32 s11, s11, 128\ns_add_u32 s12, s12, 221184\ns_add_u32 s15, s15, 1\ns_cmp_lt_u32 s15, 10\ns_cbranch_scc1 L_ld_nowrap")
a("s_sub_u32 s11, s11, 1280\ns_sub_u32 s12, s12, 2211840\ns_mov_b32 s15, 0")
a("L_ld_nowrap:")
a(f"s_add_u32 s69, s69, {STG}\ns_cmp_eq_u32 s69, {NST*STG}\ns_cselect_b32 s69, 0, s69")
a(f"s_cmp_lg_u32 s3, 7\ns_cbranch_scc1 L_ld_n5\ns_load_dwordx4 s[28:31], s[{P['dbg']}:{P['dbg']+1}], 0")
a("L_ld_n5:")
a("s_add_u32 s3, s3, 1\ns_cmp_lt_u32 s3, 10\ns_cbranch_scc1 L_ld_loop")
s_issue = f"buffer_load_dwordx4 v[16:19], v1, {WS}, s18 offen sc1\nbuffer_load_dwordx4 v[20:23], v6, {WS}, s18 offen offset:1024 sc1\nbuffer_load_dword v24, v7, {WS}, s20 offen sc1"
wc_issue = sld(26, 25)
wc_test = "s_cmp_lg_u32 s26, 0"
a("s_waitcnt lgkmcnt(0)\ns_and_b32 s28, s28, s29\ns_and_b32 s30, s30, s31\ns_and_b32 s24, s28, s30")
a(s_issue)
for w in (13, 3):
    if w == 3:
        a("s_mov_b32 s31, 0\ns_mov_b32 s33, 0\ns_cmp_eq_u32 s101, 0\ns_cbranch_scc1 L_ld_ncv")
        a(sld(31, S_MB) + "\n" + sld(33, 100))
        a("L_ld_ncv:")
    a(f"s_waitcnt vmcnt({w})")
    lstamp(0)
    a("s_barrier")
    lstamp(16)
    if PROF: a("s_add_u32 s3, s3, 1")
a("s_cmp_lg_u32 s24, 0\ns_cbranch_scc1 L_ld_clr")
poll(clr_issue(15, 14), clr_test(15), sleep=8, issued=False)
a(s_issue)
a("s_waitcnt lgkmcnt(0)\ns_mov_b32 s31, 0\ns_mov_b32 s33, 0")
a("L_ld_clr:")
s_test = "v_and_b32 v4, v17, v19\nv_and_b32 v5, v21, v23\nv_and_b32 v4, v4, v5\nv_and_b32 v4, 1, v4\nv_min_u32 v4, v4, v24\n" + nz_test(4)
poll(s_issue, s_test, sleep=8)
a("ds_write_b128 v25, v[16:19]\nds_write_b128 v26, v[20:23] offset:1024\nds_write_b32 v27, v24")
a("s_waitcnt lgkmcnt(0)\ns_mov_b32 s68, 0\ns_and_b32 s13, s31, s101\ns_cbranch_scc0 L_ld_nk0")
kloads()
a("s_mov_b32 s68, 1")
a("L_ld_nk0:")
a("s_cmp_ge_u32 s33, 64\ns_cbranch_scc0 L_ld_nk")
uloads()
a("s_or_b32 s68, s68, 2")
a("L_ld_nk:")
a("s_barrier")
lstamp(16)
if PROF:
    a(f"s_lshl_b32 s93, s2, 9\ns_lshl_b32 s92, s8, 7\ns_add_u32 s93, s93, s92\ns_add_u32 s93, s93, {PROFB+0x20000}\nv_lshlrev_b32 v201, 2, v0\ns_mov_b32 exec_hi, 0\nbuffer_store_dword v200, v201, {WS}, s93 offen\ns_mov_b32 exec_hi, -1")
stamp(2)
a(f"s_cmp_eq_u32 {WV}, 7\ns_cbranch_scc1 L_fetch")
a(f"s_cmp_eq_u32 {WV}, 6\ns_cbranch_scc1 L_park")
a(f"s_cmp_eq_u32 s101, 0\ns_cbranch_scc1 L_end\ns_mul_i32 s69, {WV}, {AREG}\ns_branch L_cv_upart")
wc_prep = f"s_and_b32 s25, s2, 31\ns_lshl_b32 s25, s25, 7\ns_add_u32 s25, s25, {W2C+1024}"
a("L_ld_setup:")
a("v_lshlrev_b32 v1, 4, v0\nv_and_b32 v7, 31, v0\nv_lshlrev_b32 v6, 4, v7\nv_lshlrev_b32 v7, 2, v7\nv_and_b32 v14, 3, v0\nv_lshlrev_b32 v14, 2, v14")
a(f"s_lshl_b32 s20, s9, 9\ns_lshl_b32 s23, s8, 7\ns_add_u32 s20, s20, s23\ns_add_u32 s20, s20, {STATS}\ns_add_u32 s23, s23, {STATL+6144}\nv_add_u32 v27, s23, v7")
a(f"s_mul_i32 s18, s10, 1536\ns_mul_i32 s19, s8, {CSP}\ns_add_u32 s18, s18, s19\ns_add_u32 s18, s18, {CSUM}")
a(f"s_mul_i32 s23, s8, 1536\ns_add_u32 s23, s23, {STATL}\nv_add_u32 v25, s23, v1\nv_add_u32 v26, s23, v6\nv_mov_b32 v30, {CNT}")
zero(32, 4)
a("ds_write_b128 v30, v[32:35]")
a(wc_prep)
a(f"s_mul_i32 s23, s{S_XR}, 36\ns_mul_i32 s22, s{S_XC}, 20\ns_add_u32 s23, s23, s22\ns_add_u32 s23, s23, s{S_J}\ns_mul_i32 s22, s8, 144\ns_add_u32 s23, s23, s22\ns_cmp_ge_u32 s23, 192\ns_cbranch_scc1 L_ld_wait")
a(f"s_lshr_b32 s22, s23, 2\ns_lshl_b32 s22, s22, 3\ns_and_b32 s23, s23, 3\ns_add_u32 s{S_CH}, s23, s22\ns_add_u32 s{S_CH}, s{S_CH}, 256\ns_lshl_b32 s101, 0x1000000, s8")
a(f"s_mov_b32 s96, s69\ns_mov_b32 s97, s10\ns_mov_b32 s98, s13\ns_mul_i32 s69, {WV}, {AREG}")
conv_setup()
a(lnc_addr)
a(f"s_lshl_b32 s22, s{S_CH}, 1\ns_and_b32 s23, s22, 2\ns_sub_u32 s22, s22, s23\ns_load_dword s99, s[{P['dsk']}:{P['dsk']+1}], s22")
a("s_lshl_b32 s23, s23, 3\ns_waitcnt lgkmcnt(0)\ns_lshr_b32 s99, s99, s23\ns_and_b32 s99, s99, 0xffff\nv_mov_b32 v147, s99")
a("s_mov_b32 s69, s96\ns_mov_b32 s10, s97\ns_mov_b32 s13, s98\ns_branch L_ld_wait")

G2H = [16, 32, 48, 224]; G2W = [164, 184, 204, 144]; AC2 = 64
K0 = [0, 13, 26, 40, 54]
def g2_setup():
    a(tile_rc(30, 31, 29))
    a(f"s_mul_i32 s28, {WV}, 7168\ns_max_u32 s28, s28, 1024\ns_sub_u32 s28, s28, 1024")
    a(f"s_mul_i32 s27, s30, {4*55296}\ns_add_u32 s27, s27, s28\ns_add_u32 s27, s27, {HF}")
    for i in range(4):
        a(f"s_add_u32 s29, {WV}, {i}\ns_and_b32 s29, s29, 3\ns_mul_i32 s29, s29, 55296\ns_add_u32 s{18+i}, s27, s29")
    a(f"s_mul_i32 s22, s31, {5*55296}\ns_add_u32 s22, s22, s28\ns_add_u32 s22, s22, {W2F}")
    for i in range(1, 5): a(f"s_add_u32 s{22+i}, s22, {55296*i}")
    a(f"s_lshl_b32 s27, s30, 6\ns_lshl_b32 s29, {WV}, 4\ns_add_u32 s27, s27, s29\ns_mul_i32 s27, s27, 1280\ns_mul_i32 s29, s31, 160\ns_add_u32 s27, s27, s29")
    masks = []
    for w in range(4):
        c0, c1 = max(0, 7*w-1)//3, (7*w+5)//3
        m = ((1 << (c1-c0+1)) - 1) << c0
        masks.append(m | (m << 11))
    a(f"s_mov_b32 s28, {hex(masks[0])}\ns_cmp_eq_u32 {WV}, 1\ns_cselect_b32 s28, {hex(masks[1])}, s28\ns_cmp_eq_u32 {WV}, 2\ns_cselect_b32 s28, {hex(masks[2])}, s28\ns_cmp_eq_u32 {WV}, 3\ns_cselect_b32 s28, {hex(masks[3])}, s28")
    a(f"v_lshlrev_b32 v252, 4, v0\ns_cmp_eq_u32 {WV}, 0\ns_cselect_b32 s30, {OOB}, 0\nv_add_u32 v253, s30, v252")
    a("v_lshrrev_b32 v255, 4, v0\nv_lshlrev_b32 v255, 3, v255\nv_and_b32 v254, 15, v0\nv_mul_u32_u24 v254, 160, v254\nv_add_u32 v254, v254, v255")
    srd(S_B, P['b2'], 1280)
def ldh(k, o=0, v=252): return [f"buffer_load_dwordx4 {vr(G2H[k]+4*i,4)}, v{v}, {WS}, s{18+i} offen offset:{o}{G2F}" for i in range(4)]
def ldw(k, o=0, v=252): return [f"buffer_load_dwordx4 {vr(G2W[k]+4*i,4)}, v{v}, {WS}, s{22+i} offen offset:{o}{G2F}" for i in range(5)]
OUTV = (8, 9, 13)
def xb_loads():
    for q in range(3):
        a(f"v_add_u32 v10, {64*q}, v0\nv_mul_u32_u24 v11, 6554, v10\nv_lshrrev_b32 v11, 16, v11\nv_mul_u32_u24 v11, 1120, v11\nv_lshl_add_u32 v{OUTV[q]}, v10, 4, v11")
    a(f"v_cmp_gt_u32 vcc, 32, v0\nv_mov_b32 v10, {OOB}\nv_cndmask_b32 v13, v10, v13, vcc\ns_mul_i32 s10, {WV}, {AREG}")
    for q in range(3): a(f"s_add_u32 m0, s10, {15360+1024*q}\nbuffer_load_dwordx4 v{OUTV[q]}, {SA}, s27 offen lds")
    a(f"s_add_u32 m0, s10, {18432}\ns_mov_b64 exec, 0x3ff\nbuffer_load_dwordx4 v252, {SB}, s29 offen lds\ns_mov_b64 exec, -1")
    a("v_add_u32 v2, s10, v254\nv_add_u32 v3, s10, v255")
off = lambda t: 1024*t if t < 7 else 27648 + 1024*(t-7)
w_pre = ldw(0, 0) + ldw(1, 1024) + ldw(2, 2048) + ldw(3, 3072)

a("L_comp:")
ACC = 72; BUF = [16, 44]; SF = 172
g2_setup()
a("v_and_b32 v13, 31, v0\nv_lshrrev_b32 v14, 5, v0")
a(f"s_lshl_b32 s8, {WV}, 12\nv_lshlrev_b32 v15, 7, v13\nv_add_u32 v15, s8, v15")
a("v_bfe_u32 v7, v0, 1, 3\nv_xor_b32 v7, v7, v14")
for ks in range(4): a(f"v_xor_b32 v1, {2*ks}, v7\nv_lshl_add_u32 v{2+ks}, v1, 4, v15")
a("v_bfe_u32 v1, v0, 2, 2\nv_lshl_add_u32 v1, v14, 3, v1\nv_mul_u32_u24 v1, 384, v1")
a("v_bfe_u32 v7, v0, 4, 1\nv_lshl_add_u32 v1, v7, 5, v1\nv_and_b32 v7, 3, v0\nv_lshl_add_u32 v1, v7, 3, v1\nv_add_u32 v1, 16384, v1")
a("v_bfe_u32 v7, v0, 3, 1\nv_lshlrev_b32 v7, 6, v7\nv_add_u32 v6, v1, v7\nv_sub_u32 v196, v1, v7\nv_mov_b32 v197, v196")
for i in range(5): a(f"v_mov_b32 v{8+i}, v{2+i}")
zero(ACC, 96)
a(f"s_lshl_b32 s11, {WV}, 7\ns_add_u32 s11, s11, {STATL+6144}\nv_lshl_add_u32 v168, v13, 2, s11\nv_mul_u32_u24 v169, 3072, v14\nv_lshl_add_u32 v169, v13, 3, v169\nv_add_u32 v169, {STATL}, v169")
a("v_bfe_u32 v1, v0, 4, 1\nv_mul_u32_u24 v1, 55296, v1\nv_lshl_add_u32 v1, v14, 8, v1\nv_and_b32 v7, 15, v0\nv_lshl_add_u32 v1, v7, 4, v1")
a(f"s_lshl_b32 s8, s9, 3\ns_lshl_b32 s11, {WV}, 1\ns_add_u32 s8, s8, s11\ns_mul_i32 s8, s8, 54\ns_mul_i32 s11, s10, 3\ns_add_u32 s8, s8, s11\ns_lshl_b32 s8, s8, 10\ns_add_u32 s8, s8, {HF}")
a(f"s_lshl_b32 s12, s9, 1\ns_lshr_b32 s11, {WV}, 1\ns_add_u32 s12, s12, s11")
if RS: a(f"s_and_b32 s11, s12, 3\ns_lshl_b32 s11, s11, 6\ns_lshr_b32 s12, s12, 2\ns_add_u32 s12, s12, s11\ns_lshl_b32 s12, s12, 7\ns_add_u32 s12, s12, {MBOX}")
else: a(f"s_and_b32 s11, s12, 7\ns_lshl_b32 s11, s11, 5\ns_lshr_b32 s12, s12, 3\ns_lshl_b32 s12, s12, 1\ns_add_u32 s12, s12, s11\ns_lshl_b32 s12, s12, 7\ns_add_u32 s12, s12, {MBOX}")
a(f"s_and_b32 s11, {WV}, 1\ns_mul_i32 s11, s11, 11\ns_add_u32 s11, s11, s10\ns_lshl_b32 s11, 1, s11")
if RS: a("v_lshlrev_b32 v15, 10, v0\nv_mov_b32 v14, s11")
else: a("v_and_b32 v15, 3, v0\nv_lshlrev_b32 v15, 10, v15\nv_bfe_u32 v7, v0, 2, 1\nv_lshl_add_u32 v15, v7, 7, v15\nv_mov_b32 v14, s11")
a(wc_prep.replace("s25", "s69"))
a("s_mov_b32 s15, 0\ns_mov_b32 s3, 0")
def reads(ks, b):
    r = [f"ds_read_b128 {vr(b,4)}, v{8+ks}"]
    for ft in range(6):
        for s in range(2):
            r.append(f"ds_read_b64_tr_b16 {vr(b+4+4*ft+2*s,2)}, v{197 if ft & 1 else 12} offset:{ks*6144 + s*1536 + ft*64}")
    return r
def step(cur, nks, nb, last, first_wait=True):
    R = reads(nks, nb)
    waits2 = [8, 0, 10, 0, 11, 0]
    waits = [10, 11, 12, 13, 13, 13]; parts = [R[0:3], R[3:6], R[6:9], R[9:11], R[11:13], [last]]
    for ft in range(6):
        if first_wait and (ft % 2 == 0 or not opt("fw", 1)): a(f"s_waitcnt lgkmcnt({(waits2 if opt('fw', 1) else waits)[ft]})")
        a(f"v_mfma_f32_32x32x16_bf16 {vr(ACC+16*ft,16)}, {vr(cur+4+4*ft,4)}, {vr(cur,4)}, {vr(ACC+16*ft,16)}")
        for r in parts[ft]: a(r)
a("s_barrier")
stamp(1)
for r in reads(0, BUF[0]): a(r)
a("L_c_loop:")
step(BUF[0], 1, BUF[1], f"s_add_u32 s15, s15, {STG}\ns_cmp_eq_u32 s15, {NST*STG}\ns_cselect_b32 s15, 0, s15\nv_add_u32 v8, s15, v2")
step(BUF[1], 2, BUF[0], "v_add_u32 v9, s15, v3\nv_add_u32 v10, s15, v4")
step(BUF[0], 3, BUF[1], "v_add_u32 v12, s15, v6\nv_add_u32 v197, s15, v196\ns_waitcnt lgkmcnt(0)\ns_barrier")
step(BUF[1], 0, BUF[0], "v_add_u32 v11, s15, v5\ns_add_u32 s3, s3, 1\ns_cmp_lt_u32 s3, 10\ns_cbranch_scc1 L_c_loop", first_wait=False)
stamp(2)
a(f"s_setprio {opt('eprio', 3)}\nds_read_b32 v170, v168")
for ft in range(6):
    for p in range(2): a(f"ds_read_b64 {vr(SF+4*ft+2*p,2)}, v169 offset:{1536*p+256*ft}")
a("s_waitcnt lgkmcnt(12)")
a("v_xor_b32 v17, 0x8000, v170\nv_and_b32 v19, 0xffff, v17\nv_lshl_or_b32 v16, v19, 16, v19\nv_mov_b32 v18, v16")
a("v_cmp_gt_u32 vcc, 32, v0\nv_cndmask_b32 v17, v19, v17, vcc")
a("v_and_b32 v10, 0xffff0000, v170\nv_rcp_f32 v7, v10\nv_mov_b32 v11, v10\ns_waitcnt lgkmcnt(0)")
for ft in range(6):
    a(f"v_mfma_f32_32x32x16_bf16 {vr(ACC+16*ft,16)}, {vr(SF+4*ft,4)}, v[16:19], {vr(ACC+16*ft,16)}")
    if ft == 0:
        k1c = -2.0 * math.log2(math.e) * math.sqrt(2.0/math.pi); k2c = k1c * 0.044715
        a(f"v_mul_f32 v8, {f32(k1c)}, v7\nv_mul_f32 v12, v7, v7\nv_mul_f32 v12, v12, v7\nv_mul_f32 v12, {f32(k2c)}, v12\nv_mov_b32 v9, v8\nv_mov_b32 v13, v12")
def stA(h):
    A0 = ACC + 8*h; T = 16 + 8*(h % 3)
    return ([f"v_pk_mul_f32 {vr(T+2*p,2)}, {vr(A0+2*p,2)}, {vr(A0+2*p,2)}" for p in range(4)] +
            [f"v_pk_fma_f32 {vr(T+2*p,2)}, {vr(T+2*p,2)}, v[12:13], v[8:9]" for p in range(4)] +
            [f"v_pk_mul_f32 {vr(T+2*p,2)}, {vr(T+2*p,2)}, {vr(A0+2*p,2)}" for p in range(4)])
def stE(h):
    T = 16 + 8*(h % 3); return [f"v_exp_f32 v{T+e}, v{T+e}" for e in range(8)]
def stB(h):
    T = 16 + 8*(h % 3); return [f"v_pk_fma_f32 {vr(T+2*p,2)}, {vr(T+2*p,2)}, v[10:11], v[10:11]" for p in range(4)]
def stR(h):
    T = 16 + 8*(h % 3); return [f"v_rcp_f32 v{T+e}, v{T+e}" for e in range(8)]
def stC(h):
    A0 = ACC + 8*h; T = 16 + 8*(h % 3); pk = 48 + 4*(h % 4)
    return ([f"v_pk_mul_f32 {vr(T+2*p,2)}, {vr(T+2*p,2)}, {vr(A0+2*p,2)}" for p in range(4)] +
            [f"v_cvt_pk_bf16_f32 v{pk+p}, v{T+2*p}, v{T+2*p+1}" for p in range(4)] +
            [f"buffer_store_dwordx4 {vr(pk,4)}, v1, {WS}, s8 offen offset:{(h//2 % 3)*1024 + (h%2)*512} sc1"])
def mix(tr, nt):
    i = 0
    for k, x in enumerate(tr):
        a(x)
        n = (len(nt) * (k+1)) // len(tr)
        while i < n: a(nt[i]); i += 1
for x in stA(0): a(x)
for h in range(12):
    mix(stE(h), (stC(h-1) if h else []))
    if h == 6: a("s_add_u32 s8, s8, 27648")
    if h == opt("eflag", 10): a(f"s_waitcnt vmcnt({h-6})\ns_mov_b64 exec, 0xff\nbuffer_atomic_or v14, v15, {WS}, s12 offen sc1\ns_mov_b64 exec, -1\n" + sld(68, 69))
    for x in stB(h): a(x)
    if h == 11: a(sld(14, S_MB))
    mix(stR(h), (stA(h+1) if h < 11 else []))
for x in stC(11): a(x)
stamp(4)
def acc_init(z=True):
    for dt in range(5): a(f"ds_read_b64 {vr(224+2*dt,2)}, v2 offset:{15360+32*dt}\nds_read_b64 {vr(234+2*dt,2)}, v3 offset:{18432+32*dt}")
    a("s_waitcnt lgkmcnt(0)")
    for dt in range(5):
        for h in range(2):
            a(f"v_lshlrev_b32 v{AC2+4*dt+2*h}, 16, v{224+2*dt+h}\nv_and_b32 v{AC2+4*dt+2*h+1}, 0xffff0000, v{224+2*dt+h}")
            a(f"v_lshlrev_b32 v10, 16, v{234+2*dt+h}\nv_and_b32 v11, 0xffff0000, v{234+2*dt+h}\nv_add_f32 v{AC2+4*dt+2*h}, v{AC2+4*dt+2*h}, v10\nv_add_f32 v{AC2+4*dt+2*h+1}, v{AC2+4*dt+2*h+1}, v11")
a(f"v_mov_b32 v2, {CNT+8}\nv_mov_b32 v3, 1\nds_write_b32 v2, v3")
xb_loads()
a("s_mov_b32 s35, 0\ns_mov_b32 s101, 0\ns_waitcnt lgkmcnt(0)")
a("s_cmp_eq_u32 s68, 0\ns_cbranch_scc1 L_c_slow")
for l in ldw(0, 0): a(l)
a("s_and_b32 s13, s14, s28\ns_cmp_eq_u32 s13, s28\ns_cbranch_scc0 L_c_mid")
for l in ldh(0, 0): a(l)
a(f"s_waitcnt vmcnt(13)\ns_mov_b64 exec, 0xff\nbuffer_atomic_or v14, v15, {WS}, s12 offen offset:64 sc1\ns_mov_b64 exec, -1")
for l in ldw(1, 1024) + ldw(2, 2048) + ldw(3, 3072) + ldh(1, 1024) + ldh(2, 2048): a(l)
a("s_mov_b32 s101, 1\ns_waitcnt vmcnt(33)\ns_branch L_c_acc")
a("L_c_mid:")
a(f"s_waitcnt vmcnt(9)\ns_mov_b64 exec, 0xff\nbuffer_atomic_or v14, v15, {WS}, s12 offen offset:64 sc1\ns_mov_b64 exec, -1")
for l in ldw(1, 1024) + ldw(2, 2048) + ldw(3, 3072): a(l)
a("s_waitcnt vmcnt(21)\ns_branch L_c_acc")
a("L_c_slow:")
a(f"s_waitcnt vmcnt(0)\ns_mov_b64 exec, 0xff\nbuffer_atomic_or v14, v15, {WS}, s12 offen offset:64 sc1\ns_mov_b64 exec, -1")
a("L_c_acc:")
a("s_setprio 0")
stamp(5)
acc_init(False)
a("s_cmp_lg_u32 s68, 0\ns_cbranch_scc1 L_g2go")
a("s_branch L_g2w")

a("L_g2:")
g2_setup()
a("s_mov_b32 s101, 0")
xb_loads()
a("s_waitcnt vmcnt(0)")
acc_init()
a("L_g2w:")
if opt("p1only", 0): endp()
a(wc_prep.replace("s25", "s8"))
if not opt("g2only", 0): spoll(sld(9, 8), "s_cmp_lg_u32 s9, 0", sleep=16)
PK = (8, 10, 12)
a(f"s_cmp_eq_u32 s35, 0\ns_cbranch_scc1 L_g_nopark\ns_mul_i32 s10, {WV}, {AREG}")
for p in range(3):
    for i in range(5): a(f"s_add_u32 m0, s10, {5120*p+1024*i}\ns_add_u32 s13, s{22+i}, {off(PK[p])}\nbuffer_load_dwordx4 v252, {WS}, s13 offen{G2F} lds")
    if opt("thr", 0): a(f"s_waitcnt vmcnt({opt('thr', 0)})")
a("L_g_nopark:")
for n_, l in enumerate(w_pre):
    a(l)
    if opt("thr", 0) and n_ % 5 == 4 and n_ < 19: a(f"s_waitcnt vmcnt({opt('thr', 0)})")
if opt("touch2", 0):
    nt2 = 6 if RS else 3
    a("s_cmp_eq_u32 s35, 0\ns_cbranch_scc1 L_g2go")
    a(f"s_lshl_b32 s8, s{S_XC}, 2\ns_add_u32 s8, s8, s{S_J}\ns_sub_u32 s8, s8, 20\ns_lshl_b32 s8, s8, 2\ns_add_u32 s8, s8, {WV}\ns_cmp_ge_u32 s8, 48\ns_cbranch_scc1 L_g2go")
    if RS: a(f"s_and_b32 s9, s2, 7\ns_mul_i32 s9, s9, 6\ns_add_u32 s8, s8, s9\ns_cmp_ge_u32 s8, 48\ns_cselect_b32 s9, 48, 0\ns_sub_u32 s8, s8, s9\ns_mul_i32 s8, s8, 46080\ns_add_u32 s8, s8, {W2F}")
    else: a(f"s_mul_i32 s9, s{S_XR}, 12\ns_add_u32 s8, s8, s9\ns_cmp_ge_u32 s8, 48\ns_cselect_b32 s9, 48, 0\ns_sub_u32 s8, s8, s9\ns_mul_i32 s8, s8, 23040\ns_mul_i32 s9, s{S_XC}, 1105920\ns_add_u32 s8, s8, s9\ns_add_u32 s8, s8, {W2F}")
    a("v_lshlrev_b32 v4, 7, v0\ns_mov_b32 exec_hi, 0xfffffff")
    for i in range(nt2): a(f"buffer_load_dword v244, v4, {WS}, s8 offen sc1\ns_add_u32 s8, s8, 7680")
    a("s_mov_b32 exec_hi, -1")
a("L_g2go:")
if opt("p1only", 0): endp()
hm_issue = sld(14, S_MB)
a("s_cmp_lg_u32 s101, 0\ns_cbranch_scc1 L_g_nohm")
a(hm_issue)
a("L_g_nohm:")
a(f"s_mul_i32 s10, {WV}, {AREG}\nv_add_u32 v1, s10, v252")
for i in range(1, 4):
    a(f"s_sub_u32 s13, {WV}, {i}\ns_and_b32 s13, s13, 3\ns_mul_i32 s13, s13, {AREG}\ns_add_u32 s13, s13, {5120*(i-1)}\nv_add_u32 v{1+i}, s13, v252")
a("v_lshrrev_b32 v10, 2, v0\nv_lshlrev_b32 v10, 7, v10\nv_bfe_u32 v15, v0, 1, 1\nv_lshl_add_u32 v10, v15, 6, v10\nv_and_b32 v15, 1, v0\nv_lshl_add_u32 v10, v15, 3, v10")
a(f"s_lshl_b32 s13, {WV}, 4\ns_add_u32 s13, s13, {YAT}\nv_add_u32 v5, s13, v10")
a(f"s_mul_i32 s13, {WV}, 2560\ns_add_u32 s13, s13, {BREG0}\nv_add_u32 v6, s13, v254\nv_add_u32 v7, s13, v252")
a(f"v_mov_b32 v14, {CNT}")
srd(S_A, P['out'], 2621440)
a("s_cmp_lg_u32 s101, 0\ns_cbranch_scc1 L_g_fast")
if not opt("g2only", 0): spoll(hm_issue, "s_and_b32 s13, s14, s28\ns_cmp_eq_u32 s13, s28", sleep=opt('msleep', 4), issued=True, far=('s_and_b32 s13, s14, 0x3fffff', opt('mfar', 28)))
else: a("s_waitcnt vmcnt(0)")
stamp(6)
for l in ldh(0, 0) + ldh(1, 1024) + ldh(2, 2048): a(l)
a("s_waitcnt vmcnt(8)")
a("L_g_fast:")
a(f"s_add_u32 s15, s{S_MB}, 64")
nld = lambda t: 0 if t > 13 else (4 if (t < 4 or t in PK) else 9)
cur = 0
for t in range(14):
    k = t % 4; nt_ = t + 3; nk = nt_ % 4
    L = []
    if t == 2: a(sld(14, 15))
    if t == 4 and not opt("g2only", 0):
        spoll(sld(14, 15), "s_and_b32 s13, s14, s28\ns_cmp_eq_u32 s13, s28", sleep=2, issued=True)
        stamp(3)
    if nt_ == PK[0]:
        a("s_cmp_lg_u32 s35, 0\ns_cbranch_scc1 L_g_pok\ns_mov_b32 s3, 0")
        a("L_g_pw:")
        a("s_add_u32 s3, s3, 1\ns_cmp_gt_u32 s3, 2000000\ns_cbranch_scc1 L_exit")
        a("ds_read_b32 v10, v14\ns_waitcnt lgkmcnt(0)\nv_readfirstlane_b32 s13, v10\ns_cmp_eq_u32 s13, 0\ns_cbranch_scc1 L_g_pw")
        a("L_g_pok:")
    if nt_ <= 13:
        if off(nt_) - cur > 3072:
            a("\n".join(f"s_add_u32 s{18+i}, s{18+i}, {off(nt_)-cur}" for i in range(9))); cur = off(nt_)
        o = off(nt_) - cur; vv = 253 if nt_ in (6, 13) else 252
        L = ldh(nk, o, vv)
        if nt_ in PK: L += [f"ds_read_b128 {vr(G2W[nk]+4*i,4)}, v1 offset:{5120*PK.index(nt_)+1024*i}" for i in range(5)]
        elif nt_ > 3: L += ldw(nk, o, vv)
    a(f"s_waitcnt vmcnt({24 if t == 0 else nld(t+1)+nld(t+2)})" + (" lgkmcnt(0)" if t in PK else ""))
    if t == 0: stamp(7)
    n = 0; other = []
    if t in (6, 13): a(f"s_cmp_eq_u32 {WV}, 0\ns_cbranch_scc1 L_g_skip{t}")
    for i in ((1, 2, 3, 0) if t == 13 else range(4)):
        for dt in range(5):
            acc = AC2 + 4*(5*i+dt)
            a(f"v_mfma_f32_16x16x32_bf16 {vr(acc,4)}, {vr(G2W[k]+4*dt,4)}, {vr(G2H[k]+4*i,4)}, " + ("0" if t == 0 and i else vr(acc,4)))
            if n < len(L): a(L[n]); other.append(L[n])
            if t == 13:
                pi = {2: 1, 3: 2, 0: 3}.get(i)
                if pi:
                    w_ = f"ds_write_b128 v1, {vr(AC2+4*(5*pi+dt),4)} offset:{5120*(pi-1)+1024*dt}"; a(w_); other.append(w_)
            n += 1
    if t in (6, 13):
        a(f"s_branch L_g_join{t}")
        a(f"L_g_skip{t}:")
        a("s_nop 7")
        for x in other: a(x)
        a(f"L_g_join{t}:")
stamp(8)
a("s_waitcnt lgkmcnt(0)\ns_barrier")
stamp(9)
R_ = 144
for q in range(10): a(f"ds_read_b128 {vr(R_+4*q,4)}, v{2+q//5} offset:{1024*(q%5)}")
for dt in range(5): a(f"ds_read_b64_tr_b16 {vr(16+2*dt,2)}, v5 offset:{2048*dt}")
for q in range(10):
    a(f"s_waitcnt lgkmcnt({14 if q < 5 else 19-q})")
    dt = q % 5
    for h in range(2): a(f"v_pk_add_f32 {vr(AC2+4*dt+2*h,2)}, {vr(AC2+4*dt+2*h,2)}, {vr(R_+4*q+2*h,2)}")
    if q < 5: a(f"ds_read_b128 {vr(R_+40+4*q,4)}, v4 offset:{1024*q}")
for dt in range(5):
    a(f"s_waitcnt lgkmcnt({9-dt})")
    for h in range(2):
        a(f"v_lshlrev_b32 v10, 16, v{16+2*dt+h}\nv_and_b32 v11, 0xffff0000, v{16+2*dt+h}\nv_pk_add_f32 {vr(AC2+4*dt+2*h,2)}, {vr(AC2+4*dt+2*h,2)}, v[10:11]")
a("s_waitcnt lgkmcnt(0)")
for dt in range(5):
    for h in range(2): a(f"v_pk_add_f32 {vr(AC2+4*dt+2*h,2)}, {vr(AC2+4*dt+2*h,2)}, {vr(R_+40+4*dt+2*h,2)}")
    for h in range(2): a(f"v_cvt_pk_bf16_f32 v{32+2*dt+h}, v{AC2+4*dt+2*h}, v{AC2+4*dt+2*h+1}")
    a(f"ds_write_b64 v6, {vr(32+2*dt,2)} offset:{32*dt}")
for q in range(3): a(f"ds_read_b128 {vr(48+4*q,4)}, v7 offset:{1024*q}")
for q in range(3):
    a(f"s_waitcnt lgkmcnt({2-q})\nbuffer_store_dwordx4 {vr(48+4*q,4)}, v{OUTV[q]}, {SA}, s27 offen")
stamp(10)
endp()

a("L_park:")
if opt("p1only", 0): endp()
a(tile_rc(12, 9, 10))
for i in range(1, 5): a(f"v_add_u32 v{1+i}, {55296*i}, v1")
a(f"s_mul_i32 s12, s9, {5*55296}\ns_add_u32 s12, s12, {W2F}\ns_mov_b32 s10, 0\ns_mov_b32 s3, 0")
spoll(wc_issue, wc_test, sleep=10)
if not opt("epark", 15):
    a(f"v_mov_b32 v10, {CNT+8}\ns_mov_b32 s11, 0")
    a("L_pk_w:")
    a("s_add_u32 s11, s11, 1\ns_cmp_gt_u32 s11, 200000\ns_cbranch_scc1 L_exit\ns_sleep 2")
    a("ds_read_b32 v11, v10\ns_waitcnt lgkmcnt(0)\nv_readfirstlane_b32 s13, v11\ns_cmp_eq_u32 s13, 0\ns_cbranch_scc1 L_pk_w")
stamp(11)
a("L_pk_loop:")
for p in range(3):
    a(f"s_add_u32 s13, s12, {off(PK[p])}")
    for i in range(5): a(f"s_add_u32 m0, s10, {5120*p+1024*i}\nbuffer_load_dwordx4 v{1+i}, {WS}, s13 offen{G2F} lds")
    if opt("epark", 15): a(f"s_waitcnt vmcnt({opt('epark', 15)})")
a(f"s_cmp_eq_u32 s3, 0\ns_cselect_b32 s13, 6, 7\ns_lshl_b32 s13, s13, 10\ns_add_u32 s12, s12, s13\ns_add_u32 s10, s10, {AREG}\ns_add_u32 s3, s3, 1\ns_cmp_lt_u32 s3, 4\ns_cbranch_scc1 L_pk_loop")
a(f"v_mov_b32 v2, {CNT}\nv_mov_b32 v3, 1\ns_waitcnt vmcnt(0)\nds_write_b32 v2, v3\ns_waitcnt lgkmcnt(0)")
stamp(12)
endp()

a("L_fetch:")
if opt("p1only", 0): endp()
a(tile_rc(8, 9, 10))
a("s_mul_i32 s11, s8, 81920")
a(f"v_mov_b32 v1, 0\ns_lshl_b32 s13, s9, 2\ns_add_u32 s13, s13, s{S_XR}\ns_lshl_b32 s13, s13, 7\ns_add_u32 s13, s13, {YAC}")
spoll(sld(12, 13), "s_cmp_ge_u32 s12, 80", sleep=opt('ysleep', 8), far=('s_cmp_ge_u32 s12, 24', opt('yfar', 32)))
stamp(11)
a(f"s_mul_i32 s10, s9, 10240\ns_add_u32 s11, s11, s10\ns_add_u32 s11, s11, {YA}\nv_lshlrev_b32 v1, 4, v0")
for q in range(10):
    a(f"buffer_load_dwordx4 {vr(16+4*q,4)}, v1, {WS}, s11 offen sc1\ns_add_u32 s11, s11, 1024")
a(f"v_add_u32 v1, {YAT}, v1")
for q in range(10):
    a(f"s_waitcnt vmcnt({9-q})\nds_write_b128 v1, {vr(16+4*q,4)} offset:{1024*q}")
a("s_waitcnt lgkmcnt(0)")
stamp(12)
a("s_barrier")
endp()

c_issue = sld(33, 100)
c_test = "s_cmp_ge_u32 s33, 64"
clr_s = f"s_load_dwordx4 s[28:31], s[{P['dbg']}:{P['dbg']+1}], 0"
a("L_aux:")
a(f"s_sub_u32 s8, s{S_J}, s8\ns_and_b32 s15, {WV}, 3\ns_mov_b32 s35, 0\nv_mov_b32 v230, 0\ns_mov_b32 s71, 0\ns_mul_i32 s69, {WV}, {AREG}")
a(f"s_lshl_b32 s9, s{S_XR}, 4\ns_lshl_b32 s10, s{S_XC}, 3\ns_add_u32 s9, s9, s10\ns_add_u32 s9, s9, s8")
RAW, DV = 164, 64
a("v_and_b32 v238, 3, v0\nv_lshlrev_b32 v238, 2, v238")
a(f"s_cmp_ge_u32 s8, 8\ns_cbranch_scc1 L_nolnwg\ns_cmp_lt_u32 {WV}, 4\ns_cbranch_scc1 L_lnw")
a(f"s_lshl_b32 s{S_CH}, s9, 2\ns_add_u32 s{S_CH}, s{S_CH}, s15\ns_branch L_par")
a("L_nolnwg:")
a(f"s_mul_i32 s10, s{S_XR}, 12\ns_lshl_b32 s11, s{S_XC}, 2\ns_add_u32 s10, s10, s11\ns_add_u32 s10, s10, s8\ns_lshl_b32 s10, s10, 3\ns_add_u32 s10, s10, {WV}\ns_add_u32 s{S_CH}, s10, 192")
a(f"s_lshl_b32 s10, s{S_XC}, 4\ns_add_u32 s10, s10, s8\ns_cmp_lg_u32 s10, 8\ns_cbranch_scc1 L_par")
a(f"s_lshl_b32 s10, s{S_XR}, 15\ns_lshl_b32 s11, {WV}, 12\ns_add_u32 s10, s10, s11\ns_add_u32 s10, s10, {CLR}\nv_lshlrev_b32 v1, 4, v0\ns_mov_b32 s35, 5")
zero(4, 4)
for i in range(4): a(f"buffer_store_dwordx4 v[4:7], v1, {WS}, s10 offen offset:{1024*i} sc1")
a("L_par:")
a(f"s_lshl_b32 s10, s{S_CH}, 8\nv_lshl_add_u32 v1, v0, 2, s10")
for i, nm in enumerate(["are", "aim", "bre", "bim", "cre", "cim"]):
    a(f"global_load_dword v{240+i}, v1, s[{P[nm]}:{P[nm]+1}]{NT1}")
a(f"s_lshl_b32 s10, s{S_CH}, 1\nv_mov_b32 v1, s10\nglobal_load_ushort v246, v1, s[{P['ldt']}:{P['ldt']+1}]")
a(f"global_load_ushort v147, v1, s[{P['dsk']}:{P['dsk']+1}]")
a("s_cmp_lt_u32 s8, 8\ns_cbranch_scc1 L_wrole\ns_cmp_lg_u32 s35, 5\ns_cbranch_scc1 L_cs")
a(f"s_waitcnt vmcnt(8)\ns_barrier\ns_cmp_lg_u32 {WV}, 0\ns_cbranch_scc1 L_cs")
a(f"s_lshl_b32 s10, s{S_XR}, 2\nv_mov_b32 v2, 1\nv_mov_b32 v4, 0\ns_mov_b64 exec, 1\nbuffer_store_dword v2, v4, {DBG}, s10 offen sc1\ns_mov_b64 exec, -1\ns_waitcnt vmcnt(1)")
stamp(1)
a("L_cs:")
a(f"s_mov_b32 s35, 0\ns_sub_u32 s9, s8, 8\ns_lshl_b32 s10, s{S_XR}, 2\ns_lshl_b32 s10, s10, s{S_XC}\ns_add_u32 s9, s9, s10")
a(f"s_cmp_eq_u32 s{S_XC}, 0\ns_cselect_b32 s10, 8, 3\ns_movk_i32 s11, 120\ns_mul_i32 s9, s9, s10\ns_add_u32 s9, s9, {WV}\ns_cmp_ge_u32 {WV}, s10\ns_cbranch_scc1 L_kgen\ns_cmp_ge_u32 s9, s11\ns_cbranch_scc1 L_kgen")
a(f"s_and_b32 s15, s9, 3\ns_lshr_b32 s9, s9, 2\ns_mul_i32 s10, s{S_XC}, 30\ns_add_u32 s9, s9, s10")
a("s_mul_i32 s12, s15, 552960\ns_lshl_b32 s11, s9, 6\ns_add_u32 s71, s12, s11")
a(f"v_and_b32 v4, 31, v0\nv_lshlrev_b32 v4, 1, v4\nv_add_u32 v4, s11, v4\nglobal_load_ushort v145, v4, s[{P['b1']}:{P['b1']+1}]")
a("v_lshrrev_b32 v2, 2, v0\nv_and_b32 v3, 3, v0\nv_mul_u32_u24 v1, 3456, v2\nv_lshl_add_u32 v230, v3, 4, v1\ns_mov_b32 s35, 2\ns_branch L_kgen")
a("L_wrole:")
W2R = lambda i: (RAW + 4*i) if i < 10 else (148 + 4*(i-10))
a("s_barrier")
srd(S_B, P['w2'], 2211840)
a("v_lshrrev_b32 v8, 3, v0\nv_mul_u32_u24 v8, 1280, v8\nv_and_b32 v9, 7, v0\nv_lshl_add_u32 v8, v9, 4, v8\ns_lshl_b32 s8, s9, 2\ns_add_u32 s8, s8, s15")
for u_ in range(3):
    a(f"s_add_u32 s10, s8, {256*u_}\ns_mul_i32 s11, s10, 6554\ns_lshr_b32 s11, s11, 16\ns_mul_i32 s70, s11, 10\ns_sub_u32 s70, s10, s70")
    a(f"s_mul_i32 s13, s11, 40960\ns_lshl_b32 s71, s70, 7\ns_add_u32 s13, s13, s71\ns_mul_i32 s71, s70, 216\ns_mul_i32 s70, s11, 43\ns_lshr_b32 s70, s70, 8\ns_mul_i32 s70, s70, 3\ns_sub_u32 s11, s11, s70\ns_sub_u32 s70, s11, s70\ns_cmp_ge_u32 s70, 3\ns_cselect_b32 s70, 24, 0\ns_add_u32 s11, s11, s70\ns_add_u32 s71, s71, s11\ns_lshl_b32 s71, s71, 10\ns_add_u32 s{96+u_}, s71, {W2F}")
    if u_ == 2: a(f"s_cmp_lt_u32 s10, 540\ns_cselect_b32 s13, s13, {OOB}\ns_cselect_b32 s98, s98, {OOB}")
    for q in range(4): a(f"buffer_load_dwordx4 {vr(W2R(4*u_+q),4)}, v8, {SB}, s13 offen{NT1}\ns_add_u32 s13, s13, 10240")
a("s_mov_b32 s35, 1")
a("L_kgen:")
a("s_mov_b32 s68, 0\ns_mov_b32 m0, s69")
a(lnc_addr)
a(f"s_mov_b32 s101, 0\nv_mov_b32 v146, 0\nv_mov_b32 v253, 0\ns_cmp_lt_u32 {WV}, 4\ns_cbranch_scc1 L_kg_nocs")
conv_setup()
a("L_kg_nocs:")
a("v_and_b32 v2, 31, v0\nv_mul_u32_u24 v2, 272, v2\nv_lshrrev_b32 v3, 5, v0\nv_lshl_add_u32 v2, v3, 4, v2\nv_add_u32 v228, s69, v2")
KA = 208
zero(KA, 16)
a("s_mov_b32 s3, 0\ns_cmp_eq_u32 s35, 1\ns_cbranch_scc1 L_kw12\ns_waitcnt vmcnt(1)")
a("L_kw12:")
a("s_waitcnt vmcnt(12)")
stamp(3)
a(f"v_lshlrev_b32 v3, 16, v246\nv_mul_f32 v3, {f32(math.log2(math.e))}, v3\nv_exp_f32 v3, v3\nv_cvt_pk_bf16_f32 v3, v3, v3\nv_lshlrev_b32 v229, 16, v3")
a("s_cmp_eq_u32 s35, 1\ns_cbranch_scc1 L_w2mid")
a("L_kg_loop:")
for i in range(6): a(f"v_and_b32 v{4+i}, 0xffff0000, v{240+i}\nv_lshlrev_b32 v{240+i}, 16, v{240+i}")
for i in range(4): a(f"v_mul_f32 v{4+i}, v229, v{4+i}")
a(f"v_mul_f32 v4, {f32(math.log2(math.e))}, v4\nv_mul_f32 v5, {f32(1/(2*math.pi))}, v5")
Z1, Z8, Z256, W = 10, 12, 14, 16
for k, z in ((1, Z1), (8, Z8), (256, Z256)):
    a(f"v_mul_f32 v20, {f32(k)}, v4\nv_mul_f32 v21, {f32(k)}, v5\nv_fract_f32 v21, v21\nv_exp_f32 v20, v20\nv_cos_f32 v{z}, v21\nv_sin_f32 v{z+1}, v21")
    neg = " neg_hi:[0,1]" if k == 8 else ""
    a(f"v_pk_mul_f32 {vr(z,2)}, {vr(z,2)}, v[20:21] op_sel:[0,0] op_sel_hi:[1,0]{neg}")
cmul(W, 8, 6, 20)
rowof = {}
h0 = [[0,1,2,3],[4,5,6,7],[1024,1032,1280,1288],[1536,1544,1792,1800]]
h1 = [[256,258,260,262],[264],[512,516,520],[768,772,776]]
for q in range(4):
    for i, v in enumerate(h0[q]): rowof[v] = 8*q + i
    for i, v in enumerate(h1[q]): rowof[v] = 8*q + 4 + i
cv = [0]
def put(src, row):
    t = 24 + (cv[0] % 4); cv[0] += 1
    a(f"v_cvt_pk_bf16_f32 v{t}, v{src}, v{src+1}\nds_write_addtid_b32 v{t} offset:{row*272}")
G = {0: W}
opsG = [lambda: put(W, rowof[0])]
for b in range(1, 9):
    G[b] = 32 + 2*b
    opsG.append(lambda b=b: (cmul(G[b], G[b-1], Z1, 20), put(G[b], rowof[b]) if b < 8 else None))
Pq = {1: Z256}
for q in range(1, 8):
    if q > 1:
        Pq[q] = 52 + 2*(q & 1)
        opsG.append(lambda q=q: cmul(Pq[q], Pq[q-1], Z256, 20))
    ds = {1: (0,2,4,6,8), 2: (0,4,8), 3: (0,4,8)}.get(q, (0, 8))
    for n, d in enumerate(ds):
        opsG.append(lambda q=q, d=d, n=n: (cmul(56+2*(n&1), G[d], Pq[q], 20), put(56+2*(n&1), rowof[256*q+d])))
opsE = [lambda: a(f"v_mov_b32 v28, 0x3f80\nds_write_addtid_b32 v28 offset:{32*272}"), lambda: put(Z8, 33)]
for j in range(2, 32):
    src = Z8 if j == 2 else 60 + 2*((j-1) & 1)
    dst = 60 + 2*(j & 1)
    opsE.append(lambda src=src, dst=dst, j=j: (cmul(dst, src, Z8, 22), put(dst, 32+j)))
for i in range(max(len(opsG), len(opsE))):
    if i < len(opsE): opsE[i]()
    if i < len(opsG): opsG[i]()
    if i < 10:
        a(f"s_cmp_lg_u32 s35, 2\ns_cbranch_scc1 L_kg_nl{i}\nbuffer_load_dwordx4 {vr(RAW+4*i,4)}, v230, {SB}, s71 offen{NT}\ns_add_u32 s71, s71, 55296")
        a(f"L_kg_nl{i}:")
    if i == 12 and opt("eu", 1):
        a(f"s_lshl_b32 s10, s3, 2\ns_and_b32 s10, s10, {WV}\ns_cbranch_scc1 L_eu0")
        a("L_kg_ne1:")
    if i == 31 and opt("eu", 1):
        a("s_cmp_eq_u32 s68, 1\ns_cbranch_scc1 L_eu")
        a("L_kg_ne2:")
    if i == opt("wsig", 14):
        a("s_cmp_eq_u32 s35, 6\ns_cbranch_scc1 L_w2sig")
        a("L_kg_nsig:")
a("s_waitcnt lgkmcnt(0)")
for k in range(8):
    a(f"ds_read_b128 {vr(64+8*k,4)}, v228 offset:{32*k}\nds_read_b128 {vr(68+8*k,4)}, v228 offset:{32*272+32*k}")
for k in range(8):
    a(f"s_waitcnt lgkmcnt({14-2*k})")
    a(f"v_mfma_f32_32x32x16_bf16 {vr(KA,16)}, {vr(64+8*k,4)}, {vr(68+8*k,4)}, {vr(KA,16)}")
a("s_cmp_lg_u32 s3, 0\ns_cbranch_scc1 L_kg_done")
a(clr_s)
a("s_mov_b32 s3, 1\ns_cmp_lg_u32 s35, 2\ns_cbranch_scc1 L_kg_loop\ns_branch L_csum")
a("L_eu0:")
a("s_waitcnt lgkmcnt(0)\ns_and_b32 s10, s28, s29\ns_and_b32 s11, s30, s31\ns_and_b32 s10, s10, s11\ns_cselect_b32 s35, 4, s35\ns_cmp_lt_u32 s35, 4\ns_cbranch_scc1 L_kg_ne1")
a(c_issue)
a("s_mov_b32 s68, 1\ns_branch L_kg_ne1")
a("L_eu:")
a("s_mov_b32 s68, 0\ns_waitcnt lgkmcnt(0)")
a(c_test)
a("s_cbranch_scc0 L_kg_ne2")
uloads()
a("s_mov_b32 s68, 2\ns_branch L_kg_ne2")
def need_clr(tag):
    a(f"s_waitcnt lgkmcnt(0)\ns_and_b32 s28, s28, s29\ns_and_b32 s30, s30, s31\ns_and_b32 s28, s28, s30\ns_cbranch_scc1 L_clr_{tag}")
    poll(clr_issue(239, 238), clr_test(239), sleep=8, issued=False)
    a(f"L_clr_{tag}:")
def touch():
    if not opt("touch", 0): return
    n = 270 if RS else 135
    a(f"s_and_b32 s10, s8, 7\ns_lshl_b32 s10, s10, 3\ns_add_u32 s10, s10, {WV}")
    if RS: a(f"s_and_b32 s11, s2, 7\ns_lshl_b32 s11, s11, 3\ns_add_u32 s10, s10, s11\ns_and_b32 s10, s10, 63\ns_mul_i32 s10, s10, {n*128}")
    else: a(f"s_lshl_b32 s11, s{S_XR}, 4\ns_add_u32 s10, s10, s11\ns_and_b32 s10, s10, 63\ns_mul_i32 s10, s10, {n*128}\ns_mul_i32 s11, s{S_XC}, 1105920\ns_add_u32 s10, s10, s11")
    a(f"s_add_u32 s10, s10, {W2F}\nv_lshlrev_b32 v4, 7, v0")
    for i in range(n // 64): a(f"buffer_load_dword v144, v4, {WS}, s10 offen sc1\ns_add_u32 s10, s10, 8192")
    a(few((1 << (n % 64)) - 1, f"buffer_load_dword v144, v4, {WS}, s10 offen sc1"))
def lds_wait(tag, target):
    a("s_mov_b32 s12, 0")
    a(f"L_sb{tag}:")
    a("s_add_u32 s12, s12, 1\ns_cmp_gt_u32 s12, 2000000\ns_cbranch_scc1 L_exit")
    a(f"ds_read_b32 v15, v14\ns_waitcnt lgkmcnt(0)\nv_readfirstlane_b32 s11, v15\ns_cmp_lt_u32 s11, {target}\ns_cbranch_scc1 L_sb{tag}")
a("L_lnw:")
a("s_lshl_b32 s10, s9, 5\ns_lshl_b32 s11, s15, 3\ns_add_u32 s14, s10, s11\ns_mul_i32 s11, s14, 1280")
a("v_lshrrev_b32 v2, 4, v0\nv_and_b32 v3, 15, v0\nv_mul_u32_u24 v1, 2560, v2\nv_lshl_add_u32 v1, v3, 4, v1")
for sg in range(2):
    for i in range(5):
        a(f"buffer_load_dwordx4 {vr(RAW+20*sg+4*i,4)}, v1, {SA}, s11 offen offset:{sg*1280+i*256}{NT}")
a(f"v_mov_b32 v4, {CNT}\nv_mov_b32 v6, 0\nv_mov_b32 v7, 0\nds_write_b64 v4, v[6:7]\ns_waitcnt lgkmcnt(0)\ns_barrier")
a("s_lshl_b32 s11, s15, 4\nv_lshlrev_b32 v8, 2, v2\nv_add_u32 v8, s11, v8")
for i in range(5):
    a(f"v_add_u32 v4, {16*i}, v3\nv_mul_u32_u24 v5, 3277, v4\nv_lshrrev_b32 v5, 16, v5\nv_mul_u32_u24 v5, {BREG-20*528}, v5\nv_mul_u32_u24 v4, 528, v4\nv_add3_u32 v{150+i}, v4, v5, v8")
a(f"s_setprio 2\nv_mov_b32 v14, {CNT}\nv_lshrrev_b32 v2, 4, v0\ns_mov_b32 s12, 0x3f803f80")
zero(4, 4)
a("s_waitcnt vmcnt(0)")
stamp(1)
for sg in range(2):
    for k in range(20):
        a(f"v_dot2_f32_bf16 v{4+2*sg+(k&1)}, v{RAW+20*sg+k}, s12, v{4+2*sg+(k&1)}")
a("v_add_f32 v4, v4, v5\nv_add_f32 v6, v6, v7")
def unp(sg, ks):
    for k in ks:
        d = DV + 40*sg + 2*k
        a(f"v_lshlrev_b32 v{d}, 16, v{RAW+20*sg+k}\nv_and_b32 v{d+1}, 0xffff0000, v{RAW+20*sg+k}")
for n, sh in enumerate((8, 4, 2, 1)):
    a(f"v_add_f32_dpp v4, v4, v4 row_ror:{sh} row_mask:0xf bank_mask:0xf\nv_add_f32_dpp v6, v6, v6 row_ror:{sh} row_mask:0xf bank_mask:0xf")
    unp(0, range(5*n, 5*n+5))
a(f"v_mul_f32 v4, {f32(1/640)}, v4\nv_mul_f32 v6, {f32(1/640)}, v6")
a("v_cvt_pk_bf16_f32 v5, v4, v6\nv_lshlrev_b32 v8, 16, v5\nv_and_b32 v9, 0xffff0000, v5")
a("v_sub_f32 v56, 0, v8\nv_sub_f32 v57, 0, v8\nv_sub_f32 v58, 0, v9\nv_sub_f32 v59, 0, v9")
zero(10, 4)
unp(1, range(20))
for sg in range(2):
    for k in range(20):
        d = DV + 40*sg + 2*k
        a(f"v_pk_add_f32 {vr(d,2)}, {vr(d,2)}, {vr(56+2*sg,2)}")
    for k in range(20):
        d = DV + 40*sg + 2*k
        a(f"v_pk_fma_f32 {vr(10+2*sg,2)}, {vr(d,2)}, {vr(d,2)}, {vr(10+2*sg,2)}")
a("v_add_f32 v10, v10, v11\nv_add_f32 v12, v12, v13")
def rnd(sg, ks):
    for k in ks:
        d = DV + 40*sg + 2*k
        a(f"v_cvt_pk_bf16_f32 v{RAW+20*sg+k}, v{d}, v{d+1}")
for n, sh in enumerate((8, 4, 2, 1)):
    a(f"v_add_f32_dpp v10, v10, v10 row_ror:{sh} row_mask:0xf bank_mask:0xf\nv_add_f32_dpp v12, v12, v12 row_ror:{sh} row_mask:0xf bank_mask:0xf")
    rnd(0, range(2*n, 2*n+2))
a("v_sub_f32 v4, v4, v8\nv_sub_f32 v6, v6, v9\nv_mul_f32 v4, v4, v4\nv_mul_f32 v6, v6, v6")
a(f"s_mov_b32 s12, {f32(1/640)}\nv_fma_f32 v4, v10, s12, -v4\nv_fma_f32 v6, v12, s12, -v6")
a("v_max_f32 v4, 0, v4\nv_max_f32 v6, 0, v6")
a("v_cvt_pk_bf16_f32 v7, v4, v6\nv_lshlrev_b32 v4, 16, v7\nv_and_b32 v6, 0xffff0000, v7")
a(f"v_add_f32 v4, {f32(1e-5)}, v4\nv_add_f32 v6, {f32(1e-5)}, v6")
a("v_cvt_pk_bf16_f32 v7, v4, v6\nv_lshlrev_b32 v4, 16, v7\nv_and_b32 v6, 0xffff0000, v7")
a("v_sqrt_f32 v4, v4\nv_sqrt_f32 v6, v6\nv_cvt_pk_bf16_f32 v7, v4, v6")
a("v_lshlrev_b32 v4, 16, v7\nv_and_b32 v6, 0xffff0000, v7\nv_rcp_f32 v60, v4\nv_rcp_f32 v61, v4\nv_rcp_f32 v62, v6\nv_rcp_f32 v63, v6")
a("v_and_b32 v12, 0xffff, v5\nv_or_b32 v12, v12, v4\nv_lshrrev_b32 v13, 16, v5\nv_or_b32 v13, v13, v6")
a(f"s_lshl_b32 s11, s14, 2\ns_add_u32 s11, s11, {STATS}\nv_lshlrev_b32 v1, 3, v2")
a(clr_s)
rnd(0, range(8, 20)); rnd(1, range(20))
unp(0, range(20)); unp(1, range(20))
for sg in range(2):
    for k in range(20):
        d = DV + 40*sg + 2*k
        a(f"v_pk_mul_f32 {vr(d,2)}, {vr(d,2)}, {vr(60+2*sg,2)}")
for k in range(20):
    for h in range(2):
        d = DV + 2*k + h
        a(f"v_cvt_pk_bf16_f32 v{d}, v{d}, v{d+40}")
    d = DV + 2*k
    a(f"ds_write2_b32 v{150+k//4}, v{d}, v{d+1} offset0:{(k%4)*32} offset1:{(k%4)*32+16}")
a("v_mov_b32 v15, 1\nds_add_u32 v14, v15")
need_clr("ln")
a(f"s_mov_b32 exec_lo, 0x10001\ns_mov_b32 exec_hi, 0x10001\nbuffer_store_dwordx2 v[12:13], v1, {WS}, s11 offen sc1\ns_mov_b64 exec, -1")
stamp(2)
a("v_lshrrev_b32 v3, 5, v0\nv_lshlrev_b32 v2, 4, v0\nv_lshl_add_u32 v1, v3, 4, v2\nv_add_u32 v1, s69, v1")
a("s_mul_i32 s10, s9, 40960\ns_mul_i32 s11, s15, 10240\ns_add_u32 s10, s10, s11")
lds_wait("b", 256)
for i in range(10): a(f"ds_read_b128 {vr(RAW+4*i,4)}, v1 offset:{1056*i}")
for i in range(10):
    a(f"s_waitcnt lgkmcnt({9-i})\nbuffer_store_dwordx4 {vr(RAW+4*i,4)}, v2, {WS}, s10 offen sc1\ns_add_u32 s10, s10, 1024")
a(f"s_lshl_b32 s10, s15, 11\ns_add_u32 s10, s10, {LNC}\nv_lshlrev_b32 v4, 7, v0\nv_mov_b32 v5, 1")
a(f"s_waitcnt vmcnt(0)\ns_mov_b64 exec, 0xffff\nbuffer_atomic_add v5, v4, {WS}, s10 offen sc1\ns_mov_b64 exec, -1\ns_setprio 0")
stamp(4)
a("s_lshl_b32 s8, s9, 2\ns_add_u32 s8, s8, s15")
a("s_cmp_lg_u32 s8, 255\ns_cbranch_scc1 L_norelay")
a(f"v_lshlrev_b32 v6, 6, v0\ns_mov_b32 s8, {W2C}")
poll(few(3, f"buffer_load_dword v7, v6, {DBG}, 0 offen offset:128 sc1"),
     "v_readlane_b32 s9, v7, 0\nv_readlane_b32 s10, v7, 1\ns_add_u32 s9, s9, s10\ns_cmp_ge_u32 s9, 64", sleep=4, issued=False)
stamp(11)
a(f"s_mov_b32 exec_hi, 0\nbuffer_store_dword v5, v4, {WS}, s8 offen offset:1024 sc1\ns_mov_b32 exec_hi, -1")
a("L_norelay:")
a("s_mov_b32 s35, 1\ns_branch L_g2")
a("L_csum:")
a("s_setprio 3\ns_mov_b32 s12, 0x00003f80\ns_mov_b32 s13, 0x3f800000\nv_and_b32 v3, 3, v0")
zero(4, 8)
a("s_waitcnt vmcnt(0)")
for i in range(10):
    for k in range(4):
        a(f"v_dot2_f32_bf16 v{4+2*k}, v{RAW+4*i+k}, s12, v{4+2*k}\nv_dot2_f32_bf16 v{5+2*k}, v{RAW+4*i+k}, s13, v{5+2*k}")
for sh in (8, 4):
    for r in range(8): a(f"v_add_f32_dpp v{4+r}, v{4+r}, v{4+r} row_ror:{sh} row_mask:0xf bank_mask:0xf")
a("v_lshrrev_b32 v12, 4, v0\nv_lshlrev_b32 v12, 7, v12\nv_lshl_add_u32 v12, v3, 5, v12\nv_add_u32 v12, s69, v12")
a("ds_write_b128 v12, v[4:7]\nds_write_b128 v12, v[8:11] offset:16")
a("v_and_b32 v12, 31, v0\nv_lshl_add_u32 v13, v12, 2, s69")
for p in range(4): a(f"ds_read_b32 v{16+p}, v13 offset:{128*p}")
a("s_waitcnt lgkmcnt(0)\nv_add_f32 v16, v16, v17\nv_add_f32 v18, v18, v19\nv_add_f32 v16, v16, v18")
a("v_cvt_pk_bf16_f32 v4, v16, v16\nv_lshlrev_b32 v5, 16, v4\nv_sub_f32 v5, v16, v5")
a("v_cvt_pk_bf16_f32 v6, v16, v5\nv_and_b32 v7, 0xffff0000, v6\nv_sub_f32 v7, v5, v7")
a("v_cvt_pk_bf16_f32 v7, v7, v7\nv_and_b32 v7, 0xffff, v7\nv_or_b32 v7, 1, v7")
a(f"s_lshl_b32 s12, s9, 8\ns_mul_i32 s13, s15, {CSP}\ns_add_u32 s12, s12, s13\ns_add_u32 s12, s12, {CSUM}\nv_lshlrev_b32 v12, 3, v12")
need_clr("cs")
a("v_lshl_or_b32 v7, v145, 16, v7")
a(f"s_mov_b32 exec_hi, 0\nbuffer_store_dwordx2 v[6:7], v12, {WS}, s12 offen sc1\ns_mov_b32 exec_hi, -1")
stamp(2)
a("s_setprio 0\ns_mov_b32 s35, 4\ns_branch L_kg_loop")
a("L_w2mid:")
a("s_setprio 3")
a("v_lshlrev_b32 v2, 4, v0\ns_waitcnt vmcnt(0)")
for i in range(12): a(f"ds_write_b128 v{cLIN}, {vr(W2R(i),4)} offset:{1024*i}")
a("v_lshrrev_b32 v6, 5, v0\nv_bfe_u32 v7, v0, 4, 1\nv_lshlrev_b32 v6, 4, v6\nv_lshl_add_u32 v6, v7, 2, v6\nv_bfe_u32 v7, v0, 2, 2\nv_add_u32 v6, v6, v7")
a("v_lshlrev_b32 v6, 7, v6\nv_and_b32 v7, 3, v0\nv_lshl_add_u32 v6, v7, 3, v6\nv_add_u32 v6, s69, v6")
for u_ in range(3):
    for dt in range(4):
        for h in range(2): a(f"ds_read_b64_tr_b16 {vr(W2R(4*u_+dt)+2*h,2)}, v6 offset:{4096*u_+1024*h+32*dt}")
    for dt in range(4):
        a(f"s_waitcnt lgkmcnt({6-2*dt})\nbuffer_store_dwordx4 {vr(W2R(4*u_+dt),4)}, v2, {WS}, s{96+u_} offen sc1\ns_add_u32 s{96+u_}, s{96+u_}, 55296")
a("s_setprio 2\ns_mov_b32 s35, 6\ns_branch L_kg_loop")
a("L_w2sig:")
a(f"v_mov_b32 v4, {CNT+4}\nv_mov_b32 v5, 1\nv_mov_b32 v6, 0\ns_waitcnt vmcnt(0)\ns_mov_b64 exec, 1\nds_add_rtn_u32 v7, v4, v5\ns_waitcnt lgkmcnt(0)\nv_readfirstlane_b32 s10, v7")
a(f"s_and_b32 s11, s9, 1\ns_lshl_b32 s11, s11, 6\ns_add_u32 s11, s11, 128\ns_cmp_eq_u32 s10, 3\ns_cselect_b32 s11, s11, {OOB}\nbuffer_atomic_add v5, v6, {DBG}, s11 offen sc1\ns_mov_b64 exec, -1")
stamp(2)
a(f"s_setprio {opt('wprio', 1)}\ns_mov_b32 s35, 0\ns_branch L_kg_nsig")
a("L_kg_done:")
a("s_waitcnt vmcnt(4)")
a("s_cmp_ge_u32 s35, 3\ns_cbranch_scc1 L_clr_fin")
a(clr_s)
need_clr("fin")
a(f"s_waitcnt lgkmcnt(0)\ns_cmp_lt_u32 {WV}, 4\ns_cbranch_scc1 L_kg_nc\ns_cmp_eq_u32 s68, 2\ns_cbranch_scc1 L_kg_nc\ns_waitcnt vmcnt(0)")
a(c_issue)
a("L_kg_nc:")
a("s_nop 7")
stamp(4)
a(f"s_setprio {opt('pprio', 2)}")
r = lambda i: KA + i
a("v_lshlrev_b32 v1, 4, v0\nv_add_u32 v13, s69, v1")
zero(4, 4)
for i in range(3): a(f"ds_write_b128 v13, v[4:7] offset:{SCR+1024*i}")
a("v_and_b32 v3, 31, v0\nv_lshlrev_b32 v2, 4, v3\nv_sub_u32 v2, s69, v2\nv_add_u32 v2, 512, v2")
def pack(o, pairs):
    for i, (lo, hi) in enumerate(pairs): a(f"v_cvt_pk_bf16_f32 v{o+i}, {lo}, {hi}")
R = lambda i: f"v{KA+i}"
pack(16, [(R(7),R(6)),(R(5),R(4)),(R(3),R(2)),(R(1),R(0))])
pack(20, [(R(4),R(3)),(R(2),R(2)),(R(2),R(1)),(R(0),R(0))])
pack(24, [("0","0"),(R(9),R(9)),(R(9),R(8)),(R(8),R(8))])
pack(28, [(R(9),R(10)),(R(13),R(14))])
pack(30, [(R(9),R(11)),(R(13),R(15))])
a(f"v_and_b32 v8, 1, v3\nv_and_b32 v10, 30, v3\nv_mul_u32_u24 v9, 320, v8\nv_mul_u32_u24 v8, 640, v8\ns_add_u32 s10, s69, {T2}\nv_sub_u32 v10, s10, v10\nv_add_u32 v8, v8, v10\nv_add_u32 v9, v9, v10")
a("s_mov_b32 exec_hi, 0")
a(f"ds_write_b128 v2, v[16:19] offset:{IMG+1072-512}")
for q in range(4):
    for cp in range(2): a(f"ds_write_b16{'_d16_hi' if q & 1 else ''} v9, v{30+q//2} offset:{T3-T2 + 160*cp + 2*(63-16*q-cp)}")
a("s_mov_b32 exec_hi, -1\ns_mov_b32 exec_lo, 0")
a(f"ds_write_b128 v2, v[20:23] offset:{IMG+560-512}")
for q in range(2):
    for w in range(2):
        for cp in range(2): a(f"ds_write_b16{'_d16_hi' if w else ''} v8, v{28+q} offset:{320*w + 160*cp + 2*(47-16*q-cp)}")
a(f"s_mov_b32 exec_hi, 1\nds_write_b128 v2, v[24:27] offset:{IMG+48-512}\nds_write_b16 v8, v4 offset:{2*47}\nds_write_b16 v8, v4 offset:{160+2*46}\ns_mov_b64 exec, -1")
a(f"s_cmp_lt_u32 {WV}, 4\ns_cbranch_scc1 L_kexp")
a("s_cmp_eq_u32 s68, 2\ns_cbranch_scc1 L_cv_kpart\ns_waitcnt lgkmcnt(0)")
a(c_test)
a("s_cbranch_scc0 L_cv_kpart")
uloads()
a("s_mov_b32 s68, 2")
a("L_cv_kpart:")
B2, B3 = 164, 188
a(f"v_mov_b32 v5, s69\nds_read_u16 v34, v5 offset:{T2 + 6*160 + 2*16}")
a(f"ds_read_b128 v[16:19], v{cLIN} offset:{IMG}\nds_read_b64 v[20:21], v{cLIN} offset:{IMG+16}\nds_read_b128 v[24:27], v{cIMG2} offset:{IMG+1024}\nds_read_b64 v[28:29], v{cIMG2} offset:{IMG+1040}")
for i in range(6):
    for h in range(2): a(f"ds_read2_b32 {vr(B2+4*i+2*h,2)}, v{cT2} offset0:{4*i+2*h} offset1:{4*i+2*h+1}")
for d in range(4):
    for h in range(2): a(f"ds_read2_b32 {vr(B3+4*d+2*h,2)}, v{cT3} offset0:{8*(3-d)+2*h} offset1:{8*(3-d)+2*h+1}")
a("v_lshl_or_b32 v5, v147, 16, v147")
for k in range(4): a(f"v_and_b32 v{AD+k}, v{AD+k}, v5")
a("s_waitcnt lgkmcnt(15)\nv_lshl_or_b32 v5, v34, 16, v34")
for k in range(4): a(f"v_and_b32 v{AB+k}, v{AB+k}, v5")
for rr, (D, va, off) in enumerate(((16, cKW1, 0), (24, cKW2, 4608))):
    O = 64 + 16*rr
    for i in range(4):
        a(f"v_mov_b32 v{O+4*i}, v{D+i}\nv_mov_b32 v{O+4*i+1}, v{D+i+1}")
        a(f"v_alignbit_b32 v{O+4*i+2}, v{D+i+1}, v{D+i}, 16\nv_alignbit_b32 v{O+4*i+3}, v{D+i+2}, v{D+i+1}, 16")
        a(f"ds_write_b128 v{va}, {vr(O+4*i,4)} offset:{off + 16*i}")
a(f"ds_read_b64 {vr(A16,2)}, v{cA0}\nds_read_b64 {vr(A16+2,2)}, v{cA1}")
stamp(5)
a("s_cmp_lg_u32 s101, 0\ns_cbranch_scc1 L_cv_direct")
a("L_cv_upart:")
a(f"s_setprio {opt('pprio', 2)}")
zero(4, 4)
a(f"s_mov_b64 exec, 0x3fffffff\nds_write_b128 v{cLIN}, v[4:7] offset:{UB-480}\ns_mov_b64 exec, 3")
for o in (W3B-48, W5B-48, W7B-48, W9B-48, W9B+2032): a(f"ds_write_b128 v{cLIN}, v[4:7] offset:{o}")
a("s_mov_b64 exec, -1")
a("s_bitcmp1_b32 s68, 1\ns_cbranch_scc1 L_cv_u2")
spoll(c_issue, c_test, sleep=opt("lsleep", 6))
uloads()
a("L_cv_u2:")
a("s_mov_b32 s31, 0\ns_bitcmp1_b32 s68, 0\ns_cbranch_scc1 L_cv_u3\ns_cmp_eq_u32 s101, 0\ns_cbranch_scc1 L_cv_u3")
a(sld(31, S_MB))
a("L_cv_u3:")
stamp(6)
a("s_waitcnt vmcnt(0)")
for q in range(4): a(f"ds_write_b128 v{cLIN}, {vr(148+4*q,4)} offset:{UB+1024*q}")
SET = [(16, 24), (56, 64)]; CA = 96
a(f"v_mov_b32 v13, v{cLIN}\ns_mov_b32 s3, 0")
o = UB - 16
wrd = f"ds_read_b64 v[128:129], v13 offset:{o-8}\nds_read_b128 v[130:133], v13 offset:{o}\nds_read_b64 v[134:135], v13 offset:{o+16}"
a(wrd)
a("s_waitcnt lgkmcnt(0)\ns_and_b32 s13, s31, s101\ns_cbranch_scc0 L_cv_win")
kloads()
a("s_or_b32 s68, s68, 1")
a("L_cv_win:")
D = 128; Pf = 96
for e in range(16):
    a(f"v_lshlrev_b32 v{Pf+e}, 16, v{D+e//2}" if e % 2 == 0 else f"v_and_b32 v{Pf+e}, 0xffff0000, v{D+e//2}")
a(wrd.replace(f"offset:{o-8}", f"offset:{o-8+1024}").replace(f"offset:{o}\n", f"offset:{o+1024}\n").replace(f"offset:{o+16}", f"offset:{o+16+1024}"))
for e in range(1, 16): a(f"v_add_f32 v{Pf+e}, v{Pf+e}, v{Pf+e-1}")
for h, base in ((1, W3B), (2, W5B), (3, W7B), (4, W9B)):
    if h == 3: a("s_cmp_eq_u32 s3, 2\ns_cbranch_scc1 L_cv_wend")
    T = 112
    for i in range(8):
        b = 4+i-h-1
        a(f"v_sub_f32 v{T+i}, v{Pf+4+i+h}, v{Pf+b}" if b >= 0 else f"v_mov_b32 v{T+i}, v{Pf+4+i+h}")
    for i in range(4): a(f"v_cvt_pk_bf16_f32 v{120+4*(h&1)+i}, v{T+2*i}, v{T+2*i+1}")
    a(f"ds_write_b128 v13, {vr(120+4*(h&1),4)} offset:{base-16}")
a("v_add_u32 v13, 1024, v13\ns_add_u32 s3, s3, 1\ns_waitcnt lgkmcnt(4)\ns_branch L_cv_win")
a("L_cv_wend:")
a("s_cmp_lg_u32 s101, 0\ns_cbranch_scc1 L_cv_rk")
a("L_cv_direct:")
a(f"v_add_u32 v8, 2304, v{cA0}\nv_add_u32 v9, 2304, v{cA1}\nv_mov_b32 v10, v{cB}")
def rd(st):
    A_, B_ = SET[st]; Rr = []
    for x in range(2):
        Rr.append(f"ds_read_b64 {vr(A_+4*x,2)}, v8 offset:{2304*(1-x)}")
        Rr.append(f"ds_read_b64 {vr(A_+4*x+2,2)}, v9 offset:{2304*(1-x)}")
    for b in range(8): Rr.append(f"ds_read_b128 {vr(B_+4*b,4)}, v10 offset:{512*b}")
    return Rr
advk = ["v_subrev_u32 v8, 288, v8", "v_subrev_u32 v9, 288, v9", "v_subrev_u32 v10, 64, v10"]
for x in rd(0) + advk: a(x)
a(f"s_setprio {opt('cprio', 2)}\ns_mov_b32 s3, 0\ns_waitcnt lgkmcnt(0)")
if PROF: a("s_cmp_lt_u32 s4, 4\ns_cbranch_scc1 L_ns7")
stamp(7)
if PROF: a("L_ns7:")
def mf(n, A_, B_, c=None): a(f"v_mfma_f32_16x16x32_bf16 {vr(CA+4*n,4)}, {vr(A_,4)}, {vr(B_,4)}, {c if c else vr(CA+4*n,4)}")
for b in range(8): mf(b, AD, SET[0][1]+4*b, "0")
for b in range(6): mf(b+2, A16, SET[0][1]+4*b)
for b in range(4): mf(b+4, AB, SET[0][1]+4*b)
a("L_cv_loop:")
for st in range(2):
    A_, B_ = SET[st]; Rr = rd(1-st); n = 0
    for x in range(2):
        for b in range(8-x):
            mf(x+b, A_+4*x, B_+4*b)
            if n < 6: a(Rr[2*n]); a(Rr[2*n+1])
            elif n < 9: a(advk[n-6])
            if st == 1 and n == 12: a("s_add_u32 s3, s3, 1\ns_cmp_lt_u32 s3, 4")
            n += 1
    a("s_waitcnt lgkmcnt(0)")
a("s_cbranch_scc1 L_cv_loop")
a("L_cv_far:")
for f in range(12):
    for h in range(2): a(f"ds_read_b64_tr_b16 {vr(16+4*f+2*h,2)}, v{cW2} offset:{256*f+128*h}")
    if f == 6: a("s_waitcnt lgkmcnt(8)")
for f in range(4):
    for h in range(2): a(f"ds_read_b64_tr_b16 {vr(64+4*f+2*h,2)}, v{cW3} offset:{512*f+128*h}")
a("s_waitcnt lgkmcnt(8)")
for f in range(12):
    for n in range(2, 8):
        i = f + 8 - 2*n
        if 0 <= i < 6: mf(n, 16+4*f, B2+4*i)
a("s_waitcnt lgkmcnt(0)")
for f in range(4):
    for n in range(4+f, 8): mf(n, 64+4*f, B3+4*(n-f-4))
if PROF: a("s_cmp_lt_u32 s4, 4\ns_cbranch_scc1 L_ns8")
stamp(8)
if PROF: a("L_ns8:")
a(f"s_lshl_b32 s14, s{S_CH}, 7\ns_add_u32 s14, s14, {YA}\ns_nop 7")
for n in range(0, 8, 2):
    o = 16 + 2*n
    a(f"v_cvt_pk_bf16_f32 v{o}, v{CA+4*n}, v{CA+4*n+1}\nv_cvt_pk_bf16_f32 v{o+1}, v{CA+4*n+2}, v{CA+4*n+3}")
    a(f"v_cvt_pk_bf16_f32 v{o+2}, v{CA+4*n+4}, v{CA+4*n+5}\nv_cvt_pk_bf16_f32 v{o+3}, v{CA+4*n+6}, v{CA+4*n+7}")
    a(f"v_permlane16_swap_b32 v{o}, v{o+2}\nv_permlane16_swap_b32 v{o+1}, v{o+3}")
    a(f"buffer_store_dwordx4 {vr(o,4)}, v{cST}, {WS}, s14 offen sc1\ns_add_u32 s14, s14, {8*81920}")
a(f"s_mul_i32 s13, s{S_CH}, 820\ns_lshr_b32 s13, s13, 16\ns_lshl_b32 s14, s13, 9\ns_add_u32 s14, s14, {YAC}\nv_lshlrev_b32 v4, 7, v0\nv_mov_b32 v5, 1")
a(f"s_waitcnt vmcnt(0)\ns_mov_b64 exec, 15\nbuffer_atomic_add v5, v4, {WS}, s14 offen sc1\ns_mov_b64 exec, -1")
a("s_setprio 0")
stamp(9)
a(f"s_cmp_eq_u32 {WV}, 7\ns_cbranch_scc1 L_fetch")
endp()
a("L_kexp:")
for q in range(3): a(f"ds_read_b128 {vr(16+4*q,4)}, v13 offset:{SCR+1024*q}")
a(f"s_lshl_b32 s9, s{S_CH}, 12\ns_add_u32 s9, s9, {KD}")
for q in range(3): a(f"s_waitcnt lgkmcnt({2-q})\nbuffer_store_dwordx4 {vr(16+4*q,4)}, v1, {WS}, s9 offen offset:{1024*q} sc1")
a(f"s_sub_u32 s8, s{S_CH}, 256\ns_lshr_b32 s8, s8, 3\ns_lshl_b32 s8, s8, 2\ns_add_u32 s8, s8, {WV}\ns_cmp_ge_u32 s8, 144\ns_cselect_b32 s12, 1, 0\ns_mul_i32 s9, s12, 144\ns_sub_u32 s8, s8, s9")
a("s_mul_i32 s9, s8, 1821\ns_lshr_b32 s9, s9, 16\ns_mul_i32 s10, s9, 36\ns_sub_u32 s8, s8, s10")
a("s_cmp_ge_u32 s8, 20\ns_cselect_b32 s10, 1, 0\ns_mul_i32 s11, s10, 20\ns_sub_u32 s8, s8, s11\ns_lshl_b32 s8, s8, 3\ns_lshl_b32 s9, s9, 1\ns_add_u32 s8, s8, s9\ns_add_u32 s8, s8, s10")
a(f"s_lshl_b32 s8, s8, 7\ns_add_u32 s8, s8, {MBOX}\ns_lshl_b32 s9, 0x1000000, s12\nv_mov_b32 v4, 0\nv_mov_b32 v5, s9")
a(f"s_waitcnt vmcnt(0)\ns_mov_b64 exec, 1\nbuffer_atomic_or v5, v4, {WS}, s8 offen sc1\ns_mov_b64 exec, -1")
stamp(12)
a("s_setprio 0\ns_mov_b32 s35, 1\ns_branch L_g2")
a("L_cv_rk:")
a("s_bitcmp1_b32 s68, 0\ns_cbranch_scc1 L_cv_k1")
spoll(sld(31, S_MB), "s_and_b32 s13, s31, s101", sleep=6)
kloads()
a("L_cv_k1:")
for q in range(3): a(f"s_waitcnt vmcnt({2-q})\nds_write_b128 v{cLIN}, {vr(32+4*q,4)} offset:{SCR+1024*q}")
stamp(4)
a("s_branch L_cv_kpart")

a("L_end:")
if PROF:
    a(f"s_lshl_b32 s93, s2, 3\ns_add_u32 s93, s93, {WV}\ns_lshl_b32 s93, s93, 6\ns_add_u32 s93, s93, {PROFB}")
    a(f"s_memrealtime s[94:95]\ns_waitcnt lgkmcnt(0)\ns_mov_b32 s87, s94\ns_mov_b32 s72, s{S_SPIN}")
    for i in range(16): a(f"v_mov_b32 v{224+i}, s{72+i}")
    a("v_mov_b32 v255, 0\ns_mov_b64 exec, 1")
    for i in range(4): a(f"buffer_store_dwordx4 {vr(224+4*i,4)}, v255, {WS}, s93 offen offset:{16*i}")
    if opt("dbgmax", 0):
        a(f"v_not_b32 v238, v238\ns_and_b32 s93, {WV}, 3\ns_cmp_lg_u32 s93, 0\ns_cbranch_scc1 L_exit")
        sel0 = {1: 14, 2: 15, 3: 1, 4: 2, 5: 5, 6: 6, 7: 8, 8: 10}
        sel4 = {9: 10, 10: 4, 11: 7, 12: 8, 13: 9}
        a(f"s_cmp_lg_u32 {WV}, 0\ns_cbranch_scc1 L_dbg4")
        for d, i in sel0.items(): a(f"buffer_atomic_umax v{224+i}, v255, {DBG}, 0 offen offset:{4*d} sc1")
        a("s_branch L_exit")
        a("L_dbg4:")
        for d, i in sel4.items(): a(f"buffer_atomic_umax v{224+i}, v255, {DBG}, 0 offen offset:{4*d} sc1")
a("L_exit:")
a("s_endpgm")

hdr = open("cdna_kernels/%s.s.ref" % NAME).read().split("; Override launch")[0]
out = hdr + "; @launch grid=(256,1,1) block=(512,1,1) lds=163840\n"
DOC = """;
"""
out += DOC
out += '.amdgcn_target "amdgcn-amd-amdhsa--gfx950"\n.text\n' + a.text()
out += f""".section .rodata,"a"
.p2align 6
.amdhsa_kernel {KN}
  .amdhsa_next_free_vgpr 256
  .amdhsa_next_free_sgpr 102
  .amdhsa_accum_offset 256
  .amdhsa_group_segment_fixed_size 0
  .amdhsa_kernarg_size 136
  .amdhsa_user_sgpr_count 2
  .amdhsa_user_sgpr_kernarg_segment_ptr 1
  .amdhsa_system_sgpr_workgroup_id_x 1
.end_amdhsa_kernel
"""
path = [x for x in sys.argv[1:] if not x.startswith("--")]
open(path[0] if path else "f.s", "w").write(out)
```

```python
import sys, struct, math
sys.path.insert(0, "dev")
from asmlib import Asm, vr, sr

NAME = "parallel_sum__ssm_conv_s4__dense_activation_gelu__prompt"
KN = NAME + "_kernel"
PROF = "--prof" in sys.argv
def opt(name, default):
    for x in sys.argv:
        if x.startswith("--%s=" % name): return int(x.split("=")[1])
    return default
def f32(x): return "0x%08x" % struct.unpack("<I", struct.pack("<f", x))[0]

XNT, KD, YA, W2F = 0x000000, 0x280000, 0x500000, 0x780000
CLR = 0x9A0000
STATS, CSUM, MBOX, LNC, W2C, YAC = CLR, CLR+0x2000, CLR+0x10000, CLR+0x18000, CLR+0x1C000, CLR+0x1A000
CSP = 13824
PROFB, HF = 0x9C0000, 0xA00000
WS_SIZE = 0x1100000
OOB = "0x7f000000"
P = dict(u=16, are=18, aim=20, bre=22, bim=24, cre=26, cim=28, ldt=30, dsk=32, bx=34, w1=36, b1=38, w2=40, b2=42, out=44, dbg=46, ws=48)
S_WS, S_A, S_B, S_DBG = 52, 56, 60, 64
S_WAVE, S_XR, S_XC, S_J, S_SPIN, S_CH = 4, 5, 6, 7, 50, 51
S_MB = 34
WV = f"s{S_WAVE}"
WS = f"s[{S_WS}:{S_WS+3}]"; SA = f"s[{S_A}:{S_A+3}]"; SB = f"s[{S_B}:{S_B+3}]"; DBG = f"s[{S_DBG}:{S_DBG+3}]"
STG = 40960
NST = 3
AREG, BREG0, BREG = 20480, 81920, 20480
B7 = BREG0 + 3*BREG
CNT = B7 + 20096
YAT = B7
UB = 5536
W3B, W5B, W7B, W9B = 9664, 12768, 15872, 17952
SCR = 512
IMG, T2, T3 = SCR, SCR+1136, SCR+2416
STATL = BREG0 + 2*BREG
NT = " nt" if opt("nt", 0) else ""
NT1 = " nt" if opt("nt1", 1) else ""

a = Asm()
G2F = " sc1" if opt("g2sc1", 1) else ""
def srd(d, ptr, size):
    a(f"s_mov_b32 s{d}, s{ptr}\ns_mov_b32 s{d+1}, s{ptr+1}\ns_mov_b32 s{d+2}, {hex(size)}\ns_mov_b32 s{d+3}, 0x20000")
def stamp(idx):
    if PROF: a(f"s_memtime s[92:93]\ns_waitcnt lgkmcnt(0)\ns_sub_u32 s{72+idx}, s92, s90")
def lstamp(o):
    if PROF: a(f"s_memtime s[92:93]\ns_waitcnt lgkmcnt(0)\ns_sub_u32 s92, s92, s90\ns_add_u32 m0, s3, {o}\nv_writelane_b32 v200, s92, m0")
def endp(): a("s_branch L_end")
def cmul(d, x, y, t):
    a(f"v_pk_mul_f32 {vr(t,2)}, {vr(x,2)}, {vr(y,2)} op_sel:[0,0] op_sel_hi:[0,1]")
    a(f"v_pk_fma_f32 {vr(d,2)}, {vr(x,2)}, {vr(y,2)}, {vr(t,2)} op_sel:[1,1,0] op_sel_hi:[1,0,1] neg_lo:[0,1,0]")
def poll(issue, test, sleep=4, issued=True):
    L = a.label("L_poll"); D = a.label("L_pdone")
    if not issued: a(issue)
    a(f"{L}:")
    a("s_waitcnt vmcnt(0)")
    a(test)
    a(f"s_cbranch_scc1 {D}")
    a(f"s_add_u32 s{S_SPIN}, s{S_SPIN}, 1\ns_cmp_gt_u32 s{S_SPIN}, 100000\ns_cbranch_scc1 L_exit")
    a(f"s_sleep {sleep}")
    a(issue)
    a(f"s_branch {L}")
    a(f"{D}:")
def sld(d, off): return f"s_load_dword s{d}, s[{P['ws']}:{P['ws']+1}], s{off} glc"
def spoll(issue, test, sleep=4, issued=False, far=None):
    L = a.label("L_spoll"); D = a.label("L_sdone")
    if not issued: a(issue)
    a(f"{L}:")
    a("s_waitcnt lgkmcnt(0)")
    a(test)
    a(f"s_cbranch_scc1 {D}")
    a(f"s_add_u32 s{S_SPIN}, s{S_SPIN}, 1\ns_cmp_gt_u32 s{S_SPIN}, 100000\ns_cbranch_scc1 L_exit")
    a(f"s_sleep {sleep}")
    if far:
        N = a.label("L_near")
        a(f"{far[0]}\ns_cbranch_scc1 {N}\ns_sleep {far[1]}")
        a(f"{N}:")
    a(issue)
    a(f"s_branch {L}")
    a(f"{D}:")
def arrive_issue(sreg, va, vb):
    a(f"v_mov_b32 v{va}, 0\nv_mov_b32 v{vb}, 1\ns_mov_b64 exec, 1\nbuffer_atomic_add v{vb}, v{va}, {WS}, s{sreg} offen sc0 sc1\ns_mov_b64 exec, -1")
def arrive_check(st, vb, n, then):
    L = a.label("L_arr")
    a(f"s_waitcnt vmcnt(0)\nv_readfirstlane_b32 s{st}, v{vb}\ns_cmp_lg_u32 s{st}, {n-1}\ns_cbranch_scc1 {L}")
    a(then)
    a(f"{L}:")
def push_all(bitreg, off, va, vb, st):
    t = f"v_lshlrev_b32 v{va}, 7, v0\nv_mov_b32 v{vb}, s{bitreg}\ns_mov_b32 s{st}, {MBOX+off}\n"
    for i in range(4): t += f"buffer_atomic_or v{vb}, v{va}, {WS}, s{st} offen sc1\ns_add_u32 s{st}, s{st}, 8192\n"
    return t
def few(mask, ins): return f"s_mov_b64 exec, {mask}\n{ins}\ns_mov_b64 exec, -1"
def clr_issue(v, vo): return few(15, f"buffer_load_dword v{v}, v{vo}, {DBG}, 0 offen sc1")
def clr_test(v): return f"v_cmp_ne_u32 vcc, 0, v{v}\ns_and_b32 vcc_lo, vcc_lo, 15\ns_cmp_eq_u32 vcc_lo, 15"
def nz_test(v): return f"v_cmp_ne_u32 vcc, 0, v{v}\ns_cmp_eq_u64 vcc, -1"
def zero(b, n):
    for i in range(0, n, 2): a(f"v_pk_mov_b32 {vr(b+i,2)}, 0, 0")

cLIN, cIMG2, cT2, cT3, cW2, cW3, cST, cKW1, cKW2, cA0, cA1, cB, cU = 247, 248, 249, 250, 251, 252, 253, 254, 255, 231, 236, 237, 146
AD, AB, A16 = 204, 224, 232
RS = opt("rowsplit", 0)
def tile_rc(rt, cb, tmp):
    if RS: return f"s_and_b32 s{rt}, s2, 7\ns_lshl_b32 s{rt}, s{rt}, 2\ns_lshr_b32 s{cb}, s{S_J}, 3\ns_add_u32 s{rt}, s{rt}, s{cb}\ns_and_b32 s{cb}, s{S_J}, 7"
    return (f"s_lshl_b32 s{rt}, s{S_XR}, 3\ns_lshr_b32 s{cb}, s{S_J}, 2\ns_add_u32 s{rt}, s{rt}, s{cb}\n"
            f"s_lshl_b32 s{cb}, s{S_XC}, 2\ns_and_b32 s{tmp}, s{S_J}, 3\ns_add_u32 s{cb}, s{cb}, s{tmp}")
def conv_setup(t=64):
    r_, g_, h_, f_, x_, y_, z_ = (f"v{t+i}" for i in range(7))
    a(f"v_lshlrev_b32 {x_}, 4, v0\nv_add_u32 v{cLIN}, s69, {x_}\nv_min_u32 {z_}, 5, v0\nv_lshl_add_u32 v{cIMG2}, {z_}, 4, s69")
    a(f"v_lshlrev_b32 {x_}, 6, {z_}\nv_lshrrev_b32 {y_}, 1, {z_}\nv_lshl_add_u32 {x_}, {y_}, 4, {x_}\nv_add_u32 v{cKW2}, s69, {x_}")
    a(f"v_lshlrev_b32 {x_}, 6, v0\nv_lshrrev_b32 {y_}, 1, v0\nv_lshl_add_u32 {x_}, {y_}, 4, {x_}\nv_add_u32 v{cKW1}, s69, {x_}")
    a(f"v_lshrrev_b32 {x_}, 2, v0\nv_mul_u32_u24 {x_}, 40960, {x_}\nv_and_b32 {y_}, 3, v0\nv_lshl_add_u32 v{cU}, {y_}, 4, {x_}")
    a(f"v_and_b32 {r_}, 15, v0\nv_lshrrev_b32 {g_}, 4, v0\nv_and_b32 {h_}, 1, {g_}\nv_lshrrev_b32 {f_}, 1, {g_}")
    a(f"v_sub_u32 {x_}, 15, {r_}\nv_and_b32 {y_}, 1, {x_}\nv_sub_u32 {x_}, {x_}, {y_}\nv_lshlrev_b32 {x_}, 1, {x_}")
    a(f"v_lshl_add_u32 {z_}, {g_}, 1, {y_}\nv_mul_u32_u24 {z_}, 160, {z_}\nv_add_u32 {z_}, {z_}, {x_}\ns_add_u32 s10, s69, {T2}\nv_add_u32 v{cT2}, s10, {z_}")
    a(f"v_lshl_add_u32 {z_}, {h_}, 1, {y_}\nv_mul_u32_u24 {z_}, 160, {z_}\nv_add_u32 {z_}, {z_}, {x_}\nv_lshl_add_u32 {z_}, {f_}, 4, {z_}\ns_add_u32 s10, s69, {T3}\nv_add_u32 v{cT3}, s10, {z_}")
    a(f"v_mul_u32_u24 {x_}, {W5B-W3B}, {h_}\nv_lshlrev_b32 {y_}, 3, {g_}\nv_sub_u32 {x_}, {x_}, {y_}\nv_lshl_add_u32 {x_}, {r_}, 3, {x_}\ns_add_u32 s10, s69, {W3B-8}\nv_add_u32 v{cW2}, s10, {x_}")
    a(f"v_mul_u32_u24 {x_}, {W9B-W7B-16}, {h_}\nv_lshl_add_u32 {x_}, {f_}, 8, {x_}\nv_lshl_add_u32 {x_}, {r_}, 3, {x_}\ns_add_u32 s10, s69, {W7B-16}\nv_add_u32 v{cW3}, s10, {x_}")
    a(f"v_lshlrev_b32 {x_}, 2, {h_}\nv_lshrrev_b32 {z_}, 2, {r_}\nv_add_u32 {x_}, {x_}, {z_}\nv_mul_u32_u24 {x_}, 81920, {x_}\nv_lshl_add_u32 {x_}, {f_}, 6, {x_}\nv_and_b32 {z_}, 3, {r_}\nv_lshl_add_u32 v{cST}, {z_}, 4, {x_}")
    a(f"s_add_u32 s10, s69, {UB-32}\nv_lshlrev_b32 {x_}, 5, {r_}\nv_lshl_add_u32 {x_}, {g_}, 4, {x_}\nv_add_u32 v{cB}, s10, {x_}")
    a(f"v_sub_u32 {z_}, {y_}, {r_}\nv_add_u32 {z_}, 15, {z_}\nv_sub_u32 {y_}, {r_}, {y_}")
    a(f"v_lshrrev_b32 {x_}, 4, {z_}\nv_lshlrev_b32 {x_}, 4, {x_}\nv_lshl_add_u32 {x_}, {z_}, 3, {x_}\nv_add_u32 v{cA0}, s69, {x_}")
    a(f"v_add_u32 {z_}, 4, {z_}\nv_lshrrev_b32 {x_}, 4, {z_}\nv_lshlrev_b32 {x_}, 4, {x_}\nv_lshl_add_u32 {x_}, {z_}, 3, {x_}\nv_add_u32 v{cA1}, s69, {x_}")
    a(f"v_mov_b32 {r_}, 0xffff\nv_mov_b32 {g_}, 0xffff0000\nv_mov_b32 {h_}, -1")
    for k in range(4):
        a(f"v_cmp_eq_u32 vcc, {2*k-16}, {y_}\nv_cndmask_b32 v{AD+k}, 0, {r_}, vcc\nv_cmp_eq_u32 vcc, {2*k+1-16}, {y_}\nv_cndmask_b32 v{AD+k}, v{AD+k}, {g_}, vcc")
        a(f"v_cmp_eq_u32 vcc, {2*k-12}, {y_}\nv_cndmask_b32 v{AB+k}, 0, {h_}, vcc\nv_cmp_eq_u32 vcc, {2*k-13}, {y_}\nv_cndmask_b32 v{AB+k}, v{AB+k}, {r_}, vcc\nv_cmp_eq_u32 vcc, {2*k-11}, {y_}\nv_cndmask_b32 v{AB+k}, v{AB+k}, {g_}, vcc")
def uloads():
    a(f"s_lshl_b32 s10, s{S_CH}, 6")
    for q in range(4): a(f"buffer_load_dwordx4 {vr(148+4*q,4)}, v{cU}, {WS}, s10 offen sc1\ns_add_u32 s10, s10, 655360")
def kloads():
    a(f"s_lshl_b32 s10, s{S_CH}, 12\ns_add_u32 s10, s10, {KD}")
    for q in range(3): a(f"buffer_load_dwordx4 {vr(32+4*q,4)}, v1, {WS}, s10 offen offset:{1024*q} sc1")
lnc_addr = f"s_mul_i32 s13, s{S_CH}, 410\ns_lshr_b32 s13, s13, 16\ns_lshl_b32 s13, s13, 4\ns_and_b32 s100, s2, 15\ns_add_u32 s100, s100, s13\ns_lshl_b32 s100, s100, 7\ns_add_u32 s100, s100, {LNC}"

a.raw(f".globl {KN}\n.p2align 8\n.type {KN},@function")
a(f"{KN}:")
a("s_cmp_ge_u32 s2, 256\ns_cbranch_scc1 L_exit")
a("s_load_dwordx16 s[16:31], s[0:1], 0\ns_load_dwordx16 s[32:47], s[0:1], 64\ns_load_dwordx2 s[48:49], s[0:1], 128")
if opt("cpf", 1):
    a(f"s_cmp_ge_u32 s2, {opt('cpfn', 8)}\ns_cbranch_scc1 L_nocpf")
    a("s_getpc_b64 s[12:13]")
    a("L_cpfb:")
    a("v_lshlrev_b32 v20, 7, v0\nv_min_u32 v20, L_exit-L_cpfb, v20\nv_mov_b32 v21, s13\nv_add_co_u32 v20, vcc, s12, v20\nv_addc_co_u32 v21, vcc, 0, v21, vcc")
    a("global_load_dword v22, v[20:21], off")
    a("L_nocpf:")
if PROF:
    a("s_memtime s[90:91]\ns_memrealtime s[94:95]")
    for i in range(16): a(f"s_mov_b32 s{72+i}, 0")
a("v_lshrrev_b32 v1, 6, v0\nv_and_b32 v0, 63, v0")
a(f"v_readfirstlane_b32 {WV}, v1")
a(f"s_bfe_u32 s{S_XR}, s2, 0x20001\ns_and_b32 s{S_XC}, s2, 1\ns_lshr_b32 s{S_J}, s2, 3\ns_mov_b32 s{S_SPIN}, 0")
a(f"s_lshl_b32 s8, s{S_XC}, 2\ns_sub_u32 s8, 20, s8")
a(f"s_cmp_eq_u32 s{S_XC}, 0\ns_cselect_b32 s9, 52, 64\ns_mul_i32 s9, s9, s{S_J}\ns_lshr_b32 s9, s9, 8")
a(f"s_sub_u32 s11, 5, s{S_XC}\ns_mul_i32 s11, s11, s9\ns_sub_u32 s10, s{S_J}, s11\ns_mul_i32 s11, s{S_XC}, 5\ns_add_u32 s10, s10, s11")
a(f"s_lshl_b32 s11, s{S_XR}, 2\ns_add_u32 s9, s9, s11")
a("v_lshrrev_b32 v4, 3, v0\nv_mul_u32_u24 v4, 1280, v4")
a("v_and_b32 v5, 7, v0\nv_lshrrev_b32 v6, 4, v0\nv_xor_b32 v5, v5, v6\nv_lshl_add_u32 v2, v5, 4, v4")
a("v_xor_b32 v5, 4, v5\nv_lshl_add_u32 v3, v5, 4, v4\nv_add_u32 v3, 10240, v3\nv_add_u32 v4, 20480, v2\nv_add_u32 v5, 20480, v3")
for i in range(3):
    a(f"v_add_u32 v6, {64*i}, v0\nv_mul_u32_u24 v7, 2731, v6\nv_lshrrev_b32 v7, 16, v7\nv_lshlrev_b32 v14, 1, v7\nv_and_b32 v14, 4, v14\nv_xor_b32 v6, v6, v14")
    a(f"v_mul_u32_u24 v7, 3072, v7\nv_lshl_add_u32 v{8+i}, v6, 4, v7\nv_add_u32 v{11+i}, 27648, v{8+i}")
a(f"s_and_b32 s99, {WV}, 3")
a("s_lshl_b32 s11, s9, 7\ns_lshl_b32 s12, s99, 5\ns_add_u32 s11, s11, s12\ns_mul_i32 s11, s11, 1280")
a("s_mul_i32 s12, s99, 55296\ns_mul_i32 s13, s10, 384\ns_add_u32 s12, s12, s13")
a("s_lshl_b32 s13, s99, 12\ns_mul_i32 s14, s99, 6144\ns_add_u32 s14, s14, 16384\ns_mov_b32 s3, 0")
a(f"s_and_b32 s15, s9, 3\ns_mul_i32 s15, s15, 5\ns_add_u32 s15, s15, 1\ns_lshr_b32 s15, s15, 1\ns_lshl_b32 s68, s10, 1\ns_add_u32 s15, s15, s68\ns_add_u32 s15, s15, s{S_XR}")
a("s_mul_i32 s68, s15, 26\ns_lshr_b32 s68, s68, 8\ns_mul_i32 s68, s68, 10\ns_sub_u32 s15, s15, s68")
a("s_lshl_b32 s68, s15, 7\ns_add_u32 s11, s11, s68\ns_mul_i32 s68, s15, 221184\ns_add_u32 s12, s12, s68\ns_mov_b32 s69, 0")
for d, size in ((S_WS, WS_SIZE), (S_A, 2621440), (S_B, 2211840), (S_DBG, 256)): a(f"s_mov_b32 s{d+2}, {hex(size)}\ns_mov_b32 s{d+3}, 0x20000")
a("v_mov_b32 v146, 0\nv_mov_b32 v253, 0\ns_mov_b32 s101, 0")
a("s_waitcnt lgkmcnt(0)")
for d, nm in ((S_A, 'u'), (S_B, 'w1'), (S_WS, 'ws'), (S_DBG, 'dbg')): a(f"s_mov_b64 s[{d}:{d+1}], s[{P[nm]}:{P[nm]+1}]")
a(f"s_lshl_b32 s{S_MB}, s2, 7\ns_add_u32 s{S_MB}, s{S_MB}, {MBOX}")
if PROF:
    a("s_mov_b32 s86, s94"); stamp(13)
if opt("g2only", 0):
    a(f"v_mov_b32 v174, 0\ns_mov_b32 s35, 1\ns_cmp_lt_u32 {WV}, 4\ns_cbranch_scc1 L_g2\ns_branch L_end")
a(f"s_cmp_ge_u32 s{S_J}, s8\ns_cbranch_scc1 L_aux")
a(f"s_cmp_lt_u32 {WV}, 4\ns_cbranch_scc1 L_comp")

a("s_mov_b32 s8, s99")
stamp(1)
S_C = 96
a("L_ld_loop:")
a("s_cmp_lt_u32 s3, 2\ns_cbranch_scc1 L_ld_nowait\ns_cmp_eq_u32 s3, 2\ns_cbranch_scc1 L_ld_setup")
a("L_ld_wait:")
a("s_waitcnt vmcnt(10)")
lstamp(0)
a("s_barrier")
lstamp(16)
a("L_ld_nowait:")
a("s_add_u32 s70, s69, s13\ns_add_u32 s71, s69, s14")
for q in range(4): a(f"s_add_u32 m0, s70, {1024*q}\nbuffer_load_dwordx4 v{2+q}, {SA}, s11 offen{NT} lds")
for i in range(6): a(f"s_add_u32 m0, s71, {1024*i}\nbuffer_load_dwordx4 v{8+i}, {SB}, s12 offen{NT} lds")
a("s_add_u32 s11, s11, 128\ns_add_u32 s12, s12, 221184\ns_add_u32 s15, s15, 1\ns_cmp_lt_u32 s15, 10\ns_cbranch_scc1 L_ld_nowrap")
a("s_sub_u32 s11, s11, 1280\ns_sub_u32 s12, s12, 2211840\ns_mov_b32 s15, 0")
a("L_ld_nowrap:")
a(f"s_add_u32 s69, s69, {STG}\ns_cmp_eq_u32 s69, {NST*STG}\ns_cselect_b32 s69, 0, s69")
a(f"s_cmp_lg_u32 s3, 7\ns_cbranch_scc1 L_ld_n5\ns_load_dwordx4 s[28:31], s[{P['dbg']}:{P['dbg']+1}], 0")
a("L_ld_n5:")
a("s_add_u32 s3, s3, 1\ns_cmp_lt_u32 s3, 10\ns_cbranch_scc1 L_ld_loop")
s_issue = f"buffer_load_dwordx4 v[16:19], v1, {WS}, s18 offen sc1\nbuffer_load_dwordx4 v[20:23], v6, {WS}, s18 offen offset:1024 sc1\nbuffer_load_dword v24, v7, {WS}, s20 offen sc1"
wc_issue = sld(26, 25)
wc_test = "s_cmp_lg_u32 s26, 0"
a("s_waitcnt lgkmcnt(0)\ns_and_b32 s28, s28, s29\ns_and_b32 s30, s30, s31\ns_and_b32 s24, s28, s30")
a(s_issue)
for w in (13, 3):
    if w == 3:
        a("s_mov_b32 s31, 0\ns_mov_b32 s33, 0\ns_cmp_eq_u32 s101, 0\ns_cbranch_scc1 L_ld_ncv")
        a(sld(31, S_MB) + "\n" + sld(33, 100))
        a("L_ld_ncv:")
    a(f"s_waitcnt vmcnt({w})")
    lstamp(0)
    a("s_barrier")
    lstamp(16)
    if PROF: a("s_add_u32 s3, s3, 1")
a("s_cmp_lg_u32 s24, 0\ns_cbranch_scc1 L_ld_clr")
poll(clr_issue(15, 14), clr_test(15), sleep=8, issued=False)
a(s_issue)
a("s_waitcnt lgkmcnt(0)\ns_mov_b32 s31, 0\ns_mov_b32 s33, 0")
a("L_ld_clr:")
s_test = "v_and_b32 v4, v17, v19\nv_and_b32 v5, v21, v23\nv_and_b32 v4, v4, v5\nv_and_b32 v4, 1, v4\nv_min_u32 v4, v4, v24\n" + nz_test(4)
poll(s_issue, s_test, sleep=8)
a("ds_write_b128 v25, v[16:19]\nds_write_b128 v26, v[20:23] offset:1024\nds_write_b32 v27, v24")
a("s_waitcnt lgkmcnt(0)\ns_mov_b32 s68, 0\ns_and_b32 s13, s31, s101\ns_cbranch_scc0 L_ld_nk0")
kloads()
a("s_mov_b32 s68, 1")
a("L_ld_nk0:")
a("s_cmp_ge_u32 s33, 64\ns_cbranch_scc0 L_ld_nk")
uloads()
a("s_or_b32 s68, s68, 2")
a("L_ld_nk:")
a("s_barrier")
lstamp(16)
if PROF:
    a(f"s_lshl_b32 s93, s2, 9\ns_lshl_b32 s92, s8, 7\ns_add_u32 s93, s93, s92\ns_add_u32 s93, s93, {PROFB+0x20000}\nv_lshlrev_b32 v201, 2, v0\ns_mov_b32 exec_hi, 0\nbuffer_store_dword v200, v201, {WS}, s93 offen\ns_mov_b32 exec_hi, -1")
stamp(2)
a(f"s_cmp_eq_u32 {WV}, 7\ns_cbranch_scc1 L_fetch")
a(f"s_cmp_eq_u32 {WV}, 6\ns_cbranch_scc1 L_park")
a(f"s_cmp_eq_u32 s101, 0\ns_cbranch_scc1 L_end\ns_mul_i32 s69, {WV}, {AREG}\ns_branch L_cv_upart")
wc_prep = f"s_and_b32 s25, s2, 31\ns_lshl_b32 s25, s25, 7\ns_add_u32 s25, s25, {W2C+1024}"
a("L_ld_setup:")
a("v_lshlrev_b32 v1, 4, v0\nv_and_b32 v7, 31, v0\nv_lshlrev_b32 v6, 4, v7\nv_lshlrev_b32 v7, 2, v7\nv_and_b32 v14, 3, v0\nv_lshlrev_b32 v14, 2, v14")
a(f"s_lshl_b32 s20, s9, 9\ns_lshl_b32 s23, s8, 7\ns_add_u32 s20, s20, s23\ns_add_u32 s20, s20, {STATS}\ns_add_u32 s23, s23, {STATL+6144}\nv_add_u32 v27, s23, v7")
a(f"s_mul_i32 s18, s10, 1536\ns_mul_i32 s19, s8, {CSP}\ns_add_u32 s18, s18, s19\ns_add_u32 s18, s18, {CSUM}")
a(f"s_mul_i32 s23, s8, 1536\ns_add_u32 s23, s23, {STATL}\nv_add_u32 v25, s23, v1\nv_add_u32 v26, s23, v6\nv_mov_b32 v30, {CNT}")
zero(32, 4)
a("ds_write_b128 v30, v[32:35]")
a(wc_prep)
a(f"s_mul_i32 s23, s{S_XR}, 36\ns_mul_i32 s22, s{S_XC}, 20\ns_add_u32 s23, s23, s22\ns_add_u32 s23, s23, s{S_J}\ns_mul_i32 s22, s8, 144\ns_add_u32 s23, s23, s22\ns_cmp_ge_u32 s23, 192\ns_cbranch_scc1 L_ld_wait")
a(f"s_lshr_b32 s22, s23, 2\ns_lshl_b32 s22, s22, 3\ns_and_b32 s23, s23, 3\ns_add_u32 s{S_CH}, s23, s22\ns_add_u32 s{S_CH}, s{S_CH}, 256\ns_lshl_b32 s101, 0x1000000, s8")
a(f"s_mov_b32 s96, s69\ns_mov_b32 s97, s10\ns_mov_b32 s98, s13\ns_mul_i32 s69, {WV}, {AREG}")
conv_setup()
a(lnc_addr)
a(f"s_lshl_b32 s22, s{S_CH}, 1\ns_and_b32 s23, s22, 2\ns_sub_u32 s22, s22, s23\ns_load_dword s99, s[{P['dsk']}:{P['dsk']+1}], s22")
a("s_lshl_b32 s23, s23, 3\ns_waitcnt lgkmcnt(0)\ns_lshr_b32 s99, s99, s23\ns_and_b32 s99, s99, 0xffff\nv_mov_b32 v147, s99")
a("s_mov_b32 s69, s96\ns_mov_b32 s10, s97\ns_mov_b32 s13, s98\ns_branch L_ld_wait")

G2H = [16, 32, 48, 224]; G2W = [164, 184, 204, 144]; AC2 = 64
K0 = [0, 13, 26, 40, 54]
def g2_setup():
    a(tile_rc(30, 31, 29))
    a(f"s_mul_i32 s28, {WV}, 7168\ns_max_u32 s28, s28, 1024\ns_sub_u32 s28, s28, 1024")
    a(f"s_mul_i32 s27, s30, {4*55296}\ns_add_u32 s27, s27, s28\ns_add_u32 s27, s27, {HF}")
    for i in range(4):
        a(f"s_add_u32 s29, {WV}, {i}\ns_and_b32 s29, s29, 3\ns_mul_i32 s29, s29, 55296\ns_add_u32 s{18+i}, s27, s29")
    a(f"s_mul_i32 s22, s31, {5*55296}\ns_add_u32 s22, s22, s28\ns_add_u32 s22, s22, {W2F}")
    for i in range(1, 5): a(f"s_add_u32 s{22+i}, s22, {55296*i}")
    a(f"s_lshl_b32 s27, s30, 6\ns_lshl_b32 s29, {WV}, 4\ns_add_u32 s27, s27, s29\ns_mul_i32 s27, s27, 1280\ns_mul_i32 s29, s31, 160\ns_add_u32 s27, s27, s29")
    masks = []
    for w in range(4):
        c0, c1 = max(0, 7*w-1)//3, (7*w+5)//3
        m = ((1 << (c1-c0+1)) - 1) << c0
        masks.append(m | (m << 11))
    a(f"s_mov_b32 s28, {hex(masks[0])}\ns_cmp_eq_u32 {WV}, 1\ns_cselect_b32 s28, {hex(masks[1])}, s28\ns_cmp_eq_u32 {WV}, 2\ns_cselect_b32 s28, {hex(masks[2])}, s28\ns_cmp_eq_u32 {WV}, 3\ns_cselect_b32 s28, {hex(masks[3])}, s28")
    a(f"v_lshlrev_b32 v252, 4, v0\ns_cmp_eq_u32 {WV}, 0\ns_cselect_b32 s30, {OOB}, 0\nv_add_u32 v253, s30, v252")
    a("v_lshrrev_b32 v255, 4, v0\nv_lshlrev_b32 v255, 3, v255\nv_and_b32 v254, 15, v0\nv_mul_u32_u24 v254, 160, v254\nv_add_u32 v254, v254, v255")
    srd(S_B, P['b2'], 1280)
def ldh(k, o=0, v=252): return [f"buffer_load_dwordx4 {vr(G2H[k]+4*i,4)}, v{v}, {WS}, s{18+i} offen offset:{o}{G2F}" for i in range(4)]
def ldw(k, o=0, v=252): return [f"buffer_load_dwordx4 {vr(G2W[k]+4*i,4)}, v{v}, {WS}, s{22+i} offen offset:{o}{G2F}" for i in range(5)]
OUTV = (8, 9, 13)
def xb_loads():
    for q in range(3):
        a(f"v_add_u32 v10, {64*q}, v0\nv_mul_u32_u24 v11, 6554, v10\nv_lshrrev_b32 v11, 16, v11\nv_mul_u32_u24 v11, 1120, v11\nv_lshl_add_u32 v{OUTV[q]}, v10, 4, v11")
    a(f"v_cmp_gt_u32 vcc, 32, v0\nv_mov_b32 v10, {OOB}\nv_cndmask_b32 v13, v10, v13, vcc\ns_mul_i32 s10, {WV}, {AREG}")
    for q in range(3): a(f"s_add_u32 m0, s10, {15360+1024*q}\nbuffer_load_dwordx4 v{OUTV[q]}, {SA}, s27 offen lds")
    a(f"s_add_u32 m0, s10, {18432}\ns_mov_b64 exec, 0x3ff\nbuffer_load_dwordx4 v252, {SB}, s29 offen lds\ns_mov_b64 exec, -1")
    a("v_add_u32 v2, s10, v254\nv_add_u32 v3, s10, v255")
off = lambda t: 1024*t if t < 7 else 27648 + 1024*(t-7)
w_pre = ldw(0, 0) + ldw(1, 1024) + ldw(2, 2048) + ldw(3, 3072)

a("L_comp:")
ACC = 72; BUF = [16, 44]; SF = 172
g2_setup()
a("v_and_b32 v13, 31, v0\nv_lshrrev_b32 v14, 5, v0")
a(f"s_lshl_b32 s8, {WV}, 12\nv_lshlrev_b32 v15, 7, v13\nv_add_u32 v15, s8, v15")
a("v_bfe_u32 v7, v0, 1, 3\nv_xor_b32 v7, v7, v14")
for ks in range(4): a(f"v_xor_b32 v1, {2*ks}, v7\nv_lshl_add_u32 v{2+ks}, v1, 4, v15")
a("v_bfe_u32 v1, v0, 2, 2\nv_lshl_add_u32 v1, v14, 3, v1\nv_mul_u32_u24 v1, 384, v1")
a("v_bfe_u32 v7, v0, 4, 1\nv_lshl_add_u32 v1, v7, 5, v1\nv_and_b32 v7, 3, v0\nv_lshl_add_u32 v1, v7, 3, v1\nv_add_u32 v1, 16384, v1")
a("v_bfe_u32 v7, v0, 3, 1\nv_lshlrev_b32 v7, 6, v7\nv_add_u32 v6, v1, v7\nv_sub_u32 v196, v1, v7\nv_mov_b32 v197, v196")
for i in range(5): a(f"v_mov_b32 v{8+i}, v{2+i}")
zero(ACC, 96)
a(f"s_lshl_b32 s11, {WV}, 7\ns_add_u32 s11, s11, {STATL+6144}\nv_lshl_add_u32 v168, v13, 2, s11\nv_mul_u32_u24 v169, 3072, v14\nv_lshl_add_u32 v169, v13, 3, v169\nv_add_u32 v169, {STATL}, v169")
a("v_bfe_u32 v1, v0, 4, 1\nv_mul_u32_u24 v1, 55296, v1\nv_lshl_add_u32 v1, v14, 8, v1\nv_and_b32 v7, 15, v0\nv_lshl_add_u32 v1, v7, 4, v1")
a(f"s_lshl_b32 s8, s9, 3\ns_lshl_b32 s11, {WV}, 1\ns_add_u32 s8, s8, s11\ns_mul_i32 s8, s8, 54\ns_mul_i32 s11, s10, 3\ns_add_u32 s8, s8, s11\ns_lshl_b32 s8, s8, 10\ns_add_u32 s8, s8, {HF}")
a(f"s_lshl_b32 s12, s9, 1\ns_lshr_b32 s11, {WV}, 1\ns_add_u32 s12, s12, s11")
if RS: a(f"s_and_b32 s11, s12, 3\ns_lshl_b32 s11, s11, 6\ns_lshr_b32 s12, s12, 2\ns_add_u32 s12, s12, s11\ns_lshl_b32 s12, s12, 7\ns_add_u32 s12, s12, {MBOX}")
else: a(f"s_and_b32 s11, s12, 7\ns_lshl_b32 s11, s11, 5\ns_lshr_b32 s12, s12, 3\ns_lshl_b32 s12, s12, 1\ns_add_u32 s12, s12, s11\ns_lshl_b32 s12, s12, 7\ns_add_u32 s12, s12, {MBOX}")
a(f"s_and_b32 s11, {WV}, 1\ns_mul_i32 s11, s11, 11\ns_add_u32 s11, s11, s10\ns_lshl_b32 s11, 1, s11")
if RS: a("v_lshlrev_b32 v15, 10, v0\nv_mov_b32 v14, s11")
else: a("v_and_b32 v15, 3, v0\nv_lshlrev_b32 v15, 10, v15\nv_bfe_u32 v7, v0, 2, 1\nv_lshl_add_u32 v15, v7, 7, v15\nv_mov_b32 v14, s11")
a(wc_prep.replace("s25", "s69"))
a("s_mov_b32 s15, 0\ns_mov_b32 s3, 0")
def reads(ks, b):
    r = [f"ds_read_b128 {vr(b,4)}, v{8+ks}"]
    for ft in range(6):
        for s in range(2):
            r.append(f"ds_read_b64_tr_b16 {vr(b+4+4*ft+2*s,2)}, v{197 if ft & 1 else 12} offset:{ks*6144 + s*1536 + ft*64}")
    return r
def step(cur, nks, nb, last, first_wait=True):
    R = reads(nks, nb)
    waits2 = [8, 0, 10, 0, 11, 0]
    waits = [10, 11, 12, 13, 13, 13]; parts = [R[0:3], R[3:6], R[6:9], R[9:11], R[11:13], [last]]
    for ft in range(6):
        if first_wait and (ft % 2 == 0 or not opt("fw", 1)): a(f"s_waitcnt lgkmcnt({(waits2 if opt('fw', 1) else waits)[ft]})")
        a(f"v_mfma_f32_32x32x16_bf16 {vr(ACC+16*ft,16)}, {vr(cur+4+4*ft,4)}, {vr(cur,4)}, {vr(ACC+16*ft,16)}")
        for r in parts[ft]: a(r)
a("s_barrier")
stamp(1)
for r in reads(0, BUF[0]): a(r)
a("L_c_loop:")
step(BUF[0], 1, BUF[1], f"s_add_u32 s15, s15, {STG}\ns_cmp_eq_u32 s15, {NST*STG}\ns_cselect_b32 s15, 0, s15\nv_add_u32 v8, s15, v2")
step(BUF[1], 2, BUF[0], "v_add_u32 v9, s15, v3\nv_add_u32 v10, s15, v4")
step(BUF[0], 3, BUF[1], "v_add_u32 v12, s15, v6\nv_add_u32 v197, s15, v196\ns_waitcnt lgkmcnt(0)\ns_barrier")
step(BUF[1], 0, BUF[0], "v_add_u32 v11, s15, v5\ns_add_u32 s3, s3, 1\ns_cmp_lt_u32 s3, 10\ns_cbranch_scc1 L_c_loop", first_wait=False)
stamp(2)
a(f"s_setprio {opt('eprio', 3)}\nds_read_b32 v170, v168")
for ft in range(6):
    for p in range(2): a(f"ds_read_b64 {vr(SF+4*ft+2*p,2)}, v169 offset:{1536*p+256*ft}")
a("s_waitcnt lgkmcnt(12)")
a("v_xor_b32 v17, 0x8000, v170\nv_and_b32 v19, 0xffff, v17\nv_lshl_or_b32 v16, v19, 16, v19\nv_mov_b32 v18, v16")
a("v_cmp_gt_u32 vcc, 32, v0\nv_cndmask_b32 v17, v19, v17, vcc")
a("v_and_b32 v10, 0xffff0000, v170\nv_rcp_f32 v7, v10\nv_mov_b32 v11, v10\ns_waitcnt lgkmcnt(0)")
for ft in range(6):
    a(f"v_mfma_f32_32x32x16_bf16 {vr(ACC+16*ft,16)}, {vr(SF+4*ft,4)}, v[16:19], {vr(ACC+16*ft,16)}")
    if ft == 0:
        k1c = -2.0 * math.log2(math.e) * math.sqrt(2.0/math.pi); k2c = k1c * 0.044715
        a(f"v_mul_f32 v8, {f32(k1c)}, v7\nv_mul_f32 v12, v7, v7\nv_mul_f32 v12, v12, v7\nv_mul_f32 v12, {f32(k2c)}, v12\nv_mov_b32 v9, v8\nv_mov_b32 v13, v12")
def stA(h):
    A0 = ACC + 8*h; T = 16 + 8*(h % 3)
    return ([f"v_pk_mul_f32 {vr(T+2*p,2)}, {vr(A0+2*p,2)}, {vr(A0+2*p,2)}" for p in range(4)] +
            [f"v_pk_fma_f32 {vr(T+2*p,2)}, {vr(T+2*p,2)}, v[12:13], v[8:9]" for p in range(4)] +
            [f"v_pk_mul_f32 {vr(T+2*p,2)}, {vr(T+2*p,2)}, {vr(A0+2*p,2)}" for p in range(4)])
def stE(h):
    T = 16 + 8*(h % 3); return [f"v_exp_f32 v{T+e}, v{T+e}" for e in range(8)]
def stB(h):
    T = 16 + 8*(h % 3); return [f"v_pk_fma_f32 {vr(T+2*p,2)}, {vr(T+2*p,2)}, v[10:11], v[10:11]" for p in range(4)]
def stR(h):
    T = 16 + 8*(h % 3); return [f"v_rcp_f32 v{T+e}, v{T+e}" for e in range(8)]
def stC(h):
    A0 = ACC + 8*h; T = 16 + 8*(h % 3); pk = 48 + 4*(h % 4)
    return ([f"v_pk_mul_f32 {vr(T+2*p,2)}, {vr(T+2*p,2)}, {vr(A0+2*p,2)}" for p in range(4)] +
            [f"v_cvt_pk_bf16_f32 v{pk+p}, v{T+2*p}, v{T+2*p+1}" for p in range(4)] +
            [f"buffer_store_dwordx4 {vr(pk,4)}, v1, {WS}, s8 offen offset:{(h//2 % 3)*1024 + (h%2)*512} sc1"])
def mix(tr, nt):
    i = 0
    for k, x in enumerate(tr):
        a(x)
        n = (len(nt) * (k+1)) // len(tr)
        while i < n: a(nt[i]); i += 1
for x in stA(0): a(x)
for h in range(12):
    mix(stE(h), (stC(h-1) if h else []))
    if h == 6: a("s_add_u32 s8, s8, 27648")
    if h == opt("eflag", 10): a(f"s_waitcnt vmcnt({h-6})\ns_mov_b64 exec, 0xff\nbuffer_atomic_or v14, v15, {WS}, s12 offen sc1\ns_mov_b64 exec, -1\n" + sld(68, 69))
    for x in stB(h): a(x)
    if h == 11: a(sld(14, S_MB))
    mix(stR(h), (stA(h+1) if h < 11 else []))
for x in stC(11): a(x)
stamp(4)
def acc_init(z=True):
    for dt in range(5): a(f"ds_read_b64 {vr(224+2*dt,2)}, v2 offset:{15360+32*dt}\nds_read_b64 {vr(234+2*dt,2)}, v3 offset:{18432+32*dt}")
    a("s_waitcnt lgkmcnt(0)")
    for dt in range(5):
        for h in range(2):
            a(f"v_lshlrev_b32 v{AC2+4*dt+2*h}, 16, v{224+2*dt+h}\nv_and_b32 v{AC2+4*dt+2*h+1}, 0xffff0000, v{224+2*dt+h}")
            a(f"v_lshlrev_b32 v10, 16, v{234+2*dt+h}\nv_and_b32 v11, 0xffff0000, v{234+2*dt+h}\nv_add_f32 v{AC2+4*dt+2*h}, v{AC2+4*dt+2*h}, v10\nv_add_f32 v{AC2+4*dt+2*h+1}, v{AC2+4*dt+2*h+1}, v11")
a(f"v_mov_b32 v2, {CNT+8}\nv_mov_b32 v3, 1\nds_write_b32 v2, v3")
xb_loads()
a("s_mov_b32 s35, 0\ns_mov_b32 s101, 0\ns_waitcnt lgkmcnt(0)")
a("s_cmp_eq_u32 s68, 0\ns_cbranch_scc1 L_c_slow")
for l in ldw(0, 0): a(l)
a("s_and_b32 s13, s14, s28\ns_cmp_eq_u32 s13, s28\ns_cbranch_scc0 L_c_mid")
for l in ldh(0, 0): a(l)
a(f"s_waitcnt vmcnt(13)\ns_mov_b64 exec, 0xff\nbuffer_atomic_or v14, v15, {WS}, s12 offen offset:64 sc1\ns_mov_b64 exec, -1")
for l in ldw(1, 1024) + ldw(2, 2048) + ldw(3, 3072) + ldh(1, 1024) + ldh(2, 2048): a(l)
a("s_mov_b32 s101, 1\ns_waitcnt vmcnt(33)\ns_branch L_c_acc")
a("L_c_mid:")
a(f"s_waitcnt vmcnt(9)\ns_mov_b64 exec, 0xff\nbuffer_atomic_or v14, v15, {WS}, s12 offen offset:64 sc1\ns_mov_b64 exec, -1")
for l in ldw(1, 1024) + ldw(2, 2048) + ldw(3, 3072): a(l)
a("s_waitcnt vmcnt(21)\ns_branch L_c_acc")
a("L_c_slow:")
a(f"s_waitcnt vmcnt(0)\ns_mov_b64 exec, 0xff\nbuffer_atomic_or v14, v15, {WS}, s12 offen offset:64 sc1\ns_mov_b64 exec, -1")
a("L_c_acc:")
a("s_setprio 0")
stamp(5)
acc_init(False)
a("s_cmp_lg_u32 s68, 0\ns_cbranch_scc1 L_g2go")
a("s_branch L_g2w")

a("L_g2:")
g2_setup()
a("s_mov_b32 s101, 0")
xb_loads()
a("s_waitcnt vmcnt(0)")
acc_init()
a("L_g2w:")
if opt("p1only", 0): endp()
a(wc_prep.replace("s25", "s8"))
if not opt("g2only", 0): spoll(sld(9, 8), "s_cmp_lg_u32 s9, 0", sleep=16)
PK = (8, 10, 12)
a(f"s_cmp_eq_u32 s35, 0\ns_cbranch_scc1 L_g_nopark\ns_mul_i32 s10, {WV}, {AREG}")
for p in range(3):
    for i in range(5): a(f"s_add_u32 m0, s10, {5120*p+1024*i}\ns_add_u32 s13, s{22+i}, {off(PK[p])}\nbuffer_load_dwordx4 v252, {WS}, s13 offen{G2F} lds")
    if opt("thr", 0): a(f"s_waitcnt vmcnt({opt('thr', 0)})")
a("L_g_nopark:")
for n_, l in enumerate(w_pre):
    a(l)
    if opt("thr", 0) and n_ % 5 == 4 and n_ < 19: a(f"s_waitcnt vmcnt({opt('thr', 0)})")
if opt("touch2", 0):
    nt2 = 6 if RS else 3
    a("s_cmp_eq_u32 s35, 0\ns_cbranch_scc1 L_g2go")
    a(f"s_lshl_b32 s8, s{S_XC}, 2\ns_add_u32 s8, s8, s{S_J}\ns_sub_u32 s8, s8, 20\ns_lshl_b32 s8, s8, 2\ns_add_u32 s8, s8, {WV}\ns_cmp_ge_u32 s8, 48\ns_cbranch_scc1 L_g2go")
    if RS: a(f"s_and_b32 s9, s2, 7\ns_mul_i32 s9, s9, 6\ns_add_u32 s8, s8, s9\ns_cmp_ge_u32 s8, 48\ns_cselect_b32 s9, 48, 0\ns_sub_u32 s8, s8, s9\ns_mul_i32 s8, s8, 46080\ns_add_u32 s8, s8, {W2F}")
    else: a(f"s_mul_i32 s9, s{S_XR}, 12\ns_add_u32 s8, s8, s9\ns_cmp_ge_u32 s8, 48\ns_cselect_b32 s9, 48, 0\ns_sub_u32 s8, s8, s9\ns_mul_i32 s8, s8, 23040\ns_mul_i32 s9, s{S_XC}, 1105920\ns_add_u32 s8, s8, s9\ns_add_u32 s8, s8, {W2F}")
    a("v_lshlrev_b32 v4, 7, v0\ns_mov_b32 exec_hi, 0xfffffff")
    for i in range(nt2): a(f"buffer_load_dword v244, v4, {WS}, s8 offen sc1\ns_add_u32 s8, s8, 7680")
    a("s_mov_b32 exec_hi, -1")
a("L_g2go:")
if opt("p1only", 0): endp()
hm_issue = sld(14, S_MB)
a("s_cmp_lg_u32 s101, 0\ns_cbranch_scc1 L_g_nohm")
a(hm_issue)
a("L_g_nohm:")
a(f"s_mul_i32 s10, {WV}, {AREG}\nv_add_u32 v1, s10, v252")
for i in range(1, 4):
    a(f"s_sub_u32 s13, {WV}, {i}\ns_and_b32 s13, s13, 3\ns_mul_i32 s13, s13, {AREG}\ns_add_u32 s13, s13, {5120*(i-1)}\nv_add_u32 v{1+i}, s13, v252")
a("v_lshrrev_b32 v10, 2, v0\nv_lshlrev_b32 v10, 7, v10\nv_bfe_u32 v15, v0, 1, 1\nv_lshl_add_u32 v10, v15, 6, v10\nv_and_b32 v15, 1, v0\nv_lshl_add_u32 v10, v15, 3, v10")
a(f"s_lshl_b32 s13, {WV}, 4\ns_add_u32 s13, s13, {YAT}\nv_add_u32 v5, s13, v10")
a(f"s_mul_i32 s13, {WV}, 2560\ns_add_u32 s13, s13, {BREG0}\nv_add_u32 v6, s13, v254\nv_add_u32 v7, s13, v252")
a(f"v_mov_b32 v14, {CNT}")
srd(S_A, P['out'], 2621440)
a("s_cmp_lg_u32 s101, 0\ns_cbranch_scc1 L_g_fast")
if not opt("g2only", 0): spoll(hm_issue, "s_and_b32 s13, s14, s28\ns_cmp_eq_u32 s13, s28", sleep=opt('msleep', 4), issued=True, far=('s_and_b32 s13, s14, 0x3fffff', opt('mfar', 28)))
else: a("s_waitcnt vmcnt(0)")
stamp(6)
for l in ldh(0, 0) + ldh(1, 1024) + ldh(2, 2048): a(l)
a("s_waitcnt vmcnt(8)")
a("L_g_fast:")
a(f"s_add_u32 s15, s{S_MB}, 64")
nld = lambda t: 0 if t > 13 else (4 if (t < 4 or t in PK) else 9)
cur = 0
for t in range(14):
    k = t % 4; nt_ = t + 3; nk = nt_ % 4
    L = []
    if t == 2: a(sld(14, 15))
    if t == 4 and not opt("g2only", 0):
        spoll(sld(14, 15), "s_and_b32 s13, s14, s28\ns_cmp_eq_u32 s13, s28", sleep=2, issued=True)
        stamp(3)
    if nt_ == PK[0]:
        a("s_cmp_lg_u32 s35, 0\ns_cbranch_scc1 L_g_pok\ns_mov_b32 s3, 0")
        a("L_g_pw:")
        a("s_add_u32 s3, s3, 1\ns_cmp_gt_u32 s3, 2000000\ns_cbranch_scc1 L_exit")
        a("ds_read_b32 v10, v14\ns_waitcnt lgkmcnt(0)\nv_readfirstlane_b32 s13, v10\ns_cmp_eq_u32 s13, 0\ns_cbranch_scc1 L_g_pw")
        a("L_g_pok:")
    if nt_ <= 13:
        if off(nt_) - cur > 3072:
            a("\n".join(f"s_add_u32 s{18+i}, s{18+i}, {off(nt_)-cur}" for i in range(9))); cur = off(nt_)
        o = off(nt_) - cur; vv = 253 if nt_ in (6, 13) else 252
        L = ldh(nk, o, vv)
        if nt_ in PK: L += [f"ds_read_b128 {vr(G2W[nk]+4*i,4)}, v1 offset:{5120*PK.index(nt_)+1024*i}" for i in range(5)]
        elif nt_ > 3: L += ldw(nk, o, vv)
    a(f"s_waitcnt vmcnt({24 if t == 0 else nld(t+1)+nld(t+2)})" + (" lgkmcnt(0)" if t in PK else ""))
    if t == 0: stamp(7)
    n = 0; other = []
    if t in (6, 13): a(f"s_cmp_eq_u32 {WV}, 0\ns_cbranch_scc1 L_g_skip{t}")
    for i in ((1, 2, 3, 0) if t == 13 else range(4)):
        for dt in range(5):
            acc = AC2 + 4*(5*i+dt)
            a(f"v_mfma_f32_16x16x32_bf16 {vr(acc,4)}, {vr(G2W[k]+4*dt,4)}, {vr(G2H[k]+4*i,4)}, " + ("0" if t == 0 and i else vr(acc,4)))
            if n < len(L): a(L[n]); other.append(L[n])
            if t == 13:
                pi = {2: 1, 3: 2, 0: 3}.get(i)
                if pi:
                    w_ = f"ds_write_b128 v1, {vr(AC2+4*(5*pi+dt),4)} offset:{5120*(pi-1)+1024*dt}"; a(w_); other.append(w_)
            n += 1
    if t in (6, 13):
        a(f"s_branch L_g_join{t}")
        a(f"L_g_skip{t}:")
        a("s_nop 7")
        for x in other: a(x)
        a(f"L_g_join{t}:")
stamp(8)
a("s_waitcnt lgkmcnt(0)\ns_barrier")
stamp(9)
R_ = 144
for q in range(10): a(f"ds_read_b128 {vr(R_+4*q,4)}, v{2+q//5} offset:{1024*(q%5)}")
for dt in range(5): a(f"ds_read_b64_tr_b16 {vr(16+2*dt,2)}, v5 offset:{2048*dt}")
for q in range(10):
    a(f"s_waitcnt lgkmcnt({14 if q < 5 else 19-q})")
    dt = q % 5
    for h in range(2): a(f"v_pk_add_f32 {vr(AC2+4*dt+2*h,2)}, {vr(AC2+4*dt+2*h,2)}, {vr(R_+4*q+2*h,2)}")
    if q < 5: a(f"ds_read_b128 {vr(R_+40+4*q,4)}, v4 offset:{1024*q}")
for dt in range(5):
    a(f"s_waitcnt lgkmcnt({9-dt})")
    for h in range(2):
        a(f"v_lshlrev_b32 v10, 16, v{16+2*dt+h}\nv_and_b32 v11, 0xffff0000, v{16+2*dt+h}\nv_pk_add_f32 {vr(AC2+4*dt+2*h,2)}, {vr(AC2+4*dt+2*h,2)}, v[10:11]")
a("s_waitcnt lgkmcnt(0)")
for dt in range(5):
    for h in range(2): a(f"v_pk_add_f32 {vr(AC2+4*dt+2*h,2)}, {vr(AC2+4*dt+2*h,2)}, {vr(R_+40+4*dt+2*h,2)}")
    for h in range(2): a(f"v_cvt_pk_bf16_f32 v{32+2*dt+h}, v{AC2+4*dt+2*h}, v{AC2+4*dt+2*h+1}")
    a(f"ds_write_b64 v6, {vr(32+2*dt,2)} offset:{32*dt}")
for q in range(3): a(f"ds_read_b128 {vr(48+4*q,4)}, v7 offset:{1024*q}")
for q in range(3):
    a(f"s_waitcnt lgkmcnt({2-q})\nbuffer_store_dwordx4 {vr(48+4*q,4)}, v{OUTV[q]}, {SA}, s27 offen")
stamp(10)
endp()

a("L_park:")
if opt("p1only", 0): endp()
a(tile_rc(12, 9, 10))
for i in range(1, 5): a(f"v_add_u32 v{1+i}, {55296*i}, v1")
a(f"s_mul_i32 s12, s9, {5*55296}\ns_add_u32 s12, s12, {W2F}\ns_mov_b32 s10, 0\ns_mov_b32 s3, 0")
spoll(wc_issue, wc_test, sleep=10)
if not opt("epark", 15):
    a(f"v_mov_b32 v10, {CNT+8}\ns_mov_b32 s11, 0")
    a("L_pk_w:")
    a("s_add_u32 s11, s11, 1\ns_cmp_gt_u32 s11, 200000\ns_cbranch_scc1 L_exit\ns_sleep 2")
    a("ds_read_b32 v11, v10\ns_waitcnt lgkmcnt(0)\nv_readfirstlane_b32 s13, v11\ns_cmp_eq_u32 s13, 0\ns_cbranch_scc1 L_pk_w")
stamp(11)
a("L_pk_loop:")
for p in range(3):
    a(f"s_add_u32 s13, s12, {off(PK[p])}")
    for i in range(5): a(f"s_add_u32 m0, s10, {5120*p+1024*i}\nbuffer_load_dwordx4 v{1+i}, {WS}, s13 offen{G2F} lds")
    if opt("epark", 15): a(f"s_waitcnt vmcnt({opt('epark', 15)})")
a(f"s_cmp_eq_u32 s3, 0\ns_cselect_b32 s13, 6, 7\ns_lshl_b32 s13, s13, 10\ns_add_u32 s12, s12, s13\ns_add_u32 s10, s10, {AREG}\ns_add_u32 s3, s3, 1\ns_cmp_lt_u32 s3, 4\ns_cbranch_scc1 L_pk_loop")
a(f"v_mov_b32 v2, {CNT}\nv_mov_b32 v3, 1\ns_waitcnt vmcnt(0)\nds_write_b32 v2, v3\ns_waitcnt lgkmcnt(0)")
stamp(12)
endp()

a("L_fetch:")
if opt("p1only", 0): endp()
a(tile_rc(8, 9, 10))
a("s_mul_i32 s11, s8, 81920")
a(f"v_mov_b32 v1, 0\ns_lshl_b32 s13, s9, 2\ns_add_u32 s13, s13, s{S_XR}\ns_lshl_b32 s13, s13, 7\ns_add_u32 s13, s13, {YAC}")
spoll(sld(12, 13), "s_cmp_ge_u32 s12, 80", sleep=opt('ysleep', 8), far=('s_cmp_ge_u32 s12, 24', opt('yfar', 32)))
stamp(11)
a(f"s_mul_i32 s10, s9, 10240\ns_add_u32 s11, s11, s10\ns_add_u32 s11, s11, {YA}\nv_lshlrev_b32 v1, 4, v0")
for q in range(10):
    a(f"buffer_load_dwordx4 {vr(16+4*q,4)}, v1, {WS}, s11 offen sc1\ns_add_u32 s11, s11, 1024")
a(f"v_add_u32 v1, {YAT}, v1")
for q in range(10):
    a(f"s_waitcnt vmcnt({9-q})\nds_write_b128 v1, {vr(16+4*q,4)} offset:{1024*q}")
a("s_waitcnt lgkmcnt(0)")
stamp(12)
a("s_barrier")
endp()

c_issue = sld(33, 100)
c_test = "s_cmp_ge_u32 s33, 64"
clr_s = f"s_load_dwordx4 s[28:31], s[{P['dbg']}:{P['dbg']+1}], 0"
a("L_aux:")
a(f"s_sub_u32 s8, s{S_J}, s8\ns_and_b32 s15, {WV}, 3\ns_mov_b32 s35, 0\nv_mov_b32 v230, 0\ns_mov_b32 s71, 0\ns_mov_b32 s97, 0\ns_mov_b32 s70, 0\ns_mul_i32 s69, {WV}, {AREG}")
a(f"s_lshl_b32 s9, s{S_XR}, 4\ns_lshl_b32 s10, s{S_XC}, 3\ns_add_u32 s9, s9, s10\ns_add_u32 s9, s9, s8")
RAW, DV = 164, 64
a("v_and_b32 v238, 3, v0\nv_lshlrev_b32 v238, 2, v238")
a(f"s_cmp_ge_u32 s8, 8\ns_cbranch_scc1 L_nolnwg\ns_cmp_lt_u32 {WV}, 4\ns_cbranch_scc1 L_lnw")
a(f"s_lshl_b32 s{S_CH}, s9, 2\ns_add_u32 s{S_CH}, s{S_CH}, s15\ns_branch L_par")
a("L_nolnwg:")
a(f"s_mul_i32 s10, s{S_XR}, 12\ns_lshl_b32 s11, s{S_XC}, 2\ns_add_u32 s10, s10, s11\ns_add_u32 s10, s10, s8\ns_lshl_b32 s10, s10, 3\ns_add_u32 s10, s10, {WV}\ns_add_u32 s{S_CH}, s10, 192")
a(f"s_lshl_b32 s10, s{S_XC}, 4\ns_add_u32 s10, s10, s8\ns_cmp_lg_u32 s10, 8\ns_cbranch_scc1 L_par")
a(f"s_lshl_b32 s10, s{S_XR}, 15\ns_lshl_b32 s11, {WV}, 12\ns_add_u32 s10, s10, s11\ns_add_u32 s10, s10, {CLR}\nv_lshlrev_b32 v1, 4, v0\ns_mov_b32 s35, 5")
zero(4, 4)
for i in range(4): a(f"buffer_store_dwordx4 v[4:7], v1, {WS}, s10 offen offset:{1024*i} sc1")
a("L_par:")
a(f"s_lshl_b32 s10, s{S_CH}, 8\nv_lshl_add_u32 v1, v0, 2, s10")
for i, nm in enumerate(["are", "aim", "bre", "bim", "cre", "cim"]):
    a(f"global_load_dword v{240+i}, v1, s[{P[nm]}:{P[nm]+1}]{NT1}")
a(f"s_lshl_b32 s10, s{S_CH}, 1\nv_mov_b32 v1, s10\nglobal_load_ushort v246, v1, s[{P['ldt']}:{P['ldt']+1}]")
a(f"global_load_ushort v147, v1, s[{P['dsk']}:{P['dsk']+1}]")
a("s_cmp_lt_u32 s8, 8\ns_cbranch_scc1 L_wrole\ns_cmp_lg_u32 s35, 5\ns_cbranch_scc1 L_cs")
a(f"s_waitcnt vmcnt(8)\ns_barrier\ns_cmp_lg_u32 {WV}, 0\ns_cbranch_scc1 L_cs")
a(f"s_lshl_b32 s10, s{S_XR}, 2\nv_mov_b32 v2, 1\nv_mov_b32 v4, 0\ns_mov_b64 exec, 1\nbuffer_store_dword v2, v4, {DBG}, s10 offen sc1\ns_mov_b64 exec, -1\ns_waitcnt vmcnt(1)")
stamp(1)
a("L_cs:")
a(f"s_mov_b32 s35, 0\ns_sub_u32 s9, s8, 8\ns_lshl_b32 s10, s{S_XR}, 2\ns_lshl_b32 s10, s10, s{S_XC}\ns_add_u32 s9, s9, s10")
a(f"s_cmp_eq_u32 s{S_XC}, 0\ns_cselect_b32 s10, 8, 3\ns_movk_i32 s11, 120\ns_mul_i32 s9, s9, s10\ns_add_u32 s9, s9, {WV}\ns_cmp_ge_u32 {WV}, s10\ns_cbranch_scc1 L_kgen\ns_cmp_ge_u32 s9, s11\ns_cbranch_scc1 L_kgen")
a(f"s_and_b32 s15, s9, 3\ns_lshr_b32 s9, s9, 2\ns_mul_i32 s10, s{S_XC}, 30\ns_add_u32 s9, s9, s10")
a("s_mul_i32 s12, s15, 552960\ns_lshl_b32 s11, s9, 6\ns_add_u32 s71, s12, s11")
a(f"v_and_b32 v4, 31, v0\nv_lshlrev_b32 v4, 1, v4\nv_add_u32 v4, s11, v4\nglobal_load_ushort v145, v4, s[{P['b1']}:{P['b1']+1}]")
a("v_lshrrev_b32 v2, 2, v0\nv_and_b32 v3, 3, v0\nv_mul_u32_u24 v1, 3456, v2\nv_lshl_add_u32 v230, v3, 4, v1\ns_mov_b32 s35, 2\ns_mov_b32 s97, 10\ns_mov_b32 s70, 55296\ns_branch L_kgen")
a("L_wrole:")
W2R = lambda i: (RAW + 4*i) if i < 10 else (148 + 4*(i-10))
srd(S_B, P['w2'], 2211840)
a("v_lshrrev_b32 v8, 3, v0\nv_mul_u32_u24 v8, 1280, v8\nv_and_b32 v9, 7, v0\nv_lshl_add_u32 v230, v9, 4, v8\ns_lshl_b32 s10, s15, 6\ns_add_u32 s10, s10, s9")
a("s_mul_i32 s11, s10, 6554\ns_lshr_b32 s11, s11, 16\ns_mul_i32 s12, s11, 10\ns_sub_u32 s12, s10, s12")
a("s_mul_i32 s71, s11, 122880\ns_lshl_b32 s13, s12, 7\ns_add_u32 s71, s71, s13")
a(f"s_mul_i32 s96, s12, 216\ns_and_b32 s13, s11, 1\ns_mul_i32 s13, s13, 27\ns_add_u32 s96, s96, s13\ns_lshr_b32 s13, s11, 1\ns_mul_i32 s13, s13, 3\ns_add_u32 s96, s96, s13\ns_lshl_b32 s96, s96, 10\ns_add_u32 s96, s96, {W2F}")
a(f"s_cmp_lt_u32 s10, 180\ns_cselect_b32 s97, 12, 0\ns_cselect_b32 s35, 1, 6\ns_movk_i32 s70, 10240\ns_setprio {opt('w1prio', 0)}\ns_barrier")
a("L_kgen:")
a("s_mov_b32 s68, 0\ns_mov_b32 m0, s69")
a(lnc_addr)
a(f"s_mov_b32 s101, 0\nv_mov_b32 v146, 0\nv_mov_b32 v253, 0\ns_cmp_lt_u32 {WV}, 4\ns_cbranch_scc1 L_kg_nocs")
conv_setup()
a("L_kg_nocs:")
a("v_and_b32 v2, 31, v0\nv_mul_u32_u24 v2, 272, v2\nv_lshrrev_b32 v3, 5, v0\nv_lshl_add_u32 v2, v3, 4, v2\nv_add_u32 v228, s69, v2")
KA = 208
zero(KA, 16)
a("s_mov_b32 s3, 0\ns_waitcnt vmcnt(1)")
stamp(3)
a(f"v_lshlrev_b32 v3, 16, v246\nv_mul_f32 v3, {f32(math.log2(math.e))}, v3\nv_exp_f32 v3, v3\nv_cvt_pk_bf16_f32 v3, v3, v3\nv_lshlrev_b32 v229, 16, v3")
a("L_kg_loop:")
for i in range(6): a(f"v_and_b32 v{4+i}, 0xffff0000, v{240+i}\nv_lshlrev_b32 v{240+i}, 16, v{240+i}")
for i in range(4): a(f"v_mul_f32 v{4+i}, v229, v{4+i}")
a(f"v_mul_f32 v4, {f32(math.log2(math.e))}, v4\nv_mul_f32 v5, {f32(1/(2*math.pi))}, v5")
Z1, Z8, Z256, W = 10, 12, 14, 16
for k, z in ((1, Z1), (8, Z8), (256, Z256)):
    a(f"v_mul_f32 v20, {f32(k)}, v4\nv_mul_f32 v21, {f32(k)}, v5\nv_fract_f32 v21, v21\nv_exp_f32 v20, v20\nv_cos_f32 v{z}, v21\nv_sin_f32 v{z+1}, v21")
    neg = " neg_hi:[0,1]" if k == 8 else ""
    a(f"v_pk_mul_f32 {vr(z,2)}, {vr(z,2)}, v[20:21] op_sel:[0,0] op_sel_hi:[1,0]{neg}")
cmul(W, 8, 6, 20)
rowof = {}
h0 = [[0,1,2,3],[4,5,6,7],[1024,1032,1280,1288],[1536,1544,1792,1800]]
h1 = [[256,258,260,262],[264],[512,516,520],[768,772,776]]
for q in range(4):
    for i, v in enumerate(h0[q]): rowof[v] = 8*q + i
    for i, v in enumerate(h1[q]): rowof[v] = 8*q + 4 + i
cv = [0]
def put(src, row):
    t = 24 + (cv[0] % 4); cv[0] += 1
    a(f"v_cvt_pk_bf16_f32 v{t}, v{src}, v{src+1}\nds_write_addtid_b32 v{t} offset:{row*272}")
G = {0: W}
opsG = [lambda: put(W, rowof[0])]
for b in range(1, 9):
    G[b] = 32 + 2*b
    opsG.append(lambda b=b: (cmul(G[b], G[b-1], Z1, 20), put(G[b], rowof[b]) if b < 8 else None))
Pq = {1: Z256}
for q in range(1, 8):
    if q > 1:
        Pq[q] = 52 + 2*(q & 1)
        opsG.append(lambda q=q: cmul(Pq[q], Pq[q-1], Z256, 20))
    ds = {1: (0,2,4,6,8), 2: (0,4,8), 3: (0,4,8)}.get(q, (0, 8))
    for n, d in enumerate(ds):
        opsG.append(lambda q=q, d=d, n=n: (cmul(56+2*(n&1), G[d], Pq[q], 20), put(56+2*(n&1), rowof[256*q+d])))
opsE = [lambda: a(f"v_mov_b32 v28, 0x3f80\nds_write_addtid_b32 v28 offset:{32*272}"), lambda: put(Z8, 33)]
for j in range(2, 32):
    src = Z8 if j == 2 else 60 + 2*((j-1) & 1)
    dst = 60 + 2*(j & 1)
    opsE.append(lambda src=src, dst=dst, j=j: (cmul(dst, src, Z8, 22), put(dst, 32+j)))
for i in range(max(len(opsG), len(opsE))):
    if i < len(opsE): opsE[i]()
    if i < len(opsG): opsG[i]()
    if i < 12 and i % 2 == 0:
        a(f"s_cmp_le_u32 s97, {i}\ns_cbranch_scc1 L_kg_nl{i}")
        for k_ in (i, i+1): a(f"buffer_load_dwordx4 {vr(W2R(k_),4)}, v230, {SB}, s71 offen\ns_add_u32 s71, s71, s70")
        a(f"L_kg_nl{i}:")
    if i == 12 and opt("eu", 1):
        a(f"s_lshl_b32 s10, s3, 2\ns_and_b32 s10, s10, {WV}\ns_cbranch_scc1 L_eu0")
        a("L_kg_ne1:")
    if i == 31 and opt("eu", 1):
        a("s_cmp_eq_u32 s68, 1\ns_cbranch_scc1 L_eu")
        a("L_kg_ne2:")
    if i == opt("wsig", 11):
        a("s_cmp_eq_u32 s35, 6\ns_cbranch_scc1 L_w2sig")
        a("L_kg_nsig:")
a("s_waitcnt lgkmcnt(0)")
for k in range(8):
    a(f"ds_read_b128 {vr(64+8*k,4)}, v228 offset:{32*k}\nds_read_b128 {vr(68+8*k,4)}, v228 offset:{32*272+32*k}")
for k in range(8):
    a(f"s_waitcnt lgkmcnt({14-2*k})")
    a(f"v_mfma_f32_32x32x16_bf16 {vr(KA,16)}, {vr(64+8*k,4)}, {vr(68+8*k,4)}, {vr(KA,16)}")
a("s_cmp_lg_u32 s3, 0\ns_cbranch_scc1 L_kg_done")
a(clr_s)
a("s_mov_b32 s3, 1\ns_mov_b32 s97, 0\ns_cmp_eq_u32 s35, 1\ns_cbranch_scc1 L_w2mid\ns_cmp_lg_u32 s35, 2\ns_cbranch_scc1 L_kg_loop\ns_branch L_csum")
a("L_eu0:")
a("s_waitcnt lgkmcnt(0)\ns_and_b32 s10, s28, s29\ns_and_b32 s11, s30, s31\ns_and_b32 s10, s10, s11\ns_cselect_b32 s35, 4, s35\ns_cmp_lt_u32 s35, 4\ns_cbranch_scc1 L_kg_ne1")
a(c_issue)
a("s_mov_b32 s68, 1\ns_branch L_kg_ne1")
a("L_eu:")
a("s_mov_b32 s68, 0\ns_waitcnt lgkmcnt(0)")
a(c_test)
a("s_cbranch_scc0 L_kg_ne2")
uloads()
a("s_mov_b32 s68, 2\ns_branch L_kg_ne2")
def need_clr(tag):
    a(f"s_waitcnt lgkmcnt(0)\ns_and_b32 s28, s28, s29\ns_and_b32 s30, s30, s31\ns_and_b32 s28, s28, s30\ns_cbranch_scc1 L_clr_{tag}")
    poll(clr_issue(239, 238), clr_test(239), sleep=8, issued=False)
    a(f"L_clr_{tag}:")
def touch():
    if not opt("touch", 0): return
    n = 270 if RS else 135
    a(f"s_and_b32 s10, s8, 7\ns_lshl_b32 s10, s10, 3\ns_add_u32 s10, s10, {WV}")
    if RS: a(f"s_and_b32 s11, s2, 7\ns_lshl_b32 s11, s11, 3\ns_add_u32 s10, s10, s11\ns_and_b32 s10, s10, 63\ns_mul_i32 s10, s10, {n*128}")
    else: a(f"s_lshl_b32 s11, s{S_XR}, 4\ns_add_u32 s10, s10, s11\ns_and_b32 s10, s10, 63\ns_mul_i32 s10, s10, {n*128}\ns_mul_i32 s11, s{S_XC}, 1105920\ns_add_u32 s10, s10, s11")
    a(f"s_add_u32 s10, s10, {W2F}\nv_lshlrev_b32 v4, 7, v0")
    for i in range(n // 64): a(f"buffer_load_dword v144, v4, {WS}, s10 offen sc1\ns_add_u32 s10, s10, 8192")
    a(few((1 << (n % 64)) - 1, f"buffer_load_dword v144, v4, {WS}, s10 offen sc1"))
def lds_wait(tag, target):
    a("s_mov_b32 s12, 0")
    a(f"L_sb{tag}:")
    a("s_add_u32 s12, s12, 1\ns_cmp_gt_u32 s12, 2000000\ns_cbranch_scc1 L_exit")
    a(f"ds_read_b32 v15, v14\ns_waitcnt lgkmcnt(0)\nv_readfirstlane_b32 s11, v15\ns_cmp_lt_u32 s11, {target}\ns_cbranch_scc1 L_sb{tag}")
a("L_lnw:")
a("s_lshl_b32 s10, s9, 5\ns_lshl_b32 s11, s15, 3\ns_add_u32 s14, s10, s11\ns_mul_i32 s11, s14, 1280")
a("v_lshrrev_b32 v2, 4, v0\nv_and_b32 v3, 15, v0\nv_mul_u32_u24 v1, 2560, v2\nv_lshl_add_u32 v1, v3, 4, v1")
for sg in range(2):
    for i in range(5):
        a(f"buffer_load_dwordx4 {vr(RAW+20*sg+4*i,4)}, v1, {SA}, s11 offen offset:{sg*1280+i*256}{NT}")
a(f"v_mov_b32 v4, {CNT}\nv_mov_b32 v6, 0\nv_mov_b32 v7, 0\nds_write_b64 v4, v[6:7]\ns_waitcnt lgkmcnt(0)\ns_barrier")
a("s_lshl_b32 s11, s15, 4\nv_lshlrev_b32 v8, 2, v2\nv_add_u32 v8, s11, v8")
for i in range(5):
    a(f"v_add_u32 v4, {16*i}, v3\nv_mul_u32_u24 v5, 3277, v4\nv_lshrrev_b32 v5, 16, v5\nv_mul_u32_u24 v5, {BREG-20*528}, v5\nv_mul_u32_u24 v4, 528, v4\nv_add3_u32 v{150+i}, v4, v5, v8")
a(f"s_setprio 2\nv_mov_b32 v14, {CNT}\nv_lshrrev_b32 v2, 4, v0\ns_mov_b32 s12, 0x3f803f80")
zero(4, 4)
a("s_waitcnt vmcnt(0)")
stamp(1)
for sg in range(2):
    for k in range(20):
        a(f"v_dot2_f32_bf16 v{4+2*sg+(k&1)}, v{RAW+20*sg+k}, s12, v{4+2*sg+(k&1)}")
a("v_add_f32 v4, v4, v5\nv_add_f32 v6, v6, v7")
def unp(sg, ks):
    for k in ks:
        d = DV + 40*sg + 2*k
        a(f"v_lshlrev_b32 v{d}, 16, v{RAW+20*sg+k}\nv_and_b32 v{d+1}, 0xffff0000, v{RAW+20*sg+k}")
for n, sh in enumerate((8, 4, 2, 1)):
    a(f"v_add_f32_dpp v4, v4, v4 row_ror:{sh} row_mask:0xf bank_mask:0xf\nv_add_f32_dpp v6, v6, v6 row_ror:{sh} row_mask:0xf bank_mask:0xf")
    unp(0, range(5*n, 5*n+5))
a(f"v_mul_f32 v4, {f32(1/640)}, v4\nv_mul_f32 v6, {f32(1/640)}, v6")
a("v_cvt_pk_bf16_f32 v5, v4, v6\nv_lshlrev_b32 v8, 16, v5\nv_and_b32 v9, 0xffff0000, v5")
a("v_sub_f32 v56, 0, v8\nv_sub_f32 v57, 0, v8\nv_sub_f32 v58, 0, v9\nv_sub_f32 v59, 0, v9")
zero(10, 4)
unp(1, range(20))
for sg in range(2):
    for k in range(20):
        d = DV + 40*sg + 2*k
        a(f"v_pk_add_f32 {vr(d,2)}, {vr(d,2)}, {vr(56+2*sg,2)}")
    for k in range(20):
        d = DV + 40*sg + 2*k
        a(f"v_pk_fma_f32 {vr(10+2*sg,2)}, {vr(d,2)}, {vr(d,2)}, {vr(10+2*sg,2)}")
a("v_add_f32 v10, v10, v11\nv_add_f32 v12, v12, v13")
def rnd(sg, ks):
    for k in ks:
        d = DV + 40*sg + 2*k
        a(f"v_cvt_pk_bf16_f32 v{RAW+20*sg+k}, v{d}, v{d+1}")
for n, sh in enumerate((8, 4, 2, 1)):
    a(f"v_add_f32_dpp v10, v10, v10 row_ror:{sh} row_mask:0xf bank_mask:0xf\nv_add_f32_dpp v12, v12, v12 row_ror:{sh} row_mask:0xf bank_mask:0xf")
    rnd(0, range(2*n, 2*n+2))
a("v_sub_f32 v4, v4, v8\nv_sub_f32 v6, v6, v9\nv_mul_f32 v4, v4, v4\nv_mul_f32 v6, v6, v6")
a(f"s_mov_b32 s12, {f32(1/640)}\nv_fma_f32 v4, v10, s12, -v4\nv_fma_f32 v6, v12, s12, -v6")
a("v_max_f32 v4, 0, v4\nv_max_f32 v6, 0, v6")
a("v_cvt_pk_bf16_f32 v7, v4, v6\nv_lshlrev_b32 v4, 16, v7\nv_and_b32 v6, 0xffff0000, v7")
a(f"v_add_f32 v4, {f32(1e-5)}, v4\nv_add_f32 v6, {f32(1e-5)}, v6")
a("v_cvt_pk_bf16_f32 v7, v4, v6\nv_lshlrev_b32 v4, 16, v7\nv_and_b32 v6, 0xffff0000, v7")
a("v_sqrt_f32 v4, v4\nv_sqrt_f32 v6, v6\nv_cvt_pk_bf16_f32 v7, v4, v6")
a("v_lshlrev_b32 v4, 16, v7\nv_and_b32 v6, 0xffff0000, v7\nv_rcp_f32 v60, v4\nv_rcp_f32 v61, v4\nv_rcp_f32 v62, v6\nv_rcp_f32 v63, v6")
a("v_and_b32 v12, 0xffff, v5\nv_or_b32 v12, v12, v4\nv_lshrrev_b32 v13, 16, v5\nv_or_b32 v13, v13, v6")
a(f"s_lshl_b32 s11, s14, 2\ns_add_u32 s11, s11, {STATS}\nv_lshlrev_b32 v1, 3, v2")
a(clr_s)
rnd(0, range(8, 20)); rnd(1, range(20))
unp(0, range(20)); unp(1, range(20))
for sg in range(2):
    for k in range(20):
        d = DV + 40*sg + 2*k
        a(f"v_pk_mul_f32 {vr(d,2)}, {vr(d,2)}, {vr(60+2*sg,2)}")
for k in range(20):
    for h in range(2):
        d = DV + 2*k + h
        a(f"v_cvt_pk_bf16_f32 v{d}, v{d}, v{d+40}")
    d = DV + 2*k
    a(f"ds_write2_b32 v{150+k//4}, v{d}, v{d+1} offset0:{(k%4)*32} offset1:{(k%4)*32+16}")
a("v_mov_b32 v15, 1\nds_add_u32 v14, v15")
need_clr("ln")
a(f"s_mov_b32 exec_lo, 0x10001\ns_mov_b32 exec_hi, 0x10001\nbuffer_store_dwordx2 v[12:13], v1, {WS}, s11 offen sc1\ns_mov_b64 exec, -1")
stamp(2)
a("v_lshrrev_b32 v3, 5, v0\nv_lshlrev_b32 v2, 4, v0\nv_lshl_add_u32 v1, v3, 4, v2\nv_add_u32 v1, s69, v1")
a("s_mul_i32 s10, s9, 40960\ns_mul_i32 s11, s15, 10240\ns_add_u32 s10, s10, s11")
lds_wait("b", 256)
for i in range(10): a(f"ds_read_b128 {vr(RAW+4*i,4)}, v1 offset:{1056*i}")
for i in range(10):
    a(f"s_waitcnt lgkmcnt({9-i})\nbuffer_store_dwordx4 {vr(RAW+4*i,4)}, v2, {WS}, s10 offen sc1\ns_add_u32 s10, s10, 1024")
a(f"s_lshl_b32 s10, s15, 11\ns_add_u32 s10, s10, {LNC}\nv_lshlrev_b32 v4, 7, v0\nv_mov_b32 v5, 1")
a(f"s_waitcnt vmcnt(0)\ns_mov_b64 exec, 0xffff\nbuffer_atomic_add v5, v4, {WS}, s10 offen sc1\ns_mov_b64 exec, -1\ns_setprio 0")
stamp(4)
a("s_lshl_b32 s8, s9, 2\ns_add_u32 s8, s8, s15")
a("s_cmp_lg_u32 s8, 255\ns_cbranch_scc1 L_norelay")
a(f"v_lshlrev_b32 v6, 6, v0\ns_mov_b32 s8, {W2C}")
poll(few(3, f"buffer_load_dword v7, v6, {DBG}, 0 offen offset:128 sc1"),
     "v_readlane_b32 s9, v7, 0\nv_readlane_b32 s10, v7, 1\ns_add_u32 s9, s9, s10\ns_cmp_ge_u32 s9, 64", sleep=4, issued=False)
stamp(11)
a(f"s_mov_b32 exec_hi, 0\nbuffer_store_dword v5, v4, {WS}, s8 offen offset:1024 sc1\ns_mov_b32 exec_hi, -1")
a("L_norelay:")
a("s_mov_b32 s35, 1\ns_branch L_g2")
a("L_csum:")
a("s_setprio 3\ns_mov_b32 s12, 0x00003f80\ns_mov_b32 s13, 0x3f800000\nv_and_b32 v3, 3, v0")
zero(4, 8)
a("s_waitcnt vmcnt(0)")
for i in range(10):
    for k in range(4):
        a(f"v_dot2_f32_bf16 v{4+2*k}, v{RAW+4*i+k}, s12, v{4+2*k}\nv_dot2_f32_bf16 v{5+2*k}, v{RAW+4*i+k}, s13, v{5+2*k}")
for sh in (8, 4):
    for r in range(8): a(f"v_add_f32_dpp v{4+r}, v{4+r}, v{4+r} row_ror:{sh} row_mask:0xf bank_mask:0xf")
a("v_lshrrev_b32 v12, 4, v0\nv_lshlrev_b32 v12, 7, v12\nv_lshl_add_u32 v12, v3, 5, v12\nv_add_u32 v12, s69, v12")
a("ds_write_b128 v12, v[4:7]\nds_write_b128 v12, v[8:11] offset:16")
a("v_and_b32 v12, 31, v0\nv_lshl_add_u32 v13, v12, 2, s69")
for p in range(4): a(f"ds_read_b32 v{16+p}, v13 offset:{128*p}")
a("s_waitcnt lgkmcnt(0)\nv_add_f32 v16, v16, v17\nv_add_f32 v18, v18, v19\nv_add_f32 v16, v16, v18")
a("v_cvt_pk_bf16_f32 v4, v16, v16\nv_lshlrev_b32 v5, 16, v4\nv_sub_f32 v5, v16, v5")
a("v_cvt_pk_bf16_f32 v6, v16, v5\nv_and_b32 v7, 0xffff0000, v6\nv_sub_f32 v7, v5, v7")
a("v_cvt_pk_bf16_f32 v7, v7, v7\nv_and_b32 v7, 0xffff, v7\nv_or_b32 v7, 1, v7")
a(f"s_lshl_b32 s12, s9, 8\ns_mul_i32 s13, s15, {CSP}\ns_add_u32 s12, s12, s13\ns_add_u32 s12, s12, {CSUM}\nv_lshlrev_b32 v12, 3, v12")
need_clr("cs")
a("v_lshl_or_b32 v7, v145, 16, v7")
a(f"s_mov_b32 exec_hi, 0\nbuffer_store_dwordx2 v[6:7], v12, {WS}, s12 offen sc1\ns_mov_b32 exec_hi, -1")
stamp(2)
a("s_setprio 0\ns_mov_b32 s35, 4\ns_branch L_kg_loop")
a("L_w2mid:")
a("s_setprio 3")
a("v_lshlrev_b32 v2, 4, v0\ns_waitcnt vmcnt(0) lgkmcnt(0)")
for i in range(12): a(f"ds_write_b128 v{cLIN}, {vr(W2R(i),4)} offset:{1024*i}")
a("v_lshrrev_b32 v6, 5, v0\nv_bfe_u32 v7, v0, 4, 1\nv_lshlrev_b32 v6, 4, v6\nv_lshl_add_u32 v6, v7, 2, v6\nv_bfe_u32 v7, v0, 2, 2\nv_add_u32 v6, v6, v7")
a("v_lshlrev_b32 v6, 7, v6\nv_and_b32 v7, 3, v0\nv_lshl_add_u32 v6, v7, 3, v6\nv_add_u32 v6, s69, v6")
for dt in range(4):
    for u_ in range(3):
        for h in range(2): a(f"ds_read_b64_tr_b16 {vr(W2R(3*dt+u_)+2*h,2)}, v6 offset:{4096*u_+1024*h+32*dt}")
    for u_ in range(3):
        a(f"s_waitcnt lgkmcnt({4-2*u_})\nbuffer_store_dwordx4 {vr(W2R(3*dt+u_),4)}, v2, {WS}, s96 offen offset:{1024*u_} sc1")
    a("s_add_u32 s96, s96, 55296")
a("s_setprio 2\ns_mov_b32 s35, 6\ns_branch L_kg_loop")
a("L_w2sig:")
a(f"v_mov_b32 v4, {CNT+4}\nv_mov_b32 v5, 1\nv_mov_b32 v6, 0\ns_waitcnt vmcnt(0)\ns_mov_b64 exec, 1\nds_add_rtn_u32 v7, v4, v5\ns_waitcnt lgkmcnt(0)\nv_readfirstlane_b32 s10, v7")
a(f"s_and_b32 s11, s9, 1\ns_lshl_b32 s11, s11, 6\ns_add_u32 s11, s11, 128\ns_cmp_eq_u32 s10, 3\ns_cselect_b32 s11, s11, {OOB}\nbuffer_atomic_add v5, v6, {DBG}, s11 offen sc1\ns_mov_b64 exec, -1")
stamp(2)
a(f"s_setprio {opt('wprio', 1)}\ns_mov_b32 s35, 0\ns_branch L_kg_nsig")
a("L_kg_done:")
a("s_waitcnt vmcnt(4)")
a("s_cmp_ge_u32 s35, 3\ns_cbranch_scc1 L_clr_fin")
a(clr_s)
need_clr("fin")
a(f"s_waitcnt lgkmcnt(0)\ns_cmp_lt_u32 {WV}, 4\ns_cbranch_scc1 L_kg_nc\ns_cmp_eq_u32 s68, 2\ns_cbranch_scc1 L_kg_nc\ns_waitcnt vmcnt(0)")
a(c_issue)
a("L_kg_nc:")
a("s_nop 7")
stamp(4)
a(f"s_setprio {opt('pprio', 2)}")
r = lambda i: KA + i
a("v_lshlrev_b32 v1, 4, v0\nv_add_u32 v13, s69, v1")
zero(4, 4)
for i in range(3): a(f"ds_write_b128 v13, v[4:7] offset:{SCR+1024*i}")
a("v_and_b32 v3, 31, v0\nv_lshlrev_b32 v2, 4, v3\nv_sub_u32 v2, s69, v2\nv_add_u32 v2, 512, v2")
def pack(o, pairs):
    for i, (lo, hi) in enumerate(pairs): a(f"v_cvt_pk_bf16_f32 v{o+i}, {lo}, {hi}")
R = lambda i: f"v{KA+i}"
pack(16, [(R(7),R(6)),(R(5),R(4)),(R(3),R(2)),(R(1),R(0))])
pack(20, [(R(4),R(3)),(R(2),R(2)),(R(2),R(1)),(R(0),R(0))])
pack(24, [("0","0"),(R(9),R(9)),(R(9),R(8)),(R(8),R(8))])
pack(28, [(R(9),R(10)),(R(13),R(14))])
pack(30, [(R(9),R(11)),(R(13),R(15))])
a(f"v_and_b32 v8, 1, v3\nv_and_b32 v10, 30, v3\nv_mul_u32_u24 v9, 320, v8\nv_mul_u32_u24 v8, 640, v8\ns_add_u32 s10, s69, {T2}\nv_sub_u32 v10, s10, v10\nv_add_u32 v8, v8, v10\nv_add_u32 v9, v9, v10")
a("s_mov_b32 exec_hi, 0")
a(f"ds_write_b128 v2, v[16:19] offset:{IMG+1072-512}")
for q in range(4):
    for cp in range(2): a(f"ds_write_b16{'_d16_hi' if q & 1 else ''} v9, v{30+q//2} offset:{T3-T2 + 160*cp + 2*(63-16*q-cp)}")
a("s_mov_b32 exec_hi, -1\ns_mov_b32 exec_lo, 0")
a(f"ds_write_b128 v2, v[20:23] offset:{IMG+560-512}")
for q in range(2):
    for w in range(2):
        for cp in range(2): a(f"ds_write_b16{'_d16_hi' if w else ''} v8, v{28+q} offset:{320*w + 160*cp + 2*(47-16*q-cp)}")
a(f"s_mov_b32 exec_hi, 1\nds_write_b128 v2, v[24:27] offset:{IMG+48-512}\nds_write_b16 v8, v4 offset:{2*47}\nds_write_b16 v8, v4 offset:{160+2*46}\ns_mov_b64 exec, -1")
a(f"s_cmp_lt_u32 {WV}, 4\ns_cbranch_scc1 L_kexp")
a("s_cmp_eq_u32 s68, 2\ns_cbranch_scc1 L_cv_kpart\ns_waitcnt lgkmcnt(0)")
a(c_test)
a("s_cbranch_scc0 L_cv_kpart")
uloads()
a("s_mov_b32 s68, 2")
a("L_cv_kpart:")
B2, B3 = 164, 188
a(f"v_mov_b32 v5, s69\nds_read_u16 v34, v5 offset:{T2 + 6*160 + 2*16}")
a(f"ds_read_b128 v[16:19], v{cLIN} offset:{IMG}\nds_read_b64 v[20:21], v{cLIN} offset:{IMG+16}\nds_read_b128 v[24:27], v{cIMG2} offset:{IMG+1024}\nds_read_b64 v[28:29], v{cIMG2} offset:{IMG+1040}")
for i in range(6):
    for h in range(2): a(f"ds_read2_b32 {vr(B2+4*i+2*h,2)}, v{cT2} offset0:{4*i+2*h} offset1:{4*i+2*h+1}")
for d in range(4):
    for h in range(2): a(f"ds_read2_b32 {vr(B3+4*d+2*h,2)}, v{cT3} offset0:{8*(3-d)+2*h} offset1:{8*(3-d)+2*h+1}")
a("v_lshl_or_b32 v5, v147, 16, v147")
for k in range(4): a(f"v_and_b32 v{AD+k}, v{AD+k}, v5")
a("s_waitcnt lgkmcnt(15)\nv_lshl_or_b32 v5, v34, 16, v34")
for k in range(4): a(f"v_and_b32 v{AB+k}, v{AB+k}, v5")
for rr, (D, va, off) in enumerate(((16, cKW1, 0), (24, cKW2, 4608))):
    O = 64 + 16*rr
    for i in range(4):
        a(f"v_mov_b32 v{O+4*i}, v{D+i}\nv_mov_b32 v{O+4*i+1}, v{D+i+1}")
        a(f"v_alignbit_b32 v{O+4*i+2}, v{D+i+1}, v{D+i}, 16\nv_alignbit_b32 v{O+4*i+3}, v{D+i+2}, v{D+i+1}, 16")
        a(f"ds_write_b128 v{va}, {vr(O+4*i,4)} offset:{off + 16*i}")
a(f"ds_read_b64 {vr(A16,2)}, v{cA0}\nds_read_b64 {vr(A16+2,2)}, v{cA1}")
stamp(5)
a("s_cmp_lg_u32 s101, 0\ns_cbranch_scc1 L_cv_direct")
a("L_cv_upart:")
a(f"s_setprio {opt('pprio', 2)}")
zero(4, 4)
a(f"s_mov_b64 exec, 0x3fffffff\nds_write_b128 v{cLIN}, v[4:7] offset:{UB-480}\ns_mov_b64 exec, 3")
for o in (W3B-48, W5B-48, W7B-48, W9B-48, W9B+2032): a(f"ds_write_b128 v{cLIN}, v[4:7] offset:{o}")
a("s_mov_b64 exec, -1")
a("s_bitcmp1_b32 s68, 1\ns_cbranch_scc1 L_cv_u2")
spoll(c_issue, c_test, sleep=opt("lsleep", 6))
uloads()
a("L_cv_u2:")
a("s_mov_b32 s31, 0\ns_bitcmp1_b32 s68, 0\ns_cbranch_scc1 L_cv_u3\ns_cmp_eq_u32 s101, 0\ns_cbranch_scc1 L_cv_u3")
a(sld(31, S_MB))
a("L_cv_u3:")
stamp(6)
a("s_waitcnt vmcnt(0)")
for q in range(4): a(f"ds_write_b128 v{cLIN}, {vr(148+4*q,4)} offset:{UB+1024*q}")
SET = [(16, 24), (56, 64)]; CA = 96
a(f"v_mov_b32 v13, v{cLIN}\ns_mov_b32 s3, 0")
o = UB - 16
wrd = f"ds_read_b64 v[128:129], v13 offset:{o-8}\nds_read_b128 v[130:133], v13 offset:{o}\nds_read_b64 v[134:135], v13 offset:{o+16}"
a(wrd)
a("s_waitcnt lgkmcnt(0)\ns_and_b32 s13, s31, s101\ns_cbranch_scc0 L_cv_win")
kloads()
a("s_or_b32 s68, s68, 1")
a("L_cv_win:")
D = 128; Pf = 96
for e in range(16):
    a(f"v_lshlrev_b32 v{Pf+e}, 16, v{D+e//2}" if e % 2 == 0 else f"v_and_b32 v{Pf+e}, 0xffff0000, v{D+e//2}")
a(wrd.replace(f"offset:{o-8}", f"offset:{o-8+1024}").replace(f"offset:{o}\n", f"offset:{o+1024}\n").replace(f"offset:{o+16}", f"offset:{o+16+1024}"))
for e in range(1, 16): a(f"v_add_f32 v{Pf+e}, v{Pf+e}, v{Pf+e-1}")
for h, base in ((1, W3B), (2, W5B), (3, W7B), (4, W9B)):
    if h == 3: a("s_cmp_eq_u32 s3, 2\ns_cbranch_scc1 L_cv_wend")
    T = 112
    for i in range(8):
        b = 4+i-h-1
        a(f"v_sub_f32 v{T+i}, v{Pf+4+i+h}, v{Pf+b}" if b >= 0 else f"v_mov_b32 v{T+i}, v{Pf+4+i+h}")
    for i in range(4): a(f"v_cvt_pk_bf16_f32 v{120+4*(h&1)+i}, v{T+2*i}, v{T+2*i+1}")
    a(f"ds_write_b128 v13, {vr(120+4*(h&1),4)} offset:{base-16}")
a("v_add_u32 v13, 1024, v13\ns_add_u32 s3, s3, 1\ns_waitcnt lgkmcnt(4)\ns_branch L_cv_win")
a("L_cv_wend:")
a("s_cmp_lg_u32 s101, 0\ns_cbranch_scc1 L_cv_rk")
a("L_cv_direct:")
a(f"v_add_u32 v8, 2304, v{cA0}\nv_add_u32 v9, 2304, v{cA1}\nv_mov_b32 v10, v{cB}")
def rd(st):
    A_, B_ = SET[st]; Rr = []
    for x in range(2):
        Rr.append(f"ds_read_b64 {vr(A_+4*x,2)}, v8 offset:{2304*(1-x)}")
        Rr.append(f"ds_read_b64 {vr(A_+4*x+2,2)}, v9 offset:{2304*(1-x)}")
    for b in range(8): Rr.append(f"ds_read_b128 {vr(B_+4*b,4)}, v10 offset:{512*b}")
    return Rr
advk = ["v_subrev_u32 v8, 288, v8", "v_subrev_u32 v9, 288, v9", "v_subrev_u32 v10, 64, v10"]
for x in rd(0) + advk: a(x)
a(f"s_setprio {opt('cprio', 2)}\ns_mov_b32 s3, 0\ns_waitcnt lgkmcnt(0)")
if PROF: a("s_cmp_lt_u32 s4, 4\ns_cbranch_scc1 L_ns7")
stamp(7)
if PROF: a("L_ns7:")
def mf(n, A_, B_, c=None): a(f"v_mfma_f32_16x16x32_bf16 {vr(CA+4*n,4)}, {vr(A_,4)}, {vr(B_,4)}, {c if c else vr(CA+4*n,4)}")
for b in range(8): mf(b, AD, SET[0][1]+4*b, "0")
for b in range(6): mf(b+2, A16, SET[0][1]+4*b)
for b in range(4): mf(b+4, AB, SET[0][1]+4*b)
a("L_cv_loop:")
for st in range(2):
    A_, B_ = SET[st]; Rr = rd(1-st); n = 0
    for x in range(2):
        for b in range(8-x):
            mf(x+b, A_+4*x, B_+4*b)
            if n < 6: a(Rr[2*n]); a(Rr[2*n+1])
            elif n < 9: a(advk[n-6])
            if st == 1 and n == 12: a("s_add_u32 s3, s3, 1\ns_cmp_lt_u32 s3, 4")
            n += 1
    a("s_waitcnt lgkmcnt(0)")
a("s_cbranch_scc1 L_cv_loop")
a("L_cv_far:")
for f in range(12):
    for h in range(2): a(f"ds_read_b64_tr_b16 {vr(16+4*f+2*h,2)}, v{cW2} offset:{256*f+128*h}")
    if f == 6: a("s_waitcnt lgkmcnt(8)")
for f in range(4):
    for h in range(2): a(f"ds_read_b64_tr_b16 {vr(64+4*f+2*h,2)}, v{cW3} offset:{512*f+128*h}")
a("s_waitcnt lgkmcnt(8)")
for f in range(12):
    for n in range(2, 8):
        i = f + 8 - 2*n
        if 0 <= i < 6: mf(n, 16+4*f, B2+4*i)
a("s_waitcnt lgkmcnt(0)")
for f in range(4):
    for n in range(4+f, 8): mf(n, 64+4*f, B3+4*(n-f-4))
if PROF: a("s_cmp_lt_u32 s4, 4\ns_cbranch_scc1 L_ns8")
stamp(8)
if PROF: a("L_ns8:")
if opt("dly", 0): a(f"s_setprio 0\ns_sleep {opt('dly', 0)}")
a(f"s_lshl_b32 s14, s{S_CH}, 7\ns_add_u32 s14, s14, {YA}\ns_nop 7")
for n in range(0, 8, 2):
    o = 16 + 2*n
    a(f"v_cvt_pk_bf16_f32 v{o}, v{CA+4*n}, v{CA+4*n+1}\nv_cvt_pk_bf16_f32 v{o+1}, v{CA+4*n+2}, v{CA+4*n+3}")
    a(f"v_cvt_pk_bf16_f32 v{o+2}, v{CA+4*n+4}, v{CA+4*n+5}\nv_cvt_pk_bf16_f32 v{o+3}, v{CA+4*n+6}, v{CA+4*n+7}")
    a(f"v_permlane16_swap_b32 v{o}, v{o+2}\nv_permlane16_swap_b32 v{o+1}, v{o+3}")
    a(f"buffer_store_dwordx4 {vr(o,4)}, v{cST}, {WS}, s14 offen sc1\ns_add_u32 s14, s14, {8*81920}")
a(f"s_mul_i32 s13, s{S_CH}, 820\ns_lshr_b32 s13, s13, 16\ns_lshl_b32 s14, s13, 9\ns_add_u32 s14, s14, {YAC}\nv_lshlrev_b32 v4, 7, v0\nv_mov_b32 v5, 1")
a(f"s_waitcnt vmcnt(0)\ns_mov_b64 exec, 15\nbuffer_atomic_add v5, v4, {WS}, s14 offen sc1\ns_mov_b64 exec, -1")
a("s_setprio 0")
stamp(9)
a(f"s_cmp_eq_u32 {WV}, 7\ns_cbranch_scc1 L_fetch")
endp()
a("L_kexp:")
for q in range(3): a(f"ds_read_b128 {vr(16+4*q,4)}, v13 offset:{SCR+1024*q}")
a(f"s_lshl_b32 s9, s{S_CH}, 12\ns_add_u32 s9, s9, {KD}")
for q in range(3): a(f"s_waitcnt lgkmcnt({2-q})\nbuffer_store_dwordx4 {vr(16+4*q,4)}, v1, {WS}, s9 offen offset:{1024*q} sc1")
a(f"s_sub_u32 s8, s{S_CH}, 256\ns_lshr_b32 s8, s8, 3\ns_lshl_b32 s8, s8, 2\ns_add_u32 s8, s8, {WV}\ns_cmp_ge_u32 s8, 144\ns_cselect_b32 s12, 1, 0\ns_mul_i32 s9, s12, 144\ns_sub_u32 s8, s8, s9")
a("s_mul_i32 s9, s8, 1821\ns_lshr_b32 s9, s9, 16\ns_mul_i32 s10, s9, 36\ns_sub_u32 s8, s8, s10")
a("s_cmp_ge_u32 s8, 20\ns_cselect_b32 s10, 1, 0\ns_mul_i32 s11, s10, 20\ns_sub_u32 s8, s8, s11\ns_lshl_b32 s8, s8, 3\ns_lshl_b32 s9, s9, 1\ns_add_u32 s8, s8, s9\ns_add_u32 s8, s8, s10")
a(f"s_lshl_b32 s8, s8, 7\ns_add_u32 s8, s8, {MBOX}\ns_lshl_b32 s9, 0x1000000, s12\nv_mov_b32 v4, 0\nv_mov_b32 v5, s9")
a(f"s_waitcnt vmcnt(0)\ns_mov_b64 exec, 1\nbuffer_atomic_or v5, v4, {WS}, s8 offen sc1\ns_mov_b64 exec, -1")
stamp(12)
a("s_setprio 0\ns_mov_b32 s35, 1\ns_branch L_g2")
a("L_cv_rk:")
a("s_bitcmp1_b32 s68, 0\ns_cbranch_scc1 L_cv_k1")
spoll(sld(31, S_MB), "s_and_b32 s13, s31, s101", sleep=6)
kloads()
a("L_cv_k1:")
for q in range(3): a(f"s_waitcnt vmcnt({2-q})\nds_write_b128 v{cLIN}, {vr(32+4*q,4)} offset:{SCR+1024*q}")
stamp(4)
a("s_branch L_cv_kpart")

a("L_end:")
if PROF:
    a(f"s_lshl_b32 s93, s2, 3\ns_add_u32 s93, s93, {WV}\ns_lshl_b32 s93, s93, 6\ns_add_u32 s93, s93, {PROFB}")
    a(f"s_memrealtime s[94:95]\ns_waitcnt lgkmcnt(0)\ns_mov_b32 s87, s94\ns_mov_b32 s72, s{S_SPIN}")
    for i in range(16): a(f"v_mov_b32 v{224+i}, s{72+i}")
    a("v_mov_b32 v255, 0\ns_mov_b64 exec, 1")
    for i in range(4): a(f"buffer_store_dwordx4 {vr(224+4*i,4)}, v255, {WS}, s93 offen offset:{16*i}")
    if opt("dbgmax", 0):
        a(f"v_not_b32 v238, v238\ns_and_b32 s93, {WV}, 3\ns_cmp_lg_u32 s93, 0\ns_cbranch_scc1 L_exit")
        sel0 = {1: 14, 2: 15, 3: 1, 4: 2, 5: 5, 6: 6, 7: 8, 8: 10}
        sel4 = {9: 10, 10: 4, 11: 7, 12: 8, 13: 9}
        a(f"s_cmp_lg_u32 {WV}, 0\ns_cbranch_scc1 L_dbg4")
        for d, i in sel0.items(): a(f"buffer_atomic_umax v{224+i}, v255, {DBG}, 0 offen offset:{4*d} sc1")
        a("s_branch L_exit")
        a("L_dbg4:")
        for d, i in sel4.items(): a(f"buffer_atomic_umax v{224+i}, v255, {DBG}, 0 offen offset:{4*d} sc1")
a("L_exit:")
a("s_endpgm")

hdr = open("cdna_kernels/%s.s.ref" % NAME).read().split("; Override launch")[0]
out = hdr + "; @launch grid=(256,1,1) block=(512,1,1) lds=163840\n"
DOC = """;
"""
out += DOC
out += '.amdgcn_target "amdgcn-amd-amdhsa--gfx950"\n.text\n' + a.text()
out += f""".section .rodata,"a"
.p2align 6
.amdhsa_kernel {KN}
  .amdhsa_next_free_vgpr 256
  .amdhsa_next_free_sgpr 102
  .amdhsa_accum_offset 256
  .amdhsa_group_segment_fixed_size 0
  .amdhsa_kernarg_size 136
  .amdhsa_user_sgpr_count 2
  .amdhsa_user_sgpr_kernarg_segment_ptr 1
  .amdhsa_system_sgpr_workgroup_id_x 1
.end_amdhsa_kernel
"""
path = [x for x in sys.argv[1:] if not x.startswith("--")]
open(path[0] if path else "f.s", "w").write(out)
```

```python
import sys, struct, math
sys.path.insert(0, "dev")
from asmlib import Asm, vr, sr

NAME = "parallel_sum__ssm_conv_s4__dense_activation_gelu__prompt"
KN = NAME + "_kernel"
PROF = "--prof" in sys.argv
def opt(name, default):
    for x in sys.argv:
        if x.startswith("--%s=" % name): return int(x.split("=")[1])
    return default
def f32(x): return "0x%08x" % struct.unpack("<I", struct.pack("<f", x))[0]

XNT, KD, YA, W2F = 0x000000, 0x280000, 0x500000, 0x780000
CLR = 0x9A0000
STATS, CSUM, MBOX, LNC, W2C, YAC = CLR, CLR+0x2000, CLR+0x10000, CLR+0x18000, CLR+0x1C000, CLR+0x1A000
CSP = 13824
PROFB, HF = 0x9C0000, 0xA00000
WS_SIZE = 0x1100000
OOB = "0x7f000000"
P = dict(u=16, are=18, aim=20, bre=22, bim=24, cre=26, cim=28, ldt=30, dsk=32, bx=34, w1=36, b1=38, w2=40, b2=42, out=44, dbg=46, ws=48)
S_WS, S_A, S_B, S_DBG = 52, 56, 60, 64
S_WAVE, S_XR, S_XC, S_J, S_SPIN, S_CH = 4, 5, 6, 7, 50, 51
S_MB = 34
WV = f"s{S_WAVE}"
WS = f"s[{S_WS}:{S_WS+3}]"; SA = f"s[{S_A}:{S_A+3}]"; SB = f"s[{S_B}:{S_B+3}]"; DBG = f"s[{S_DBG}:{S_DBG+3}]"
STG = 40960
NST = 3
AREG, BREG0, BREG = 20480, 81920, 20480
B7 = BREG0 + 3*BREG
CNT = B7 + 20096
YAT = B7
UB = 5536
W3B, W5B, W7B, W9B = 9664, 12768, 15872, 17952
SCR = 512
IMG, T2, T3 = SCR, SCR+1136, SCR+2416
STATL = BREG0 + 2*BREG
NT = " nt" if opt("nt", 0) else ""
NT1 = " nt" if opt("nt1", 1) else ""

a = Asm()
G2F = " sc1" if opt("g2sc1", 1) else ""
def srd(d, ptr, size):
    a(f"s_mov_b32 s{d}, s{ptr}\ns_mov_b32 s{d+1}, s{ptr+1}\ns_mov_b32 s{d+2}, {hex(size)}\ns_mov_b32 s{d+3}, 0x20000")
def stamp(idx):
    if PROF: a(f"s_memtime s[92:93]\ns_waitcnt lgkmcnt(0)\ns_sub_u32 s{72+idx}, s92, s90")
def lstamp(o):
    if PROF: a(f"s_memtime s[92:93]\ns_waitcnt lgkmcnt(0)\ns_sub_u32 s92, s92, s90\ns_add_u32 m0, s3, {o}\nv_writelane_b32 v200, s92, m0")
def endp(): a("s_branch L_end")
def cmul(d, x, y, t):
    a(f"v_pk_mul_f32 {vr(t,2)}, {vr(x,2)}, {vr(y,2)} op_sel:[0,0] op_sel_hi:[0,1]")
    a(f"v_pk_fma_f32 {vr(d,2)}, {vr(x,2)}, {vr(y,2)}, {vr(t,2)} op_sel:[1,1,0] op_sel_hi:[1,0,1] neg_lo:[0,1,0]")
def poll(issue, test, sleep=4, issued=True):
    L = a.label("L_poll"); D = a.label("L_pdone")
    if not issued: a(issue)
    a(f"{L}:")
    a("s_waitcnt vmcnt(0)")
    a(test)
    a(f"s_cbranch_scc1 {D}")
    a(f"s_add_u32 s{S_SPIN}, s{S_SPIN}, 1\ns_cmp_gt_u32 s{S_SPIN}, 100000\ns_cbranch_scc1 L_exit")
    a(f"s_sleep {sleep}")
    a(issue)
    a(f"s_branch {L}")
    a(f"{D}:")
def sld(d, off): return f"s_load_dword s{d}, s[{P['ws']}:{P['ws']+1}], s{off} glc"
def spoll(issue, test, sleep=4, issued=False, far=None):
    L = a.label("L_spoll"); D = a.label("L_sdone")
    if not issued: a(issue)
    a(f"{L}:")
    a("s_waitcnt lgkmcnt(0)")
    a(test)
    a(f"s_cbranch_scc1 {D}")
    a(f"s_add_u32 s{S_SPIN}, s{S_SPIN}, 1\ns_cmp_gt_u32 s{S_SPIN}, 100000\ns_cbranch_scc1 L_exit")
    a(f"s_sleep {sleep}")
    if far:
        N = a.label("L_near")
        a(f"{far[0]}\ns_cbranch_scc1 {N}\ns_sleep {far[1]}")
        a(f"{N}:")
    a(issue)
    a(f"s_branch {L}")
    a(f"{D}:")
def arrive_issue(sreg, va, vb):
    a(f"v_mov_b32 v{va}, 0\nv_mov_b32 v{vb}, 1\ns_mov_b64 exec, 1\nbuffer_atomic_add v{vb}, v{va}, {WS}, s{sreg} offen sc0 sc1\ns_mov_b64 exec, -1")
def arrive_check(st, vb, n, then):
    L = a.label("L_arr")
    a(f"s_waitcnt vmcnt(0)\nv_readfirstlane_b32 s{st}, v{vb}\ns_cmp_lg_u32 s{st}, {n-1}\ns_cbranch_scc1 {L}")
    a(then)
    a(f"{L}:")
def push_all(bitreg, off, va, vb, st):
    t = f"v_lshlrev_b32 v{va}, 7, v0\nv_mov_b32 v{vb}, s{bitreg}\ns_mov_b32 s{st}, {MBOX+off}\n"
    for i in range(4): t += f"buffer_atomic_or v{vb}, v{va}, {WS}, s{st} offen sc1\ns_add_u32 s{st}, s{st}, 8192\n"
    return t
def few(mask, ins): return f"s_mov_b64 exec, {mask}\n{ins}\ns_mov_b64 exec, -1"
def clr_issue(v, vo): return few(15, f"buffer_load_dword v{v}, v{vo}, {DBG}, 0 offen sc1")
def clr_test(v): return f"v_cmp_ne_u32 vcc, 0, v{v}\ns_and_b32 vcc_lo, vcc_lo, 15\ns_cmp_eq_u32 vcc_lo, 15"
def nz_test(v): return f"v_cmp_ne_u32 vcc, 0, v{v}\ns_cmp_eq_u64 vcc, -1"
def zero(b, n):
    for i in range(0, n, 2): a(f"v_pk_mov_b32 {vr(b+i,2)}, 0, 0")

cLIN, cIMG2, cT2, cT3, cW2, cW3, cST, cKW1, cKW2, cA0, cA1, cB, cU = 247, 248, 249, 250, 251, 252, 253, 254, 255, 231, 236, 237, 146
AD, AB, A16 = 204, 224, 232
RS = opt("rowsplit", 0)
def tile_rc(rt, cb, tmp):
    if RS: return f"s_and_b32 s{rt}, s2, 7\ns_lshl_b32 s{rt}, s{rt}, 2\ns_lshr_b32 s{cb}, s{S_J}, 3\ns_add_u32 s{rt}, s{rt}, s{cb}\ns_and_b32 s{cb}, s{S_J}, 7"
    return (f"s_lshl_b32 s{rt}, s{S_XR}, 3\ns_lshr_b32 s{cb}, s{S_J}, 2\ns_add_u32 s{rt}, s{rt}, s{cb}\n"
            f"s_lshl_b32 s{cb}, s{S_XC}, 2\ns_and_b32 s{tmp}, s{S_J}, 3\ns_add_u32 s{cb}, s{cb}, s{tmp}")
def conv_setup(t=64):
    r_, g_, h_, f_, x_, y_, z_ = (f"v{t+i}" for i in range(7))
    a(f"v_lshlrev_b32 {x_}, 4, v0\nv_add_u32 v{cLIN}, s69, {x_}\nv_min_u32 {z_}, 5, v0\nv_lshl_add_u32 v{cIMG2}, {z_}, 4, s69")
    a(f"v_lshlrev_b32 {x_}, 6, {z_}\nv_lshrrev_b32 {y_}, 1, {z_}\nv_lshl_add_u32 {x_}, {y_}, 4, {x_}\nv_add_u32 v{cKW2}, s69, {x_}")
    a(f"v_lshlrev_b32 {x_}, 6, v0\nv_lshrrev_b32 {y_}, 1, v0\nv_lshl_add_u32 {x_}, {y_}, 4, {x_}\nv_add_u32 v{cKW1}, s69, {x_}")
    a(f"v_lshrrev_b32 {x_}, 2, v0\nv_mul_u32_u24 {x_}, 40960, {x_}\nv_and_b32 {y_}, 3, v0\nv_lshl_add_u32 v{cU}, {y_}, 4, {x_}")
    a(f"v_and_b32 {r_}, 15, v0\nv_lshrrev_b32 {g_}, 4, v0\nv_and_b32 {h_}, 1, {g_}\nv_lshrrev_b32 {f_}, 1, {g_}")
    a(f"v_sub_u32 {x_}, 15, {r_}\nv_and_b32 {y_}, 1, {x_}\nv_sub_u32 {x_}, {x_}, {y_}\nv_lshlrev_b32 {x_}, 1, {x_}")
    a(f"v_lshl_add_u32 {z_}, {g_}, 1, {y_}\nv_mul_u32_u24 {z_}, 160, {z_}\nv_add_u32 {z_}, {z_}, {x_}\ns_add_u32 s10, s69, {T2}\nv_add_u32 v{cT2}, s10, {z_}")
    a(f"v_lshl_add_u32 {z_}, {h_}, 1, {y_}\nv_mul_u32_u24 {z_}, 160, {z_}\nv_add_u32 {z_}, {z_}, {x_}\nv_lshl_add_u32 {z_}, {f_}, 4, {z_}\ns_add_u32 s10, s69, {T3}\nv_add_u32 v{cT3}, s10, {z_}")
    a(f"v_mul_u32_u24 {x_}, {W5B-W3B}, {h_}\nv_lshlrev_b32 {y_}, 3, {g_}\nv_sub_u32 {x_}, {x_}, {y_}\nv_lshl_add_u32 {x_}, {r_}, 3, {x_}\ns_add_u32 s10, s69, {W3B-8}\nv_add_u32 v{cW2}, s10, {x_}")
    a(f"v_mul_u32_u24 {x_}, {W9B-W7B-16}, {h_}\nv_lshl_add_u32 {x_}, {f_}, 8, {x_}\nv_lshl_add_u32 {x_}, {r_}, 3, {x_}\ns_add_u32 s10, s69, {W7B-16}\nv_add_u32 v{cW3}, s10, {x_}")
    a(f"v_lshlrev_b32 {x_}, 2, {h_}\nv_lshrrev_b32 {z_}, 2, {r_}\nv_add_u32 {x_}, {x_}, {z_}\nv_mul_u32_u24 {x_}, 81920, {x_}\nv_lshl_add_u32 {x_}, {f_}, 6, {x_}\nv_and_b32 {z_}, 3, {r_}\nv_lshl_add_u32 v{cST}, {z_}, 4, {x_}")
    a(f"s_add_u32 s10, s69, {UB-32}\nv_lshlrev_b32 {x_}, 5, {r_}\nv_lshl_add_u32 {x_}, {g_}, 4, {x_}\nv_add_u32 v{cB}, s10, {x_}")
    a(f"v_sub_u32 {z_}, {y_}, {r_}\nv_add_u32 {z_}, 15, {z_}\nv_sub_u32 {y_}, {r_}, {y_}")
    a(f"v_lshrrev_b32 {x_}, 4, {z_}\nv_lshlrev_b32 {x_}, 4, {x_}\nv_lshl_add_u32 {x_}, {z_}, 3, {x_}\nv_add_u32 v{cA0}, s69, {x_}")
    a(f"v_add_u32 {z_}, 4, {z_}\nv_lshrrev_b32 {x_}, 4, {z_}\nv_lshlrev_b32 {x_}, 4, {x_}\nv_lshl_add_u32 {x_}, {z_}, 3, {x_}\nv_add_u32 v{cA1}, s69, {x_}")
    a(f"v_mov_b32 {r_}, 0xffff\nv_mov_b32 {g_}, 0xffff0000\nv_mov_b32 {h_}, -1")
    for k in range(4):
        a(f"v_cmp_eq_u32 vcc, {2*k-16}, {y_}\nv_cndmask_b32 v{AD+k}, 0, {r_}, vcc\nv_cmp_eq_u32 vcc, {2*k+1-16}, {y_}\nv_cndmask_b32 v{AD+k}, v{AD+k}, {g_}, vcc")
        a(f"v_cmp_eq_u32 vcc, {2*k-12}, {y_}\nv_cndmask_b32 v{AB+k}, 0, {h_}, vcc\nv_cmp_eq_u32 vcc, {2*k-13}, {y_}\nv_cndmask_b32 v{AB+k}, v{AB+k}, {r_}, vcc\nv_cmp_eq_u32 vcc, {2*k-11}, {y_}\nv_cndmask_b32 v{AB+k}, v{AB+k}, {g_}, vcc")
def uloads():
    a(f"s_lshl_b32 s10, s{S_CH}, 6")
    for q in range(4): a(f"buffer_load_dwordx4 {vr(148+4*q,4)}, v{cU}, {WS}, s10 offen sc1\ns_add_u32 s10, s10, 655360")
def kloads():
    a(f"s_lshl_b32 s10, s{S_CH}, 12\ns_add_u32 s10, s10, {KD}")
    for q in range(3): a(f"buffer_load_dwordx4 {vr(32+4*q,4)}, v1, {WS}, s10 offen offset:{1024*q} sc1")
lnc_addr = f"s_mul_i32 s13, s{S_CH}, 410\ns_lshr_b32 s13, s13, 16\ns_lshl_b32 s13, s13, 4\ns_and_b32 s100, s2, 15\ns_add_u32 s100, s100, s13\ns_lshl_b32 s100, s100, 7\ns_add_u32 s100, s100, {LNC}"

a.raw(f".globl {KN}\n.p2align 8\n.type {KN},@function")
a(f"{KN}:")
a("s_cmp_ge_u32 s2, 256\ns_cbranch_scc1 L_exit")
a("s_load_dwordx16 s[16:31], s[0:1], 0\ns_load_dwordx16 s[32:47], s[0:1], 64\ns_load_dwordx2 s[48:49], s[0:1], 128")
if opt("cpf", 1):
    a(f"s_cmp_ge_u32 s2, {opt('cpfn', 8)}\ns_cbranch_scc1 L_nocpf")
    a("s_getpc_b64 s[12:13]")
    a("L_cpfb:")
    a("v_lshlrev_b32 v20, 7, v0\nv_min_u32 v20, L_exit-L_cpfb, v20\nv_mov_b32 v21, s13\nv_add_co_u32 v20, vcc, s12, v20\nv_addc_co_u32 v21, vcc, 0, v21, vcc")
    a("global_load_dword v22, v[20:21], off")
    a("L_nocpf:")
if PROF:
    a("s_memtime s[90:91]\ns_memrealtime s[94:95]")
    for i in range(16): a(f"s_mov_b32 s{72+i}, 0")
a("v_lshrrev_b32 v1, 6, v0\nv_and_b32 v0, 63, v0")
a(f"v_readfirstlane_b32 {WV}, v1")
a(f"s_bfe_u32 s{S_XR}, s2, 0x20001\ns_and_b32 s{S_XC}, s2, 1\ns_lshr_b32 s{S_J}, s2, 3\ns_mov_b32 s{S_SPIN}, 0")
a(f"s_lshl_b32 s8, s{S_XC}, 2\ns_sub_u32 s8, 20, s8")
a(f"s_cmp_eq_u32 s{S_XC}, 0\ns_cselect_b32 s9, 52, 64\ns_mul_i32 s9, s9, s{S_J}\ns_lshr_b32 s9, s9, 8")
a(f"s_sub_u32 s11, 5, s{S_XC}\ns_mul_i32 s11, s11, s9\ns_sub_u32 s10, s{S_J}, s11\ns_mul_i32 s11, s{S_XC}, 5\ns_add_u32 s10, s10, s11")
a(f"s_lshl_b32 s11, s{S_XR}, 2\ns_add_u32 s9, s9, s11")
a("v_lshrrev_b32 v4, 3, v0\nv_mul_u32_u24 v4, 1280, v4")
a("v_and_b32 v5, 7, v0\nv_lshrrev_b32 v6, 4, v0\nv_xor_b32 v5, v5, v6\nv_lshl_add_u32 v2, v5, 4, v4")
a("v_xor_b32 v5, 4, v5\nv_lshl_add_u32 v3, v5, 4, v4\nv_add_u32 v3, 10240, v3\nv_add_u32 v4, 20480, v2\nv_add_u32 v5, 20480, v3")
for i in range(3):
    a(f"v_add_u32 v6, {64*i}, v0\nv_mul_u32_u24 v7, 2731, v6\nv_lshrrev_b32 v7, 16, v7\nv_lshlrev_b32 v14, 1, v7\nv_and_b32 v14, 4, v14\nv_xor_b32 v6, v6, v14")
    a(f"v_mul_u32_u24 v7, 3072, v7\nv_lshl_add_u32 v{8+i}, v6, 4, v7\nv_add_u32 v{11+i}, 27648, v{8+i}")
a(f"s_and_b32 s99, {WV}, 3")
a("s_lshl_b32 s11, s9, 7\ns_lshl_b32 s12, s99, 5\ns_add_u32 s11, s11, s12\ns_mul_i32 s11, s11, 1280")
a("s_mul_i32 s12, s99, 55296\ns_mul_i32 s13, s10, 384\ns_add_u32 s12, s12, s13")
a("s_lshl_b32 s13, s99, 12\ns_mul_i32 s14, s99, 6144\ns_add_u32 s14, s14, 16384\ns_mov_b32 s3, 0")
a(f"s_and_b32 s15, s9, 3\ns_mul_i32 s15, s15, 5\ns_add_u32 s15, s15, 1\ns_lshr_b32 s15, s15, 1\ns_lshl_b32 s68, s10, 1\ns_add_u32 s15, s15, s68\ns_add_u32 s15, s15, s{S_XR}")
a("s_mul_i32 s68, s15, 26\ns_lshr_b32 s68, s68, 8\ns_mul_i32 s68, s68, 10\ns_sub_u32 s15, s15, s68")
a("s_lshl_b32 s68, s15, 7\ns_add_u32 s11, s11, s68\ns_mul_i32 s68, s15, 221184\ns_add_u32 s12, s12, s68\ns_mov_b32 s69, 0")
for d, size in ((S_WS, WS_SIZE), (S_A, 2621440), (S_B, 2211840), (S_DBG, 256)): a(f"s_mov_b32 s{d+2}, {hex(size)}\ns_mov_b32 s{d+3}, 0x20000")
a("v_mov_b32 v146, 0\nv_mov_b32 v253, 0\ns_mov_b32 s101, 0")
a("s_waitcnt lgkmcnt(0)")
for d, nm in ((S_A, 'u'), (S_B, 'w1'), (S_WS, 'ws'), (S_DBG, 'dbg')): a(f"s_mov_b64 s[{d}:{d+1}], s[{P[nm]}:{P[nm]+1}]")
a(f"s_lshl_b32 s{S_MB}, s2, 7\ns_add_u32 s{S_MB}, s{S_MB}, {MBOX}")
if PROF:
    a("s_mov_b32 s86, s94"); stamp(13)
if opt("g2only", 0):
    a(f"v_mov_b32 v174, 0\ns_mov_b32 s35, 1\ns_cmp_lt_u32 {WV}, 4\ns_cbranch_scc1 L_g2\ns_branch L_end")
a(f"s_cmp_ge_u32 s{S_J}, s8\ns_cbranch_scc1 L_aux")
a(f"s_cmp_lt_u32 {WV}, 4\ns_cbranch_scc1 L_comp")

a("s_mov_b32 s8, s99")
stamp(1)
S_C = 96
a("L_ld_loop:")
a("s_cmp_lt_u32 s3, 2\ns_cbranch_scc1 L_ld_nowait\ns_cmp_eq_u32 s3, 2\ns_cbranch_scc1 L_ld_setup")
a("L_ld_wait:")
a("s_waitcnt vmcnt(10)")
lstamp(0)
a("s_barrier")
lstamp(16)
a("L_ld_nowait:")
a("s_add_u32 s70, s69, s13\ns_add_u32 s71, s69, s14")
for q in range(4): a(f"s_add_u32 m0, s70, {1024*q}\nbuffer_load_dwordx4 v{2+q}, {SA}, s11 offen{NT} lds")
for i in range(6): a(f"s_add_u32 m0, s71, {1024*i}\nbuffer_load_dwordx4 v{8+i}, {SB}, s12 offen{NT} lds")
a("s_add_u32 s11, s11, 128\ns_add_u32 s12, s12, 221184\ns_add_u32 s15, s15, 1\ns_cmp_lt_u32 s15, 10\ns_cbranch_scc1 L_ld_nowrap")
a("s_sub_u32 s11, s11, 1280\ns_sub_u32 s12, s12, 2211840\ns_mov_b32 s15, 0")
a("L_ld_nowrap:")
a(f"s_add_u32 s69, s69, {STG}\ns_cmp_eq_u32 s69, {NST*STG}\ns_cselect_b32 s69, 0, s69")
a(f"s_cmp_lg_u32 s3, 7\ns_cbranch_scc1 L_ld_n5\ns_load_dwordx4 s[28:31], s[{P['dbg']}:{P['dbg']+1}], 0")
a("L_ld_n5:")
a("s_add_u32 s3, s3, 1\ns_cmp_lt_u32 s3, 10\ns_cbranch_scc1 L_ld_loop")
s_issue = f"buffer_load_dwordx4 v[16:19], v1, {WS}, s18 offen sc1\nbuffer_load_dwordx4 v[20:23], v6, {WS}, s18 offen offset:1024 sc1\nbuffer_load_dword v24, v7, {WS}, s20 offen sc1"
wc_issue = sld(26, 25)
wc_test = "s_cmp_lg_u32 s26, 0"
a("s_waitcnt lgkmcnt(0)\ns_and_b32 s28, s28, s29\ns_and_b32 s30, s30, s31\ns_and_b32 s24, s28, s30")
a(s_issue)
for w in (13, 3):
    if w == 3:
        a("s_mov_b32 s31, 0\ns_mov_b32 s33, 0\ns_cmp_eq_u32 s101, 0\ns_cbranch_scc1 L_ld_ncv")
        a(sld(31, S_MB) + "\n" + sld(33, 100))
        a("L_ld_ncv:")
    a(f"s_waitcnt vmcnt({w})")
    lstamp(0)
    a("s_barrier")
    lstamp(16)
    if PROF: a("s_add_u32 s3, s3, 1")
a("s_cmp_lg_u32 s24, 0\ns_cbranch_scc1 L_ld_clr")
poll(clr_issue(15, 14), clr_test(15), sleep=8, issued=False)
a(s_issue)
a("s_waitcnt lgkmcnt(0)\ns_mov_b32 s31, 0\ns_mov_b32 s33, 0")
a("L_ld_clr:")
s_test = "v_and_b32 v4, v17, v19\nv_and_b32 v5, v21, v23\nv_and_b32 v4, v4, v5\nv_and_b32 v4, 1, v4\nv_min_u32 v4, v4, v24\n" + nz_test(4)
poll(s_issue, s_test, sleep=8)
a("ds_write_b128 v25, v[16:19]\nds_write_b128 v26, v[20:23] offset:1024\nds_write_b32 v27, v24")
a("s_waitcnt lgkmcnt(0)\ns_mov_b32 s68, 0\ns_and_b32 s13, s31, s101\ns_cbranch_scc0 L_ld_nk0")
kloads()
a("s_mov_b32 s68, 1")
a("L_ld_nk0:")
a("s_cmp_ge_u32 s33, 64\ns_cbranch_scc0 L_ld_nk")
uloads()
a("s_or_b32 s68, s68, 2")
a("L_ld_nk:")
a("s_barrier")
lstamp(16)
if PROF:
    a(f"s_lshl_b32 s93, s2, 9\ns_lshl_b32 s92, s8, 7\ns_add_u32 s93, s93, s92\ns_add_u32 s93, s93, {PROFB+0x20000}\nv_lshlrev_b32 v201, 2, v0\ns_mov_b32 exec_hi, 0\nbuffer_store_dword v200, v201, {WS}, s93 offen\ns_mov_b32 exec_hi, -1")
stamp(2)
a(f"s_cmp_eq_u32 {WV}, 7\ns_cbranch_scc1 L_fetch")
a(f"s_cmp_eq_u32 {WV}, 6\ns_cbranch_scc1 L_park")
a(f"s_cmp_eq_u32 s101, 0\ns_cbranch_scc1 L_end\ns_mul_i32 s69, {WV}, {AREG}\ns_branch L_cv_upart")
wc_prep = f"s_and_b32 s25, s2, 31\ns_lshl_b32 s25, s25, 7\ns_add_u32 s25, s25, {W2C+1024}"
a("L_ld_setup:")
a("v_lshlrev_b32 v1, 4, v0\nv_and_b32 v7, 31, v0\nv_lshlrev_b32 v6, 4, v7\nv_lshlrev_b32 v7, 2, v7\nv_and_b32 v14, 3, v0\nv_lshlrev_b32 v14, 2, v14")
a(f"s_lshl_b32 s20, s9, 9\ns_lshl_b32 s23, s8, 7\ns_add_u32 s20, s20, s23\ns_add_u32 s20, s20, {STATS}\ns_add_u32 s23, s23, {STATL+6144}\nv_add_u32 v27, s23, v7")
a(f"s_mul_i32 s18, s10, 1536\ns_mul_i32 s19, s8, {CSP}\ns_add_u32 s18, s18, s19\ns_add_u32 s18, s18, {CSUM}")
a(f"s_mul_i32 s23, s8, 1536\ns_add_u32 s23, s23, {STATL}\nv_add_u32 v25, s23, v1\nv_add_u32 v26, s23, v6\nv_mov_b32 v30, {CNT}")
zero(32, 4)
a("ds_write_b128 v30, v[32:35]")
a(wc_prep)
a(f"s_mul_i32 s23, s{S_XR}, 36\ns_mul_i32 s22, s{S_XC}, 20\ns_add_u32 s23, s23, s22\ns_add_u32 s23, s23, s{S_J}\ns_mul_i32 s22, s8, 144\ns_add_u32 s23, s23, s22\ns_cmp_ge_u32 s23, 192\ns_cbranch_scc1 L_ld_wait")
a(f"s_lshr_b32 s22, s23, 2\ns_lshl_b32 s22, s22, 3\ns_and_b32 s23, s23, 3\ns_add_u32 s{S_CH}, s23, s22\ns_add_u32 s{S_CH}, s{S_CH}, 256\ns_lshl_b32 s101, 0x1000000, s8")
a(f"s_mov_b32 s96, s69\ns_mov_b32 s97, s10\ns_mov_b32 s98, s13\ns_mul_i32 s69, {WV}, {AREG}")
conv_setup()
a(lnc_addr)
a(f"s_lshl_b32 s22, s{S_CH}, 1\ns_and_b32 s23, s22, 2\ns_sub_u32 s22, s22, s23\ns_load_dword s99, s[{P['dsk']}:{P['dsk']+1}], s22")
a("s_lshl_b32 s23, s23, 3\ns_waitcnt lgkmcnt(0)\ns_lshr_b32 s99, s99, s23\ns_and_b32 s99, s99, 0xffff\nv_mov_b32 v147, s99")
a("s_mov_b32 s69, s96\ns_mov_b32 s10, s97\ns_mov_b32 s13, s98\ns_branch L_ld_wait")

G2H = [16, 32, 48, 224]; G2W = [164, 184, 204, 144]; AC2 = 64
K0 = [0, 13, 26, 40, 54]
def g2_setup():
    a(tile_rc(30, 31, 29))
    a(f"s_mul_i32 s28, {WV}, 7168\ns_max_u32 s28, s28, 1024\ns_sub_u32 s28, s28, 1024")
    a(f"s_mul_i32 s27, s30, {4*55296}\ns_add_u32 s27, s27, s28\ns_add_u32 s27, s27, {HF}")
    for i in range(4):
        a(f"s_add_u32 s29, {WV}, {i}\ns_and_b32 s29, s29, 3\ns_mul_i32 s29, s29, 55296\ns_add_u32 s{18+i}, s27, s29")
    a(f"s_mul_i32 s22, s31, {5*55296}\ns_add_u32 s22, s22, s28\ns_add_u32 s22, s22, {W2F}")
    for i in range(1, 5): a(f"s_add_u32 s{22+i}, s22, {55296*i}")
    a(f"s_lshl_b32 s27, s30, 6\ns_lshl_b32 s29, {WV}, 4\ns_add_u32 s27, s27, s29\ns_mul_i32 s27, s27, 1280\ns_mul_i32 s29, s31, 160\ns_add_u32 s27, s27, s29")
    masks = []
    for w in range(4):
        c0, c1 = max(0, 7*w-1)//3, (7*w+5)//3
        m = ((1 << (c1-c0+1)) - 1) << c0
        masks.append(m | (m << 11))
    a(f"s_mov_b32 s28, {hex(masks[0])}\ns_cmp_eq_u32 {WV}, 1\ns_cselect_b32 s28, {hex(masks[1])}, s28\ns_cmp_eq_u32 {WV}, 2\ns_cselect_b32 s28, {hex(masks[2])}, s28\ns_cmp_eq_u32 {WV}, 3\ns_cselect_b32 s28, {hex(masks[3])}, s28")
    a(f"v_lshlrev_b32 v252, 4, v0\ns_cmp_eq_u32 {WV}, 0\ns_cselect_b32 s30, {OOB}, 0\nv_add_u32 v253, s30, v252")
    a("v_lshrrev_b32 v255, 4, v0\nv_lshlrev_b32 v255, 3, v255\nv_and_b32 v254, 15, v0\nv_mul_u32_u24 v254, 160, v254\nv_add_u32 v254, v254, v255")
    srd(S_B, P['b2'], 1280)
    a(f"s_mul_i32 s30, {WV}, {AREG}\nv_add_u32 v251, s30, v252\nv_mov_b32 v250, {CNT}")
def ldh(k, o=0, v=252): return [f"buffer_load_dwordx4 {vr(G2H[k]+4*i,4)}, v{v}, {WS}, s{18+i} offen offset:{o}{G2F}" for i in range(4)]
def ldw(k, o=0, v=252): return [f"buffer_load_dwordx4 {vr(G2W[k]+4*i,4)}, v{v}, {WS}, s{22+i} offen offset:{o}{G2F}" for i in range(5)]
OUTV = (8, 9, 13)
def xb_loads():
    for q in range(3):
        a(f"v_add_u32 v10, {64*q}, v0\nv_mul_u32_u24 v11, 6554, v10\nv_lshrrev_b32 v11, 16, v11\nv_mul_u32_u24 v11, 1120, v11\nv_lshl_add_u32 v{OUTV[q]}, v10, 4, v11")
    a(f"v_cmp_gt_u32 vcc, 32, v0\nv_mov_b32 v10, {OOB}\nv_cndmask_b32 v13, v10, v13, vcc\ns_mul_i32 s10, {WV}, {AREG}")
    for q in range(3): a(f"s_add_u32 m0, s10, {15360+1024*q}\nbuffer_load_dwordx4 v{OUTV[q]}, {SA}, s27 offen lds")
    a(f"s_add_u32 m0, s10, {18432}\ns_mov_b64 exec, 0x3ff\nbuffer_load_dwordx4 v252, {SB}, s29 offen lds\ns_mov_b64 exec, -1")
    a("v_add_u32 v2, s10, v254\nv_add_u32 v3, s10, v255")
off = lambda t: 1024*t if t < 7 else 27648 + 1024*(t-7)
w_pre = ldw(0, 0) + ldw(1, 1024) + ldw(2, 2048) + ldw(3, 3072)

a("L_comp:")
ACC = 72; BUF = [16, 44]; SF = 172
g2_setup()
a("v_and_b32 v13, 31, v0\nv_lshrrev_b32 v14, 5, v0")
a(f"s_lshl_b32 s8, {WV}, 12\nv_lshlrev_b32 v15, 7, v13\nv_add_u32 v15, s8, v15")
a("v_bfe_u32 v7, v0, 1, 3\nv_xor_b32 v7, v7, v14")
for ks in range(4): a(f"v_xor_b32 v1, {2*ks}, v7\nv_lshl_add_u32 v{2+ks}, v1, 4, v15")
a("v_bfe_u32 v1, v0, 2, 2\nv_lshl_add_u32 v1, v14, 3, v1\nv_mul_u32_u24 v1, 384, v1")
a("v_bfe_u32 v7, v0, 4, 1\nv_lshl_add_u32 v1, v7, 5, v1\nv_and_b32 v7, 3, v0\nv_lshl_add_u32 v1, v7, 3, v1\nv_add_u32 v1, 16384, v1")
a("v_bfe_u32 v7, v0, 3, 1\nv_lshlrev_b32 v7, 6, v7\nv_add_u32 v6, v1, v7\nv_sub_u32 v196, v1, v7\nv_mov_b32 v197, v196")
for i in range(5): a(f"v_mov_b32 v{8+i}, v{2+i}")
zero(ACC, 96)
a(f"s_lshl_b32 s11, {WV}, 7\ns_add_u32 s11, s11, {STATL+6144}\nv_lshl_add_u32 v168, v13, 2, s11\nv_mul_u32_u24 v169, 3072, v14\nv_lshl_add_u32 v169, v13, 3, v169\nv_add_u32 v169, {STATL}, v169")
a("v_bfe_u32 v1, v0, 4, 1\nv_mul_u32_u24 v1, 55296, v1\nv_lshl_add_u32 v1, v14, 8, v1\nv_and_b32 v7, 15, v0\nv_lshl_add_u32 v1, v7, 4, v1")
a(f"s_lshl_b32 s8, s9, 3\ns_lshl_b32 s11, {WV}, 1\ns_add_u32 s8, s8, s11\ns_mul_i32 s8, s8, 54\ns_mul_i32 s11, s10, 3\ns_add_u32 s8, s8, s11\ns_lshl_b32 s8, s8, 10\ns_add_u32 s8, s8, {HF}")
a(f"s_lshl_b32 s12, s9, 1\ns_lshr_b32 s11, {WV}, 1\ns_add_u32 s12, s12, s11")
if RS: a(f"s_and_b32 s11, s12, 3\ns_lshl_b32 s11, s11, 6\ns_lshr_b32 s12, s12, 2\ns_add_u32 s12, s12, s11\ns_lshl_b32 s12, s12, 7\ns_add_u32 s12, s12, {MBOX}")
else: a(f"s_and_b32 s11, s12, 7\ns_lshl_b32 s11, s11, 5\ns_lshr_b32 s12, s12, 3\ns_lshl_b32 s12, s12, 1\ns_add_u32 s12, s12, s11\ns_lshl_b32 s12, s12, 7\ns_add_u32 s12, s12, {MBOX}")
a(f"s_and_b32 s11, {WV}, 1\ns_mul_i32 s11, s11, 11\ns_add_u32 s11, s11, s10\ns_lshl_b32 s11, 1, s11")
if RS: a("v_lshlrev_b32 v15, 10, v0\nv_mov_b32 v14, s11")
else: a("v_and_b32 v15, 3, v0\nv_lshlrev_b32 v15, 10, v15\nv_bfe_u32 v7, v0, 2, 1\nv_lshl_add_u32 v15, v7, 7, v15\nv_mov_b32 v14, s11")
a(wc_prep.replace("s25", "s69"))
a("s_mov_b32 s15, 0\ns_mov_b32 s3, 0")
def reads(ks, b):
    r = [f"ds_read_b128 {vr(b,4)}, v{8+ks}"]
    for ft in range(6):
        for s in range(2):
            r.append(f"ds_read_b64_tr_b16 {vr(b+4+4*ft+2*s,2)}, v{197 if ft & 1 else 12} offset:{ks*6144 + s*1536 + ft*64}")
    return r
def step(cur, nks, nb, last, first_wait=True):
    R = reads(nks, nb)
    waits2 = [8, 0, 10, 0, 11, 0]
    waits = [10, 11, 12, 13, 13, 13]; parts = [R[0:3], R[3:6], R[6:9], R[9:11], R[11:13], [last]]
    for ft in range(6):
        if first_wait and (ft % 2 == 0 or not opt("fw", 1)): a(f"s_waitcnt lgkmcnt({(waits2 if opt('fw', 1) else waits)[ft]})")
        a(f"v_mfma_f32_32x32x16_bf16 {vr(ACC+16*ft,16)}, {vr(cur+4+4*ft,4)}, {vr(cur,4)}, {vr(ACC+16*ft,16)}")
        for r in parts[ft]: a(r)
a("s_barrier")
stamp(1)
for r in reads(0, BUF[0]): a(r)
a("L_c_loop:")
step(BUF[0], 1, BUF[1], f"s_add_u32 s15, s15, {STG}\ns_cmp_eq_u32 s15, {NST*STG}\ns_cselect_b32 s15, 0, s15\nv_add_u32 v8, s15, v2")
step(BUF[1], 2, BUF[0], "v_add_u32 v9, s15, v3\nv_add_u32 v10, s15, v4")
step(BUF[0], 3, BUF[1], "v_add_u32 v12, s15, v6\nv_add_u32 v197, s15, v196\ns_waitcnt lgkmcnt(0)\ns_barrier")
step(BUF[1], 0, BUF[0], "v_add_u32 v11, s15, v5\ns_add_u32 s3, s3, 1\ns_cmp_lt_u32 s3, 10\ns_cbranch_scc1 L_c_loop", first_wait=False)
stamp(2)
a(f"s_setprio {opt('eprio', 3)}\nds_read_b32 v170, v168")
for ft in range(6):
    for p in range(2): a(f"ds_read_b64 {vr(SF+4*ft+2*p,2)}, v169 offset:{1536*p+256*ft}")
a("s_waitcnt lgkmcnt(12)")
a("v_xor_b32 v17, 0x8000, v170\nv_and_b32 v19, 0xffff, v17\nv_lshl_or_b32 v16, v19, 16, v19\nv_mov_b32 v18, v16")
a("v_cmp_gt_u32 vcc, 32, v0\nv_cndmask_b32 v17, v19, v17, vcc")
a("v_and_b32 v10, 0xffff0000, v170\nv_rcp_f32 v7, v10\nv_mov_b32 v11, v10\ns_waitcnt lgkmcnt(0)")
for ft in range(6):
    a(f"v_mfma_f32_32x32x16_bf16 {vr(ACC+16*ft,16)}, {vr(SF+4*ft,4)}, v[16:19], {vr(ACC+16*ft,16)}")
    if ft == 0:
        k1c = -2.0 * math.log2(math.e) * math.sqrt(2.0/math.pi); k2c = k1c * 0.044715
        a(f"v_mul_f32 v8, {f32(k1c)}, v7\nv_mul_f32 v12, v7, v7\nv_mul_f32 v12, v12, v7\nv_mul_f32 v12, {f32(k2c)}, v12\nv_mov_b32 v9, v8\nv_mov_b32 v13, v12")
def stA(h):
    A0 = ACC + 8*h; T = 16 + 8*(h % 3)
    return ([f"v_pk_mul_f32 {vr(T+2*p,2)}, {vr(A0+2*p,2)}, {vr(A0+2*p,2)}" for p in range(4)] +
            [f"v_pk_fma_f32 {vr(T+2*p,2)}, {vr(T+2*p,2)}, v[12:13], v[8:9]" for p in range(4)] +
            [f"v_pk_mul_f32 {vr(T+2*p,2)}, {vr(T+2*p,2)}, {vr(A0+2*p,2)}" for p in range(4)])
def stE(h):
    T = 16 + 8*(h % 3); return [f"v_exp_f32 v{T+e}, v{T+e}" for e in range(8)]
def stB(h):
    T = 16 + 8*(h % 3); return [f"v_pk_fma_f32 {vr(T+2*p,2)}, {vr(T+2*p,2)}, v[10:11], v[10:11]" for p in range(4)]
def stR(h):
    T = 16 + 8*(h % 3); return [f"v_rcp_f32 v{T+e}, v{T+e}" for e in range(8)]
def stC(h):
    A0 = ACC + 8*h; T = 16 + 8*(h % 3); pk = 48 + 4*(h % 4)
    return ([f"v_pk_mul_f32 {vr(T+2*p,2)}, {vr(T+2*p,2)}, {vr(A0+2*p,2)}" for p in range(4)] +
            [f"v_cvt_pk_bf16_f32 v{pk+p}, v{T+2*p}, v{T+2*p+1}" for p in range(4)] +
            [f"buffer_store_dwordx4 {vr(pk,4)}, v1, {WS}, s8 offen offset:{(h//2 % 3)*1024 + (h%2)*512} sc1"])
def mix(tr, nt):
    i = 0
    for k, x in enumerate(tr):
        a(x)
        n = (len(nt) * (k+1)) // len(tr)
        while i < n: a(nt[i]); i += 1
for x in stA(0): a(x)
for h in range(12):
    mix(stE(h), (stC(h-1) if h else []))
    if h == 6: a("s_add_u32 s8, s8, 27648")
    if h == opt("eflag", 10): a(f"s_waitcnt vmcnt({h-6})\ns_mov_b64 exec, 0xff\nbuffer_atomic_or v14, v15, {WS}, s12 offen sc1\ns_mov_b64 exec, -1\n" + sld(68, 69))
    for x in stB(h): a(x)
    if h == 11: a(sld(14, S_MB))
    mix(stR(h), (stA(h+1) if h < 11 else []))
for x in stC(11): a(x)
stamp(4)
push = f"s_mov_b64 exec, 0xff\nbuffer_atomic_or v14, v15, {WS}, s12 offen offset:64 sc1\ns_mov_b64 exec, -1"
h012 = ldh(0, 0) + ldh(1, 1024) + ldh(2, 2048)
hm_issue = sld(14, S_MB)
hm_test = "s_and_b32 s13, s14, s28\ns_cmp_eq_u32 s13, s28"
a("s_mov_b32 s35, 0\ns_mov_b32 s101, 0\ns_waitcnt lgkmcnt(0)\ns_cmp_eq_u32 s68, 0\ns_cbranch_scc1 L_c_slow")
for l in ldw(0, 0): a(l)
a(hm_test + "\ns_cbranch_scc0 L_c_mid")
for l in ldh(0, 0) + ldw(1, 1024) + ldh(1, 1024): a(l)
a("s_waitcnt vmcnt(18)\n" + push)
for l in ldw(2, 2048) + ldw(3, 3072) + ldh(2, 2048): a(l)
a("s_mov_b32 s101, 1\ns_setprio 0")
stamp(5)
a("s_branch L_g_fast")
a("L_c_mid:")
for l in ldw(1, 1024): a(l)
a("s_waitcnt vmcnt(10)\n" + push)
for l in ldw(2, 2048) + ldw(3, 3072): a(l)
a("s_branch L_g2go")
a("L_c_slow:")
a("s_waitcnt vmcnt(0)\n" + push + "\ns_branch L_g2w")

a("L_g2:")
g2_setup()
a("s_mov_b32 s101, 0")
a("L_g2w:")
a(wc_prep.replace("s25", "s8"))
spoll(sld(9, 8), "s_cmp_lg_u32 s9, 0", sleep=16)
PK = (8, 10, 12)
for l in w_pre: a(l)
a("s_cmp_eq_u32 s35, 0\ns_cbranch_scc1 L_g2go")
for p in range(3):
    for i in range(5): a(f"s_add_u32 m0, s30, {5120*p+1024*i}\ns_add_u32 s13, s{22+i}, {off(PK[p])}\nbuffer_load_dwordx4 v252, {WS}, s13 offen{G2F} lds")
a("L_g2go:")
a("s_setprio 0")
spoll(hm_issue, hm_test, sleep=opt('msleep', 4), far=('s_and_b32 s13, s14, 0x3fffff', opt('mfar', 28)))
stamp(6)
for l in h012: a(l)
a("L_g_fast:")
a(f"s_add_u32 s15, s{S_MB}, 64")
F = {t: [] for t in range(14)}
ad = []
for i in range(1, 4):
    ad += [f"s_sub_u32 s13, {WV}, {i}\ns_and_b32 s13, s13, 3", f"s_mul_i32 s13, s13, {AREG}\ns_add_u32 s13, s13, {5120*(i-1)}", f"v_add_u32 v{1+i}, s13, v252"]
ad += ["v_lshrrev_b32 v10, 2, v0\nv_lshlrev_b32 v10, 7, v10", "v_bfe_u32 v15, v0, 1, 1\nv_lshl_add_u32 v10, v15, 6, v10", "v_and_b32 v15, 1, v0\nv_lshl_add_u32 v10, v15, 3, v10",
       f"s_lshl_b32 s13, {WV}, 4\ns_add_u32 s13, s13, {YAT}", "v_add_u32 v5, s13, v10", f"s_mul_i32 s13, {WV}, 2560\ns_add_u32 s13, s13, {BREG0}", "v_add_u32 v6, s13, v254\nv_add_u32 v7, s13, v252"]
for q in range(3):
    ad += [f"v_add_u32 v10, {64*q}, v0\nv_mul_u32_u24 v11, 6554, v10", "v_lshrrev_b32 v11, 16, v11\nv_mul_u32_u24 v11, 1120, v11", f"v_lshl_add_u32 v{OUTV[q]}, v10, 4, v11"]
ad += [f"v_cmp_gt_u32 vcc, 32, v0\nv_mov_b32 v10, {OOB}", "v_cndmask_b32 v13, v10, v13, vcc", "v_add_u32 v12, s30, v254\nv_add_u32 v14, s30, v255"]
F[0] = ad[:14]; F[1] = ad[14:24]; F[3] = ad[24:]
XR = lambda i: 48 + i if i < 16 else 240 + (i-16)
XS = 204
F[11] = [f"ds_read_b64 {vr(XR(2*dt),2)}, v12 offset:{15360+32*dt}\nds_read_b64 {vr(XR(10+2*dt),2)}, v14 offset:{18432+32*dt}" for dt in range(5)]
xs = []
for j_ in range(10):
    xs += [f"v_lshlrev_b32 v{XS+2*j_}, 16, v{XR(j_)}\nv_and_b32 v{XS+2*j_+1}, 0xffff0000, v{XR(j_)}", f"v_lshlrev_b32 v10, 16, v{XR(10+j_)}\nv_and_b32 v11, 0xffff0000, v{XR(10+j_)}",
           f"v_add_f32 v{XS+2*j_}, v{XS+2*j_}, v10\nv_add_f32 v{XS+2*j_+1}, v{XS+2*j_+1}, v11"]
F[11] += ["", "", "", "", "s_waitcnt lgkmcnt(0)"] + xs[:10]; F[12] = xs[10:]
xdma = [f"s_add_u32 m0, s30, {15360+1024*q}\nbuffer_load_dwordx4 v{OUTV[q]}, {SA}, s27 offen lds" for q in range(3)] + [f"s_add_u32 m0, s30, 18432\ns_mov_b64 exec, 0x3ff\nbuffer_load_dwordx4 v252, {SB}, s29 offen lds\ns_mov_b64 exec, -1"]
Q = {"f": [("W",0)]*5 + [("H",0)]*4 + [("W",1)]*5 + [("H",1)]*4 + ["a"] + [("W",2)]*5 + [("W",3)]*5 + [("H",2)]*4, "s": [("H",0)]*4 + [("H",1)]*4 + [("H",2)]*4}
Q["x"] = list(Q["s"])
def yn(q, tags):
    idx = [i for i, x in enumerate(q) if x in tags]
    return len(q) - 1 - max(idx)
cur = 0
for t in range(14):
    k = t % 4; nt_ = t + 3; nk = nt_ % 4
    L = []
    if t == 2: a(sld(14, 15))
    if t == 4:
        spoll(sld(14, 15), hm_test, sleep=2, issued=True)
        stamp(3)
    if nt_ == PK[0]:
        a("s_cmp_lg_u32 s35, 0\ns_cbranch_scc1 L_g_pok\ns_mov_b32 s3, 0")
        a("L_g_pw:")
        a("s_add_u32 s3, s3, 1\ns_cmp_gt_u32 s3, 2000000\ns_cbranch_scc1 L_exit")
        a("ds_read_b32 v10, v250\ns_waitcnt lgkmcnt(0)\nv_readfirstlane_b32 s13, v10\ns_cmp_eq_u32 s13, 0\ns_cbranch_scc1 L_g_pw")
        a("L_g_pok:")
    need = [("H", t), ("W", t)] + (["xb"] if t == 11 else [])
    wf, ws_, wx = (yn(Q[c], need) for c in "fsx")
    lg = " lgkmcnt(0)" if t in PK else ""
    if wf == ws_ == wx: a(f"s_waitcnt vmcnt({wf}){lg}")
    else:
        sel, lo = ("s_cmp_lg_u32 s101, 0", ws_) if wf != ws_ else ("s_cmp_eq_u32 s35, 0", wx)
        assert (ws_ == wx) if wf != ws_ else True
        assert lo < wf
        a(f"{sel}\ns_cbranch_scc1 L_gw{t}\ns_waitcnt vmcnt({lo})")
        a(f"L_gw{t}:")
        a(f"s_waitcnt vmcnt({wf}){lg}")
    if t == 0: stamp(7)
    if nt_ <= 13:
        if off(nt_) - cur > 3072:
            a("\n".join(f"s_add_u32 s{18+i}, s{18+i}, {off(nt_)-cur}" for i in range(9))); cur = off(nt_)
        o = off(nt_) - cur; vv = 253 if nt_ in (6, 13) else 252
        L = ldh(nk, o, vv)
        for c in "fsx": Q[c] += [("H", nt_)]*4
        if nt_ in PK:
            L += [f"ds_read_b128 {vr(G2W[nk]+4*i,4)}, v251 offset:{5120*PK.index(nt_)+1024*i}" for i in range(5)]
        elif nt_ > 3:
            L += ldw(nk, o, vv)
            for c in "fsx": Q[c] += [("W", nt_)]*5
    if t == 8:
        L += xdma
        for c in "fsx": Q[c] += ["xb"]*4
    if t == 9: L += [f"s_mov_b64 s[{S_A}:{S_A+1}], s[{P['out']}:{P['out']+1}]"]
    L += F[t]
    assert len(L) <= 20, (t, len(L))
    n = 0; other = []
    if t in (6, 13): a(f"s_cmp_eq_u32 {WV}, 0\ns_cbranch_scc1 L_g_skip{t}")
    for i in ((1, 2, 3, 0) if t == 13 else range(4)):
        for dt in range(5):
            acc = AC2 + 4*(5*i+dt)
            a(f"v_mfma_f32_16x16x32_bf16 {vr(acc,4)}, {vr(G2W[k]+4*dt,4)}, {vr(G2H[k]+4*i,4)}, " + ("0" if t == 0 else vr(acc,4)))
            if n < len(L): a(L[n]); other.append(L[n])
            if t == 13:
                pi = {2: 1, 3: 2, 0: 3}.get(i)
                if pi:
                    w_ = f"ds_write_b128 v251, {vr(AC2+4*(5*pi+dt),4)} offset:{5120*(pi-1)+1024*dt}"; a(w_); other.append(w_)
            n += 1
    if t in (6, 13):
        a(f"s_branch L_g_join{t}")
        a(f"L_g_skip{t}:")
        a("s_nop 7")
        for x in other: a(x)
        a(f"L_g_join{t}:")
a("s_nop 7")
for j_ in range(20): a(f"v_add_f32 v{AC2+j_}, v{AC2+j_}, v{XS+j_}")
stamp(8)
a("s_waitcnt lgkmcnt(0)\ns_barrier")
stamp(9)
R_ = 144
for q in range(10): a(f"ds_read_b128 {vr(R_+4*q,4)}, v{2+q//5} offset:{1024*(q%5)}")
for dt in range(5): a(f"ds_read_b64_tr_b16 {vr(16+2*dt,2)}, v5 offset:{2048*dt}")
for q in range(10):
    a(f"s_waitcnt lgkmcnt({14 if q < 5 else 19-q})")
    dt = q % 5
    for h in range(2): a(f"v_pk_add_f32 {vr(AC2+4*dt+2*h,2)}, {vr(AC2+4*dt+2*h,2)}, {vr(R_+4*q+2*h,2)}")
    if q < 5: a(f"ds_read_b128 {vr(R_+40+4*q,4)}, v4 offset:{1024*q}")
for dt in range(5):
    a(f"s_waitcnt lgkmcnt({9-dt})")
    for h in range(2):
        a(f"v_lshlrev_b32 v10, 16, v{16+2*dt+h}\nv_and_b32 v11, 0xffff0000, v{16+2*dt+h}\nv_pk_add_f32 {vr(AC2+4*dt+2*h,2)}, {vr(AC2+4*dt+2*h,2)}, v[10:11]")
a("s_waitcnt lgkmcnt(0)")
for dt in range(5):
    for h in range(2): a(f"v_pk_add_f32 {vr(AC2+4*dt+2*h,2)}, {vr(AC2+4*dt+2*h,2)}, {vr(R_+40+4*dt+2*h,2)}")
    for h in range(2): a(f"v_cvt_pk_bf16_f32 v{32+2*dt+h}, v{AC2+4*dt+2*h}, v{AC2+4*dt+2*h+1}")
    a(f"ds_write_b64 v6, {vr(32+2*dt,2)} offset:{32*dt}")
for q in range(3): a(f"ds_read_b128 {vr(48+4*q,4)}, v7 offset:{1024*q}")
for q in range(3):
    a(f"s_waitcnt lgkmcnt({2-q})\nbuffer_store_dwordx4 {vr(48+4*q,4)}, v{OUTV[q]}, {SA}, s27 offen")
stamp(10)
endp()

a("L_park:")
if opt("p1only", 0): endp()
a(tile_rc(12, 9, 10))
for i in range(1, 5): a(f"v_add_u32 v{1+i}, {55296*i}, v1")
a(f"s_mul_i32 s12, s9, {5*55296}\ns_add_u32 s12, s12, {W2F}\ns_mov_b32 s10, 0\ns_mov_b32 s3, 0")
spoll(wc_issue, wc_test, sleep=10)
if not opt("epark", 15):
    a(f"v_mov_b32 v10, {CNT+8}\ns_mov_b32 s11, 0")
    a("L_pk_w:")
    a("s_add_u32 s11, s11, 1\ns_cmp_gt_u32 s11, 200000\ns_cbranch_scc1 L_exit\ns_sleep 2")
    a("ds_read_b32 v11, v10\ns_waitcnt lgkmcnt(0)\nv_readfirstlane_b32 s13, v11\ns_cmp_eq_u32 s13, 0\ns_cbranch_scc1 L_pk_w")
stamp(11)
a("L_pk_loop:")
for p in range(3):
    a(f"s_add_u32 s13, s12, {off(PK[p])}")
    for i in range(5): a(f"s_add_u32 m0, s10, {5120*p+1024*i}\nbuffer_load_dwordx4 v{1+i}, {WS}, s13 offen{G2F} lds")
    if opt("epark", 15): a(f"s_waitcnt vmcnt({opt('epark', 15)})")
a(f"s_cmp_eq_u32 s3, 0\ns_cselect_b32 s13, 6, 7\ns_lshl_b32 s13, s13, 10\ns_add_u32 s12, s12, s13\ns_add_u32 s10, s10, {AREG}\ns_add_u32 s3, s3, 1\ns_cmp_lt_u32 s3, 4\ns_cbranch_scc1 L_pk_loop")
a(f"v_mov_b32 v2, {CNT}\nv_mov_b32 v3, 1\ns_waitcnt vmcnt(0)\nds_write_b32 v2, v3\ns_waitcnt lgkmcnt(0)")
stamp(12)
endp()

a("L_fetch:")
if opt("p1only", 0): endp()
a(tile_rc(8, 9, 10))
a("s_mul_i32 s11, s8, 81920")
a(f"v_mov_b32 v1, 0\ns_lshl_b32 s13, s9, 2\ns_add_u32 s13, s13, s{S_XR}\ns_lshl_b32 s13, s13, 7\ns_add_u32 s13, s13, {YAC}")
spoll(sld(12, 13), "s_cmp_ge_u32 s12, 80", sleep=opt('ysleep', 8), far=('s_cmp_ge_u32 s12, 24', opt('yfar', 32)))
stamp(11)
a(f"s_mul_i32 s10, s9, 10240\ns_add_u32 s11, s11, s10\ns_add_u32 s11, s11, {YA}\nv_lshlrev_b32 v1, 4, v0")
for q in range(10):
    a(f"buffer_load_dwordx4 {vr(16+4*q,4)}, v1, {WS}, s11 offen sc1\ns_add_u32 s11, s11, 1024")
a(f"v_add_u32 v1, {YAT}, v1")
for q in range(10):
    a(f"s_waitcnt vmcnt({9-q})\nds_write_b128 v1, {vr(16+4*q,4)} offset:{1024*q}")
a("s_waitcnt lgkmcnt(0)")
stamp(12)
a("s_barrier")
endp()

c_issue = sld(33, 100)
c_test = "s_cmp_ge_u32 s33, 64"
clr_s = f"s_load_dwordx4 s[28:31], s[{P['dbg']}:{P['dbg']+1}], 0"
a("L_aux:")
a(f"s_sub_u32 s8, s{S_J}, s8\ns_and_b32 s15, {WV}, 3\ns_mov_b32 s35, 0\nv_mov_b32 v230, 0\ns_mov_b32 s71, 0\ns_mul_i32 s69, {WV}, {AREG}")
a(f"s_lshl_b32 s9, s{S_XR}, 4\ns_lshl_b32 s10, s{S_XC}, 3\ns_add_u32 s9, s9, s10\ns_add_u32 s9, s9, s8")
RAW, DV = 164, 64
a("v_and_b32 v238, 3, v0\nv_lshlrev_b32 v238, 2, v238")
a(f"s_cmp_ge_u32 s8, 8\ns_cbranch_scc1 L_nolnwg\ns_cmp_lt_u32 {WV}, 4\ns_cbranch_scc1 L_lnw")
a(f"s_lshl_b32 s{S_CH}, s9, 2\ns_add_u32 s{S_CH}, s{S_CH}, s15\ns_branch L_par")
a("L_nolnwg:")
a(f"s_mul_i32 s10, s{S_XR}, 12\ns_lshl_b32 s11, s{S_XC}, 2\ns_add_u32 s10, s10, s11\ns_add_u32 s10, s10, s8\ns_lshl_b32 s10, s10, 3\ns_add_u32 s10, s10, {WV}\ns_add_u32 s{S_CH}, s10, 192")
a(f"s_lshl_b32 s10, s{S_XC}, 4\ns_add_u32 s10, s10, s8\ns_cmp_lg_u32 s10, 8\ns_cbranch_scc1 L_par")
a(f"s_lshl_b32 s10, s{S_XR}, 15\ns_lshl_b32 s11, {WV}, 12\ns_add_u32 s10, s10, s11\ns_add_u32 s10, s10, {CLR}\nv_lshlrev_b32 v1, 4, v0\ns_mov_b32 s35, 5")
zero(4, 4)
for i in range(4): a(f"buffer_store_dwordx4 v[4:7], v1, {WS}, s10 offen offset:{1024*i} sc1")
a("L_par:")
a(f"s_lshl_b32 s10, s{S_CH}, 8\nv_lshl_add_u32 v1, v0, 2, s10")
for i, nm in enumerate(["are", "aim", "bre", "bim", "cre", "cim"]):
    a(f"global_load_dword v{240+i}, v1, s[{P[nm]}:{P[nm]+1}]{NT1}")
a(f"s_lshl_b32 s10, s{S_CH}, 1\nv_mov_b32 v1, s10\nglobal_load_ushort v246, v1, s[{P['ldt']}:{P['ldt']+1}]")
a(f"global_load_ushort v147, v1, s[{P['dsk']}:{P['dsk']+1}]")
a("s_cmp_lt_u32 s8, 8\ns_cbranch_scc1 L_wrole\ns_cmp_lg_u32 s35, 5\ns_cbranch_scc1 L_cs")
a(f"s_waitcnt vmcnt(8)\ns_barrier\ns_cmp_lg_u32 {WV}, 0\ns_cbranch_scc1 L_cs")
a(f"s_lshl_b32 s10, s{S_XR}, 2\nv_mov_b32 v2, 1\nv_mov_b32 v4, 0\ns_mov_b64 exec, 1\nbuffer_store_dword v2, v4, {DBG}, s10 offen sc1\ns_mov_b64 exec, -1\ns_waitcnt vmcnt(1)")
stamp(1)
a("L_cs:")
a(f"s_mov_b32 s35, 0\ns_sub_u32 s9, s8, 8\ns_lshl_b32 s10, s{S_XR}, 2\ns_lshl_b32 s10, s10, s{S_XC}\ns_add_u32 s9, s9, s10")
a(f"s_cmp_eq_u32 s{S_XC}, 0\ns_cselect_b32 s10, 8, 3\ns_movk_i32 s11, 120\ns_mul_i32 s9, s9, s10\ns_add_u32 s9, s9, {WV}\ns_cmp_ge_u32 {WV}, s10\ns_cbranch_scc1 L_kgen\ns_cmp_ge_u32 s9, s11\ns_cbranch_scc1 L_kgen")
a(f"s_and_b32 s15, s9, 3\ns_lshr_b32 s9, s9, 2\ns_mul_i32 s10, s{S_XC}, 30\ns_add_u32 s9, s9, s10")
a("s_mul_i32 s12, s15, 552960\ns_lshl_b32 s11, s9, 6\ns_add_u32 s71, s12, s11")
a(f"v_and_b32 v4, 31, v0\nv_lshlrev_b32 v4, 1, v4\nv_add_u32 v4, s11, v4\nglobal_load_ushort v145, v4, s[{P['b1']}:{P['b1']+1}]")
a("v_lshrrev_b32 v2, 2, v0\nv_and_b32 v3, 3, v0\nv_mul_u32_u24 v1, 3456, v2\nv_lshl_add_u32 v230, v3, 4, v1\ns_mov_b32 s35, 2\ns_branch L_kgen")
a("L_wrole:")
W2R = lambda i: (RAW + 4*i) if i < 10 else (148 + 4*(i-10))
a("s_barrier")
srd(S_B, P['w2'], 2211840)
a("v_lshrrev_b32 v8, 3, v0\nv_mul_u32_u24 v8, 1280, v8\nv_and_b32 v9, 7, v0\nv_lshl_add_u32 v8, v9, 4, v8\ns_lshl_b32 s8, s9, 2\ns_add_u32 s8, s8, s15")
for u_ in range(3):
    a(f"s_add_u32 s10, s8, {256*u_}\ns_mul_i32 s11, s10, 6554\ns_lshr_b32 s11, s11, 16\ns_mul_i32 s70, s11, 10\ns_sub_u32 s70, s10, s70")
    a(f"s_mul_i32 s13, s11, 40960\ns_lshl_b32 s71, s70, 7\ns_add_u32 s13, s13, s71\ns_mul_i32 s71, s70, 216\ns_mul_i32 s70, s11, 43\ns_lshr_b32 s70, s70, 8\ns_mul_i32 s70, s70, 3\ns_sub_u32 s11, s11, s70\ns_sub_u32 s70, s11, s70\ns_cmp_ge_u32 s70, 3\ns_cselect_b32 s70, 24, 0\ns_add_u32 s11, s11, s70\ns_add_u32 s71, s71, s11\ns_lshl_b32 s71, s71, 10\ns_add_u32 s{96+u_}, s71, {W2F}")
    if u_ == 2: a(f"s_cmp_lt_u32 s10, 540\ns_cselect_b32 s13, s13, {OOB}\ns_cselect_b32 s98, s98, {OOB}")
    for q in range(4): a(f"buffer_load_dwordx4 {vr(W2R(4*u_+q),4)}, v8, {SB}, s13 offen{NT1}\ns_add_u32 s13, s13, 10240")
a("s_mov_b32 s35, 1")
a("L_kgen:")
a("s_mov_b32 s68, 0\ns_mov_b32 m0, s69")
a(lnc_addr)
a(f"s_mov_b32 s101, 0\nv_mov_b32 v146, 0\nv_mov_b32 v253, 0\ns_cmp_lt_u32 {WV}, 4\ns_cbranch_scc1 L_kg_nocs")
conv_setup()
a("L_kg_nocs:")
a("v_and_b32 v2, 31, v0\nv_mul_u32_u24 v2, 272, v2\nv_lshrrev_b32 v3, 5, v0\nv_lshl_add_u32 v2, v3, 4, v2\nv_add_u32 v228, s69, v2")
KA = 208
zero(KA, 16)
a("s_mov_b32 s3, 0\ns_cmp_eq_u32 s35, 1\ns_cbranch_scc1 L_kw12\ns_waitcnt vmcnt(1)")
a("L_kw12:")
a("s_waitcnt vmcnt(12)")
stamp(3)
a(f"v_lshlrev_b32 v3, 16, v246\nv_mul_f32 v3, {f32(math.log2(math.e))}, v3\nv_exp_f32 v3, v3\nv_cvt_pk_bf16_f32 v3, v3, v3\nv_lshlrev_b32 v229, 16, v3")
a("s_cmp_eq_u32 s35, 1\ns_cbranch_scc1 L_w2mid")
a("L_kg_loop:")
for i in range(6): a(f"v_and_b32 v{4+i}, 0xffff0000, v{240+i}\nv_lshlrev_b32 v{240+i}, 16, v{240+i}")
for i in range(4): a(f"v_mul_f32 v{4+i}, v229, v{4+i}")
a(f"v_mul_f32 v4, {f32(math.log2(math.e))}, v4\nv_mul_f32 v5, {f32(1/(2*math.pi))}, v5")
Z1, Z8, Z256, W = 10, 12, 14, 16
for k, z in ((1, Z1), (8, Z8), (256, Z256)):
    a(f"v_mul_f32 v20, {f32(k)}, v4\nv_mul_f32 v21, {f32(k)}, v5\nv_fract_f32 v21, v21\nv_exp_f32 v20, v20\nv_cos_f32 v{z}, v21\nv_sin_f32 v{z+1}, v21")
    neg = " neg_hi:[0,1]" if k == 8 else ""
    a(f"v_pk_mul_f32 {vr(z,2)}, {vr(z,2)}, v[20:21] op_sel:[0,0] op_sel_hi:[1,0]{neg}")
cmul(W, 8, 6, 20)
rowof = {}
h0 = [[0,1,2,3],[4,5,6,7],[1024,1032,1280,1288],[1536,1544,1792,1800]]
h1 = [[256,258,260,262],[264],[512,516,520],[768,772,776]]
for q in range(4):
    for i, v in enumerate(h0[q]): rowof[v] = 8*q + i
    for i, v in enumerate(h1[q]): rowof[v] = 8*q + 4 + i
cv = [0]
def put(src, row):
    t = 24 + (cv[0] % 4); cv[0] += 1
    a(f"v_cvt_pk_bf16_f32 v{t}, v{src}, v{src+1}\nds_write_addtid_b32 v{t} offset:{row*272}")
G = {0: W}
opsG = [lambda: put(W, rowof[0])]
for b in range(1, 9):
    G[b] = 32 + 2*b
    opsG.append(lambda b=b: (cmul(G[b], G[b-1], Z1, 20), put(G[b], rowof[b]) if b < 8 else None))
Pq = {1: Z256}
for q in range(1, 8):
    if q > 1:
        Pq[q] = 52 + 2*(q & 1)
        opsG.append(lambda q=q: cmul(Pq[q], Pq[q-1], Z256, 20))
    ds = {1: (0,2,4,6,8), 2: (0,4,8), 3: (0,4,8)}.get(q, (0, 8))
    for n, d in enumerate(ds):
        opsG.append(lambda q=q, d=d, n=n: (cmul(56+2*(n&1), G[d], Pq[q], 20), put(56+2*(n&1), rowof[256*q+d])))
opsE = [lambda: a(f"v_mov_b32 v28, 0x3f80\nds_write_addtid_b32 v28 offset:{32*272}"), lambda: put(Z8, 33)]
for j in range(2, 32):
    src = Z8 if j == 2 else 60 + 2*((j-1) & 1)
    dst = 60 + 2*(j & 1)
    opsE.append(lambda src=src, dst=dst, j=j: (cmul(dst, src, Z8, 22), put(dst, 32+j)))
for i in range(max(len(opsG), len(opsE))):
    if i < len(opsE): opsE[i]()
    if i < len(opsG): opsG[i]()
    if i < 10:
        a(f"s_cmp_lg_u32 s35, 2\ns_cbranch_scc1 L_kg_nl{i}\nbuffer_load_dwordx4 {vr(RAW+4*i,4)}, v230, {SB}, s71 offen{NT}\ns_add_u32 s71, s71, 55296")
        a(f"L_kg_nl{i}:")
    if i == 12 and opt("eu", 1):
        a(f"s_lshl_b32 s10, s3, 2\ns_and_b32 s10, s10, {WV}\ns_cbranch_scc1 L_eu0")
        a("L_kg_ne1:")
    if i == 31 and opt("eu", 1):
        a("s_cmp_eq_u32 s68, 1\ns_cbranch_scc1 L_eu")
        a("L_kg_ne2:")
    if i == opt("wsig", 14):
        a("s_cmp_eq_u32 s35, 6\ns_cbranch_scc1 L_w2sig")
        a("L_kg_nsig:")
a("s_waitcnt lgkmcnt(0)")
for k in range(8):
    a(f"ds_read_b128 {vr(64+8*k,4)}, v228 offset:{32*k}\nds_read_b128 {vr(68+8*k,4)}, v228 offset:{32*272+32*k}")
for k in range(8):
    a(f"s_waitcnt lgkmcnt({14-2*k})")
    a(f"v_mfma_f32_32x32x16_bf16 {vr(KA,16)}, {vr(64+8*k,4)}, {vr(68+8*k,4)}, {vr(KA,16)}")
a("s_cmp_lg_u32 s3, 0\ns_cbranch_scc1 L_kg_done")
a(clr_s)
a("s_mov_b32 s3, 1\ns_cmp_lg_u32 s35, 2\ns_cbranch_scc1 L_kg_loop\ns_branch L_csum")
a("L_eu0:")
a("s_waitcnt lgkmcnt(0)\ns_and_b32 s10, s28, s29\ns_and_b32 s11, s30, s31\ns_and_b32 s10, s10, s11\ns_cselect_b32 s35, 4, s35\ns_cmp_lt_u32 s35, 4\ns_cbranch_scc1 L_kg_ne1")
a(c_issue)
a("s_mov_b32 s68, 1\ns_branch L_kg_ne1")
a("L_eu:")
a("s_mov_b32 s68, 0\ns_waitcnt lgkmcnt(0)")
a(c_test)
a("s_cbranch_scc0 L_kg_ne2")
uloads()
a("s_mov_b32 s68, 2\ns_branch L_kg_ne2")
def need_clr(tag):
    a(f"s_waitcnt lgkmcnt(0)\ns_and_b32 s28, s28, s29\ns_and_b32 s30, s30, s31\ns_and_b32 s28, s28, s30\ns_cbranch_scc1 L_clr_{tag}")
    poll(clr_issue(239, 238), clr_test(239), sleep=8, issued=False)
    a(f"L_clr_{tag}:")
def touch():
    if not opt("touch", 0): return
    n = 270 if RS else 135
    a(f"s_and_b32 s10, s8, 7\ns_lshl_b32 s10, s10, 3\ns_add_u32 s10, s10, {WV}")
    if RS: a(f"s_and_b32 s11, s2, 7\ns_lshl_b32 s11, s11, 3\ns_add_u32 s10, s10, s11\ns_and_b32 s10, s10, 63\ns_mul_i32 s10, s10, {n*128}")
    else: a(f"s_lshl_b32 s11, s{S_XR}, 4\ns_add_u32 s10, s10, s11\ns_and_b32 s10, s10, 63\ns_mul_i32 s10, s10, {n*128}\ns_mul_i32 s11, s{S_XC}, 1105920\ns_add_u32 s10, s10, s11")
    a(f"s_add_u32 s10, s10, {W2F}\nv_lshlrev_b32 v4, 7, v0")
    for i in range(n // 64): a(f"buffer_load_dword v144, v4, {WS}, s10 offen sc1\ns_add_u32 s10, s10, 8192")
    a(few((1 << (n % 64)) - 1, f"buffer_load_dword v144, v4, {WS}, s10 offen sc1"))
def lds_wait(tag, target):
    a("s_mov_b32 s12, 0")
    a(f"L_sb{tag}:")
    a("s_add_u32 s12, s12, 1\ns_cmp_gt_u32 s12, 2000000\ns_cbranch_scc1 L_exit")
    a(f"ds_read_b32 v15, v14\ns_waitcnt lgkmcnt(0)\nv_readfirstlane_b32 s11, v15\ns_cmp_lt_u32 s11, {target}\ns_cbranch_scc1 L_sb{tag}")
a("L_lnw:")
a("s_lshl_b32 s10, s9, 5\ns_lshl_b32 s11, s15, 3\ns_add_u32 s14, s10, s11\ns_mul_i32 s11, s14, 1280")
a("v_lshrrev_b32 v2, 4, v0\nv_and_b32 v3, 15, v0\nv_mul_u32_u24 v1, 2560, v2\nv_lshl_add_u32 v1, v3, 4, v1")
for sg in range(2):
    for i in range(5):
        a(f"buffer_load_dwordx4 {vr(RAW+20*sg+4*i,4)}, v1, {SA}, s11 offen offset:{sg*1280+i*256}{NT}")
a(f"v_mov_b32 v4, {CNT}\nv_mov_b32 v6, 0\nv_mov_b32 v7, 0\nds_write_b64 v4, v[6:7]\ns_waitcnt lgkmcnt(0)\ns_barrier")
a("s_lshl_b32 s11, s15, 4\nv_lshlrev_b32 v8, 2, v2\nv_add_u32 v8, s11, v8")
for i in range(5):
    a(f"v_add_u32 v4, {16*i}, v3\nv_mul_u32_u24 v5, 3277, v4\nv_lshrrev_b32 v5, 16, v5\nv_mul_u32_u24 v5, {BREG-20*528}, v5\nv_mul_u32_u24 v4, 528, v4\nv_add3_u32 v{150+i}, v4, v5, v8")
a(f"s_setprio 2\nv_mov_b32 v14, {CNT}\nv_lshrrev_b32 v2, 4, v0\ns_mov_b32 s12, 0x3f803f80")
zero(4, 4)
a("s_waitcnt vmcnt(0)")
stamp(1)
for sg in range(2):
    for k in range(20):
        a(f"v_dot2_f32_bf16 v{4+2*sg+(k&1)}, v{RAW+20*sg+k}, s12, v{4+2*sg+(k&1)}")
a("v_add_f32 v4, v4, v5\nv_add_f32 v6, v6, v7")
def unp(sg, ks):
    for k in ks:
        d = DV + 40*sg + 2*k
        a(f"v_lshlrev_b32 v{d}, 16, v{RAW+20*sg+k}\nv_and_b32 v{d+1}, 0xffff0000, v{RAW+20*sg+k}")
for n, sh in enumerate((8, 4, 2, 1)):
    a(f"v_add_f32_dpp v4, v4, v4 row_ror:{sh} row_mask:0xf bank_mask:0xf\nv_add_f32_dpp v6, v6, v6 row_ror:{sh} row_mask:0xf bank_mask:0xf")
    unp(0, range(5*n, 5*n+5))
a(f"v_mul_f32 v4, {f32(1/640)}, v4\nv_mul_f32 v6, {f32(1/640)}, v6")
a("v_cvt_pk_bf16_f32 v5, v4, v6\nv_lshlrev_b32 v8, 16, v5\nv_and_b32 v9, 0xffff0000, v5")
a("v_sub_f32 v56, 0, v8\nv_sub_f32 v57, 0, v8\nv_sub_f32 v58, 0, v9\nv_sub_f32 v59, 0, v9")
zero(10, 4)
unp(1, range(20))
for sg in range(2):
    for k in range(20):
        d = DV + 40*sg + 2*k
        a(f"v_pk_add_f32 {vr(d,2)}, {vr(d,2)}, {vr(56+2*sg,2)}")
    for k in range(20):
        d = DV + 40*sg + 2*k
        a(f"v_pk_fma_f32 {vr(10+2*sg,2)}, {vr(d,2)}, {vr(d,2)}, {vr(10+2*sg,2)}")
a("v_add_f32 v10, v10, v11\nv_add_f32 v12, v12, v13")
def rnd(sg, ks):
    for k in ks:
        d = DV + 40*sg + 2*k
        a(f"v_cvt_pk_bf16_f32 v{RAW+20*sg+k}, v{d}, v{d+1}")
for n, sh in enumerate((8, 4, 2, 1)):
    a(f"v_add_f32_dpp v10, v10, v10 row_ror:{sh} row_mask:0xf bank_mask:0xf\nv_add_f32_dpp v12, v12, v12 row_ror:{sh} row_mask:0xf bank_mask:0xf")
    rnd(0, range(2*n, 2*n+2))
a("v_sub_f32 v4, v4, v8\nv_sub_f32 v6, v6, v9\nv_mul_f32 v4, v4, v4\nv_mul_f32 v6, v6, v6")
a(f"s_mov_b32 s12, {f32(1/640)}\nv_fma_f32 v4, v10, s12, -v4\nv_fma_f32 v6, v12, s12, -v6")
a("v_max_f32 v4, 0, v4\nv_max_f32 v6, 0, v6")
a("v_cvt_pk_bf16_f32 v7, v4, v6\nv_lshlrev_b32 v4, 16, v7\nv_and_b32 v6, 0xffff0000, v7")
a(f"v_add_f32 v4, {f32(1e-5)}, v4\nv_add_f32 v6, {f32(1e-5)}, v6")
a("v_cvt_pk_bf16_f32 v7, v4, v6\nv_lshlrev_b32 v4, 16, v7\nv_and_b32 v6, 0xffff0000, v7")
a("v_sqrt_f32 v4, v4\nv_sqrt_f32 v6, v6\nv_cvt_pk_bf16_f32 v7, v4, v6")
a("v_lshlrev_b32 v4, 16, v7\nv_and_b32 v6, 0xffff0000, v7\nv_rcp_f32 v60, v4\nv_rcp_f32 v61, v4\nv_rcp_f32 v62, v6\nv_rcp_f32 v63, v6")
a("v_and_b32 v12, 0xffff, v5\nv_or_b32 v12, v12, v4\nv_lshrrev_b32 v13, 16, v5\nv_or_b32 v13, v13, v6")
a(f"s_lshl_b32 s11, s14, 2\ns_add_u32 s11, s11, {STATS}\nv_lshlrev_b32 v1, 3, v2")
a(clr_s)
rnd(0, range(8, 20)); rnd(1, range(20))
unp(0, range(20)); unp(1, range(20))
for sg in range(2):
    for k in range(20):
        d = DV + 40*sg + 2*k
        a(f"v_pk_mul_f32 {vr(d,2)}, {vr(d,2)}, {vr(60+2*sg,2)}")
for k in range(20):
    for h in range(2):
        d = DV + 2*k + h
        a(f"v_cvt_pk_bf16_f32 v{d}, v{d}, v{d+40}")
    d = DV + 2*k
    a(f"ds_write2_b32 v{150+k//4}, v{d}, v{d+1} offset0:{(k%4)*32} offset1:{(k%4)*32+16}")
a("v_mov_b32 v15, 1\nds_add_u32 v14, v15")
need_clr("ln")
a(f"s_mov_b32 exec_lo, 0x10001\ns_mov_b32 exec_hi, 0x10001\nbuffer_store_dwordx2 v[12:13], v1, {WS}, s11 offen sc1\ns_mov_b64 exec, -1")
stamp(2)
a("v_lshrrev_b32 v3, 5, v0\nv_lshlrev_b32 v2, 4, v0\nv_lshl_add_u32 v1, v3, 4, v2\nv_add_u32 v1, s69, v1")
a("s_mul_i32 s10, s9, 40960\ns_mul_i32 s11, s15, 10240\ns_add_u32 s10, s10, s11")
lds_wait("b", 256)
for i in range(10): a(f"ds_read_b128 {vr(RAW+4*i,4)}, v1 offset:{1056*i}")
for i in range(10):
    a(f"s_waitcnt lgkmcnt({9-i})\nbuffer_store_dwordx4 {vr(RAW+4*i,4)}, v2, {WS}, s10 offen sc1\ns_add_u32 s10, s10, 1024")
a(f"s_lshl_b32 s10, s15, 11\ns_add_u32 s10, s10, {LNC}\nv_lshlrev_b32 v4, 7, v0\nv_mov_b32 v5, 1")
a(f"s_waitcnt vmcnt(0)\ns_mov_b64 exec, 0xffff\nbuffer_atomic_add v5, v4, {WS}, s10 offen sc1\ns_mov_b64 exec, -1\ns_setprio 0")
stamp(4)
a("s_lshl_b32 s8, s9, 2\ns_add_u32 s8, s8, s15")
a("s_cmp_lg_u32 s8, 255\ns_cbranch_scc1 L_norelay")
a(f"v_lshlrev_b32 v6, 6, v0\ns_mov_b32 s8, {W2C}")
poll(few(3, f"buffer_load_dword v7, v6, {DBG}, 0 offen offset:128 sc1"),
     "v_readlane_b32 s9, v7, 0\nv_readlane_b32 s10, v7, 1\ns_add_u32 s9, s9, s10\ns_cmp_ge_u32 s9, 64", sleep=4, issued=False)
stamp(11)
a(f"s_mov_b32 exec_hi, 0\nbuffer_store_dword v5, v4, {WS}, s8 offen offset:1024 sc1\ns_mov_b32 exec_hi, -1")
a("L_norelay:")
a("s_mov_b32 s35, 1\ns_branch L_g2")
a("L_csum:")
a("s_setprio 3\ns_mov_b32 s12, 0x00003f80\ns_mov_b32 s13, 0x3f800000\nv_and_b32 v3, 3, v0")
zero(4, 8)
a("s_waitcnt vmcnt(0)")
for i in range(10):
    for k in range(4):
        a(f"v_dot2_f32_bf16 v{4+2*k}, v{RAW+4*i+k}, s12, v{4+2*k}\nv_dot2_f32_bf16 v{5+2*k}, v{RAW+4*i+k}, s13, v{5+2*k}")
for sh in (8, 4):
    for r in range(8): a(f"v_add_f32_dpp v{4+r}, v{4+r}, v{4+r} row_ror:{sh} row_mask:0xf bank_mask:0xf")
a("v_lshrrev_b32 v12, 4, v0\nv_lshlrev_b32 v12, 7, v12\nv_lshl_add_u32 v12, v3, 5, v12\nv_add_u32 v12, s69, v12")
a("ds_write_b128 v12, v[4:7]\nds_write_b128 v12, v[8:11] offset:16")
a("v_and_b32 v12, 31, v0\nv_lshl_add_u32 v13, v12, 2, s69")
for p in range(4): a(f"ds_read_b32 v{16+p}, v13 offset:{128*p}")
a("s_waitcnt lgkmcnt(0)\nv_add_f32 v16, v16, v17\nv_add_f32 v18, v18, v19\nv_add_f32 v16, v16, v18")
a("v_cvt_pk_bf16_f32 v4, v16, v16\nv_lshlrev_b32 v5, 16, v4\nv_sub_f32 v5, v16, v5")
a("v_cvt_pk_bf16_f32 v6, v16, v5\nv_and_b32 v7, 0xffff0000, v6\nv_sub_f32 v7, v5, v7")
a("v_cvt_pk_bf16_f32 v7, v7, v7\nv_and_b32 v7, 0xffff, v7\nv_or_b32 v7, 1, v7")
a(f"s_lshl_b32 s12, s9, 8\ns_mul_i32 s13, s15, {CSP}\ns_add_u32 s12, s12, s13\ns_add_u32 s12, s12, {CSUM}\nv_lshlrev_b32 v12, 3, v12")
need_clr("cs")
a("v_lshl_or_b32 v7, v145, 16, v7")
a(f"s_mov_b32 exec_hi, 0\nbuffer_store_dwordx2 v[6:7], v12, {WS}, s12 offen sc1\ns_mov_b32 exec_hi, -1")
stamp(2)
a("s_setprio 0\ns_mov_b32 s35, 4\ns_branch L_kg_loop")
a("L_w2mid:")
a("s_setprio 3")
a("v_lshlrev_b32 v2, 4, v0\ns_waitcnt vmcnt(0)")
for i in range(12): a(f"ds_write_b128 v{cLIN}, {vr(W2R(i),4)} offset:{1024*i}")
a("v_lshrrev_b32 v6, 5, v0\nv_bfe_u32 v7, v0, 4, 1\nv_lshlrev_b32 v6, 4, v6\nv_lshl_add_u32 v6, v7, 2, v6\nv_bfe_u32 v7, v0, 2, 2\nv_add_u32 v6, v6, v7")
a("v_lshlrev_b32 v6, 7, v6\nv_and_b32 v7, 3, v0\nv_lshl_add_u32 v6, v7, 3, v6\nv_add_u32 v6, s69, v6")
for u_ in range(3):
    for dt in range(4):
        for h in range(2): a(f"ds_read_b64_tr_b16 {vr(W2R(4*u_+dt)+2*h,2)}, v6 offset:{4096*u_+1024*h+32*dt}")
    for dt in range(4):
        a(f"s_waitcnt lgkmcnt({6-2*dt})\nbuffer_store_dwordx4 {vr(W2R(4*u_+dt),4)}, v2, {WS}, s{96+u_} offen sc1\ns_add_u32 s{96+u_}, s{96+u_}, 55296")
a("s_setprio 2\ns_mov_b32 s35, 6\ns_branch L_kg_loop")
a("L_w2sig:")
a(f"v_mov_b32 v4, {CNT+4}\nv_mov_b32 v5, 1\nv_mov_b32 v6, 0\ns_waitcnt vmcnt(0)\ns_mov_b64 exec, 1\nds_add_rtn_u32 v7, v4, v5\ns_waitcnt lgkmcnt(0)\nv_readfirstlane_b32 s10, v7")
a(f"s_and_b32 s11, s9, 1\ns_lshl_b32 s11, s11, 6\ns_add_u32 s11, s11, 128\ns_cmp_eq_u32 s10, 3\ns_cselect_b32 s11, s11, {OOB}\nbuffer_atomic_add v5, v6, {DBG}, s11 offen sc1\ns_mov_b64 exec, -1")
stamp(2)
a(f"s_setprio {opt('wprio', 1)}\ns_mov_b32 s35, 0\ns_branch L_kg_nsig")
a("L_kg_done:")
a("s_waitcnt vmcnt(4)")
a("s_cmp_ge_u32 s35, 3\ns_cbranch_scc1 L_clr_fin")
a(clr_s)
need_clr("fin")
a(f"s_waitcnt lgkmcnt(0)\ns_cmp_lt_u32 {WV}, 4\ns_cbranch_scc1 L_kg_nc\ns_cmp_eq_u32 s68, 2\ns_cbranch_scc1 L_kg_nc\ns_waitcnt vmcnt(0)")
a(c_issue)
a("L_kg_nc:")
a("s_nop 7")
stamp(4)
a(f"s_setprio {opt('pprio', 2)}")
r = lambda i: KA + i
a("v_lshlrev_b32 v1, 4, v0\nv_add_u32 v13, s69, v1")
zero(4, 4)
for i in range(3): a(f"ds_write_b128 v13, v[4:7] offset:{SCR+1024*i}")
a("v_and_b32 v3, 31, v0\nv_lshlrev_b32 v2, 4, v3\nv_sub_u32 v2, s69, v2\nv_add_u32 v2, 512, v2")
def pack(o, pairs):
    for i, (lo, hi) in enumerate(pairs): a(f"v_cvt_pk_bf16_f32 v{o+i}, {lo}, {hi}")
R = lambda i: f"v{KA+i}"
pack(16, [(R(7),R(6)),(R(5),R(4)),(R(3),R(2)),(R(1),R(0))])
pack(20, [(R(4),R(3)),(R(2),R(2)),(R(2),R(1)),(R(0),R(0))])
pack(24, [("0","0"),(R(9),R(9)),(R(9),R(8)),(R(8),R(8))])
pack(28, [(R(9),R(10)),(R(13),R(14))])
pack(30, [(R(9),R(11)),(R(13),R(15))])
a(f"v_and_b32 v8, 1, v3\nv_and_b32 v10, 30, v3\nv_mul_u32_u24 v9, 320, v8\nv_mul_u32_u24 v8, 640, v8\ns_add_u32 s10, s69, {T2}\nv_sub_u32 v10, s10, v10\nv_add_u32 v8, v8, v10\nv_add_u32 v9, v9, v10")
a("s_mov_b32 exec_hi, 0")
a(f"ds_write_b128 v2, v[16:19] offset:{IMG+1072-512}")
for q in range(4):
    for cp in range(2): a(f"ds_write_b16{'_d16_hi' if q & 1 else ''} v9, v{30+q//2} offset:{T3-T2 + 160*cp + 2*(63-16*q-cp)}")
a("s_mov_b32 exec_hi, -1\ns_mov_b32 exec_lo, 0")
a(f"ds_write_b128 v2, v[20:23] offset:{IMG+560-512}")
for q in range(2):
    for w in range(2):
        for cp in range(2): a(f"ds_write_b16{'_d16_hi' if w else ''} v8, v{28+q} offset:{320*w + 160*cp + 2*(47-16*q-cp)}")
a(f"s_mov_b32 exec_hi, 1\nds_write_b128 v2, v[24:27] offset:{IMG+48-512}\nds_write_b16 v8, v4 offset:{2*47}\nds_write_b16 v8, v4 offset:{160+2*46}\ns_mov_b64 exec, -1")
a(f"s_cmp_lt_u32 {WV}, 4\ns_cbranch_scc1 L_kexp")
a("s_cmp_eq_u32 s68, 2\ns_cbranch_scc1 L_cv_kpart\ns_waitcnt lgkmcnt(0)")
a(c_test)
a("s_cbranch_scc0 L_cv_kpart")
uloads()
a("s_mov_b32 s68, 2")
a("L_cv_kpart:")
B2, B3 = 164, 188
a(f"v_mov_b32 v5, s69\nds_read_u16 v34, v5 offset:{T2 + 6*160 + 2*16}")
a(f"ds_read_b128 v[16:19], v{cLIN} offset:{IMG}\nds_read_b64 v[20:21], v{cLIN} offset:{IMG+16}\nds_read_b128 v[24:27], v{cIMG2} offset:{IMG+1024}\nds_read_b64 v[28:29], v{cIMG2} offset:{IMG+1040}")
for i in range(6):
    for h in range(2): a(f"ds_read2_b32 {vr(B2+4*i+2*h,2)}, v{cT2} offset0:{4*i+2*h} offset1:{4*i+2*h+1}")
for d in range(4):
    for h in range(2): a(f"ds_read2_b32 {vr(B3+4*d+2*h,2)}, v{cT3} offset0:{8*(3-d)+2*h} offset1:{8*(3-d)+2*h+1}")
a("v_lshl_or_b32 v5, v147, 16, v147")
for k in range(4): a(f"v_and_b32 v{AD+k}, v{AD+k}, v5")
a("s_waitcnt lgkmcnt(15)\nv_lshl_or_b32 v5, v34, 16, v34")
for k in range(4): a(f"v_and_b32 v{AB+k}, v{AB+k}, v5")
for rr, (D, va, off) in enumerate(((16, cKW1, 0), (24, cKW2, 4608))):
    O = 64 + 16*rr
    for i in range(4):
        a(f"v_mov_b32 v{O+4*i}, v{D+i}\nv_mov_b32 v{O+4*i+1}, v{D+i+1}")
        a(f"v_alignbit_b32 v{O+4*i+2}, v{D+i+1}, v{D+i}, 16\nv_alignbit_b32 v{O+4*i+3}, v{D+i+2}, v{D+i+1}, 16")
        a(f"ds_write_b128 v{va}, {vr(O+4*i,4)} offset:{off + 16*i}")
a(f"ds_read_b64 {vr(A16,2)}, v{cA0}\nds_read_b64 {vr(A16+2,2)}, v{cA1}")
stamp(5)
a("s_cmp_lg_u32 s101, 0\ns_cbranch_scc1 L_cv_direct")
a("L_cv_upart:")
a(f"s_setprio {opt('pprio', 2)}")
zero(4, 4)
a(f"s_mov_b64 exec, 0x3fffffff\nds_write_b128 v{cLIN}, v[4:7] offset:{UB-480}\ns_mov_b64 exec, 3")
for o in (W3B-48, W5B-48, W7B-48, W9B-48, W9B+2032): a(f"ds_write_b128 v{cLIN}, v[4:7] offset:{o}")
a("s_mov_b64 exec, -1")
a("s_bitcmp1_b32 s68, 1\ns_cbranch_scc1 L_cv_u2")
spoll(c_issue, c_test, sleep=opt("lsleep", 6))
uloads()
a("L_cv_u2:")
a("s_mov_b32 s31, 0\ns_bitcmp1_b32 s68, 0\ns_cbranch_scc1 L_cv_u3\ns_cmp_eq_u32 s101, 0\ns_cbranch_scc1 L_cv_u3")
a(sld(31, S_MB))
a("L_cv_u3:")
stamp(6)
a("s_waitcnt vmcnt(0)")
for q in range(4): a(f"ds_write_b128 v{cLIN}, {vr(148+4*q,4)} offset:{UB+1024*q}")
SET = [(16, 24), (56, 64)]; CA = 96
a(f"v_mov_b32 v13, v{cLIN}\ns_mov_b32 s3, 0")
o = UB - 16
wrd = f"ds_read_b64 v[128:129], v13 offset:{o-8}\nds_read_b128 v[130:133], v13 offset:{o}\nds_read_b64 v[134:135], v13 offset:{o+16}"
a(wrd)
a("s_waitcnt lgkmcnt(0)\ns_and_b32 s13, s31, s101\ns_cbranch_scc0 L_cv_win")
kloads()
a("s_or_b32 s68, s68, 1")
a("L_cv_win:")
D = 128; Pf = 96
for e in range(16):
    a(f"v_lshlrev_b32 v{Pf+e}, 16, v{D+e//2}" if e % 2 == 0 else f"v_and_b32 v{Pf+e}, 0xffff0000, v{D+e//2}")
a(wrd.replace(f"offset:{o-8}", f"offset:{o-8+1024}").replace(f"offset:{o}\n", f"offset:{o+1024}\n").replace(f"offset:{o+16}", f"offset:{o+16+1024}"))
for e in range(1, 16): a(f"v_add_f32 v{Pf+e}, v{Pf+e}, v{Pf+e-1}")
for h, base in ((1, W3B), (2, W5B), (3, W7B), (4, W9B)):
    if h == 3: a("s_cmp_eq_u32 s3, 2\ns_cbranch_scc1 L_cv_wend")
    T = 112
    for i in range(8):
        b = 4+i-h-1
        a(f"v_sub_f32 v{T+i}, v{Pf+4+i+h}, v{Pf+b}" if b >= 0 else f"v_mov_b32 v{T+i}, v{Pf+4+i+h}")
    for i in range(4): a(f"v_cvt_pk_bf16_f32 v{120+4*(h&1)+i}, v{T+2*i}, v{T+2*i+1}")
    a(f"ds_write_b128 v13, {vr(120+4*(h&1),4)} offset:{base-16}")
a("v_add_u32 v13, 1024, v13\ns_add_u32 s3, s3, 1\ns_waitcnt lgkmcnt(4)\ns_branch L_cv_win")
a("L_cv_wend:")
a("s_cmp_lg_u32 s101, 0\ns_cbranch_scc1 L_cv_rk")
a("L_cv_direct:")
a(f"v_add_u32 v8, 2304, v{cA0}\nv_add_u32 v9, 2304, v{cA1}\nv_mov_b32 v10, v{cB}")
def rd(st):
    A_, B_ = SET[st]; Rr = []
    for x in range(2):
        Rr.append(f"ds_read_b64 {vr(A_+4*x,2)}, v8 offset:{2304*(1-x)}")
        Rr.append(f"ds_read_b64 {vr(A_+4*x+2,2)}, v9 offset:{2304*(1-x)}")
    for b in range(8): Rr.append(f"ds_read_b128 {vr(B_+4*b,4)}, v10 offset:{512*b}")
    return Rr
advk = ["v_subrev_u32 v8, 288, v8", "v_subrev_u32 v9, 288, v9", "v_subrev_u32 v10, 64, v10"]
for x in rd(0) + advk: a(x)
a(f"s_setprio {opt('cprio', 2)}\ns_mov_b32 s3, 0\ns_waitcnt lgkmcnt(0)")
if PROF: a("s_cmp_lt_u32 s4, 4\ns_cbranch_scc1 L_ns7")
stamp(7)
if PROF: a("L_ns7:")
def mf(n, A_, B_, c=None): a(f"v_mfma_f32_16x16x32_bf16 {vr(CA+4*n,4)}, {vr(A_,4)}, {vr(B_,4)}, {c if c else vr(CA+4*n,4)}")
for b in range(8): mf(b, AD, SET[0][1]+4*b, "0")
for b in range(6): mf(b+2, A16, SET[0][1]+4*b)
for b in range(4): mf(b+4, AB, SET[0][1]+4*b)
a("L_cv_loop:")
for st in range(2):
    A_, B_ = SET[st]; Rr = rd(1-st); n = 0
    for x in range(2):
        for b in range(8-x):
            mf(x+b, A_+4*x, B_+4*b)
            if n < 6: a(Rr[2*n]); a(Rr[2*n+1])
            elif n < 9: a(advk[n-6])
            if st == 1 and n == 12: a("s_add_u32 s3, s3, 1\ns_cmp_lt_u32 s3, 4")
            n += 1
    a("s_waitcnt lgkmcnt(0)")
a("s_cbranch_scc1 L_cv_loop")
a("L_cv_far:")
for f in range(12):
    for h in range(2): a(f"ds_read_b64_tr_b16 {vr(16+4*f+2*h,2)}, v{cW2} offset:{256*f+128*h}")
    if f == 6: a("s_waitcnt lgkmcnt(8)")
for f in range(4):
    for h in range(2): a(f"ds_read_b64_tr_b16 {vr(64+4*f+2*h,2)}, v{cW3} offset:{512*f+128*h}")
a("s_waitcnt lgkmcnt(8)")
for f in range(12):
    for n in range(2, 8):
        i = f + 8 - 2*n
        if 0 <= i < 6: mf(n, 16+4*f, B2+4*i)
a("s_waitcnt lgkmcnt(0)")
for f in range(4):
    for n in range(4+f, 8): mf(n, 64+4*f, B3+4*(n-f-4))
if PROF: a("s_cmp_lt_u32 s4, 4\ns_cbranch_scc1 L_ns8")
stamp(8)
if PROF: a("L_ns8:")
a(f"s_lshl_b32 s14, s{S_CH}, 7\ns_add_u32 s14, s14, {YA}\ns_nop 7")
for n in range(0, 8, 2):
    o = 16 + 2*n
    a(f"v_cvt_pk_bf16_f32 v{o}, v{CA+4*n}, v{CA+4*n+1}\nv_cvt_pk_bf16_f32 v{o+1}, v{CA+4*n+2}, v{CA+4*n+3}")
    a(f"v_cvt_pk_bf16_f32 v{o+2}, v{CA+4*n+4}, v{CA+4*n+5}\nv_cvt_pk_bf16_f32 v{o+3}, v{CA+4*n+6}, v{CA+4*n+7}")
    a(f"v_permlane16_swap_b32 v{o}, v{o+2}\nv_permlane16_swap_b32 v{o+1}, v{o+3}")
    a(f"buffer_store_dwordx4 {vr(o,4)}, v{cST}, {WS}, s14 offen sc1\ns_add_u32 s14, s14, {8*81920}")
a(f"s_mul_i32 s13, s{S_CH}, 820\ns_lshr_b32 s13, s13, 16\ns_lshl_b32 s14, s13, 9\ns_add_u32 s14, s14, {YAC}\nv_lshlrev_b32 v4, 7, v0\nv_mov_b32 v5, 1")
a(f"s_waitcnt vmcnt(0)\ns_mov_b64 exec, 15\nbuffer_atomic_add v5, v4, {WS}, s14 offen sc1\ns_mov_b64 exec, -1")
a("s_setprio 0")
stamp(9)
a(f"s_cmp_eq_u32 {WV}, 7\ns_cbranch_scc1 L_fetch")
endp()
a("L_kexp:")
for q in range(3): a(f"ds_read_b128 {vr(16+4*q,4)}, v13 offset:{SCR+1024*q}")
a(f"s_lshl_b32 s9, s{S_CH}, 12\ns_add_u32 s9, s9, {KD}")
for q in range(3): a(f"s_waitcnt lgkmcnt({2-q})\nbuffer_store_dwordx4 {vr(16+4*q,4)}, v1, {WS}, s9 offen offset:{1024*q} sc1")
a(f"s_sub_u32 s8, s{S_CH}, 256\ns_lshr_b32 s8, s8, 3\ns_lshl_b32 s8, s8, 2\ns_add_u32 s8, s8, {WV}\ns_cmp_ge_u32 s8, 144\ns_cselect_b32 s12, 1, 0\ns_mul_i32 s9, s12, 144\ns_sub_u32 s8, s8, s9")
a("s_mul_i32 s9, s8, 1821\ns_lshr_b32 s9, s9, 16\ns_mul_i32 s10, s9, 36\ns_sub_u32 s8, s8, s10")
a("s_cmp_ge_u32 s8, 20\ns_cselect_b32 s10, 1, 0\ns_mul_i32 s11, s10, 20\ns_sub_u32 s8, s8, s11\ns_lshl_b32 s8, s8, 3\ns_lshl_b32 s9, s9, 1\ns_add_u32 s8, s8, s9\ns_add_u32 s8, s8, s10")
a(f"s_lshl_b32 s8, s8, 7\ns_add_u32 s8, s8, {MBOX}\ns_lshl_b32 s9, 0x1000000, s12\nv_mov_b32 v4, 0\nv_mov_b32 v5, s9")
a(f"s_waitcnt vmcnt(0)\ns_mov_b64 exec, 1\nbuffer_atomic_or v5, v4, {WS}, s8 offen sc1\ns_mov_b64 exec, -1")
stamp(12)
a("s_setprio 0\ns_mov_b32 s35, 1\ns_branch L_g2")
a("L_cv_rk:")
a("s_bitcmp1_b32 s68, 0\ns_cbranch_scc1 L_cv_k1")
spoll(sld(31, S_MB), "s_and_b32 s13, s31, s101", sleep=6)
kloads()
a("L_cv_k1:")
for q in range(3): a(f"s_waitcnt vmcnt({2-q})\nds_write_b128 v{cLIN}, {vr(32+4*q,4)} offset:{SCR+1024*q}")
stamp(4)
a("s_branch L_cv_kpart")

a("L_end:")
if PROF:
    a(f"s_lshl_b32 s93, s2, 3\ns_add_u32 s93, s93, {WV}\ns_lshl_b32 s93, s93, 6\ns_add_u32 s93, s93, {PROFB}")
    a(f"s_memrealtime s[94:95]\ns_waitcnt lgkmcnt(0)\ns_mov_b32 s87, s94\ns_mov_b32 s72, s{S_SPIN}")
    for i in range(16): a(f"v_mov_b32 v{224+i}, s{72+i}")
    a("v_mov_b32 v255, 0\ns_mov_b64 exec, 1")
    for i in range(4): a(f"buffer_store_dwordx4 {vr(224+4*i,4)}, v255, {WS}, s93 offen offset:{16*i}")
    if opt("dbgmax", 0):
        a(f"v_not_b32 v238, v238\ns_and_b32 s93, {WV}, 3\ns_cmp_lg_u32 s93, 0\ns_cbranch_scc1 L_exit")
        sel0 = {1: 14, 2: 15, 3: 1, 4: 2, 5: 5, 6: 6, 7: 8, 8: 10}
        sel4 = {9: 10, 10: 4, 11: 7, 12: 8, 13: 9}
        a(f"s_cmp_lg_u32 {WV}, 0\ns_cbranch_scc1 L_dbg4")
        for d, i in sel0.items(): a(f"buffer_atomic_umax v{224+i}, v255, {DBG}, 0 offen offset:{4*d} sc1")
        a("s_branch L_exit")
        a("L_dbg4:")
        for d, i in sel4.items(): a(f"buffer_atomic_umax v{224+i}, v255, {DBG}, 0 offen offset:{4*d} sc1")
a("L_exit:")
a("s_endpgm")

hdr = open("cdna_kernels/%s.s.ref" % NAME).read().split("; Override launch")[0]
out = hdr + "; @launch grid=(256,1,1) block=(512,1,1) lds=163840\n"
out += '.amdgcn_target "amdgcn-amd-amdhsa--gfx950"\n.text\n' + a.text()
out += f""".section .rodata,"a"
.p2align 6
.amdhsa_kernel {KN}
  .amdhsa_next_free_vgpr 256
  .amdhsa_next_free_sgpr 102
  .amdhsa_accum_offset 256
  .amdhsa_group_segment_fixed_size 0
  .amdhsa_kernarg_size 136
  .amdhsa_user_sgpr_count 2
  .amdhsa_user_sgpr_kernarg_segment_ptr 1
  .amdhsa_system_sgpr_workgroup_id_x 1
.end_amdhsa_kernel
"""
path = [x for x in sys.argv[1:] if not x.startswith("--")]
open(path[0] if path else "f.s", "w").write(out)
```
